```python
import torch

def _softmax(x, axis=-1):
    return torch.softmax(x, dim=axis)
def _gelu(x):
    return torch.nn.functional.gelu(x, approximate="tanh")
def _silu(x):
    return torch.nn.functional.silu(x)
def _sigmoid(x):
    return torch.sigmoid(x)
def _layernorm(x, axis=-1, eps=1e-5):
    m = x.mean(dim=axis, keepdim=True)
    v = x.var(dim=axis, keepdim=True, unbiased=False)
    return (x - m) / torch.sqrt(v + eps)
def _scatter_add(tgt, idx, src, axis=0):
    return tgt.clone().index_add_(axis, idx, src)
def _segment_sum(src, seg, n):
    out = torch.zeros((n,) + src.shape[1:], dtype=src.dtype)
    return out.index_add_(0, seg, src)
def _pad(x, pw):
    flat = tuple(v for pair in reversed(pw) for v in pair)
    return torch.nn.functional.pad(x, flat)

kernel_name = 'concat_heads__grouped_kv_mqa__sliding_local_dilated__prompt'

def setup_inputs():

    _w = (lambda a: (lambda t: t.to(torch.bfloat16) if t.is_floating_point() else t)(torch.as_tensor(a)))
    def _A_setup():
        B, S, D, H = 1, 2048, 512, 32
        Dh = D // H
        return {
            "x": _w((lambda *s: torch.randn(*s, dtype=torch.bfloat16) * 0.05)(B, S, D)),
            "wq": _w((lambda *s: torch.randn(*s, dtype=torch.bfloat16) * 3.2)(D, H * Dh)),
            "wk": _w((lambda *s: torch.randn(*s, dtype=torch.bfloat16) * 3.2)(D, Dh)),
            "wv": _w((lambda *s: torch.randn(*s, dtype=torch.bfloat16) * 1.6)(D, Dh)),
            "wo": _w((lambda *s: torch.randn(*s, dtype=torch.bfloat16) * 1.6)(H * Dh, D)),
        }
    _A_in = _A_setup()

    def _B_setup():
        B, S, D = 1, 2048, 512
        return {
            "x": _w((lambda *s: torch.randn(*s, dtype=torch.bfloat16) * 0.1)(B, S, D)),
            "wqkv": _w((lambda *s: torch.randn(*s, dtype=torch.bfloat16) * 0.8)(D, 3 * D)),
            "wo": _w((lambda *s: torch.randn(*s, dtype=torch.bfloat16) * 0.8)(D, D)),
        }
    _B_in = _B_setup()

    return {
        "A_x": _A_in["x"],
        "A_wq": _A_in["wq"],
        "A_wk": _A_in["wk"],
        "A_wv": _A_in["wv"],
        "A_wo": _A_in["wo"],
        "B_x": _B_in["x"],
        "B_wqkv": _B_in["wqkv"],
        "B_wo": _B_in["wo"],
    }

def reference(A_x, A_wq, A_wk, A_wv, A_wo, B_x, B_wqkv, B_wo):
    def _A_ref(x, wq, wk, wv, wo):
        B, S, D = x.shape
        H = 32
        Dh = D // H
        q = (lambda x, *d: x.permute(*d))((x @ wq).reshape(B, S, H, Dh), 0, 2, 1, 3)
        k = x @ wk
        v = x @ wv
        scores = torch.einsum("bhqd,bkd->bhqk", q, k) * (Dh ** -0.5)
        p = _softmax(scores, axis=-1)
        o = torch.einsum("bhqk,bkd->bhqd", p, v)
        return (lambda x, *d: x.permute(*d))(o, 0, 2, 1, 3).reshape(B, S, H * Dh) @ wo

    def _B_ref(x, wqkv, wo):
        B, S, D = x.shape
        H = 32; Dh = D // H
        W, dil = 8, 2
        qkv = (lambda x, *d: x.permute(*d))((x @ wqkv).reshape(B, S, 3, H, Dh), 2, 0, 3, 1, 4)
        q, k, v = qkv[0], qkv[1], qkv[2]
        scale = Dh ** -0.5
        pos = torch.arange(S)
        off = torch.arange(W) * dil
        idx = pos[:, None] - off[None, :]
        mask = idx >= 0
        idx_c = torch.where(mask, idx, 0).reshape(-1)
        kg = k[:, :, idx_c, :].reshape(B, H, S, W, Dh)
        vg = v[:, :, idx_c, :].reshape(B, H, S, W, Dh)
        logits = torch.einsum("bhsd,bhswd->bhsw", q, kg) * scale
        logits = torch.where(mask[None, None, :, :], logits, -1e9)
        attn = _softmax(logits, axis=-1)
        o = torch.einsum("bhsw,bhswd->bhsd", attn, vg)
        return (lambda x, *d: x.permute(*d))(o, 0, 2, 1, 3).reshape(B, S, D) @ wo

    a = _A_ref(A_x, A_wq, A_wk, A_wv, A_wo)
    b = _B_ref(B_x, B_wqkv, B_wo)
    return torch.concatenate([a, b], axis=-1)
```

```python
import sys, math, struct

NAME = "concat_heads__grouped_kv_mqa__sliding_local_dilated__prompt"

def f32bits(x): return struct.unpack("<I", struct.pack("<f", x))[0]

class Em:
    def __init__(self): self.L = []; self.n = 0
    def __call__(self, s): self.L.append("    " + s)
    def lab(self, s): self.L.append(s + ":")
    def uniq(self, p): self.n += 1; return f"L_{p}_{self.n}"
    def c(self, s): self.L.append("    ; " + s)
    def text(self): return "\n".join(self.L) + "\n"

def vr(b, n): return f"v[{b}:{b+n-1}]" if n > 1 else f"v{b}"
def sr(b, n): return f"s[{b}:{b+n-1}]" if n > 1 else f"s{b}"

sWG, sW = 2, 3
R_XA, R_WQ, R_WKV, R_WOA, R_XB, R_WB, R_WOB, R_OUT, R_WS, R_DBG = 32, 36, 40, 44, 48, 52, 56, 60, 64, 68
sRB, sCB, sTB, sHP, sSB, sKIND, sC0, sI = 72, 73, 74, 75, 76, 77, 78, 79
sT = 80
sSPIN, sBad = 100, 101
SPIN_MAX = 100000
QW, KW, VW, OB, FL = 0, 2 << 20, (2 << 20) + 65536, 4 << 20, 8 << 20
WS_BYTES = 16 << 20
LDS_BYTES = 163840
SLOT = 32768
WKV_L = 131072
RING = [131072, 0, 32768, 65536]
OS_L, OS_STRIDE = 98304, 2560
QI_L, NM_L = 118784, 126976
HCNT, ACNT, VERD = 162816, 163072, 163328
EX_L = 131072
WOA_L, WOB_L = 0, 65536
CSC = 0.25 * math.log2(math.e)
MOFF = 64.0

MF32 = "v_mfma_f32_32x32x16_bf16"
MF16 = "v_mfma_f32_16x16x32_bf16"

def setup(e, endlab):
    e(f"s_cmp_ge_u32 s{sWG}, 256")
    e(f"s_cbranch_scc1 {endlab}")
    e("s_load_dwordx16 s[8:23], s[0:1], 0")
    e("s_load_dwordx4 s[24:27], s[0:1], 64")
    e("s_load_dwordx2 s[28:29], s[0:1], 80")
    e("v_lshrrev_b32 v1, 6, v0")
    e("v_and_b32 v0, 63, v0")
    e(f"s_and_b32 s{sT}, s{sWG}, 7")
    e(f"v_readfirstlane_b32 s{sW}, v1")
    e(f"s_lshr_b32 s{sT+1}, s{sWG}, 3")
    e(f"s_lshr_b32 s{sT+2}, s{sT+1}, 3")
    e(f"s_lshl_b32 s{sRB}, s{sT}, 2")
    e(f"s_add_u32 s{sRB}, s{sRB}, s{sT+2}")
    e(f"s_and_b32 s{sCB}, s{sT+1}, 7")
    e(f"s_lshr_b32 s{sT+2}, s{sT+1}, 4")
    e(f"s_lshl_b32 s{sTB}, s{sT}, 1")
    e(f"s_add_u32 s{sTB}, s{sTB}, s{sT+2}")
    e(f"s_and_b32 s{sHP}, s{sT+1}, 15")
    e(f"s_lshr_b32 s{sSB}, s{sCB}, 1")
    e(f"s_and_b32 s{sKIND}, s{sCB}, 1")
    e(f"s_add_u32 s{sC0}, s{sRB}, s{sSB}")
    e(f"s_and_b32 s{sI}, s{sW}, 3")
    e(f"s_mov_b32 s{sSPIN}, 0")
    e("s_waitcnt lgkmcnt(0)")
    def srd(R, p, nbytes):
        e(f"s_mov_b32 s{R}, s{p}")
        e(f"s_mov_b32 s{R+1}, s{p+1}")
        e(f"s_mov_b32 s{R+2}, {hex(nbytes)}")
        e(f"s_mov_b32 s{R+3}, 0x20000")
    srd(R_XA, 8, 2 << 20); srd(R_WQ, 10, 512 << 10)
    e(f"s_cmp_eq_u32 s{sKIND}, 0")
    e(f"s_cselect_b32 s{R_WKV}, s12, s14")
    e(f"s_cselect_b32 s{R_WKV+1}, s13, s15")
    e(f"s_mov_b32 s{R_WKV+2}, 0x4000")
    e(f"s_mov_b32 s{R_WKV+3}, 0x20000")
    srd(R_WOA, 16, 512 << 10); srd(R_XB, 18, 2 << 20); srd(R_WB, 20, 1536 << 10); srd(R_WOB, 22, 512 << 10)
    srd(R_OUT, 24, 4 << 20); srd(R_DBG, 26, 256); srd(R_WS, 28, WS_BYTES)

def dma(e, voff, R, soff, extra=""):
    e(f"buffer_load_dwordx4 v{voff}, {sr(R,4)}, s{soff} offen lds{extra}")

def lds_sync(e, vcnt, vone, vtmp, target, sleep=1):
    e(f"ds_add_u32 v{vcnt}, v{vone}")
    lds_wait(e, vcnt, vtmp, target, sleep)

def lds_wait(e, vcnt, vtmp, target, sleep=1, off=0):
    l = e.uniq("poll"); d = e.uniq("pdone")
    e.lab(l)
    e(f"ds_read_b32 v{vtmp}, v{vcnt}" + (f" offset:{off}" if off else ""))
    e("s_waitcnt lgkmcnt(0)")
    e(f"v_readfirstlane_b32 s{sT+18}, v{vtmp}")
    e(f"s_cmp_ge_u32 s{sT+18}, {target}")
    e(f"s_cbranch_scc1 {d}")
    e(f"s_sleep {sleep}")
    e(f"s_add_u32 s{sSPIN}, s{sSPIN}, 1")
    e(f"s_cmp_lt_u32 s{sSPIN}, {SPIN_MAX}")
    e(f"s_cbranch_scc1 {l}")
    e.lab(d)

def chunk_rot4(e, base):
    for sg in range(4):
        e(f"s_add_u32 s{base+sg}, s{sC0}, {sg}")
        e(f"s_and_b32 s{base+sg}, s{base+sg}, 3")
        e(f"s_lshl_b32 s{base+sg}, s{base+sg}, 8")

def astage_q(e, sc):
    sCh, sXg, sXl, sO = sT, sT+4, sT+8, sT+12
    e.c("---- A-stage Q wave")
    chunk_rot4(e, sCh)
    for du in range(4):
        e(f"s_add_u32 s{sO}, s{sSB}, {du}")
        e(f"s_and_b32 s{sO}, s{sO}, 3")
        e(f"s_lshl_b32 s{sXg+du}, s{sRB}, 2")
        e(f"s_add_u32 s{sXg+du}, s{sXg+du}, s{sO}")
        e(f"s_lshl_b32 s{sXg+du}, s{sXg+du}, 14")
        e(f"s_lshl_b32 s{sXl+du}, s{sO}, 2")
        e(f"s_add_u32 s{sXl+du}, s{sXl+du}, s{sI}")
        e(f"s_lshl_b32 s{sXl+du}, s{sXl+du}, 10")
    e("v_lshrrev_b32 v2, 4, v0")
    e(f"s_lshl_b32 s{sO}, s{sI}, 2")
    e(f"v_add_u32 v3, s{sO}, v2")
    e("v_and_b32 v4, 15, v0")
    e("v_xor_b32 v4, v4, v3")
    e("v_lshlrev_b32 v4, 4, v4")
    e("v_lshl_add_u32 v1, v3, 10, v4")
    def ld(sg, du):
        e(f"s_add_u32 m0, s{sXl+du}, {sg*SLOT}")
        e(f"s_add_u32 s{sO}, s{sXg+du}, s{sCh+sg}")
        dma(e, 1, R_XA, sO)
    for sg in range(4): ld(sg, 0)
    for sg in range(4):
        for du in range(1, 4): ld(sg, du)
    vXa, vWa = 8, 16
    e(f"s_and_b32 s{sO}, s{sI}, 1")
    e(f"s_lshl_b32 s{sO}, s{sO}, 13")
    e("v_and_b32 v2, 31, v0")
    e("v_lshrrev_b32 v3, 5, v0")
    e("v_and_b32 v4, 15, v0")
    e("v_xor_b32 v4, v4, v3")
    e(f"v_lshl_add_u32 v5, v2, 8, s{sO}")
    for s in range(8):
        e(f"v_xor_b32 v6, {2*s}, v4")
        e(f"v_lshl_add_u32 v{vXa+s}, v6, 4, v5")
    e("v_bfe_u32 v2, v0, 2, 2")
    e("v_lshl_add_u32 v4, v3, 3, v2")
    e("v_lshlrev_b32 v4, 7, v4")
    e("v_lshrrev_b32 v2, 1, v2")
    e(f"s_lshr_b32 s{sO}, s{sI}, 1")
    e(f"v_xor_b32 v2, s{sO}, v2")
    e("v_lshl_add_u32 v4, v2, 6, v4")
    e("v_bfe_u32 v2, v0, 4, 1")
    e("v_lshl_add_u32 v4, v2, 5, v4")
    e("v_and_b32 v2, 3, v0")
    e("v_lshl_add_u32 v4, v2, 3, v4")
    e(f"v_add_u32 v{vWa}, 16384, v4")
    e("v_bfe_u32 v2, v0, 3, 2")
    e("v_lshlrev_b32 v2, 13, v2")
    e("v_lshl_add_u32 v2, v3, 9, v2")
    e("v_and_b32 v4, 7, v0")
    e("v_lshl_add_u32 v17, v4, 4, v2")
    acc, fx, fw = 32, 64, 96
    e("s_waitcnt vmcnt(12)")
    e("s_barrier")
    for sg in range(4):
        e(f"s_waitcnt vmcnt({9-3*sg})")
        e("s_barrier")
        if sg == 2:
            for s in range(9): e(f"v_add_u32 v{vXa+s}, 65536, v{vXa+s}")
        so = (sg & 1) * SLOT
        def rd(s):
            e(f"ds_read_b128 {vr(fx+4*s,4)}, v{vXa+s} offset:{so}")
            e(f"ds_read_b64_tr_b16 {vr(fw+4*s,2)}, v{vWa} offset:{so+s*2048}")
            e(f"ds_read_b64_tr_b16 {vr(fw+4*s+2,2)}, v{vWa} offset:{so+s*2048+512}")
        for s in range(4): rd(s)
        for s in range(8):
            e(f"s_waitcnt lgkmcnt({min(9, 3*(7-s))})")
            cc = "0" if (sg == 0 and s == 0) else vr(acc, 16)
            e(f"{MF32} {vr(acc,16)}, {vr(fw+4*s,4)}, {vr(fx+4*s,4)}, {cc}")
            if s + 4 < 8: rd(s + 4)
    e("s_barrier")
    e(f"s_mov_b32 s{sO}, {hex(f32bits(CSC))}")
    e(f"s_and_b32 s{sO+1}, s{sI}, 1")
    e(f"s_lshl_b32 s{sO+2}, s{sRB}, 1")
    e(f"s_add_u32 s{sO+1}, s{sO+1}, s{sO+2}")
    e(f"s_lshl_b32 s{sO+1}, s{sO+1}, 15")
    e(f"s_lshl_b32 s{sO+2}, s{sCB}, 10")
    e(f"s_add_u32 s{sO+1}, s{sO+1}, s{sO+2}")
    e(f"s_lshr_b32 s{sO+2}, s{sI}, 1")
    e(f"s_lshl_b32 s{sO+2}, s{sO+2}, 8")
    e(f"s_add_u32 s{sO+1}, s{sO+1}, s{sO+2}")
    e("s_nop 7")
    for r in range(16): e(f"v_mul_f32 v{acc+r}, s{sO}, v{acc+r}")
    for j in range(8): e(f"v_cvt_pk_bf16_f32 v{fx+j}, v{acc+2*j}, v{acc+2*j+1}")
    e(f"buffer_store_dwordx4 {vr(fx,4)}, v17, {sr(R_WS,4)}, s{sO+1} offen{sc}")
    e(f"buffer_store_dwordx4 {vr(fx+4,4)}, v17, {sr(R_WS,4)}, s{sO+1} offen offset:128{sc}")

def astage_aux(e):
    sCh, sO = sT, sT+12
    e.c("---- A-stage aux wave")
    chunk_rot4(e, sCh)
    e("v_lshlrev_b32 v1, 4, v0")
    e("v_lshrrev_b32 v2, 3, v0")
    e("v_bfe_u32 v3, v0, 4, 1")
    e("v_lshlrev_b32 v3, 2, v3")
    e("v_and_b32 v4, 7, v0")
    e("v_xor_b32 v4, v4, v3")
    e("v_lshlrev_b32 v4, 4, v4")
    e("v_lshl_add_u32 v2, v2, 10, v4")
    e(f"s_lshl_b32 s{sO+1}, s{sI}, 12")
    for i in range(4):
        e(f"s_add_u32 m0, s{sO+1}, {WKV_L + i*1024}")
        e(f"s_add_u32 s{sO}, s{sO+1}, {i*1024}")
        dma(e, 1, R_WKV, sO)
    e(f"s_lshl_b32 s{sO+2}, s{sI}, 15")
    e(f"s_lshl_b32 s{sO+3}, s{sCB}, 7")
    e(f"s_add_u32 s{sO+2}, s{sO+2}, s{sO+3}")
    for sg in range(4):
        e(f"s_lshl_b32 s{sO+3}, s{sCh+sg}, 9")
        e(f"s_add_u32 s{sO+3}, s{sO+3}, s{sO+2}")
        for i in range(4):
            e(f"s_add_u32 m0, s{sO+1}, {sg*SLOT + 16384 + i*1024}")
            e(f"s_add_u32 s{sO}, s{sO+3}, {i*8192}")
            dma(e, 2, R_WQ, sO)
    for n in (16, 12, 8, 4, 0):
        e(f"s_waitcnt vmcnt({n})")
        e("s_barrier")
    e("s_barrier")

def kv_prep(e):
    sCh, sO = sT, sT+12
    chunk_rot4(e, sCh)
    e("v_and_b32 v2, 15, v0")
    e("v_lshrrev_b32 v3, 4, v0")
    e("v_xor_b32 v4, v2, v3")
    e(f"s_lshl_b32 s{sO}, s{sSB}, 12")
    e(f"v_lshl_add_u32 v5, v2, 8, s{sO}")
    for q in range(4):
        e(f"v_xor_b32 v6, {4*q}, v4")
        e(f"v_lshl_add_u32 v{8+q}, v6, 4, v5")
        e(f"v_add_u32 v{12+q}, 65536, v{8+q}")
    e("v_bfe_u32 v4, v0, 2, 2")
    e("v_lshl_add_u32 v4, v3, 3, v4")
    e("v_lshlrev_b32 v4, 5, v4")
    e("v_and_b32 v5, 3, v0")
    e("v_lshl_add_u32 v4, v5, 3, v4")
    e(f"v_add_u32 v4, {WKV_L}, v4")
    for sg in range(4):
        e(f"s_lshl_b32 s{sO}, s{sCh+sg}, 4")
        e(f"v_add_u32 v{16+sg}, s{sO}, v4")
    e(f"s_lshl_b32 s{sO}, s{sRB}, 11")
    e(f"s_lshr_b32 s{sO+1}, s{sSB}, 1")
    e(f"s_lshl_b32 s{sO+1}, s{sO+1}, 10")
    e(f"s_and_b32 s{sO+2}, s{sSB}, 1")
    e(f"s_lshl_b32 s{sO+2}, s{sO+2}, 8")
    e(f"s_add_u32 s{sO+1}, s{sO+1}, s{sO+2}")
    e(f"s_add_u32 s{sO+1}, s{sO+1}, {KW}")
    e(f"s_lshl_b32 s{sO+2}, s{sSB}, 9")
    e(f"s_add_u32 s{sO+2}, s{sO+2}, {VW}")
    e(f"s_cmp_eq_u32 s{sKIND}, 0")
    e(f"s_cselect_b32 s{sO+1}, s{sO+1}, s{sO+2}")
    e(f"s_cselect_b32 s{sO+2}, 9, 8")
    e(f"s_add_u32 s{sT+16}, s{sO}, s{sO+1}")
    e("v_and_b32 v4, 1, v3")
    e(f"v_lshlrev_b32 v4, s{sO+2}, v4")
    e("v_lshl_add_u32 v20, v2, 4, v4")

def kv_job(e, sc):
    fx, fw, acc = 32, 96, 24
    lv, ld = e.uniq("kv_v"), e.uniq("kv_d")
    def body(kind):
        def rd(s):
            sg, q = s >> 2, s & 3
            e(f"ds_read_b128 {vr(fx+4*s,4)}, v{8+q+4*(sg>>1)} offset:{(sg&1)*SLOT}")
            e(f"ds_read_b64_tr_b16 {vr(fw+4*s,2)}, v{16+sg} offset:{q*1024}")
            e(f"ds_read_b64_tr_b16 {vr(fw+4*s+2,2)}, v{16+sg} offset:{q*1024+128}")
        for s in range(5): rd(s)
        for s in range(16):
            e(f"s_waitcnt lgkmcnt({min(12, 3*(15-s))})")
            cc = "0" if s == 0 else vr(acc, 4)
            a, b = (fw, fx) if kind == 0 else (fx, fw)
            e(f"{MF16} {vr(acc,4)}, {vr(a+4*s,4)}, {vr(b+4*s,4)}, {cc}")
            if s + 5 < 16: rd(s + 5)
    e(f"s_cmp_lg_u32 s{sKIND}, 0")
    e(f"s_cbranch_scc1 {lv}")
    body(0)
    e(f"s_branch {ld}")
    e.lab(lv)
    body(1)
    e.lab(ld)
    e("s_nop 7")
    e(f"v_cvt_pk_bf16_f32 v28, v{acc}, v{acc+1}")
    e(f"v_cvt_pk_bf16_f32 v29, v{acc+2}, v{acc+3}")
    e("s_nop 1")
    e("v_permlane32_swap_b32 v28, v30")
    e("v_permlane32_swap_b32 v29, v31")
    e("s_mov_b32 exec_hi, 0")
    e("s_nop 0")
    e(f"buffer_store_dwordx4 v[28:31], v20, {sr(R_WS,4)}, s{sT+16} offen{sc}")
    e("s_mov_b64 exec, -1")

sBX, sBH, sBW, sKC, sBXL, sBHL, sBWL = sT+4, sT+5, sT+6, sT+7, sT+8, sT+9, sT+10
def b_prep(e):
    sO = sT+12
    e.c("---- B prep")
    e("v_lshrrev_b32 v160, 3, v0")
    e("v_and_b32 v161, 7, v0")
    e("v_lshrrev_b32 v162, 1, v160")
    e("v_xor_b32 v163, v161, v162")
    e("v_lshlrev_b32 v163, 4, v163")
    e("v_lshl_add_u32 v1, v160, 10, v163")
    e("v_xor_b32 v2, 64, v1")
    e(f"s_and_b32 s{sO}, s{sI}, 1")
    e(f"s_lshl_b32 s{sO+1}, s{sO}, 6")
    e(f"v_xor_b32 v3, s{sO+1}, v1")
    e("v_lshrrev_b32 v160, 2, v0")
    e("v_mul_u32_u24 v160, 3072, v160")
    e("v_and_b32 v161, 3, v0")
    e("v_lshl_add_u32 v4, v161, 4, v160")
    e("v_lshlrev_b32 v5, 2, v0")
    e(f"v_add_u32 v5, {HCNT}, v5")
    e("v_mov_b32 v6, 1")
    e(f"s_lshl_b32 s{sBX}, s{sTB}, 2")
    e(f"s_add_u32 s{sBX}, s{sBX}, s{sI}")
    e(f"s_lshl_b32 s{sBX}, s{sBX}, 15")
    e(f"s_lshl_b32 s{sBH}, s{sTB}, 17")
    e(f"s_max_u32 s{sBH}, s{sBH}, 16384")
    e(f"s_sub_u32 s{sBH}, s{sBH}, 16384")
    e(f"s_lshl_b32 s{sO+1}, s{sO}, 13")
    e(f"s_add_u32 s{sBH}, s{sBH}, s{sO+1}")
    e(f"s_mul_i32 s{sBW}, s{sI}, {16*3072}")
    e(f"s_lshl_b32 s{sO+1}, s{sHP}, 6")
    e(f"s_add_u32 s{sBW}, s{sBW}, s{sO+1}")
    e(f"s_add_u32 s{sKC}, s{sHP}, s{sTB}")
    e(f"s_lshl_b32 s{sBXL}, s{sI}, 12")
    e(f"s_add_u32 s{sBXL}, s{sBXL}, 2048")
    e(f"s_lshl_b32 s{sBHL}, s{sO}, 10")
    e(f"s_lshl_b32 s{sBWL}, s{sI}, 10")
    e(f"s_add_u32 s{sBWL}, s{sBWL}, 18432")

def b_prep2(e):
    sO = sT+12
    e("v_and_b32 v16, 31, v0")
    e("v_lshrrev_b32 v17, 5, v0")
    e("v_bfe_u32 v18, v0, 1, 3")
    e("v_xor_b32 v18, v18, v17")
    e(f"v_lshl_add_u32 v19, v16, 7, s{sBXL}")
    for s in range(4):
        e(f"v_xor_b32 v20, {2*s}, v18")
        e(f"v_lshl_add_u32 v{8+s}, v20, 4, v19")
    e("v_bfe_u32 v16, v0, 2, 2")
    e("v_and_b32 v20, 3, v0")
    e("v_lshl_add_u32 v18, v17, 3, v16")
    e("v_lshlrev_b32 v18, 6, v18")
    e("v_bfe_u32 v19, v0, 4, 1")
    e("v_lshl_add_u32 v18, v19, 5, v18")
    e("v_lshl_add_u32 v18, v20, 3, v18")
    e("v_add_u32 v12, 18432, v18")
    e("v_lshrrev_b32 v17, 4, v0")
    e("v_bfe_u32 v18, v0, 1, 3")
    e("v_xor_b32 v18, v18, v17")
    e("v_and_b32 v19, 15, v0")
    e("v_lshlrev_b32 v19, 7, v19")
    e("v_lshl_add_u32 v13, v18, 4, v19")
    e("v_xor_b32 v14, 64, v13")
    e("v_lshl_add_u32 v18, v17, 3, v16")
    e("v_lshlrev_b32 v18, 6, v18")
    e("v_lshl_add_u32 v18, v20, 3, v18")
    e(f"s_lshr_b32 s{sO}, s{sI}, 1")
    e(f"s_lshl_b32 s{sO}, s{sO}, 12")
    e(f"s_and_b32 s{sO+1}, s{sI}, 1")
    e(f"s_lshl_b32 s{sO+1}, s{sO+1}, 5")
    e(f"s_add_u32 s{sO}, s{sO}, s{sO+1}")
    e(f"s_add_u32 s{sO}, s{sO}, {18432+4096}")
    e(f"v_add_u32 v15, s{sO}, v18")

def b_masks(e):
    MC, MP = 76, 92
    e(f"v_mov_b32 v{MC}, {hex(f32bits(-1e30))}")
    for r in range(1, 32): e(f"v_mov_b32 v{MC+r}, v{MC}")
    def mask(r, shift):
        m = 0
        for l in range(64):
            n, h = l & 31, l >> 5
            row = (r & 3) + 8 * (r >> 2) + 4 * h
            d = n - row + shift
            if 0 <= d <= 14 and d % 2 == 0: m |= 1 << l
        return m
    def setm(reg, m):
        if m == 0: return
        e(f"s_mov_b32 exec_lo, {hex(m & 0xffffffff)}")
        e(f"s_mov_b32 exec_hi, {hex(m >> 32)}")
        e(f"v_mov_b32 v{reg}, 0")
    for r in range(16): setm(MC + r, mask(r, 0))
    sk = e.uniq("nomp")
    e(f"s_or_b32 s{sT+12}, s{sTB}, s{sI}")
    e(f"s_cbranch_scc0 {sk}")
    for r in range(8, 16): setm(MP + r, mask(r, 32))
    e.lab(sk)
    e("s_mov_b64 exec, -1")

def b_dma(e, j):
    sO = sT+12
    ring = RING[j & 3]
    e(f"s_add_u32 s{sO+1}, s{sKC}, {j}")
    e(f"s_and_b32 s{sO+1}, s{sO+1}, 7")
    e(f"s_lshl_b32 s{sO+2}, s{sO+1}, 7")
    e(f"s_mul_i32 s{sO+1}, s{sO+1}, {64*3072}")
    e(f"s_add_u32 s{sO+1}, s{sO+1}, s{sBW}")
    e(f"s_add_u32 s{sO+3}, s{sO+2}, s{sBX}")
    for p in range(3):
        e(f"s_add_u32 m0, s{sBWL}, {ring + p*4096}")
        e(f"s_add_u32 s{sO}, s{sO+1}, {p*1024}")
        dma(e, 4, R_WB, sO)
    for u in range(4):
        e(f"s_add_u32 m0, s{sBXL}, {ring + u*1024}")
        e(f"s_add_u32 s{sO}, s{sO+3}, {u*8192}")
        dma(e, 1 + (u & 1), R_XB, sO)
    e(f"s_add_u32 m0, s{sBHL}, {ring}")
    e(f"s_add_u32 s{sO}, s{sO+2}, s{sBH}")
    dma(e, 3, R_XB, sO)

def b_proj(e, after_sync7=None):
    aq, ak, av, ah, fr = 24, 40, 56, 72, 108
    for j in range(8):
        ring = RING[j & 3]
        if ring >= 65536:
            for a in range(8): e(f"v_add_u32 v{16+a}, {ring}, v{8+a}")
            A, ro = 16, 0
        else:
            A, ro = 8, ring
        younger = {0: 24, 6: 8, 7: 0}.get(j, 16)
        e(f"s_waitcnt vmcnt({younger})")
        lds_sync(e, 5, 6, 7, 4 * (j + 1))
        if 1 <= j <= 4: b_dma(e, j + 3)
        if j == 7 and after_sync7: after_sync7()
        def rd(s):
            b = fr + 16 * (s % 3)
            e(f"ds_read_b128 {vr(b,4)}, v{A+s} offset:{ro}")
            for p in range(3):
                e(f"ds_read_b64_tr_b16 {vr(b+4+4*p,2)}, v{A+4} offset:{ro+p*4096+s*1024}")
                e(f"ds_read_b64_tr_b16 {vr(b+6+4*p,2)}, v{A+4} offset:{ro+p*4096+s*1024+256}")
        def rdh(s2):
            b = fr + 48
            e(f"ds_read_b128 {vr(b,4)}, v{A+5+s2} offset:{ro}")
            e(f"ds_read_b64_tr_b16 {vr(b+4,2)}, v{A+7} offset:{ro+s2*2048}")
            e(f"ds_read_b64_tr_b16 {vr(b+6,2)}, v{A+7} offset:{ro+s2*2048+256}")
        def mm(s):
            b = fr + 16 * (s % 3)
            z = (j == 0 and s == 0)
            e(f"{MF32} {vr(aq,16)}, {vr(b+4,4)}, {vr(b,4)}, {'0' if z else vr(aq,16)}")
            e(f"{MF32} {vr(ak,16)}, {vr(b+8,4)}, {vr(b,4)}, {'0' if z else vr(ak,16)}")
            e(f"{MF32} {vr(av,16)}, {vr(b,4)}, {vr(b+12,4)}, {'0' if z else vr(av,16)}")
        def mh(s2):
            b = fr + 48
            z = (j == 0 and s2 == 0)
            e(f"{MF16} {vr(ah,4)}, {vr(b+4,4)}, {vr(b,4)}, {'0' if z else vr(ah,4)}")
        rd(0); rd(1)
        e("s_waitcnt lgkmcnt(7)"); mm(0); rdh(0)
        e("s_waitcnt lgkmcnt(3)"); rd(2); mm(1)
        e("s_waitcnt lgkmcnt(7)"); mh(0); rd(3)
        e("s_waitcnt lgkmcnt(7)"); mm(2); rdh(1)
        e("s_waitcnt lgkmcnt(3)"); mm(3)
        e("s_waitcnt lgkmcnt(0)"); mh(1)

def b_attn(e, sc, after_sync8=None):
    sO = sT+12
    aq, ak, av, ah, MC, MP = 24, 40, 56, 72, 76, 92
    Qf, Kf, Vf = 108, 116, 124
    Kp, Vp = 132, 140
    ONES = 144
    e.c("---- local attention")
    e(f"s_mul_i32 s{sO}, s{sI}, 3072")
    e(f"s_add_u32 s{sO}, s{sO}, {EX_L}")
    e(f"v_lshl_add_u32 v8, v0, 4, s{sO}")
    e("v_and_b32 v9, 15, v0")
    e("v_lshrrev_b32 v10, 4, v0")
    for r in range(4): e(f"v_mov_b32 v{ONES+r}, 0x3f803f80")
    e("s_nop 4")
    for j in range(8): e(f"v_cvt_pk_bf16_f32 v{Kf+j}, v{ak+2*j}, v{ak+2*j+1}")
    for j in range(8): e(f"v_cvt_pk_bf16_f32 v{Vf+j}, v{av+2*j}, v{av+2*j+1}")
    e(f"v_cvt_pk_bf16_f32 v16, v{ah}, v{ah+1}")
    e(f"v_cvt_pk_bf16_f32 v17, v{ah+2}, v{ah+3}")
    e(f"ds_write_b128 v8, {vr(Kf,4)} offset:3072")
    e(f"ds_write_b128 v8, {vr(Kf+4,4)} offset:{3072+1024}")
    e(f"ds_write_b128 v8, {vr(Vf+4,4)} offset:{3072+2048}")
    lv, ld = e.uniq("hv"), e.uniq("hd")
    e(f"s_and_b32 s{sO}, s{sI}, 1")
    e(f"s_cmp_ge_u32 s{sI}, 2")
    e(f"s_cbranch_scc1 {lv}")
    e(f"s_lshl_b32 s{sO}, s{sO}, 10")
    e(f"s_add_u32 s{sO}, s{sO}, {EX_L+256}")
    e("v_and_b32 v11, 1, v10")
    e("v_lshlrev_b32 v11, 9, v11")
    e("v_lshl_add_u32 v11, v9, 4, v11")
    e("v_lshrrev_b32 v12, 1, v10")
    e("v_lshl_add_u32 v11, v12, 3, v11")
    e(f"v_add_u32 v11, s{sO}, v11")
    e("ds_write_b64 v11, v[16:17]")
    e(f"s_branch {ld}")
    e.lab(lv)
    e(f"s_lshl_b32 s{sO}, s{sO}, 8")
    e(f"s_add_u32 s{sO}, s{sO}, {EX_L+2048}")
    e("v_bfe_u32 v11, v0, 2, 1")
    e("v_lshlrev_b32 v11, 9, v11")
    e("v_lshl_add_u32 v11, v10, 6, v11")
    e("v_and_b32 v12, 3, v0")
    e("v_lshl_add_u32 v11, v12, 1, v11")
    e("v_bfe_u32 v12, v0, 3, 1")
    e("v_lshl_add_u32 v11, v12, 3, v11")
    e(f"v_add_u32 v11, s{sO}, v11")
    e("ds_write_b16 v11, v16")
    e("ds_write_b16_d16_hi v11, v16 offset:16")
    e("ds_write_b16 v11, v17 offset:32")
    e("ds_write_b16_d16_hi v11, v17 offset:48")
    e.lab(ld)
    for j in range(8): e(f"v_cvt_pk_bf16_f32 v{Qf+j}, v{aq+2*j}, v{aq+2*j+1}")
    lds_sync(e, 5, 6, 7, 36)
    if after_sync8: after_sync8()
    e(f"ds_read_b128 {vr(Kp,4)}, v8")
    e(f"ds_read_b128 {vr(Kp+4,4)}, v8 offset:1024")
    e(f"ds_read_b128 {vr(Vp,4)}, v8 offset:2048")
    e(f"s_lshl_b32 s{sO+1}, s{sHP}, 11")
    e(f"s_add_u32 s{sO+1}, s{sO+1}, s{sBX}")
    e(f"s_add_u32 s{sO+1}, s{sO+1}, {OB}")
    e("v_lshlrev_b32 v9, 4, v0")
    e(f"s_mov_b32 s{sO}, {hex(f32bits(CSC))}")
    e("s_waitcnt lgkmcnt(0)")
    Sc, Sp, Oa, La = 24, 40, 56, 148
    for hd in range(2):
        e(f"{MF32} {vr(Sc,16)}, {vr(Kf+4*hd,4)}, {vr(Qf+4*hd,4)}, {vr(MC,16)}")
        e(f"{MF32} {vr(Sp,16)}, {vr(Kp+4*hd,4)}, {vr(Qf+4*hd,4)}, {vr(MP,16)}")
        e("s_nop 10")
        regs = [Sc + r for r in range(16)] + [Sp + r for r in range(8, 16)]
        e(f"v_max3_f32 v10, v{regs[0]}, v{regs[1]}, v{regs[2]}")
        for k in range(3, 23, 2): e(f"v_max3_f32 v10, v10, v{regs[k]}, v{regs[k+1]}")
        e(f"v_max_f32 v10, v10, v{regs[23]}")
        e("v_mov_b32 v11, v10")
        e("s_nop 1")
        e("v_permlane32_swap_b32 v10, v11")
        e("s_nop 0")
        e("v_max_f32 v10, v10, v11")
        e(f"v_mul_f32 v10, s{sO}, v10")
        for r in regs: e(f"v_fma_f32 v{r}, v{r}, s{sO}, -v10")
        for r in regs: e(f"v_exp_f32 v{r}, v{r}")
        e("s_nop 0")
        for base in (Sc, Sc + 8, Sp + 8):
            for j in range(4): e(f"v_cvt_pk_bf16_f32 v{base+j}, v{base+2*j}, v{base+2*j+1}")
        e("s_nop 1")
        e(f"{MF32} {vr(Oa,16)}, {vr(Vf,4)}, {vr(Sc,4)}, 0")
        e(f"{MF32} {vr(La,16)}, {vr(ONES,4)}, {vr(Sc,4)}, 0")
        e(f"{MF32} {vr(Oa,16)}, {vr(Vf+4,4)}, {vr(Sc+8,4)}, {vr(Oa,16)}")
        e(f"{MF32} {vr(La,16)}, {vr(ONES,4)}, {vr(Sc+8,4)}, {vr(La,16)}")
        e(f"{MF32} {vr(Oa,16)}, {vr(Vp,4)}, {vr(Sp+8,4)}, {vr(Oa,16)}")
        e(f"{MF32} {vr(La,16)}, {vr(ONES,4)}, {vr(Sp+8,4)}, {vr(La,16)}")
        e("s_nop 11")
        e(f"v_rcp_f32 v10, v{La}")
        e("s_nop 0")
        for r in range(8): e(f"v_mul_f32 v{Oa+8*hd+r}, v10, v{Oa+8*hd+r}")
        o = 12 + 4 * hd
        for j in range(4): e(f"v_cvt_pk_bf16_f32 v{o+j}, v{Oa+8*hd+2*j}, v{Oa+8*hd+2*j+1}")
        e(f"buffer_store_dwordx4 {vr(o,4)}, v9, {sr(R_WS,4)}, s{sO+1} offen offset:{1024*hd}{sc}")

vA4, vA16, vAN, vOne, AQ, AK, AV, S0, S1, AO, ANM = 0, 1, 2, 3, 4, 8, 40, 104, 120, 136, 152
sAW, sP = sT+4, sT+5
def att_pre(e):
    e.c("---- attention pre")
    e(f"s_sub_u32 s{sAW}, s{sW}, 4")
    e(f"v_and_b32 v{S0}, 31, v0")
    e(f"v_cmp_eq_u32 vcc, 16, v{S0}")
    e(f"v_mov_b32 v{S0+1}, 0x3f803f80")
    e(f"v_lshlrev_b32 v{vA16}, 4, v0")
    e(f"v_cndmask_b32 v{AV}, 0, v{S0+1}, vcc")
    for r in range(1, 64): e(f"v_mov_b32 v{AV+r}, v{AV}")
    e(f"v_lshlrev_b32 v{vAN}, 4, v{S0}")
    e(f"v_lshrrev_b32 v{S1}, 5, v0")
    e(f"v_lshlrev_b32 v{S1}, 8, v{S1}")
    e(f"v_and_b32 v{S1+1}, 15, v0")
    e(f"v_lshl_add_u32 v{S1}, v{S1+1}, 4, v{S1}")
    e(f"v_mov_b32 v{vOne}, 1")
    e(f"v_lshlrev_b32 v{vA4}, 2, v0")

def att_zero(e):
    sO = sT+12
    e(f"s_mul_i32 s{sO}, s{sAW}, {OS_STRIDE}")
    e(f"s_add_u32 s{sO}, s{sO}, {OS_L}")
    e(f"v_add_u32 v{S0}, s{sO}, v{vA4}")
    e(f"v_mov_b32 v{S0+1}, 0")
    for r in range(10): e(f"ds_write_b32 v{S0}, v{S0+1} offset:{r*256}")

def att_load(e, sc):
    sO = sT+12
    e(f"s_add_u32 s{sO}, s{sCB}, s{sAW}")
    e(f"s_and_b32 s{sO}, s{sO}, 7")
    e(f"s_lshl_b32 s{sO}, s{sO}, 10")
    e(f"s_lshl_b32 s{sO+1}, s{sRB}, 3")
    e(f"s_add_u32 s{sO+1}, s{sO+1}, s{sCB}")
    e(f"s_lshl_b32 s{sO+1}, s{sO+1}, 13")
    e(f"s_add_u32 s{sO}, s{sO}, s{sO+1}")
    e(f"buffer_load_dwordx4 {vr(AQ,4)}, v{vA16}, {sr(R_WS,4)}, s{sO} offen{sc}")
    e(f"s_lshl_b32 s{sO+2}, s{sAW}, 13")
    e(f"s_add_u32 s{sO}, s{sO+2}, {KW}")
    e(f"s_add_u32 s{sO+1}, s{sO+2}, {VW}")
    e(f"s_add_u32 s{sO+2}, s{sO}, 4096")
    e(f"s_add_u32 s{sO+3}, s{sO+1}, 4096")
    for t in range(8):
        e(f"buffer_load_dwordx4 {vr(AK+4*t,4)}, v{vA16}, {sr(R_WS,4)}, s{sO+2*(t>>2)} offen offset:{(t&3)*1024}{sc}")
        e("s_mov_b32 exec_lo, 0xffff")
        e("s_mov_b32 exec_hi, 0xffff")
        for j in range(2):
            f = 2 * t + j
            e(f"buffer_load_dwordx4 {vr(AV+4*f,4)}, v{S1}, {sr(R_WS,4)}, s{sO+1+2*(t>>2)} offen offset:{(f&7)*512}{sc}")
        e("s_mov_b64 exec, -1")

def att_max(e, target):
    sO = sT+12
    e("s_waitcnt vmcnt(23)")
    e(f"{MF32} {vr(S0,16)}, {vr(AK,4)}, {vr(AQ,4)}, 0")
    e(f"s_lshl_b32 s{sO}, s{sAW}, 10")
    e(f"s_add_u32 s{sO}, s{sO}, {QI_L}")
    e(f"v_add_u32 v{AO}, s{sO}, v{vA16}")
    e(f"ds_write_b128 v{AO}, {vr(AQ,4)}")
    e(f"s_lshl_b32 s{sO}, s{sAW}, 9")
    e(f"s_add_u32 s{sO}, s{sO}, {NM_L}")
    e(f"v_add_u32 v{AO+1}, s{sO}, v{vAN}")
    e(f"v_add_u32 v{AO+2}, {ACNT}, v{vA4}")
    e("s_nop 4")
    m = AO + 4
    e(f"v_max3_f32 v{m}, v{S0}, v{S0+1}, v{S0+2}")
    for k in range(3, 15, 2): e(f"v_max3_f32 v{m}, v{m}, v{S0+k}, v{S0+k+1}")
    e(f"v_max_f32 v{m}, v{m}, v{S0+15}")
    e(f"v_mov_b32 v{m+1}, v{m}")
    e("s_nop 1")
    e(f"v_permlane32_swap_b32 v{m}, v{m+1}")
    e("s_nop 0")
    e(f"v_max_f32 v{m}, v{m}, v{m+1}")
    e(f"v_sub_f32 v{m}, {hex(f32bits(-MOFF))}, v{m}")
    for r in range(1, 4): e(f"v_mov_b32 v{m+r}, v{m}")
    e(f"ds_write_b128 v{AO+1}, {vr(m,4)}")
    lds_sync(e, AO + 2, vOne, AO + 3, target)

def att_main(e):
    e.c("---- attention main")
    e(f"v_add_u32 v{vA16}, {QI_L}, v{vA16}")
    e(f"v_add_u32 v{vAN}, {NM_L}, v{vAN}")
    e(f"v_add_u32 v{vA4}, {OS_L - OS_STRIDE}, v{vA4}")
    def rdq():
        e(f"ds_read_b128 {vr(AQ,4)}, v{vA16}")
        for k in range(4): e(f"ds_read_b128 {vr(ANM+4*k,4)}, v{vAN}")
    rdq()
    e(f"s_mov_b32 s{sP}, 0")
    e("s_waitcnt lgkmcnt(0)")
    e(f"{MF32} {vr(S0,16)}, {vr(AK,4)}, {vr(AQ,4)}, {vr(ANM,16)}")
    e("s_setprio 3")
    e("s_nop 10")
    loop = e.uniq("aloop")
    def pk(S, j):
        d = S + (j if j < 4 else 4 + j)
        return f"v_cvt_pk_bf16_f32 v{d}, v{S+2*j}, v{S+2*j+1}"
    def dump():
        for r in range(9): e(f"ds_add_f32 v{vA4}, v{AO+r} offset:{r*256}")
        e(f"ds_add_u32 v{vA4}, v{vOne} offset:{9*256}")
    e.L.append("    .p2align 3")
    e.lab(loop)
    for t in range(8):
        Sc, Sn = (S0, S1) if t % 2 == 0 else (S1, S0)
        tp, tn = (t - 1) % 8, (t + 1) % 8
        ex = lambda i: e(f"v_exp_f32 v{Sc+i}, v{Sc+i}")
        pv1p = f"{MF32} {vr(AO,16)}, {vr(AV+8*tp+4,4)}, {vr(Sn+8,4)}, {vr(AO,16)}"
        pv0 = f"{MF32} {vr(AO,16)}, {vr(AV+8*t,4)}, {vr(Sc,4)}, {'0' if t == 0 else vr(AO,16)}"
        qk = f"{MF32} {vr(Sn,16)}, {vr(AK+4*tn,4)}, {vr(AQ,4)}, {vr(ANM,16)}"
        ex(0); e(pk(Sn, 7)); ex(1); ex(2)
        e(pv1p)
        e(pk(Sc, 0)); ex(3); ex(4); e(pk(Sc, 1))
        if t < 7: e(f"s_waitcnt vmcnt({max(0, 24 - 3*(t+1) - 1)})")
        if t == 7: e("s_waitcnt vmcnt(0) lgkmcnt(0)")
        e(qk)
        ex(5); ex(6); e(pk(Sc, 2)); ex(7); ex(8); e(pk(Sc, 3)); ex(9); ex(10)
        if t == 6:
            e(f"v_add_u32 v{vA16}, 1024, v{vA16}")
            e(f"v_add_u32 v{vAN}, 512, v{vAN}")
            rdq()
        if t != 0: e(pv0)
        e(pk(Sc, 4)); ex(11); ex(12)
        if t == 0:
            sk = e.uniq("nodump")
            e(f"s_cmp_eq_u32 s{sP}, 0")
            e(f"s_cbranch_scc1 {sk}")
            dump()
            e.lab(sk)
        e(pk(Sc, 5)); ex(13); ex(14)
        if t == 0:
            e(f"v_add_u32 v{vA4}, {OS_STRIDE}, v{vA4}")
            e(pv0)
        e(pk(Sc, 6)); ex(15)
    e(f"s_add_u32 s{sP}, s{sP}, 1")
    l2, l1, l0, ld = e.uniq("p2"), e.uniq("p1"), e.uniq("p0"), e.uniq("adone")
    e(f"s_cmp_eq_u32 s{sP}, 3"); e(f"s_cbranch_scc1 {l2}")
    e(f"s_cmp_lt_u32 s{sP}, 6"); e(f"s_cbranch_scc1 {loop}")
    e(f"s_cmp_eq_u32 s{sP}, 6"); e(f"s_cbranch_scc1 {l1}")
    e(f"s_cmp_eq_u32 s{sP}, 7"); e(f"s_cbranch_scc0 {ld}")
    e("s_setprio 0"); e(f"s_branch {loop}")
    e.lab(l2); e("s_setprio 2"); e(f"s_branch {loop}")
    e.lab(l1); e("s_setprio 1"); e(f"s_branch {loop}")
    e.lab(ld)
    e(pk(S1, 7))
    e("s_nop 1")
    e(f"{MF32} {vr(AO,16)}, {vr(AV+8*7+4,4)}, {vr(S1+8,4)}, {vr(AO,16)}")
    e("s_nop 11")
    dump()

sWOg, sWOl, sHPos = sT+11, sT+16, sT+17
def h_prep_dma(e):
    sO = sT+12
    e("v_lshrrev_b32 v160, 4, v0")
    e("v_and_b32 v161, 15, v0")
    e("v_xor_b32 v161, v161, v160")
    e("v_lshlrev_b32 v161, 4, v161")
    e("v_lshl_add_u32 v164, v160, 10, v161")
    e("v_lshrrev_b32 v160, 2, v0")
    e("v_and_b32 v161, 3, v0")
    e("v_lshlrev_b32 v161, 4, v161")
    e("v_lshl_add_u32 v165, v160, 10, v161")
    e(f"s_lshl_b32 s{sWOg}, s{sI}, 8")
    e(f"s_lshl_b32 s{sWOl}, s{sI}, 14")

def woa_dma(e, pos_sreg_or_int, x):
    sO = sT+12
    if isinstance(pos_sreg_or_int, int): e(f"s_add_u32 s{sO+1}, s{sCB}, {pos_sreg_or_int}")
    else: e(f"s_add_u32 s{sO+1}, s{sCB}, {pos_sreg_or_int}")
    e(f"s_and_b32 s{sO+1}, s{sO+1}, 7")
    e(f"s_lshl_b32 s{sO+1}, s{sO+1}, 16")
    e(f"s_add_u32 s{sO+1}, s{sO+1}, s{sWOg}")
    for u in range(8):
        e(f"s_add_u32 m0, s{sWOl}, {WOA_L + x*8192 + u*1024}")
        e(f"s_add_u32 s{sO}, s{sO+1}, {x*32768 + u*4096}")
        dma(e, 164, R_WOA, sO)

def wob_dma(e):
    sO = sT+12
    e(f"s_lshl_b32 s{sO+1}, s{sI}, 17")
    e(f"s_lshl_b32 s{sO+2}, s{sHP}, 6")
    e(f"s_add_u32 s{sO+1}, s{sO+1}, s{sO+2}")
    e(f"s_lshl_b32 s{sO+2}, s{sI}, 13")
    for u in range(8):
        e(f"s_add_u32 m0, s{sO+2}, {WOB_L + u*1024}")
        e(f"s_add_u32 s{sO}, s{sO+1}, {u*16384}")
        dma(e, 165, R_WOB, sO)

def h_prep(e):
    sO = sT+12
    e.c("---- H out-proj prep")
    e("v_lshrrev_b32 v16, 4, v0")
    e("v_bfe_u32 v17, v0, 2, 2")
    e("v_and_b32 v18, 3, v0")
    e("v_lshrrev_b32 v19, 1, v16")
    e("v_and_b32 v20, 1, v16")
    e("v_lshl_add_u32 v21, v20, 2, v17")
    e("v_lshl_add_u32 v21, v19, 4, v21")
    e("v_lshlrev_b32 v21, 8, v21")
    e("v_lshl_add_u32 v21, v18, 6, v21")
    e(f"v_add_u32 v21, s{sWOl}, v21")
    for q in range(4):
        e(f"v_xor_b32 v22, {q}, v17")
        e(f"v_lshl_add_u32 v{8+q}, v22, 4, v21")
    e("v_bfe_u32 v22, v0, 3, 1")
    e("v_lshl_add_u32 v22, v22, 1, v19")
    e("v_and_b32 v23, 7, v0")
    e("v_lshl_add_u32 v22, v22, 3, v23")
    e("v_lshlrev_b32 v22, 2, v22")
    e(f"v_add_u32 v13, {OS_L}, v22")
    e("v_lshl_add_u32 v12, v20, 7, v13")
    e("v_lshlrev_b32 v15, 4, v0")
    e("v_lshlrev_b32 v5, 2, v0")
    e(f"v_add_u32 v5, {HCNT}, v5")
    e("v_mov_b32 v6, 1")
    e(f"s_mov_b32 s{sHPos}, 0")
    for r in range(64): e(f"v_mov_b32 v{64+r}, 0")

def h_pos(e, last, vm0):
    raw, Bf, acc, fa = 16, 28, 64, 128
    def rdA(x):
        for mt in range(8):
            o = x*8192 + 8*(mt & 1)
            e(f"ds_read_b64_tr_b16 {vr(fa+4*mt,2)}, v{8+(mt>>1)} offset:{o}")
            e(f"ds_read_b64_tr_b16 {vr(fa+4*mt+2,2)}, v{8+(mt>>1)} offset:{o+2048}")
    e(f"s_waitcnt vmcnt({vm0})")
    rdA(0)
    lds_wait(e, 13, 7, 8, sleep=2, off=9*256)
    for k in range(4): e(f"ds_read2st64_b32 {vr(raw+2*k,2)}, v12 offset0:{2*k} offset1:{2*k+1}")
    e(f"ds_read_b32 v{raw+8}, v13 offset:{8*256}")
    e(f"s_add_u32 s{sHPos}, s{sHPos}, 1")
    if not last: woa_dma(e, f"s{sHPos}", 0)
    e("s_waitcnt lgkmcnt(0)")
    e(f"v_rcp_f32 v{raw+9}, v{raw+8}")
    e(f"v_add_u32 v12, {OS_STRIDE}, v12")
    for r in range(8): e(f"v_mul_f32 v{raw+r}, v{raw+9}, v{raw+r}")
    for j in range(4): e(f"v_cvt_pk_bf16_f32 v{Bf+j}, v{raw+2*j}, v{raw+2*j+1}")
    e(f"v_add_u32 v13, {OS_STRIDE}, v13")
    e(f"s_waitcnt vmcnt({0 if last else 8})")
    for mt in range(8):
        e(f"{MF16} {vr(acc+4*mt,4)}, {vr(fa+4*mt,4)}, {vr(Bf,4)}, {vr(acc+4*mt,4)}")
        o = 8192 + 8*(mt & 1)
        e(f"ds_read_b64_tr_b16 {vr(fa+4*mt,2)}, v{8+(mt>>1)} offset:{o}")
        e(f"ds_read_b64_tr_b16 {vr(fa+4*mt+2,2)}, v{8+(mt>>1)} offset:{o+2048}")
    for mt in range(8):
        e(f"s_waitcnt lgkmcnt({14-2*mt})")
        e(f"{MF16} {vr(acc+32+4*mt,4)}, {vr(fa+4*mt,4)}, {vr(Bf,4)}, {vr(acc+32+4*mt,4)}")
    if not last: woa_dma(e, f"s{sHPos}", 1)

def h_out_a(e):
    sO = sT+12
    acc = 64
    e("v_and_b32 v16, 7, v0")
    e("v_lshlrev_b32 v16, 11, v16")
    e("v_lshrrev_b32 v17, 4, v0")
    e("v_lshl_add_u32 v16, v17, 6, v16")
    e("v_bfe_u32 v17, v0, 3, 1")
    e("v_lshl_add_u32 v16, v17, 5, v16")
    e(f"s_lshl_b32 s{sO}, s{sRB}, 3")
    e(f"s_add_u32 s{sO}, s{sO}, s{sCB}")
    e(f"s_lshl_b32 s{sO}, s{sO}, 14")
    e(f"s_lshl_b32 s{sO+1}, s{sI}, 8")
    e(f"s_add_u32 s{sO}, s{sO}, s{sO+1}")
    res = 128
    for k in range(16):
        e(f"v_add_f32_dpp v{res+k}, v{acc+32+k}, v{acc+k} row_shl:8 row_mask:0xf bank_mask:0x3")
        e(f"v_add_f32_dpp v{res+k}, v{acc+16+k}, v{acc+48+k} row_shr:8 row_mask:0xf bank_mask:0xc")
    for j in range(8): e(f"v_cvt_pk_bf16_f32 v{res+16+j}, v{res+2*j}, v{res+2*j+1}")
    e(f"buffer_store_dwordx4 {vr(res+16,4)}, v16, {sr(R_OUT,4)}, s{sO} offen")
    e(f"buffer_store_dwordx4 {vr(res+20,4)}, v16, {sr(R_OUT,4)}, s{sO} offen offset:16")

def h_out_b(e, sc, sync_target):
    sO = sT+12
    acc, fo, fw = 32, 128, 16
    e.c("---- B out-proj")
    e(f"s_lshl_b32 s{sO+1}, s{sTB}, 2")
    e(f"s_add_u32 s{sO+1}, s{sO+1}, s{sI}")
    e(f"s_lshl_b32 s{sO+2}, s{sO+1}, 15")
    e(f"s_add_u32 s{sO+2}, s{sO+2}, {OB}")
    e("v_lshrrev_b32 v161, 5, v0")
    e("v_bfe_u32 v162, v0, 2, 2")
    e("v_lshl_add_u32 v161, v161, 2, v162")
    e("v_lshlrev_b32 v160, 6, v161")
    e("v_and_b32 v161, 1, v0")
    e("v_lshl_add_u32 v160, v161, 5, v160")
    e("v_bfe_u32 v161, v0, 1, 1")
    e("v_lshl_add_u32 v160, v161, 3, v160")
    e("v_bfe_u32 v161, v0, 4, 1")
    e("v_lshl_add_u32 v160, v161, 4, v160")
    e(f"v_add_u32 v160, {WOB_L}, v160")
    NB = 12
    def oreg(s):
        k = s % NB
        return fo + 4*k if k < 8 else 48 + 4*(k-8)
    def ldo(s):
        e(f"s_add_u32 s{sO}, s{sO+2}, {(s>>2)*4096}")
        e(f"buffer_load_dwordx4 {vr(oreg(s),4)}, v15, {sr(R_WS,4)}, s{sO} offen offset:{(s&3)*1024}{sc}")
    def rdw(s):
        b = fw + 4*(s & 3)
        e(f"ds_read_b64_tr_b16 {vr(b,2)}, v160 offset:{s*1024}")
        e(f"ds_read_b64_tr_b16 {vr(b+2,2)}, v160 offset:{s*1024+512}")
    for s in range(NB): ldo(s)
    e(f"s_waitcnt vmcnt({NB})")
    lds_sync(e, 5, 6, 7, sync_target)
    for s in range(3): rdw(s)
    for s in range(32):
        if s + 3 < 32: rdw(s + 3)
        e(f"s_waitcnt vmcnt({min(NB-1, 31-s)}) lgkmcnt({min(6, 2*(31-s))})")
        e(f"{MF32} {vr(acc,16)}, {vr(fw+4*(s&3),4)}, {vr(oreg(s),4)}, {'0' if s == 0 else vr(acc,16)}")
        if s + NB < 32: ldo(s + NB)
    e("v_and_b32 v161, 31, v0")
    e("v_lshlrev_b32 v161, 11, v161")
    e("v_lshrrev_b32 v162, 5, v0")
    e("v_lshl_add_u32 v161, v162, 5, v161")
    e(f"s_lshl_b32 s{sO}, s{sO+1}, 16")
    e(f"s_lshl_b32 s{sO+2}, s{sHP}, 6")
    e(f"s_add_u32 s{sO}, s{sO}, s{sO+2}")
    e("s_nop 5")
    for j in range(8): e(f"v_cvt_pk_bf16_f32 v{48+j}, v{acc+2*j}, v{acc+2*j+1}")
    e(f"buffer_store_dwordx4 v[48:51], v161, {sr(R_OUT,4)}, s{sO} offen offset:1024")
    e(f"buffer_store_dwordx4 v[52:55], v161, {sr(R_OUT,4)}, s{sO} offen offset:1040")

def zero_counters(e):
    e("v_lshlrev_b32 v1, 2, v0")
    e(f"v_add_u32 v1, {HCNT}, v1")
    e("v_mov_b32 v2, 0")
    for k in range(3): e(f"ds_write_b32 v1, v2 offset:{k*256}")
    e("s_waitcnt lgkmcnt(0)")

def kernel_head(e, name):
    e.L.append(f".globl {name}\n.p2align 8\n.type {name},@function\n{name}:")

def kd(name, vg=168):
    return f""".amdhsa_kernel {name}
  .amdhsa_next_free_vgpr {vg}
  .amdhsa_next_free_sgpr 102
  .amdhsa_accum_offset {vg}
  .amdhsa_group_segment_fixed_size 0
  .amdhsa_kernarg_size 88
  .amdhsa_user_sgpr_count 2
  .amdhsa_user_sgpr_kernarg_segment_ptr 1
  .amdhsa_system_sgpr_workgroup_id_x 1
.end_amdhsa_kernel
"""

def gen_two():
    e = Em()
    kernel_head(e, "proj_kernel")
    setup(e, "L_end1")
    e(f"s_cmp_ge_u32 s{sW}, 8"); e("s_cbranch_scc1 L_k1_aux")
    e(f"s_cmp_ge_u32 s{sW}, 4"); e("s_cbranch_scc1 L_k1_q")
    zero_counters(e)
    kv_prep(e)
    b_prep(e)
    e("s_barrier")
    e(f"s_cmp_lg_u32 s{sW}, 0"); e("s_cbranch_scc1 L_k1_nokv")
    kv_job(e, "")
    e.lab("L_k1_nokv")
    b_prep2(e)
    for j in range(4):
        e("s_barrier")
        b_dma(e, j)
        if j == 0: b_masks(e)
    e("s_barrier")
    b_proj(e)
    b_attn(e, "")
    e("s_endpgm")
    e.lab("L_k1_q")
    astage_q(e, "")
    e("s_endpgm")
    e.lab("L_k1_aux")
    astage_aux(e)
    e.lab("L_end1")
    e("s_endpgm")
    kernel_head(e, "attn_kernel")
    setup(e, "L_end2")
    e(f"s_cmp_ge_u32 s{sW}, 4"); e("s_cbranch_scc1 L_k2_a")
    e("s_setprio 3")
    h_prep_dma(e)
    wob_dma(e)
    woa_dma(e, 0, 0); woa_dma(e, 0, 1)
    zero_counters(e)
    h_prep(e)
    e("s_barrier")
    h_out_b(e, "", 4)
    e.lab("L_k2_hloop")
    h_pos(e, False, 8)
    e(f"s_cmp_lt_u32 s{sHPos}, 7"); e("s_cbranch_scc1 L_k2_hloop")
    h_pos(e, True, 8)
    e("s_nop 7")
    h_out_a(e)
    e("s_endpgm")
    e.lab("L_k2_a")
    att_pre(e)
    att_load(e, "")
    att_zero(e)
    e("s_waitcnt lgkmcnt(0)")
    e("s_barrier")
    att_max(e, 8)
    att_main(e)
    e.lab("L_end2")
    e("s_endpgm")
    head = f"""; generated by work/gen.py
; @launch kernel=proj_kernel grid=(256,1,1) block=(768,1,1) lds={LDS_BYTES}
; @launch kernel=attn_kernel grid=(256,1,1) block=(768,1,1) lds={LDS_BYTES}
.amdgcn_target "amdgcn-amd-amdhsa--gfx950"
.text
"""
    return head + e.text() + '.section .rodata,"a"\n.p2align 6\n' + kd("proj_kernel") + ".p2align 6\n" + kd("attn_kernel")

if __name__ == "__main__":
    out = sys.argv[1] if len(sys.argv) > 1 else f"cdna_kernels/{NAME}.s"
    open(out, "w").write(gen_two())
    print("wrote", out)
```

```python
import sys, math, struct

NAME = "concat_heads__grouped_kv_mqa__sliding_local_dilated__prompt"
def f32bits(x): return struct.unpack("<I", struct.pack("<f", x))[0]

class Em:
    def __init__(self): self.L = []; self.n = 0
    def __call__(self, s):
        if s.startswith("s_nop "):
            for _ in range(int(s.split()[1]) + 1): self.L.append("    s_nop 0")
            return
        if s.startswith("ds_add_u32") and "wideadd" not in OPT:
            self.L += ["    s_mov_b64 exec, 1", "    " + s, "    s_mov_b64 exec, -1"]
            return
        self.L.append("    " + s)
    def lab(self, s): self.L.append(s + ":")
    def uniq(self, p): self.n += 1; return f"L_{p}_{self.n}"
    def c(self, s): self.L.append("    ; " + s)
    def text(self): return "\n".join(self.L) + "\n"

def vr(b, n): return f"v[{b}:{b+n-1}]" if n > 1 else f"v{b}"
def sr(b, n): return f"s[{b}:{b+n-1}]" if n > 1 else f"s{b}"

sWG, sW = 2, 3
R_XA, R_WQ, R_WKV, R_WOA, R_XB, R_WB, R_WOB, R_OUT, R_WS, R_DBG = 32, 36, 40, 44, 48, 52, 56, 60, 64, 68
sRB, sCB, sTB, sHP, sSB, sKIND, sC0, sI = 72, 73, 74, 75, 76, 77, 78, 79
sT = 80
sO = 92
sPOLL, sEP, sSPIN, sIDX = 98, 99, 100, 101
SPIN_MAX = 60000
QW, KW, VW, OB, OA, FL = 0, 2 << 20, (2 << 20) + 65536, 4 << 20, 6 << 20, 8 << 20
EPOCH_W = (3 << 20)
F4 = FL + (512 << 10)
F1, F2, F3 = FL, FL + (64 << 10), FL + (256 << 10)
WS_BYTES = 16 << 20
K = 1024
LDS_BYTES = 160 * K
SLOT = 32 * K
WKV_L = 128 * K
WST_L = 144 * K
QI_L, NM_L = 146 * K, 154 * K
CNT = 158 * K
HCNT, ACNT, LAND, GCNT, MISC = CNT, CNT + 256, CNT + 512, CNT + 1536, CNT + 1792
RDY1 = MISC + 12
SOK = MISC + 32
WOK = MISC + 48
EPW, KVF, VERD, PRO, PRY = MISC, MISC + 4, MISC + 8, MISC + 64, MISC + 80
RW = [0, 34 * K, 108 * K]
RX = [24 * K, 58 * K, 132 * K]
OS_L, OS_POS, OS_PAIR = 72 * K, 9216, 2304
EX_L = 0
WOB_L = 34 * K
WOA_L = 0
CODE_KB = 27
BDEPTH = 4
OPRIO = 3
HM = 2
LOF, LOS = 1, 0
F3SLEEP = 24
SWITCH = 8
CSC = 0.25 * math.log2(math.e)
MOFF = 96.0
MF32 = "v_mfma_f32_32x32x16_bf16"
MF16 = "v_mfma_f32_16x16x32_bf16"
STAMPS = False
OPT = set()
ST = 12 << 20
SC = " sc1"
OSC = ""
WIN = 12

def stamp(e, k):
    if not STAMPS: return
    e("s_memrealtime s[30:31]"); e("s_waitcnt lgkmcnt(0)"); e(f"s_mov_b32 s{8+k}, s30")
def cstamp(e, k):
    if not STAMPS: return
    e("s_memtime s[30:31]"); e("s_waitcnt lgkmcnt(0)"); e(f"s_mov_b32 s{8+k}, s30")
def stamp_init(e):
    if not STAMPS: return
    for k in range(1, 22): e(f"s_mov_b32 s{8+k}, 0")
    e("s_mov_b32 s8, s6"); e("s_mov_b32 s20, s4")
def stamp_out(e):
    if not STAMPS: return
    stamp(e, 15); cstamp(e, 14)
    e(f"s_mul_i32 s30, s{sWG}, 12"); e(f"s_add_u32 s30, s30, s{sW}"); e("s_lshl_b32 s30, s30, 7"); e(f"s_add_u32 s30, s30, {ST}")
    e("s_mov_b64 exec, 1"); e("v_mov_b32 v0, 0")
    for k in range(22): e(f"v_mov_b32 v{4+k}, s{8+k}")
    for k in range(6): e(f"buffer_store_dwordx4 {vr(4+4*k,4)}, v0, {sr(R_WS,4)}, s30 offen offset:{16*k}")

def setup(e, endlab):
    e(f"s_cmp_ge_u32 s{sWG}, 256")
    e(f"s_cbranch_scc1 {endlab}")
    e("s_load_dwordx16 s[8:23], s[0:1], 0")
    e("s_load_dwordx4 s[24:27], s[0:1], 64")
    e("s_load_dwordx2 s[28:29], s[0:1], 80")
    if STAMPS: e("s_memrealtime s[6:7]"); e("s_memtime s[4:5]")
    e("v_lshrrev_b32 v1, 6, v0")
    e("v_and_b32 v0, 63, v0")
    e(f"s_and_b32 s{sO}, s{sWG}, 7")
    e(f"v_readfirstlane_b32 s{sW}, v1")
    e(f"s_lshr_b32 s{sO+1}, s{sWG}, 3")
    e(f"s_lshl_b32 s{sIDX}, s{sO}, 5")
    e(f"s_add_u32 s{sIDX}, s{sIDX}, s{sO+1}")
    e(f"s_lshr_b32 s{sRB}, s{sIDX}, 3")
    e(f"s_and_b32 s{sCB}, s{sIDX}, 7")
    e(f"s_lshr_b32 s{sTB}, s{sIDX}, 4")
    e(f"s_and_b32 s{sHP}, s{sIDX}, 15")
    e(f"s_lshr_b32 s{sSB}, s{sCB}, 1")
    e(f"s_and_b32 s{sKIND}, s{sCB}, 1")
    e(f"s_and_b32 s{sI}, s{sW}, 3")
    e(f"s_add_u32 s{sC0}, s{sRB}, s{sI}")
    e(f"s_and_b32 s{sC0}, s{sC0}, 3")
    e(f"s_mov_b32 s{sSPIN}, 0")
    e("s_waitcnt lgkmcnt(0)")
    def srd(R, p, nbytes):
        e(f"s_mov_b32 s{R}, s{p}"); e(f"s_mov_b32 s{R+1}, s{p+1}")
        e(f"s_mov_b32 s{R+2}, {hex(nbytes)}"); e(f"s_mov_b32 s{R+3}, 0x20000")
    srd(R_XA, 8, 2 << 20)
    e(f"s_cmp_eq_u32 s{sKIND}, 0")
    e(f"s_cselect_b32 s{R_WKV}, s12, s14")
    e(f"s_cselect_b32 s{R_WKV+1}, s13, s15")
    e(f"s_mov_b32 s{R_WKV+2}, 0x4000"); e(f"s_mov_b32 s{R_WKV+3}, 0x20000")
    srd(R_WQ, 10, 512 << 10)
    srd(R_WOA, 16, 512 << 10); srd(R_XB, 18, 2 << 20); srd(R_WB, 20, 1536 << 10); srd(R_WOB, 22, 512 << 10)
    srd(R_OUT, 24, 4 << 20); srd(R_DBG, 26, 256); srd(R_WS, 28, WS_BYTES)
    stamp_init(e)

def dma(e, voff, R, soff, nt=False):
    if "ntall" in OPT: nt = True
    e(f"buffer_load_dwordx4 v{voff}, {sr(R,4)}, s{soff} offen{' nt' if nt and 'nont' not in OPT else ''} lds")

def spin_tail(e, l, sleep):
    e(f"s_sleep {sleep}")
    e(f"s_add_u32 s{sSPIN}, s{sSPIN}, 1")
    e(f"s_cmp_lt_u32 s{sSPIN}, {SPIN_MAX}")
    e(f"s_cbranch_scc1 {l}")

def lds_wait(e, vaddr, vtmp, target, sleep=1, off=0):
    l = e.uniq("poll"); d = e.uniq("pdone")
    e.lab(l)
    e(f"ds_read_b32 v{vtmp}, v{vaddr}" + (f" offset:{off}" if off else ""))
    e("s_waitcnt lgkmcnt(0)")
    e(f"v_readfirstlane_b32 s{sPOLL}, v{vtmp}")
    e(f"s_cmp_ge_u32 s{sPOLL}, {target}")
    e(f"s_cbranch_scc1 {d}")
    spin_tail(e, l, sleep)
    e.lab(d)

def load_epoch(e):
    e(f"s_mov_b32 s{sEP}, {EPOCH_W}")
    e(f"s_load_dword s{sEP}, s[{R_WS}:{R_WS+1}], s{sEP}")

def get_epoch(e):
    e("s_waitcnt lgkmcnt(0)")
    e(f"s_add_u32 s{sEP}, s{sEP}, 1")

def gpoll(e, vaddr, vtmp, lo, hi, sleep=1):
    l = e.uniq("gp"); d = e.uniq("gd")
    e(f"s_mov_b32 exec_lo, {hex(lo)}"); e(f"s_mov_b32 exec_hi, {hex(hi)}")
    e.lab(l)
    e(f"buffer_load_dword v{vtmp}, v{vaddr}, {sr(R_WS,4)}, 0 offen sc1")
    e("s_waitcnt vmcnt(0)")
    e(f"v_cmp_ne_u32 vcc, s{sEP}, v{vtmp}")
    e("s_and_b64 exec, exec, vcc")
    e(f"s_cbranch_execz {d}")
    spin_tail(e, l, sleep)
    e.lab(d)
    e("s_mov_b64 exec, -1")

def set_flag(e, soff, va, vd):
    e(f"v_mov_b32 v{va}, 0")
    e(f"v_mov_b32 v{vd}, s{sEP}")
    e("s_mov_b64 exec, 1")
    e(f"buffer_store_dword v{vd}, v{va}, {sr(R_WS,4)}, s{soff} offen sc1")
    e("s_mov_b64 exec, -1")

def xa_voffs(e, b, t):
    e(f"v_lshrrev_b32 v{t}, 4, v0")
    e(f"v_and_b32 v{b}, 15, v0")
    e(f"v_xor_b32 v{b}, v{b}, v{t}")
    e(f"v_lshlrev_b32 v{b}, 4, v{b}")
    e(f"v_lshl_add_u32 v{b}, v{t}, 10, v{b}")
    for z in range(1, 4): e(f"v_xor_b32 v{b+z}, {z<<6}, v{b}")

vHC, vH1, vHT = 5, 6, 7
def h_start(e):
    e.c("---- H: S0 loads")
    xa_voffs(e, 8, 12)
    e("v_lshlrev_b32 v12, 4, v0")
    e(f"s_lshl_b32 s{sO+1}, s{sRB}, 2"); e(f"s_add_u32 s{sO+1}, s{sO+1}, s{sSB}"); e(f"s_lshl_b32 s{sO+1}, s{sO+1}, 14")
    e(f"s_lshl_b32 s{sO+2}, s{sC0}, 8"); e(f"s_add_u32 s{sO+1}, s{sO+1}, s{sO+2}")
    e(f"s_lshl_b32 s{sT}, s{sI}, 15"); e(f"s_lshl_b32 s{sO+2}, s{sSB}, 12"); e(f"s_add_u32 s{sT}, s{sT}, s{sO+2}")
    e(f"s_lshl_b32 s{sT+1}, s{sI}, 12"); e(f"s_add_u32 s{sT+1}, s{sT+1}, {WKV_L}")
    e(f"s_lshl_b32 s{sO+3}, s{sC0}, 12")
    for z in range(4):
        e(f"s_add_u32 m0, s{sT}, {z*1024}")
        e(f"s_add_u32 s{sO}, s{sO+1}, {z*4096}")
        dma(e, 8 + z, R_XA, sO, nt=True)
        e(f"s_add_u32 m0, s{sT+1}, {z*1024}")
        e(f"s_add_u32 s{sO}, s{sO+3}, {z*1024}")
        dma(e, 12, R_WKV, sO)
    e(f"v_lshlrev_b32 v{vHC}, 2, v0")
    e(f"v_add_u32 v{vHC}, {CNT}, v{vHC}")
    e(f"v_mov_b32 v{vH1}, 0")
    e(f"s_lshl_b32 s{sO}, s{sI}, 9")
    e(f"v_add_u32 v{vHT}, s{sO}, v{vHC}")
    e(f"ds_write2st64_b32 v{vHT}, v{vH1}, v{vH1} offset0:0 offset1:1")
    e(f"v_mov_b32 v{vH1}, 1")
    e("s_waitcnt lgkmcnt(0)")
    load_epoch(e)
    e("s_barrier")

def kv_job(e):
    fx, fw, acc = 32, 48, 24
    e.c("---- KV partial")
    e("v_and_b32 v2, 15, v0")
    e("v_lshrrev_b32 v3, 4, v0")
    e("v_xor_b32 v4, v2, v3")
    e("v_lshlrev_b32 v4, 4, v4")
    e("v_lshl_add_u32 v4, v2, 8, v4")
    e(f"v_add_u32 v8, s{sT}, v4")
    for q in range(1, 4): e(f"v_xor_b32 v{8+q}, {q<<6}, v8")
    e("v_bfe_u32 v4, v0, 2, 2")
    e("v_lshl_add_u32 v4, v3, 3, v4")
    e("v_lshlrev_b32 v4, 5, v4")
    e("v_and_b32 v13, 3, v0")
    e("v_lshl_add_u32 v4, v13, 3, v4")
    e(f"v_add_u32 v13, s{sT+1}, v4")
    e(f"v_add_u32 v14, s{sT+1}, v12")
    e(f"s_lshl_b32 s{sO}, s{sI}, 8")
    e(f"v_add_u32 v15, s{sO}, v{vHC}")
    e(f"s_lshl_b32 s{sO}, s{sRB}, 11")
    e(f"s_lshr_b32 s{sO+1}, s{sSB}, 1"); e(f"s_lshl_b32 s{sO+1}, s{sO+1}, 10")
    e(f"s_and_b32 s{sO+2}, s{sSB}, 1"); e(f"s_lshl_b32 s{sO+2}, s{sO+2}, 8")
    e(f"s_add_u32 s{sO+1}, s{sO+1}, s{sO+2}"); e(f"s_add_u32 s{sO+1}, s{sO+1}, {KW}")
    e(f"s_lshl_b32 s{sO+2}, s{sSB}, 9"); e(f"s_add_u32 s{sO+2}, s{sO+2}, {VW}")
    e(f"s_cmp_eq_u32 s{sKIND}, 0")
    e(f"s_cselect_b32 s{sO+1}, s{sO+1}, s{sO+2}")
    e(f"s_cselect_b32 s{sO+2}, 9, 8")
    e(f"s_add_u32 s{sO+4}, s{sO}, s{sO+1}")
    e("v_and_b32 v4, 1, v3")
    e(f"v_lshlrev_b32 v4, s{sO+2}, v4")
    e("v_lshl_add_u32 v20, v2, 4, v4")
    e(f"s_lshl_b32 s{sO+5}, s{sIDX}, 7"); e(f"s_add_u32 s{sO+5}, s{sO+5}, {F1}")
    e("s_waitcnt vmcnt(0)")
    get_epoch(e)
    stamp(e, 1)
    e(f"ds_add_u32 v15, v{vH1} offset:{LAND-CNT}")
    for q in range(4):
        e(f"ds_read_b128 {vr(fx+4*q,4)}, v{8+q}")
        e(f"ds_read_b64_tr_b16 {vr(fw+4*q,2)}, v13 offset:{q*1024}")
        e(f"ds_read_b64_tr_b16 {vr(fw+4*q+2,2)}, v13 offset:{q*1024+128}")
    lv, ld, l0, lx = e.uniq("kv_v"), e.uniq("kv_d"), e.uniq("kv_0"), e.uniq("kv_x")
    e(f"s_cmp_lg_u32 s{sKIND}, 0")
    e(f"s_cbranch_scc1 {lv}")
    for kind in range(2):
        for q in range(4):
            e(f"s_waitcnt lgkmcnt({9-3*q})")
            a, b = (fw, fx) if kind == 0 else (fx, fw)
            e(f"{MF16} {vr(acc,4)}, {vr(a+4*q,4)}, {vr(b+4*q,4)}, {'0' if q == 0 else vr(acc,4)}")
        if kind == 0:
            e(f"s_branch {ld}"); e.lab(lv)
    e.lab(ld)
    e(f"s_cmp_eq_u32 s{sI}, 0")
    e(f"s_cbranch_scc1 {l0}")
    e("s_nop 6")
    e(f"ds_write_b128 v14, {vr(acc,4)}")
    e(f"ds_add_u32 v{vHC}, v{vH1}")
    e(f"s_branch {lx}")
    e.lab(l0)
    lds_wait(e, vHC, vHT, 3, sleep=0)
    for k in range(1, 4): e(f"ds_read_b128 {vr(fx+4*k,4)}, v14 offset:{k*4096}")
    e(f"ds_add_u32 v{vHC}, v{vH1}")
    for k in range(1, 4):
        e(f"s_waitcnt lgkmcnt({4-k})")
        for r in range(4): e(f"v_add_f32 v{acc+r}, v{acc+r}, v{fx+4*k+r}")
    e(f"v_cvt_pk_bf16_f32 v28, v{acc}, v{acc+1}")
    e(f"v_cvt_pk_bf16_f32 v29, v{acc+2}, v{acc+3}")
    e("s_nop 1")
    e("v_permlane32_swap_b32 v28, v30")
    e("v_permlane32_swap_b32 v29, v31")
    e("s_mov_b32 exec_hi, 0")
    e("s_nop 0")
    e(f"buffer_store_dwordx4 v[28:31], v20, {sr(R_WS,4)}, s{sO+4} offen{SC}")
    e("s_mov_b64 exec, -1")
    stamp(e, 2)
    e("s_waitcnt vmcnt(0)")
    set_flag(e, sO+5, 2, 3)
    e("s_mov_b64 exec, 1")
    e(f"ds_write_b32 v{vHC}, v{vH1} offset:{KVF-CNT}")
    e("s_mov_b64 exec, -1")
    stamp(e, 3)
    e.lab(lx)

sBX, sBH, sBW, sKC, sBXL, sBHL, sBWL = sT, sT+1, sT+2, sT+3, sT+4, sT+5, sT+6
BA = 8
aq, ak, av, ahk, ahv, MC = 24, 40, 56, 72, 76, 80
MP = MC + 8
FR = 104
def b_prep(e):
    e.c("---- B prep")
    e("v_lshrrev_b32 v20, 3, v0")
    e("v_and_b32 v21, 7, v0")
    e("v_lshrrev_b32 v22, 1, v20")
    e("v_xor_b32 v23, v21, v22")
    e("v_lshlrev_b32 v23, 4, v23")
    e("v_lshl_add_u32 v1, v20, 10, v23")
    e("v_xor_b32 v2, 64, v1")
    e(f"s_lshl_b32 s{sO}, s{sI}, 5")
    e(f"v_xor_b32 v3, s{sO}, v1")
    e("v_and_b32 v22, 1, v22")
    e("v_lshlrev_b32 v22, 2, v22")
    e("v_xor_b32 v23, v21, v22")
    e("v_lshlrev_b32 v23, 4, v23")
    e("v_mul_u32_u24 v20, 3072, v20")
    e("v_add_u32 v4, v20, v23")
    e("v_xor_b32 v16, 32, v4")
    e(f"s_lshl_b32 s{sBX}, s{sRB}, 2"); e(f"s_add_u32 s{sBX}, s{sBX}, s{sI}"); e(f"s_lshl_b32 s{sBX}, s{sBX}, 14")
    e(f"s_lshl_b32 s{sBH}, s{sRB}, 16"); e(f"s_max_u32 s{sBH}, s{sBH}, 16384"); e(f"s_sub_u32 s{sBH}, s{sBH}, 16384")
    e(f"s_lshl_b32 s{sO}, s{sI}, 12"); e(f"s_add_u32 s{sBH}, s{sBH}, s{sO}")
    e(f"s_mul_i32 s{sBW}, s{sI}, {16*3072}")
    e(f"s_lshl_b32 s{sO}, s{sCB}, 7"); e(f"s_add_u32 s{sBW}, s{sBW}, s{sO}")
    e(f"s_lshl_b32 s{sKC}, s{sRB}, 1"); e(f"s_add_u32 s{sKC}, s{sKC}, s{sCB}")
    e(f"s_lshl_b32 s{sBWL}, s{sI}, 11")
    e(f"s_add_u32 s{sBXL}, s{sBWL}, 2048")
    e(f"s_lshl_b32 s{sBHL}, s{sI}, 9")
    e("v_and_b32 v20, 31, v0")
    e("v_lshrrev_b32 v21, 5, v0")
    e("v_bfe_u32 v22, v0, 1, 3")
    e("v_xor_b32 v22, v22, v21")
    e("v_lshlrev_b32 v22, 4, v22")
    e("v_lshl_add_u32 v22, v20, 7, v22")
    e(f"s_and_b32 s{sO}, s{sI}, 1"); e(f"s_lshl_b32 s{sO}, s{sO}, 12"); e(f"s_add_u32 s{sO}, s{sO}, {RX[0] + 2048}")
    e(f"v_add_u32 v{BA}, s{sO}, v22")
    for s in range(1, 4): e(f"v_xor_b32 v{BA+s}, {s<<5}, v{BA}")
    e("v_bfe_u32 v20, v0, 2, 2")
    e("v_and_b32 v23, 3, v0")
    e("v_and_b32 v17, 2, v20")
    e("v_or_b32 v18, v17, v21")
    e("v_bfe_u32 v19, v0, 4, 1")
    e(f"s_and_b32 s{sO}, s{sI}, 2")
    e(f"v_or_b32 v19, s{sO}, v19")
    e("v_xor_b32 v18, v18, v19")
    e("v_lshl_add_u32 v22, v21, 3, v20")
    e("v_lshlrev_b32 v22, 7, v22")
    e("v_lshl_add_u32 v22, v18, 5, v22")
    e(f"v_lshl_add_u32 v{BA+4}, v23, 3, v22")
    e("v_lshrrev_b32 v21, 4, v0")
    e("v_bfe_u32 v22, v0, 1, 3")
    e("v_xor_b32 v22, v22, v21")
    e("v_lshlrev_b32 v22, 4, v22")
    e("v_and_b32 v19, 15, v0")
    e("v_lshl_add_u32 v22, v19, 7, v22")
    e(f"v_add_u32 v{BA+5}, {RX[0]}, v22")
    e(f"v_xor_b32 v{BA+6}, 64, v{BA+5}")
    e("v_and_b32 v18, 1, v21")
    e("v_or_b32 v18, v17, v18")
    e(f"v_xor_b32 v18, s{sI}, v18")
    e("v_lshl_add_u32 v22, v21, 3, v20")
    e("v_lshlrev_b32 v22, 7, v22")
    e("v_lshl_add_u32 v22, v18, 5, v22")
    e(f"v_lshl_add_u32 v{BA+7}, v23, 3, v22")

def b_masks(e):
    e(f"v_mov_b32 v{MC}, {hex(f32bits(-1e30))}")
    for r in range(1, 24): e(f"v_mov_b32 v{MC+r}, v{MC}")
    def mask(r, shift):
        m = 0
        for l in range(64):
            n, h = l & 31, l >> 5
            d = n - ((r & 3) + 8 * (r >> 2) + 4 * h) + shift
            if 0 <= d <= 14 and d % 2 == 0: m |= 1 << l
        return m
    def setm(reg, m):
        if m == 0: return
        e(f"s_mov_b32 exec_lo, {hex(m & 0xffffffff)}"); e(f"s_mov_b32 exec_hi, {hex(m >> 32)}")
        e(f"v_mov_b32 v{reg}, 0")
    for r in range(16): setm(MC + r, mask(r, 0))
    sk = e.uniq("nomp")
    e(f"s_and_b32 s{sO}, s{sI}, 1")
    e(f"s_or_b32 s{sO}, s{sO}, s{sRB}")
    e(f"s_cbranch_scc0 {sk}")
    for r in range(8, 16): setm(MP + r, mask(r, 32))
    e.lab(sk)
    e("s_mov_b64 exec, -1")

def b_dma_groups(j):
    rw, rx = RW[j % 2], RX[j % 2]
    G = []
    class L(list):
        def __call__(self, x): self.append(x)
    def grp():
        g = L(); G.append(g); return g
    g = grp()
    g(f"s_add_u32 s{sO+1}, s{sKC}, {j}")
    g(f"s_and_b32 s{sO+1}, s{sO+1}, 7")
    g(f"s_lshl_b32 s{sO+2}, s{sO+1}, 7")
    g(f"s_mul_i32 s{sO+1}, s{sO+1}, {64*3072}")
    g(f"s_add_u32 s{sO+1}, s{sO+1}, s{sBW}")
    g(f"s_add_u32 s{sO+3}, s{sO+2}, s{sBX}")
    for u in range(2):
        g(f"s_add_u32 m0, s{sBXL}, {rx + u*1024}")
        g(f"s_add_u32 s{sO}, s{sO+3}, {u*8192}")
        dma(g, 1 + u, R_XB, sO, nt=True)
    for p in range(3):
        g = grp()
        for u in range(2):
            g(f"s_add_u32 m0, s{sBWL}, {rw + p*8192 + u*1024}")
            g(f"s_add_u32 s{sO}, s{sO+1}, {p*1024 + u*8*3072}")
            dma(g, 4 if u == 0 else 16, R_WB, sO)
    g = grp()
    g(f"s_add_u32 m0, s{sBHL}, {rx}")
    g(f"s_add_u32 s{sO}, s{sO+2}, s{sBH}")
    g("s_mov_b32 exec_hi, 0")
    dma(g, 3, R_XB, sO)
    g("s_mov_b64 exec, -1")
    return G
def b_dma(e, j):
    for g in b_dma_groups(j):
        for x in g: e(x)

def b_proj(e):
    for j in range(8):
        if j > 0:
            pass
        ro = (j % 2) * 34 * K
        younger = 9 if j == 0 else 0
        e(f"s_waitcnt vmcnt({younger})")
        e(f"ds_add_u32 v{vHC}, v{vH1}")
        lds_wait(e, vHC, vHT, 4 * (j + 2))
        if j in (0, 4): stamp(e, {0:16, 4:17}[j])
        G = b_dma_groups(j + 1) if 1 <= j <= 6 else []
        e(f"s_setprio {HM}")
        D = BDEPTH
        XB_, HX_, WB_ = FR, FR + 8, FR + 12
        NBUF = 12
        jobs = []
        def wreads(buf, areg, off):
            return [f"ds_read_b64_tr_b16 {vr(buf,2)}, v{areg} offset:{off}", f"ds_read_b64_tr_b16 {vr(buf+2,2)}, v{areg} offset:{off+512}"]
        for s in range(4):
            x = XB_ + 4 * (s & 1)
            for p, acc in enumerate((aq, ak, av)):
                w = WB_ + 4 * (len(jobs) % NBUF)
                rds = ([f"ds_read_b128 {vr(x,4)}, v{BA+s} offset:{ro}"] if p == 0 else []) + wreads(w, BA + 4, ro + p*8192 + s*2048)
                z = (j == 0 and s == 0)
                A_, B_ = (w, x) if p < 2 else (x, w)
                jobs.append((rds, f"{MF32} {vr(acc,16)}, {vr(A_,4)}, {vr(B_,4)}, {'0' if z else vr(acc,16)}"))
            s2, p = s >> 1, 1 + (s & 1)
            w = WB_ + 4 * (len(jobs) % NBUF)
            rds = ([f"ds_read_b128 {vr(HX_,4)}, v{BA+5+s2} offset:{ro}"] if p == 1 else []) + wreads(w, BA + 7, ro + p*8192 + s2*4096)
            z = (j == 0 and s2 == 0)
            acc = ahk if p == 1 else ahv
            A_, B_ = (w, HX_) if p == 1 else (HX_, w)
            jobs.append((rds, f"{MF16} {vr(acc,4)}, {vr(A_,4)}, {vr(B_,4)}, {'0' if z else vr(acc,4)}"))
        for n in range(min(D, len(jobs))):
            for r in jobs[n][0]: e(r)
        if G:
            for x in G.pop(0): e(x)
        for n in range(len(jobs)):
            out = sum(len(jobs[m][0]) for m in range(n + 1, min(n + D, len(jobs))))
            e(f"s_waitcnt lgkmcnt({out})")
            e(jobs[n][1])
            if n + D < len(jobs):
                for r in jobs[n + D][0]: e(r)
            if G:
                for x in G.pop(0): e(x)
            if n + D == len(jobs) - 1 and j < 7 and "early" in OPT:
                pass
        e("s_setprio 3")

def b_attn(e, after_sync):
    Qf, Kf, Vf, Kp, Vp, ONES = 104, 112, 120, 128, 136, 140
    e.c("---- local attention")
    e(f"s_mul_i32 s{sO}, s{sI}, 3072"); e(f"s_add_u32 s{sO}, s{sO}, {EX_L}")
    e(f"v_lshl_add_u32 v8, v0, 4, s{sO}")
    e("v_and_b32 v9, 15, v0")
    e("v_bfe_u32 v10, v0, 4, 1")
    e("v_lshlrev_b32 v10, 9, v10")
    e("v_lshl_add_u32 v10, v9, 4, v10")
    e("v_lshrrev_b32 v9, 5, v0")
    e("v_lshl_add_u32 v10, v9, 3, v10")
    e(f"s_and_b32 s{sO}, s{sI}, 2"); e(f"s_mul_i32 s{sO}, s{sO}, 3072"); e(f"s_add_u32 s{sO}, s{sO}, {EX_L}")
    e(f"s_and_b32 s{sO+1}, s{sI}, 1")
    e(f"s_lshl_b32 s{sO+2}, s{sO+1}, 10"); e(f"s_add_u32 s{sO+2}, s{sO+2}, s{sO}")
    e(f"v_add_u32 v11, s{sO+2}, v10")
    e(f"s_lshl_b32 s{sO+2}, s{sO+1}, 8"); e(f"s_add_u32 s{sO+2}, s{sO+2}, s{sO}")
    e(f"v_add_u32 v12, s{sO+2}, v10")
    for j in range(8): e(f"v_cvt_pk_bf16_f32 v{Kf+j}, v{ak+2*j}, v{ak+2*j+1}")
    for j in range(8): e(f"v_cvt_pk_bf16_f32 v{Vf+j}, v{av+2*j}, v{av+2*j+1}")
    for j in range(4): e(f"v_cvt_pk_bf16_f32 v{16+j}, v{ahk+2*j}, v{ahk+2*j+1}")
    e("ds_write_b64 v11, v[16:17] offset:256")
    e("ds_write_b64 v12, v[18:19] offset:2048")
    sk = e.uniq("noex")
    e(f"s_cmp_lg_u32 s{sO+1}, 0"); e(f"s_cbranch_scc1 {sk}")
    e(f"ds_write_b128 v8, {vr(Kf,4)} offset:3072")
    e(f"ds_write_b128 v8, {vr(Kf+4,4)} offset:{3072+1024}")
    e(f"ds_write_b128 v8, {vr(Vf+4,4)} offset:{3072+2048}")
    e.lab(sk)
    if "w1" in OPT: e("s_waitcnt lgkmcnt(0)")
    e(f"ds_add_u32 v{vHC}, v{vH1}")
    for j in range(8): e(f"v_cvt_pk_bf16_f32 v{Qf+j}, v{aq+2*j}, v{aq+2*j+1}")
    for r in range(4): e(f"v_mov_b32 v{ONES+r}, 0x3f803f80")
    lds_wait(e, vHC, vHT, 40)
    e(f"ds_read_b128 {vr(Kp,4)}, v8")
    e(f"ds_read_b128 {vr(Kp+4,4)}, v8 offset:1024")
    e(f"ds_read_b128 {vr(Vp,4)}, v8 offset:2048")
    after_sync()
    e(f"s_lshl_b32 s{sO+1}, s{sRB}, 1"); e(f"s_and_b32 s{sO+2}, s{sI}, 1"); e(f"s_add_u32 s{sO+1}, s{sO+1}, s{sO+2}"); e(f"s_lshl_b32 s{sO+1}, s{sO+1}, 15")
    e(f"s_lshl_b32 s{sO+2}, s{sCB}, 2"); e(f"s_and_b32 s{sO+3}, s{sI}, 2"); e(f"s_add_u32 s{sO+2}, s{sO+2}, s{sO+3}"); e(f"s_lshl_b32 s{sO+2}, s{sO+2}, 10")
    e(f"s_add_u32 s{sO+1}, s{sO+1}, s{sO+2}"); e(f"s_add_u32 s{sO+1}, s{sO+1}, {OB}")
    e("v_lshlrev_b32 v9, 4, v0")
    e(f"s_mov_b32 s{sO}, {hex(f32bits(CSC))}")
    e("s_waitcnt lgkmcnt(0)")
    Sc, Sp, Oa, La = 24, 40, 56, 144
    for hd in range(2):
        e(f"{MF32} {vr(Sc,16)}, {vr(Kf+4*hd,4)}, {vr(Qf+4*hd,4)}, {vr(MC,16)}")
        e(f"{MF32} {vr(Sp,16)}, {vr(Kp+4*hd,4)}, {vr(Qf+4*hd,4)}, {vr(MP,16)}")
        e("s_nop 10")
        regs = [Sc + r for r in range(16)] + [Sp + r for r in range(8, 16)]
        e(f"v_max3_f32 v10, v{regs[0]}, v{regs[1]}, v{regs[2]}")
        for k in range(3, 23, 2): e(f"v_max3_f32 v10, v10, v{regs[k]}, v{regs[k+1]}")
        e(f"v_max_f32 v10, v10, v{regs[23]}")
        e("v_mov_b32 v11, v10")
        e("s_nop 1")
        e("v_permlane32_swap_b32 v10, v11")
        e("s_nop 0")
        e("v_max_f32 v10, v10, v11")
        e(f"v_mul_f32 v10, s{sO}, v10")
        for r in regs: e(f"v_fma_f32 v{r}, v{r}, s{sO}, -v10")
        for r in regs: e(f"v_exp_f32 v{r}, v{r}")
        e("s_nop 0")
        for base in (Sc, Sc + 8, Sp + 8):
            for j in range(4): e(f"v_cvt_pk_bf16_f32 v{base+j}, v{base+2*j}, v{base+2*j+1}")
        e("s_nop 1")
        e(f"{MF32} {vr(Oa,16)}, {vr(Vf,4)}, {vr(Sc,4)}, 0")
        e(f"{MF32} {vr(La,16)}, {vr(ONES,4)}, {vr(Sc,4)}, 0")
        e(f"{MF32} {vr(Oa,16)}, {vr(Vf+4,4)}, {vr(Sc+8,4)}, {vr(Oa,16)}")
        e(f"{MF32} {vr(La,16)}, {vr(ONES,4)}, {vr(Sc+8,4)}, {vr(La,16)}")
        e(f"{MF32} {vr(Oa,16)}, {vr(Vp,4)}, {vr(Sp+8,4)}, {vr(Oa,16)}")
        e(f"{MF32} {vr(La,16)}, {vr(ONES,4)}, {vr(Sp+8,4)}, {vr(La,16)}")
        e("s_nop 11")
        e(f"v_rcp_f32 v10, v{La}")
        e("s_nop 0")
        for r in range(8): e(f"v_mul_f32 v{Oa+8*hd+r}, v10, v{Oa+8*hd+r}")
        o = 12 + 4 * hd
        for j in range(4): e(f"v_cvt_pk_bf16_f32 v{o+j}, v{Oa+8*hd+2*j}, v{Oa+8*hd+2*j+1}")
        e(f"buffer_store_dwordx4 {vr(o,4)}, v9, {sr(R_WS,4)}, s{sO+1} offen offset:{1024*hd}{SC}")

def wo_dma(e, R, base):
    e(f"s_lshl_b32 s{sO+1}, s{sI}, 17"); e(f"s_lshl_b32 s{sO+2}, s{sHP}, 6"); e(f"s_add_u32 s{sO+1}, s{sO+1}, s{sO+2}")
    e(f"s_lshl_b32 s{sO+2}, s{sI}, 13")
    for u in range(8):
        e(f"s_add_u32 m0, s{sO+2}, {base + u*1024}")
        e(f"s_add_u32 s{sO}, s{sO+1}, {u*16384}")
        dma(e, 20, R, sO)
def wob_dma_open(e):
    e("v_lshrrev_b32 v20, 2, v0")
    e("v_and_b32 v21, 3, v0")
    e("v_lshlrev_b32 v21, 4, v21")
    e("v_lshl_add_u32 v20, v20, 10, v21")
    wo_dma(e, R_WOB, WOB_L)

vL16, vWt, vSt, vFl, vPo, vOC = 8, 9, 10, 11, 1, 4
GACC, GO, GW = 12, 32, 148
sTK, sOut = sT, sT+1
def out_prep(e):
    e(f"v_lshlrev_b32 v{vL16}, 4, v0")
    e("v_lshrrev_b32 v30, 5, v0")
    e("v_bfe_u32 v31, v0, 2, 2")
    e("v_lshl_add_u32 v30, v30, 2, v31")
    e(f"v_lshlrev_b32 v{vWt}, 6, v30")
    e("v_and_b32 v30, 1, v0");        e(f"v_lshl_add_u32 v{vWt}, v30, 5, v{vWt}")
    e("v_bfe_u32 v30, v0, 1, 1");     e(f"v_lshl_add_u32 v{vWt}, v30, 3, v{vWt}")
    e("v_bfe_u32 v30, v0, 4, 1");     e(f"v_lshl_add_u32 v{vWt}, v30, 4, v{vWt}")
    e(f"v_and_b32 v{vSt}, 31, v0"); e(f"v_lshlrev_b32 v{vSt}, 11, v{vSt}")
    e("v_lshrrev_b32 v30, 5, v0"); e(f"v_lshl_add_u32 v{vSt}, v30, 5, v{vSt}")
    e(f"v_lshlrev_b32 v{vPo}, 9, v30")
    e("v_bfe_u32 v30, v0, 3, 2"); e(f"v_lshl_add_u32 v{vPo}, v30, 10, v{vPo}")
    e("v_and_b32 v30, 7, v0"); e(f"v_lshl_add_u32 v{vPo}, v30, 4, v{vPo}")
    e(f"v_and_b32 v{vOC}, 3, v0"); e(f"v_lshlrev_b32 v{vOC}, 2, v{vOC}"); e(f"v_add_u32 v{vOC}, {PRY}, v{vOC}")
    e(f"s_lshl_b32 s{sTK}, s{sTB}, 2"); e(f"s_add_u32 s{sTK}, s{sTK}, s{sI}")
    e(f"s_lshl_b32 s{sOut}, s{sTK}, 16"); e(f"s_lshl_b32 s{sO}, s{sHP}, 6"); e(f"s_add_u32 s{sOut}, s{sOut}, s{sO}")

def pry_wait(e, cnt, sleep=6):
    l, d = e.uniq("hp"), e.uniq("hpd")
    e.lab(l)
    e(f"ds_read_b32 v{vHT}, v{vOC}")
    e("s_waitcnt lgkmcnt(0)")
    e(f"v_cmp_ge_u32 vcc, {cnt}, v{vHT}")
    e(f"s_cbranch_vccz {d}")
    spin_tail(e, l, sleep)
    e.lab(d)

def pub(e, add):
    P = GO
    e(f"s_add_u32 s{sO+4}, s{sI}, {add}")
    e(f"s_mul_i32 s{sO}, s{sO+4}, {OS_POS}"); e(f"s_add_u32 s{sO}, s{sO}, {OS_L}")
    e(f"v_add_u32 v28, s{sO}, v{vL16}")
    e("v_and_b32 v29, 31, v0"); e(f"v_lshl_add_u32 v29, v29, 2, s{sO}")
    e(f"s_sub_u32 s{sO}, s{sO+4}, 1"); e(f"s_cmp_lt_u32 s{sO}, s{sCB}"); e(f"s_cselect_b32 s{sO}, s{sO}, s{sO+4}")
    e(f"s_cmp_eq_u32 s{sO+4}, 0"); e(f"s_cselect_b32 s{sO}, s{sCB}, s{sO}")
    e(f"s_lshl_b32 s{sO}, s{sO}, 12")
    e(f"s_lshr_b32 s{sO+1}, s{sIDX}, 2"); e(f"s_lshl_b32 s{sO+1}, s{sO+1}, 15"); e(f"s_add_u32 s{sO}, s{sO}, s{sO+1}")
    e(f"s_and_b32 s{sO+1}, s{sIDX}, 3"); e(f"s_lshl_b32 s{sO+1}, s{sO+1}, 7"); e(f"s_add_u32 s{sO}, s{sO}, s{sO+1}")
    e(f"s_add_u32 s{sO+3}, s{sO}, {OA}")
    e(f"s_lshl_b32 s{sO+5}, s{sIDX}, 3"); e(f"s_add_u32 s{sO+5}, s{sO+5}, s{sO+4}"); e(f"s_lshl_b32 s{sO+5}, s{sO+5}, 7"); e(f"s_add_u32 s{sO+5}, s{sO+5}, {F4}")
    pry_wait(e, f"s{sO+4}")
    e(f"ds_read2st64_b32 {vr(P+32,2)}, v29 offset0:8 offset1:17")
    e(f"ds_read2st64_b32 {vr(P+34,2)}, v29 offset0:26 offset1:35")
    for a in range(2):
        for s in range(4): e(f"ds_read_b128 {vr(P+8*s+4*a,4)}, v28 offset:{s*OS_PAIR + a*1024}")
    e("s_waitcnt lgkmcnt(8)")
    e(f"v_pk_add_f32 {vr(P+32,2)}, {vr(P+32,2)}, {vr(P+34,2)}")
    e(f"v_add_f32 v{P+32}, v{P+32}, v{P+33}")
    e(f"v_rcp_f32 v{P+32}, v{P+32}")
    for a in range(2):
        e(f"s_waitcnt lgkmcnt({4-4*a})")
        for k in range(2):
            a_, b_, c_, d_ = (vr(P + 8*s + 4*a + 2*k, 2) for s in range(4))
            e(f"v_pk_add_f32 {a_}, {a_}, {b_}")
            e(f"v_pk_add_f32 {c_}, {c_}, {d_}")
            e(f"v_pk_add_f32 {a_}, {a_}, {c_}")
            e(f"v_pk_mul_f32 {a_}, {a_}, {vr(P+32,2)} op_sel_hi:[1,0]")
    for k in range(4): e(f"v_cvt_pk_bf16_f32 v{164+k}, v{P+2*k}, v{P+2*k+1}")
    e(f"buffer_store_dwordx4 v[164:167], v{vPo}, {sr(R_WS,4)}, s{sO+3} offen{SC}")
    e("s_waitcnt vmcnt(0)")
    set_flag(e, sO+5, 2, 3)

def gemm(e, src, wl, s0, s1, paced=True):
    NB = 29
    n = s1 - s0
    oreg = lambda k: GO + 4 * (k % NB)
    e(f"s_lshl_b32 s{sO+2}, s{sTK}, 15"); e(f"s_add_u32 s{sO+2}, s{sO+2}, {src}")
    def ldo(k):
        s = s0 + k
        if k == 0 or s % 4 == 0: e(f"s_add_u32 s{sO}, s{sO+2}, {(s>>2)*4096}")
        e(f"buffer_load_dwordx4 {vr(oreg(k),4)}, v{vL16}, {sr(R_WS,4)}, s{sO} offen offset:{(s&3)*1024}{SC}")
    def rdw(k):
        b = GW + 4*(k & 3); s = s0 + k
        o = wl + s*1024
        assert o + 512 < 65536 + 2048
        if o + 512 > 65535:
            e(f"ds_read_b64_tr_b16 {vr(b,2)}, v31 offset:{o-4096}"); e(f"ds_read_b64_tr_b16 {vr(b+2,2)}, v31 offset:{o+512-4096}")
        else:
            e(f"ds_read_b64_tr_b16 {vr(b,2)}, v{vWt} offset:{o}"); e(f"ds_read_b64_tr_b16 {vr(b+2,2)}, v{vWt} offset:{o+512}")
    for k in range(min(NB, n)): ldo(k)
    e(f"v_add_u32 v31, 4096, v{vWt}")
    for k in range(3): rdw(k)
    if paced: e(f"s_setprio {HM}")
    for k in range(n):
        if k + 3 < n: rdw(k + 3)
        e(f"s_waitcnt vmcnt({min(NB-1, n-1-k)}) lgkmcnt({min(6, 2*(n-1-k))})")
        e(f"{MF32} {vr(GACC,16)}, {vr(GW+4*(k&3),4)}, {vr(oreg(k),4)}, {'0' if s0 + k == 0 else vr(GACC,16)}")
        if k + NB < n: ldo(k + NB)
    if paced: e("s_setprio 3")

def out_store(e, off):
    e("s_nop 11")
    for j in range(8): e(f"v_cvt_pk_bf16_f32 v{GW+j}, v{GACC+2*j}, v{GACC+2*j+1}")
    e(f"buffer_store_dwordx4 {vr(GW,4)}, v{vSt}, {sr(R_OUT,4)}, s{sOut} offen offset:{off}{OSC}")
    e(f"buffer_store_dwordx4 {vr(GW+4,4)}, v{vSt}, {sr(R_OUT,4)}, s{sOut} offen offset:{off+16}{OSC}")

def lane_id(e):
    e("v_mbcnt_lo_u32_b32 v0, -1, 0"); e("v_mbcnt_hi_u32_b32 v0, -1, v0")

def out_stage_b(e, hb):
    e.c("---- output stage B")
    out_prep(e)
    if "noB" not in OPT:
        e(f"s_lshr_b32 s{sO+2}, s{sTK}, 1"); e(f"s_lshl_b32 s{sO+2}, s{sO+2}, 12")
        e(f"s_and_b32 s{sO+3}, s{sI}, 1"); e(f"s_lshl_b32 s{sO+3}, s{sO+3}, 7")
        e(f"s_add_u32 s{sO+2}, s{sO+2}, s{sO+3}"); e(f"s_add_u32 s{sO+2}, s{sO+2}, {F3}")
        e(f"v_lshl_add_u32 v{vFl}, v0, 8, s{sO+2}")
    e("s_waitcnt vmcnt(0)")
    e(f"ds_add_u32 v{vHC}, v{vH1}")
    if "noB" not in OPT:
        gpoll(e, vFl, vHT, 0xffff, 0, sleep=F3SLEEP)
        stamp(e, 7)
        lds_wait(e, vHC, vHT, hb + 4)
        gemm(e, OB, WOB_L, 0, 32)
        out_store(e, 1024)
    stamp(e, 8)
    sk = e.uniq("nop7")
    e(f"s_cmp_lg_u32 s{sI}, 3"); e(f"s_cbranch_scc1 {sk}")
    pub(e, 4)
    e.lab(sk)

def out_stage_a(e, hb):
    e.c("---- output stage A")
    lane_id(e)
    out_prep(e)
    e(f"v_mov_b32 v{vHC}, {HCNT}")
    pub(e, 0)
    stamp(e, 5)
    e(f"s_lshl_b32 s{sO+2}, s{sTK}, 12"); e(f"s_add_u32 s{sO+2}, s{sO+2}, {F4}")
    e(f"v_lshl_add_u32 v{vFl}, v0, 7, s{sO+2}")
    lds_wait(e, vHC, vHT, hb + 4, sleep=8)
    pry_wait(e, 3)
    gpoll(e, vFl, vHT, 0x0f0f0f0f, 0, sleep=12)
    gemm(e, OA, WOA_L, 0, 12)
    stamp(e, 16)
    sk = e.uniq("nop7")
    e(f"s_cmp_eq_u32 s{sI}, 3"); e(f"s_cbranch_scc1 {sk}")
    pub(e, 4)
    e.lab(sk)
    stamp(e, 17)
    pry_wait(e, 6)
    gpoll(e, vFl, vHT, 0x70707070, 0, sleep=6)
    gemm(e, OA, WOA_L, 12, 24)
    stamp(e, 18)
    pry_wait(e, 7)
    gpoll(e, vFl, vHT, 0x80808080, 0, sleep=1)
    stamp(e, 19)
    gemm(e, OA, WOA_L, 24, 32, paced=False)
    out_store(e, 0)
    sk = e.uniq("noep")
    e(f"s_or_b32 s{sO}, s{sWG}, s{sI}"); e(f"s_cbranch_scc1 {sk}")
    e(f"s_mov_b32 s{sO}, {EPOCH_W}")
    set_flag(e, sO, 2, 3)
    e.lab(sk)

def h_qprep(e):
    T, QK, SA, SB = 20, 104, 120, 136
    e.c("---- H: Q prep")
    e(f"s_add_u32 s{sO+1}, s{sI}, 1"); e(f"s_cmp_lt_u32 s{sI}, s{sCB}"); e(f"s_cselect_b32 s{sO+1}, s{sI}, s{sO+1}")
    e(f"s_add_u32 s{sO}, s{sI}, 4"); e(f"s_add_u32 s{sO+2}, s{sI}, 5"); e(f"s_cmp_lt_u32 s{sO}, s{sCB}"); e(f"s_cselect_b32 s{sO+2}, s{sO}, s{sO+2}")
    e(f"s_min_u32 s{sO+2}, s{sO+2}, 7")
    e(f"v_and_b32 v{T+1}, 1, v0"); e(f"v_lshlrev_b32 v{T+1}, 8, v{T+1}")
    e(f"s_lshl_b32 s{sO}, s{sRB}, 12"); e(f"s_lshr_b32 s{sO+3}, s{sCB}, 2"); e(f"s_lshl_b32 s{sO+3}, s{sO+3}, 7")
    e(f"s_add_u32 s{sO}, s{sO}, s{sO+3}"); e(f"s_add_u32 s{sO}, s{sO}, {F2}")
    e(f"s_lshl_b32 s{sO+3}, s{sO+1}, 9"); e(f"s_add_u32 s{sO+3}, s{sO+3}, s{sO}")
    e(f"v_add_u32 v{T}, s{sO+3}, v{T+1}")
    e(f"s_lshl_b32 s{sO+3}, s{sO+2}, 9"); e(f"s_add_u32 s{sO+3}, s{sO+3}, s{sO}")
    e("s_mov_b64 exec, 0xc")
    e(f"v_add_u32 v{T}, s{sO+3}, v{T+1}")
    e(f"s_lshl_b32 s{sO+3}, s{sRB}, 10"); e(f"s_add_u32 s{sO+3}, s{sO+3}, {F1}")
    e("s_mov_b64 exec, 0x30")
    e(f"v_add_u32 v{T}, s{sO+3}, v{T+1}")
    e("s_mov_b64 exec, -1")
    e(f"v_lshlrev_b32 v{T+2}, 4, v0")
    e(f"s_lshl_b32 s{sO+3}, s{sIDX}, 13")
    e(f"s_lshl_b32 s{sO+1}, s{sO+1}, 10"); e(f"s_add_u32 s{sO+1}, s{sO+1}, s{sO+3}")
    e(f"s_lshl_b32 s{sO+2}, s{sO+2}, 10"); e(f"s_add_u32 s{sO+2}, s{sO+2}, s{sO+3}")
    e(f"s_lshl_b32 s{sO+4}, s{sRB}, 11"); e(f"s_add_u32 s{sO+4}, s{sO+4}, {KW}")
    e(f"s_lshl_b32 s{sO+5}, s{sI}, 12"); e(f"s_add_u32 s{sO+5}, s{sO+5}, {F1 + 16384}")
    e(f"v_lshl_add_u32 v{T+3}, v0, 7, s{sO+5}")
    lds_wait(e, vHC, vHT, 5, off=LAND - CNT + 768, sleep=2)
    gpoll(e, T + 3, T + 1, 0xffffffff, 0, sleep=2)
    e(f"s_lshl_b32 exec_lo, 1, s{sI}"); e("s_mov_b32 exec_hi, 0")
    e(f"ds_write_b32 v{vHC}, v{vH1} offset:{SOK-CNT}")
    e("s_mov_b64 exec, -1")
    lds_wait(e, vHC, vHT, 4, off=ACNT - CNT, sleep=2)
    gpoll(e, T, T + 1, 0x3f, 0, sleep=2)
    e(f"buffer_load_dwordx4 {vr(QK,4)}, v{T+2}, {sr(R_WS,4)}, s{sO+1} offen{SC}")
    e(f"buffer_load_dwordx4 {vr(QK+4,4)}, v{T+2}, {sr(R_WS,4)}, s{sO+2} offen{SC}")
    e(f"buffer_load_dwordx4 {vr(QK+8,4)}, v{T+2}, {sr(R_WS,4)}, s{sO+4} offen{SC}")
    e(f"s_lshl_b32 s{sO}, s{sI}, 10"); e(f"s_add_u32 s{sO}, s{sO}, {QI_L+1024}"); e(f"v_add_u32 v{T}, s{sO}, v{T+2}")
    e(f"v_and_b32 v{T+1}, 0x1ff, v{T+2}")
    e(f"s_lshl_b32 s{sO}, s{sI}, 9"); e(f"s_add_u32 s{sO}, s{sO}, {NM_L+512}"); e(f"v_add_u32 v{T+1}, s{sO}, v{T+1}")
    e("s_waitcnt vmcnt(0)")
    e(f"{MF32} {vr(SA,16)}, {vr(QK+8,4)}, {vr(QK,4)}, 0")
    e(f"{MF32} {vr(SB,16)}, {vr(QK+8,4)}, {vr(QK+4,4)}, 0")
    e(f"ds_write_b128 v{T}, {vr(QK,4)}")
    e("s_nop 9")
    negmax(e, SA, 152)
    for r in range(1, 4): e(f"v_mov_b32 v{152+r}, v152")
    e(f"ds_write_b128 v{T+1}, v[152:155]")
    e(f"s_cmp_eq_u32 s{sI}, 0"); e("s_cselect_b32 exec_lo, 1, 0"); e("s_mov_b32 exec_hi, 0")
    e(f"ds_write_b32 v{vHC}, v{vH1} offset:{RDY1-CNT}")
    e("s_mov_b64 exec, -1")
    sk = e.uniq("nop8")
    e(f"s_cmp_eq_u32 s{sI}, 3"); e(f"s_cbranch_scc1 {sk}")
    negmax(e, SB, 156)
    for r in range(1, 4): e(f"v_mov_b32 v{156+r}, v156")
    e(f"ds_write_b128 v{T}, {vr(QK+4,4)} offset:4096")
    e(f"ds_write_b128 v{T+1}, v[156:159] offset:2048")
    e.lab(sk)
    e(f"ds_add_u32 v{vHC}, v{vH1} offset:{ACNT-CNT}")
    stamp(e, 10)

def h_role(e):
    e("s_setprio 3")
    h_start(e)
    kv_job(e)
    b_prep(e)
    b_masks(e)
    h_qprep(e)
    if "xxpf" in OPT:
        e("v_lshlrev_b32 v20, 7, v0")
        e(f"s_and_b32 s{sO+1}, s{sIDX}, 31")
        e(f"s_lshl_b32 s{sO+1}, s{sO+1}, 2"); e(f"s_add_u32 s{sO+1}, s{sO+1}, s{sI}")
        e(f"s_mul_i32 s{sO+2}, s{sO+1}, 12288")
        e(f"s_add_u32 s{sO+3}, s{sO+2}, 8192")
        e(f"s_lshl_b32 s{sO+4}, s{sO+1}, 12")
        e(f"s_lshl_b32 s{sO+5}, s{sIDX}, 13"); e(f"s_lshl_b32 s{sO}, s{sI}, 11"); e(f"s_add_u32 s{sO+5}, s{sO+5}, s{sO}")
        lds_wait(e, vHC, vHT, 1, off=KVF - CNT)
        e(f"buffer_load_dword v21, v20, {sr(R_WB,4)}, s{sO+2} offen")
        e("s_mov_b32 exec_hi, 0")
        e(f"buffer_load_dword v22, v20, {sr(R_WB,4)}, s{sO+3} offen")
        e(f"buffer_load_dword v23, v20, {sr(R_WOB,4)}, s{sO+4} offen")
        e("s_mov_b32 exec_lo, 0xffff")
        e(f"buffer_load_dword v17, v20, {sr(R_XB,4)}, s{sO+5} offen")
        e("s_mov_b64 exec, -1")
    lds_wait(e, vHC, vHT, 8, off=GCNT - CNT, sleep=2)
    if "noH" in OPT:
        stamp_out(e); e("s_endpgm")
    if "noB" in OPT:
        wob_dma_open(e); wo_dma(e, R_WOA, WOA_L)
        out_stage_b(e, 4)
        stamp_out(e); e("s_endpgm")
        return
    for j in range(2): b_dma(e, j)
    stamp(e, 4)
    b_proj(e)
    stamp(e, 5)
    b_attn(e, lambda: wob_dma_open(e))
    e(f"s_lshl_b32 s{sO+5}, s{sIDX}, 2"); e(f"s_add_u32 s{sO+5}, s{sO+5}, s{sI}"); e(f"s_lshl_b32 s{sO+5}, s{sO+5}, 7"); e(f"s_add_u32 s{sO+5}, s{sO+5}, {F3}")
    e(f"ds_add_u32 v{vHC}, v{vH1}")
    e("s_waitcnt vmcnt(0)")
    set_flag(e, sO+5, 2, 3)
    lds_wait(e, vHC, vHT, 44)
    wo_dma(e, R_WOA, WOA_L)
    stamp(e, 6)
    out_stage_b(e, 44)
    stamp_out(e)
    e("s_endpgm")

def q_role(e):
    vXa, vWa, vXb, vWb, vSt, vLd = 8, 16, 17, 25, 26, 27
    acc, fr, NF = 104, 124, 5
    T = 28
    e.c("---- Q wave")
    load_epoch(e)
    lw = e.uniq("nowot")
    if "nocpf" not in OPT:
        e(f"s_getpc_b64 s[{sO+2}:{sO+3}]")
        e.lab("L_pc")
        e(f"s_lshr_b32 s{sO}, s{sWG}, 3"); e(f"s_lshl_b32 s{sO}, s{sO}, 2"); e(f"s_add_u32 s{sO}, s{sO}, s{sI}")
        e(f"s_and_b32 s{sO}, s{sO}, 63")
        e(f"s_lshl_b32 s{sO}, s{sO}, 10")
        e(f"s_sub_u32 s{sO+2}, s{sO+2}, L_pc-{NAME}_kernel"); e(f"s_subb_u32 s{sO+3}, s{sO+3}, 0")
        e(f"v_lshl_add_u32 v{T}, v0, 4, s{sO}")
        e(f"v_min_u32 v{T}, L_codeend-{NAME}_kernel-4, v{T}")
        e(f"global_load_dword v164, v{T}, s[{sO+2}:{sO+3}]")
    if "mpf" in OPT:
        l1, l2_, l3 = e.uniq("m1"), e.uniq("m2"), e.uniq("m3")
        e(f"v_lshlrev_b32 v{T+2}, 7, v0")
        e(f"s_cmp_lg_u32 s{sI}, 1"); e(f"s_cbranch_scc1 {l1}")
        e(f"s_lshl_b32 s{sO}, s{sIDX}, 13")
        e(f"buffer_load_dword v165, v{T+2}, {sr(R_XB,4)}, s{sO} offen")
        e.lab(l1)
        e(f"s_cmp_lg_u32 s{sI}, 2"); e(f"s_cbranch_scc1 {l2_}")
        e(f"s_mul_i32 s{sO}, s{sIDX}, 6144")
        e("s_mov_b32 exec_hi, 0xffff")
        e(f"buffer_load_dword v165, v{T+2}, {sr(R_WB,4)}, s{sO} offen")
        e(f"s_lshl_b32 s{sO}, s{sIDX}, 11")
        e("s_mov_b32 exec_hi, 0"); e("s_mov_b32 exec_lo, 0xffff")
        e(f"buffer_load_dword v166, v{T+2}, {sr(R_WOB,4)}, s{sO} offen")
        e("s_mov_b64 exec, -1")
        e.lab(l2_)
    e("s_barrier")
    att_pre(e)
    a_, b_, c_, d_ = T, T+1, T+2, T+3
    e(f"s_and_b32 s{sO}, s{sI}, 1"); e(f"s_lshl_b32 s{sO}, s{sO}, 13")
    e(f"v_and_b32 v{a_}, 31, v0"); e(f"v_lshrrev_b32 v{b_}, 5, v0"); e(f"v_and_b32 v{c_}, 15, v0")
    e(f"v_xor_b32 v{c_}, v{c_}, v{b_}")
    e(f"v_lshl_add_u32 v{d_}, v{a_}, 8, s{sO}")
    e(f"v_lshl_add_u32 v{vXa}, v{c_}, 4, v{d_}")
    for s in range(1, 8): e(f"v_xor_b32 v{vXa+s}, {s<<5}, v{vXa}")
    e(f"v_bfe_u32 v{a_}, v0, 2, 2")
    e(f"v_lshl_add_u32 v{c_}, v{b_}, 3, v{a_}"); e(f"v_lshlrev_b32 v{c_}, 7, v{c_}")
    e(f"v_lshrrev_b32 v{a_}, 1, v{a_}")
    e(f"s_lshr_b32 s{sO}, s{sI}, 1")
    e(f"v_xor_b32 v{a_}, s{sO}, v{a_}")
    e(f"v_lshl_add_u32 v{c_}, v{a_}, 6, v{c_}")
    e(f"v_bfe_u32 v{a_}, v0, 4, 1"); e(f"v_lshl_add_u32 v{c_}, v{a_}, 5, v{c_}")
    e(f"v_and_b32 v{a_}, 3, v0"); e(f"v_lshl_add_u32 v{c_}, v{a_}, 3, v{c_}")
    e(f"v_add_u32 v{vWa}, 16384, v{c_}")
    e(f"v_lshlrev_b32 v{vLd}, 8, v{a_}"); e(f"v_add_u32 v{vLd}, {LAND}, v{vLd}")
    e(f"v_bfe_u32 v{a_}, v0, 3, 2"); e(f"v_lshlrev_b32 v{a_}, 13, v{a_}"); e(f"v_lshl_add_u32 v{a_}, v{b_}, 9, v{a_}")
    e(f"v_and_b32 v{c_}, 7, v0"); e(f"v_lshl_add_u32 v{vSt}, v{c_}, 4, v{a_}")
    for s in range(9): e(f"v_add_u32 v{vXb+s}, 65536, v{vXa+s}")
    get_epoch(e)
    e(f"s_mov_b32 s{sT+6}, {hex(f32bits(CSC))}")
    e(f"s_and_b32 s{sO+1}, s{sI}, 1"); e(f"s_lshl_b32 s{sO+2}, s{sRB}, 1"); e(f"s_add_u32 s{sO+1}, s{sO+1}, s{sO+2}"); e(f"s_lshl_b32 s{sO+1}, s{sO+1}, 15")
    e(f"s_lshl_b32 s{sO+2}, s{sCB}, 10"); e(f"s_add_u32 s{sO+1}, s{sO+1}, s{sO+2}")
    e(f"s_lshr_b32 s{sO+2}, s{sI}, 1"); e(f"s_lshl_b32 s{sO+2}, s{sO+2}, 8"); e(f"s_add_u32 s{sT+7}, s{sO+1}, s{sO+2}")
    e(f"s_add_u32 s{sO+2}, s{sO+2}, {QI_L}")
    e(f"v_and_b32 v{b_}, 0x3ff, v{vSt}"); e(f"v_add_u32 v{b_}, s{sO+2}, v{b_}")
    e(f"s_lshl_b32 s{sT+10}, s{sIDX}, 2"); e(f"s_add_u32 s{sT+10}, s{sT+10}, s{sI}"); e(f"s_lshl_b32 s{sT+10}, s{sT+10}, 7"); e(f"s_add_u32 s{sT+10}, s{sT+10}, {F2}")
    e(f"s_and_b32 s{sO}, s{sCB}, 3"); e(f"s_lshl_b32 s{sO}, s{sO}, 3"); e(f"s_lshl_b32 s{sT+11}, 0xff, s{sO}")
    e(f"s_lshr_b32 s{sO}, s{sCB}, 2"); e(f"s_and_b32 s{sO+1}, s{sI}, 1")
    e(f"s_cmp_eq_u32 s{sO}, s{sO+1}"); e(f"s_cselect_b32 s{sT+11}, s{sT+11}, 0")
    e(f"s_lshl_b32 s{sO}, s{sI}, 2"); e(f"s_add_u32 s{sO}, s{sO}, {SOK}"); e(f"v_mov_b32 v{c_}, s{sO}")
    gather_bases(e)
    def landwait(mask):
        lq = e.uniq("ql")
        e.lab(lq)
        e(f"ds_read_b32 v{a_}, v{vLd}")
        e("s_waitcnt lgkmcnt(0)")
        e(f"v_cmp_gt_u32 vcc, 5, v{a_}")
        e(f"s_and_b32 s{sO+5}, vcc_lo, 15")
        e(f"s_and_b32 s{sO+4}, s{sO+5}, {mask}")
        e(f"s_cbranch_scc0 {lq}_d")
        spin_tail(e, lq, 1)
        e.lab(lq + "_d")
    def rd(n):
        sg, s = n >> 3, n & 7
        so = (sg & 1) * SLOT
        xa, wa = (vXa + s, vWa) if sg < 2 else (vXb + s, vWb)
        f = fr + 8 * (n % NF)
        e(f"ds_read_b128 {vr(f,4)}, v{xa} offset:{so}")
        e(f"ds_read_b64_tr_b16 {vr(f+4,2)}, v{wa} offset:{so+s*2048}")
        e(f"ds_read_b64_tr_b16 {vr(f+6,2)}, v{wa} offset:{so+s*2048+512}")
    e("s_setprio 3")
    landwait(1)
    stamp(e, 16)
    for n in range(NF): rd(n)
    for n in range(32):
        f = fr + 8 * (n % NF)
        e(f"s_waitcnt lgkmcnt({min(3*(NF-1), 3*(31-n))})")
        e(f"{MF32} {vr(acc,16)}, {vr(f+4,4)}, {vr(f,4)}, {'0' if n == 0 else vr(acc,16)}")
        if n + NF < 32:
            if (n + NF) % 8 == 0:
                bit = 1 << ((n + NF) >> 3)
                sk = e.uniq("lok")
                e(f"s_and_b32 s{sO+4}, s{sO+5}, {bit}"); e(f"s_cbranch_scc0 {sk}")
                landwait(bit)
                e.lab(sk)
            rd(n + NF)
    e(f"ds_read_b32 v{a_}, v{c_}")
    e("s_nop 10")
    for r in range(16): e(f"v_mul_f32 v{acc+r}, s{sT+6}, v{acc+r}")
    P = AO
    for j in range(8): e(f"v_cvt_pk_bf16_f32 v{P+j}, v{acc+2*j}, v{acc+2*j+1}")
    e(f"s_mov_b32 exec_lo, s{sT+11}"); e(f"s_mov_b32 exec_hi, s{sT+11}")
    e(f"ds_write_b128 v{b_}, {vr(P,4)}")
    e(f"ds_write_b128 v{b_}, {vr(P+4,4)} offset:128")
    e("s_mov_b64 exec, -1")
    e(f"ds_add_u32 v{S1+2}, v{S1+3} offset:{ACNT-CNT}")
    e(f"buffer_store_dwordx4 {vr(P,4)}, v{vSt}, {sr(R_WS,4)}, s{sT+7} offen{SC}")
    e(f"buffer_store_dwordx4 {vr(P+4,4)}, v{vSt}, {sr(R_WS,4)}, s{sT+7} offen offset:128{SC}")
    stamp(e, 2)
    att_role(e)

def aux_role(e):
    e.c("---- aux wave")
    load_epoch(e)
    xa_voffs(e, 8, 12)
    e(f"s_lshl_b32 s{sO}, s{sI}, 6"); e(f"v_xor_b32 v8, s{sO}, v8")
    e("v_lshrrev_b32 v2, 3, v0")
    e("v_bfe_u32 v3, v0, 4, 1"); e("v_lshlrev_b32 v3, 2, v3")
    e("v_and_b32 v4, 7, v0"); e("v_xor_b32 v4, v4, v3"); e("v_lshlrev_b32 v4, 4, v4")
    e("v_lshl_add_u32 v12, v2, 10, v4")
    e(f"s_lshl_b32 s{sT}, s{sI}, 12")
    e(f"s_lshl_b32 s{sT+1}, s{sI}, 15"); e(f"s_lshl_b32 s{sO}, s{sCB}, 7"); e(f"s_add_u32 s{sT+1}, s{sT+1}, s{sO}")
    e(f"s_lshl_b32 s{sT+2}, s{sRB}, 16"); e(f"s_add_u32 s{sT+2}, s{sT+2}, s{sT}")
    e(f"s_lshl_b32 s{sT+9}, s{sI}, 10")
    for du in range(1, 4):
        e(f"s_add_u32 s{sO}, s{sSB}, {du}"); e(f"s_and_b32 s{sO}, s{sO}, 3")
        e(f"s_lshl_b32 s{sT+2+du}, s{sO}, 14"); e(f"s_add_u32 s{sT+2+du}, s{sT+2+du}, s{sT+2}")
        e(f"s_lshl_b32 s{sT+5+du}, s{sO}, 12"); e(f"s_add_u32 s{sT+5+du}, s{sT+5+du}, s{sT+9}")
    e("s_barrier")
    for sg in range(4):
        e(f"s_add_u32 s{sO+1}, s{sRB}, {sg}"); e(f"s_and_b32 s{sO+1}, s{sO+1}, 3")
        e(f"s_lshl_b32 s{sO+2}, s{sO+1}, 8")
        e(f"s_lshl_b32 s{sO+1}, s{sO+1}, 17"); e(f"s_add_u32 s{sO+1}, s{sO+1}, s{sT+1}")
        for i in range(4):
            e(f"s_add_u32 m0, s{sT}, {sg*SLOT + 16384 + i*1024}")
            e(f"s_add_u32 s{sO}, s{sO+1}, {i*8192}")
            dma(e, 12, R_WQ, sO)
        for du in range(1, 4):
            e(f"s_add_u32 m0, s{sT+5+du}, {sg*SLOT}")
            e(f"s_add_u32 s{sO}, s{sT+2+du}, s{sO+2}")
            dma(e, 8, R_XA, sO, nt=True)
    stamp(e, 1)
    e(f"v_lshlrev_b32 v{AO+4}, 2, v0"); e(f"v_add_u32 v{AO+4}, {CNT}, v{AO+4}")
    e(f"v_mov_b32 v{AO+6}, 1")
    for sg in range(4):
        e(f"s_waitcnt vmcnt({21-7*sg})")
        e(f"ds_add_u32 v{AO+4}, v{AO+6} offset:{LAND-CNT+256*sg}")
    stamp(e, 2)
    att_pre(e)
    e(f"s_lshl_b32 s{sO}, s{sAW}, 12"); e(f"s_add_u32 s{sO}, s{sO}, {F1}")
    e(f"v_and_b32 v{S0}, 31, v0"); e(f"v_lshl_add_u32 v{S1+1}, v{S0}, 7, s{sO}")
    e(f"s_lshl_b32 s{sO}, s{sRB}, 10"); e(f"s_add_u32 s{sO}, s{sO}, {F1}")
    e("s_mov_b32 exec_lo, 0")
    e(f"v_lshl_add_u32 v{S1+1}, v{S0}, 8, s{sO}")
    e("s_mov_b64 exec, -1")
    gather_bases(e)
    e(f"s_lshl_b32 s{sO+4}, s{sRB}, 11"); e(f"s_add_u32 s{sO+4}, s{sO+4}, {KW}")
    get_epoch(e)

vT0, vQ16, vAN, vT1, AQ, AK, AV, S0, S1, AO, ANM = 0, 1, 2, 3, 4, 8, 40, 104, 120, 136, 152
sAW, sP, sDl, sSl, sPRa, sPRp = sT+8, sT+9, sT+2, sT+3, sT+4, sT+5
def att_pre(e):
    e.c("---- attention pre")
    e(f"s_sub_u32 s{sAW}, s{sW}, 4")
    e(f"v_and_b32 v{S0}, 31, v0")
    e(f"v_cmp_eq_u32 vcc, 16, v{S0}")
    e(f"v_mov_b32 v{S0+1}, 0x3f803f80")
    e(f"v_lshlrev_b32 v{vQ16}, 4, v0")
    e(f"v_cndmask_b32 v{AV}, 0, v{S0+1}, vcc")
    for r in range(1, 64): e(f"v_mov_b32 v{AV+r}, v{AV}")
    e(f"v_lshlrev_b32 v{vAN}, 4, v{S0}")
    e(f"v_add_u32 v{vAN}, {NM_L}, v{vAN}")
    e(f"v_lshrrev_b32 v{S1}, 5, v0"); e(f"v_lshlrev_b32 v{S1}, 8, v{S1}")
    e(f"v_and_b32 v{S0+2}, 15, v0"); e(f"v_lshl_add_u32 v{S1}, v{S0+2}, 4, v{S1}")
    e(f"v_lshlrev_b32 v{S1+2}, 2, v0"); e(f"v_add_u32 v{S1+2}, {CNT}, v{S1+2}")
    e(f"v_mov_b32 v{S1+3}, 1")
    e(f"s_mul_i32 s{sSl}, s{sI}, {OS_PAIR}"); e(f"s_add_u32 s{sSl}, s{sSl}, {OS_L}")
    e(f"s_sub_u32 s{sDl}, s{sSl}, {QI_L + 1024}")
    e(f"s_lshl_b32 s{sPRp}, s{sI}, 2"); e(f"s_add_u32 s{sPRp}, s{sPRp}, {PRO}")
    e(f"s_lshl_b32 s{sPRa}, s{sAW}, 2"); e(f"s_add_u32 s{sPRa}, s{sPRa}, {PRO}")

def gather(e, t0, t1):
    for t in range(t0, t1):
        e(f"buffer_load_dwordx4 {vr(AK+4*t,4)}, v{vQ16}, {sr(R_WS,4)}, s{sO+2*(t>>2)} offen offset:{(t&3)*1024}{SC}")
        e("s_mov_b32 exec_lo, 0xffff"); e("s_mov_b32 exec_hi, 0xffff")
        for j in range(2):
            f = 2 * t + j
            e(f"buffer_load_dwordx4 {vr(AV+4*f,4)}, v{S1}, {sr(R_WS,4)}, s{sO+1+2*(t>>2)} offen offset:{(f&7)*512}{SC}")
        e("s_mov_b64 exec, -1")
def gather_bases(e):
    e(f"s_lshl_b32 s{sO+2}, s{sAW}, 13")
    e(f"s_add_u32 s{sO}, s{sO+2}, {KW}"); e(f"s_add_u32 s{sO+1}, s{sO+2}, {VW}")
    e(f"s_add_u32 s{sO+2}, s{sO}, 4096"); e(f"s_add_u32 s{sO+3}, s{sO+1}, 4096")

def negmax(e, S, m):
    e(f"v_max3_f32 v{m}, v{S}, v{S+1}, v{S+2}")
    for k in range(3, 15, 2): e(f"v_max3_f32 v{m}, v{m}, v{S+k}, v{S+k+1}")
    e(f"v_max_f32 v{m}, v{m}, v{S+15}")
    e(f"v_mov_b32 v{m+1}, v{m}")
    e("s_nop 1")
    e(f"v_permlane32_swap_b32 v{m}, v{m+1}")
    e("s_nop 0")
    e(f"v_max_f32 v{m}, v{m}, v{m+1}")
    e(f"v_sub_f32 v{m}, {hex(f32bits(-MOFF))}, v{m}")

def pk(S, j):
    d = S + (j if j < 4 else 4 + j)
    return f"v_cvt_pk_bf16_f32 v{d}, v{S+2*j}, v{S+2*j+1}"
def rdq(e):
    e(f"ds_read_b128 {vr(AQ,4)}, v{vQ16}")
    for k in range(4): e(f"ds_read_b128 {vr(ANM+4*k,4)}, v{vAN}")
def dump(e):
    e(f"v_add_u32 v{vT1}, s{sDl}, v{vQ16}")
    e(f"s_mov_b32 m0, s{sSl}")
    e(f"v_mov_b32 v{vT0}, s{sP}")
    e(f"ds_write_b128 v{vT1}, {vr(AO,4)}")
    e(f"ds_write_b128 v{vT1}, {vr(AO+4,4)} offset:1024")
    e(f"ds_write_addtid_b32 v{AO+8} offset:2048")
    e(f"s_mov_b32 m0, s{sPRa}")
    e("s_mov_b64 exec, 1")
    e(f"ds_write_addtid_b32 v{vT0}")
    e("s_mov_b64 exec, -1")
    e(f"s_add_u32 s{sSl}, s{sSl}, {OS_POS}")
    e(f"s_add_u32 s{sDl}, s{sDl}, {OS_POS - 1024}")

def att_block(e, kind, first_pass=False, dump_prev=None, bg=False):
    lo = LOF if kind == "F" else LOS
    def prio(p):
        if "noprio" not in OPT and not bg: e(f"s_setprio {p}")
    for t in range(8):
        Sc, Sn = (S0, S1) if t % 2 == 0 else (S1, S0)
        tp, tn = (t - 1) % 8, (t + 1) % 8
        ex = lambda i: e(f"v_exp_f32 v{Sc+i}, v{Sc+i}")
        P = lambda j: e(pk(Sc, j))
        c0 = "0" if (t == 1 and kind == "F") else vr(AO, 16)
        pv0 = f"{MF32} {vr(AO,16)}, {vr(AV+8*tp,4)}, {vr(Sn,4)}, {c0}"
        pv1 = f"{MF32} {vr(AO,16)}, {vr(AV+8*tp+4,4)}, {vr(Sn+8,4)}, {vr(AO,16)}"
        qk = f"{MF32} {vr(Sn,16)}, {vr(AK+4*tn,4)}, {vr(AQ,4)}, {vr(ANM,16)}"
        if t == 1 and kind == "S":
            ex(0); e(pk(Sn, 7)); ex(1); ex(2)
            e("s_waitcnt lgkmcnt(0)")
            e(pv0); ex(3); P(0); ex(4); P(1)
            e(pv1); ex(5); ex(6); P(2)
            e(qk); prio(lo)
            ex(7); ex(8); P(3); ex(9); ex(10); P(4); ex(11); ex(12)
            prio(3)
            P(5); ex(13); ex(14); P(6); ex(15)
            continue
        skip_pv = first_pass and t == 0
        if first_pass and t > 0: e(f"s_waitcnt vmcnt({max(0, 23 - 3*(t+1))})")
        if not skip_pv: e(pv0)
        ex(0)
        if not skip_pv: e(pk(Sn, 7))
        ex(1); ex(2)
        if not skip_pv: e(pv1)
        ex(3); P(0); ex(4); P(1)
        if t == 7: e("s_waitcnt lgkmcnt(0)")
        if skip_pv: e("s_waitcnt vmcnt(20)")
        e(qk); prio(lo)
        if t == 7 and kind == "S": e(f"v_readfirstlane_b32 s{sPOLL}, v{vT0}")
        ex(5); ex(6); P(2); ex(7)
        if t == 0 and dump_prev is not None:
            sk = e.uniq("nodump")
            if dump_prev >= 0: e(f"s_cmp_eq_u32 s{sP}, {dump_prev}"); e(f"s_cbranch_scc1 {sk}")
            if bg: e("s_nop 0")
            dump(e)
            e.lab(sk)
            if kind == "S":
                tag = "b" if bg else "s"
                e(f"s_cmp_gt_u32 s{sPOLL}, s{sP}"); e(f"s_cbranch_scc0 L_swait{tag}")
                e.lab(f"L_swait{tag}_ret")
                e(f"v_add_u32 v{vT1}, s{sDl}, v{vQ16}")
                e(f"s_mov_b32 m0, s{sSl}")
                e(f"ds_read_b128 {vr(AO,4)}, v{vT1} offset:1024")
                e(f"ds_read_b128 {vr(AO+4,4)}, v{vT1} offset:2048")
                e(f"ds_read_addtid_b32 v{AO+8} offset:2048")
        ex(8); P(3); ex(9)
        if t == 6:
            if kind == "S":
                if bg:
                    e(f"s_cmp_eq_u32 s{sP}, 0"); e("s_cbranch_scc1 L_yprep")
                    e.lab("L_yprep_ret")
                e(f"s_mov_b32 m0, s{sPRp}")
            elif not first_pass:
                e(f"s_cmp_eq_u32 s{sP}, 1"); e("s_cbranch_scc1 L_fprep")
                e.lab("L_fprep_ret")
            e(f"v_add_u32 v{vQ16}, 1024, v{vQ16}")
            e(f"v_add_u32 v{vAN}, 512, v{vAN}")
            if not first_pass: rdq(e)
            if kind == "S": e(f"ds_read_addtid_b32 v{vT0}")
        ex(10); P(4); ex(11); ex(12)
        if t == 0 and dump_prev is not None and not bg and (kind == "S" or "spref" in OPT): e("s_wakeup")
        if WIN == 12: prio(3)
        P(5); ex(13)
        if WIN == 13: prio(3)
        ex(14)
        if WIN == 14: prio(3)
        P(6); ex(15)
        if WIN == 15: prio(3)

def att_finish(e):
    e(f"{MF32} {vr(AO,16)}, {vr(AV+8*7,4)}, {vr(S1,4)}, {vr(AO,16)}")
    e(pk(S1, 7))
    e("s_nop 1")
    e(f"{MF32} {vr(AO,16)}, {vr(AV+8*7+4,4)}, {vr(S1+8,4)}, {vr(AO,16)}")
    e("s_nop 11")
    dump(e)
    e("s_waitcnt lgkmcnt(0)")
    e("s_wakeup")

def att_older(e):
    stamp(e, 6)
    e("s_setprio 3")
    gpoll(e, S1 + 1, S0, 0xffffffff, 0x3, sleep=1)
    stamp(e, 7)
    e(f"buffer_load_dwordx4 {vr(AO,4)}, v{vQ16}, {sr(R_WS,4)}, s{sO+4} offen{SC}")
    gather(e, 0, 8)
    e(f"ds_add_u32 v{S1+2}, v{S1+3} offset:{GCNT-CNT}")
    e(f"v_add_u32 v{vQ16}, {QI_L}, v{vQ16}")
    lds_wait(e, S1 + 2, S0, 4, off=ACNT - CNT, sleep=0)
    e(f"ds_read_b128 {vr(AQ,4)}, v{vQ16}")
    stamp(e, 8)
    e("s_waitcnt vmcnt(24) lgkmcnt(0)")
    stamp(e, 9)
    e(f"{MF32} {vr(S0,16)}, {vr(AO,4)}, {vr(AQ,4)}, 0")
    e("s_nop 11")
    negmax(e, S0, ANM)
    for r in range(1, 16): e(f"v_mov_b32 v{ANM+r}, v{ANM}")
    e(f"ds_write_b128 v{vAN}, {vr(ANM,4)}")
    e("s_waitcnt vmcnt(23)")
    stamp(e, 3); cstamp(e, 13)
    e(f"{MF32} {vr(S0,16)}, {vr(AK,4)}, {vr(AQ,4)}, {vr(ANM,16)}")
    e(f"s_mov_b32 s{sP}, 1")
    e("s_nop 11")
    att_block(e, "F", first_pass=True)
    att_finish(e)
    stamp(e, 20)
    e(f"v_mov_b32 v{vT1}, {RDY1}")
    lds_wait(e, vT1, vT0, 1, sleep=2)
    rdq(e)
    stamp(e, 21); cstamp(e, 10)
    e("s_waitcnt lgkmcnt(0)")
    e(f"{MF32} {vr(S0,16)}, {vr(AK,4)}, {vr(AQ,4)}, {vr(ANM,16)}")
    e("s_nop 11")
    e.L.append("    .p2align 3")
    e.lab("L_floop")
    att_block(e, "F", dump_prev=1)
    e(f"s_add_u32 s{sP}, s{sP}, 1")
    e(f"s_cmp_lt_u32 s{sP}, 8"); e("s_cbranch_scc1 L_floop")
    att_finish(e)
    stamp(e, 4); cstamp(e, 11)
    if "noH" not in OPT: out_stage_a(e, 4 if "noB" in OPT else 44)
    stamp_out(e)
    e("s_endpgm")
    e.lab("L_fprep")
    e(f"v_mov_b32 v{vT1}, {ACNT}")
    lds_wait(e, vT1, vT0, 8, sleep=2)
    e("s_branch L_fprep_ret")

def att_role(e):
    la, lb = e.uniq("sa"), e.uniq("sb")
    e("s_waitcnt lgkmcnt(0)")
    e(f"v_readfirstlane_b32 s{sPOLL}, v28")
    e(f"s_cmp_ge_u32 s{sPOLL}, 1"); e(f"s_cbranch_scc1 {la}")
    e("s_waitcnt vmcnt(0)")
    set_flag(e, sT+10, S0, S0+1)
    lds_wait(e, 30, S0+2, 1, sleep=1)
    stamp(e, 7)
    gather(e, 0, 8)
    e(f"s_branch {lb}")
    e.lab(la)
    stamp(e, 7)
    gather(e, 0, 3)
    e("s_waitcnt vmcnt(9)")
    set_flag(e, sT+10, S0, S0+1)
    gather(e, 3, 8)
    e.lab(lb)
    e(f"ds_add_u32 v{S1+2}, v{S1+3} offset:{GCNT-CNT}")
    e(f"v_add_u32 v{vQ16}, {QI_L}, v{vQ16}")
    e(f"s_mov_b32 s{sP}, 0")
    e(f"v_mov_b32 v{vT1}, s{sPRp}")
    e(f"s_setprio {LOS}")
    stamp(e, 8)
    lds_wait(e, vT1, vT0, 1, sleep=6)
    rdq(e)
    e("s_waitcnt vmcnt(0) lgkmcnt(0)")
    stamp(e, 3); cstamp(e, 13)
    e(f"{MF32} {vr(S0,16)}, {vr(AK,4)}, {vr(AQ,4)}, {vr(ANM,16)}")
    e("s_nop 11")
    e.L.append("    .p2align 3")
    e.lab("L_bloop")
    att_block(e, "S", dump_prev=0, bg=True)
    e(f"s_add_u32 s{sP}, s{sP}, 1")
    e(f"s_cmp_ge_u32 s{sP}, 8"); e("s_cbranch_scc1 L_sfin")
    e(f"s_cmp_lt_u32 s{sPOLL}, {SWITCH}"); e("s_cbranch_scc1 L_bloop")
    stamp(e, 5)
    e("s_setprio 3")
    e.L.append("    .p2align 3")
    e.lab("L_sloop")
    att_block(e, "S", dump_prev=-1)
    e(f"s_add_u32 s{sP}, s{sP}, 1")
    if STAMPS:
        e(f"s_cmp_lg_u32 s{sP}, 4"); e("s_cbranch_scc1 L_sns"); stamp(e, 4); cstamp(e, 10); e.lab("L_sns")
    e(f"s_cmp_lt_u32 s{sP}, 8"); e("s_cbranch_scc1 L_sloop")
    e.lab("L_sfin")
    att_finish(e)
    stamp_out(e)
    e("s_endpgm")
    e.lab("L_yprep")
    e(f"v_mov_b32 v{vT1}, {RDY1}")
    lds_wait(e, vT1, vT0, 1, sleep=2)
    e("s_branch L_yprep_ret")
    for tag in ("b", "s"):
        e.lab("L_swait" + tag)
        e("s_waitcnt lgkmcnt(0)")
        e("s_wakeup")
        e(f"v_mov_b32 v{vT1}, s{sPRp}")
        e(f"s_add_u32 s{sO}, s{sP}, 1")
        lds_wait(e, vT1, vT0, f"s{sO}", sleep=6)
        e(f"s_branch L_swait{tag}_ret")

def gen():
    e = Em()
    kn = NAME + "_kernel"
    e.L.append(f".globl {kn}\n.p2align 8\n.type {kn},@function\n{kn}:")
    setup(e, "L_end")
    e(f"s_cmp_ge_u32 s{sW}, 8"); e("s_cbranch_scc1 L_q")
    e(f"s_cmp_ge_u32 s{sW}, 4"); e("s_cbranch_scc1 L_aux")
    h_role(e)
    e.lab("L_q")
    q_role(e)
    e.lab("L_aux")
    aux_role(e)
    att_older(e)
    e.lab("L_end")
    e("s_endpgm")
    e.lab("L_codeend")
    head = f"""; generated by work/gen9.py
; @launch grid=(256,1,1) block=(768,1,1) lds={LDS_BYTES}
.amdgcn_target "amdgcn-amd-amdhsa--gfx950"
.text
"""
    kd = f""".section .rodata,"a"
.p2align 6
.amdhsa_kernel {kn}
  .amdhsa_next_free_vgpr 168
  .amdhsa_next_free_sgpr 102
  .amdhsa_accum_offset 168
  .amdhsa_group_segment_fixed_size 0
  .amdhsa_kernarg_size 88
  .amdhsa_user_sgpr_count 2
  .amdhsa_user_sgpr_kernarg_segment_ptr 1
  .amdhsa_system_sgpr_workgroup_id_x 1
.end_amdhsa_kernel
"""
    return head + e.text() + kd

if __name__ == "__main__":
    args = [a for a in sys.argv[1:] if not a.startswith("-")]
    OPT.update(a[1:] for a in sys.argv[1:] if a.startswith("-"))
    if "stamps" in OPT: STAMPS = True
    for o in OPT:
        if o.startswith("moff"): MOFF = float(o[4:])
        if o.startswith("bd"): BDEPTH = int(o[2:])
        if o.startswith("op"): OPRIO = int(o[2:])
        if o.startswith("hm"): HM = int(o[2:])
        if o == "spref": LOF, LOS, SWITCH = 0, 1, 0
        if o == "osc1": OSC = " sc1"
        if o == "ont": OSC = " nt"
        if o.startswith("win"): WIN = int(o[3:])
        if o.startswith("sw"): SWITCH = int(o[2:])
    out = args[0] if args else f"cdna_kernels/{NAME}.s"
    open(out, "w").write(gen())
    print("wrote", out)
```

```python
import sys, math, struct

NAME = "concat_heads__grouped_kv_mqa__sliding_local_dilated__prompt"
def f32bits(x): return struct.unpack("<I", struct.pack("<f", x))[0]

class Em:
    def __init__(self): self.L = []; self.n = 0
    def __call__(self, s):
        if s.startswith("s_nop "):
            for _ in range(int(s.split()[1]) + 1): self.L.append("    s_nop 0")
            return
        if s.startswith("ds_add_u32") and "wideadd" not in OPT:
            self.L += ["    s_mov_b64 exec, 1", "    " + s, "    s_mov_b64 exec, -1"]
            return
        self.L.append("    " + s)
    def lab(self, s): self.L.append(s + ":")
    def uniq(self, p): self.n += 1; return f"L_{p}_{self.n}"
    def c(self, s): self.L.append("    ; " + s)
    def text(self): return "\n".join(self.L) + "\n"

def vr(b, n): return f"v[{b}:{b+n-1}]" if n > 1 else f"v{b}"
def sr(b, n): return f"s[{b}:{b+n-1}]" if n > 1 else f"s{b}"

sWG, sW = 2, 3
R_XA, R_WQ, R_WKV, R_WOA, R_XB, R_WB, R_WOB, R_OUT, R_WS, R_DBG = 32, 36, 40, 44, 48, 52, 56, 60, 64, 68
sRB, sCB, sTB, sHP, sSB, sKIND, sC0, sI = 72, 73, 74, 75, 76, 77, 78, 79
sT = 80
sO = 92
sPOLL, sEP, sSPIN, sIDX = 98, 99, 100, 101
SPIN_MAX = 60000
QW, KW, VW, OB, OA, FL = 0, 2 << 20, (2 << 20) + 65536, 4 << 20, 6 << 20, 8 << 20
EPOCH_W = (3 << 20)
F4 = FL + (512 << 10)
F1, F2, F3 = FL, FL + (64 << 10), FL + (256 << 10)
WS_BYTES = 16 << 20
K = 1024
LDS_BYTES = 160 * K
SLOT = 32 * K
WKV_L = 128 * K
WST_L = 144 * K
QI_L, NM_L = 146 * K, 154 * K
CNT = 158 * K
HCNT, ACNT, LAND, GCNT, MISC = CNT, CNT + 256, CNT + 512, CNT + 1536, CNT + 1792
RDY1 = MISC + 12
SOK = MISC + 32
WOK = MISC + 48
EPW, KVF, VERD, PRO, PRY = MISC, MISC + 4, MISC + 8, MISC + 64, MISC + 80
RW = [0, 34 * K, 108 * K]
RX = [24 * K, 58 * K, 132 * K]
OS_L, OS_POS, OS_PAIR = 72 * K, 9216, 2304
EX_L = 0
WOB_L = 34 * K
WOA_L = 0
CODE_KB = 27
BDEPTH = 4
OPRIO = 3
HM = 2
LOF, LOS = 1, 0
F3SLEEP = 24
SWITCH = 8
CSC = 0.25 * math.log2(math.e)
MOFF = 96.0
MF32 = "v_mfma_f32_32x32x16_bf16"
MF16 = "v_mfma_f32_16x16x32_bf16"
STAMPS = False
OPT = set()
ST = 12 << 20
SC = " sc1"
OSC = ""
WIN = 12

def stamp(e, k):
    if not STAMPS: return
    e("s_memrealtime s[30:31]"); e("s_waitcnt lgkmcnt(0)"); e(f"s_mov_b32 s{8+k}, s30")
def cstamp(e, k):
    if not STAMPS: return
    e("s_memtime s[30:31]"); e("s_waitcnt lgkmcnt(0)"); e(f"s_mov_b32 s{8+k}, s30")
def stamp_init(e):
    if not STAMPS: return
    for k in range(1, 22): e(f"s_mov_b32 s{8+k}, 0")
    e("s_mov_b32 s8, s6"); e("s_mov_b32 s20, s4")
def stamp_out(e):
    if not STAMPS: return
    stamp(e, 15); cstamp(e, 14)
    e(f"s_mul_i32 s30, s{sWG}, 12"); e(f"s_add_u32 s30, s30, s{sW}"); e("s_lshl_b32 s30, s30, 7"); e(f"s_add_u32 s30, s30, {ST}")
    e("s_mov_b64 exec, 1"); e("v_mov_b32 v0, 0")
    for k in range(22): e(f"v_mov_b32 v{4+k}, s{8+k}")
    for k in range(6): e(f"buffer_store_dwordx4 {vr(4+4*k,4)}, v0, {sr(R_WS,4)}, s30 offen offset:{16*k}")
    if "dbg" in OPT:
        sk = e.uniq("nodbg")
        e(f"s_cmp_lg_u32 s{sI}, 0"); e(f"s_cbranch_scc1 {sk}")
        e(f"s_lshr_b32 s30, s{sW}, 2"); e("s_mul_i32 s30, s30, 20")
        e("v_not_b32 v30, v4")
        e(f"buffer_atomic_umax v30, v0, {sr(R_DBG,4)}, 0 offen offset:60")
        for n, k in enumerate((0, 1, 2, 3, 15)):
            e(f"buffer_atomic_umax v{4+k}, v0, {sr(R_DBG,4)}, s30 offen offset:{4*n}")
        e.lab(sk)

def setup(e, endlab):
    e(f"s_cmp_ge_u32 s{sWG}, 256")
    e(f"s_cbranch_scc1 {endlab}")
    e("s_load_dwordx16 s[8:23], s[0:1], 0")
    e("s_load_dwordx4 s[24:27], s[0:1], 64")
    e("s_load_dwordx2 s[28:29], s[0:1], 80")
    if STAMPS: e("s_memrealtime s[6:7]"); e("s_memtime s[4:5]")
    e("v_lshrrev_b32 v1, 6, v0")
    e("v_and_b32 v0, 63, v0")
    e(f"s_and_b32 s{sO}, s{sWG}, 7")
    e(f"v_readfirstlane_b32 s{sW}, v1")
    e(f"s_lshr_b32 s{sO+1}, s{sWG}, 3")
    e(f"s_lshl_b32 s{sIDX}, s{sO}, 5")
    e(f"s_add_u32 s{sIDX}, s{sIDX}, s{sO+1}")
    e(f"s_lshr_b32 s{sRB}, s{sIDX}, 3")
    e(f"s_and_b32 s{sCB}, s{sIDX}, 7")
    e(f"s_lshr_b32 s{sTB}, s{sIDX}, 4")
    e(f"s_and_b32 s{sHP}, s{sIDX}, 15")
    e(f"s_lshr_b32 s{sSB}, s{sCB}, 1")
    e(f"s_and_b32 s{sKIND}, s{sCB}, 1")
    e(f"s_and_b32 s{sI}, s{sW}, 3")
    e(f"s_add_u32 s{sC0}, s{sRB}, s{sI}")
    e(f"s_and_b32 s{sC0}, s{sC0}, 3")
    e(f"s_mov_b32 s{sSPIN}, 0")
    e("s_waitcnt lgkmcnt(0)")
    def srd(R, p, nbytes):
        e(f"s_mov_b32 s{R}, s{p}"); e(f"s_mov_b32 s{R+1}, s{p+1}")
        e(f"s_mov_b32 s{R+2}, {hex(nbytes)}"); e(f"s_mov_b32 s{R+3}, 0x20000")
    srd(R_XA, 8, 2 << 20)
    e(f"s_cmp_eq_u32 s{sKIND}, 0")
    e(f"s_cselect_b32 s{R_WKV}, s12, s14")
    e(f"s_cselect_b32 s{R_WKV+1}, s13, s15")
    e(f"s_mov_b32 s{R_WKV+2}, 0x4000"); e(f"s_mov_b32 s{R_WKV+3}, 0x20000")
    srd(R_WQ, 10, 512 << 10)
    srd(R_WOA, 16, 512 << 10); srd(R_XB, 18, 2 << 20); srd(R_WB, 20, 1536 << 10); srd(R_WOB, 22, 512 << 10)
    srd(R_OUT, 24, 4 << 20); srd(R_DBG, 26, 256); srd(R_WS, 28, WS_BYTES)
    stamp_init(e)

def dma(e, voff, R, soff, nt=False):
    if "ntall" in OPT: nt = True
    e(f"buffer_load_dwordx4 v{voff}, {sr(R,4)}, s{soff} offen{' nt' if nt and 'nont' not in OPT else ''} lds")

def spin_tail(e, l, sleep):
    e(f"s_sleep {sleep}")
    e(f"s_add_u32 s{sSPIN}, s{sSPIN}, 1")
    e(f"s_cmp_lt_u32 s{sSPIN}, {SPIN_MAX}")
    e(f"s_cbranch_scc1 {l}")

def lds_wait(e, vaddr, vtmp, target, sleep=1, off=0):
    l = e.uniq("poll"); d = e.uniq("pdone")
    e.lab(l)
    e(f"ds_read_b32 v{vtmp}, v{vaddr}" + (f" offset:{off}" if off else ""))
    e("s_waitcnt lgkmcnt(0)")
    e(f"v_readfirstlane_b32 s{sPOLL}, v{vtmp}")
    e(f"s_cmp_ge_u32 s{sPOLL}, {target}")
    e(f"s_cbranch_scc1 {d}")
    spin_tail(e, l, sleep)
    e.lab(d)

def load_epoch(e):
    e(f"s_mov_b32 s{sEP}, {EPOCH_W}")
    e(f"s_load_dword s{sEP}, s[{R_WS}:{R_WS+1}], s{sEP}")

def get_epoch(e):
    e("s_waitcnt lgkmcnt(0)")
    e(f"s_add_u32 s{sEP}, s{sEP}, 1")

def gpoll(e, vaddr, vtmp, lo, hi, sleep=1):
    l = e.uniq("gp"); d = e.uniq("gd")
    e(f"s_mov_b32 exec_lo, {hex(lo)}"); e(f"s_mov_b32 exec_hi, {hex(hi)}")
    e.lab(l)
    e(f"buffer_load_dword v{vtmp}, v{vaddr}, {sr(R_WS,4)}, 0 offen sc1")
    e("s_waitcnt vmcnt(0)")
    e(f"v_cmp_ne_u32 vcc, s{sEP}, v{vtmp}")
    e("s_and_b64 exec, exec, vcc")
    e(f"s_cbranch_execz {d}")
    spin_tail(e, l, sleep)
    e.lab(d)
    e("s_mov_b64 exec, -1")

def set_flag(e, soff, va, vd):
    e(f"v_mov_b32 v{va}, 0")
    e(f"v_mov_b32 v{vd}, s{sEP}")
    e("s_mov_b64 exec, 1")
    e(f"buffer_store_dword v{vd}, v{va}, {sr(R_WS,4)}, s{soff} offen sc1")
    e("s_mov_b64 exec, -1")

def xa_voffs(e, b, t):
    e(f"v_lshrrev_b32 v{t}, 4, v0")
    e(f"v_and_b32 v{b}, 15, v0")
    e(f"v_xor_b32 v{b}, v{b}, v{t}")
    e(f"v_lshlrev_b32 v{b}, 4, v{b}")
    e(f"v_lshl_add_u32 v{b}, v{t}, 10, v{b}")
    for z in range(1, 4): e(f"v_xor_b32 v{b+z}, {z<<6}, v{b}")

vHC, vH1, vHT = 5, 6, 7
def h_start(e):
    e.c("---- H: S0 loads")
    xa_voffs(e, 8, 12)
    e("v_lshlrev_b32 v12, 4, v0")
    e(f"s_lshl_b32 s{sO+1}, s{sRB}, 2"); e(f"s_add_u32 s{sO+1}, s{sO+1}, s{sSB}"); e(f"s_lshl_b32 s{sO+1}, s{sO+1}, 14")
    e(f"s_lshl_b32 s{sO+2}, s{sC0}, 8"); e(f"s_add_u32 s{sO+1}, s{sO+1}, s{sO+2}")
    e(f"s_lshl_b32 s{sT}, s{sI}, 15"); e(f"s_lshl_b32 s{sO+2}, s{sSB}, 12"); e(f"s_add_u32 s{sT}, s{sT}, s{sO+2}")
    e(f"s_lshl_b32 s{sT+1}, s{sI}, 12"); e(f"s_add_u32 s{sT+1}, s{sT+1}, {WKV_L}")
    e(f"s_lshl_b32 s{sO+3}, s{sC0}, 12")
    for z in range(4):
        e(f"s_add_u32 m0, s{sT}, {z*1024}")
        e(f"s_add_u32 s{sO}, s{sO+1}, {z*4096}")
        dma(e, 8 + z, R_XA, sO, nt=True)
        e(f"s_add_u32 m0, s{sT+1}, {z*1024}")
        e(f"s_add_u32 s{sO}, s{sO+3}, {z*1024}")
        dma(e, 12, R_WKV, sO)
    e(f"v_lshlrev_b32 v{vHC}, 2, v0")
    e(f"v_add_u32 v{vHC}, {CNT}, v{vHC}")
    e(f"v_mov_b32 v{vH1}, 0")
    e(f"s_lshl_b32 s{sO}, s{sI}, 9")
    e(f"v_add_u32 v{vHT}, s{sO}, v{vHC}")
    e(f"ds_write2st64_b32 v{vHT}, v{vH1}, v{vH1} offset0:0 offset1:1")
    e(f"v_mov_b32 v{vH1}, 1")
    e("s_waitcnt lgkmcnt(0)")
    load_epoch(e)
    e("s_barrier")

def kv_job(e):
    fx, fw, acc = 32, 48, 24
    e.c("---- KV partial")
    e("v_and_b32 v2, 15, v0")
    e("v_lshrrev_b32 v3, 4, v0")
    e("v_xor_b32 v4, v2, v3")
    e("v_lshlrev_b32 v4, 4, v4")
    e("v_lshl_add_u32 v4, v2, 8, v4")
    e(f"v_add_u32 v8, s{sT}, v4")
    for q in range(1, 4): e(f"v_xor_b32 v{8+q}, {q<<6}, v8")
    e("v_bfe_u32 v4, v0, 2, 2")
    e("v_lshl_add_u32 v4, v3, 3, v4")
    e("v_lshlrev_b32 v4, 5, v4")
    e("v_and_b32 v13, 3, v0")
    e("v_lshl_add_u32 v4, v13, 3, v4")
    e(f"v_add_u32 v13, s{sT+1}, v4")
    e(f"v_add_u32 v14, s{sT+1}, v12")
    e(f"s_lshl_b32 s{sO}, s{sI}, 8")
    e(f"v_add_u32 v15, s{sO}, v{vHC}")
    e(f"s_lshl_b32 s{sO}, s{sRB}, 11")
    e(f"s_lshr_b32 s{sO+1}, s{sSB}, 1"); e(f"s_lshl_b32 s{sO+1}, s{sO+1}, 10")
    e(f"s_and_b32 s{sO+2}, s{sSB}, 1"); e(f"s_lshl_b32 s{sO+2}, s{sO+2}, 8")
    e(f"s_add_u32 s{sO+1}, s{sO+1}, s{sO+2}"); e(f"s_add_u32 s{sO+1}, s{sO+1}, {KW}")
    e(f"s_lshl_b32 s{sO+2}, s{sSB}, 9"); e(f"s_add_u32 s{sO+2}, s{sO+2}, {VW}")
    e(f"s_cmp_eq_u32 s{sKIND}, 0")
    e(f"s_cselect_b32 s{sO+1}, s{sO+1}, s{sO+2}")
    e(f"s_cselect_b32 s{sO+2}, 9, 8")
    e(f"s_add_u32 s{sO+4}, s{sO}, s{sO+1}")
    e("v_and_b32 v4, 1, v3")
    e(f"v_lshlrev_b32 v4, s{sO+2}, v4")
    e("v_lshl_add_u32 v20, v2, 4, v4")
    e(f"s_lshl_b32 s{sO+5}, s{sIDX}, 7"); e(f"s_add_u32 s{sO+5}, s{sO+5}, {F1}")
    e("s_waitcnt vmcnt(0)")
    get_epoch(e)
    stamp(e, 1)
    e(f"ds_add_u32 v15, v{vH1} offset:{LAND-CNT}")
    for q in range(4):
        e(f"ds_read_b128 {vr(fx+4*q,4)}, v{8+q}")
        e(f"ds_read_b64_tr_b16 {vr(fw+4*q,2)}, v13 offset:{q*1024}")
        e(f"ds_read_b64_tr_b16 {vr(fw+4*q+2,2)}, v13 offset:{q*1024+128}")
    lv, ld, l0, lx = e.uniq("kv_v"), e.uniq("kv_d"), e.uniq("kv_0"), e.uniq("kv_x")
    e(f"s_cmp_lg_u32 s{sKIND}, 0")
    e(f"s_cbranch_scc1 {lv}")
    for kind in range(2):
        for q in range(4):
            e(f"s_waitcnt lgkmcnt({9-3*q})")
            a, b = (fw, fx) if kind == 0 else (fx, fw)
            e(f"{MF16} {vr(acc,4)}, {vr(a+4*q,4)}, {vr(b+4*q,4)}, {'0' if q == 0 else vr(acc,4)}")
        if kind == 0:
            e(f"s_branch {ld}"); e.lab(lv)
    e.lab(ld)
    e(f"s_cmp_eq_u32 s{sI}, 0")
    e(f"s_cbranch_scc1 {l0}")
    e("s_nop 6")
    e(f"ds_write_b128 v14, {vr(acc,4)}")
    e(f"ds_add_u32 v{vHC}, v{vH1}")
    e(f"s_branch {lx}")
    e.lab(l0)
    lds_wait(e, vHC, vHT, 3, sleep=0)
    for k in range(1, 4): e(f"ds_read_b128 {vr(fx+4*k,4)}, v14 offset:{k*4096}")
    e(f"ds_add_u32 v{vHC}, v{vH1}")
    for k in range(1, 4):
        e(f"s_waitcnt lgkmcnt({4-k})")
        for r in range(4): e(f"v_add_f32 v{acc+r}, v{acc+r}, v{fx+4*k+r}")
    e(f"v_cvt_pk_bf16_f32 v28, v{acc}, v{acc+1}")
    e(f"v_cvt_pk_bf16_f32 v29, v{acc+2}, v{acc+3}")
    e("s_nop 1")
    e("v_permlane32_swap_b32 v28, v30")
    e("v_permlane32_swap_b32 v29, v31")
    e("s_mov_b32 exec_hi, 0")
    e("s_nop 0")
    e(f"buffer_store_dwordx4 v[28:31], v20, {sr(R_WS,4)}, s{sO+4} offen{SC}")
    e("s_mov_b64 exec, -1")
    stamp(e, 2)
    e("s_waitcnt vmcnt(0)")
    set_flag(e, sO+5, 2, 3)
    e("s_mov_b64 exec, 1")
    e(f"ds_write_b32 v{vHC}, v{vH1} offset:{KVF-CNT}")
    e("s_mov_b64 exec, -1")
    stamp(e, 3)
    e.lab(lx)

sBX, sBH, sBW, sKC, sBXL, sBHL, sBWL = sT, sT+1, sT+2, sT+3, sT+4, sT+5, sT+6
BA = 8
aq, ak, av, ahk, ahv, MC = 24, 40, 56, 72, 76, 80
MP = MC + 8
FR = 104
def b_prep(e):
    e.c("---- B prep")
    e("v_lshrrev_b32 v20, 3, v0")
    e("v_and_b32 v21, 7, v0")
    e("v_lshrrev_b32 v22, 1, v20")
    e("v_xor_b32 v23, v21, v22")
    e("v_lshlrev_b32 v23, 4, v23")
    e("v_lshl_add_u32 v1, v20, 10, v23")
    e("v_xor_b32 v2, 64, v1")
    e(f"s_lshl_b32 s{sO}, s{sI}, 5")
    e(f"v_xor_b32 v3, s{sO}, v1")
    e("v_and_b32 v22, 1, v22")
    e("v_lshlrev_b32 v22, 2, v22")
    e("v_xor_b32 v23, v21, v22")
    e("v_lshlrev_b32 v23, 4, v23")
    e("v_mul_u32_u24 v20, 3072, v20")
    e("v_add_u32 v4, v20, v23")
    e("v_xor_b32 v16, 32, v4")
    e(f"s_lshl_b32 s{sBX}, s{sRB}, 2"); e(f"s_add_u32 s{sBX}, s{sBX}, s{sI}"); e(f"s_lshl_b32 s{sBX}, s{sBX}, 14")
    e(f"s_lshl_b32 s{sBH}, s{sRB}, 16"); e(f"s_max_u32 s{sBH}, s{sBH}, 16384"); e(f"s_sub_u32 s{sBH}, s{sBH}, 16384")
    e(f"s_lshl_b32 s{sO}, s{sI}, 12"); e(f"s_add_u32 s{sBH}, s{sBH}, s{sO}")
    e(f"s_mul_i32 s{sBW}, s{sI}, {16*3072}")
    e(f"s_lshl_b32 s{sO}, s{sCB}, 7"); e(f"s_add_u32 s{sBW}, s{sBW}, s{sO}")
    e(f"s_lshl_b32 s{sKC}, s{sRB}, 1"); e(f"s_add_u32 s{sKC}, s{sKC}, s{sCB}")
    e(f"s_lshl_b32 s{sBWL}, s{sI}, 11")
    e(f"s_add_u32 s{sBXL}, s{sBWL}, 2048")
    e(f"s_lshl_b32 s{sBHL}, s{sI}, 9")
    e("v_and_b32 v20, 31, v0")
    e("v_lshrrev_b32 v21, 5, v0")
    e("v_bfe_u32 v22, v0, 1, 3")
    e("v_xor_b32 v22, v22, v21")
    e("v_lshlrev_b32 v22, 4, v22")
    e("v_lshl_add_u32 v22, v20, 7, v22")
    e(f"s_and_b32 s{sO}, s{sI}, 1"); e(f"s_lshl_b32 s{sO}, s{sO}, 12"); e(f"s_add_u32 s{sO}, s{sO}, {RX[0] + 2048}")
    e(f"v_add_u32 v{BA}, s{sO}, v22")
    for s in range(1, 4): e(f"v_xor_b32 v{BA+s}, {s<<5}, v{BA}")
    e("v_bfe_u32 v20, v0, 2, 2")
    e("v_and_b32 v23, 3, v0")
    e("v_and_b32 v17, 2, v20")
    e("v_or_b32 v18, v17, v21")
    e("v_bfe_u32 v19, v0, 4, 1")
    e(f"s_and_b32 s{sO}, s{sI}, 2")
    e(f"v_or_b32 v19, s{sO}, v19")
    e("v_xor_b32 v18, v18, v19")
    e("v_lshl_add_u32 v22, v21, 3, v20")
    e("v_lshlrev_b32 v22, 7, v22")
    e("v_lshl_add_u32 v22, v18, 5, v22")
    e(f"v_lshl_add_u32 v{BA+4}, v23, 3, v22")
    e("v_lshrrev_b32 v21, 4, v0")
    e("v_bfe_u32 v22, v0, 1, 3")
    e("v_xor_b32 v22, v22, v21")
    e("v_lshlrev_b32 v22, 4, v22")
    e("v_and_b32 v19, 15, v0")
    e("v_lshl_add_u32 v22, v19, 7, v22")
    e(f"v_add_u32 v{BA+5}, {RX[0]}, v22")
    e(f"v_xor_b32 v{BA+6}, 64, v{BA+5}")
    e("v_and_b32 v18, 1, v21")
    e("v_or_b32 v18, v17, v18")
    e(f"v_xor_b32 v18, s{sI}, v18")
    e("v_lshl_add_u32 v22, v21, 3, v20")
    e("v_lshlrev_b32 v22, 7, v22")
    e("v_lshl_add_u32 v22, v18, 5, v22")
    e(f"v_lshl_add_u32 v{BA+7}, v23, 3, v22")

def b_masks(e):
    e(f"v_mov_b32 v{MC}, {hex(f32bits(-1e30))}")
    for r in range(1, 24): e(f"v_mov_b32 v{MC+r}, v{MC}")
    def mask(r, shift):
        m = 0
        for l in range(64):
            n, h = l & 31, l >> 5
            d = n - ((r & 3) + 8 * (r >> 2) + 4 * h) + shift
            if 0 <= d <= 14 and d % 2 == 0: m |= 1 << l
        return m
    def setm(reg, m):
        if m == 0: return
        e(f"s_mov_b32 exec_lo, {hex(m & 0xffffffff)}"); e(f"s_mov_b32 exec_hi, {hex(m >> 32)}")
        e(f"v_mov_b32 v{reg}, 0")
    for r in range(16): setm(MC + r, mask(r, 0))
    sk = e.uniq("nomp")
    e(f"s_and_b32 s{sO}, s{sI}, 1")
    e(f"s_or_b32 s{sO}, s{sO}, s{sRB}")
    e(f"s_cbranch_scc0 {sk}")
    for r in range(8, 16): setm(MP + r, mask(r, 32))
    e.lab(sk)
    e("s_mov_b64 exec, -1")

def b_dma_groups(j):
    rw, rx = RW[j % 2], RX[j % 2]
    G = []
    class L(list):
        def __call__(self, x): self.append(x)
    def grp():
        g = L(); G.append(g); return g
    g = grp()
    g(f"s_add_u32 s{sO+1}, s{sKC}, {j}")
    g(f"s_and_b32 s{sO+1}, s{sO+1}, 7")
    g(f"s_lshl_b32 s{sO+2}, s{sO+1}, 7")
    g(f"s_mul_i32 s{sO+1}, s{sO+1}, {64*3072}")
    g(f"s_add_u32 s{sO+1}, s{sO+1}, s{sBW}")
    g(f"s_add_u32 s{sO+3}, s{sO+2}, s{sBX}")
    for u in range(2):
        g(f"s_add_u32 m0, s{sBXL}, {rx + u*1024}")
        g(f"s_add_u32 s{sO}, s{sO+3}, {u*8192}")
        dma(g, 1 + u, R_XB, sO, nt=True)
    for p in range(3):
        g = grp()
        for u in range(2):
            g(f"s_add_u32 m0, s{sBWL}, {rw + p*8192 + u*1024}")
            g(f"s_add_u32 s{sO}, s{sO+1}, {p*1024 + u*8*3072}")
            dma(g, 4 if u == 0 else 16, R_WB, sO)
    g = grp()
    g(f"s_add_u32 m0, s{sBHL}, {rx}")
    g(f"s_add_u32 s{sO}, s{sO+2}, s{sBH}")
    g("s_mov_b32 exec_hi, 0")
    dma(g, 3, R_XB, sO)
    g("s_mov_b64 exec, -1")
    return G
def b_dma(e, j):
    for g in b_dma_groups(j):
        for x in g: e(x)

def b_proj(e):
    for j in range(8):
        if j > 0:
            pass
        ro = (j % 2) * 34 * K
        younger = 9 if j == 0 else 0
        e(f"s_waitcnt vmcnt({younger})")
        e(f"ds_add_u32 v{vHC}, v{vH1}")
        lds_wait(e, vHC, vHT, 4 * (j + 2))
        if j in (0, 4): stamp(e, {0:16, 4:17}[j])
        G = b_dma_groups(j + 1) if 1 <= j <= 6 else []
        e(f"s_setprio {HM}")
        D = BDEPTH
        XB_, HX_, WB_ = FR, FR + 8, FR + 12
        NBUF = 12
        jobs = []
        def wreads(buf, areg, off):
            return [f"ds_read_b64_tr_b16 {vr(buf,2)}, v{areg} offset:{off}", f"ds_read_b64_tr_b16 {vr(buf+2,2)}, v{areg} offset:{off+512}"]
        for s in range(4):
            x = XB_ + 4 * (s & 1)
            for p, acc in enumerate((aq, ak, av)):
                w = WB_ + 4 * (len(jobs) % NBUF)
                rds = ([f"ds_read_b128 {vr(x,4)}, v{BA+s} offset:{ro}"] if p == 0 else []) + wreads(w, BA + 4, ro + p*8192 + s*2048)
                z = (j == 0 and s == 0)
                A_, B_ = (w, x) if p < 2 else (x, w)
                jobs.append((rds, f"{MF32} {vr(acc,16)}, {vr(A_,4)}, {vr(B_,4)}, {'0' if z else vr(acc,16)}"))
            s2, p = s >> 1, 1 + (s & 1)
            w = WB_ + 4 * (len(jobs) % NBUF)
            rds = ([f"ds_read_b128 {vr(HX_,4)}, v{BA+5+s2} offset:{ro}"] if p == 1 else []) + wreads(w, BA + 7, ro + p*8192 + s2*4096)
            z = (j == 0 and s2 == 0)
            acc = ahk if p == 1 else ahv
            A_, B_ = (w, HX_) if p == 1 else (HX_, w)
            jobs.append((rds, f"{MF16} {vr(acc,4)}, {vr(A_,4)}, {vr(B_,4)}, {'0' if z else vr(acc,4)}"))
        for n in range(min(D, len(jobs))):
            for r in jobs[n][0]: e(r)
        if G:
            for x in G.pop(0): e(x)
        for n in range(len(jobs)):
            out = sum(len(jobs[m][0]) for m in range(n + 1, min(n + D, len(jobs))))
            e(f"s_waitcnt lgkmcnt({out})")
            e(jobs[n][1])
            if n + D < len(jobs):
                for r in jobs[n + D][0]: e(r)
            if G:
                for x in G.pop(0): e(x)
            if n + D == len(jobs) - 1 and j < 7 and "early" in OPT:
                pass
        e("s_setprio 3")

def b_attn(e, after_sync):
    Qf, Kf, Vf, Kp, Vp, ONES = 104, 112, 120, 128, 136, 140
    e.c("---- local attention")
    e(f"s_mul_i32 s{sO}, s{sI}, 3072"); e(f"s_add_u32 s{sO}, s{sO}, {EX_L}")
    e(f"v_lshl_add_u32 v8, v0, 4, s{sO}")
    e("v_and_b32 v9, 15, v0")
    e("v_bfe_u32 v10, v0, 4, 1")
    e("v_lshlrev_b32 v10, 9, v10")
    e("v_lshl_add_u32 v10, v9, 4, v10")
    e("v_lshrrev_b32 v9, 5, v0")
    e("v_lshl_add_u32 v10, v9, 3, v10")
    e(f"s_and_b32 s{sO}, s{sI}, 2"); e(f"s_mul_i32 s{sO}, s{sO}, 3072"); e(f"s_add_u32 s{sO}, s{sO}, {EX_L}")
    e(f"s_and_b32 s{sO+1}, s{sI}, 1")
    e(f"s_lshl_b32 s{sO+2}, s{sO+1}, 10"); e(f"s_add_u32 s{sO+2}, s{sO+2}, s{sO}")
    e(f"v_add_u32 v11, s{sO+2}, v10")
    e(f"s_lshl_b32 s{sO+2}, s{sO+1}, 8"); e(f"s_add_u32 s{sO+2}, s{sO+2}, s{sO}")
    e(f"v_add_u32 v12, s{sO+2}, v10")
    for j in range(8): e(f"v_cvt_pk_bf16_f32 v{Kf+j}, v{ak+2*j}, v{ak+2*j+1}")
    for j in range(8): e(f"v_cvt_pk_bf16_f32 v{Vf+j}, v{av+2*j}, v{av+2*j+1}")
    for j in range(4): e(f"v_cvt_pk_bf16_f32 v{16+j}, v{ahk+2*j}, v{ahk+2*j+1}")
    e("ds_write_b64 v11, v[16:17] offset:256")
    e("ds_write_b64 v12, v[18:19] offset:2048")
    sk = e.uniq("noex")
    e(f"s_cmp_lg_u32 s{sO+1}, 0"); e(f"s_cbranch_scc1 {sk}")
    e(f"ds_write_b128 v8, {vr(Kf,4)} offset:3072")
    e(f"ds_write_b128 v8, {vr(Kf+4,4)} offset:{3072+1024}")
    e(f"ds_write_b128 v8, {vr(Vf+4,4)} offset:{3072+2048}")
    e.lab(sk)
    if "w1" in OPT: e("s_waitcnt lgkmcnt(0)")
    e(f"ds_add_u32 v{vHC}, v{vH1}")
    for j in range(8): e(f"v_cvt_pk_bf16_f32 v{Qf+j}, v{aq+2*j}, v{aq+2*j+1}")
    for r in range(4): e(f"v_mov_b32 v{ONES+r}, 0x3f803f80")
    lds_wait(e, vHC, vHT, 40)
    e(f"ds_read_b128 {vr(Kp,4)}, v8")
    e(f"ds_read_b128 {vr(Kp+4,4)}, v8 offset:1024")
    e(f"ds_read_b128 {vr(Vp,4)}, v8 offset:2048")
    after_sync()
    e(f"s_lshl_b32 s{sO+1}, s{sRB}, 1"); e(f"s_and_b32 s{sO+2}, s{sI}, 1"); e(f"s_add_u32 s{sO+1}, s{sO+1}, s{sO+2}"); e(f"s_lshl_b32 s{sO+1}, s{sO+1}, 15")
    e(f"s_lshl_b32 s{sO+2}, s{sCB}, 2"); e(f"s_and_b32 s{sO+3}, s{sI}, 2"); e(f"s_add_u32 s{sO+2}, s{sO+2}, s{sO+3}"); e(f"s_lshl_b32 s{sO+2}, s{sO+2}, 10")
    e(f"s_add_u32 s{sO+1}, s{sO+1}, s{sO+2}"); e(f"s_add_u32 s{sO+1}, s{sO+1}, {OB}")
    e("v_lshlrev_b32 v9, 4, v0")
    e(f"s_mov_b32 s{sO}, {hex(f32bits(CSC))}")
    e("s_waitcnt lgkmcnt(0)")
    Sc, Sp, Oa, La = 24, 40, 56, 144
    for hd in range(2):
        e(f"{MF32} {vr(Sc,16)}, {vr(Kf+4*hd,4)}, {vr(Qf+4*hd,4)}, {vr(MC,16)}")
        e(f"{MF32} {vr(Sp,16)}, {vr(Kp+4*hd,4)}, {vr(Qf+4*hd,4)}, {vr(MP,16)}")
        e("s_nop 10")
        regs = [Sc + r for r in range(16)] + [Sp + r for r in range(8, 16)]
        e(f"v_max3_f32 v10, v{regs[0]}, v{regs[1]}, v{regs[2]}")
        for k in range(3, 23, 2): e(f"v_max3_f32 v10, v10, v{regs[k]}, v{regs[k+1]}")
        e(f"v_max_f32 v10, v10, v{regs[23]}")
        e("v_mov_b32 v11, v10")
        e("s_nop 1")
        e("v_permlane32_swap_b32 v10, v11")
        e("s_nop 0")
        e("v_max_f32 v10, v10, v11")
        e(f"v_mul_f32 v10, s{sO}, v10")
        for r in regs: e(f"v_fma_f32 v{r}, v{r}, s{sO}, -v10")
        for r in regs: e(f"v_exp_f32 v{r}, v{r}")
        e("s_nop 0")
        for base in (Sc, Sc + 8, Sp + 8):
            for j in range(4): e(f"v_cvt_pk_bf16_f32 v{base+j}, v{base+2*j}, v{base+2*j+1}")
        e("s_nop 1")
        e(f"{MF32} {vr(Oa,16)}, {vr(Vf,4)}, {vr(Sc,4)}, 0")
        e(f"{MF32} {vr(La,16)}, {vr(ONES,4)}, {vr(Sc,4)}, 0")
        e(f"{MF32} {vr(Oa,16)}, {vr(Vf+4,4)}, {vr(Sc+8,4)}, {vr(Oa,16)}")
        e(f"{MF32} {vr(La,16)}, {vr(ONES,4)}, {vr(Sc+8,4)}, {vr(La,16)}")
        e(f"{MF32} {vr(Oa,16)}, {vr(Vp,4)}, {vr(Sp+8,4)}, {vr(Oa,16)}")
        e(f"{MF32} {vr(La,16)}, {vr(ONES,4)}, {vr(Sp+8,4)}, {vr(La,16)}")
        e("s_nop 11")
        e(f"v_rcp_f32 v10, v{La}")
        e("s_nop 0")
        for r in range(8): e(f"v_mul_f32 v{Oa+8*hd+r}, v10, v{Oa+8*hd+r}")
        o = 12 + 4 * hd
        for j in range(4): e(f"v_cvt_pk_bf16_f32 v{o+j}, v{Oa+8*hd+2*j}, v{Oa+8*hd+2*j+1}")
        e(f"buffer_store_dwordx4 {vr(o,4)}, v9, {sr(R_WS,4)}, s{sO+1} offen offset:{1024*hd}{SC}")

def wo_dma(e, R, base):
    e(f"s_lshl_b32 s{sO+1}, s{sI}, 17"); e(f"s_lshl_b32 s{sO+2}, s{sHP}, 6"); e(f"s_add_u32 s{sO+1}, s{sO+1}, s{sO+2}")
    e(f"s_lshl_b32 s{sO+2}, s{sI}, 13")
    for u in range(8):
        e(f"s_add_u32 m0, s{sO+2}, {base + u*1024}")
        e(f"s_add_u32 s{sO}, s{sO+1}, {u*16384}")
        dma(e, 20, R, sO)
def wob_dma_open(e):
    e("v_lshrrev_b32 v20, 2, v0")
    e("v_and_b32 v21, 3, v0")
    e("v_lshlrev_b32 v21, 4, v21")
    e("v_lshl_add_u32 v20, v20, 10, v21")
    wo_dma(e, R_WOB, WOB_L)

vL16, vWt, vSt, vFl, vPo, vOC = 8, 9, 10, 11, 1, 4
GACC, GO, GW = 12, 32, 148
sTK, sOut = sT, sT+1
def out_prep(e):
    e(f"v_lshlrev_b32 v{vL16}, 4, v0")
    e("v_lshrrev_b32 v30, 5, v0")
    e("v_bfe_u32 v31, v0, 2, 2")
    e("v_lshl_add_u32 v30, v30, 2, v31")
    e(f"v_lshlrev_b32 v{vWt}, 6, v30")
    e("v_and_b32 v30, 1, v0");        e(f"v_lshl_add_u32 v{vWt}, v30, 5, v{vWt}")
    e("v_bfe_u32 v30, v0, 1, 1");     e(f"v_lshl_add_u32 v{vWt}, v30, 3, v{vWt}")
    e("v_bfe_u32 v30, v0, 4, 1");     e(f"v_lshl_add_u32 v{vWt}, v30, 4, v{vWt}")
    e(f"v_and_b32 v{vSt}, 31, v0"); e(f"v_lshlrev_b32 v{vSt}, 11, v{vSt}")
    e("v_lshrrev_b32 v30, 5, v0"); e(f"v_lshl_add_u32 v{vSt}, v30, 5, v{vSt}")
    e(f"v_lshlrev_b32 v{vPo}, 9, v30")
    e("v_bfe_u32 v30, v0, 3, 2"); e(f"v_lshl_add_u32 v{vPo}, v30, 10, v{vPo}")
    e("v_and_b32 v30, 7, v0"); e(f"v_lshl_add_u32 v{vPo}, v30, 4, v{vPo}")
    e(f"v_and_b32 v{vOC}, 3, v0"); e(f"v_lshlrev_b32 v{vOC}, 2, v{vOC}"); e(f"v_add_u32 v{vOC}, {PRY}, v{vOC}")
    e(f"s_lshl_b32 s{sTK}, s{sTB}, 2"); e(f"s_add_u32 s{sTK}, s{sTK}, s{sI}")
    e(f"s_lshl_b32 s{sOut}, s{sTK}, 16"); e(f"s_lshl_b32 s{sO}, s{sHP}, 6"); e(f"s_add_u32 s{sOut}, s{sOut}, s{sO}")

def pry_wait(e, cnt, sleep=6):
    l, d = e.uniq("hp"), e.uniq("hpd")
    e.lab(l)
    e(f"ds_read_b32 v{vHT}, v{vOC}")
    e("s_waitcnt lgkmcnt(0)")
    e(f"v_cmp_ge_u32 vcc, {cnt}, v{vHT}")
    e(f"s_cbranch_vccz {d}")
    spin_tail(e, l, sleep)
    e.lab(d)

def pub(e, add):
    P = GO
    e(f"s_add_u32 s{sO+4}, s{sI}, {add}")
    e(f"s_mul_i32 s{sO}, s{sO+4}, {OS_POS}"); e(f"s_add_u32 s{sO}, s{sO}, {OS_L}")
    e(f"v_add_u32 v28, s{sO}, v{vL16}")
    e("v_and_b32 v29, 31, v0"); e(f"v_lshl_add_u32 v29, v29, 2, s{sO}")
    e(f"s_sub_u32 s{sO}, s{sO+4}, 1"); e(f"s_cmp_lt_u32 s{sO}, s{sCB}"); e(f"s_cselect_b32 s{sO}, s{sO}, s{sO+4}")
    e(f"s_cmp_eq_u32 s{sO+4}, 0"); e(f"s_cselect_b32 s{sO}, s{sCB}, s{sO}")
    e(f"s_lshl_b32 s{sO}, s{sO}, 12")
    e(f"s_lshr_b32 s{sO+1}, s{sIDX}, 2"); e(f"s_lshl_b32 s{sO+1}, s{sO+1}, 15"); e(f"s_add_u32 s{sO}, s{sO}, s{sO+1}")
    e(f"s_and_b32 s{sO+1}, s{sIDX}, 3"); e(f"s_lshl_b32 s{sO+1}, s{sO+1}, 7"); e(f"s_add_u32 s{sO}, s{sO}, s{sO+1}")
    e(f"s_add_u32 s{sO+3}, s{sO}, {OA}")
    e(f"s_lshl_b32 s{sO+5}, s{sIDX}, 3"); e(f"s_add_u32 s{sO+5}, s{sO+5}, s{sO+4}"); e(f"s_lshl_b32 s{sO+5}, s{sO+5}, 7"); e(f"s_add_u32 s{sO+5}, s{sO+5}, {F4}")
    pry_wait(e, f"s{sO+4}")
    e(f"ds_read2st64_b32 {vr(P+32,2)}, v29 offset0:8 offset1:17")
    e(f"ds_read2st64_b32 {vr(P+34,2)}, v29 offset0:26 offset1:35")
    for a in range(2):
        for s in range(4): e(f"ds_read_b128 {vr(P+8*s+4*a,4)}, v28 offset:{s*OS_PAIR + a*1024}")
    e("s_waitcnt lgkmcnt(8)")
    e(f"v_pk_add_f32 {vr(P+32,2)}, {vr(P+32,2)}, {vr(P+34,2)}")
    e(f"v_add_f32 v{P+32}, v{P+32}, v{P+33}")
    e(f"v_rcp_f32 v{P+32}, v{P+32}")
    for a in range(2):
        e(f"s_waitcnt lgkmcnt({4-4*a})")
        for k in range(2):
            a_, b_, c_, d_ = (vr(P + 8*s + 4*a + 2*k, 2) for s in range(4))
            e(f"v_pk_add_f32 {a_}, {a_}, {b_}")
            e(f"v_pk_add_f32 {c_}, {c_}, {d_}")
            e(f"v_pk_add_f32 {a_}, {a_}, {c_}")
            e(f"v_pk_mul_f32 {a_}, {a_}, {vr(P+32,2)} op_sel_hi:[1,0]")
    for k in range(4): e(f"v_cvt_pk_bf16_f32 v{164+k}, v{P+2*k}, v{P+2*k+1}")
    e(f"buffer_store_dwordx4 v[164:167], v{vPo}, {sr(R_WS,4)}, s{sO+3} offen{SC}")
    e("s_waitcnt vmcnt(0)")
    set_flag(e, sO+5, 2, 3)

def gemm(e, src, wl, s0, s1, paced=True):
    NB = 29
    n = s1 - s0
    oreg = lambda k: GO + 4 * (k % NB)
    e(f"s_lshl_b32 s{sO+2}, s{sTK}, 15"); e(f"s_add_u32 s{sO+2}, s{sO+2}, {src}")
    def ldo(k):
        s = s0 + k
        if k == 0 or s % 4 == 0: e(f"s_add_u32 s{sO}, s{sO+2}, {(s>>2)*4096}")
        e(f"buffer_load_dwordx4 {vr(oreg(k),4)}, v{vL16}, {sr(R_WS,4)}, s{sO} offen offset:{(s&3)*1024}{SC}")
    def rdw(k):
        b = GW + 4*(k & 3); s = s0 + k
        o = wl + s*1024
        assert o + 512 < 65536 + 2048
        if o + 512 > 65535:
            e(f"ds_read_b64_tr_b16 {vr(b,2)}, v31 offset:{o-4096}"); e(f"ds_read_b64_tr_b16 {vr(b+2,2)}, v31 offset:{o+512-4096}")
        else:
            e(f"ds_read_b64_tr_b16 {vr(b,2)}, v{vWt} offset:{o}"); e(f"ds_read_b64_tr_b16 {vr(b+2,2)}, v{vWt} offset:{o+512}")
    for k in range(min(NB, n)): ldo(k)
    e(f"v_add_u32 v31, 4096, v{vWt}")
    for k in range(3): rdw(k)
    if paced: e(f"s_setprio {HM}")
    for k in range(n):
        if k + 3 < n: rdw(k + 3)
        e(f"s_waitcnt vmcnt({min(NB-1, n-1-k)}) lgkmcnt({min(6, 2*(n-1-k))})")
        e(f"{MF32} {vr(GACC,16)}, {vr(GW+4*(k&3),4)}, {vr(oreg(k),4)}, {'0' if s0 + k == 0 else vr(GACC,16)}")
        if k + NB < n: ldo(k + NB)
    if paced: e("s_setprio 3")

def out_store(e, off):
    e("s_nop 11")
    for j in range(8): e(f"v_cvt_pk_bf16_f32 v{GW+j}, v{GACC+2*j}, v{GACC+2*j+1}")
    e(f"buffer_store_dwordx4 {vr(GW,4)}, v{vSt}, {sr(R_OUT,4)}, s{sOut} offen offset:{off}{OSC}")
    e(f"buffer_store_dwordx4 {vr(GW+4,4)}, v{vSt}, {sr(R_OUT,4)}, s{sOut} offen offset:{off+16}{OSC}")

def lane_id(e):
    e("v_mbcnt_lo_u32_b32 v0, -1, 0"); e("v_mbcnt_hi_u32_b32 v0, -1, v0")

def out_stage_b(e, hb):
    e.c("---- output stage B")
    out_prep(e)
    if "noB" not in OPT:
        e(f"s_lshr_b32 s{sO+2}, s{sTK}, 1"); e(f"s_lshl_b32 s{sO+2}, s{sO+2}, 12")
        e(f"s_and_b32 s{sO+3}, s{sI}, 1"); e(f"s_lshl_b32 s{sO+3}, s{sO+3}, 7")
        e(f"s_add_u32 s{sO+2}, s{sO+2}, s{sO+3}"); e(f"s_add_u32 s{sO+2}, s{sO+2}, {F3}")
        e(f"v_lshl_add_u32 v{vFl}, v0, 8, s{sO+2}")
    e("s_waitcnt vmcnt(0)")
    e(f"ds_add_u32 v{vHC}, v{vH1}")
    if "noB" not in OPT:
        gpoll(e, vFl, vHT, 0xffff, 0, sleep=F3SLEEP)
        stamp(e, 7)
        lds_wait(e, vHC, vHT, hb + 4)
        gemm(e, OB, WOB_L, 0, 32)
        out_store(e, 1024)
    stamp(e, 8)
    sk = e.uniq("nop7")
    e(f"s_cmp_lg_u32 s{sI}, 3"); e(f"s_cbranch_scc1 {sk}")
    pub(e, 4)
    e.lab(sk)

def out_stage_a(e, hb):
    e.c("---- output stage A")
    lane_id(e)
    out_prep(e)
    e(f"v_mov_b32 v{vHC}, {HCNT}")
    pub(e, 0)
    stamp(e, 5)
    e(f"s_lshl_b32 s{sO+2}, s{sTK}, 12"); e(f"s_add_u32 s{sO+2}, s{sO+2}, {F4}")
    e(f"v_lshl_add_u32 v{vFl}, v0, 7, s{sO+2}")
    lds_wait(e, vHC, vHT, hb + 4, sleep=8)
    pry_wait(e, 3)
    gpoll(e, vFl, vHT, 0x0f0f0f0f, 0, sleep=12)
    gemm(e, OA, WOA_L, 0, 12)
    stamp(e, 16)
    sk = e.uniq("nop7")
    e(f"s_cmp_eq_u32 s{sI}, 3"); e(f"s_cbranch_scc1 {sk}")
    pub(e, 4)
    e.lab(sk)
    stamp(e, 17)
    pry_wait(e, 6)
    gpoll(e, vFl, vHT, 0x70707070, 0, sleep=6)
    gemm(e, OA, WOA_L, 12, 24)
    stamp(e, 18)
    pry_wait(e, 7)
    gpoll(e, vFl, vHT, 0x80808080, 0, sleep=1)
    stamp(e, 19)
    gemm(e, OA, WOA_L, 24, 32, paced=False)
    out_store(e, 0)
    sk = e.uniq("noep")
    e(f"s_or_b32 s{sO}, s{sWG}, s{sI}"); e(f"s_cbranch_scc1 {sk}")
    e(f"s_mov_b32 s{sO}, {EPOCH_W}")
    set_flag(e, sO, 2, 3)
    e.lab(sk)

def h_qprep(e):
    T, QK, SA, SB = 20, 104, 120, 136
    e.c("---- H: Q prep")
    e(f"s_add_u32 s{sO+1}, s{sI}, 1"); e(f"s_cmp_lt_u32 s{sI}, s{sCB}"); e(f"s_cselect_b32 s{sO+1}, s{sI}, s{sO+1}")
    e(f"s_add_u32 s{sO}, s{sI}, 4"); e(f"s_add_u32 s{sO+2}, s{sI}, 5"); e(f"s_cmp_lt_u32 s{sO}, s{sCB}"); e(f"s_cselect_b32 s{sO+2}, s{sO}, s{sO+2}")
    e(f"s_min_u32 s{sO+2}, s{sO+2}, 7")
    e(f"v_and_b32 v{T+1}, 1, v0"); e(f"v_lshlrev_b32 v{T+1}, 8, v{T+1}")
    e(f"s_lshl_b32 s{sO}, s{sRB}, 12"); e(f"s_lshr_b32 s{sO+3}, s{sCB}, 2"); e(f"s_lshl_b32 s{sO+3}, s{sO+3}, 7")
    e(f"s_add_u32 s{sO}, s{sO}, s{sO+3}"); e(f"s_add_u32 s{sO}, s{sO}, {F2}")
    e(f"s_lshl_b32 s{sO+3}, s{sO+1}, 9"); e(f"s_add_u32 s{sO+3}, s{sO+3}, s{sO}")
    e(f"v_add_u32 v{T}, s{sO+3}, v{T+1}")
    e(f"s_lshl_b32 s{sO+3}, s{sO+2}, 9"); e(f"s_add_u32 s{sO+3}, s{sO+3}, s{sO}")
    e("s_mov_b64 exec, 0xc")
    e(f"v_add_u32 v{T}, s{sO+3}, v{T+1}")
    e(f"s_lshl_b32 s{sO+3}, s{sRB}, 10"); e(f"s_add_u32 s{sO+3}, s{sO+3}, {F1}")
    e("s_mov_b64 exec, 0x30")
    e(f"v_add_u32 v{T}, s{sO+3}, v{T+1}")
    e("s_mov_b64 exec, -1")
    e(f"v_lshlrev_b32 v{T+2}, 4, v0")
    e(f"s_lshl_b32 s{sO+3}, s{sIDX}, 13")
    e(f"s_lshl_b32 s{sO+1}, s{sO+1}, 10"); e(f"s_add_u32 s{sO+1}, s{sO+1}, s{sO+3}")
    e(f"s_lshl_b32 s{sO+2}, s{sO+2}, 10"); e(f"s_add_u32 s{sO+2}, s{sO+2}, s{sO+3}")
    e(f"s_lshl_b32 s{sO+4}, s{sRB}, 11"); e(f"s_add_u32 s{sO+4}, s{sO+4}, {KW}")
    e(f"s_lshl_b32 s{sO+5}, s{sI}, 12"); e(f"s_add_u32 s{sO+5}, s{sO+5}, {F1 + 16384}")
    e(f"v_lshl_add_u32 v{T+3}, v0, 7, s{sO+5}")
    lds_wait(e, vHC, vHT, 5, off=LAND - CNT + 768, sleep=2)
    gpoll(e, T + 3, T + 1, 0xffffffff, 0, sleep=2)
    e(f"s_lshl_b32 exec_lo, 1, s{sI}"); e("s_mov_b32 exec_hi, 0")
    e(f"ds_write_b32 v{vHC}, v{vH1} offset:{SOK-CNT}")
    e("s_mov_b64 exec, -1")
    lds_wait(e, vHC, vHT, 4, off=ACNT - CNT, sleep=2)
    gpoll(e, T, T + 1, 0x3f, 0, sleep=2)
    e(f"buffer_load_dwordx4 {vr(QK,4)}, v{T+2}, {sr(R_WS,4)}, s{sO+1} offen{SC}")
    e(f"buffer_load_dwordx4 {vr(QK+4,4)}, v{T+2}, {sr(R_WS,4)}, s{sO+2} offen{SC}")
    e(f"buffer_load_dwordx4 {vr(QK+8,4)}, v{T+2}, {sr(R_WS,4)}, s{sO+4} offen{SC}")
    e(f"s_lshl_b32 s{sO}, s{sI}, 10"); e(f"s_add_u32 s{sO}, s{sO}, {QI_L+1024}"); e(f"v_add_u32 v{T}, s{sO}, v{T+2}")
    e(f"v_and_b32 v{T+1}, 0x1ff, v{T+2}")
    e(f"s_lshl_b32 s{sO}, s{sI}, 9"); e(f"s_add_u32 s{sO}, s{sO}, {NM_L+512}"); e(f"v_add_u32 v{T+1}, s{sO}, v{T+1}")
    e("s_waitcnt vmcnt(0)")
    e(f"{MF32} {vr(SA,16)}, {vr(QK+8,4)}, {vr(QK,4)}, 0")
    e(f"{MF32} {vr(SB,16)}, {vr(QK+8,4)}, {vr(QK+4,4)}, 0")
    e(f"ds_write_b128 v{T}, {vr(QK,4)}")
    e("s_nop 9")
    negmax(e, SA, 152)
    for r in range(1, 4): e(f"v_mov_b32 v{152+r}, v152")
    e(f"ds_write_b128 v{T+1}, v[152:155]")
    e(f"s_cmp_eq_u32 s{sI}, 0"); e("s_cselect_b32 exec_lo, 1, 0"); e("s_mov_b32 exec_hi, 0")
    e(f"ds_write_b32 v{vHC}, v{vH1} offset:{RDY1-CNT}")
    e("s_mov_b64 exec, -1")
    sk = e.uniq("nop8")
    e(f"s_cmp_eq_u32 s{sI}, 3"); e(f"s_cbranch_scc1 {sk}")
    negmax(e, SB, 156)
    for r in range(1, 4): e(f"v_mov_b32 v{156+r}, v156")
    e(f"ds_write_b128 v{T}, {vr(QK+4,4)} offset:4096")
    e(f"ds_write_b128 v{T+1}, v[156:159] offset:2048")
    e.lab(sk)
    e(f"ds_add_u32 v{vHC}, v{vH1} offset:{ACNT-CNT}")
    stamp(e, 10)

def h_role(e):
    e("s_setprio 3")
    h_start(e)
    kv_job(e)
    b_prep(e)
    b_masks(e)
    h_qprep(e)
    if "xxpf" in OPT:
        e("v_lshlrev_b32 v20, 7, v0")
        e(f"s_and_b32 s{sO+1}, s{sIDX}, 31")
        e(f"s_lshl_b32 s{sO+1}, s{sO+1}, 2"); e(f"s_add_u32 s{sO+1}, s{sO+1}, s{sI}")
        e(f"s_mul_i32 s{sO+2}, s{sO+1}, 12288")
        e(f"s_add_u32 s{sO+3}, s{sO+2}, 8192")
        e(f"s_lshl_b32 s{sO+4}, s{sO+1}, 12")
        e(f"s_lshl_b32 s{sO+5}, s{sIDX}, 13"); e(f"s_lshl_b32 s{sO}, s{sI}, 11"); e(f"s_add_u32 s{sO+5}, s{sO+5}, s{sO}")
        lds_wait(e, vHC, vHT, 1, off=KVF - CNT)
        e(f"buffer_load_dword v21, v20, {sr(R_WB,4)}, s{sO+2} offen")
        e("s_mov_b32 exec_hi, 0")
        e(f"buffer_load_dword v22, v20, {sr(R_WB,4)}, s{sO+3} offen")
        e(f"buffer_load_dword v23, v20, {sr(R_WOB,4)}, s{sO+4} offen")
        e("s_mov_b32 exec_lo, 0xffff")
        e(f"buffer_load_dword v17, v20, {sr(R_XB,4)}, s{sO+5} offen")
        e("s_mov_b64 exec, -1")
    lds_wait(e, vHC, vHT, 8, off=GCNT - CNT, sleep=2)
    if "noH" in OPT:
        stamp_out(e); e("s_endpgm")
    if "noB" in OPT:
        wob_dma_open(e); wo_dma(e, R_WOA, WOA_L)
        out_stage_b(e, 4)
        stamp_out(e); e("s_endpgm")
        return
    for j in range(2): b_dma(e, j)
    stamp(e, 4)
    b_proj(e)
    stamp(e, 5)
    b_attn(e, lambda: wob_dma_open(e))
    e(f"s_lshl_b32 s{sO+5}, s{sIDX}, 2"); e(f"s_add_u32 s{sO+5}, s{sO+5}, s{sI}"); e(f"s_lshl_b32 s{sO+5}, s{sO+5}, 7"); e(f"s_add_u32 s{sO+5}, s{sO+5}, {F3}")
    e(f"ds_add_u32 v{vHC}, v{vH1}")
    e("s_waitcnt vmcnt(0)")
    set_flag(e, sO+5, 2, 3)
    lds_wait(e, vHC, vHT, 44)
    wo_dma(e, R_WOA, WOA_L)
    stamp(e, 6)
    out_stage_b(e, 44)
    stamp_out(e)
    e("s_endpgm")

def q_role(e):
    vXa, vWa, vXb, vWb, vSt, vLd = 8, 16, 17, 25, 26, 27
    acc, fr, NF = 104, 124, 5
    T = 28
    e.c("---- Q wave")
    load_epoch(e)
    lw = e.uniq("nowot")
    if "nocpf" not in OPT:
        e(f"s_getpc_b64 s[{sO+2}:{sO+3}]")
        e.lab("L_pc")
        e(f"s_lshr_b32 s{sO}, s{sWG}, 3"); e(f"s_lshl_b32 s{sO}, s{sO}, 2"); e(f"s_add_u32 s{sO}, s{sO}, s{sI}")
        e(f"s_and_b32 s{sO}, s{sO}, 63")
        e(f"s_lshl_b32 s{sO}, s{sO}, 10")
        e(f"s_sub_u32 s{sO+2}, s{sO+2}, L_pc-{NAME}_kernel"); e(f"s_subb_u32 s{sO+3}, s{sO+3}, 0")
        e(f"v_lshl_add_u32 v{T}, v0, 4, s{sO}")
        e(f"v_min_u32 v{T}, L_codeend-{NAME}_kernel-4, v{T}")
        e(f"global_load_dword v164, v{T}, s[{sO+2}:{sO+3}]")
    if "mpf" in OPT:
        l1, l2_, l3 = e.uniq("m1"), e.uniq("m2"), e.uniq("m3")
        e(f"v_lshlrev_b32 v{T+2}, 7, v0")
        e(f"s_cmp_lg_u32 s{sI}, 1"); e(f"s_cbranch_scc1 {l1}")
        e(f"s_lshl_b32 s{sO}, s{sIDX}, 13")
        e(f"buffer_load_dword v165, v{T+2}, {sr(R_XB,4)}, s{sO} offen")
        e.lab(l1)
        e(f"s_cmp_lg_u32 s{sI}, 2"); e(f"s_cbranch_scc1 {l2_}")
        e(f"s_mul_i32 s{sO}, s{sIDX}, 6144")
        e("s_mov_b32 exec_hi, 0xffff")
        e(f"buffer_load_dword v165, v{T+2}, {sr(R_WB,4)}, s{sO} offen")
        e(f"s_lshl_b32 s{sO}, s{sIDX}, 11")
        e("s_mov_b32 exec_hi, 0"); e("s_mov_b32 exec_lo, 0xffff")
        e(f"buffer_load_dword v166, v{T+2}, {sr(R_WOB,4)}, s{sO} offen")
        e("s_mov_b64 exec, -1")
        e.lab(l2_)
    e("s_barrier")
    att_pre(e)
    a_, b_, c_, d_ = T, T+1, T+2, T+3
    e(f"s_and_b32 s{sO}, s{sI}, 1"); e(f"s_lshl_b32 s{sO}, s{sO}, 13")
    e(f"v_and_b32 v{a_}, 31, v0"); e(f"v_lshrrev_b32 v{b_}, 5, v0"); e(f"v_and_b32 v{c_}, 15, v0")
    e(f"v_xor_b32 v{c_}, v{c_}, v{b_}")
    e(f"v_lshl_add_u32 v{d_}, v{a_}, 8, s{sO}")
    e(f"v_lshl_add_u32 v{vXa}, v{c_}, 4, v{d_}")
    for s in range(1, 8): e(f"v_xor_b32 v{vXa+s}, {s<<5}, v{vXa}")
    e(f"v_bfe_u32 v{a_}, v0, 2, 2")
    e(f"v_lshl_add_u32 v{c_}, v{b_}, 3, v{a_}"); e(f"v_lshlrev_b32 v{c_}, 7, v{c_}")
    e(f"v_lshrrev_b32 v{a_}, 1, v{a_}")
    e(f"s_lshr_b32 s{sO}, s{sI}, 1")
    e(f"v_xor_b32 v{a_}, s{sO}, v{a_}")
    e(f"v_lshl_add_u32 v{c_}, v{a_}, 6, v{c_}")
    e(f"v_bfe_u32 v{a_}, v0, 4, 1"); e(f"v_lshl_add_u32 v{c_}, v{a_}, 5, v{c_}")
    e(f"v_and_b32 v{a_}, 3, v0"); e(f"v_lshl_add_u32 v{c_}, v{a_}, 3, v{c_}")
    e(f"v_add_u32 v{vWa}, 16384, v{c_}")
    e(f"v_lshlrev_b32 v{vLd}, 8, v{a_}"); e(f"v_add_u32 v{vLd}, {LAND}, v{vLd}")
    e(f"v_bfe_u32 v{a_}, v0, 3, 2"); e(f"v_lshlrev_b32 v{a_}, 13, v{a_}"); e(f"v_lshl_add_u32 v{a_}, v{b_}, 9, v{a_}")
    e(f"v_and_b32 v{c_}, 7, v0"); e(f"v_lshl_add_u32 v{vSt}, v{c_}, 4, v{a_}")
    for s in range(9): e(f"v_add_u32 v{vXb+s}, 65536, v{vXa+s}")
    get_epoch(e)
    e(f"s_mov_b32 s{sT+6}, {hex(f32bits(CSC))}")
    e(f"s_and_b32 s{sO+1}, s{sI}, 1"); e(f"s_lshl_b32 s{sO+2}, s{sRB}, 1"); e(f"s_add_u32 s{sO+1}, s{sO+1}, s{sO+2}"); e(f"s_lshl_b32 s{sO+1}, s{sO+1}, 15")
    e(f"s_lshl_b32 s{sO+2}, s{sCB}, 10"); e(f"s_add_u32 s{sO+1}, s{sO+1}, s{sO+2}")
    e(f"s_lshr_b32 s{sO+2}, s{sI}, 1"); e(f"s_lshl_b32 s{sO+2}, s{sO+2}, 8"); e(f"s_add_u32 s{sT+7}, s{sO+1}, s{sO+2}")
    e(f"s_add_u32 s{sO+2}, s{sO+2}, {QI_L}")
    e(f"v_and_b32 v{b_}, 0x3ff, v{vSt}"); e(f"v_add_u32 v{b_}, s{sO+2}, v{b_}")
    e(f"s_lshl_b32 s{sT+10}, s{sIDX}, 2"); e(f"s_add_u32 s{sT+10}, s{sT+10}, s{sI}"); e(f"s_lshl_b32 s{sT+10}, s{sT+10}, 7"); e(f"s_add_u32 s{sT+10}, s{sT+10}, {F2}")
    e(f"s_and_b32 s{sO}, s{sCB}, 3"); e(f"s_lshl_b32 s{sO}, s{sO}, 3"); e(f"s_lshl_b32 s{sT+11}, 0xff, s{sO}")
    e(f"s_lshr_b32 s{sO}, s{sCB}, 2"); e(f"s_and_b32 s{sO+1}, s{sI}, 1")
    e(f"s_cmp_eq_u32 s{sO}, s{sO+1}"); e(f"s_cselect_b32 s{sT+11}, s{sT+11}, 0")
    e(f"s_lshl_b32 s{sO}, s{sI}, 2"); e(f"s_add_u32 s{sO}, s{sO}, {SOK}"); e(f"v_mov_b32 v{c_}, s{sO}")
    gather_bases(e)
    def landwait(mask):
        lq = e.uniq("ql")
        e.lab(lq)
        e(f"ds_read_b32 v{a_}, v{vLd}")
        e("s_waitcnt lgkmcnt(0)")
        e(f"v_cmp_gt_u32 vcc, 5, v{a_}")
        e(f"s_and_b32 s{sO+5}, vcc_lo, 15")
        e(f"s_and_b32 s{sO+4}, s{sO+5}, {mask}")
        e(f"s_cbranch_scc0 {lq}_d")
        spin_tail(e, lq, 1)
        e.lab(lq + "_d")
    def rd(n):
        sg, s = n >> 3, n & 7
        so = (sg & 1) * SLOT
        xa, wa = (vXa + s, vWa) if sg < 2 else (vXb + s, vWb)
        f = fr + 8 * (n % NF)
        e(f"ds_read_b128 {vr(f,4)}, v{xa} offset:{so}")
        e(f"ds_read_b64_tr_b16 {vr(f+4,2)}, v{wa} offset:{so+s*2048}")
        e(f"ds_read_b64_tr_b16 {vr(f+6,2)}, v{wa} offset:{so+s*2048+512}")
    e("s_setprio 3")
    landwait(1)
    stamp(e, 16)
    for n in range(NF): rd(n)
    for n in range(32):
        f = fr + 8 * (n % NF)
        e(f"s_waitcnt lgkmcnt({min(3*(NF-1), 3*(31-n))})")
        e(f"{MF32} {vr(acc,16)}, {vr(f+4,4)}, {vr(f,4)}, {'0' if n == 0 else vr(acc,16)}")
        if n + NF < 32:
            if (n + NF) % 8 == 0:
                bit = 1 << ((n + NF) >> 3)
                sk = e.uniq("lok")
                e(f"s_and_b32 s{sO+4}, s{sO+5}, {bit}"); e(f"s_cbranch_scc0 {sk}")
                landwait(bit)
                e.lab(sk)
            rd(n + NF)
    e(f"ds_read_b32 v{a_}, v{c_}")
    e("s_nop 10")
    for r in range(16): e(f"v_mul_f32 v{acc+r}, s{sT+6}, v{acc+r}")
    P = AO
    for j in range(8): e(f"v_cvt_pk_bf16_f32 v{P+j}, v{acc+2*j}, v{acc+2*j+1}")
    e(f"s_mov_b32 exec_lo, s{sT+11}"); e(f"s_mov_b32 exec_hi, s{sT+11}")
    e(f"ds_write_b128 v{b_}, {vr(P,4)}")
    e(f"ds_write_b128 v{b_}, {vr(P+4,4)} offset:128")
    e("s_mov_b64 exec, -1")
    e(f"ds_add_u32 v{S1+2}, v{S1+3} offset:{ACNT-CNT}")
    e(f"buffer_store_dwordx4 {vr(P,4)}, v{vSt}, {sr(R_WS,4)}, s{sT+7} offen{SC}")
    e(f"buffer_store_dwordx4 {vr(P+4,4)}, v{vSt}, {sr(R_WS,4)}, s{sT+7} offen offset:128{SC}")
    stamp(e, 2)
    att_role(e)

def aux_role(e):
    e.c("---- aux wave")
    load_epoch(e)
    xa_voffs(e, 8, 12)
    e(f"s_lshl_b32 s{sO}, s{sI}, 6"); e(f"v_xor_b32 v8, s{sO}, v8")
    e("v_lshrrev_b32 v2, 3, v0")
    e("v_bfe_u32 v3, v0, 4, 1"); e("v_lshlrev_b32 v3, 2, v3")
    e("v_and_b32 v4, 7, v0"); e("v_xor_b32 v4, v4, v3"); e("v_lshlrev_b32 v4, 4, v4")
    e("v_lshl_add_u32 v12, v2, 10, v4")
    e(f"s_lshl_b32 s{sT}, s{sI}, 12")
    e(f"s_lshl_b32 s{sT+1}, s{sI}, 15"); e(f"s_lshl_b32 s{sO}, s{sCB}, 7"); e(f"s_add_u32 s{sT+1}, s{sT+1}, s{sO}")
    e(f"s_lshl_b32 s{sT+2}, s{sRB}, 16"); e(f"s_add_u32 s{sT+2}, s{sT+2}, s{sT}")
    e(f"s_lshl_b32 s{sT+9}, s{sI}, 10")
    for du in range(1, 4):
        e(f"s_add_u32 s{sO}, s{sSB}, {du}"); e(f"s_and_b32 s{sO}, s{sO}, 3")
        e(f"s_lshl_b32 s{sT+2+du}, s{sO}, 14"); e(f"s_add_u32 s{sT+2+du}, s{sT+2+du}, s{sT+2}")
        e(f"s_lshl_b32 s{sT+5+du}, s{sO}, 12"); e(f"s_add_u32 s{sT+5+du}, s{sT+5+du}, s{sT+9}")
    e("s_barrier")
    for sg in range(4):
        e(f"s_add_u32 s{sO+1}, s{sRB}, {sg}"); e(f"s_and_b32 s{sO+1}, s{sO+1}, 3")
        e(f"s_lshl_b32 s{sO+2}, s{sO+1}, 8")
        e(f"s_lshl_b32 s{sO+1}, s{sO+1}, 17"); e(f"s_add_u32 s{sO+1}, s{sO+1}, s{sT+1}")
        for i in range(4):
            e(f"s_add_u32 m0, s{sT}, {sg*SLOT + 16384 + i*1024}")
            e(f"s_add_u32 s{sO}, s{sO+1}, {i*8192}")
            dma(e, 12, R_WQ, sO)
        for du in range(1, 4):
            e(f"s_add_u32 m0, s{sT+5+du}, {sg*SLOT}")
            e(f"s_add_u32 s{sO}, s{sT+2+du}, s{sO+2}")
            dma(e, 8, R_XA, sO, nt=True)
    stamp(e, 1)
    e(f"v_lshlrev_b32 v{AO+4}, 2, v0"); e(f"v_add_u32 v{AO+4}, {CNT}, v{AO+4}")
    e(f"v_mov_b32 v{AO+6}, 1")
    for sg in range(4):
        e(f"s_waitcnt vmcnt({21-7*sg})")
        e(f"ds_add_u32 v{AO+4}, v{AO+6} offset:{LAND-CNT+256*sg}")
    stamp(e, 2)
    att_pre(e)
    e(f"s_lshl_b32 s{sO}, s{sAW}, 12"); e(f"s_add_u32 s{sO}, s{sO}, {F1}")
    e(f"v_and_b32 v{S0}, 31, v0"); e(f"v_lshl_add_u32 v{S1+1}, v{S0}, 7, s{sO}")
    e(f"s_lshl_b32 s{sO}, s{sRB}, 10"); e(f"s_add_u32 s{sO}, s{sO}, {F1}")
    e("s_mov_b32 exec_lo, 0")
    e(f"v_lshl_add_u32 v{S1+1}, v{S0}, 8, s{sO}")
    e("s_mov_b64 exec, -1")
    gather_bases(e)
    e(f"s_lshl_b32 s{sO+4}, s{sRB}, 11"); e(f"s_add_u32 s{sO+4}, s{sO+4}, {KW}")
    get_epoch(e)

vT0, vQ16, vAN, vT1, AQ, AK, AV, S0, S1, AO, ANM = 0, 1, 2, 3, 4, 8, 40, 104, 120, 136, 152
sAW, sP, sDl, sSl, sPRa, sPRp = sT+8, sT+9, sT+2, sT+3, sT+4, sT+5
def att_pre(e):
    e.c("---- attention pre")
    e(f"s_sub_u32 s{sAW}, s{sW}, 4")
    e(f"v_and_b32 v{S0}, 31, v0")
    e(f"v_cmp_eq_u32 vcc, 16, v{S0}")
    e(f"v_mov_b32 v{S0+1}, 0x3f803f80")
    e(f"v_lshlrev_b32 v{vQ16}, 4, v0")
    e(f"v_cndmask_b32 v{AV}, 0, v{S0+1}, vcc")
    for r in range(1, 64): e(f"v_mov_b32 v{AV+r}, v{AV}")
    e(f"v_lshlrev_b32 v{vAN}, 4, v{S0}")
    e(f"v_add_u32 v{vAN}, {NM_L}, v{vAN}")
    e(f"v_lshrrev_b32 v{S1}, 5, v0"); e(f"v_lshlrev_b32 v{S1}, 8, v{S1}")
    e(f"v_and_b32 v{S0+2}, 15, v0"); e(f"v_lshl_add_u32 v{S1}, v{S0+2}, 4, v{S1}")
    e(f"v_lshlrev_b32 v{S1+2}, 2, v0"); e(f"v_add_u32 v{S1+2}, {CNT}, v{S1+2}")
    e(f"v_mov_b32 v{S1+3}, 1")
    e(f"s_mul_i32 s{sSl}, s{sI}, {OS_PAIR}"); e(f"s_add_u32 s{sSl}, s{sSl}, {OS_L}")
    e(f"s_sub_u32 s{sDl}, s{sSl}, {QI_L + 1024}")
    e(f"s_lshl_b32 s{sPRp}, s{sI}, 2"); e(f"s_add_u32 s{sPRp}, s{sPRp}, {PRO}")
    e(f"s_lshl_b32 s{sPRa}, s{sAW}, 2"); e(f"s_add_u32 s{sPRa}, s{sPRa}, {PRO}")

def gather(e, t0, t1):
    for t in range(t0, t1):
        e(f"buffer_load_dwordx4 {vr(AK+4*t,4)}, v{vQ16}, {sr(R_WS,4)}, s{sO+2*(t>>2)} offen offset:{(t&3)*1024}{SC}")
        e("s_mov_b32 exec_lo, 0xffff"); e("s_mov_b32 exec_hi, 0xffff")
        for j in range(2):
            f = 2 * t + j
            e(f"buffer_load_dwordx4 {vr(AV+4*f,4)}, v{S1}, {sr(R_WS,4)}, s{sO+1+2*(t>>2)} offen offset:{(f&7)*512}{SC}")
        e("s_mov_b64 exec, -1")
def gather_bases(e):
    e(f"s_lshl_b32 s{sO+2}, s{sAW}, 13")
    e(f"s_add_u32 s{sO}, s{sO+2}, {KW}"); e(f"s_add_u32 s{sO+1}, s{sO+2}, {VW}")
    e(f"s_add_u32 s{sO+2}, s{sO}, 4096"); e(f"s_add_u32 s{sO+3}, s{sO+1}, 4096")

def negmax(e, S, m):
    e(f"v_max3_f32 v{m}, v{S}, v{S+1}, v{S+2}")
    for k in range(3, 15, 2): e(f"v_max3_f32 v{m}, v{m}, v{S+k}, v{S+k+1}")
    e(f"v_max_f32 v{m}, v{m}, v{S+15}")
    e(f"v_mov_b32 v{m+1}, v{m}")
    e("s_nop 1")
    e(f"v_permlane32_swap_b32 v{m}, v{m+1}")
    e("s_nop 0")
    e(f"v_max_f32 v{m}, v{m}, v{m+1}")
    e(f"v_sub_f32 v{m}, {hex(f32bits(-MOFF))}, v{m}")

def pk(S, j):
    d = S + (j if j < 4 else 4 + j)
    return f"v_cvt_pk_bf16_f32 v{d}, v{S+2*j}, v{S+2*j+1}"
def rdq(e):
    e(f"ds_read_b128 {vr(AQ,4)}, v{vQ16}")
    for k in range(4): e(f"ds_read_b128 {vr(ANM+4*k,4)}, v{vAN}")
def dump(e):
    e(f"v_add_u32 v{vT1}, s{sDl}, v{vQ16}")
    e(f"s_mov_b32 m0, s{sSl}")
    e(f"v_mov_b32 v{vT0}, s{sP}")
    e(f"ds_write_b128 v{vT1}, {vr(AO,4)}")
    e(f"ds_write_b128 v{vT1}, {vr(AO+4,4)} offset:1024")
    e(f"ds_write_addtid_b32 v{AO+8} offset:2048")
    e(f"s_mov_b32 m0, s{sPRa}")
    e("s_mov_b64 exec, 1")
    e(f"ds_write_addtid_b32 v{vT0}")
    e("s_mov_b64 exec, -1")
    e(f"s_add_u32 s{sSl}, s{sSl}, {OS_POS}")
    e(f"s_add_u32 s{sDl}, s{sDl}, {OS_POS - 1024}")

def att_block(e, kind, first_pass=False, dump_prev=None, bg=False):
    lo = LOF if kind == "F" else LOS
    def prio(p):
        if "noprio" not in OPT and not bg: e(f"s_setprio {p}")
    for t in range(8):
        Sc, Sn = (S0, S1) if t % 2 == 0 else (S1, S0)
        tp, tn = (t - 1) % 8, (t + 1) % 8
        ex = lambda i: e(f"v_exp_f32 v{Sc+i}, v{Sc+i}")
        P = lambda j: e(pk(Sc, j))
        c0 = "0" if (t == 1 and kind == "F") else vr(AO, 16)
        pv0 = f"{MF32} {vr(AO,16)}, {vr(AV+8*tp,4)}, {vr(Sn,4)}, {c0}"
        pv1 = f"{MF32} {vr(AO,16)}, {vr(AV+8*tp+4,4)}, {vr(Sn+8,4)}, {vr(AO,16)}"
        qk = f"{MF32} {vr(Sn,16)}, {vr(AK+4*tn,4)}, {vr(AQ,4)}, {vr(ANM,16)}"
        if t == 1 and kind == "S":
            ex(0); e(pk(Sn, 7)); ex(1); ex(2)
            e("s_waitcnt lgkmcnt(0)")
            e(pv0); ex(3); P(0); ex(4); P(1)
            e(pv1); ex(5); ex(6); P(2)
            e(qk); prio(lo)
            ex(7); ex(8); P(3); ex(9); ex(10); P(4); ex(11); ex(12)
            prio(3)
            P(5); ex(13); ex(14); P(6); ex(15)
            continue
        skip_pv = first_pass and t == 0
        if first_pass and t > 0: e(f"s_waitcnt vmcnt({max(0, 23 - 3*(t+1))})")
        if not skip_pv: e(pv0)
        ex(0)
        if not skip_pv: e(pk(Sn, 7))
        ex(1); ex(2)
        if not skip_pv: e(pv1)
        ex(3); P(0); ex(4); P(1)
        if t == 7: e("s_waitcnt lgkmcnt(0)")
        if skip_pv: e("s_waitcnt vmcnt(20)")
        e(qk); prio(lo)
        if t == 7 and kind == "S": e(f"v_readfirstlane_b32 s{sPOLL}, v{vT0}")
        ex(5); ex(6); P(2); ex(7)
        if t == 0 and dump_prev is not None:
            sk = e.uniq("nodump")
            if dump_prev >= 0: e(f"s_cmp_eq_u32 s{sP}, {dump_prev}"); e(f"s_cbranch_scc1 {sk}")
            if bg: e("s_nop 0")
            dump(e)
            e.lab(sk)
            if kind == "S":
                tag = "b" if bg else "s"
                e(f"s_cmp_gt_u32 s{sPOLL}, s{sP}"); e(f"s_cbranch_scc0 L_swait{tag}")
                e.lab(f"L_swait{tag}_ret")
                e(f"v_add_u32 v{vT1}, s{sDl}, v{vQ16}")
                e(f"s_mov_b32 m0, s{sSl}")
                e(f"ds_read_b128 {vr(AO,4)}, v{vT1} offset:1024")
                e(f"ds_read_b128 {vr(AO+4,4)}, v{vT1} offset:2048")
                e(f"ds_read_addtid_b32 v{AO+8} offset:2048")
        ex(8); P(3); ex(9)
        if t == 6:
            if kind == "S":
                if bg:
                    e(f"s_cmp_eq_u32 s{sP}, 0"); e("s_cbranch_scc1 L_yprep")
                    e.lab("L_yprep_ret")
                e(f"s_mov_b32 m0, s{sPRp}")
            elif not first_pass:
                e(f"s_cmp_eq_u32 s{sP}, 1"); e("s_cbranch_scc1 L_fprep")
                e.lab("L_fprep_ret")
            e(f"v_add_u32 v{vQ16}, 1024, v{vQ16}")
            e(f"v_add_u32 v{vAN}, 512, v{vAN}")
            if not first_pass: rdq(e)
            if kind == "S": e(f"ds_read_addtid_b32 v{vT0}")
        ex(10); P(4); ex(11); ex(12)
        if t == 0 and dump_prev is not None and not bg and (kind == "S" or "spref" in OPT): e("s_wakeup")
        if WIN == 12: prio(3)
        P(5); ex(13)
        if WIN == 13: prio(3)
        ex(14)
        if WIN == 14: prio(3)
        P(6); ex(15)
        if WIN == 15: prio(3)

def att_finish(e):
    e(f"{MF32} {vr(AO,16)}, {vr(AV+8*7,4)}, {vr(S1,4)}, {vr(AO,16)}")
    e(pk(S1, 7))
    e("s_nop 1")
    e(f"{MF32} {vr(AO,16)}, {vr(AV+8*7+4,4)}, {vr(S1+8,4)}, {vr(AO,16)}")
    e("s_nop 11")
    dump(e)
    e("s_waitcnt lgkmcnt(0)")
    e("s_wakeup")

def att_older(e):
    stamp(e, 6)
    e("s_setprio 3")
    gpoll(e, S1 + 1, S0, 0xffffffff, 0x3, sleep=1)
    stamp(e, 7)
    e(f"buffer_load_dwordx4 {vr(AO,4)}, v{vQ16}, {sr(R_WS,4)}, s{sO+4} offen{SC}")
    gather(e, 0, 8)
    e(f"ds_add_u32 v{S1+2}, v{S1+3} offset:{GCNT-CNT}")
    e(f"v_add_u32 v{vQ16}, {QI_L}, v{vQ16}")
    lds_wait(e, S1 + 2, S0, 4, off=ACNT - CNT, sleep=0)
    e(f"ds_read_b128 {vr(AQ,4)}, v{vQ16}")
    stamp(e, 8)
    e("s_waitcnt vmcnt(24) lgkmcnt(0)")
    stamp(e, 9)
    e(f"{MF32} {vr(S0,16)}, {vr(AO,4)}, {vr(AQ,4)}, 0")
    e("s_nop 11")
    negmax(e, S0, ANM)
    for r in range(1, 16): e(f"v_mov_b32 v{ANM+r}, v{ANM}")
    e(f"ds_write_b128 v{vAN}, {vr(ANM,4)}")
    e("s_waitcnt vmcnt(23)")
    stamp(e, 3); cstamp(e, 13)
    e(f"{MF32} {vr(S0,16)}, {vr(AK,4)}, {vr(AQ,4)}, {vr(ANM,16)}")
    e(f"s_mov_b32 s{sP}, 1")
    e("s_nop 11")
    att_block(e, "F", first_pass=True)
    att_finish(e)
    stamp(e, 20)
    e(f"v_mov_b32 v{vT1}, {RDY1}")
    lds_wait(e, vT1, vT0, 1, sleep=2)
    rdq(e)
    stamp(e, 21); cstamp(e, 10)
    e("s_waitcnt lgkmcnt(0)")
    e(f"{MF32} {vr(S0,16)}, {vr(AK,4)}, {vr(AQ,4)}, {vr(ANM,16)}")
    e("s_nop 11")
    e.L.append("    .p2align 3")
    e.lab("L_floop")
    att_block(e, "F", dump_prev=1)
    e(f"s_add_u32 s{sP}, s{sP}, 1")
    e(f"s_cmp_lt_u32 s{sP}, 8"); e("s_cbranch_scc1 L_floop")
    att_finish(e)
    stamp(e, 4); cstamp(e, 11)
    if "noH" not in OPT: out_stage_a(e, 4 if "noB" in OPT else 44)
    stamp_out(e)
    e("s_endpgm")
    e.lab("L_fprep")
    e(f"v_mov_b32 v{vT1}, {ACNT}")
    lds_wait(e, vT1, vT0, 8, sleep=2)
    e("s_branch L_fprep_ret")

def att_role(e):
    la, lb = e.uniq("sa"), e.uniq("sb")
    e("s_waitcnt lgkmcnt(0)")
    e(f"v_readfirstlane_b32 s{sPOLL}, v28")
    e(f"s_cmp_ge_u32 s{sPOLL}, 1"); e(f"s_cbranch_scc1 {la}")
    e("s_waitcnt vmcnt(0)")
    set_flag(e, sT+10, S0, S0+1)
    lds_wait(e, 30, S0+2, 1, sleep=1)
    stamp(e, 7)
    gather(e, 0, 8)
    e(f"s_branch {lb}")
    e.lab(la)
    stamp(e, 7)
    gather(e, 0, 3)
    e("s_waitcnt vmcnt(9)")
    set_flag(e, sT+10, S0, S0+1)
    gather(e, 3, 8)
    e.lab(lb)
    e(f"ds_add_u32 v{S1+2}, v{S1+3} offset:{GCNT-CNT}")
    e(f"v_add_u32 v{vQ16}, {QI_L}, v{vQ16}")
    e(f"s_mov_b32 s{sP}, 0")
    e(f"v_mov_b32 v{vT1}, s{sPRp}")
    e(f"s_setprio {LOS}")
    stamp(e, 8)
    lds_wait(e, vT1, vT0, 1, sleep=6)
    rdq(e)
    e("s_waitcnt vmcnt(0) lgkmcnt(0)")
    stamp(e, 3); cstamp(e, 13)
    e(f"{MF32} {vr(S0,16)}, {vr(AK,4)}, {vr(AQ,4)}, {vr(ANM,16)}")
    e("s_nop 11")
    e.L.append("    .p2align 3")
    e.lab("L_bloop")
    att_block(e, "S", dump_prev=0, bg=True)
    e(f"s_add_u32 s{sP}, s{sP}, 1")
    e(f"s_cmp_ge_u32 s{sP}, 8"); e("s_cbranch_scc1 L_sfin")
    e(f"s_cmp_lt_u32 s{sPOLL}, {SWITCH}"); e("s_cbranch_scc1 L_bloop")
    stamp(e, 5)
    e("s_setprio 3")
    e.L.append("    .p2align 3")
    e.lab("L_sloop")
    att_block(e, "S", dump_prev=-1)
    e(f"s_add_u32 s{sP}, s{sP}, 1")
    if STAMPS:
        e(f"s_cmp_lg_u32 s{sP}, 4"); e("s_cbranch_scc1 L_sns"); stamp(e, 4); cstamp(e, 10); e.lab("L_sns")
    e(f"s_cmp_lt_u32 s{sP}, 8"); e("s_cbranch_scc1 L_sloop")
    e.lab("L_sfin")
    att_finish(e)
    stamp_out(e)
    e("s_endpgm")
    e.lab("L_yprep")
    e(f"v_mov_b32 v{vT1}, {RDY1}")
    lds_wait(e, vT1, vT0, 1, sleep=2)
    e("s_branch L_yprep_ret")
    for tag in ("b", "s"):
        e.lab("L_swait" + tag)
        e("s_waitcnt lgkmcnt(0)")
        e("s_wakeup")
        e(f"v_mov_b32 v{vT1}, s{sPRp}")
        e(f"s_add_u32 s{sO}, s{sP}, 1")
        lds_wait(e, vT1, vT0, f"s{sO}", sleep=6)
        e(f"s_branch L_swait{tag}_ret")

def gen():
    e = Em()
    kn = NAME + "_kernel"
    e.L.append(f".globl {kn}\n.p2align 8\n.type {kn},@function\n{kn}:")
    setup(e, "L_end")
    e(f"s_cmp_ge_u32 s{sW}, 8"); e("s_cbranch_scc1 L_q")
    e(f"s_cmp_ge_u32 s{sW}, 4"); e("s_cbranch_scc1 L_aux")
    h_role(e)
    e.lab("L_q")
    q_role(e)
    e.lab("L_aux")
    aux_role(e)
    att_older(e)
    e.lab("L_end")
    e("s_endpgm")
    e.lab("L_codeend")
    head = f"""; generated by work/gen9.py
; @launch grid=(256,1,1) block=(768,1,1) lds={LDS_BYTES}
.amdgcn_target "amdgcn-amd-amdhsa--gfx950"
.text
"""
    kd = f""".section .rodata,"a"
.p2align 6
.amdhsa_kernel {kn}
  .amdhsa_next_free_vgpr 168
  .amdhsa_next_free_sgpr 102
  .amdhsa_accum_offset 168
  .amdhsa_group_segment_fixed_size 0
  .amdhsa_kernarg_size 88
  .amdhsa_user_sgpr_count 2
  .amdhsa_user_sgpr_kernarg_segment_ptr 1
  .amdhsa_system_sgpr_workgroup_id_x 1
.end_amdhsa_kernel
"""
    return head + e.text() + kd

if __name__ == "__main__":
    args = [a for a in sys.argv[1:] if not a.startswith("-")]
    OPT.update(a[1:] for a in sys.argv[1:] if a.startswith("-"))
    if "stamps" in OPT: STAMPS = True
    for o in OPT:
        if o.startswith("moff"): MOFF = float(o[4:])
        if o.startswith("bd"): BDEPTH = int(o[2:])
        if o.startswith("op"): OPRIO = int(o[2:])
        if o.startswith("hm"): HM = int(o[2:])
        if o == "spref": LOF, LOS, SWITCH = 0, 1, 0
        if o == "osc1": OSC = " sc1"
        if o == "ont": OSC = " nt"
        if o.startswith("win"): WIN = int(o[3:])
        if o.startswith("sw"): SWITCH = int(o[2:])
    out = args[0] if args else f"cdna_kernels/{NAME}.s"
    open(out, "w").write(gen())
    print("wrote", out)
```

```python
import sys, math, struct

NAME = "concat_heads__grouped_kv_mqa__sliding_local_dilated__prompt"
KN = NAME + "_kernel"
def f32bits(x): return struct.unpack("<I", struct.pack("<f", x))[0]

class Em:
    def __init__(self): self.L = []; self.n = 0
    def __call__(self, *ss):
        for s in ss:
            if s.startswith("s_nop "):
                self.L += ["    s_nop 0"] * (int(s.split()[1]) + 1)
            else: self.L.append("    " + s)
    def lab(self, s): self.L.append(s + ":")
    def uniq(self, p): self.n += 1; return f"L_{p}_{self.n}"
    def c(self, s): self.L.append("    ; " + s)
    def text(self): return "\n".join(self.L) + "\n"

def vr(b, n): return f"v[{b}:{b+n-1}]" if n > 1 else f"v{b}"
def sr(b, n): return f"s[{b}:{b+n-1}]" if n > 1 else f"s{b}"

sWG, sW = 2, 3
R_XA, R_WQ, R_WKV, R_WOA, R_XB, R_WB, R_WOB, R_OUT, R_WS = 32, 36, 40, 44, 48, 52, 56, 60, 64
sRB, sCB, sTB, sHP, sSB, sKIND, sRET, sI = 72, 73, 74, 75, 76, 77, 78, 79
sT = 80
sO = 92
sPOLL, sEP, sSPIN, sIDX = 98, 99, 100, 101
sTAG = 71
SPIN_MAX = 60000
QW, KW, VW, EPOCH_W, OB, OA, FL = 0, 2 << 20, (2 << 20) + 65536, 3 << 20, 4 << 20, 6 << 20, 8 << 20
F4 = FL + (512 << 10)
F1, F3, CKQ, CKA = FL, FL + (256 << 10), FL + (1 << 20), FL + (2 << 20)
WS_BYTES = 16 << 20
K = 1024
LDS_BYTES = 160 * K
SLOT = 32 * K
WKV_L = 128 * K
QI_L, NM_L, CNT, PR_L = 144 * K, 152 * K, 156 * K + 512, 157 * K
HCNT, ACNT, GCNT, KVF, RDY1, QST, LAND, SOK = 0, 4, 8, 12, 16, 20, 32, 48
RINGS = 34 * K
RXO = 24 * K
OS_L, OS_POS, OS_PAIR = 72 * K, 9216, 2304
EX_L = 68 * K
WOA_L, WOB_L = 34 * K, 0
BDEPTH, HM, F3SLEEP, WIN, BSLEEP = 4, 2, 16, 12, 0
CSC = 0.25 * math.log2(math.e)
MOFF = 96.0
LMAX = 2.0 ** 120
MF32 = "v_mfma_f32_32x32x16_bf16"
MF16 = "v_mfma_f32_16x16x32_bf16"
STAMPS = False
OPT = set()
ST = 12 << 20
SC = " sc1"

def stamp(e, k):
    if STAMPS: e("s_memrealtime s[30:31]", "s_waitcnt lgkmcnt(0)", f"s_mov_b32 s{8+k}, s30")
def cstamp(e, k):
    if STAMPS: e("s_memtime s[30:31]", "s_waitcnt lgkmcnt(0)", f"s_mov_b32 s{8+k}, s30")
def stamp_init(e):
    if not STAMPS: return
    for k in range(1, 22): e(f"s_mov_b32 s{8+k}, 0")
    e("s_mov_b32 s8, s6", "s_mov_b32 s20, s4")
def finish(e):
    if STAMPS:
        stamp(e, 15); cstamp(e, 14)
        e(f"s_mul_i32 s30, s{sWG}, 12", f"s_add_u32 s30, s30, s{sW}", "s_lshl_b32 s30, s30, 7", f"s_add_u32 s30, s30, {ST}")
        e("s_mov_b64 exec, 1", "v_mov_b32 v0, 0")
        for k in range(22): e(f"v_mov_b32 v{4+k}, s{8+k}")
        for k in range(6): e(f"buffer_store_dwordx4 {vr(4+4*k,4)}, v0, {sr(R_WS,4)}, s30 offen offset:{16*k}")
    e("s_endpgm")

def dma(e, voff, R, soff, nt=False):
    e(f"buffer_load_dwordx4 v{voff}, {sr(R,4)}, s{soff} offen{' nt' if nt else ''} lds")
def spin_tail(e, l, sleep):
    e(f"s_sleep {sleep}", f"s_add_u32 s{sSPIN}, s{sSPIN}, 1", f"s_cmp_lt_u32 s{sSPIN}, {SPIN_MAX}", f"s_cbranch_scc1 {l}")
def lds_wait(e, vaddr, vtmp, target, off=0, sleep=1):
    l = e.uniq("poll")
    e.lab(l)
    e(f"ds_read_b32 v{vtmp}, v{vaddr} offset:{off}", "s_waitcnt lgkmcnt(0)", f"v_readfirstlane_b32 s{sPOLL}, v{vtmp}")
    e(f"s_cmp_ge_u32 s{sPOLL}, {target}", f"s_cbranch_scc1 {l}_d")
    spin_tail(e, l, sleep)
    e.lab(l + "_d")
def sig(e, vaddr, vone, off):
    e("s_mov_b64 exec, 1", f"ds_add_u32 v{vaddr}, v{vone} offset:{off}", "s_mov_b64 exec, -1")
def load_epoch(e):
    e(f"s_mov_b32 s{sEP}, {EPOCH_W}", f"s_load_dword s{sEP}, s[{R_WS}:{R_WS+1}], s{sEP}")
def get_epoch(e):
    e("s_waitcnt lgkmcnt(0)", f"s_add_u32 s{sEP}, s{sEP}, 1", f"s_mul_i32 s{sTAG}, s{sEP}, 0x9e3779b1")
def gpoll(e, vaddr, vtmp, lo, hi, sleep=1):
    l = e.uniq("gp")
    e(f"s_mov_b32 exec_lo, {hex(lo)}", f"s_mov_b32 exec_hi, {hex(hi)}")
    e.lab(l)
    e(f"buffer_load_dword v{vtmp}, v{vaddr}, {sr(R_WS,4)}, 0 offen sc1", "s_waitcnt vmcnt(0)")
    e(f"v_cmp_ne_u32 vcc, s{sEP}, v{vtmp}", "s_and_b64 exec, exec, vcc", f"s_cbranch_execz {l}_d")
    spin_tail(e, l, sleep)
    e.lab(l + "_d")
    e("s_mov_b64 exec, -1")
def set_flag(e, soff, va, vd):
    e(f"v_mov_b32 v{va}, 0", f"v_mov_b32 v{vd}, s{sEP}", "s_mov_b64 exec, 1")
    e(f"buffer_store_dword v{vd}, v{va}, {sr(R_WS,4)}, s{soff} offen sc1", "s_mov_b64 exec, -1")
def mk_ck(e, dst, d):
    e(f"v_xad_u32 v{dst}, v{d}, s{sTAG}, v{d+1}", f"v_xad_u32 v{dst}, v{dst}, v{d+2}, v{d+3}")
def chk(e, acc, tmp, d, ck, first):
    mk_ck(e, tmp, d)
    e(f"v_xor_b32 v{acc}, v{tmp}, v{ck}" if first else f"v_bitop3_b32 v{acc}, v{acc}, v{tmp}, v{ck} bitop3:0xf6")
def lane_id(e):
    e("v_mbcnt_lo_u32_b32 v0, -1, 0", "v_mbcnt_hi_u32_b32 v0, -1, v0")
def xa_voff(e, b, t):
    e(f"v_lshrrev_b32 v{t}, 4, v0", f"v_and_b32 v{b}, 15, v0", f"v_xor_b32 v{b}, v{b}, v{t}", f"v_lshlrev_b32 v{b}, 4, v{b}")
    e(f"v_lshl_add_u32 v{b}, v{t}, 10, v{b}")
def halfmax(e, m):
    e(f"v_mov_b32 v{m+1}, v{m}", "s_nop 1", f"v_permlane32_swap_b32 v{m}, v{m+1}", "s_nop 0", f"v_max_f32 v{m}, v{m}, v{m+1}")
def negmax(e, S, m):
    e(f"v_max3_f32 v{m}, v{S}, v{S+1}, v{S+2}")
    for k in range(3, 15, 2): e(f"v_max3_f32 v{m}, v{m}, v{S+k}, v{S+k+1}")
    e(f"v_max_f32 v{m}, v{m}, v{S+15}")
    halfmax(e, m)
    e(f"v_sub_f32 v{m}, {hex(f32bits(-MOFF))}, v{m}")

def entry(e):
    e(f"s_cmp_ge_u32 s{sWG}, 256", "s_cbranch_scc1 L_end")
    e(f"s_and_b32 s{sO}, s{sWG}, 8", f"s_add_u32 s{sO}, s{sO}, 16")
    for R, off in ((R_XA, 0), (R_WQ, 8), (R_WS, 80)): e(f"s_load_dwordx2 s[{R}:{R+1}], s[0:1], {off}")
    e(f"s_load_dwordx2 s[{R_WKV}:{R_WKV+1}], s[0:1], s{sO}")
    if STAMPS: e("s_memrealtime s[6:7]", "s_memtime s[4:5]")
    e("v_lshrrev_b32 v1, 6, v0", "v_and_b32 v0, 63, v0")
    e(f"s_lshr_b32 s{sO+1}, s{sWG}, 3")
    e(f"v_readfirstlane_b32 s{sW}, v1")
    e(f"s_and_b32 s{sO}, s{sWG}, 7", f"s_lshl_b32 s{sIDX}, s{sO}, 5", f"s_add_u32 s{sIDX}, s{sIDX}, s{sO+1}")
    e(f"s_and_b32 s{sI}, s{sW}, 3", f"s_cmp_lt_u32 s{sW}, 8", "s_cbranch_scc1 L_nopf")
    e(f"s_getpc_b64 s[{sO+2}:{sO+3}]")
    e.lab("L_pc")
    e(f"s_lshl_b32 s{sO}, s{sO+1}, 2", f"s_add_u32 s{sO}, s{sO}, s{sI}", f"s_and_b32 s{sO}, s{sO}, 31", f"s_lshl_b32 s{sO}, s{sO}, 10")
    e(f"v_lshl_add_u32 v2, v0, 7, s{sO}", f"v_min_u32 v2, L_codeend-L_pc-4, v2", "s_mov_b64 exec, 0xff")
    e(f"global_load_dword v167, v2, s[{sO+2}:{sO+3}]", "s_mov_b64 exec, -1")
    e.lab("L_nopf")
    e(f"s_lshr_b32 s{sRB}, s{sIDX}, 3", f"s_and_b32 s{sCB}, s{sIDX}, 7", f"s_lshr_b32 s{sTB}, s{sIDX}, 4", f"s_and_b32 s{sHP}, s{sIDX}, 15")
    e(f"s_lshr_b32 s{sSB}, s{sCB}, 1", f"s_and_b32 s{sKIND}, s{sCB}, 1", f"s_mov_b32 s{sSPIN}, 0")
    for R, n in ((R_XA, 2 << 20), (R_WKV, 16384), (R_WQ, 512 << 10), (R_WS, WS_BYTES)):
        e(f"s_mov_b32 s{R+2}, {hex(n)}", f"s_mov_b32 s{R+3}, 0x20000")
    e(f"s_cmp_ge_u32 s{sW}, 8", "s_cbranch_scc1 L_q", f"s_cmp_ge_u32 s{sW}, 4", "s_cbranch_scc1 L_aux")
def srds(e, lst):
    size = {R_WOA: 512 << 10, R_XB: 2 << 20, R_WB: 1536 << 10, R_WOB: 512 << 10, R_OUT: 4 << 20}
    slot = {R_WOA: 32, R_XB: 40, R_WB: 48, R_WOB: 56, R_OUT: 64}
    for R in lst: e(f"s_load_dwordx2 s[{R}:{R+1}], s[0:1], {slot[R]}", f"s_mov_b32 s{R+2}, {hex(size[R])}", f"s_mov_b32 s{R+3}, 0x20000")

vHC, vH1, vHT = 5, 6, 7
def h_kv(e):
    fx, fw, acc = 32, 48, 24
    e.c("---- H: K/V projection")
    e("s_setprio 3")
    xa_voff(e, 8, 12)
    for z in range(1, 4): e(f"v_xor_b32 v{8+z}, {z<<6}, v8")
    e("v_lshlrev_b32 v12, 4, v0")
    e(f"s_add_u32 s{sO+3}, s{sRB}, s{sI}", f"s_and_b32 s{sO+3}, s{sO+3}, 3")
    e(f"s_lshr_b32 s{sO+1}, s{sIDX}, 1", f"s_lshl_b32 s{sO+1}, s{sO+1}, 14", f"s_lshl_b32 s{sO+2}, s{sO+3}, 8", f"s_add_u32 s{sO+1}, s{sO+1}, s{sO+2}")
    e(f"s_lshl_b32 s{sT}, s{sI}, 15", f"s_lshl_b32 s{sO+2}, s{sSB}, 12", f"s_add_u32 s{sT}, s{sT}, s{sO+2}")
    e(f"s_lshl_b32 s{sT+1}, s{sI}, 12", f"s_add_u32 s{sT+1}, s{sT+1}, {WKV_L}", f"s_lshl_b32 s{sO+3}, s{sO+3}, 12")
    e("s_waitcnt lgkmcnt(0)")
    for z in range(4):
        e(f"s_add_u32 m0, s{sT}, {z*1024}", f"s_add_u32 s{sO}, s{sO+1}, {z*4096}")
        dma(e, 8 + z, R_XA, sO, nt=True)
        e(f"s_add_u32 m0, s{sT+1}, {z*1024}", f"s_add_u32 s{sO}, s{sO+3}, {z*1024}")
        dma(e, 12, R_WKV, sO)
    load_epoch(e)
    e("s_barrier")
    stamp_init(e)
    e(f"v_mov_b32 v{vHC}, {CNT}", f"v_mov_b32 v{vH1}, 1")
    e("v_and_b32 v2, 15, v0", "v_lshrrev_b32 v3, 4, v0", "v_xor_b32 v4, v2, v3", "v_lshlrev_b32 v4, 4, v4", "v_lshl_add_u32 v4, v2, 8, v4")
    e(f"v_add_u32 v8, s{sT}, v4")
    for q in range(1, 4): e(f"v_xor_b32 v{8+q}, {q<<6}, v8")
    e("v_bfe_u32 v4, v0, 2, 2", "v_lshl_add_u32 v4, v3, 3, v4", "v_lshlrev_b32 v4, 5, v4", "v_and_b32 v13, 3, v0", "v_lshl_add_u32 v4, v13, 3, v4")
    e(f"v_add_u32 v13, s{sT+1}, v4", f"v_add_u32 v14, s{sT+1}, v12")
    e(f"s_lshl_b32 s{sO}, s{sI}, 2", f"v_add_u32 v15, s{sO}, v{vHC}")
    e(f"s_lshl_b32 s{sO}, s{sRB}, 11")
    e(f"s_lshr_b32 s{sO+1}, s{sSB}, 1", f"s_lshl_b32 s{sO+1}, s{sO+1}, 10", f"s_and_b32 s{sO+2}, s{sSB}, 1", f"s_lshl_b32 s{sO+2}, s{sO+2}, 8")
    e(f"s_add_u32 s{sO+1}, s{sO+1}, s{sO+2}", f"s_add_u32 s{sO+1}, s{sO+1}, {KW}")
    e(f"s_lshl_b32 s{sO+2}, s{sSB}, 9", f"s_add_u32 s{sO+2}, s{sO+2}, {VW}")
    e(f"s_cmp_eq_u32 s{sKIND}, 0", f"s_cselect_b32 s{sO+1}, s{sO+1}, s{sO+2}", f"s_cselect_b32 s{sO+2}, 9, 8", f"s_add_u32 s{sO+4}, s{sO}, s{sO+1}")
    e("v_and_b32 v4, 1, v3", f"v_lshlrev_b32 v4, s{sO+2}, v4", "v_lshl_add_u32 v20, v2, 4, v4")
    e(f"s_lshl_b32 s{sO+5}, s{sIDX}, 7", f"s_add_u32 s{sO+5}, s{sO+5}, {F1}")
    get_epoch(e)
    e("s_waitcnt vmcnt(0)")
    stamp(e, 1)
    for q in range(4):
        e(f"ds_read_b128 {vr(fx+4*q,4)}, v{8+q}")
        e(f"ds_read_b64_tr_b16 {vr(fw+4*q,2)}, v13 offset:{q*1024}", f"ds_read_b64_tr_b16 {vr(fw+4*q+2,2)}, v13 offset:{q*1024+128}")
    sig(e, 15, vH1, LAND)
    e(f"s_cmp_lg_u32 s{sKIND}, 0", "s_cbranch_scc1 L_kv_v")
    for kind in range(2):
        for q in range(4):
            a, b = (fw, fx) if kind == 0 else (fx, fw)
            e(f"s_waitcnt lgkmcnt({10-3*q})", f"{MF16} {vr(acc,4)}, {vr(a+4*q,4)}, {vr(b+4*q,4)}, {'0' if q == 0 else vr(acc,4)}")
        if kind == 0:
            e("s_branch L_kv_d"); e.lab("L_kv_v")
    e.lab("L_kv_d")
    e(f"s_cmp_eq_u32 s{sI}, 0", "s_cbranch_scc1 L_kv_0", "s_nop 5")
    e(f"ds_write_b128 v14, {vr(acc,4)}")
    sig(e, vHC, vH1, HCNT)
    e("s_branch L_h2")
    e.lab("L_kv_0")
    lds_wait(e, vHC, vHT, 3, HCNT, sleep=0)
    for k in range(1, 4): e(f"ds_read_b128 {vr(fx+4*k,4)}, v14 offset:{k*4096}")
    e("s_waitcnt lgkmcnt(1)")
    for k in range(2): e(f"v_pk_add_f32 {vr(fx+4+2*k,2)}, {vr(fx+4+2*k,2)}, {vr(fx+8+2*k,2)}")
    e("s_waitcnt lgkmcnt(0)")
    for k in range(2): e(f"v_pk_add_f32 {vr(acc+2*k,2)}, {vr(acc+2*k,2)}, {vr(fx+12+2*k,2)}")
    for k in range(2): e(f"v_pk_add_f32 {vr(acc+2*k,2)}, {vr(acc+2*k,2)}, {vr(fx+4+2*k,2)}")
    e(f"v_cvt_pk_bf16_f32 v28, v{acc}, v{acc+1}", f"v_cvt_pk_bf16_f32 v29, v{acc+2}, v{acc+3}", "s_nop 1")
    e("v_permlane32_swap_b32 v28, v30", "v_permlane32_swap_b32 v29, v31", "s_mov_b32 exec_hi, 0", "s_nop 0")
    e(f"buffer_store_dwordx4 v[28:31], v20, {sr(R_WS,4)}, s{sO+4} offen{SC}", "s_mov_b64 exec, -1")
    if "gate1" in OPT: sig(e, vHC, vH1, KVF)
    sig(e, vHC, vH1, HCNT)
    stamp(e, 2)
    e("s_waitcnt vmcnt(0)")
    set_flag(e, sO+5, 2, 3)
    if "gate2" in OPT: sig(e, vHC, vH1, KVF)
    stamp(e, 3)
    e("s_branch L_h2")

vT0, vQ16, vAN, vT1, AQ, AK, AV, S0, S1, AO, ANM = 0, 1, 2, 3, 4, 8, 40, 104, 120, 136, 152
vVo, vFa, vC, v1_ = S1, S1+1, S1+2, S1+3
def zero_pr(e):
    e(f"s_lshl_b32 s{sO}, s{sW}, 8", f"s_add_u32 m0, s{sO}, {PR_L - 1024}", "v_mov_b32 v2, 0", "ds_write_addtid_b32 v2")
def f_load(e):
    e.lab("L_aux")
    e.c("---- F: bulk loads")
    zero_pr(e)
    xa_voff(e, 8, 12)
    e(f"s_lshl_b32 s{sO}, s{sI}, 6", f"v_xor_b32 v8, s{sO}, v8")
    e("v_lshrrev_b32 v2, 3, v0", "v_bfe_u32 v3, v0, 4, 1", "v_lshlrev_b32 v3, 2, v3", "v_and_b32 v4, 7, v0", "v_xor_b32 v4, v4, v3")
    e("v_lshlrev_b32 v4, 4, v4", "v_lshl_add_u32 v12, v2, 10, v4")
    e(f"s_lshl_b32 s{sT}, s{sI}, 12")
    e(f"s_lshl_b32 s{sT+1}, s{sI}, 15", f"s_lshl_b32 s{sO}, s{sCB}, 7", f"s_add_u32 s{sT+1}, s{sT+1}, s{sO}")
    e(f"s_lshl_b32 s{sT+2}, s{sRB}, 16", f"s_add_u32 s{sT+2}, s{sT+2}, s{sT}", f"s_lshl_b32 s{sT+9}, s{sI}, 10")
    for du in range(1, 4):
        e(f"s_add_u32 s{sO}, s{sSB}, {du}", f"s_and_b32 s{sO}, s{sO}, 3")
        e(f"s_lshl_b32 s{sT+2+du}, s{sO}, 14", f"s_add_u32 s{sT+2+du}, s{sT+2+du}, s{sT+2}")
        e(f"s_lshl_b32 s{sT+5+du}, s{sO}, 12", f"s_add_u32 s{sT+5+du}, s{sT+5+du}, s{sT+9}")
    e(f"v_mov_b32 v{vC}, {CNT}", f"v_mov_b32 v{v1_}, 1")
    e("s_waitcnt lgkmcnt(0)")
    load_epoch(e)
    e("s_barrier")
    def chunk(sg):
        e(f"s_add_u32 s{sO+1}, s{sRB}, {sg}", f"s_and_b32 s{sO+1}, s{sO+1}, 3", f"s_lshl_b32 s{sO+2}, s{sO+1}, 8")
        e(f"s_lshl_b32 s{sO+1}, s{sO+1}, 17", f"s_add_u32 s{sO+1}, s{sO+1}, s{sT+1}")
        for i in range(4):
            e(f"s_add_u32 m0, s{sT}, {sg*SLOT + 16384 + i*1024}", f"s_add_u32 s{sO}, s{sO+1}, {i*8192}")
            dma(e, 12, R_WQ, sO)
        for du in range(1, 4):
            e(f"s_add_u32 m0, s{sT+5+du}, {sg*SLOT}", f"s_add_u32 s{sO}, s{sT+2+du}, s{sO+2}")
            dma(e, 8, R_XA, sO, nt=True)
    gated = "gate1" in OPT or "gate2" in OPT
    nb = 2 if gated else 4
    for sg in range(nb): chunk(sg)
    stamp_init(e)
    if gated:
        att_consts(e)
        get_epoch(e)
        e("s_waitcnt vmcnt(7)"); sig(e, vC, v1_, LAND)
        lds_wait(e, vC, S0, 1, KVF, sleep=1)
        chunk(2)
        e("s_waitcnt vmcnt(7)"); sig(e, vC, v1_, LAND + 4)
        chunk(3)
        stamp(e, 1)
        for sg in range(2, 4):
            e(f"s_waitcnt vmcnt({21-7*sg})"); sig(e, vC, v1_, LAND + 4*sg)
    else:
        stamp(e, 1)
        for sg in range(4):
            e(f"s_waitcnt vmcnt({21-7*sg})"); sig(e, vC, v1_, LAND + 4*sg)
        att_consts(e)
        get_epoch(e)
    stamp(e, 2)
    e("s_branch L_f2")

sAW, sP, sExp = sT+8, sT+9, sT+10
def att_consts(e):
    e(f"v_and_b32 v{S0}, 31, v0", f"v_cmp_eq_u32 vcc, 16, v{S0}", f"v_mov_b32 v{S0+1}, 0x3f803f80", f"v_lshlrev_b32 v{vQ16}, 4, v0")
    e(f"v_cndmask_b32 v{AV}, 0, v{S0+1}, vcc")
    for r in range(1, 64): e(f"v_mov_b32 v{AV+r}, v{AV}")
    e(f"v_lshlrev_b32 v{vAN}, 4, v{S0}", f"v_add_u32 v{vAN}, {NM_L}, v{vAN}")
    e(f"v_lshrrev_b32 v{vVo}, 5, v0", f"v_lshlrev_b32 v{vVo}, 8, v{vVo}", f"v_and_b32 v{S0+2}, 15, v0", f"v_lshl_add_u32 v{vVo}, v{S0+2}, 4, v{vVo}")
def gather_bases(e):
    e(f"s_sub_u32 s{sAW}, s{sW}, 4", f"s_lshl_b32 s{sO+2}, s{sAW}, 13")
    e(f"s_add_u32 s{sO}, s{sO+2}, {KW}", f"s_add_u32 s{sO+1}, s{sO+2}, {VW}", f"s_add_u32 s{sO+2}, s{sO}, 4096", f"s_add_u32 s{sO+3}, s{sO+1}, 4096")
def gather(e, t0, t1):
    for t in range(t0, t1):
        e(f"buffer_load_dwordx4 {vr(AK+4*t,4)}, v{vQ16}, {sr(R_WS,4)}, s{sO+2*(t>>2)} offen offset:{(t&3)*1024}{SC}")
        e("s_mov_b32 exec_lo, 0xffff", "s_mov_b32 exec_hi, 0xffff")
        for f in (2*t, 2*t+1):
            e(f"buffer_load_dwordx4 {vr(AV+4*f,4)}, v{vVo}, {sr(R_WS,4)}, s{sO+1+2*(t>>2)} offen offset:{(f&7)*512}{SC}")
        e("s_mov_b64 exec, -1")
def att_addrs(e):
    e(f"s_mul_i32 s{sExp}, s{sI}, {OS_PAIR}", f"s_add_u32 s{sExp}, s{sExp}, {OS_L}")
    e(f"v_add_u32 v{vT1}, s{sExp}, v{vQ16}", f"v_lshl_add_u32 v{vT0}, v0, 2, s{sExp}", f"v_add_u32 v{vQ16}, {QI_L}, v{vQ16}")
    e(f"s_lshl_b32 s{sO+4}, s{sI}, 8", f"s_add_u32 m0, s{sO+4}, {PR_L}")

def s_qproj(e):
    vXa, vWa, vXb, vWb, vSt, vLd = 8, 16, 17, 25, 26, 27
    acc, fr, NF, T = 104, 124, 5, 28
    a_, b_, c_, d_ = T, T+1, T+2, T+3
    e.lab("L_q")
    e.c("---- S: Q projection")
    zero_pr(e)
    e(f"s_mov_b32 m0, {CNT}", "s_nop 0", "ds_write_addtid_b32 v2", "s_waitcnt lgkmcnt(0)")
    load_epoch(e)
    e("s_barrier")
    stamp_init(e)
    e(f"v_mov_b32 v{vC}, {CNT}", f"v_mov_b32 v{v1_}, 1")
    att_consts(e)
    e(f"s_and_b32 s{sO}, s{sI}, 1", f"s_lshl_b32 s{sO}, s{sO}, 13")
    e(f"v_and_b32 v{a_}, 31, v0", f"v_lshrrev_b32 v{b_}, 5, v0", f"v_and_b32 v{c_}, 15, v0", f"v_xor_b32 v{c_}, v{c_}, v{b_}")
    e(f"v_lshl_add_u32 v{d_}, v{a_}, 8, s{sO}", f"v_lshl_add_u32 v{vXa}, v{c_}, 4, v{d_}")
    for s in range(1, 8): e(f"v_xor_b32 v{vXa+s}, {s<<5}, v{vXa}")
    e(f"v_bfe_u32 v{a_}, v0, 2, 2", f"v_lshl_add_u32 v{c_}, v{b_}, 3, v{a_}", f"v_lshlrev_b32 v{c_}, 7, v{c_}", f"v_lshrrev_b32 v{a_}, 1, v{a_}")
    e(f"s_lshr_b32 s{sO}, s{sI}, 1", f"v_xor_b32 v{a_}, s{sO}, v{a_}", f"v_lshl_add_u32 v{c_}, v{a_}, 6, v{c_}")
    e(f"v_bfe_u32 v{a_}, v0, 4, 1", f"v_lshl_add_u32 v{c_}, v{a_}, 5, v{c_}", f"v_and_b32 v{a_}, 3, v0", f"v_lshl_add_u32 v{c_}, v{a_}, 3, v{c_}")
    e(f"v_add_u32 v{vWa}, 16384, v{c_}", f"v_lshl_add_u32 v{vLd}, v{a_}, 2, v{vC}")
    e(f"v_bfe_u32 v{a_}, v0, 3, 2", f"v_lshlrev_b32 v{a_}, 13, v{a_}", f"v_lshl_add_u32 v{a_}, v{b_}, 9, v{a_}")
    e(f"v_and_b32 v{c_}, 7, v0", f"v_lshl_add_u32 v{vSt}, v{c_}, 4, v{a_}")
    for s in range(9): e(f"v_add_u32 v{vXb+s}, 65536, v{vXa+s}")
    get_epoch(e)
    e(f"s_mov_b32 s{sT+6}, {hex(f32bits(CSC))}")
    e(f"s_and_b32 s{sO+1}, s{sI}, 1", f"s_lshl_b32 s{sO+2}, s{sRB}, 1", f"s_add_u32 s{sO+1}, s{sO+1}, s{sO+2}", f"s_lshl_b32 s{sO+1}, s{sO+1}, 15")
    e(f"s_lshl_b32 s{sO+2}, s{sCB}, 10", f"s_add_u32 s{sO+1}, s{sO+1}, s{sO+2}")
    e(f"s_lshr_b32 s{sO+2}, s{sI}, 1", f"s_lshl_b32 s{sO+2}, s{sO+2}, 8", f"s_add_u32 s{sT+7}, s{sO+1}, s{sO+2}", f"s_add_u32 s{sO+2}, s{sO+2}, {QI_L}")
    e(f"v_and_b32 v{b_}, 0x3ff, v{vSt}", f"v_add_u32 v{b_}, s{sO+2}, v{b_}")
    e(f"s_lshr_b32 s{sT+5}, s{sO+1}, 2", f"s_and_b32 s{sO}, s{sI}, 2", f"s_lshl_b32 s{sO}, s{sO}, 2", f"s_add_u32 s{sT+5}, s{sT+5}, s{sO}", f"s_add_u32 s{sT+5}, s{sT+5}, {CKQ}")
    e(f"v_and_b32 v{T+4}, 0x70, v{vSt}", f"v_and_b32 v{T+5}, 0xffffff80, v{vSt}", f"v_lshrrev_b32 v{T+5}, 2, v{T+5}", f"v_add_u32 v{T+4}, v{T+4}, v{T+5}")
    e(f"s_and_b32 s{sO}, s{sCB}, 3", f"s_lshl_b32 s{sO}, s{sO}, 3", f"s_lshl_b32 s{sT+11}, 0xff, s{sO}")
    e(f"s_lshr_b32 s{sO}, s{sCB}, 2", f"s_and_b32 s{sO+1}, s{sI}, 1", f"s_cmp_eq_u32 s{sO}, s{sO+1}", f"s_cselect_b32 s{sT+11}, s{sT+11}, 0")
    e(f"s_lshl_b32 s{sO}, s{sI}, 2", f"v_add_u32 v{vFa}, s{sO}, v{vC}")
    gather_bases(e)
    def landwait(mask):
        lq = e.uniq("ql")
        e.lab(lq)
        e(f"ds_read_b32 v{a_}, v{vLd} offset:{LAND}", "s_waitcnt lgkmcnt(0)", f"v_cmp_gt_u32 vcc, 5, v{a_}")
        e(f"s_and_b32 s{sO+5}, vcc_lo, 15", f"s_and_b32 s{sO+4}, s{sO+5}, {mask}", f"s_cbranch_scc0 {lq}_d")
        spin_tail(e, lq, 1)
        e.lab(lq + "_d")
    def rd(n):
        sg, s = n >> 3, n & 7
        so = (sg & 1) * SLOT
        xa, wa = (vXa + s, vWa) if sg < 2 else (vXb + s, vWb)
        f = fr + 8 * (n % NF)
        e(f"ds_read_b128 {vr(f,4)}, v{xa} offset:{so}")
        e(f"ds_read_b64_tr_b16 {vr(f+4,2)}, v{wa} offset:{so+s*2048}", f"ds_read_b64_tr_b16 {vr(f+6,2)}, v{wa} offset:{so+s*2048+512}")
    e("s_setprio 3")
    landwait(1)
    stamp(e, 16)
    for n in range(NF): rd(n)
    for n in range(32):
        f = fr + 8 * (n % NF)
        e(f"s_waitcnt lgkmcnt({min(3*(NF-1), 3*(31-n))})", f"{MF32} {vr(acc,16)}, {vr(f+4,4)}, {vr(f,4)}, {'0' if n == 0 else vr(acc,16)}")
        if n + NF < 32:
            if (n + NF) % 8 == 0:
                bit = 1 << ((n + NF) >> 3)
                sk = e.uniq("lok")
                e(f"s_and_b32 s{sO+4}, s{sO+5}, {bit}", f"s_cbranch_scc0 {sk}")
                landwait(bit)
                e.lab(sk)
            rd(n + NF)
    e(f"v_mov_b32 v{c_}, s{sT+6}", "s_nop 10")
    for r in range(8): e(f"v_pk_mul_f32 {vr(acc+2*r,2)}, {vr(acc+2*r,2)}, {vr(c_,2)} op_sel_hi:[1,0]")
    P = AO
    for j in range(8): e(f"v_cvt_pk_bf16_f32 v{P+j}, v{acc+2*j}, v{acc+2*j+1}")
    e(f"s_mov_b32 exec_lo, s{sT+11}", f"s_mov_b32 exec_hi, s{sT+11}")
    e(f"ds_write_b128 v{b_}, {vr(P,4)}", f"ds_write_b128 v{b_}, {vr(P+4,4)} offset:128")
    sig(e, vC, v1_, ACNT)
    e(f"buffer_store_dwordx4 {vr(P,4)}, v{vSt}, {sr(R_WS,4)}, s{sT+7} offen{SC}")
    e(f"buffer_store_dwordx4 {vr(P+4,4)}, v{vSt}, {sr(R_WS,4)}, s{sT+7} offen offset:128{SC}")
    mk_ck(e, P+8, P); mk_ck(e, P+9, P+4)
    e(f"buffer_store_dwordx2 {vr(P+8,2)}, v{T+4}, {sr(R_WS,4)}, s{sT+5} offen{SC}")
    if "qfirst" in OPT: sig(e, vC, v1_, QST)
    stamp(e, 2)
    lds_wait(e, vFa, S0+2, 1, SOK)
    lds_wait(e, vC, S0+2, 4, GCNT, sleep=2)
    if "sdelay" in OPT: lds_wait(e, vC, S0+2, 1, RDY1)
    stamp(e, 7)
    gather(e, 0, 8)
    sig(e, vC, v1_, GCNT)

def pk(S, j):
    d = S + (j if j < 4 else 4 + j)
    return f"v_cvt_pk_bf16_f32 v{d}, v{S+2*j}, v{S+2*j+1}"
def rdq(e):
    e(f"ds_read_b128 {vr(AQ,4)}, v{vQ16}")
    for k in range(4): e(f"ds_read_b128 {vr(ANM+4*k,4)}, v{vAN}")
def dump(e, kind):
    e(f"ds_write_b128 v{vT1}, {vr(AO,4)}", f"ds_write_b128 v{vT1}, {vr(AO+4,4)} offset:1024", f"ds_write_b32 v{vT0}, v{AO+8} offset:2048")
    e(f"ds_write_addtid_b32 v{vT1} offset:{0 if kind == 'F' else 1024}")
def advance(e):
    e(f"v_add_u32 v{vT1}, {OS_POS}, v{vT1}", f"v_add_u32 v{vT0}, {OS_POS}, v{vT0}")
def init_o(e, off):
    e(f"ds_read_b128 {vr(AO,4)}, v{vT1} offset:{off}", f"ds_read_b128 {vr(AO+4,4)}, v{vT1} offset:{off+1024}", f"ds_read_b32 v{AO+8}, v{vT0} offset:{off+2048}")

def att_block(e, mode):
    kind = "F" if mode[0] == "F" else "S"
    lo = 1 if kind == "F" else 0
    def prio(p):
        if mode != "B" and "noprio" not in OPT: e(f"s_setprio {p}")
        elif mode == "B" and "btog" in OPT: e(f"s_setprio {p}")
    for t in range(8):
        Sc, Sn = (S0, S1) if t % 2 == 0 else (S1, S0)
        tp, tn = (t - 1) % 8, (t + 1) % 8
        def X(*toks):
            for k in toks: e(f"v_exp_f32 v{Sc+k}, v{Sc+k}" if isinstance(k, int) else pk(Sc, int(k[1:])))
        c0 = "0" if (t == 1 and kind == "F") else vr(AO, 16)
        pv0 = f"{MF32} {vr(AO,16)}, {vr(AV+8*tp,4)}, {vr(Sn,4)}, {c0}"
        pv1 = f"{MF32} {vr(AO,16)}, {vr(AV+8*tp+4,4)}, {vr(Sn+8,4)}, {vr(AO,16)}"
        qk = f"{MF32} {vr(Sn,16)}, {vr(AK+4*tn,4)}, {vr(AQ,4)}, {vr(ANM,16)}"
        if t == 1 and kind == "S":
            X(0); e(pk(Sn, 7)); X(1, 2)
            e("s_waitcnt lgkmcnt(0)", pv0); X(3, "p0", 4, "p1")
            e(pv1); X(5, 6, "p2", 7)
            e(qk); prio(lo)
            X(8, "p3", 9, 10, "p4", 11, 12)
            prio(3)
            X("p5", 13, 14, "p6", 15)
            continue
        skip_pv = mode == "F0" and t == 0
        if mode == "F0" and t > 0: e(f"s_waitcnt vmcnt({max(0, 23 - 3*(t+1))})")
        if not skip_pv: e(pv0)
        X(0)
        if not skip_pv: e(pk(Sn, 7))
        X(1, 2)
        if not skip_pv: e(pv1)
        X(3, "p0", 4, "p1")
        if t == 7 and mode != "F0": e("s_waitcnt lgkmcnt(0)")
        if t == 7 and mode == "B": e(f"v_readfirstlane_b32 s{sPOLL}, v{Sn+4}")
        if skip_pv: e("s_waitcnt vmcnt(20)")
        if not (t == 7 and mode == "F0"): e(qk)
        prio(lo)
        X(5, 6, "p2", 7, 8, "p3")
        if t == 0 and mode != "F0":
            if mode == "S":
                dump(e, kind); init_o(e, OS_POS); advance(e)
            else:
                sk = e.uniq("nodump")
                e(f"s_cmp_eq_u32 s{sP}, {1 if mode == 'F' else 0}", f"s_cbranch_scc1 {sk}")
                dump(e, kind); advance(e)
                if mode == "B": e(f"s_add_u32 s{sExp}, s{sExp}, {OS_POS}")
                e.lab(sk)
                if mode == "B":
                    e(f"s_cmp_ge_u32 s{sPOLL}, s{sExp}", "s_cbranch_scc0 L_swait")
                    e.lab("L_swait_ret")
                    init_o(e, 0)
        X(9)
        if t == 6:
            if mode == "B":
                e(f"s_cmp_eq_u32 s{sP}, 0", "s_cbranch_scc1 L_yprep"); e.lab("L_yprep_ret")
            if mode == "F":
                e(f"s_cmp_eq_u32 s{sP}, 1", "s_cbranch_scc1 L_fprep"); e.lab("L_fprep_ret")
            e(f"v_add_u32 v{vQ16}, 1024, v{vQ16}", f"v_add_u32 v{vAN}, 512, v{vAN}")
            if mode != "F0": rdq(e)
            if mode == "B": e(f"ds_read_addtid_b32 v{Sc+4}")
        X(10, "p4", 11, 12)
        if t == 0 and mode == "S": e("s_wakeup")
        prio(3)
        X("p5", 13, 14, "p6", 15)

def att_finish(e, kind):
    e(f"{MF32} {vr(AO,16)}, {vr(AV+8*7,4)}, {vr(S1,4)}, {vr(AO,16)}", pk(S1, 7), "s_nop 1")
    e(f"{MF32} {vr(AO,16)}, {vr(AV+8*7+4,4)}, {vr(S1+8,4)}, {vr(AO,16)}", "s_nop 11")
    dump(e, kind)
    e("s_waitcnt lgkmcnt(0)", "s_wakeup")
def qk0(e):
    e(f"{MF32} {vr(S0,16)}, {vr(AK,4)}, {vr(AQ,4)}, {vr(ANM,16)}", "s_nop 11")

def f_att(e):
    e.lab("L_f2")
    e("s_setprio 3")
    gather_bases(e)
    e(f"s_lshl_b32 s{sO+4}, s{sI}, 12", f"s_add_u32 s{sO+4}, s{sO+4}, {F1}", f"v_lshl_add_u32 v{vFa}, v0, 7, s{sO+4}")
    e(f"s_lshl_b32 s{sO+4}, s{sRB}, 10", f"s_add_u32 s{sO+4}, s{sO+4}, {F1 - 32*256}", "s_mov_b32 exec_lo, 0", f"v_lshl_add_u32 v{vFa}, v0, 8, s{sO+4}")
    e(f"s_lshl_b32 s{sO+4}, s{sRB}, 11", f"s_add_u32 s{sO+4}, s{sO+4}, {KW}")
    stamp(e, 6)
    gpoll(e, vFa, S0, 0xffffffff, 0x3, sleep=1)
    if "qfirst" in OPT: lds_wait(e, vC, S0, 4, QST, sleep=0)
    stamp(e, 7)
    e(f"buffer_load_dwordx4 {vr(AO,4)}, v{vQ16}, {sr(R_WS,4)}, s{sO+4} offen{SC}")
    gather(e, 0, 8)
    sig(e, vC, v1_, GCNT)
    att_addrs(e)
    lds_wait(e, vC, S0, 4, ACNT, sleep=0)
    e(f"ds_read_b128 {vr(AQ,4)}, v{vQ16}")
    stamp(e, 8)
    e("s_waitcnt vmcnt(24) lgkmcnt(0)", f"{MF32} {vr(S0,16)}, {vr(AO,4)}, {vr(AQ,4)}, 0", "s_nop 11")
    negmax(e, S0, ANM)
    for r in range(1, 16): e(f"v_mov_b32 v{ANM+r}, v{ANM}")
    e(f"ds_write_b128 v{vAN}, {vr(ANM,4)}", "s_waitcnt vmcnt(23)")
    stamp(e, 3); cstamp(e, 13)
    qk0(e)
    att_block(e, "F0")
    att_finish(e, "F")
    advance(e)
    stamp(e, 20)
    e(f"v_mov_b32 v{S0}, {CNT}", f"s_mov_b32 s{sP}, 1")
    lds_wait(e, S0, S0+1, 1, RDY1, sleep=2)
    rdq(e)
    stamp(e, 21); cstamp(e, 10)
    e("s_waitcnt lgkmcnt(0)")
    qk0(e)
    e.L.append("    .p2align 3")
    e.lab("L_floop")
    att_block(e, "F")
    e(f"s_add_u32 s{sP}, s{sP}, 1", f"s_cmp_lt_u32 s{sP}, 8", "s_cbranch_scc1 L_floop")
    att_finish(e, "F")
    stamp(e, 4); cstamp(e, 11)
    e("s_branch L_f3")
    e.lab("L_fprep")
    e(f"v_mov_b32 v{S0+4}, {CNT}")
    lds_wait(e, S0+4, S0+5, 8, ACNT, sleep=2)
    e("s_branch L_fprep_ret")

def s_att(e):
    att_addrs(e)
    e(f"s_mov_b32 s{sP}, 0", f"v_mov_b32 v{S0}, m0", "s_setprio 0")
    stamp(e, 8)
    lds_wait(e, S0, S0+1, 1, sleep=6)
    rdq(e)
    e("s_waitcnt vmcnt(0) lgkmcnt(0)")
    stamp(e, 3); cstamp(e, 13)
    qk0(e)
    e.L.append("    .p2align 3")
    e.lab("L_bloop")
    att_block(e, "B")
    e(f"s_add_u32 s{sP}, s{sP}, 1", f"s_cmp_ge_u32 s{sP}, 8", "s_cbranch_scc1 L_sfin")
    e(f"s_cmp_lt_u32 s{sPOLL}, {OS_L + 7*OS_POS}", "s_cbranch_scc1 L_bloop")
    stamp(e, 5)
    e("s_setprio 3")
    e.L.append("    .p2align 3")
    e.lab("L_sloop")
    att_block(e, "S")
    e(f"s_add_u32 s{sP}, s{sP}, 1")
    if STAMPS:
        e(f"s_cmp_lg_u32 s{sP}, 4", "s_cbranch_scc1 L_sns"); stamp(e, 4); cstamp(e, 10); e.lab("L_sns")
    e(f"s_cmp_lt_u32 s{sP}, 8", "s_cbranch_scc1 L_sloop")
    e.lab("L_sfin")
    att_finish(e, "S")
    finish(e)
    e.lab("L_yprep")
    e(f"v_mov_b32 v{S0+4}, {CNT}")
    lds_wait(e, S0+4, S0+5, 1, RDY1, sleep=2)
    e("s_branch L_yprep_ret")
    e.lab("L_swait")
    e(f"v_mov_b32 v{S0+4}, m0")
    lds_wait(e, S0+4, S0+5, f"s{sExp}", sleep=4)
    e("s_branch L_swait_ret")

sBX, sBH, sBW, sKC, sBXL, sBHL, sBWL = sT, sT+1, sT+2, sT+3, sT+4, sT+5, sT+6
BA = 8
aq, ak, av, ahk, ahv, MC = 24, 40, 56, 72, 76, 80
MP = MC + 4
FR = 104
def b_prep(e):
    e.c("---- B prep")
    e("v_lshrrev_b32 v20, 3, v0", "v_and_b32 v21, 7, v0", "v_lshrrev_b32 v22, 1, v20", "v_xor_b32 v23, v21, v22", "v_lshlrev_b32 v23, 4, v23")
    e("v_lshl_add_u32 v1, v20, 11, v23", "v_xor_b32 v2, 64, v1")
    e(f"s_lshl_b32 s{sO}, s{sI}, 5", f"v_xor_b32 v3, s{sO}, v1")
    e("v_and_b32 v22, 1, v22", "v_lshlrev_b32 v22, 2, v22", "v_xor_b32 v23, v21, v22", "v_lshlrev_b32 v23, 4, v23")
    e("v_mul_u32_u24 v20, 3072, v20", "v_add_u32 v4, v20, v23", "v_xor_b32 v16, 32, v4")
    e(f"s_and_b32 s{sO}, s{sI}, 1", f"s_lshr_b32 s{sO+1}, s{sI}, 1", f"s_lshl_b32 s{sO+1}, s{sO+1}, 10")
    e(f"s_lshl_b32 s{sBX}, s{sRB}, 16", f"s_max_u32 s{sBH}, s{sBX}, 16384", f"s_sub_u32 s{sBH}, s{sBH}, 16384")
    e(f"s_add_u32 s{sBX}, s{sBX}, s{sO+1}", f"s_add_u32 s{sBH}, s{sBH}, s{sO+1}")
    e(f"s_lshl_b32 s{sO+1}, s{sO}, 15", f"s_add_u32 s{sBX}, s{sBX}, s{sO+1}")
    e(f"s_lshl_b32 s{sO+1}, s{sO}, 13", f"s_add_u32 s{sBH}, s{sBH}, s{sO+1}")
    e(f"s_mul_i32 s{sBW}, s{sI}, {16*3072}", f"s_lshl_b32 s{sO+1}, s{sCB}, 7", f"s_add_u32 s{sBW}, s{sBW}, s{sO+1}")
    e(f"s_lshl_b32 s{sKC}, s{sRB}, 1", f"s_add_u32 s{sKC}, s{sKC}, s{sCB}")
    e(f"s_lshl_b32 s{sBWL}, s{sI}, 11", f"s_add_u32 s{sBXL}, s{sBWL}, {RXO + 2048}", f"s_lshl_b32 s{sBHL}, s{sI}, 9", f"s_add_u32 s{sBHL}, s{sBHL}, {RXO}")
    e("v_and_b32 v20, 31, v0", "v_lshrrev_b32 v21, 5, v0", "v_bfe_u32 v22, v0, 1, 3", "v_xor_b32 v22, v22, v21", "v_lshlrev_b32 v22, 4, v22", "v_lshl_add_u32 v22, v20, 7, v22")
    e(f"s_lshl_b32 s{sO}, s{sO}, 12", f"s_add_u32 s{sO}, s{sO}, {RXO + 2048}", f"v_add_u32 v{BA}, s{sO}, v22")
    for s in range(1, 4): e(f"v_xor_b32 v{BA+s}, {s<<5}, v{BA}")
    e("v_bfe_u32 v20, v0, 2, 2", "v_and_b32 v23, 3, v0", "v_and_b32 v17, 2, v20", "v_or_b32 v18, v17, v21", "v_bfe_u32 v19, v0, 4, 1")
    e(f"s_and_b32 s{sO}, s{sI}, 2", f"v_or_b32 v19, s{sO}, v19", "v_xor_b32 v18, v18, v19")
    e("v_lshl_add_u32 v22, v21, 3, v20", "v_lshlrev_b32 v22, 7, v22", "v_lshl_add_u32 v22, v18, 5, v22", f"v_lshl_add_u32 v{BA+4}, v23, 3, v22")
    e("v_lshrrev_b32 v21, 4, v0", "v_bfe_u32 v22, v0, 1, 3", "v_xor_b32 v22, v22, v21", "v_lshlrev_b32 v22, 4, v22", "v_and_b32 v19, 15, v0")
    e("v_lshl_add_u32 v22, v19, 7, v22", f"v_add_u32 v{BA+5}, {RXO}, v22", f"v_xor_b32 v{BA+6}, 64, v{BA+5}")
    e("v_and_b32 v18, 1, v21", "v_or_b32 v18, v17, v18", f"v_xor_b32 v18, s{sI}, v18")
    e("v_lshl_add_u32 v22, v21, 3, v20", "v_lshlrev_b32 v22, 7, v22", "v_lshl_add_u32 v22, v18, 5, v22", f"v_lshl_add_u32 v{BA+7}, v23, 3, v22")
    e(f"v_mov_b32 v{MC}, {hex(f32bits(-1e30))}")
    for r in range(1, 20): e(f"v_mov_b32 v{MC+r}, v{MC}")
    def setm(reg, r, shift):
        m = 0
        for l in range(64):
            d = (l & 31) - ((r & 3) + 8 * (r >> 2) + 4 * (l >> 5)) + shift
            if 0 <= d <= 7: m |= 1 << l
        if m: e(f"s_mov_b32 exec_lo, {hex(m & 0xffffffff)}", f"s_mov_b32 exec_hi, {hex(m >> 32)}", f"v_mov_b32 v{reg}, 0")
    for r in range(16): setm(MC + r, r, 0)
    e(f"s_cmp_eq_u32 s{sRB}, 0", "s_cbranch_scc1 L_nomp")
    for r in range(12, 16): setm(MP + r, r, 32)
    e.lab("L_nomp")
    e("s_mov_b64 exec, -1")

def h_qprep(e):
    T, QK, SA, SB = 20, 104, 120, 136
    e.c("---- H: Q fragments + max images of positions 1+i, 5+i")
    e(f"s_add_u32 s{sO+1}, s{sI}, 1", f"s_cmp_lt_u32 s{sI}, s{sCB}", f"s_cselect_b32 s{sO+1}, s{sI}, s{sO+1}")
    e(f"s_add_u32 s{sO}, s{sI}, 4", f"s_add_u32 s{sO+2}, s{sI}, 5", f"s_cmp_lt_u32 s{sO}, s{sCB}", f"s_cselect_b32 s{sO+2}, s{sO}, s{sO+2}", f"s_min_u32 s{sO+2}, s{sO+2}, 7")
    e(f"v_and_b32 v{T}, 32, v0", f"v_and_b32 v{T+1}, 7, v0", f"v_lshl_add_u32 v{T}, v{T+1}, 2, v{T}", f"v_bfe_u32 v{T+1}, v0, 3, 2", f"v_add_lshl_u32 v18, v{T}, v{T+1}, 2")
    e(f"v_lshlrev_b32 v{T+2}, 4, v0", f"s_lshl_b32 s{sO+3}, s{sIDX}, 13")
    e(f"s_lshl_b32 s{sO+1}, s{sO+1}, 10", f"s_add_u32 s{sO+1}, s{sO+1}, s{sO+3}", f"s_lshl_b32 s{sO+2}, s{sO+2}, 10", f"s_add_u32 s{sO+2}, s{sO+2}, s{sO+3}")
    e(f"s_lshl_b32 s{sO+4}, s{sI}, 13", f"s_add_u32 s{sO+4}, s{sO+4}, {KW + 32768}")
    e(f"s_lshl_b32 s{sO+5}, s{sI}, 12", f"s_add_u32 s{sO+5}, s{sO+5}, {F1 + 16384}", f"v_lshl_add_u32 v{T+3}, v0, 7, s{sO+5}")
    e(f"s_lshl_b32 s{sO+5}, s{sI}, 2", f"v_add_u32 v17, s{sO+5}, v{vHC}")
    lds_wait(e, vHC, vHT, 5, LAND + 12, sleep=2)
    gpoll(e, T + 3, T + 1, 0xffffffff, 0, sleep=2)
    sig(e, 17, vH1, SOK)
    e(f"buffer_load_dwordx4 {vr(QK+8,4)}, v{T+2}, {sr(R_WS,4)}, s{sO+4} offen{SC}")
    lds_wait(e, vHC, vHT, 4, ACNT, sleep=2)
    e(f"s_lshl_b32 s{sO}, s{sI}, 10", f"s_add_u32 s{sO}, s{sO}, {QI_L+1024}", f"v_add_u32 v{T}, s{sO}, v{T+2}", f"v_and_b32 v{T+1}, 0x1ff, v{T+2}")
    e(f"s_lshl_b32 s{sO}, s{sI}, 9", f"s_add_u32 s{sO}, s{sO}, {NM_L+512}", f"v_add_u32 v{T+1}, s{sO}, v{T+1}")
    for z in range(2):
        e(f"s_lshr_b32 s{sO+3+z}, s{sO+1+z}, 2", f"s_add_u32 s{sO+3+z}, s{sO+3+z}, {CKQ}")
    def ldq(z):
        e(f"buffer_load_dwordx4 {vr(QK+4*z,4)}, v{T+2}, {sr(R_WS,4)}, s{sO+1+z} offen{SC}", f"buffer_load_dword v{QK+12+z}, v18, {sr(R_WS,4)}, s{sO+3+z} offen{SC}")
    lds_wait(e, vHC, vHT, 4, GCNT, sleep=1)
    ldq(0); ldq(1)
    for z in range(2):
        l = e.uniq("qt")
        if z == 1: e(f"s_cmp_eq_u32 s{sI}, 3", "s_cbranch_scc1 L_nop8")
        e(f"s_waitcnt vmcnt({2 - 2*z})", f"s_branch {l}_c")
        e.lab(l)
        ldq(z)
        e("s_waitcnt vmcnt(0)")
        e.lab(l + "_c")
        mk_ck(e, QK+14, QK+4*z)
        e(f"v_cmp_ne_u32 vcc, v{QK+14}, v{QK+12+z}", f"s_cbranch_vccz {l}_d")
        spin_tail(e, l, 4)
        e.lab(l + "_d")
        e(f"{MF32} {vr(SA,16)}, {vr(QK+8,4)}, {vr(QK+4*z,4)}, 0", f"ds_write_b128 v{T}, {vr(QK+4*z,4)} offset:{4096*z}", "s_nop 10")
        negmax(e, SA, 152 + 4*z)
        for r in range(1, 4): e(f"v_mov_b32 v{152+4*z+r}, v{152+4*z}")
        e(f"ds_write_b128 v{T+1}, {vr(152+4*z,4)} offset:{2048*z}")
        if z == 0:
            e(f"s_cmp_eq_u32 s{sI}, 0", "s_cselect_b32 exec_lo, 1, 0", "s_mov_b32 exec_hi, 0", f"ds_write_b32 v{vHC}, v{vH1} offset:{RDY1}", "s_mov_b64 exec, -1")
            stamp(e, 9)
    e.lab("L_nop8")
    sig(e, vHC, vH1, ACNT)
    stamp(e, 10)

class Lst(list):
    def __call__(self, *x): self.extend(x)
def b_dma_groups(j):
    ro = (j & 1) * RINGS
    G = [Lst() for _ in range(5)]
    g = G[0]
    g(f"s_add_u32 s{sO+1}, s{sKC}, {j}", f"s_and_b32 s{sO+1}, s{sO+1}, 7", f"s_lshl_b32 s{sO+2}, s{sO+1}, 7", f"s_mul_i32 s{sO+1}, s{sO+1}, {64*3072}")
    g(f"s_add_u32 s{sO+1}, s{sO+1}, s{sBW}", f"s_add_u32 s{sO+3}, s{sO+2}, s{sBX}")
    for u in range(2):
        g(f"s_add_u32 m0, s{sBXL}, {ro + u*1024}", f"s_add_u32 s{sO}, s{sO+3}, {u*16384}")
        dma(g, 1 + u, R_XB, sO, nt="bnt" in OPT)
    for p in range(3):
        g = G[1 + p]
        for u in range(2):
            g(f"s_add_u32 m0, s{sBWL}, {ro + p*8192 + u*1024}", f"s_add_u32 s{sO}, s{sO+1}, {p*1024 + u*8*3072}")
            dma(g, 4 if u == 0 else 16, R_WB, sO)
    g = G[4]
    g(f"s_add_u32 m0, s{sBHL}, {ro}", f"s_add_u32 s{sO}, s{sO+2}, s{sBH}", "s_mov_b32 exec_hi, 0")
    dma(g, 3, R_XB, sO)
    g("s_mov_b64 exec, -1")
    return G
def wo_groups(R, base):
    G = [Lst() for _ in range(4)]
    G[0](f"s_lshl_b32 s{sO+1}, s{sI}, 17", f"s_lshl_b32 s{sO+2}, s{sHP}, 6", f"s_add_u32 s{sO+1}, s{sO+1}, s{sO+2}", f"s_lshl_b32 s{sO+2}, s{sI}, 13")
    for u in range(8):
        g = G[u >> 1]
        g(f"s_add_u32 m0, s{sO+2}, {base + u*1024}", f"s_add_u32 s{sO}, s{sO+1}, {u*16384}")
        dma(g, 20, R, sO)
    return G
def wo_voff(e):
    e("v_lshrrev_b32 v20, 2, v0", "v_and_b32 v21, 3, v0", "v_lshlrev_b32 v21, 4, v21", "v_lshl_add_u32 v20, v20, 10, v21")

def b_proj(e):
    D, XB_, HX_, WB_, NBUF = 4, FR, FR + 8, FR + 12, 12
    jobs = []
    def wreads(buf, areg, off):
        return [f"ds_read_b64_tr_b16 {vr(buf,2)}, v{areg} offset:{off}", f"ds_read_b64_tr_b16 {vr(buf+2,2)}, v{areg} offset:{off+512}"]
    for j in range(8):
        ro = (j & 1) * RINGS
        for s in range(4):
            x = XB_ + 4 * (s & 1)
            for p, acc in enumerate((aq, ak, av)):
                w = WB_ + 4 * (len(jobs) % NBUF)
                rds = ([f"ds_read_b128 {vr(x,4)}, v{BA+s} offset:{ro}"] if p == 0 else []) + wreads(w, BA + 4, ro + p*8192 + s*2048)
                A_, B_ = (w, x) if p < 2 else (x, w)
                jobs.append((rds, f"{MF32} {vr(acc,16)}, {vr(A_,4)}, {vr(B_,4)}, {'0' if (j == 0 and s == 0) else vr(acc,16)}"))
            s2, p = s >> 1, 1 + (s & 1)
            w = WB_ + 4 * (len(jobs) % NBUF)
            rds = ([f"ds_read_b128 {vr(HX_,4)}, v{BA+5+s2} offset:{ro}"] if p == 1 else []) + wreads(w, BA + 7, ro + p*8192 + s2*4096)
            acc = ahk if p == 1 else ahv
            A_, B_ = (w, HX_) if p == 1 else (HX_, w)
            jobs.append((rds, f"{MF16} {vr(acc,4)}, {vr(A_,4)}, {vr(B_,4)}, {'0' if (j == 0 and s2 == 0) else vr(acc,4)}"))
    q = []
    nxt = [0]
    def issue(upto):
        while nxt[0] < min(upto, 128):
            if "bnord" not in OPT or nxt[0] < 16:
                e(*jobs[nxt[0]][0]); q.extend([nxt[0]] * len(jobs[nxt[0]][0]))
            nxt[0] += 1
    e("s_waitcnt vmcnt(9)")
    sig(e, vHC, vH1, HCNT)
    lds_wait(e, vHC, vHT, 8, HCNT)
    stamp(e, 16)
    e(f"s_setprio {HM}")
    issue(D)
    G = []
    PA = 13
    for n in range(128):
        j, r = n >> 4, n & 15
        if n in q:
            last = len(q) - 1 - q[::-1].index(n)
            e(f"s_waitcnt lgkmcnt({len(q) - 1 - last})")
            del q[:last + 1]
        e(jobs[n][1] if "bnomf" not in OPT else "s_sleep 1")
        lim = 16 * (j + 1)
        if r < PA or j == 7: issue(min(n + 1 + D, lim))
        if r == 15 - D and j < 7:
            e("s_waitcnt vmcnt(0)")
            sig(e, vHC, vH1, HCNT); q.append(-1)
        if r == PA and j < 7:
            if "bwake" in OPT:
                e("s_waitcnt lgkmcnt(0)", "s_wakeup")
            lds_wait(e, vHC, vHT, 4 * (j + 3), HCNT, sleep=BSLEEP); del q[:]
            if j == 3: stamp(e, 17)
            G = b_dma_groups(j + 2) if j < 6 else wo_groups(R_WOB, WOB_L)
        if r >= PA and j < 7: issue(n + 1 + D - (1 if r < 15 else 0))
        for _ in range(2):
            if G: e(*G.pop(0))
    e("s_setprio 3")

def b_attn(e):
    Qf, Kf, Vf, Kp, Vp = 104, 112, 120, 128, 136
    PB = 140
    M = 152
    e.c("---- local attention")
    e("v_bfe_u32 v9, v0, 3, 1", "v_lshlrev_b32 v10, 10, v9", "v_bfe_u32 v9, v0, 4, 1", "v_lshl_add_u32 v10, v9, 7, v10")
    e("v_and_b32 v11, 7, v0", "v_lshl_add_u32 v10, v11, 4, v10", "v_lshrrev_b32 v12, 5, v0", "v_lshl_add_u32 v10, v12, 3, v10")
    e(f"s_and_b32 s{sO}, s{sI}, 2", f"s_lshl_b32 s{sO}, s{sO}, 10", f"s_add_u32 s{sO}, s{sO}, {EX_L}", f"s_and_b32 s{sO+1}, s{sI}, 1")
    e(f"s_lshl_b32 s{sO+2}, s{sO+1}, 8", f"s_add_u32 s{sO+2}, s{sO+2}, s{sO}", f"v_add_u32 v10, s{sO+2}, v10")
    e("v_lshlrev_b32 v13, 10, v12", "v_lshl_add_u32 v13, v9, 8, v13", "v_and_b32 v14, 15, v0", "v_lshl_add_u32 v13, v14, 3, v13")
    e(f"s_lshl_b32 s{sO+2}, s{sO+1}, 7", f"s_add_u32 s{sO+2}, s{sO+2}, s{sO}", f"v_add_u32 v13, s{sO+2}, v13")
    for j in range(4): e(f"v_cvt_pk_bf16_f32 v{16+j}, v{ahk+2*j}, v{ahk+2*j+1}")
    e("ds_write_b64 v10, v[16:17]", "ds_write_b64 v13, v[18:19] offset:512")
    sig(e, vHC, vH1, HCNT)
    e(f"s_lshl_b32 s{sO}, s{sI}, 10", f"s_add_u32 s{sO}, s{sO}, {EX_L}")
    e("v_lshl_add_u32 v11, v12, 3, v11", f"v_lshl_add_u32 v11, v11, 4, s{sO}", f"v_lshl_add_u32 v14, v0, 3, s{sO}")
    for j in range(8): e(f"v_cvt_pk_bf16_f32 v{Kf+j}, v{ak+2*j}, v{ak+2*j+1}")
    for j in range(8): e(f"v_cvt_pk_bf16_f32 v{Qf+j}, v{aq+2*j}, v{aq+2*j+1}")
    Sc0, Sc1, Sp = 24, 40, 8 + 56
    lds_wait(e, vHC, vHT, 40, HCNT)
    e(f"ds_read_b128 {vr(Kp,4)}, v11", f"ds_read_b128 {vr(Kp+4,4)}, v11 offset:256", f"ds_read_b64 {vr(Vp+2,2)}, v14 offset:512")
    e(f"s_setprio {HM}")
    e(f"{MF32} {vr(Sc0,16)}, {vr(Kf,4)}, {vr(Qf,4)}, {vr(MC,16)}", f"{MF32} {vr(Sc1,16)}, {vr(Kf+4,4)}, {vr(Qf+4,4)}, {vr(MC,16)}")
    e("s_setprio 3")
    for g in wo_groups(R_WOA, WOA_L): e(*g)
    for j in range(8): e(f"v_cvt_pk_bf16_f32 v{Vf+j}, v{av+2*j}, v{av+2*j+1}")
    for r in (Vp, Vp+1): e(f"v_mov_b32 v{r}, 0")
    for r in range(12): e(f"v_mov_b32 v{PB+r}, 0")
    e(f"s_lshl_b32 s{sO+1}, s{sRB}, 1", f"s_and_b32 s{sO+2}, s{sI}, 1", f"s_add_u32 s{sO+1}, s{sO+1}, s{sO+2}", f"s_lshl_b32 s{sO+1}, s{sO+1}, 15")
    e(f"s_lshl_b32 s{sO+2}, s{sCB}, 2", f"s_and_b32 s{sO+3}, s{sI}, 2", f"s_add_u32 s{sO+2}, s{sO+2}, s{sO+3}", f"s_lshl_b32 s{sO+2}, s{sO+2}, 10")
    e(f"s_add_u32 s{sO+1}, s{sO+1}, s{sO+2}", f"s_add_u32 s{sO+1}, s{sO+1}, {OB}")
    e("v_lshlrev_b32 v9, 4, v0", f"v_mov_b32 v22, {hex(f32bits(CSC))}", "s_waitcnt lgkmcnt(0)")
    for hd in range(2):
        Sc = (Sc0, Sc1)[hd]
        e(f"s_setprio {HM}", f"{MF32} {vr(Sp,16)}, {vr(Kp+4*hd,4)}, {vr(Qf+4*hd,4)}, {vr(MP,16)}", "s_setprio 3")
        for k in range(4): e(f"v_max_f32 v{M+k}, v{Sc+k}, v{Sc+8+k}")
        e(f"v_max3_f32 v10, v{M}, v{M+1}, v{M+2}", "s_nop 5")
        for k in range(4): e(f"v_max3_f32 v{M+4+k}, v{Sc+4+k}, v{Sc+12+k}, v{Sp+12+k}")
        e(f"v_max3_f32 v10, v10, v{M+3}, v{M+4}", f"v_max3_f32 v10, v10, v{M+5}, v{M+6}", f"v_max_f32 v10, v10, v{M+7}")
        halfmax(e, 10)
        e("v_mul_f32 v10, v22, v10")
        for k in range(4): e(f"v_pk_fma_f32 {vr(M+2*k,2)}, {vr(M+2*k,2)}, v[22:23], v[10:11] op_sel_hi:[1,0,0] neg_lo:[0,0,1] neg_hi:[0,0,1]")
        for k in range(8): e(f"v_exp_f32 v{M+k}, v{M+k}")
        def cv(mask, dst, src):
            e(f"s_mov_b32 exec_lo, {hex(mask)}", f"s_mov_b32 exec_hi, {hex(mask)}")
            e(f"v_cvt_pk_bf16_f32 v{dst}, v{src}, v{src+1}", f"v_cvt_pk_bf16_f32 v{dst+1}, v{src+2}, v{src+3}")
        cv(0x0000ffff, PB, M); cv(0xffff0000, PB+4, M)
        cv(0x00ffff00, PB+2, M+4); cv(0xff000000, PB+6, M+4); cv(0x000000ff, PB+10, M+4)
        e("s_mov_b64 exec, -1")
        e(f"v_pk_add_f32 {vr(M,2)}, {vr(M,2)}, {vr(M+2,2)}", f"v_pk_add_f32 {vr(M+4,2)}, {vr(M+4,2)}, {vr(M+6,2)}")
        e(f"s_setprio {HM}")
        e(f"{MF32} {vr(Sc,16)}, {vr(Vf,4)}, {vr(PB,4)}, 0", f"{MF32} {vr(Sc,16)}, {vr(Vf+4,4)}, {vr(PB+4,4)}, {vr(Sc,16)}", f"{MF32} {vr(Sc,16)}, {vr(Vp,4)}, {vr(PB+8,4)}, {vr(Sc,16)}")
        e("s_setprio 3")
        e(f"v_pk_add_f32 {vr(M,2)}, {vr(M,2)}, {vr(M+4,2)}", f"v_add_f32 v10, v{M}, v{M+1}", "v_mov_b32 v11, v10", "s_nop 1")
        e("v_permlane32_swap_b32 v10, v11", "s_nop 0", "v_add_f32 v10, v10, v11", "v_rcp_f32 v10, v10", "s_nop 2")
        O = Sc + 8 * hd
        for k in range(4): e(f"v_pk_mul_f32 {vr(O+2*k,2)}, {vr(O+2*k,2)}, v[10:11] op_sel_hi:[1,0]")
        o = 12 + 4 * hd
        for j in range(4): e(f"v_cvt_pk_bf16_f32 v{o+j}, v{O+2*j}, v{O+2*j+1}")
        e(f"buffer_store_dwordx4 {vr(o,4)}, v9, {sr(R_WS,4)}, s{sO+1} offen offset:{1024*hd}{SC}")

vL16, vWt, vSt, vFl, vPo, vOC, vEx = 8, 9, 10, 11, 1, 4, 30
GACC, GO, GW = 12, 32, 148
sTK, sOut = sT, sT+1
def out_prep(e, rowshift):
    e(f"v_lshlrev_b32 v{vL16}, 4, v0", "v_lshrrev_b32 v30, 5, v0", "v_bfe_u32 v31, v0, 2, 2", "v_lshl_add_u32 v31, v30, 2, v31", f"v_lshlrev_b32 v{vWt}, 6, v31")
    e("v_and_b32 v31, 1, v0", f"v_lshl_add_u32 v{vWt}, v31, 5, v{vWt}", "v_bfe_u32 v31, v0, 1, 1", f"v_lshl_add_u32 v{vWt}, v31, 3, v{vWt}")
    e("v_bfe_u32 v31, v0, 4, 1", f"v_lshl_add_u32 v{vWt}, v31, 4, v{vWt}")
    e(f"v_and_b32 v{vSt}, 31, v0", f"v_lshlrev_b32 v{vSt}, {rowshift}, v{vSt}", f"v_lshl_add_u32 v{vSt}, v30, 5, v{vSt}")
    e(f"v_lshlrev_b32 v{vPo}, 9, v30", "v_bfe_u32 v31, v0, 3, 2", f"v_lshl_add_u32 v{vPo}, v31, 10, v{vPo}", "v_and_b32 v31, 7, v0", f"v_lshl_add_u32 v{vPo}, v31, 4, v{vPo}")
    e(f"v_and_b32 v{vOC}, 3, v0", f"v_lshlrev_b32 v{vOC}, 8, v{vOC}", f"v_add_u32 v{vOC}, {PR_L + 1024}, v{vOC}")
    e(f"s_lshl_b32 s{sTK}, s{sTB}, 2", f"s_add_u32 s{sTK}, s{sTK}, s{sI}")

def pry_wait(e, lim, sleep=6):
    l = e.uniq("hp")
    e.lab(l)
    e(f"ds_read_b32 v{vHT}, v{vOC}", "s_waitcnt lgkmcnt(0)", f"v_cmp_gt_u32 vcc, {lim}, v{vHT}", f"s_cbranch_vccz {l}_d")
    spin_tail(e, l, sleep)
    e.lab(l + "_d")

pub_sites = []
def pub(e, add, keep=False):
    P = GO
    site = len(pub_sites); pub_sites.append(site)
    e(f"s_add_u32 s{sO+4}, s{sI}, {add}", f"s_mul_i32 s{sO+2}, s{sO+4}, {OS_POS}", f"s_add_u32 s{sO+2}, s{sO+2}, {OS_L}")
    e(f"v_add_u32 v28, s{sO+2}, v{vL16}", "v_and_b32 v29, 31, v0", f"v_lshl_add_u32 v29, v29, 2, s{sO+2}")
    e(f"s_sub_u32 s{sO}, s{sO+4}, 1", f"s_cmp_lt_u32 s{sO}, s{sCB}", f"s_cselect_b32 s{sO}, s{sO}, s{sO+4}")
    e(f"s_cmp_eq_u32 s{sO+4}, 0", f"s_cselect_b32 s{sO}, s{sCB}, s{sO}", f"s_lshl_b32 s{sO}, s{sO}, 12")
    e(f"s_lshr_b32 s{sO+1}, s{sIDX}, 2", f"s_lshl_b32 s{sO+1}, s{sO+1}, 15", f"s_add_u32 s{sO}, s{sO}, s{sO+1}")
    e(f"s_and_b32 s{sO+1}, s{sIDX}, 3", f"s_lshl_b32 s{sO+1}, s{sO+1}, 7", f"s_add_u32 s{sO+3}, s{sO}, s{sO+1}", f"s_add_u32 s{sO+3}, s{sO+3}, {OA}")
    e(f"s_lshr_b32 s{sO+5}, s{sO}, 2", f"s_add_u32 s{sO+5}, s{sO+5}, s{sO+1}", f"s_add_u32 s{sO+5}, s{sO+5}, {CKA}")
    e(f"v_and_b32 v2, 0x3ff, v{vPo}", f"v_lshrrev_b32 v3, 10, v{vPo}", "v_lshl_add_u32 v2, v3, 2, v2")
    e(f"s_mov_b32 s{sRET}, {site}", f"v_mov_b32 v31, {hex(f32bits(LMAX))}")
    pry_wait(e, f"s{sO+2}")
    e(f"ds_read2st64_b32 {vr(P+32,2)}, v29 offset0:8 offset1:17", f"ds_read2st64_b32 {vr(P+34,2)}, v29 offset0:26 offset1:35")
    for a in range(2):
        for s in range(4): e(f"ds_read_b128 {vr(P+8*s+4*a,4)}, v28 offset:{s*OS_PAIR + a*1024}")
    e("s_waitcnt lgkmcnt(8)", f"v_pk_add_f32 {vr(P+32,2)}, {vr(P+32,2)}, {vr(P+34,2)}", f"v_add_f32 v{P+34}, v{P+32}, v{P+33}", f"v_rcp_f32 v{P+32}, v{P+34}")
    for a in range(2):
        e(f"s_waitcnt lgkmcnt({4-4*a})")
        for k in range(2):
            a_, b_, c_, d_ = (vr(P + 8*s + 4*a + 2*k, 2) for s in range(4))
            e(f"v_pk_add_f32 {a_}, {a_}, {b_}", f"v_pk_add_f32 {c_}, {c_}, {d_}", f"v_pk_add_f32 {a_}, {a_}, {c_}")
    e(f"v_pk_mul_f32 {vr(P+8,2)}, {vr(P,2)}, 0")
    for k in range(1, 4): e(f"v_pk_fma_f32 {vr(P+8,2)}, {vr(P+2*k,2)}, 0, {vr(P+8,2)}")
    e(f"v_add_f32 v{P+8}, v{P+8}, v{P+9}", f"v_add_f32 v{P+8}, v{P+8}, v{P+34}")
    e(f"v_cmp_nlt_f32 vcc, v{P+8}, v31" if "forcefb" not in OPT else "v_cmp_eq_u32 vcc, v0, v0", "s_cbranch_vccnz L_exact")
    e.lab(f"L_exact_ret{site}")
    for k in range(4): e(f"v_pk_mul_f32 {vr(P+2*k,2)}, {vr(P+2*k,2)}, {vr(P+32,2)} op_sel_hi:[1,0]")
    for k in range(4): e(f"v_cvt_pk_bf16_f32 v{164+k}, v{P+2*k}, v{P+2*k+1}")
    e(f"buffer_store_dwordx4 v[164:167], v{vPo}, {sr(R_WS,4)}, s{sO+3} offen{SC}")
    mk_ck(e, 3, 164)
    e(f"buffer_store_dword v3, v2, {sr(R_WS,4)}, s{sO+5} offen{SC}")
    if True:
        e(f"s_lshl_b32 s{sO}, s{sIDX}, 3", f"s_add_u32 s{sO}, s{sO}, s{sO+4}", f"s_lshl_b32 s{sO}, s{sO}, 7", f"s_add_u32 s{sO}, s{sO}, {F4}")
        set_flag(e, sO, 28, 29)

def exact(e):
    O, Q, Kr, V, S, NB, m, vo = GO, GO+36, GO+40, GO+44, GO+52, GO+68, GO+84, GO+86
    sK, sV = sO, sO+1
    e.lab("L_exact")
    e(f"s_mov_b32 s{sT+4}, 1")
    e(f"s_lshl_b32 s{sK}, s{sO+4}, 10", f"s_add_u32 s{sK}, s{sK}, {QI_L}", f"v_add_u32 v{m}, s{sK}, v{vL16}", f"ds_read_b128 {vr(Q,4)}, v{m}")
    e(f"v_and_b32 v{m}, 31, v0", f"v_cmp_eq_u32 vcc, 16, v{m}", f"v_mov_b32 v{m+1}, 0x3f803f80", f"v_lshrrev_b32 v{vo}, 5, v0", f"v_cndmask_b32 v{V}, 0, v{m+1}, vcc")
    for r in range(1, 8): e(f"v_mov_b32 v{V+r}, v{V}")
    e(f"v_lshlrev_b32 v{vo}, 8, v{vo}", f"v_and_b32 v{m}, 15, v0", f"v_lshl_add_u32 v{vo}, v{m}, 4, v{vo}")
    for r in range(16): e(f"v_mov_b32 v{O+r}, 0")
    e(f"v_mov_b32 v{m}, 0xff800000", f"s_mov_b32 s{sK}, {KW}", "s_waitcnt lgkmcnt(0)")
    e.lab("L_ex1")
    e(f"buffer_load_dwordx4 {vr(Kr,4)}, v{vL16}, {sr(R_WS,4)}, s{sK} offen{SC}", "s_waitcnt vmcnt(0)")
    e(f"{MF32} {vr(S,16)}, {vr(Kr,4)}, {vr(Q,4)}, 0", "s_nop 11")
    for k in range(0, 16, 2): e(f"v_max3_f32 v{m}, v{m}, v{S+k}, v{S+k+1}")
    e(f"s_add_u32 s{sK}, s{sK}, 1024", f"s_cmp_lt_u32 s{sK}, {KW + 65536}", "s_cbranch_scc1 L_ex1")
    halfmax(e, m)
    for r in range(16): e(f"v_sub_f32 v{NB+r}, 0, v{m}")
    e(f"s_mov_b32 s{sK}, {KW}", f"s_mov_b32 s{sV}, {VW}")
    e.lab("L_ex2")
    e(f"buffer_load_dwordx4 {vr(Kr,4)}, v{vL16}, {sr(R_WS,4)}, s{sK} offen{SC}", "s_mov_b32 exec_lo, 0xffff", "s_mov_b32 exec_hi, 0xffff")
    e(f"buffer_load_dwordx4 {vr(V,4)}, v{vo}, {sr(R_WS,4)}, s{sV} offen{SC}", f"buffer_load_dwordx4 {vr(V+4,4)}, v{vo}, {sr(R_WS,4)}, s{sV} offen offset:512{SC}")
    e("s_mov_b64 exec, -1", "s_waitcnt vmcnt(0)")
    e(f"{MF32} {vr(S,16)}, {vr(Kr,4)}, {vr(Q,4)}, {vr(NB,16)}", "s_nop 11")
    for k in range(16): e(f"v_exp_f32 v{S+k}, v{S+k}")
    e("s_nop 0")
    for j in range(8): e(pk(S, j))
    e("s_nop 1", f"{MF32} {vr(O,16)}, {vr(V,4)}, {vr(S,4)}, {vr(O,16)}", f"{MF32} {vr(O,16)}, {vr(V+4,4)}, {vr(S+8,4)}, {vr(O,16)}")
    e(f"s_add_u32 s{sK}, s{sK}, 1024", f"s_add_u32 s{sV}, s{sV}, 1024", f"s_cmp_lt_u32 s{sK}, {KW + 65536}", "s_cbranch_scc1 L_ex2")
    e("s_nop 11", f"v_mov_b32 v{m}, v{O+8}", "s_nop 1", f"v_permlane32_swap_b32 v{O+8}, v{m}", "s_nop 0", f"v_rcp_f32 v{GO+32}, v{O+8}", "s_nop 0")
    for s in pub_sites[:-1]: e(f"s_cmp_eq_u32 s{sRET}, {s}", f"s_cbranch_scc1 L_exact_ret{s}")
    e(f"s_branch L_exact_ret{pub_sites[-1]}")

def gemm_b(e):
    NB, n = 28, 32
    oreg = lambda k: GO + 36 + 4 * k if k < 20 else GO + 4 * ((k - 20) % 9)
    e(f"s_lshl_b32 s{sT+2}, s{sTK}, 15", f"s_add_u32 s{sT+2}, s{sT+2}, {OB}")
    def ldo(k):
        if k % 4 == 0: e(f"s_add_u32 s{sT+3}, s{sT+2}, {(k>>2)*4096}")
        e(f"buffer_load_dwordx4 {vr(oreg(k),4)}, v{vL16}, {sr(R_WS,4)}, s{sT+3} offen offset:{(k&3)*1024}{SC}")
    def rdw(k):
        b = GW + 4*(k & 3)
        e(f"ds_read_b64_tr_b16 {vr(b,2)}, v{vWt} offset:{WOB_L+k*1024}", f"ds_read_b64_tr_b16 {vr(b+2,2)}, v{vWt} offset:{WOB_L+k*1024+512}")
    for k in range(20, 29): ldo(k)
    for k in range(20): ldo(k)
    e(f"s_add_u32 s{sT+3}, s{sT+2}, {7*4096}")
    for k in range(20, 23): rdw(k)
    e(f"s_setprio {HM}")
    for k in range(20, 32):
        if k + 3 < 32: rdw(k + 3)
        vm = (28 - k) + 20 + min(k - 20, 3) if k < 29 else 31 - k
        e(f"s_waitcnt vmcnt({vm}) lgkmcnt({min(6, 2*(31-k))})")
        e(f"{MF32} {vr(GACC,16)}, {vr(GW+4*(k&3),4)}, {vr(oreg(k),4)}, {'0' if k == 20 else vr(GACC,16)}")
        if k < 23: ldo(k + 9)
    e("s_setprio 3")
    stamp(e, 8)
    e(f"s_mov_b32 s{sT+4}, 0")
    pub(e, 4, keep=True)
    e(f"s_cmp_eq_u32 s{sT+4}, 0", "s_cbranch_scc1 L_hnp")
    for k in range(20): ldo(k)
    e("s_waitcnt vmcnt(0)")
    e.lab("L_hnp")
    stamp(e, 18)
    pry_wait(e, OS_L + 7*OS_POS)
    e("s_setprio 1")
    for k in range(3): rdw(k)
    for k in range(20):
        if k + 3 < 20: rdw(k + 3)
        e(f"s_waitcnt lgkmcnt({min(6, 2*(19-k))})", f"{MF32} {vr(GACC,16)}, {vr(GW+4*(k&3),4)}, {vr(oreg(k),4)}, {vr(GACC,16)}")

def fetch_t(e, b0, b1, base, CK, sleep, between=None):
    nb = b1 - b0
    l = e.uniq("gt")
    e(f"s_lshl_b32 s{sO+2}, s{sTK}, 15", f"s_add_u32 s{sO+2}, s{sO+2}, {OA + b0*4096}")
    e(f"s_lshl_b32 s{sO+3}, s{sTK}, 13", f"s_add_u32 s{sO+3}, s{sO+3}, {CKA + b0*1024}")
    def loads():
        for b in range(nb):
            e(f"buffer_load_dwordx4 {vr(CK+4*b,4)}, v{vL16}, {sr(R_WS,4)}, s{sO+3} offen offset:{b*1024}{SC}")
            e(f"s_add_u32 s{sO}, s{sO+2}, {b*4096}")
            for h in range(4): e(f"buffer_load_dwordx4 {vr(base[b]+4*h,4)}, v{vL16}, {sr(R_WS,4)}, s{sO} offen offset:{h*1024}{SC}")
    if between:
        loads(); between(); e(f"s_branch {l}_v")
    e.lab(l)
    loads()
    e.lab(l + "_v")
    for k in range(4 * nb):
        e(f"s_waitcnt vmcnt({5*nb - (5*(k>>2) + (k&3) + 2)})")
        chk(e, 28, 29, base[k>>2] + 4*(k&3), CK + k, k == 0)
    e("v_cmp_ne_u32 vcc, 0, v28", f"s_cbranch_vccz {l}_d")
    spin_tail(e, l, sleep)
    e.lab(l + "_d")

def mul_a(e, k0, k1, base, pre=True):
    n = k1 - k0
    def rdw(k):
        b = GW + 4*(k & 3)
        e(f"ds_read_b64_tr_b16 {vr(b,2)}, v30 offset:{(k0+k)*1024}", f"ds_read_b64_tr_b16 {vr(b+2,2)}, v30 offset:{(k0+k)*1024+512}")
    if pre:
        for k in range(3): rdw(k)
        return
    for k in range(n):
        if k + 3 < n: rdw(k + 3)
        e(f"s_waitcnt lgkmcnt({min(6, 2*(n-1-k))})")
        e(f"{MF32} {vr(GACC,16)}, {vr(GW+4*(k&3),4)}, {vr(base[k>>2]+4*(k&3),4)}, {'0' if k0 + k == 0 else vr(GACC,16)}")

def out_store(e, off):
    e("s_nop 11")
    for j in range(8): e(f"v_cvt_pk_bf16_f32 v{GW+j}, v{GACC+2*j}, v{GACC+2*j+1}")
    e(f"buffer_store_dwordx4 {vr(GW,4)}, v{vSt}, {sr(R_OUT,4)}, s{sOut} offen offset:{off}", f"buffer_store_dwordx4 {vr(GW+4,4)}, v{vSt}, {sr(R_OUT,4)}, s{sOut} offen offset:{off+16}")

def h_main(e):
    e.lab("L_h2")
    srds(e, (R_XB, R_WB, R_WOB, R_WOA, R_OUT))
    b_prep(e)
    h_qprep(e)
    if "noH" in OPT: finish(e)
    wo_voff(e)
    lds_wait(e, vHC, vHT, 8, GCNT, sleep=2)
    for j in range(2):
        for g in b_dma_groups(j): e(*g)
    stamp(e, 4)
    b_proj(e)
    stamp(e, 5)
    b_attn(e)
    e(f"s_lshl_b32 s{sO+5}, s{sIDX}, 2", f"s_add_u32 s{sO+5}, s{sO+5}, s{sI}", f"s_lshl_b32 s{sO+5}, s{sO+5}, 7", f"s_add_u32 s{sO+5}, s{sO+5}, {F3}")
    out_prep(e, 12)
    e(f"s_lshr_b32 s{sO+2}, s{sTK}, 1", f"s_lshl_b32 s{sOut}, s{sO+2}, 17", f"s_and_b32 s{sO+3}, s{sI}, 1", f"s_lshl_b32 s{sO}, s{sO+3}, 11", f"s_add_u32 s{sOut}, s{sOut}, s{sO}")
    e(f"s_lshl_b32 s{sO}, s{sHP}, 6", f"s_add_u32 s{sOut}, s{sOut}, s{sO}")
    e(f"s_lshl_b32 s{sO+2}, s{sO+2}, 12", f"s_lshl_b32 s{sO+3}, s{sO+3}, 7", f"s_add_u32 s{sO+2}, s{sO+2}, s{sO+3}", f"s_add_u32 s{sO+2}, s{sO+2}, {F3}")
    e(f"v_lshl_add_u32 v{vFl}, v0, 8, s{sO+2}")
    e("s_waitcnt vmcnt(0)")
    set_flag(e, sO+5, 2, 3)
    sig(e, vHC, vH1, HCNT)
    stamp(e, 6)
    gpoll(e, vFl, vHT, 0xffff, 0, sleep=F3SLEEP)
    stamp(e, 7)
    lds_wait(e, vHC, vHT, 44, HCNT)
    gemm_b(e)
    out_store(e, 1024)
    finish(e)

def f_out(e):
    e.lab("L_f3")
    e.c("---- output stage A")
    if "noH" in OPT or "noF" in OPT: finish(e)
    srds(e, (R_OUT,))
    lane_id(e)
    out_prep(e, 11)
    e(f"s_lshl_b32 s{sOut}, s{sTK}, 16", f"s_lshl_b32 s{sO}, s{sHP}, 6", f"s_add_u32 s{sOut}, s{sOut}, s{sO}")
    e(f"v_mov_b32 v{vHC}, {CNT}")
    pub(e, 0)
    stamp(e, 5)
    HB = [GO + 36 + 16*b for b in range(5)]
    e(f"s_lshl_b32 s{sO+2}, s{sTK}, 12", f"s_add_u32 s{sO+2}, s{sO+2}, {F4}", f"v_lshl_add_u32 v{vFl}, v0, 7, s{sO+2}")
    e(f"v_add_u32 v30, {WOA_L}, v{vWt}")
    pry_wait(e, OS_L + 4*OS_POS)
    gpoll(e, vFl, vHT, 0x0f0f0f0f, 0, sleep=6)
    stamp(e, 16)
    fetch_t(e, 0, 3, HB, GO, 4)
    stamp(e, 17)
    lds_wait(e, vHC, vHT, 44, HCNT, sleep=8)
    pry_wait(e, OS_L + 5*OS_POS)
    gpoll(e, vFl, vHT, 0x30303030, 0, sleep=6)
    stamp(e, 18)
    fetch_t(e, 3, 5, HB[3:], GO, 2)
    mul_a(e, 0, 20, HB)
    pry_wait(e, OS_L + 7*OS_POS)
    e("s_setprio 2")
    mul_a(e, 0, 20, HB, pre=False)
    stamp(e, 19)
    mul_a(e, 20, 32, HB)
    gpoll(e, vFl, vHT, 0xc0c0c0c0, 0, sleep=1)
    stamp(e, 9)
    fetch_t(e, 5, 8, HB, GO, 0)
    mul_a(e, 20, 32, HB, pre=False)
    out_store(e, 0)
    e(f"s_or_b32 s{sO}, s{sWG}, s{sI}", "s_cbranch_scc1 L_noep", f"s_mov_b32 s{sO}, {EPOCH_W}")
    set_flag(e, sO, 2, 3)
    e.lab("L_noep")
    finish(e)

def gen():
    e = Em()
    e.L.append(f".globl {KN}\n.p2align 8\n.type {KN},@function\n{KN}:")
    entry(e)
    h_kv(e)
    f_load(e)
    s_qproj(e)
    s_att(e)
    f_att(e)
    h_main(e)
    f_out(e)
    e.lab("L_codeend")
    exact(e)
    e.lab("L_end")
    e("s_endpgm")
    head = f"""; generated by work/gen11.py
; @launch grid=(256,1,1) block=(768,1,1) lds={LDS_BYTES}
.amdgcn_target "amdgcn-amd-amdhsa--gfx950"
.text
"""
    kd = f""".section .rodata,"a"
.p2align 6
.amdhsa_kernel {KN}
  .amdhsa_next_free_vgpr 168
  .amdhsa_next_free_sgpr 102
  .amdhsa_accum_offset 168
  .amdhsa_group_segment_fixed_size 0
  .amdhsa_kernarg_size 88
  .amdhsa_user_sgpr_count 2
  .amdhsa_user_sgpr_kernarg_segment_ptr 1
  .amdhsa_system_sgpr_workgroup_id_x 1
.end_amdhsa_kernel
"""
    return head + e.text() + kd

if __name__ == "__main__":
    args = [a for a in sys.argv[1:] if not a.startswith("-")]
    OPT.update(a[1:] for a in sys.argv[1:] if a.startswith("-"))
    if "stamps" in OPT: STAMPS = True
    for o in OPT:
        if o.startswith("moff"): MOFF = float(o[4:])
        if o.startswith("bd"): BDEPTH = int(o[2:])
        if o.startswith("hm"): HM = int(o[2:])
        if o.startswith("bs"): BSLEEP = int(o[2:])
    out = args[0] if args else f"cdna_kernels/{NAME}.s"
    open(out, "w").write(gen())
    print("wrote", out)
```

```python
import sys, math, struct

NAME = "concat_heads__grouped_kv_mqa__sliding_local_dilated__prompt"
KN = NAME + "_kernel"
def f32bits(x): return struct.unpack("<I", struct.pack("<f", x))[0]

class Em:
    def __init__(self): self.L = []; self.n = 0
    def __call__(self, *ss):
        for s in ss:
            if s.startswith("s_nop "):
                self.L += ["    s_nop 0"] * (int(s.split()[1]) + 1)
            else: self.L.append("    " + s)
    def lab(self, s): self.L.append(s + ":")
    def uniq(self, p): self.n += 1; return f"L_{p}_{self.n}"
    def c(self, s): self.L.append("    ; " + s)
    def text(self): return "\n".join(self.L) + "\n"

def vr(b, n): return f"v[{b}:{b+n-1}]" if n > 1 else f"v{b}"
def sr(b, n): return f"s[{b}:{b+n-1}]" if n > 1 else f"s{b}"

sWG, sW = 2, 3
R_XA, R_WQ, R_WKV, R_WOA, R_XB, R_WB, R_WOB, R_OUT, R_WS = 32, 36, 40, 44, 48, 52, 56, 60, 64
sRB, sCB, sTB, sHP, sSB, sKIND, sRET, sI = 72, 73, 74, 75, 76, 77, 78, 79
sT = 80
sO = 92
sPOLL, sEP, sSPIN, sIDX = 98, 99, 100, 101
SPIN_MAX = 60000
QW, KW, VW, EPOCH_W, OB, OA, FL = 0, 2 << 20, (2 << 20) + 65536, 3 << 20, 4 << 20, 6 << 20, 8 << 20
F1, F2, F3, F4 = FL, FL + (64 << 10), FL + (256 << 10), FL + (512 << 10)
WS_BYTES = 16 << 20
K = 1024
LDS_BYTES = 160 * K
SLOT = 32 * K
WKV_L = 128 * K
QI_L, NM_L, CNT, PR_L = 144 * K, 152 * K, 156 * K + 512, 157 * K
HCNT, ACNT, GCNT, KVF, RDY1, LAND, SOK = 0, 4, 8, 12, 16, 32, 48
RINGS = 34 * K
RXO = 24 * K
OS_L, OS_POS, OS_PAIR = 72 * K, 9216, 2304
EX_L = 68 * K
WOA_L, WOB_L = 34 * K, 0
BDEPTH, HM, F3SLEEP, WIN = 4, 2, 16, 12
CSC = 0.25 * math.log2(math.e)
MOFF = 96.0
LMAX = 2.0 ** 120
MF32 = "v_mfma_f32_32x32x16_bf16"
MF16 = "v_mfma_f32_16x16x32_bf16"
STAMPS = False
OPT = set()
ST = 12 << 20
SC = " sc1"

def stamp(e, k):
    if STAMPS: e("s_memrealtime s[30:31]", "s_waitcnt lgkmcnt(0)", f"s_mov_b32 s{8+k}, s30")
def cstamp(e, k):
    if STAMPS: e("s_memtime s[30:31]", "s_waitcnt lgkmcnt(0)", f"s_mov_b32 s{8+k}, s30")
def stamp_init(e):
    if not STAMPS: return
    for k in range(1, 22): e(f"s_mov_b32 s{8+k}, 0")
    e("s_mov_b32 s8, s6", "s_mov_b32 s20, s4")
def finish(e):
    if STAMPS:
        stamp(e, 15); cstamp(e, 14)
        e(f"s_mul_i32 s30, s{sWG}, 12", f"s_add_u32 s30, s30, s{sW}", "s_lshl_b32 s30, s30, 7", f"s_add_u32 s30, s30, {ST}")
        e("s_mov_b64 exec, 1", "v_mov_b32 v0, 0")
        for k in range(22): e(f"v_mov_b32 v{4+k}, s{8+k}")
        for k in range(6): e(f"buffer_store_dwordx4 {vr(4+4*k,4)}, v0, {sr(R_WS,4)}, s30 offen offset:{16*k}")
    e("s_endpgm")

def dma(e, voff, R, soff, nt=False):
    e(f"buffer_load_dwordx4 v{voff}, {sr(R,4)}, s{soff} offen{' nt' if nt else ''} lds")
def spin_tail(e, l, sleep):
    e(f"s_sleep {sleep}", f"s_add_u32 s{sSPIN}, s{sSPIN}, 1", f"s_cmp_lt_u32 s{sSPIN}, {SPIN_MAX}", f"s_cbranch_scc1 {l}")
def lds_wait(e, vaddr, vtmp, target, off=0, sleep=1):
    l = e.uniq("poll")
    e.lab(l)
    e(f"ds_read_b32 v{vtmp}, v{vaddr} offset:{off}", "s_waitcnt lgkmcnt(0)", f"v_readfirstlane_b32 s{sPOLL}, v{vtmp}")
    e(f"s_cmp_ge_u32 s{sPOLL}, {target}", f"s_cbranch_scc1 {l}_d")
    spin_tail(e, l, sleep)
    e.lab(l + "_d")
def sig(e, vaddr, vone, off):
    e("s_mov_b64 exec, 1", f"ds_add_u32 v{vaddr}, v{vone} offset:{off}", "s_mov_b64 exec, -1")
def load_epoch(e):
    e(f"s_mov_b32 s{sEP}, {EPOCH_W}", f"s_load_dword s{sEP}, s[{R_WS}:{R_WS+1}], s{sEP}")
def get_epoch(e):
    e("s_waitcnt lgkmcnt(0)", f"s_add_u32 s{sEP}, s{sEP}, 1")
def gpoll(e, vaddr, vtmp, lo, hi, sleep=1):
    l = e.uniq("gp")
    e(f"s_mov_b32 exec_lo, {hex(lo)}", f"s_mov_b32 exec_hi, {hex(hi)}")
    e.lab(l)
    e(f"buffer_load_dword v{vtmp}, v{vaddr}, {sr(R_WS,4)}, 0 offen sc1", "s_waitcnt vmcnt(0)")
    e(f"v_cmp_ne_u32 vcc, s{sEP}, v{vtmp}", "s_and_b64 exec, exec, vcc", f"s_cbranch_execz {l}_d")
    spin_tail(e, l, sleep)
    e.lab(l + "_d")
    e("s_mov_b64 exec, -1")
def set_flag(e, soff, va, vd):
    e(f"v_mov_b32 v{va}, 0", f"v_mov_b32 v{vd}, s{sEP}", "s_mov_b64 exec, 1")
    e(f"buffer_store_dword v{vd}, v{va}, {sr(R_WS,4)}, s{soff} offen sc1", "s_mov_b64 exec, -1")
def lane_id(e):
    e("v_mbcnt_lo_u32_b32 v0, -1, 0", "v_mbcnt_hi_u32_b32 v0, -1, v0")
def xa_voff(e, b, t):
    e(f"v_lshrrev_b32 v{t}, 4, v0", f"v_and_b32 v{b}, 15, v0", f"v_xor_b32 v{b}, v{b}, v{t}", f"v_lshlrev_b32 v{b}, 4, v{b}")
    e(f"v_lshl_add_u32 v{b}, v{t}, 10, v{b}")
def halfmax(e, m):
    e(f"v_mov_b32 v{m+1}, v{m}", "s_nop 1", f"v_permlane32_swap_b32 v{m}, v{m+1}", "s_nop 0", f"v_max_f32 v{m}, v{m}, v{m+1}")
def negmax(e, S, m):
    e(f"v_max3_f32 v{m}, v{S}, v{S+1}, v{S+2}")
    for k in range(3, 15, 2): e(f"v_max3_f32 v{m}, v{m}, v{S+k}, v{S+k+1}")
    e(f"v_max_f32 v{m}, v{m}, v{S+15}")
    halfmax(e, m)
    e(f"v_sub_f32 v{m}, {hex(f32bits(-MOFF))}, v{m}")

def entry(e):
    e(f"s_cmp_ge_u32 s{sWG}, 256", "s_cbranch_scc1 L_end")
    e(f"s_and_b32 s{sO}, s{sWG}, 8", f"s_add_u32 s{sO}, s{sO}, 16")
    for R, off in ((R_XA, 0), (R_WQ, 8), (R_WS, 80)): e(f"s_load_dwordx2 s[{R}:{R+1}], s[0:1], {off}")
    e(f"s_load_dwordx2 s[{R_WKV}:{R_WKV+1}], s[0:1], s{sO}")
    if STAMPS: e("s_memrealtime s[6:7]", "s_memtime s[4:5]")
    e("v_lshrrev_b32 v1, 6, v0", "v_and_b32 v0, 63, v0")
    e(f"s_lshr_b32 s{sO+1}, s{sWG}, 3")
    e(f"v_readfirstlane_b32 s{sW}, v1")
    e(f"s_and_b32 s{sO}, s{sWG}, 7", f"s_lshl_b32 s{sIDX}, s{sO}, 5", f"s_add_u32 s{sIDX}, s{sIDX}, s{sO+1}")
    e(f"s_and_b32 s{sI}, s{sW}, 3", f"s_cmp_lt_u32 s{sW}, 8", "s_cbranch_scc1 L_nopf")
    e(f"s_getpc_b64 s[{sO+2}:{sO+3}]")
    e.lab("L_pc")
    e(f"s_lshl_b32 s{sO}, s{sO+1}, 2", f"s_add_u32 s{sO}, s{sO}, s{sI}", f"s_and_b32 s{sO}, s{sO}, 31", f"s_lshl_b32 s{sO}, s{sO}, 10")
    e(f"v_lshl_add_u32 v2, v0, 7, s{sO}", f"v_min_u32 v2, L_codeend-L_pc-4, v2", "s_mov_b64 exec, 0xff")
    e(f"global_load_dword v167, v2, s[{sO+2}:{sO+3}]", "s_mov_b64 exec, -1")
    e.lab("L_nopf")
    e(f"s_lshr_b32 s{sRB}, s{sIDX}, 3", f"s_and_b32 s{sCB}, s{sIDX}, 7", f"s_lshr_b32 s{sTB}, s{sIDX}, 4", f"s_and_b32 s{sHP}, s{sIDX}, 15")
    e(f"s_lshr_b32 s{sSB}, s{sCB}, 1", f"s_and_b32 s{sKIND}, s{sCB}, 1", f"s_mov_b32 s{sSPIN}, 0")
    for R, n in ((R_XA, 2 << 20), (R_WKV, 16384), (R_WQ, 512 << 10), (R_WS, WS_BYTES)):
        e(f"s_mov_b32 s{R+2}, {hex(n)}", f"s_mov_b32 s{R+3}, 0x20000")
    e(f"s_cmp_ge_u32 s{sW}, 8", "s_cbranch_scc1 L_q", f"s_cmp_ge_u32 s{sW}, 4", "s_cbranch_scc1 L_aux")
def srds(e, lst):
    size = {R_WOA: 512 << 10, R_XB: 2 << 20, R_WB: 1536 << 10, R_WOB: 512 << 10, R_OUT: 4 << 20}
    slot = {R_WOA: 32, R_XB: 40, R_WB: 48, R_WOB: 56, R_OUT: 64}
    for R in lst: e(f"s_load_dwordx2 s[{R}:{R+1}], s[0:1], {slot[R]}", f"s_mov_b32 s{R+2}, {hex(size[R])}", f"s_mov_b32 s{R+3}, 0x20000")

vHC, vH1, vHT = 5, 6, 7
def h_kv(e):
    fx, fw, acc = 32, 48, 24
    e.c("---- H: K/V projection")
    e("s_setprio 3")
    xa_voff(e, 8, 12)
    for z in range(1, 4): e(f"v_xor_b32 v{8+z}, {z<<6}, v8")
    e("v_lshlrev_b32 v12, 4, v0")
    e(f"s_add_u32 s{sO+3}, s{sRB}, s{sI}", f"s_and_b32 s{sO+3}, s{sO+3}, 3")
    e(f"s_lshr_b32 s{sO+1}, s{sIDX}, 1", f"s_lshl_b32 s{sO+1}, s{sO+1}, 14", f"s_lshl_b32 s{sO+2}, s{sO+3}, 8", f"s_add_u32 s{sO+1}, s{sO+1}, s{sO+2}")
    e(f"s_lshl_b32 s{sT}, s{sI}, 15", f"s_lshl_b32 s{sO+2}, s{sSB}, 12", f"s_add_u32 s{sT}, s{sT}, s{sO+2}")
    e(f"s_lshl_b32 s{sT+1}, s{sI}, 12", f"s_add_u32 s{sT+1}, s{sT+1}, {WKV_L}", f"s_lshl_b32 s{sO+3}, s{sO+3}, 12")
    e("s_waitcnt lgkmcnt(0)")
    for z in range(4):
        e(f"s_add_u32 m0, s{sT}, {z*1024}", f"s_add_u32 s{sO}, s{sO+1}, {z*4096}")
        dma(e, 8 + z, R_XA, sO, nt=True)
        e(f"s_add_u32 m0, s{sT+1}, {z*1024}", f"s_add_u32 s{sO}, s{sO+3}, {z*1024}")
        dma(e, 12, R_WKV, sO)
    load_epoch(e)
    e("s_barrier")
    stamp_init(e)
    e(f"v_mov_b32 v{vHC}, {CNT}", f"v_mov_b32 v{vH1}, 1")
    e("v_and_b32 v2, 15, v0", "v_lshrrev_b32 v3, 4, v0", "v_xor_b32 v4, v2, v3", "v_lshlrev_b32 v4, 4, v4", "v_lshl_add_u32 v4, v2, 8, v4")
    e(f"v_add_u32 v8, s{sT}, v4")
    for q in range(1, 4): e(f"v_xor_b32 v{8+q}, {q<<6}, v8")
    e("v_bfe_u32 v4, v0, 2, 2", "v_lshl_add_u32 v4, v3, 3, v4", "v_lshlrev_b32 v4, 5, v4", "v_and_b32 v13, 3, v0", "v_lshl_add_u32 v4, v13, 3, v4")
    e(f"v_add_u32 v13, s{sT+1}, v4", f"v_add_u32 v14, s{sT+1}, v12")
    e(f"s_lshl_b32 s{sO}, s{sI}, 2", f"v_add_u32 v15, s{sO}, v{vHC}")
    e(f"s_lshl_b32 s{sO}, s{sRB}, 11")
    e(f"s_lshr_b32 s{sO+1}, s{sSB}, 1", f"s_lshl_b32 s{sO+1}, s{sO+1}, 10", f"s_and_b32 s{sO+2}, s{sSB}, 1", f"s_lshl_b32 s{sO+2}, s{sO+2}, 8")
    e(f"s_add_u32 s{sO+1}, s{sO+1}, s{sO+2}", f"s_add_u32 s{sO+1}, s{sO+1}, {KW}")
    e(f"s_lshl_b32 s{sO+2}, s{sSB}, 9", f"s_add_u32 s{sO+2}, s{sO+2}, {VW}")
    e(f"s_cmp_eq_u32 s{sKIND}, 0", f"s_cselect_b32 s{sO+1}, s{sO+1}, s{sO+2}", f"s_cselect_b32 s{sO+2}, 9, 8", f"s_add_u32 s{sO+4}, s{sO}, s{sO+1}")
    e("v_and_b32 v4, 1, v3", f"v_lshlrev_b32 v4, s{sO+2}, v4", "v_lshl_add_u32 v20, v2, 4, v4")
    e(f"s_lshl_b32 s{sO+5}, s{sIDX}, 7", f"s_add_u32 s{sO+5}, s{sO+5}, {F1}")
    get_epoch(e)
    e("s_waitcnt vmcnt(0)")
    stamp(e, 1)
    for q in range(4):
        e(f"ds_read_b128 {vr(fx+4*q,4)}, v{8+q}")
        e(f"ds_read_b64_tr_b16 {vr(fw+4*q,2)}, v13 offset:{q*1024}", f"ds_read_b64_tr_b16 {vr(fw+4*q+2,2)}, v13 offset:{q*1024+128}")
    sig(e, 15, vH1, LAND)
    e(f"s_cmp_lg_u32 s{sKIND}, 0", "s_cbranch_scc1 L_kv_v")
    for kind in range(2):
        for q in range(4):
            a, b = (fw, fx) if kind == 0 else (fx, fw)
            e(f"s_waitcnt lgkmcnt({10-3*q})", f"{MF16} {vr(acc,4)}, {vr(a+4*q,4)}, {vr(b+4*q,4)}, {'0' if q == 0 else vr(acc,4)}")
        if kind == 0:
            e("s_branch L_kv_d"); e.lab("L_kv_v")
    e.lab("L_kv_d")
    e(f"s_cmp_eq_u32 s{sI}, 0", "s_cbranch_scc1 L_kv_0", "s_nop 5")
    e(f"ds_write_b128 v14, {vr(acc,4)}")
    sig(e, vHC, vH1, HCNT)
    e("s_branch L_h2")
    e.lab("L_kv_0")
    lds_wait(e, vHC, vHT, 3, HCNT, sleep=0)
    for k in range(1, 4): e(f"ds_read_b128 {vr(fx+4*k,4)}, v14 offset:{k*4096}")
    e("s_waitcnt lgkmcnt(1)")
    for k in range(2): e(f"v_pk_add_f32 {vr(fx+4+2*k,2)}, {vr(fx+4+2*k,2)}, {vr(fx+8+2*k,2)}")
    e("s_waitcnt lgkmcnt(0)")
    for k in range(2): e(f"v_pk_add_f32 {vr(acc+2*k,2)}, {vr(acc+2*k,2)}, {vr(fx+12+2*k,2)}")
    for k in range(2): e(f"v_pk_add_f32 {vr(acc+2*k,2)}, {vr(acc+2*k,2)}, {vr(fx+4+2*k,2)}")
    e(f"v_cvt_pk_bf16_f32 v28, v{acc}, v{acc+1}", f"v_cvt_pk_bf16_f32 v29, v{acc+2}, v{acc+3}", "s_nop 1")
    e("v_permlane32_swap_b32 v28, v30", "v_permlane32_swap_b32 v29, v31", "s_mov_b32 exec_hi, 0", "s_nop 0")
    e(f"buffer_store_dwordx4 v[28:31], v20, {sr(R_WS,4)}, s{sO+4} offen{SC}", "s_mov_b64 exec, -1")
    if "gate1" in OPT: sig(e, vHC, vH1, KVF)
    sig(e, vHC, vH1, HCNT)
    stamp(e, 2)
    e("s_waitcnt vmcnt(0)")
    set_flag(e, sO+5, 2, 3)
    if "gate2" in OPT: sig(e, vHC, vH1, KVF)
    stamp(e, 3)
    e("s_branch L_h2")

vT0, vQ16, vAN, vT1, AQ, AK, AV, S0, S1, AO, ANM = 0, 1, 2, 3, 4, 8, 40, 104, 120, 136, 152
vVo, vFa, vC, v1_ = S1, S1+1, S1+2, S1+3
def zero_pr(e):
    e(f"s_lshl_b32 s{sO}, s{sW}, 8", f"s_add_u32 m0, s{sO}, {PR_L - 1024}", "v_mov_b32 v2, 0", "ds_write_addtid_b32 v2")
def f_load(e):
    e.lab("L_aux")
    e.c("---- F: bulk loads")
    zero_pr(e)
    xa_voff(e, 8, 12)
    e(f"s_lshl_b32 s{sO}, s{sI}, 6", f"v_xor_b32 v8, s{sO}, v8")
    e("v_lshrrev_b32 v2, 3, v0", "v_bfe_u32 v3, v0, 4, 1", "v_lshlrev_b32 v3, 2, v3", "v_and_b32 v4, 7, v0", "v_xor_b32 v4, v4, v3")
    e("v_lshlrev_b32 v4, 4, v4", "v_lshl_add_u32 v12, v2, 10, v4")
    e(f"s_lshl_b32 s{sT}, s{sI}, 12")
    e(f"s_lshl_b32 s{sT+1}, s{sI}, 15", f"s_lshl_b32 s{sO}, s{sCB}, 7", f"s_add_u32 s{sT+1}, s{sT+1}, s{sO}")
    e(f"s_lshl_b32 s{sT+2}, s{sRB}, 16", f"s_add_u32 s{sT+2}, s{sT+2}, s{sT}", f"s_lshl_b32 s{sT+9}, s{sI}, 10")
    for du in range(1, 4):
        e(f"s_add_u32 s{sO}, s{sSB}, {du}", f"s_and_b32 s{sO}, s{sO}, 3")
        e(f"s_lshl_b32 s{sT+2+du}, s{sO}, 14", f"s_add_u32 s{sT+2+du}, s{sT+2+du}, s{sT+2}")
        e(f"s_lshl_b32 s{sT+5+du}, s{sO}, 12", f"s_add_u32 s{sT+5+du}, s{sT+5+du}, s{sT+9}")
    e(f"v_mov_b32 v{vC}, {CNT}", f"v_mov_b32 v{v1_}, 1")
    e("s_waitcnt lgkmcnt(0)")
    load_epoch(e)
    e("s_barrier")
    def chunk(sg):
        e(f"s_add_u32 s{sO+1}, s{sRB}, {sg}", f"s_and_b32 s{sO+1}, s{sO+1}, 3", f"s_lshl_b32 s{sO+2}, s{sO+1}, 8")
        e(f"s_lshl_b32 s{sO+1}, s{sO+1}, 17", f"s_add_u32 s{sO+1}, s{sO+1}, s{sT+1}")
        for i in range(4):
            e(f"s_add_u32 m0, s{sT}, {sg*SLOT + 16384 + i*1024}", f"s_add_u32 s{sO}, s{sO+1}, {i*8192}")
            dma(e, 12, R_WQ, sO)
        for du in range(1, 4):
            e(f"s_add_u32 m0, s{sT+5+du}, {sg*SLOT}", f"s_add_u32 s{sO}, s{sT+2+du}, s{sO+2}")
            dma(e, 8, R_XA, sO, nt=True)
    gated = "gate1" in OPT or "gate2" in OPT
    nb = 2 if gated else 4
    for sg in range(nb): chunk(sg)
    stamp_init(e)
    if gated:
        att_consts(e)
        get_epoch(e)
        lds_wait(e, vC, S0, 1, KVF, sleep=1)
        chunk(2)
        e("s_waitcnt vmcnt(14)"); sig(e, vC, v1_, LAND)
        chunk(3)
        stamp(e, 1)
        for sg in range(1, 4):
            e(f"s_waitcnt vmcnt({21-7*sg})"); sig(e, vC, v1_, LAND + 4*sg)
    else:
        stamp(e, 1)
        for sg in range(4):
            e(f"s_waitcnt vmcnt({21-7*sg})"); sig(e, vC, v1_, LAND + 4*sg)
        att_consts(e)
        get_epoch(e)
    stamp(e, 2)
    e("s_branch L_f2")

sAW, sP, sExp = sT+8, sT+9, sT+10
def att_consts(e):
    e(f"v_and_b32 v{S0}, 31, v0", f"v_cmp_eq_u32 vcc, 16, v{S0}", f"v_mov_b32 v{S0+1}, 0x3f803f80", f"v_lshlrev_b32 v{vQ16}, 4, v0")
    e(f"v_cndmask_b32 v{AV}, 0, v{S0+1}, vcc")
    for r in range(1, 64): e(f"v_mov_b32 v{AV+r}, v{AV}")
    e(f"v_lshlrev_b32 v{vAN}, 4, v{S0}", f"v_add_u32 v{vAN}, {NM_L}, v{vAN}")
    e(f"v_lshrrev_b32 v{vVo}, 5, v0", f"v_lshlrev_b32 v{vVo}, 8, v{vVo}", f"v_and_b32 v{S0+2}, 15, v0", f"v_lshl_add_u32 v{vVo}, v{S0+2}, 4, v{vVo}")
def gather_bases(e):
    e(f"s_sub_u32 s{sAW}, s{sW}, 4", f"s_lshl_b32 s{sO+2}, s{sAW}, 13")
    e(f"s_add_u32 s{sO}, s{sO+2}, {KW}", f"s_add_u32 s{sO+1}, s{sO+2}, {VW}", f"s_add_u32 s{sO+2}, s{sO}, 4096", f"s_add_u32 s{sO+3}, s{sO+1}, 4096")
def gather(e, t0, t1):
    for t in range(t0, t1):
        e(f"buffer_load_dwordx4 {vr(AK+4*t,4)}, v{vQ16}, {sr(R_WS,4)}, s{sO+2*(t>>2)} offen offset:{(t&3)*1024}{SC}")
        e("s_mov_b32 exec_lo, 0xffff", "s_mov_b32 exec_hi, 0xffff")
        for f in (2*t, 2*t+1):
            e(f"buffer_load_dwordx4 {vr(AV+4*f,4)}, v{vVo}, {sr(R_WS,4)}, s{sO+1+2*(t>>2)} offen offset:{(f&7)*512}{SC}")
        e("s_mov_b64 exec, -1")
def att_addrs(e):
    e(f"s_mul_i32 s{sExp}, s{sI}, {OS_PAIR}", f"s_add_u32 s{sExp}, s{sExp}, {OS_L}")
    e(f"v_add_u32 v{vT1}, s{sExp}, v{vQ16}", f"v_lshl_add_u32 v{vT0}, v0, 2, s{sExp}", f"v_add_u32 v{vQ16}, {QI_L}, v{vQ16}")
    e(f"s_lshl_b32 s{sO+4}, s{sI}, 8", f"s_add_u32 m0, s{sO+4}, {PR_L}")

def s_qproj(e):
    vXa, vWa, vXb, vWb, vSt, vLd = 8, 16, 17, 25, 26, 27
    acc, fr, NF, T = 104, 124, 5, 28
    a_, b_, c_, d_ = T, T+1, T+2, T+3
    e.lab("L_q")
    e.c("---- S: Q projection")
    zero_pr(e)
    e(f"s_mov_b32 m0, {CNT}", "s_nop 0", "ds_write_addtid_b32 v2", "s_waitcnt lgkmcnt(0)")
    load_epoch(e)
    e("s_barrier")
    stamp_init(e)
    e(f"v_mov_b32 v{vC}, {CNT}", f"v_mov_b32 v{v1_}, 1")
    att_consts(e)
    e(f"s_and_b32 s{sO}, s{sI}, 1", f"s_lshl_b32 s{sO}, s{sO}, 13")
    e(f"v_and_b32 v{a_}, 31, v0", f"v_lshrrev_b32 v{b_}, 5, v0", f"v_and_b32 v{c_}, 15, v0", f"v_xor_b32 v{c_}, v{c_}, v{b_}")
    e(f"v_lshl_add_u32 v{d_}, v{a_}, 8, s{sO}", f"v_lshl_add_u32 v{vXa}, v{c_}, 4, v{d_}")
    for s in range(1, 8): e(f"v_xor_b32 v{vXa+s}, {s<<5}, v{vXa}")
    e(f"v_bfe_u32 v{a_}, v0, 2, 2", f"v_lshl_add_u32 v{c_}, v{b_}, 3, v{a_}", f"v_lshlrev_b32 v{c_}, 7, v{c_}", f"v_lshrrev_b32 v{a_}, 1, v{a_}")
    e(f"s_lshr_b32 s{sO}, s{sI}, 1", f"v_xor_b32 v{a_}, s{sO}, v{a_}", f"v_lshl_add_u32 v{c_}, v{a_}, 6, v{c_}")
    e(f"v_bfe_u32 v{a_}, v0, 4, 1", f"v_lshl_add_u32 v{c_}, v{a_}, 5, v{c_}", f"v_and_b32 v{a_}, 3, v0", f"v_lshl_add_u32 v{c_}, v{a_}, 3, v{c_}")
    e(f"v_add_u32 v{vWa}, 16384, v{c_}", f"v_lshl_add_u32 v{vLd}, v{a_}, 2, v{vC}")
    e(f"v_bfe_u32 v{a_}, v0, 3, 2", f"v_lshlrev_b32 v{a_}, 13, v{a_}", f"v_lshl_add_u32 v{a_}, v{b_}, 9, v{a_}")
    e(f"v_and_b32 v{c_}, 7, v0", f"v_lshl_add_u32 v{vSt}, v{c_}, 4, v{a_}")
    for s in range(9): e(f"v_add_u32 v{vXb+s}, 65536, v{vXa+s}")
    get_epoch(e)
    e(f"s_mov_b32 s{sT+6}, {hex(f32bits(CSC))}")
    e(f"s_and_b32 s{sO+1}, s{sI}, 1", f"s_lshl_b32 s{sO+2}, s{sRB}, 1", f"s_add_u32 s{sO+1}, s{sO+1}, s{sO+2}", f"s_lshl_b32 s{sO+1}, s{sO+1}, 15")
    e(f"s_lshl_b32 s{sO+2}, s{sCB}, 10", f"s_add_u32 s{sO+1}, s{sO+1}, s{sO+2}")
    e(f"s_lshr_b32 s{sO+2}, s{sI}, 1", f"s_lshl_b32 s{sO+2}, s{sO+2}, 8", f"s_add_u32 s{sT+7}, s{sO+1}, s{sO+2}", f"s_add_u32 s{sO+2}, s{sO+2}, {QI_L}")
    e(f"v_and_b32 v{b_}, 0x3ff, v{vSt}", f"v_add_u32 v{b_}, s{sO+2}, v{b_}")
    e(f"s_lshl_b32 s{sT+5}, s{sIDX}, 2", f"s_add_u32 s{sT+5}, s{sT+5}, s{sI}", f"s_lshl_b32 s{sT+5}, s{sT+5}, 7", f"s_add_u32 s{sT+5}, s{sT+5}, {F2}")
    e(f"s_and_b32 s{sO}, s{sCB}, 3", f"s_lshl_b32 s{sO}, s{sO}, 3", f"s_lshl_b32 s{sT+11}, 0xff, s{sO}")
    e(f"s_lshr_b32 s{sO}, s{sCB}, 2", f"s_and_b32 s{sO+1}, s{sI}, 1", f"s_cmp_eq_u32 s{sO}, s{sO+1}", f"s_cselect_b32 s{sT+11}, s{sT+11}, 0")
    e(f"s_lshl_b32 s{sO}, s{sI}, 2", f"v_add_u32 v{vFa}, s{sO}, v{vC}")
    gather_bases(e)
    def landwait(mask):
        lq = e.uniq("ql")
        e.lab(lq)
        e(f"ds_read_b32 v{a_}, v{vLd} offset:{LAND}", "s_waitcnt lgkmcnt(0)", f"v_cmp_gt_u32 vcc, 5, v{a_}")
        e(f"s_and_b32 s{sO+5}, vcc_lo, 15", f"s_and_b32 s{sO+4}, s{sO+5}, {mask}", f"s_cbranch_scc0 {lq}_d")
        spin_tail(e, lq, 1)
        e.lab(lq + "_d")
    def rd(n):
        sg, s = n >> 3, n & 7
        so = (sg & 1) * SLOT
        xa, wa = (vXa + s, vWa) if sg < 2 else (vXb + s, vWb)
        f = fr + 8 * (n % NF)
        e(f"ds_read_b128 {vr(f,4)}, v{xa} offset:{so}")
        e(f"ds_read_b64_tr_b16 {vr(f+4,2)}, v{wa} offset:{so+s*2048}", f"ds_read_b64_tr_b16 {vr(f+6,2)}, v{wa} offset:{so+s*2048+512}")
    e("s_setprio 3")
    landwait(1)
    stamp(e, 16)
    for n in range(NF): rd(n)
    for n in range(32):
        f = fr + 8 * (n % NF)
        e(f"s_waitcnt lgkmcnt({min(3*(NF-1), 3*(31-n))})", f"{MF32} {vr(acc,16)}, {vr(f+4,4)}, {vr(f,4)}, {'0' if n == 0 else vr(acc,16)}")
        if n + NF < 32:
            if (n + NF) % 8 == 0:
                bit = 1 << ((n + NF) >> 3)
                sk = e.uniq("lok")
                e(f"s_and_b32 s{sO+4}, s{sO+5}, {bit}", f"s_cbranch_scc0 {sk}")
                landwait(bit)
                e.lab(sk)
            rd(n + NF)
    e(f"ds_read_b32 v{a_}, v{vFa} offset:{SOK}", f"v_mov_b32 v{c_}, s{sT+6}", "s_nop 9")
    for r in range(8): e(f"v_pk_mul_f32 {vr(acc+2*r,2)}, {vr(acc+2*r,2)}, {vr(c_,2)} op_sel_hi:[1,0]")
    P = AO
    for j in range(8): e(f"v_cvt_pk_bf16_f32 v{P+j}, v{acc+2*j}, v{acc+2*j+1}")
    e(f"s_mov_b32 exec_lo, s{sT+11}", f"s_mov_b32 exec_hi, s{sT+11}")
    e(f"ds_write_b128 v{b_}, {vr(P,4)}", f"ds_write_b128 v{b_}, {vr(P+4,4)} offset:128")
    sig(e, vC, v1_, ACNT)
    e(f"buffer_store_dwordx4 {vr(P,4)}, v{vSt}, {sr(R_WS,4)}, s{sT+7} offen{SC}")
    e(f"buffer_store_dwordx4 {vr(P+4,4)}, v{vSt}, {sr(R_WS,4)}, s{sT+7} offen offset:128{SC}")
    stamp(e, 2)
    e("s_waitcnt lgkmcnt(0)", f"v_readfirstlane_b32 s{sPOLL}, v{a_}", f"s_cmp_ge_u32 s{sPOLL}, 1", "s_cbranch_scc1 L_sa")
    e("s_waitcnt vmcnt(0)")
    set_flag(e, sT+5, S0, S0+1)
    lds_wait(e, vFa, S0+2, 1, SOK)
    stamp(e, 7)
    gather(e, 0, 2)
    e("s_branch L_sb")
    e.lab("L_sa")
    stamp(e, 7)
    gather(e, 0, 2)
    e("s_waitcnt vmcnt(6)")
    set_flag(e, sT+5, S0, S0+1)
    e.lab("L_sb")
    gather(e, 2, 8)
    sig(e, vC, v1_, GCNT)

def pk(S, j):
    d = S + (j if j < 4 else 4 + j)
    return f"v_cvt_pk_bf16_f32 v{d}, v{S+2*j}, v{S+2*j+1}"
def rdq(e):
    e(f"ds_read_b128 {vr(AQ,4)}, v{vQ16}")
    for k in range(4): e(f"ds_read_b128 {vr(ANM+4*k,4)}, v{vAN}")
def dump(e, kind):
    e(f"ds_write_b128 v{vT1}, {vr(AO,4)}", f"ds_write_b128 v{vT1}, {vr(AO+4,4)} offset:1024", f"ds_write_b32 v{vT0}, v{AO+8} offset:2048")
    e(f"ds_write_addtid_b32 v{vT1} offset:{0 if kind == 'F' else 1024}")
def advance(e):
    e(f"v_add_u32 v{vT1}, {OS_POS}, v{vT1}", f"v_add_u32 v{vT0}, {OS_POS}, v{vT0}")
def init_o(e, off):
    e(f"ds_read_b128 {vr(AO,4)}, v{vT1} offset:{off}", f"ds_read_b128 {vr(AO+4,4)}, v{vT1} offset:{off+1024}", f"ds_read_b32 v{AO+8}, v{vT0} offset:{off+2048}")

def att_block(e, mode):
    kind = "F" if mode[0] == "F" else "S"
    lo = 1 if kind == "F" else 0
    def prio(p):
        if mode != "B": e(f"s_setprio {p}")
    for t in range(8):
        Sc, Sn = (S0, S1) if t % 2 == 0 else (S1, S0)
        tp, tn = (t - 1) % 8, (t + 1) % 8
        def X(*toks):
            for k in toks: e(f"v_exp_f32 v{Sc+k}, v{Sc+k}" if isinstance(k, int) else pk(Sc, int(k[1:])))
        c0 = "0" if (t == 1 and kind == "F") else vr(AO, 16)
        pv0 = f"{MF32} {vr(AO,16)}, {vr(AV+8*tp,4)}, {vr(Sn,4)}, {c0}"
        pv1 = f"{MF32} {vr(AO,16)}, {vr(AV+8*tp+4,4)}, {vr(Sn+8,4)}, {vr(AO,16)}"
        qk = f"{MF32} {vr(Sn,16)}, {vr(AK+4*tn,4)}, {vr(AQ,4)}, {vr(ANM,16)}"
        if t == 1 and kind == "S":
            X(0); e(pk(Sn, 7)); X(1, 2)
            e("s_waitcnt lgkmcnt(0)", pv0); X(3, "p0", 4, "p1")
            e(pv1); X(5, 6, "p2", 7)
            e(qk); prio(lo)
            X(8, "p3", 9, 10, "p4", 11, 12)
            prio(3)
            X("p5", 13, 14, "p6", 15)
            continue
        skip_pv = mode == "F0" and t == 0
        if mode == "F0" and t > 0: e(f"s_waitcnt vmcnt({max(0, 23 - 3*(t+1))})")
        if not skip_pv: e(pv0)
        X(0)
        if not skip_pv: e(pk(Sn, 7))
        X(1, 2)
        if not skip_pv: e(pv1)
        X(3, "p0", 4, "p1")
        if t == 7 and mode != "F0": e("s_waitcnt lgkmcnt(0)")
        if t == 7 and mode == "B": e(f"v_readfirstlane_b32 s{sPOLL}, v{Sn+4}")
        if skip_pv: e("s_waitcnt vmcnt(20)")
        if not (t == 7 and mode == "F0"): e(qk)
        prio(lo)
        X(5, 6, "p2", 7, 8, "p3")
        if t == 0 and mode != "F0":
            if mode == "S":
                dump(e, kind); init_o(e, OS_POS); advance(e)
            else:
                sk = e.uniq("nodump")
                e(f"s_cmp_eq_u32 s{sP}, {1 if mode == 'F' else 0}", f"s_cbranch_scc1 {sk}")
                dump(e, kind); advance(e)
                if mode == "B": e(f"s_add_u32 s{sExp}, s{sExp}, {OS_POS}")
                e.lab(sk)
                if mode == "B":
                    e(f"s_cmp_ge_u32 s{sPOLL}, s{sExp}", "s_cbranch_scc0 L_swait")
                    e.lab("L_swait_ret")
                    init_o(e, 0)
        X(9)
        if t == 6:
            if mode == "B":
                e(f"s_cmp_eq_u32 s{sP}, 0", "s_cbranch_scc1 L_yprep"); e.lab("L_yprep_ret")
            if mode == "F":
                e(f"s_cmp_eq_u32 s{sP}, 1", "s_cbranch_scc1 L_fprep"); e.lab("L_fprep_ret")
            e(f"v_add_u32 v{vQ16}, 1024, v{vQ16}", f"v_add_u32 v{vAN}, 512, v{vAN}")
            if mode != "F0": rdq(e)
            if mode == "B": e(f"ds_read_addtid_b32 v{Sc+4}")
        X(10, "p4", 11, 12)
        if t == 0 and mode == "S": e("s_wakeup")
        prio(3)
        X("p5", 13, 14, "p6", 15)

def att_finish(e, kind):
    e(f"{MF32} {vr(AO,16)}, {vr(AV+8*7,4)}, {vr(S1,4)}, {vr(AO,16)}", pk(S1, 7), "s_nop 1")
    e(f"{MF32} {vr(AO,16)}, {vr(AV+8*7+4,4)}, {vr(S1+8,4)}, {vr(AO,16)}", "s_nop 11")
    dump(e, kind)
    e("s_waitcnt lgkmcnt(0)", "s_wakeup")
def qk0(e):
    e(f"{MF32} {vr(S0,16)}, {vr(AK,4)}, {vr(AQ,4)}, {vr(ANM,16)}", "s_nop 11")

def f_att(e):
    e.lab("L_f2")
    e("s_setprio 3")
    gather_bases(e)
    e(f"s_lshl_b32 s{sO+4}, s{sI}, 12", f"s_add_u32 s{sO+4}, s{sO+4}, {F1}", f"v_lshl_add_u32 v{vFa}, v0, 7, s{sO+4}")
    e(f"s_lshl_b32 s{sO+4}, s{sRB}, 10", f"s_add_u32 s{sO+4}, s{sO+4}, {F1 - 32*256}", "s_mov_b32 exec_lo, 0", f"v_lshl_add_u32 v{vFa}, v0, 8, s{sO+4}")
    e(f"s_lshl_b32 s{sO+4}, s{sRB}, 11", f"s_add_u32 s{sO+4}, s{sO+4}, {KW}")
    stamp(e, 6)
    gpoll(e, vFa, S0, 0xffffffff, 0x3, sleep=1)
    stamp(e, 7)
    e(f"buffer_load_dwordx4 {vr(AO,4)}, v{vQ16}, {sr(R_WS,4)}, s{sO+4} offen{SC}")
    gather(e, 0, 8)
    sig(e, vC, v1_, GCNT)
    att_addrs(e)
    lds_wait(e, vC, S0, 4, ACNT, sleep=0)
    e(f"ds_read_b128 {vr(AQ,4)}, v{vQ16}")
    stamp(e, 8)
    e("s_waitcnt vmcnt(24) lgkmcnt(0)", f"{MF32} {vr(S0,16)}, {vr(AO,4)}, {vr(AQ,4)}, 0", "s_nop 11")
    negmax(e, S0, ANM)
    for r in range(1, 16): e(f"v_mov_b32 v{ANM+r}, v{ANM}")
    e(f"ds_write_b128 v{vAN}, {vr(ANM,4)}", "s_waitcnt vmcnt(23)")
    stamp(e, 3); cstamp(e, 13)
    qk0(e)
    att_block(e, "F0")
    att_finish(e, "F")
    advance(e)
    stamp(e, 20)
    e(f"v_mov_b32 v{S0}, {CNT}", f"s_mov_b32 s{sP}, 1")
    lds_wait(e, S0, S0+1, 1, RDY1, sleep=2)
    rdq(e)
    stamp(e, 21); cstamp(e, 10)
    e("s_waitcnt lgkmcnt(0)")
    qk0(e)
    e.L.append("    .p2align 3")
    e.lab("L_floop")
    att_block(e, "F")
    e(f"s_add_u32 s{sP}, s{sP}, 1", f"s_cmp_lt_u32 s{sP}, 8", "s_cbranch_scc1 L_floop")
    att_finish(e, "F")
    stamp(e, 4); cstamp(e, 11)
    e("s_branch L_f3")
    e.lab("L_fprep")
    e(f"v_mov_b32 v{S0+4}, {CNT}")
    lds_wait(e, S0+4, S0+5, 8, ACNT, sleep=2)
    e("s_branch L_fprep_ret")

def s_att(e):
    att_addrs(e)
    e(f"s_mov_b32 s{sP}, 0", f"v_mov_b32 v{S0}, m0", "s_setprio 0")
    stamp(e, 8)
    lds_wait(e, S0, S0+1, 1, sleep=6)
    rdq(e)
    e("s_waitcnt vmcnt(0) lgkmcnt(0)")
    stamp(e, 3); cstamp(e, 13)
    qk0(e)
    e.L.append("    .p2align 3")
    e.lab("L_bloop")
    att_block(e, "B")
    e(f"s_add_u32 s{sP}, s{sP}, 1", f"s_cmp_ge_u32 s{sP}, 8", "s_cbranch_scc1 L_sfin")
    e(f"s_cmp_lt_u32 s{sPOLL}, {OS_L + 7*OS_POS}", "s_cbranch_scc1 L_bloop")
    stamp(e, 5)
    e("s_setprio 3")
    e.L.append("    .p2align 3")
    e.lab("L_sloop")
    att_block(e, "S")
    e(f"s_add_u32 s{sP}, s{sP}, 1")
    if STAMPS:
        e(f"s_cmp_lg_u32 s{sP}, 4", "s_cbranch_scc1 L_sns"); stamp(e, 4); cstamp(e, 10); e.lab("L_sns")
    e(f"s_cmp_lt_u32 s{sP}, 8", "s_cbranch_scc1 L_sloop")
    e.lab("L_sfin")
    att_finish(e, "S")
    finish(e)
    e.lab("L_yprep")
    e(f"v_mov_b32 v{S0+4}, {CNT}")
    lds_wait(e, S0+4, S0+5, 1, RDY1, sleep=2)
    e("s_branch L_yprep_ret")
    e.lab("L_swait")
    e(f"v_mov_b32 v{S0+4}, m0")
    lds_wait(e, S0+4, S0+5, f"s{sExp}", sleep=4)
    e("s_branch L_swait_ret")

sBX, sBH, sBW, sKC, sBXL, sBHL, sBWL = sT, sT+1, sT+2, sT+3, sT+4, sT+5, sT+6
BA = 8
aq, ak, av, ahk, ahv, MC = 24, 40, 56, 72, 76, 80
MP = MC + 4
FR = 104
def b_prep(e):
    e.c("---- B prep")
    e("v_lshrrev_b32 v20, 3, v0", "v_and_b32 v21, 7, v0", "v_lshrrev_b32 v22, 1, v20", "v_xor_b32 v23, v21, v22", "v_lshlrev_b32 v23, 4, v23")
    e("v_lshl_add_u32 v1, v20, 11, v23", "v_xor_b32 v2, 64, v1")
    e(f"s_lshl_b32 s{sO}, s{sI}, 5", f"v_xor_b32 v3, s{sO}, v1")
    e("v_and_b32 v22, 1, v22", "v_lshlrev_b32 v22, 2, v22", "v_xor_b32 v23, v21, v22", "v_lshlrev_b32 v23, 4, v23")
    e("v_mul_u32_u24 v20, 3072, v20", "v_add_u32 v4, v20, v23", "v_xor_b32 v16, 32, v4")
    e(f"s_and_b32 s{sO}, s{sI}, 1", f"s_lshr_b32 s{sO+1}, s{sI}, 1", f"s_lshl_b32 s{sO+1}, s{sO+1}, 10")
    e(f"s_lshl_b32 s{sBX}, s{sRB}, 16", f"s_max_u32 s{sBH}, s{sBX}, 16384", f"s_sub_u32 s{sBH}, s{sBH}, 16384")
    e(f"s_add_u32 s{sBX}, s{sBX}, s{sO+1}", f"s_add_u32 s{sBH}, s{sBH}, s{sO+1}")
    e(f"s_lshl_b32 s{sO+1}, s{sO}, 15", f"s_add_u32 s{sBX}, s{sBX}, s{sO+1}")
    e(f"s_lshl_b32 s{sO+1}, s{sO}, 13", f"s_add_u32 s{sBH}, s{sBH}, s{sO+1}")
    e(f"s_mul_i32 s{sBW}, s{sI}, {16*3072}", f"s_lshl_b32 s{sO+1}, s{sCB}, 7", f"s_add_u32 s{sBW}, s{sBW}, s{sO+1}")
    e(f"s_lshl_b32 s{sKC}, s{sRB}, 1", f"s_add_u32 s{sKC}, s{sKC}, s{sCB}")
    e(f"s_lshl_b32 s{sBWL}, s{sI}, 11", f"s_add_u32 s{sBXL}, s{sBWL}, {RXO + 2048}", f"s_lshl_b32 s{sBHL}, s{sI}, 9", f"s_add_u32 s{sBHL}, s{sBHL}, {RXO}")
    e("v_and_b32 v20, 31, v0", "v_lshrrev_b32 v21, 5, v0", "v_bfe_u32 v22, v0, 1, 3", "v_xor_b32 v22, v22, v21", "v_lshlrev_b32 v22, 4, v22", "v_lshl_add_u32 v22, v20, 7, v22")
    e(f"s_lshl_b32 s{sO}, s{sO}, 12", f"s_add_u32 s{sO}, s{sO}, {RXO + 2048}", f"v_add_u32 v{BA}, s{sO}, v22")
    for s in range(1, 4): e(f"v_xor_b32 v{BA+s}, {s<<5}, v{BA}")
    e("v_bfe_u32 v20, v0, 2, 2", "v_and_b32 v23, 3, v0", "v_and_b32 v17, 2, v20", "v_or_b32 v18, v17, v21", "v_bfe_u32 v19, v0, 4, 1")
    e(f"s_and_b32 s{sO}, s{sI}, 2", f"v_or_b32 v19, s{sO}, v19", "v_xor_b32 v18, v18, v19")
    e("v_lshl_add_u32 v22, v21, 3, v20", "v_lshlrev_b32 v22, 7, v22", "v_lshl_add_u32 v22, v18, 5, v22", f"v_lshl_add_u32 v{BA+4}, v23, 3, v22")
    e("v_lshrrev_b32 v21, 4, v0", "v_bfe_u32 v22, v0, 1, 3", "v_xor_b32 v22, v22, v21", "v_lshlrev_b32 v22, 4, v22", "v_and_b32 v19, 15, v0")
    e("v_lshl_add_u32 v22, v19, 7, v22", f"v_add_u32 v{BA+5}, {RXO}, v22", f"v_xor_b32 v{BA+6}, 64, v{BA+5}")
    e("v_and_b32 v18, 1, v21", "v_or_b32 v18, v17, v18", f"v_xor_b32 v18, s{sI}, v18")
    e("v_lshl_add_u32 v22, v21, 3, v20", "v_lshlrev_b32 v22, 7, v22", "v_lshl_add_u32 v22, v18, 5, v22", f"v_lshl_add_u32 v{BA+7}, v23, 3, v22")
    e(f"v_mov_b32 v{MC}, {hex(f32bits(-1e30))}")
    for r in range(1, 20): e(f"v_mov_b32 v{MC+r}, v{MC}")
    def setm(reg, r, shift):
        m = 0
        for l in range(64):
            d = (l & 31) - ((r & 3) + 8 * (r >> 2) + 4 * (l >> 5)) + shift
            if 0 <= d <= 7: m |= 1 << l
        if m: e(f"s_mov_b32 exec_lo, {hex(m & 0xffffffff)}", f"s_mov_b32 exec_hi, {hex(m >> 32)}", f"v_mov_b32 v{reg}, 0")
    for r in range(16): setm(MC + r, r, 0)
    e(f"s_cmp_eq_u32 s{sRB}, 0", "s_cbranch_scc1 L_nomp")
    for r in range(12, 16): setm(MP + r, r, 32)
    e.lab("L_nomp")
    e("s_mov_b64 exec, -1")

def h_qprep(e):
    T, QK, SA, SB = 20, 104, 120, 136
    e.c("---- H: Q fragments + max images of positions 1+i, 5+i")
    e(f"s_add_u32 s{sO+1}, s{sI}, 1", f"s_cmp_lt_u32 s{sI}, s{sCB}", f"s_cselect_b32 s{sO+1}, s{sI}, s{sO+1}")
    e(f"s_add_u32 s{sO}, s{sI}, 4", f"s_add_u32 s{sO+2}, s{sI}, 5", f"s_cmp_lt_u32 s{sO}, s{sCB}", f"s_cselect_b32 s{sO+2}, s{sO}, s{sO+2}", f"s_min_u32 s{sO+2}, s{sO+2}, 7")
    e(f"v_and_b32 v{T+1}, 1, v0", f"v_lshlrev_b32 v{T+1}, 8, v{T+1}")
    e(f"s_lshl_b32 s{sO}, s{sRB}, 12", f"s_lshr_b32 s{sO+3}, s{sCB}, 2", f"s_lshl_b32 s{sO+3}, s{sO+3}, 7", f"s_add_u32 s{sO}, s{sO}, s{sO+3}", f"s_add_u32 s{sO}, s{sO}, {F2}")
    e(f"s_lshl_b32 s{sO+3}, s{sO+1}, 9", f"s_add_u32 s{sO+3}, s{sO+3}, s{sO}", f"v_add_u32 v{T}, s{sO+3}, v{T+1}")
    e(f"s_lshl_b32 s{sO+3}, s{sO+2}, 9", f"s_add_u32 s{sO+3}, s{sO+3}, s{sO}", "s_mov_b64 exec, 0xc", f"v_add_u32 v{T}, s{sO+3}, v{T+1}", "s_mov_b64 exec, -1")
    e(f"v_lshlrev_b32 v{T+2}, 4, v0", f"s_lshl_b32 s{sO+3}, s{sIDX}, 13")
    e(f"s_lshl_b32 s{sO+1}, s{sO+1}, 10", f"s_add_u32 s{sO+1}, s{sO+1}, s{sO+3}", f"s_lshl_b32 s{sO+2}, s{sO+2}, 10", f"s_add_u32 s{sO+2}, s{sO+2}, s{sO+3}")
    e(f"s_lshl_b32 s{sO+4}, s{sI}, 13", f"s_add_u32 s{sO+4}, s{sO+4}, {KW + 32768}")
    e(f"s_lshl_b32 s{sO+5}, s{sI}, 12", f"s_add_u32 s{sO+5}, s{sO+5}, {F1 + 16384}", f"v_lshl_add_u32 v{T+3}, v0, 7, s{sO+5}")
    e(f"s_lshl_b32 s{sO+5}, s{sI}, 2", f"v_add_u32 v17, s{sO+5}, v{vHC}")
    lds_wait(e, vHC, vHT, 5, LAND + 12, sleep=2)
    gpoll(e, T + 3, T + 1, 0xffffffff, 0, sleep=2)
    sig(e, 17, vH1, SOK)
    e(f"buffer_load_dwordx4 {vr(QK+8,4)}, v{T+2}, {sr(R_WS,4)}, s{sO+4} offen{SC}")
    lds_wait(e, vHC, vHT, 4, ACNT, sleep=2)
    gpoll(e, T, T + 1, 0xf, 0, sleep=2)
    e(f"buffer_load_dwordx4 {vr(QK,4)}, v{T+2}, {sr(R_WS,4)}, s{sO+1} offen{SC}", f"buffer_load_dwordx4 {vr(QK+4,4)}, v{T+2}, {sr(R_WS,4)}, s{sO+2} offen{SC}")
    e(f"s_lshl_b32 s{sO}, s{sI}, 10", f"s_add_u32 s{sO}, s{sO}, {QI_L+1024}", f"v_add_u32 v{T}, s{sO}, v{T+2}", f"v_and_b32 v{T+1}, 0x1ff, v{T+2}")
    e(f"s_lshl_b32 s{sO}, s{sI}, 9", f"s_add_u32 s{sO}, s{sO}, {NM_L+512}", f"v_add_u32 v{T+1}, s{sO}, v{T+1}")
    e("s_waitcnt vmcnt(0)")
    e(f"{MF32} {vr(SA,16)}, {vr(QK+8,4)}, {vr(QK,4)}, 0", f"{MF32} {vr(SB,16)}, {vr(QK+8,4)}, {vr(QK+4,4)}, 0", f"ds_write_b128 v{T}, {vr(QK,4)}", "s_nop 9")
    negmax(e, SA, 152)
    for r in range(1, 4): e(f"v_mov_b32 v{152+r}, v152")
    e(f"ds_write_b128 v{T+1}, v[152:155]")
    e(f"s_cmp_eq_u32 s{sI}, 0", "s_cselect_b32 exec_lo, 1, 0", "s_mov_b32 exec_hi, 0", f"ds_write_b32 v{vHC}, v{vH1} offset:{RDY1}", "s_mov_b64 exec, -1")
    e(f"s_cmp_eq_u32 s{sI}, 3", "s_cbranch_scc1 L_nop8")
    negmax(e, SB, 156)
    for r in range(1, 4): e(f"v_mov_b32 v{156+r}, v156")
    e(f"ds_write_b128 v{T}, {vr(QK+4,4)} offset:4096", f"ds_write_b128 v{T+1}, v[156:159] offset:2048")
    e.lab("L_nop8")
    sig(e, vHC, vH1, ACNT)
    stamp(e, 10)

class Lst(list):
    def __call__(self, *x): self.extend(x)
def b_dma_groups(j):
    ro = (j & 1) * RINGS
    G = [Lst() for _ in range(5)]
    g = G[0]
    g(f"s_add_u32 s{sO+1}, s{sKC}, {j}", f"s_and_b32 s{sO+1}, s{sO+1}, 7", f"s_lshl_b32 s{sO+2}, s{sO+1}, 7", f"s_mul_i32 s{sO+1}, s{sO+1}, {64*3072}")
    g(f"s_add_u32 s{sO+1}, s{sO+1}, s{sBW}", f"s_add_u32 s{sO+3}, s{sO+2}, s{sBX}")
    for u in range(2):
        g(f"s_add_u32 m0, s{sBXL}, {ro + u*1024}", f"s_add_u32 s{sO}, s{sO+3}, {u*16384}")
        dma(g, 1 + u, R_XB, sO, nt=True)
    for p in range(3):
        g = G[1 + p]
        for u in range(2):
            g(f"s_add_u32 m0, s{sBWL}, {ro + p*8192 + u*1024}", f"s_add_u32 s{sO}, s{sO+1}, {p*1024 + u*8*3072}")
            dma(g, 4 if u == 0 else 16, R_WB, sO)
    g = G[4]
    g(f"s_add_u32 m0, s{sBHL}, {ro}", f"s_add_u32 s{sO}, s{sO+2}, s{sBH}", "s_mov_b32 exec_hi, 0")
    dma(g, 3, R_XB, sO)
    g("s_mov_b64 exec, -1")
    return G
def wo_groups(R, base):
    G = [Lst() for _ in range(4)]
    G[0](f"s_lshl_b32 s{sO+1}, s{sI}, 17", f"s_lshl_b32 s{sO+2}, s{sHP}, 6", f"s_add_u32 s{sO+1}, s{sO+1}, s{sO+2}", f"s_lshl_b32 s{sO+2}, s{sI}, 13")
    for u in range(8):
        g = G[u >> 1]
        g(f"s_add_u32 m0, s{sO+2}, {base + u*1024}", f"s_add_u32 s{sO}, s{sO+1}, {u*16384}")
        dma(g, 20, R, sO)
    return G
def wo_voff(e):
    e("v_lshrrev_b32 v20, 2, v0", "v_and_b32 v21, 3, v0", "v_lshlrev_b32 v21, 4, v21", "v_lshl_add_u32 v20, v20, 10, v21")

def b_proj(e):
    for j in range(8):
        ro = (j & 1) * RINGS
        e(f"s_waitcnt vmcnt({9 if j == 0 else 0})")
        sig(e, vHC, vH1, HCNT)
        lds_wait(e, vHC, vHT, 4 * (j + 2), HCNT)
        if j in (0, 4): stamp(e, {0: 16, 4: 17}[j])
        G = b_dma_groups(j + 1) if 1 <= j <= 6 else (wo_groups(R_WOB, WOB_L) if j == 7 else [])
        e(f"s_setprio {HM}")
        D, XB_, HX_, WB_, NBUF = BDEPTH, FR, FR + 8, FR + 12, 12
        jobs = []
        def wreads(buf, areg, off):
            return [f"ds_read_b64_tr_b16 {vr(buf,2)}, v{areg} offset:{off}", f"ds_read_b64_tr_b16 {vr(buf+2,2)}, v{areg} offset:{off+512}"]
        for s in range(4):
            x = XB_ + 4 * (s & 1)
            for p, acc in enumerate((aq, ak, av)):
                w = WB_ + 4 * (len(jobs) % NBUF)
                rds = ([f"ds_read_b128 {vr(x,4)}, v{BA+s} offset:{ro}"] if p == 0 else []) + wreads(w, BA + 4, ro + p*8192 + s*2048)
                A_, B_ = (w, x) if p < 2 else (x, w)
                jobs.append((rds, f"{MF32} {vr(acc,16)}, {vr(A_,4)}, {vr(B_,4)}, {'0' if (j == 0 and s == 0) else vr(acc,16)}"))
            s2, p = s >> 1, 1 + (s & 1)
            w = WB_ + 4 * (len(jobs) % NBUF)
            rds = ([f"ds_read_b128 {vr(HX_,4)}, v{BA+5+s2} offset:{ro}"] if p == 1 else []) + wreads(w, BA + 7, ro + p*8192 + s2*4096)
            acc = ahk if p == 1 else ahv
            A_, B_ = (w, HX_) if p == 1 else (HX_, w)
            jobs.append((rds, f"{MF16} {vr(acc,4)}, {vr(A_,4)}, {vr(B_,4)}, {'0' if (j == 0 and s2 == 0) else vr(acc,4)}"))
        for n in range(D): e(*jobs[n][0])
        if G: e(*G.pop(0))
        for n in range(16):
            out = sum(len(jobs[m][0]) for m in range(n + 1, min(n + D, 16)))
            e(f"s_waitcnt lgkmcnt({out})", jobs[n][1])
            if n + D < 16: e(*jobs[n + D][0])
            if G: e(*G.pop(0))
        e("s_setprio 3")

def b_attn(e):
    Qf, Kf, Vf, Kp, Vp = 104, 112, 120, 128, 136
    PB = 140
    M = 152
    e.c("---- local attention")
    e("v_bfe_u32 v9, v0, 3, 1", "v_lshlrev_b32 v10, 10, v9", "v_bfe_u32 v9, v0, 4, 1", "v_lshl_add_u32 v10, v9, 7, v10")
    e("v_and_b32 v11, 7, v0", "v_lshl_add_u32 v10, v11, 4, v10", "v_lshrrev_b32 v12, 5, v0", "v_lshl_add_u32 v10, v12, 3, v10")
    e(f"s_and_b32 s{sO}, s{sI}, 2", f"s_lshl_b32 s{sO}, s{sO}, 10", f"s_add_u32 s{sO}, s{sO}, {EX_L}", f"s_and_b32 s{sO+1}, s{sI}, 1")
    e(f"s_lshl_b32 s{sO+2}, s{sO+1}, 8", f"s_add_u32 s{sO+2}, s{sO+2}, s{sO}", f"v_add_u32 v10, s{sO+2}, v10")
    e("v_lshlrev_b32 v13, 10, v12", "v_lshl_add_u32 v13, v9, 8, v13", "v_and_b32 v14, 15, v0", "v_lshl_add_u32 v13, v14, 3, v13")
    e(f"s_lshl_b32 s{sO+2}, s{sO+1}, 7", f"s_add_u32 s{sO+2}, s{sO+2}, s{sO}", f"v_add_u32 v13, s{sO+2}, v13")
    for j in range(4): e(f"v_cvt_pk_bf16_f32 v{16+j}, v{ahk+2*j}, v{ahk+2*j+1}")
    e("ds_write_b64 v10, v[16:17]", "ds_write_b64 v13, v[18:19] offset:512")
    sig(e, vHC, vH1, HCNT)
    e(f"s_lshl_b32 s{sO}, s{sI}, 10", f"s_add_u32 s{sO}, s{sO}, {EX_L}")
    e("v_lshl_add_u32 v11, v12, 3, v11", f"v_lshl_add_u32 v11, v11, 4, s{sO}", f"v_lshl_add_u32 v14, v0, 3, s{sO}")
    for j in range(8): e(f"v_cvt_pk_bf16_f32 v{Kf+j}, v{ak+2*j}, v{ak+2*j+1}")
    for j in range(8): e(f"v_cvt_pk_bf16_f32 v{Qf+j}, v{aq+2*j}, v{aq+2*j+1}")
    Sc0, Sc1, Sp = 24, 40, 8 + 56
    lds_wait(e, vHC, vHT, 40, HCNT)
    e(f"ds_read_b128 {vr(Kp,4)}, v11", f"ds_read_b128 {vr(Kp+4,4)}, v11 offset:256", f"ds_read_b64 {vr(Vp+2,2)}, v14 offset:512")
    e(f"s_setprio {HM}")
    e(f"{MF32} {vr(Sc0,16)}, {vr(Kf,4)}, {vr(Qf,4)}, {vr(MC,16)}", f"{MF32} {vr(Sc1,16)}, {vr(Kf+4,4)}, {vr(Qf+4,4)}, {vr(MC,16)}")
    e("s_setprio 3")
    for g in wo_groups(R_WOA, WOA_L): e(*g)
    for j in range(8): e(f"v_cvt_pk_bf16_f32 v{Vf+j}, v{av+2*j}, v{av+2*j+1}")
    for r in (Vp, Vp+1): e(f"v_mov_b32 v{r}, 0")
    for r in range(12): e(f"v_mov_b32 v{PB+r}, 0")
    e(f"s_lshl_b32 s{sO+1}, s{sRB}, 1", f"s_and_b32 s{sO+2}, s{sI}, 1", f"s_add_u32 s{sO+1}, s{sO+1}, s{sO+2}", f"s_lshl_b32 s{sO+1}, s{sO+1}, 15")
    e(f"s_lshl_b32 s{sO+2}, s{sCB}, 2", f"s_and_b32 s{sO+3}, s{sI}, 2", f"s_add_u32 s{sO+2}, s{sO+2}, s{sO+3}", f"s_lshl_b32 s{sO+2}, s{sO+2}, 10")
    e(f"s_add_u32 s{sO+1}, s{sO+1}, s{sO+2}", f"s_add_u32 s{sO+1}, s{sO+1}, {OB}")
    e("v_lshlrev_b32 v9, 4, v0", f"v_mov_b32 v22, {hex(f32bits(CSC))}", "s_waitcnt lgkmcnt(0)")
    for hd in range(2):
        Sc = (Sc0, Sc1)[hd]
        e(f"s_setprio {HM}", f"{MF32} {vr(Sp,16)}, {vr(Kp+4*hd,4)}, {vr(Qf+4*hd,4)}, {vr(MP,16)}", "s_setprio 3")
        for k in range(4): e(f"v_max_f32 v{M+k}, v{Sc+k}, v{Sc+8+k}")
        e(f"v_max3_f32 v10, v{M}, v{M+1}, v{M+2}", "s_nop 5")
        for k in range(4): e(f"v_max3_f32 v{M+4+k}, v{Sc+4+k}, v{Sc+12+k}, v{Sp+12+k}")
        e(f"v_max3_f32 v10, v10, v{M+3}, v{M+4}", f"v_max3_f32 v10, v10, v{M+5}, v{M+6}", f"v_max_f32 v10, v10, v{M+7}")
        halfmax(e, 10)
        e("v_mul_f32 v10, v22, v10")
        for k in range(4): e(f"v_pk_fma_f32 {vr(M+2*k,2)}, {vr(M+2*k,2)}, v[22:23], v[10:11] op_sel_hi:[1,0,0] neg_lo:[0,0,1] neg_hi:[0,0,1]")
        for k in range(8): e(f"v_exp_f32 v{M+k}, v{M+k}")
        def cv(mask, dst, src):
            e(f"s_mov_b32 exec_lo, {hex(mask)}", f"s_mov_b32 exec_hi, {hex(mask)}")
            e(f"v_cvt_pk_bf16_f32 v{dst}, v{src}, v{src+1}", f"v_cvt_pk_bf16_f32 v{dst+1}, v{src+2}, v{src+3}")
        cv(0x0000ffff, PB, M); cv(0xffff0000, PB+4, M)
        cv(0x00ffff00, PB+2, M+4); cv(0xff000000, PB+6, M+4); cv(0x000000ff, PB+10, M+4)
        e("s_mov_b64 exec, -1")
        e(f"v_pk_add_f32 {vr(M,2)}, {vr(M,2)}, {vr(M+2,2)}", f"v_pk_add_f32 {vr(M+4,2)}, {vr(M+4,2)}, {vr(M+6,2)}")
        e(f"s_setprio {HM}")
        e(f"{MF32} {vr(Sc,16)}, {vr(Vf,4)}, {vr(PB,4)}, 0", f"{MF32} {vr(Sc,16)}, {vr(Vf+4,4)}, {vr(PB+4,4)}, {vr(Sc,16)}", f"{MF32} {vr(Sc,16)}, {vr(Vp,4)}, {vr(PB+8,4)}, {vr(Sc,16)}")
        e("s_setprio 3")
        e(f"v_pk_add_f32 {vr(M,2)}, {vr(M,2)}, {vr(M+4,2)}", f"v_add_f32 v10, v{M}, v{M+1}", "v_mov_b32 v11, v10", "s_nop 1")
        e("v_permlane32_swap_b32 v10, v11", "s_nop 0", "v_add_f32 v10, v10, v11", "v_rcp_f32 v10, v10", "s_nop 2")
        O = Sc + 8 * hd
        for k in range(4): e(f"v_pk_mul_f32 {vr(O+2*k,2)}, {vr(O+2*k,2)}, v[10:11] op_sel_hi:[1,0]")
        o = 12 + 4 * hd
        for j in range(4): e(f"v_cvt_pk_bf16_f32 v{o+j}, v{O+2*j}, v{O+2*j+1}")
        e(f"buffer_store_dwordx4 {vr(o,4)}, v9, {sr(R_WS,4)}, s{sO+1} offen offset:{1024*hd}{SC}")

vL16, vWt, vSt, vFl, vPo, vOC, vEx = 8, 9, 10, 11, 1, 4, 30
GACC, GO, GW = 12, 32, 148
sTK, sOut = sT, sT+1
def out_prep(e, rowshift):
    e(f"v_lshlrev_b32 v{vL16}, 4, v0", "v_lshrrev_b32 v30, 5, v0", "v_bfe_u32 v31, v0, 2, 2", "v_lshl_add_u32 v31, v30, 2, v31", f"v_lshlrev_b32 v{vWt}, 6, v31")
    e("v_and_b32 v31, 1, v0", f"v_lshl_add_u32 v{vWt}, v31, 5, v{vWt}", "v_bfe_u32 v31, v0, 1, 1", f"v_lshl_add_u32 v{vWt}, v31, 3, v{vWt}")
    e("v_bfe_u32 v31, v0, 4, 1", f"v_lshl_add_u32 v{vWt}, v31, 4, v{vWt}")
    e(f"v_and_b32 v{vSt}, 31, v0", f"v_lshlrev_b32 v{vSt}, {rowshift}, v{vSt}", f"v_lshl_add_u32 v{vSt}, v30, 5, v{vSt}")
    e(f"v_lshlrev_b32 v{vPo}, 9, v30", "v_bfe_u32 v31, v0, 3, 2", f"v_lshl_add_u32 v{vPo}, v31, 10, v{vPo}", "v_and_b32 v31, 7, v0", f"v_lshl_add_u32 v{vPo}, v31, 4, v{vPo}")
    e(f"v_and_b32 v{vOC}, 3, v0", f"v_lshlrev_b32 v{vOC}, 8, v{vOC}", f"v_add_u32 v{vOC}, {PR_L + 1024}, v{vOC}")
    e(f"s_lshl_b32 s{sTK}, s{sTB}, 2", f"s_add_u32 s{sTK}, s{sTK}, s{sI}")

def pry_wait(e, lim, sleep=6):
    l = e.uniq("hp")
    e.lab(l)
    e(f"ds_read_b32 v{vHT}, v{vOC}", "s_waitcnt lgkmcnt(0)", f"v_cmp_gt_u32 vcc, {lim}, v{vHT}", f"s_cbranch_vccz {l}_d")
    spin_tail(e, l, sleep)
    e.lab(l + "_d")

pub_sites = []
def pub(e, add):
    P = GO
    site = len(pub_sites); pub_sites.append(site)
    e(f"s_add_u32 s{sO+4}, s{sI}, {add}", f"s_mul_i32 s{sO+2}, s{sO+4}, {OS_POS}", f"s_add_u32 s{sO+2}, s{sO+2}, {OS_L}")
    e(f"v_add_u32 v28, s{sO+2}, v{vL16}", "v_and_b32 v29, 31, v0", f"v_lshl_add_u32 v29, v29, 2, s{sO+2}")
    e(f"s_sub_u32 s{sO}, s{sO+4}, 1", f"s_cmp_lt_u32 s{sO}, s{sCB}", f"s_cselect_b32 s{sO}, s{sO}, s{sO+4}")
    e(f"s_cmp_eq_u32 s{sO+4}, 0", f"s_cselect_b32 s{sO}, s{sCB}, s{sO}", f"s_lshl_b32 s{sO}, s{sO}, 12")
    e(f"s_lshr_b32 s{sO+1}, s{sIDX}, 2", f"s_lshl_b32 s{sO+1}, s{sO+1}, 15", f"s_add_u32 s{sO}, s{sO}, s{sO+1}")
    e(f"s_and_b32 s{sO+1}, s{sIDX}, 3", f"s_lshl_b32 s{sO+1}, s{sO+1}, 7", f"s_add_u32 s{sO}, s{sO}, s{sO+1}", f"s_add_u32 s{sO+3}, s{sO}, {OA}")
    e(f"s_lshl_b32 s{sO+5}, s{sIDX}, 3", f"s_add_u32 s{sO+5}, s{sO+5}, s{sO+4}", f"s_lshl_b32 s{sO+5}, s{sO+5}, 7", f"s_add_u32 s{sO+5}, s{sO+5}, {F4}")
    e(f"s_mov_b32 s{sRET}, {site}", f"v_mov_b32 v31, {hex(f32bits(LMAX))}")
    pry_wait(e, f"s{sO+2}")
    e(f"ds_read2st64_b32 {vr(P+32,2)}, v29 offset0:8 offset1:17", f"ds_read2st64_b32 {vr(P+34,2)}, v29 offset0:26 offset1:35")
    for a in range(2):
        for s in range(4): e(f"ds_read_b128 {vr(P+8*s+4*a,4)}, v28 offset:{s*OS_PAIR + a*1024}")
    e("s_waitcnt lgkmcnt(8)", f"v_pk_add_f32 {vr(P+32,2)}, {vr(P+32,2)}, {vr(P+34,2)}", f"v_add_f32 v{P+34}, v{P+32}, v{P+33}", f"v_rcp_f32 v{P+32}, v{P+34}")
    for a in range(2):
        e(f"s_waitcnt lgkmcnt({4-4*a})")
        for k in range(2):
            a_, b_, c_, d_ = (vr(P + 8*s + 4*a + 2*k, 2) for s in range(4))
            e(f"v_pk_add_f32 {a_}, {a_}, {b_}", f"v_pk_add_f32 {c_}, {c_}, {d_}", f"v_pk_add_f32 {a_}, {a_}, {c_}")
    e(f"v_pk_mul_f32 {vr(P+8,2)}, {vr(P,2)}, 0")
    for k in range(1, 4): e(f"v_pk_fma_f32 {vr(P+8,2)}, {vr(P+2*k,2)}, 0, {vr(P+8,2)}")
    e(f"v_add_f32 v{P+8}, v{P+8}, v{P+9}", f"v_add_f32 v{P+8}, v{P+8}, v{P+34}")
    e(f"v_cmp_nlt_f32 vcc, v{P+8}, v31" if "forcefb" not in OPT else "v_cmp_eq_u32 vcc, v0, v0", "s_cbranch_vccnz L_exact")
    e.lab(f"L_exact_ret{site}")
    for k in range(4): e(f"v_pk_mul_f32 {vr(P+2*k,2)}, {vr(P+2*k,2)}, {vr(P+32,2)} op_sel_hi:[1,0]")
    for k in range(4): e(f"v_cvt_pk_bf16_f32 v{164+k}, v{P+2*k}, v{P+2*k+1}")
    e(f"buffer_store_dwordx4 v[164:167], v{vPo}, {sr(R_WS,4)}, s{sO+3} offen{SC}", "s_waitcnt vmcnt(0)")
    set_flag(e, sO+5, 2, 3)

def exact(e):
    O, Q, Kr, V, S, NB, m, vo = GO, GO+36, GO+40, GO+44, GO+52, GO+68, GO+84, GO+86
    sK, sV = sO, sO+1
    e.lab("L_exact")
    e(f"s_lshl_b32 s{sK}, s{sO+4}, 10", f"s_add_u32 s{sK}, s{sK}, {QI_L}", f"v_add_u32 v{m}, s{sK}, v{vL16}", f"ds_read_b128 {vr(Q,4)}, v{m}")
    e(f"v_and_b32 v{m}, 31, v0", f"v_cmp_eq_u32 vcc, 16, v{m}", f"v_mov_b32 v{m+1}, 0x3f803f80", f"v_lshrrev_b32 v{vo}, 5, v0", f"v_cndmask_b32 v{V}, 0, v{m+1}, vcc")
    for r in range(1, 8): e(f"v_mov_b32 v{V+r}, v{V}")
    e(f"v_lshlrev_b32 v{vo}, 8, v{vo}", f"v_and_b32 v{m}, 15, v0", f"v_lshl_add_u32 v{vo}, v{m}, 4, v{vo}")
    for r in range(16): e(f"v_mov_b32 v{O+r}, 0")
    e(f"v_mov_b32 v{m}, 0xff800000", f"s_mov_b32 s{sK}, {KW}", "s_waitcnt lgkmcnt(0)")
    e.lab("L_ex1")
    e(f"buffer_load_dwordx4 {vr(Kr,4)}, v{vL16}, {sr(R_WS,4)}, s{sK} offen{SC}", "s_waitcnt vmcnt(0)")
    e(f"{MF32} {vr(S,16)}, {vr(Kr,4)}, {vr(Q,4)}, 0", "s_nop 11")
    for k in range(0, 16, 2): e(f"v_max3_f32 v{m}, v{m}, v{S+k}, v{S+k+1}")
    e(f"s_add_u32 s{sK}, s{sK}, 1024", f"s_cmp_lt_u32 s{sK}, {KW + 65536}", "s_cbranch_scc1 L_ex1")
    halfmax(e, m)
    for r in range(16): e(f"v_sub_f32 v{NB+r}, 0, v{m}")
    e(f"s_mov_b32 s{sK}, {KW}", f"s_mov_b32 s{sV}, {VW}")
    e.lab("L_ex2")
    e(f"buffer_load_dwordx4 {vr(Kr,4)}, v{vL16}, {sr(R_WS,4)}, s{sK} offen{SC}", "s_mov_b32 exec_lo, 0xffff", "s_mov_b32 exec_hi, 0xffff")
    e(f"buffer_load_dwordx4 {vr(V,4)}, v{vo}, {sr(R_WS,4)}, s{sV} offen{SC}", f"buffer_load_dwordx4 {vr(V+4,4)}, v{vo}, {sr(R_WS,4)}, s{sV} offen offset:512{SC}")
    e("s_mov_b64 exec, -1", "s_waitcnt vmcnt(0)")
    e(f"{MF32} {vr(S,16)}, {vr(Kr,4)}, {vr(Q,4)}, {vr(NB,16)}", "s_nop 11")
    for k in range(16): e(f"v_exp_f32 v{S+k}, v{S+k}")
    e("s_nop 0")
    for j in range(8): e(pk(S, j))
    e("s_nop 1", f"{MF32} {vr(O,16)}, {vr(V,4)}, {vr(S,4)}, {vr(O,16)}", f"{MF32} {vr(O,16)}, {vr(V+4,4)}, {vr(S+8,4)}, {vr(O,16)}")
    e(f"s_add_u32 s{sK}, s{sK}, 1024", f"s_add_u32 s{sV}, s{sV}, 1024", f"s_cmp_lt_u32 s{sK}, {KW + 65536}", "s_cbranch_scc1 L_ex2")
    e("s_nop 11", f"v_mov_b32 v{m}, v{O+8}", "s_nop 1", f"v_permlane32_swap_b32 v{O+8}, v{m}", "s_nop 0", f"v_rcp_f32 v{GO+32}, v{O+8}", "s_nop 0")
    for s in pub_sites[:-1]: e(f"s_cmp_eq_u32 s{sRET}, {s}", f"s_cbranch_scc1 L_exact_ret{s}")
    e(f"s_branch L_exact_ret{pub_sites[-1]}")

def gemm(e, src, wl, s0, s1, paced=True):
    NB, n = 29, s1 - s0
    oreg = lambda k: GO + 4 * (k % NB)
    e(f"s_lshl_b32 s{sO+2}, s{sTK}, 15", f"s_add_u32 s{sO+2}, s{sO+2}, {src}")
    def ldo(k):
        s = s0 + k
        if k == 0 or s % 4 == 0: e(f"s_add_u32 s{sO}, s{sO+2}, {(s>>2)*4096}")
        e(f"buffer_load_dwordx4 {vr(oreg(k),4)}, v{vL16}, {sr(R_WS,4)}, s{sO} offen offset:{(s&3)*1024}{SC}")
    def rdw(k):
        b, o = GW + 4*(k & 3), (s0 + k) * 1024
        e(f"ds_read_b64_tr_b16 {vr(b,2)}, v31 offset:{o}", f"ds_read_b64_tr_b16 {vr(b+2,2)}, v31 offset:{o+512}")
    for k in range(min(NB, n)): ldo(k)
    e(f"v_add_u32 v31, {wl}, v{vWt}")
    for k in range(3): rdw(k)
    if paced: e(f"s_setprio {HM}")
    for k in range(n):
        if k + 3 < n: rdw(k + 3)
        e(f"s_waitcnt vmcnt({min(NB-1, n-1-k)}) lgkmcnt({min(6, 2*(n-1-k))})")
        e(f"{MF32} {vr(GACC,16)}, {vr(GW+4*(k&3),4)}, {vr(oreg(k),4)}, {'0' if s0 + k == 0 else vr(GACC,16)}")
        if k + NB < n: ldo(k + NB)
    if paced: e("s_setprio 3")

def out_store(e, off):
    e("s_nop 11")
    for j in range(8): e(f"v_cvt_pk_bf16_f32 v{GW+j}, v{GACC+2*j}, v{GACC+2*j+1}")
    e(f"buffer_store_dwordx4 {vr(GW,4)}, v{vSt}, {sr(R_OUT,4)}, s{sOut} offen offset:{off}", f"buffer_store_dwordx4 {vr(GW+4,4)}, v{vSt}, {sr(R_OUT,4)}, s{sOut} offen offset:{off+16}")

def h_main(e):
    e.lab("L_h2")
    srds(e, (R_XB, R_WB, R_WOB, R_WOA, R_OUT))
    b_prep(e)
    h_qprep(e)
    wo_voff(e)
    lds_wait(e, vHC, vHT, 8, GCNT, sleep=2)
    for j in range(2):
        for g in b_dma_groups(j): e(*g)
    stamp(e, 4)
    b_proj(e)
    stamp(e, 5)
    b_attn(e)
    e(f"s_lshl_b32 s{sO+5}, s{sIDX}, 2", f"s_add_u32 s{sO+5}, s{sO+5}, s{sI}", f"s_lshl_b32 s{sO+5}, s{sO+5}, 7", f"s_add_u32 s{sO+5}, s{sO+5}, {F3}")
    out_prep(e, 12)
    e(f"s_lshr_b32 s{sO+2}, s{sTK}, 1", f"s_lshl_b32 s{sOut}, s{sO+2}, 17", f"s_and_b32 s{sO+3}, s{sI}, 1", f"s_lshl_b32 s{sO}, s{sO+3}, 11", f"s_add_u32 s{sOut}, s{sOut}, s{sO}")
    e(f"s_lshl_b32 s{sO}, s{sHP}, 6", f"s_add_u32 s{sOut}, s{sOut}, s{sO}")
    e(f"s_lshl_b32 s{sO+2}, s{sO+2}, 12", f"s_lshl_b32 s{sO+3}, s{sO+3}, 7", f"s_add_u32 s{sO+2}, s{sO+2}, s{sO+3}", f"s_add_u32 s{sO+2}, s{sO+2}, {F3}")
    e(f"v_lshl_add_u32 v{vFl}, v0, 8, s{sO+2}")
    e("s_waitcnt vmcnt(0)")
    set_flag(e, sO+5, 2, 3)
    sig(e, vHC, vH1, HCNT)
    stamp(e, 6)
    gpoll(e, vFl, vHT, 0xffff, 0, sleep=F3SLEEP)
    stamp(e, 7)
    lds_wait(e, vHC, vHT, 44, HCNT)
    gemm(e, OB, WOB_L, 0, 32)
    out_store(e, 1024)
    stamp(e, 8)
    e(f"s_cmp_lg_u32 s{sI}, 3", "s_cbranch_scc1 L_hfin")
    pub(e, 4)
    e.lab("L_hfin")
    finish(e)

def f_out(e):
    e.lab("L_f3")
    e.c("---- output stage A")
    srds(e, (R_OUT,))
    lane_id(e)
    out_prep(e, 11)
    e(f"s_lshl_b32 s{sOut}, s{sTK}, 16", f"s_lshl_b32 s{sO}, s{sHP}, 6", f"s_add_u32 s{sOut}, s{sOut}, s{sO}")
    e(f"v_mov_b32 v{vHC}, {CNT}")
    e(f"s_lshl_b32 s{sO+2}, s{sTK}, 12", f"s_add_u32 s{sO+2}, s{sO+2}, {F4}", f"v_lshl_add_u32 v{vFl}, v0, 7, s{sO+2}")
    pub(e, 0)
    stamp(e, 5)
    lds_wait(e, vHC, vHT, 44, HCNT, sleep=8)
    pry_wait(e, OS_L + 3*OS_POS)
    gpoll(e, vFl, vHT, 0x0f0f0f0f, 0, sleep=12)
    gemm(e, OA, WOA_L, 0, 12)
    stamp(e, 16)
    e(f"s_cmp_eq_u32 s{sI}, 3", "s_cbranch_scc1 L_nop7")
    pub(e, 4)
    e.lab("L_nop7")
    stamp(e, 17)
    pry_wait(e, OS_L + 5*OS_POS)
    gpoll(e, vFl, vHT, 0x30303030, 0, sleep=8)
    gemm(e, OA, WOA_L, 12, 20)
    stamp(e, 18)
    pry_wait(e, OS_L + 7*OS_POS)
    gpoll(e, vFl, vHT, 0xc0c0c0c0, 0, sleep=1)
    stamp(e, 19)
    gemm(e, OA, WOA_L, 20, 32, paced=False)
    out_store(e, 0)
    e(f"s_or_b32 s{sO}, s{sWG}, s{sI}", "s_cbranch_scc1 L_noep", f"s_mov_b32 s{sO}, {EPOCH_W}")
    set_flag(e, sO, 2, 3)
    e.lab("L_noep")
    finish(e)

def gen():
    e = Em()
    e.L.append(f".globl {KN}\n.p2align 8\n.type {KN},@function\n{KN}:")
    entry(e)
    h_kv(e)
    f_load(e)
    s_qproj(e)
    s_att(e)
    f_att(e)
    h_main(e)
    f_out(e)
    e.lab("L_codeend")
    exact(e)
    e.lab("L_end")
    e("s_endpgm")
    head = f"""; generated by work/gen10.py
; @launch grid=(256,1,1) block=(768,1,1) lds={LDS_BYTES}
.amdgcn_target "amdgcn-amd-amdhsa--gfx950"
.text
"""
    kd = f""".section .rodata,"a"
.p2align 6
.amdhsa_kernel {KN}
  .amdhsa_next_free_vgpr 168
  .amdhsa_next_free_sgpr 102
  .amdhsa_accum_offset 168
  .amdhsa_group_segment_fixed_size 0
  .amdhsa_kernarg_size 88
  .amdhsa_user_sgpr_count 2
  .amdhsa_user_sgpr_kernarg_segment_ptr 1
  .amdhsa_system_sgpr_workgroup_id_x 1
.end_amdhsa_kernel
"""
    return head + e.text() + kd

if __name__ == "__main__":
    args = [a for a in sys.argv[1:] if not a.startswith("-")]
    OPT.update(a[1:] for a in sys.argv[1:] if a.startswith("-"))
    if "stamps" in OPT: STAMPS = True
    for o in OPT:
        if o.startswith("moff"): MOFF = float(o[4:])
        if o.startswith("bd"): BDEPTH = int(o[2:])
        if o.startswith("hm"): HM = int(o[2:])
    out = args[0] if args else f"cdna_kernels/{NAME}.s"
    open(out, "w").write(gen())
    print("wrote", out)
```

```python
import sys, math, struct

NAME = "concat_heads__grouped_kv_mqa__sliding_local_dilated__prompt"
KN = NAME + "_kernel"
def f32bits(x): return struct.unpack("<I", struct.pack("<f", x))[0]

class Em:
    def __init__(self): self.L = []; self.n = 0
    def __call__(self, *ss):
        for s in ss:
            if s.startswith("s_nop "):
                self.L += ["    s_nop 0"] * (int(s.split()[1]) + 1)
            else: self.L.append("    " + s)
    def lab(self, s): self.L.append(s + ":")
    def uniq(self, p): self.n += 1; return f"L_{p}_{self.n}"
    def c(self, s): self.L.append("    ; " + s)
    def text(self): return "\n".join(self.L) + "\n"

def vr(b, n): return f"v[{b}:{b+n-1}]" if n > 1 else f"v{b}"
def sr(b, n): return f"s[{b}:{b+n-1}]" if n > 1 else f"s{b}"

sWG, sW = 2, 3
R_XA, R_WQ, R_WKV, R_WOA, R_XB, R_WB, R_WOB, R_OUT, R_WS = 32, 36, 40, 44, 48, 52, 56, 60, 64
sRB, sCB, sTB, sHP, sSB, sKIND, sRET, sI = 72, 73, 74, 75, 76, 77, 78, 79
sT = 80
sO = 92
sPOLL, sEP, sSPIN, sIDX = 98, 99, 100, 101
sTAG = 71
SPIN_MAX = 60000
QW, KW, VW, EPOCH_W, OB, OA, FL = 0, 2 << 20, (2 << 20) + 65536, 3 << 20, 4 << 20, 6 << 20, 8 << 20
F4 = FL + (512 << 10)
F1, F3, CKQ, CKA = FL, FL + (256 << 10), FL + (1 << 20), FL + (2 << 20)
WS_BYTES = 16 << 20
K = 1024
LDS_BYTES = 160 * K
SLOT = 32 * K
WKV_L = 128 * K
QI_L, NM_L, CNT, PR_L = 144 * K, 152 * K, 156 * K + 512, 157 * K
HCNT, ACNT, GCNT, KVF, RDY1, QST, LAND, SOK = 0, 4, 8, 12, 16, 20, 32, 48
RINGS = 34 * K
RXO = 24 * K
OS_L, OS_POS, OS_PAIR = 72 * K, 9216, 2304
EX_L = 68 * K
WOA_L, WOB_L = 34 * K, 0
BDEPTH, HM, F3SLEEP, WIN, BSLEEP = 4, 2, 16, 12, 0
CSC = 0.25 * math.log2(math.e)
MOFF = 96.0
LMAX = 2.0 ** 120
MF32 = "v_mfma_f32_32x32x16_bf16"
MF16 = "v_mfma_f32_16x16x32_bf16"
STAMPS = False
OPT = set()
ST = 12 << 20
SC = " sc1"

def stamp(e, k):
    if STAMPS: e("s_memrealtime s[30:31]", "s_waitcnt lgkmcnt(0)", f"s_mov_b32 s{8+k}, s30")
def cstamp(e, k):
    if STAMPS: e("s_memtime s[30:31]", "s_waitcnt lgkmcnt(0)", f"s_mov_b32 s{8+k}, s30")
def stamp_init(e):
    if not STAMPS: return
    for k in range(1, 22): e(f"s_mov_b32 s{8+k}, 0")
    e("s_mov_b32 s8, s6", "s_mov_b32 s20, s4")
DLY = None
def finish(e):
    if DLY is not None:
        l = e.uniq("dly")
        stamp(e, 15)
        e(f"s_cmp_lg_u32 s{sW}, {DLY[0]}", f"s_cbranch_scc1 {l}_d")
        e(f"s_sub_u32 s4, s{8+DLY[1]}, s8", "s_lshl_b32 s4, s4, 1", "s_add_u32 s4, s4, 4000", "s_min_u32 s4, s4, 40000")
        e.lab(l)
        e("s_sleep 2", "s_memrealtime s[30:31]", "s_waitcnt lgkmcnt(0)", "s_sub_u32 s5, s30, s8", "s_cmp_lt_u32 s5, s4", f"s_cbranch_scc1 {l}")
        e.lab(l + "_d")
        e("s_endpgm")
        return
    if STAMPS:
        stamp(e, 15); cstamp(e, 14)
        e(f"s_mul_i32 s30, s{sWG}, 12", f"s_add_u32 s30, s30, s{sW}", "s_lshl_b32 s30, s30, 7", f"s_add_u32 s30, s30, {ST}")
        e("s_mov_b64 exec, 1", "v_mov_b32 v0, 0")
        for k in range(22): e(f"v_mov_b32 v{4+k}, s{8+k}")
        for k in range(6): e(f"buffer_store_dwordx4 {vr(4+4*k,4)}, v0, {sr(R_WS,4)}, s30 offen offset:{16*k}")
    e("s_endpgm")

def dma(e, voff, R, soff, nt=False):
    e(f"buffer_load_dwordx4 v{voff}, {sr(R,4)}, s{soff} offen{' nt' if nt else ''} lds")
def spin_tail(e, l, sleep):
    e(f"s_sleep {sleep}", f"s_add_u32 s{sSPIN}, s{sSPIN}, 1", f"s_cmp_lt_u32 s{sSPIN}, {SPIN_MAX}", f"s_cbranch_scc1 {l}")
def lds_wait(e, vaddr, vtmp, target, off=0, sleep=1):
    l = e.uniq("poll")
    e.lab(l)
    e(f"ds_read_b32 v{vtmp}, v{vaddr} offset:{off}", "s_waitcnt lgkmcnt(0)", f"v_readfirstlane_b32 s{sPOLL}, v{vtmp}")
    e(f"s_cmp_ge_u32 s{sPOLL}, {target}", f"s_cbranch_scc1 {l}_d")
    spin_tail(e, l, sleep)
    e.lab(l + "_d")
def sig(e, vaddr, vone, off):
    e("s_mov_b64 exec, 1", f"ds_add_u32 v{vaddr}, v{vone} offset:{off}", "s_mov_b64 exec, -1")
def load_epoch(e):
    e(f"s_mov_b32 s{sEP}, {EPOCH_W}", f"s_load_dword s{sEP}, s[{R_WS}:{R_WS+1}], s{sEP}")
def get_epoch(e):
    e("s_waitcnt lgkmcnt(0)", f"s_add_u32 s{sEP}, s{sEP}, 1", f"s_mul_i32 s{sTAG}, s{sEP}, 0x9e3779b1")
def gpoll(e, vaddr, vtmp, lo, hi, sleep=1):
    l = e.uniq("gp")
    e(f"s_mov_b32 exec_lo, {hex(lo)}", f"s_mov_b32 exec_hi, {hex(hi)}")
    e.lab(l)
    e(f"buffer_load_dword v{vtmp}, v{vaddr}, {sr(R_WS,4)}, 0 offen sc1", "s_waitcnt vmcnt(0)")
    e(f"v_cmp_ne_u32 vcc, s{sEP}, v{vtmp}", "s_and_b64 exec, exec, vcc", f"s_cbranch_execz {l}_d")
    spin_tail(e, l, sleep)
    e.lab(l + "_d")
    e("s_mov_b64 exec, -1")
def set_flag(e, soff, va, vd):
    e(f"v_mov_b32 v{va}, 0", f"v_mov_b32 v{vd}, s{sEP}", "s_mov_b64 exec, 1")
    e(f"buffer_store_dword v{vd}, v{va}, {sr(R_WS,4)}, s{soff} offen sc1", "s_mov_b64 exec, -1")
def mk_ck(e, dst, d):
    e(f"v_xad_u32 v{dst}, v{d}, s{sTAG}, v{d+1}", f"v_xad_u32 v{dst}, v{dst}, v{d+2}, v{d+3}")
def chk(e, acc, tmp, d, ck, first):
    mk_ck(e, tmp, d)
    e(f"v_xor_b32 v{acc}, v{tmp}, v{ck}" if first else f"v_bitop3_b32 v{acc}, v{acc}, v{tmp}, v{ck} bitop3:0xf6")
def lane_id(e):
    e("v_mbcnt_lo_u32_b32 v0, -1, 0", "v_mbcnt_hi_u32_b32 v0, -1, v0")
def xa_voff(e, b, t):
    e(f"v_lshrrev_b32 v{t}, 4, v0", f"v_and_b32 v{b}, 15, v0", f"v_xor_b32 v{b}, v{b}, v{t}", f"v_lshlrev_b32 v{b}, 4, v{b}")
    e(f"v_lshl_add_u32 v{b}, v{t}, 10, v{b}")
def halfmax(e, m):
    e(f"v_mov_b32 v{m+1}, v{m}", "s_nop 1", f"v_permlane32_swap_b32 v{m}, v{m+1}", "s_nop 0", f"v_max_f32 v{m}, v{m}, v{m+1}")
def negmax(e, S, m):
    e(f"v_max3_f32 v{m}, v{S}, v{S+1}, v{S+2}")
    for k in range(3, 15, 2): e(f"v_max3_f32 v{m}, v{m}, v{S+k}, v{S+k+1}")
    e(f"v_max_f32 v{m}, v{m}, v{S+15}")
    halfmax(e, m)
    e(f"v_sub_f32 v{m}, {hex(f32bits(-MOFF))}, v{m}")

def entry(e):
    e(f"s_cmp_ge_u32 s{sWG}, 256", "s_cbranch_scc1 L_end")
    e(f"s_and_b32 s{sO}, s{sWG}, 8", f"s_add_u32 s{sO}, s{sO}, 16")
    for R, off in ((R_XA, 0), (R_WQ, 8), (R_WS, 80)): e(f"s_load_dwordx2 s[{R}:{R+1}], s[0:1], {off}")
    e(f"s_load_dwordx2 s[{R_WKV}:{R_WKV+1}], s[0:1], s{sO}")
    if STAMPS: e("s_memrealtime s[6:7]", "s_memtime s[4:5]")
    e("v_lshrrev_b32 v1, 6, v0", "v_and_b32 v0, 63, v0")
    e(f"s_lshr_b32 s{sO+1}, s{sWG}, 3")
    e(f"v_readfirstlane_b32 s{sW}, v1")
    e(f"s_and_b32 s{sO}, s{sWG}, 7", f"s_lshl_b32 s{sIDX}, s{sO}, 5", f"s_add_u32 s{sIDX}, s{sIDX}, s{sO+1}")
    e(f"s_and_b32 s{sI}, s{sW}, 3", f"s_cmp_lt_u32 s{sW}, 8", "s_cbranch_scc1 L_nopf")
    e(f"s_getpc_b64 s[{sO+2}:{sO+3}]")
    e.lab("L_pc")
    e(f"s_lshl_b32 s{sO}, s{sO+1}, 2", f"s_add_u32 s{sO}, s{sO}, s{sI}", f"s_and_b32 s{sO}, s{sO}, 31", f"s_lshl_b32 s{sO}, s{sO}, 10")
    e(f"v_lshl_add_u32 v2, v0, 7, s{sO}", f"v_min_u32 v2, L_codeend-L_pc-4, v2", "s_mov_b64 exec, 0xff")
    e(f"global_load_dword v167, v2, s[{sO+2}:{sO+3}]", "s_mov_b64 exec, -1")
    e.lab("L_nopf")
    e(f"s_lshr_b32 s{sRB}, s{sIDX}, 3", f"s_and_b32 s{sCB}, s{sIDX}, 7", f"s_lshr_b32 s{sTB}, s{sIDX}, 4", f"s_and_b32 s{sHP}, s{sIDX}, 15")
    e(f"s_lshr_b32 s{sSB}, s{sCB}, 1", f"s_and_b32 s{sKIND}, s{sCB}, 1", f"s_mov_b32 s{sSPIN}, 0")
    for R, n in ((R_XA, 2 << 20), (R_WKV, 16384), (R_WQ, 512 << 10), (R_WS, WS_BYTES)):
        e(f"s_mov_b32 s{R+2}, {hex(n)}", f"s_mov_b32 s{R+3}, 0x20000")
    e(f"s_cmp_ge_u32 s{sW}, 8", "s_cbranch_scc1 L_q", f"s_cmp_ge_u32 s{sW}, 4", "s_cbranch_scc1 L_aux")
def srds(e, lst):
    size = {R_WOA: 512 << 10, R_XB: 2 << 20, R_WB: 1536 << 10, R_WOB: 512 << 10, R_OUT: 4 << 20}
    slot = {R_WOA: 32, R_XB: 40, R_WB: 48, R_WOB: 56, R_OUT: 64}
    for R in lst: e(f"s_load_dwordx2 s[{R}:{R+1}], s[0:1], {slot[R]}", f"s_mov_b32 s{R+2}, {hex(size[R])}", f"s_mov_b32 s{R+3}, 0x20000")

vHC, vH1, vHT = 5, 6, 7
def h_kv(e):
    fx, fw, acc = 32, 48, 24
    e.c("---- H: K/V projection")
    e("s_setprio 3")
    xa_voff(e, 8, 12)
    for z in range(1, 4): e(f"v_xor_b32 v{8+z}, {z<<6}, v8")
    e("v_lshlrev_b32 v12, 4, v0")
    e(f"s_add_u32 s{sO+3}, s{sRB}, s{sI}", f"s_and_b32 s{sO+3}, s{sO+3}, 3")
    e(f"s_lshr_b32 s{sO+1}, s{sIDX}, 1", f"s_lshl_b32 s{sO+1}, s{sO+1}, 14", f"s_lshl_b32 s{sO+2}, s{sO+3}, 8", f"s_add_u32 s{sO+1}, s{sO+1}, s{sO+2}")
    e(f"s_lshl_b32 s{sT}, s{sI}, 15", f"s_lshl_b32 s{sO+2}, s{sSB}, 12", f"s_add_u32 s{sT}, s{sT}, s{sO+2}")
    e(f"s_lshl_b32 s{sT+1}, s{sI}, 12", f"s_add_u32 s{sT+1}, s{sT+1}, {WKV_L}", f"s_lshl_b32 s{sO+3}, s{sO+3}, 12")
    e("s_waitcnt lgkmcnt(0)")
    for z in range(4):
        e(f"s_add_u32 m0, s{sT}, {z*1024}", f"s_add_u32 s{sO}, s{sO+1}, {z*4096}")
        dma(e, 8 + z, R_XA, sO, nt=True)
        e(f"s_add_u32 m0, s{sT+1}, {z*1024}", f"s_add_u32 s{sO}, s{sO+3}, {z*1024}")
        dma(e, 12, R_WKV, sO)
    load_epoch(e)
    e("s_barrier")
    stamp_init(e)
    e(f"v_mov_b32 v{vHC}, {CNT}", f"v_mov_b32 v{vH1}, 1")
    e("v_and_b32 v2, 15, v0", "v_lshrrev_b32 v3, 4, v0", "v_xor_b32 v4, v2, v3", "v_lshlrev_b32 v4, 4, v4", "v_lshl_add_u32 v4, v2, 8, v4")
    e(f"v_add_u32 v8, s{sT}, v4")
    for q in range(1, 4): e(f"v_xor_b32 v{8+q}, {q<<6}, v8")
    e("v_bfe_u32 v4, v0, 2, 2", "v_lshl_add_u32 v4, v3, 3, v4", "v_lshlrev_b32 v4, 5, v4", "v_and_b32 v13, 3, v0", "v_lshl_add_u32 v4, v13, 3, v4")
    e(f"v_add_u32 v13, s{sT+1}, v4", f"v_add_u32 v14, s{sT+1}, v12")
    e(f"s_lshl_b32 s{sO}, s{sI}, 2", f"v_add_u32 v15, s{sO}, v{vHC}")
    e(f"s_lshl_b32 s{sO}, s{sRB}, 11")
    e(f"s_lshr_b32 s{sO+1}, s{sSB}, 1", f"s_lshl_b32 s{sO+1}, s{sO+1}, 10", f"s_and_b32 s{sO+2}, s{sSB}, 1", f"s_lshl_b32 s{sO+2}, s{sO+2}, 8")
    e(f"s_add_u32 s{sO+1}, s{sO+1}, s{sO+2}", f"s_add_u32 s{sO+1}, s{sO+1}, {KW}")
    e(f"s_lshl_b32 s{sO+2}, s{sSB}, 9", f"s_add_u32 s{sO+2}, s{sO+2}, {VW}")
    e(f"s_cmp_eq_u32 s{sKIND}, 0", f"s_cselect_b32 s{sO+1}, s{sO+1}, s{sO+2}", f"s_cselect_b32 s{sO+2}, 9, 8", f"s_add_u32 s{sO+4}, s{sO}, s{sO+1}")
    e("v_and_b32 v4, 1, v3", f"v_lshlrev_b32 v4, s{sO+2}, v4", "v_lshl_add_u32 v20, v2, 4, v4")
    e(f"s_lshl_b32 s{sO+5}, s{sIDX}, 7", f"s_add_u32 s{sO+5}, s{sO+5}, {F1}")
    get_epoch(e)
    e("s_waitcnt vmcnt(0)")
    stamp(e, 1)
    for q in range(4):
        e(f"ds_read_b128 {vr(fx+4*q,4)}, v{8+q}")
        e(f"ds_read_b64_tr_b16 {vr(fw+4*q,2)}, v13 offset:{q*1024}", f"ds_read_b64_tr_b16 {vr(fw+4*q+2,2)}, v13 offset:{q*1024+128}")
    sig(e, 15, vH1, LAND)
    e(f"s_cmp_lg_u32 s{sKIND}, 0", "s_cbranch_scc1 L_kv_v")
    for kind in range(2):
        for q in range(4):
            a, b = (fw, fx) if kind == 0 else (fx, fw)
            e(f"s_waitcnt lgkmcnt({10-3*q})", f"{MF16} {vr(acc,4)}, {vr(a+4*q,4)}, {vr(b+4*q,4)}, {'0' if q == 0 else vr(acc,4)}")
        if kind == 0:
            e("s_branch L_kv_d"); e.lab("L_kv_v")
    e.lab("L_kv_d")
    e(f"s_cmp_eq_u32 s{sI}, 0", "s_cbranch_scc1 L_kv_0", "s_nop 5")
    e(f"ds_write_b128 v14, {vr(acc,4)}")
    sig(e, vHC, vH1, HCNT)
    e("s_branch L_h2")
    e.lab("L_kv_0")
    lds_wait(e, vHC, vHT, 3, HCNT, sleep=0)
    for k in range(1, 4): e(f"ds_read_b128 {vr(fx+4*k,4)}, v14 offset:{k*4096}")
    e("s_waitcnt lgkmcnt(1)")
    for k in range(2): e(f"v_pk_add_f32 {vr(fx+4+2*k,2)}, {vr(fx+4+2*k,2)}, {vr(fx+8+2*k,2)}")
    e("s_waitcnt lgkmcnt(0)")
    for k in range(2): e(f"v_pk_add_f32 {vr(acc+2*k,2)}, {vr(acc+2*k,2)}, {vr(fx+12+2*k,2)}")
    for k in range(2): e(f"v_pk_add_f32 {vr(acc+2*k,2)}, {vr(acc+2*k,2)}, {vr(fx+4+2*k,2)}")
    e(f"v_cvt_pk_bf16_f32 v28, v{acc}, v{acc+1}", f"v_cvt_pk_bf16_f32 v29, v{acc+2}, v{acc+3}", "s_nop 1")
    e("v_permlane32_swap_b32 v28, v30", "v_permlane32_swap_b32 v29, v31", "s_mov_b32 exec_hi, 0", "s_nop 0")
    e(f"buffer_store_dwordx4 v[28:31], v20, {sr(R_WS,4)}, s{sO+4} offen{SC}", "s_mov_b64 exec, -1")
    if "gate1" in OPT: sig(e, vHC, vH1, KVF)
    sig(e, vHC, vH1, HCNT)
    stamp(e, 2)
    e("s_waitcnt vmcnt(0)")
    set_flag(e, sO+5, 2, 3)
    if "gate2" in OPT: sig(e, vHC, vH1, KVF)
    stamp(e, 3)
    e("s_branch L_h2")

vT0, vQ16, vAN, vT1, AQ, AK, AV, S0, S1, AO, ANM = 0, 1, 2, 3, 4, 8, 40, 104, 120, 136, 152
vVo, vFa, vC, v1_ = S1, S1+1, S1+2, S1+3
def zero_pr(e):
    e(f"s_lshl_b32 s{sO}, s{sW}, 8", f"s_add_u32 m0, s{sO}, {PR_L - 1024}", "v_mov_b32 v2, 0", "ds_write_addtid_b32 v2")
def f_load(e):
    e.lab("L_aux")
    e.c("---- F: bulk loads")
    zero_pr(e)
    xa_voff(e, 8, 12)
    e(f"s_lshl_b32 s{sO}, s{sI}, 6", f"v_xor_b32 v8, s{sO}, v8")
    e("v_lshrrev_b32 v2, 3, v0", "v_bfe_u32 v3, v0, 4, 1", "v_lshlrev_b32 v3, 2, v3", "v_and_b32 v4, 7, v0", "v_xor_b32 v4, v4, v3")
    e("v_lshlrev_b32 v4, 4, v4", "v_lshl_add_u32 v12, v2, 10, v4")
    e(f"s_lshl_b32 s{sT}, s{sI}, 12")
    e(f"s_lshl_b32 s{sT+1}, s{sI}, 15", f"s_lshl_b32 s{sO}, s{sCB}, 7", f"s_add_u32 s{sT+1}, s{sT+1}, s{sO}")
    e(f"s_lshl_b32 s{sT+2}, s{sRB}, 16", f"s_add_u32 s{sT+2}, s{sT+2}, s{sT}", f"s_lshl_b32 s{sT+9}, s{sI}, 10")
    for du in range(1, 4):
        e(f"s_add_u32 s{sO}, s{sSB}, {du}", f"s_and_b32 s{sO}, s{sO}, 3")
        e(f"s_lshl_b32 s{sT+2+du}, s{sO}, 14", f"s_add_u32 s{sT+2+du}, s{sT+2+du}, s{sT+2}")
        e(f"s_lshl_b32 s{sT+5+du}, s{sO}, 12", f"s_add_u32 s{sT+5+du}, s{sT+5+du}, s{sT+9}")
    e(f"v_mov_b32 v{vC}, {CNT}", f"v_mov_b32 v{v1_}, 1")
    e("s_waitcnt lgkmcnt(0)")
    load_epoch(e)
    e("s_barrier")
    def chunk(sg):
        e(f"s_add_u32 s{sO+1}, s{sRB}, {sg}", f"s_and_b32 s{sO+1}, s{sO+1}, 3", f"s_lshl_b32 s{sO+2}, s{sO+1}, 8")
        e(f"s_lshl_b32 s{sO+1}, s{sO+1}, 17", f"s_add_u32 s{sO+1}, s{sO+1}, s{sT+1}")
        for i in range(4):
            e(f"s_add_u32 m0, s{sT}, {sg*SLOT + 16384 + i*1024}", f"s_add_u32 s{sO}, s{sO+1}, {i*8192}")
            dma(e, 12, R_WQ, sO)
        for du in range(1, 4):
            e(f"s_add_u32 m0, s{sT+5+du}, {sg*SLOT}", f"s_add_u32 s{sO}, s{sT+2+du}, s{sO+2}")
            dma(e, 8, R_XA, sO, nt=True)
    gated = "gate1" in OPT or "gate2" in OPT
    nb = 2 if gated else 4
    for sg in range(nb): chunk(sg)
    stamp_init(e)
    if gated:
        att_consts(e)
        get_epoch(e)
        e("s_waitcnt vmcnt(7)"); sig(e, vC, v1_, LAND)
        lds_wait(e, vC, S0, 1, KVF, sleep=1)
        chunk(2)
        e("s_waitcnt vmcnt(7)"); sig(e, vC, v1_, LAND + 4)
        chunk(3)
        stamp(e, 1)
        for sg in range(2, 4):
            e(f"s_waitcnt vmcnt({21-7*sg})"); sig(e, vC, v1_, LAND + 4*sg)
    else:
        stamp(e, 1)
        for sg in range(4):
            e(f"s_waitcnt vmcnt({21-7*sg})"); sig(e, vC, v1_, LAND + 4*sg)
        att_consts(e)
        get_epoch(e)
    stamp(e, 2)
    e("s_branch L_f2")

sAW, sP, sExp = sT+8, sT+9, sT+10
def att_consts(e):
    e(f"v_and_b32 v{S0}, 31, v0", f"v_cmp_eq_u32 vcc, 16, v{S0}", f"v_mov_b32 v{S0+1}, 0x3f803f80", f"v_lshlrev_b32 v{vQ16}, 4, v0")
    e(f"v_cndmask_b32 v{AV}, 0, v{S0+1}, vcc")
    for r in range(1, 64): e(f"v_mov_b32 v{AV+r}, v{AV}")
    e(f"v_lshlrev_b32 v{vAN}, 4, v{S0}", f"v_add_u32 v{vAN}, {NM_L}, v{vAN}")
    e(f"v_lshrrev_b32 v{vVo}, 5, v0", f"v_lshlrev_b32 v{vVo}, 8, v{vVo}", f"v_and_b32 v{S0+2}, 15, v0", f"v_lshl_add_u32 v{vVo}, v{S0+2}, 4, v{vVo}")
def gather_bases(e):
    e(f"s_sub_u32 s{sAW}, s{sW}, 4", f"s_lshl_b32 s{sO+2}, s{sAW}, 13")
    e(f"s_add_u32 s{sO}, s{sO+2}, {KW}", f"s_add_u32 s{sO+1}, s{sO+2}, {VW}", f"s_add_u32 s{sO+2}, s{sO}, 4096", f"s_add_u32 s{sO+3}, s{sO+1}, 4096")
def gather(e, t0, t1):
    for t in range(t0, t1):
        e(f"buffer_load_dwordx4 {vr(AK+4*t,4)}, v{vQ16}, {sr(R_WS,4)}, s{sO+2*(t>>2)} offen offset:{(t&3)*1024}{SC}")
        e("s_mov_b32 exec_lo, 0xffff", "s_mov_b32 exec_hi, 0xffff")
        for f in (2*t, 2*t+1):
            e(f"buffer_load_dwordx4 {vr(AV+4*f,4)}, v{vVo}, {sr(R_WS,4)}, s{sO+1+2*(t>>2)} offen offset:{(f&7)*512}{SC}")
        e("s_mov_b64 exec, -1")
def att_addrs(e):
    e(f"s_mul_i32 s{sExp}, s{sI}, {OS_PAIR}", f"s_add_u32 s{sExp}, s{sExp}, {OS_L}")
    e(f"v_add_u32 v{vT1}, s{sExp}, v{vQ16}", f"v_lshl_add_u32 v{vT0}, v0, 2, s{sExp}", f"v_add_u32 v{vQ16}, {QI_L}, v{vQ16}")
    e(f"s_lshl_b32 s{sO+4}, s{sI}, 8", f"s_add_u32 m0, s{sO+4}, {PR_L}")

def s_qproj(e):
    vXa, vWa, vXb, vWb, vSt, vLd = 8, 16, 17, 25, 26, 27
    acc, fr, NF, T = 104, 124, 5, 28
    a_, b_, c_, d_ = T, T+1, T+2, T+3
    e.lab("L_q")
    e.c("---- S: Q projection")
    zero_pr(e)
    e(f"s_mov_b32 m0, {CNT}", "s_nop 0", "ds_write_addtid_b32 v2", "s_waitcnt lgkmcnt(0)")
    load_epoch(e)
    e("s_barrier")
    stamp_init(e)
    e(f"v_mov_b32 v{vC}, {CNT}", f"v_mov_b32 v{v1_}, 1")
    att_consts(e)
    e(f"s_and_b32 s{sO}, s{sI}, 1", f"s_lshl_b32 s{sO}, s{sO}, 13")
    e(f"v_and_b32 v{a_}, 31, v0", f"v_lshrrev_b32 v{b_}, 5, v0", f"v_and_b32 v{c_}, 15, v0", f"v_xor_b32 v{c_}, v{c_}, v{b_}")
    e(f"v_lshl_add_u32 v{d_}, v{a_}, 8, s{sO}", f"v_lshl_add_u32 v{vXa}, v{c_}, 4, v{d_}")
    for s in range(1, 8): e(f"v_xor_b32 v{vXa+s}, {s<<5}, v{vXa}")
    e(f"v_bfe_u32 v{a_}, v0, 2, 2", f"v_lshl_add_u32 v{c_}, v{b_}, 3, v{a_}", f"v_lshlrev_b32 v{c_}, 7, v{c_}", f"v_lshrrev_b32 v{a_}, 1, v{a_}")
    e(f"s_lshr_b32 s{sO}, s{sI}, 1", f"v_xor_b32 v{a_}, s{sO}, v{a_}", f"v_lshl_add_u32 v{c_}, v{a_}, 6, v{c_}")
    e(f"v_bfe_u32 v{a_}, v0, 4, 1", f"v_lshl_add_u32 v{c_}, v{a_}, 5, v{c_}", f"v_and_b32 v{a_}, 3, v0", f"v_lshl_add_u32 v{c_}, v{a_}, 3, v{c_}")
    e(f"v_add_u32 v{vWa}, 16384, v{c_}", f"v_lshl_add_u32 v{vLd}, v{a_}, 2, v{vC}")
    e(f"v_bfe_u32 v{a_}, v0, 3, 2", f"v_lshlrev_b32 v{a_}, 13, v{a_}", f"v_lshl_add_u32 v{a_}, v{b_}, 9, v{a_}")
    e(f"v_and_b32 v{c_}, 7, v0", f"v_lshl_add_u32 v{vSt}, v{c_}, 4, v{a_}")
    for s in range(9): e(f"v_add_u32 v{vXb+s}, 65536, v{vXa+s}")
    get_epoch(e)
    e(f"s_mov_b32 s{sT+6}, {hex(f32bits(CSC))}")
    e(f"s_and_b32 s{sO+1}, s{sI}, 1", f"s_lshl_b32 s{sO+2}, s{sRB}, 1", f"s_add_u32 s{sO+1}, s{sO+1}, s{sO+2}", f"s_lshl_b32 s{sO+1}, s{sO+1}, 15")
    e(f"s_lshl_b32 s{sO+2}, s{sCB}, 10", f"s_add_u32 s{sO+1}, s{sO+1}, s{sO+2}")
    e(f"s_lshr_b32 s{sO+2}, s{sI}, 1", f"s_lshl_b32 s{sO+2}, s{sO+2}, 8", f"s_add_u32 s{sT+7}, s{sO+1}, s{sO+2}", f"s_add_u32 s{sO+2}, s{sO+2}, {QI_L}")
    e(f"v_and_b32 v{b_}, 0x3ff, v{vSt}", f"v_add_u32 v{b_}, s{sO+2}, v{b_}")
    e(f"s_lshr_b32 s{sT+5}, s{sO+1}, 2", f"s_and_b32 s{sO}, s{sI}, 2", f"s_lshl_b32 s{sO}, s{sO}, 2", f"s_add_u32 s{sT+5}, s{sT+5}, s{sO}", f"s_add_u32 s{sT+5}, s{sT+5}, {CKQ}")
    e(f"v_and_b32 v{T+4}, 0x70, v{vSt}", f"v_and_b32 v{T+5}, 0xffffff80, v{vSt}", f"v_lshrrev_b32 v{T+5}, 2, v{T+5}", f"v_add_u32 v{T+4}, v{T+4}, v{T+5}")
    e(f"s_and_b32 s{sO}, s{sCB}, 3", f"s_lshl_b32 s{sO}, s{sO}, 3", f"s_lshl_b32 s{sT+11}, 0xff, s{sO}")
    e(f"s_lshr_b32 s{sO}, s{sCB}, 2", f"s_and_b32 s{sO+1}, s{sI}, 1", f"s_cmp_eq_u32 s{sO}, s{sO+1}", f"s_cselect_b32 s{sT+11}, s{sT+11}, 0")
    e(f"s_lshl_b32 s{sO}, s{sI}, 2", f"v_add_u32 v{vFa}, s{sO}, v{vC}")
    gather_bases(e)
    def landwait(mask):
        lq = e.uniq("ql")
        e.lab(lq)
        e(f"ds_read_b32 v{a_}, v{vLd} offset:{LAND}", "s_waitcnt lgkmcnt(0)", f"v_cmp_gt_u32 vcc, 5, v{a_}")
        e(f"s_and_b32 s{sO+5}, vcc_lo, 15", f"s_and_b32 s{sO+4}, s{sO+5}, {mask}", f"s_cbranch_scc0 {lq}_d")
        spin_tail(e, lq, 1)
        e.lab(lq + "_d")
    def rd(n):
        sg, s = n >> 3, n & 7
        so = (sg & 1) * SLOT
        xa, wa = (vXa + s, vWa) if sg < 2 else (vXb + s, vWb)
        f = fr + 8 * (n % NF)
        e(f"ds_read_b128 {vr(f,4)}, v{xa} offset:{so}")
        e(f"ds_read_b64_tr_b16 {vr(f+4,2)}, v{wa} offset:{so+s*2048}", f"ds_read_b64_tr_b16 {vr(f+6,2)}, v{wa} offset:{so+s*2048+512}")
    e("s_setprio 3")
    landwait(1)
    stamp(e, 16)
    for n in range(NF): rd(n)
    for n in range(32):
        f = fr + 8 * (n % NF)
        e(f"s_waitcnt lgkmcnt({min(3*(NF-1), 3*(31-n))})", f"{MF32} {vr(acc,16)}, {vr(f+4,4)}, {vr(f,4)}, {'0' if n == 0 else vr(acc,16)}")
        if n + NF < 32:
            if (n + NF) % 8 == 0:
                bit = 1 << ((n + NF) >> 3)
                sk = e.uniq("lok")
                e(f"s_and_b32 s{sO+4}, s{sO+5}, {bit}", f"s_cbranch_scc0 {sk}")
                landwait(bit)
                e.lab(sk)
            rd(n + NF)
    e(f"v_mov_b32 v{c_}, s{sT+6}", "s_nop 10")
    for r in range(8): e(f"v_pk_mul_f32 {vr(acc+2*r,2)}, {vr(acc+2*r,2)}, {vr(c_,2)} op_sel_hi:[1,0]")
    P = AO
    for j in range(8): e(f"v_cvt_pk_bf16_f32 v{P+j}, v{acc+2*j}, v{acc+2*j+1}")
    e(f"s_mov_b32 exec_lo, s{sT+11}", f"s_mov_b32 exec_hi, s{sT+11}")
    e(f"ds_write_b128 v{b_}, {vr(P,4)}", f"ds_write_b128 v{b_}, {vr(P+4,4)} offset:128")
    sig(e, vC, v1_, ACNT)
    e(f"buffer_store_dwordx4 {vr(P,4)}, v{vSt}, {sr(R_WS,4)}, s{sT+7} offen{SC}")
    e(f"buffer_store_dwordx4 {vr(P+4,4)}, v{vSt}, {sr(R_WS,4)}, s{sT+7} offen offset:128{SC}")
    mk_ck(e, P+8, P); mk_ck(e, P+9, P+4)
    e(f"buffer_store_dwordx2 {vr(P+8,2)}, v{T+4}, {sr(R_WS,4)}, s{sT+5} offen{SC}")
    if "qfirst" in OPT: sig(e, vC, v1_, QST)
    stamp(e, 2)
    lds_wait(e, vFa, S0+2, 1, SOK)
    lds_wait(e, vC, S0+2, 4, GCNT, sleep=2)
    if "sdelay" in OPT: lds_wait(e, vC, S0+2, 1, RDY1)
    stamp(e, 7)
    gather(e, 0, 8)
    sig(e, vC, v1_, GCNT)

def pk(S, j):
    d = S + (j if j < 4 else 4 + j)
    return f"v_cvt_pk_bf16_f32 v{d}, v{S+2*j}, v{S+2*j+1}"
def rdq(e):
    e(f"ds_read_b128 {vr(AQ,4)}, v{vQ16}")
    for k in range(4): e(f"ds_read_b128 {vr(ANM+4*k,4)}, v{vAN}")
def dump(e, kind):
    e(f"ds_write_b128 v{vT1}, {vr(AO,4)}", f"ds_write_b128 v{vT1}, {vr(AO+4,4)} offset:1024", f"ds_write_b32 v{vT0}, v{AO+8} offset:2048")
    e(f"ds_write_addtid_b32 v{vT1} offset:{0 if kind == 'F' else 1024}")
def advance(e):
    e(f"v_add_u32 v{vT1}, {OS_POS}, v{vT1}", f"v_add_u32 v{vT0}, {OS_POS}, v{vT0}")
def init_o(e, off):
    e(f"ds_read_b128 {vr(AO,4)}, v{vT1} offset:{off}", f"ds_read_b128 {vr(AO+4,4)}, v{vT1} offset:{off+1024}", f"ds_read_b32 v{AO+8}, v{vT0} offset:{off+2048}")

def att_block(e, mode):
    kind = "F" if mode[0] == "F" else "S"
    lo = 1 if kind == "F" else 0
    def prio(p):
        if mode != "B" and "noprio" not in OPT: e(f"s_setprio {p}")
        elif mode == "B" and "btog" in OPT: e(f"s_setprio {p}")
    for t in range(8):
        Sc, Sn = (S0, S1) if t % 2 == 0 else (S1, S0)
        tp, tn = (t - 1) % 8, (t + 1) % 8
        def X(*toks):
            for k in toks: e(f"v_exp_f32 v{Sc+k}, v{Sc+k}" if isinstance(k, int) else pk(Sc, int(k[1:])))
        c0 = "0" if (t == 1 and kind == "F") else vr(AO, 16)
        pv0 = f"{MF32} {vr(AO,16)}, {vr(AV+8*tp,4)}, {vr(Sn,4)}, {c0}"
        pv1 = f"{MF32} {vr(AO,16)}, {vr(AV+8*tp+4,4)}, {vr(Sn+8,4)}, {vr(AO,16)}"
        qk = f"{MF32} {vr(Sn,16)}, {vr(AK+4*tn,4)}, {vr(AQ,4)}, {vr(ANM,16)}"
        if t == 1 and kind == "S":
            X(0); e(pk(Sn, 7)); X(1, 2)
            e("s_waitcnt lgkmcnt(0)", pv0); X(3, "p0", 4, "p1")
            e(pv1); X(5, 6, "p2", 7)
            e(qk); prio(lo)
            X(8, "p3", 9, 10, "p4", 11, 12)
            prio(3)
            X("p5", 13, 14, "p6", 15)
            continue
        skip_pv = mode == "F0" and t == 0
        if mode == "F0" and t > 0: e(f"s_waitcnt vmcnt({max(0, 23 - 3*(t+1))})")
        if not skip_pv: e(pv0)
        X(0)
        if not skip_pv: e(pk(Sn, 7))
        X(1, 2)
        if not skip_pv: e(pv1)
        X(3, "p0", 4, "p1")
        if t == 7 and mode != "F0": e("s_waitcnt lgkmcnt(0)")
        if t == 7 and mode == "B": e(f"v_readfirstlane_b32 s{sPOLL}, v{Sn+4}")
        if skip_pv: e("s_waitcnt vmcnt(20)")
        if not (t == 7 and mode == "F0"): e(qk)
        prio(lo)
        X(5, 6, "p2", 7, 8, "p3")
        if t == 0 and mode != "F0":
            if mode == "S":
                dump(e, kind); init_o(e, OS_POS); advance(e)
            else:
                sk = e.uniq("nodump")
                e(f"s_cmp_eq_u32 s{sP}, {1 if mode == 'F' else 0}", f"s_cbranch_scc1 {sk}")
                dump(e, kind); advance(e)
                if mode == "B": e(f"s_add_u32 s{sExp}, s{sExp}, {OS_POS}")
                e.lab(sk)
                if mode == "B":
                    e(f"s_cmp_ge_u32 s{sPOLL}, s{sExp}", "s_cbranch_scc0 L_swait")
                    e.lab("L_swait_ret")
                    init_o(e, 0)
        X(9)
        if t == 6:
            if mode == "B":
                e(f"s_cmp_eq_u32 s{sP}, 0", "s_cbranch_scc1 L_yprep"); e.lab("L_yprep_ret")
            if mode == "F":
                e(f"s_cmp_eq_u32 s{sP}, 1", "s_cbranch_scc1 L_fprep"); e.lab("L_fprep_ret")
            e(f"v_add_u32 v{vQ16}, 1024, v{vQ16}", f"v_add_u32 v{vAN}, 512, v{vAN}")
            if mode != "F0": rdq(e)
            if mode == "B": e(f"ds_read_addtid_b32 v{Sc+4}")
        X(10, "p4", 11, 12)
        if t == 0 and mode == "S": e("s_wakeup")
        prio(3)
        X("p5", 13, 14, "p6", 15)

def att_finish(e, kind):
    e(f"{MF32} {vr(AO,16)}, {vr(AV+8*7,4)}, {vr(S1,4)}, {vr(AO,16)}", pk(S1, 7), "s_nop 1")
    e(f"{MF32} {vr(AO,16)}, {vr(AV+8*7+4,4)}, {vr(S1+8,4)}, {vr(AO,16)}", "s_nop 11")
    dump(e, kind)
    e("s_waitcnt lgkmcnt(0)", "s_wakeup")
def qk0(e):
    e(f"{MF32} {vr(S0,16)}, {vr(AK,4)}, {vr(AQ,4)}, {vr(ANM,16)}", "s_nop 11")

def f_att(e):
    e.lab("L_f2")
    e("s_setprio 3")
    gather_bases(e)
    e(f"s_lshl_b32 s{sO+4}, s{sI}, 12", f"s_add_u32 s{sO+4}, s{sO+4}, {F1}", f"v_lshl_add_u32 v{vFa}, v0, 7, s{sO+4}")
    e(f"s_lshl_b32 s{sO+4}, s{sRB}, 10", f"s_add_u32 s{sO+4}, s{sO+4}, {F1 - 32*256}", "s_mov_b32 exec_lo, 0", f"v_lshl_add_u32 v{vFa}, v0, 8, s{sO+4}")
    e(f"s_lshl_b32 s{sO+4}, s{sRB}, 11", f"s_add_u32 s{sO+4}, s{sO+4}, {KW}")
    stamp(e, 6)
    gpoll(e, vFa, S0, 0xffffffff, 0x3, sleep=1)
    if "qfirst" in OPT: lds_wait(e, vC, S0, 4, QST, sleep=0)
    stamp(e, 7)
    e(f"buffer_load_dwordx4 {vr(AO,4)}, v{vQ16}, {sr(R_WS,4)}, s{sO+4} offen{SC}")
    gather(e, 0, 8)
    sig(e, vC, v1_, GCNT)
    att_addrs(e)
    lds_wait(e, vC, S0, 4, ACNT, sleep=0)
    e(f"ds_read_b128 {vr(AQ,4)}, v{vQ16}")
    stamp(e, 8)
    e("s_waitcnt vmcnt(24) lgkmcnt(0)", f"{MF32} {vr(S0,16)}, {vr(AO,4)}, {vr(AQ,4)}, 0", "s_nop 11")
    negmax(e, S0, ANM)
    for r in range(1, 16): e(f"v_mov_b32 v{ANM+r}, v{ANM}")
    e(f"ds_write_b128 v{vAN}, {vr(ANM,4)}", "s_waitcnt vmcnt(23)")
    stamp(e, 3); cstamp(e, 13)
    qk0(e)
    att_block(e, "F0")
    att_finish(e, "F")
    advance(e)
    stamp(e, 20)
    e(f"v_mov_b32 v{S0}, {CNT}", f"s_mov_b32 s{sP}, 1")
    lds_wait(e, S0, S0+1, 1, RDY1, sleep=2)
    rdq(e)
    stamp(e, 21); cstamp(e, 10)
    e("s_waitcnt lgkmcnt(0)")
    qk0(e)
    e.L.append("    .p2align 3")
    e.lab("L_floop")
    att_block(e, "F")
    e(f"s_add_u32 s{sP}, s{sP}, 1", f"s_cmp_lt_u32 s{sP}, 8", "s_cbranch_scc1 L_floop")
    att_finish(e, "F")
    stamp(e, 4); cstamp(e, 11)
    e("s_branch L_f3")
    e.lab("L_fprep")
    e(f"v_mov_b32 v{S0+4}, {CNT}")
    lds_wait(e, S0+4, S0+5, 8, ACNT, sleep=2)
    e("s_branch L_fprep_ret")

def s_att(e):
    att_addrs(e)
    e(f"s_mov_b32 s{sP}, 0", f"v_mov_b32 v{S0}, m0", "s_setprio 0")
    stamp(e, 8)
    lds_wait(e, S0, S0+1, 1, sleep=6)
    rdq(e)
    e("s_waitcnt vmcnt(0) lgkmcnt(0)")
    stamp(e, 3); cstamp(e, 13)
    qk0(e)
    e.L.append("    .p2align 3")
    e.lab("L_bloop")
    att_block(e, "B")
    e(f"s_add_u32 s{sP}, s{sP}, 1", f"s_cmp_ge_u32 s{sP}, 8", "s_cbranch_scc1 L_sfin")
    e(f"s_cmp_lt_u32 s{sPOLL}, {OS_L + 7*OS_POS}", "s_cbranch_scc1 L_bloop")
    stamp(e, 5)
    e("s_setprio 3")
    e.L.append("    .p2align 3")
    e.lab("L_sloop")
    att_block(e, "S")
    e(f"s_add_u32 s{sP}, s{sP}, 1")
    if STAMPS:
        e(f"s_cmp_lg_u32 s{sP}, 4", "s_cbranch_scc1 L_sns"); stamp(e, 4); cstamp(e, 10); e.lab("L_sns")
    e(f"s_cmp_lt_u32 s{sP}, 8", "s_cbranch_scc1 L_sloop")
    e.lab("L_sfin")
    att_finish(e, "S")
    finish(e)
    e.lab("L_yprep")
    e(f"v_mov_b32 v{S0+4}, {CNT}")
    lds_wait(e, S0+4, S0+5, 1, RDY1, sleep=2)
    e("s_branch L_yprep_ret")
    e.lab("L_swait")
    e(f"v_mov_b32 v{S0+4}, m0")
    lds_wait(e, S0+4, S0+5, f"s{sExp}", sleep=4)
    e("s_branch L_swait_ret")

sBX, sBH, sBW, sKC, sBXL, sBHL, sBWL = sT, sT+1, sT+2, sT+3, sT+4, sT+5, sT+6
BA = 8
aq, ak, av, ahk, ahv, MC = 24, 40, 56, 72, 76, 80
MP = MC + 4
FR = 104
def b_prep(e):
    e.c("---- B prep")
    e("v_lshrrev_b32 v20, 3, v0", "v_and_b32 v21, 7, v0", "v_lshrrev_b32 v22, 1, v20", "v_xor_b32 v23, v21, v22", "v_lshlrev_b32 v23, 4, v23")
    e("v_lshl_add_u32 v1, v20, 11, v23", "v_xor_b32 v2, 64, v1")
    e(f"s_lshl_b32 s{sO}, s{sI}, 5", f"v_xor_b32 v3, s{sO}, v1")
    e("v_and_b32 v22, 1, v22", "v_lshlrev_b32 v22, 2, v22", "v_xor_b32 v23, v21, v22", "v_lshlrev_b32 v23, 4, v23")
    e("v_mul_u32_u24 v20, 3072, v20", "v_add_u32 v4, v20, v23", "v_xor_b32 v16, 32, v4")
    e(f"s_and_b32 s{sO}, s{sI}, 1", f"s_lshr_b32 s{sO+1}, s{sI}, 1", f"s_lshl_b32 s{sO+1}, s{sO+1}, 10")
    e(f"s_lshl_b32 s{sBX}, s{sRB}, 16", f"s_max_u32 s{sBH}, s{sBX}, 16384", f"s_sub_u32 s{sBH}, s{sBH}, 16384")
    e(f"s_add_u32 s{sBX}, s{sBX}, s{sO+1}", f"s_add_u32 s{sBH}, s{sBH}, s{sO+1}")
    e(f"s_lshl_b32 s{sO+1}, s{sO}, 15", f"s_add_u32 s{sBX}, s{sBX}, s{sO+1}")
    e(f"s_lshl_b32 s{sO+1}, s{sO}, 13", f"s_add_u32 s{sBH}, s{sBH}, s{sO+1}")
    e(f"s_mul_i32 s{sBW}, s{sI}, {16*3072}", f"s_lshl_b32 s{sO+1}, s{sCB}, 7", f"s_add_u32 s{sBW}, s{sBW}, s{sO+1}")
    e(f"s_lshl_b32 s{sKC}, s{sRB}, 1", f"s_add_u32 s{sKC}, s{sKC}, s{sCB}")
    e(f"s_lshl_b32 s{sBWL}, s{sI}, 11", f"s_add_u32 s{sBXL}, s{sBWL}, {RXO + 2048}", f"s_lshl_b32 s{sBHL}, s{sI}, 9", f"s_add_u32 s{sBHL}, s{sBHL}, {RXO}")
    e("v_and_b32 v20, 31, v0", "v_lshrrev_b32 v21, 5, v0", "v_bfe_u32 v22, v0, 1, 3", "v_xor_b32 v22, v22, v21", "v_lshlrev_b32 v22, 4, v22", "v_lshl_add_u32 v22, v20, 7, v22")
    e(f"s_lshl_b32 s{sO}, s{sO}, 12", f"s_add_u32 s{sO}, s{sO}, {RXO + 2048}", f"v_add_u32 v{BA}, s{sO}, v22")
    for s in range(1, 4): e(f"v_xor_b32 v{BA+s}, {s<<5}, v{BA}")
    e("v_bfe_u32 v20, v0, 2, 2", "v_and_b32 v23, 3, v0", "v_and_b32 v17, 2, v20", "v_or_b32 v18, v17, v21", "v_bfe_u32 v19, v0, 4, 1")
    e(f"s_and_b32 s{sO}, s{sI}, 2", f"v_or_b32 v19, s{sO}, v19", "v_xor_b32 v18, v18, v19")
    e("v_lshl_add_u32 v22, v21, 3, v20", "v_lshlrev_b32 v22, 7, v22", "v_lshl_add_u32 v22, v18, 5, v22", f"v_lshl_add_u32 v{BA+4}, v23, 3, v22")
    e("v_lshrrev_b32 v21, 4, v0", "v_bfe_u32 v22, v0, 1, 3", "v_xor_b32 v22, v22, v21", "v_lshlrev_b32 v22, 4, v22", "v_and_b32 v19, 15, v0")
    e("v_lshl_add_u32 v22, v19, 7, v22", f"v_add_u32 v{BA+5}, {RXO}, v22", f"v_xor_b32 v{BA+6}, 64, v{BA+5}")
    e("v_and_b32 v18, 1, v21", "v_or_b32 v18, v17, v18", f"v_xor_b32 v18, s{sI}, v18")
    e("v_lshl_add_u32 v22, v21, 3, v20", "v_lshlrev_b32 v22, 7, v22", "v_lshl_add_u32 v22, v18, 5, v22", f"v_lshl_add_u32 v{BA+7}, v23, 3, v22")
    e(f"v_mov_b32 v{MC}, {hex(f32bits(-1e30))}")
    for r in range(1, 20): e(f"v_mov_b32 v{MC+r}, v{MC}")
    def setm(reg, r, shift):
        m = 0
        for l in range(64):
            d = (l & 31) - ((r & 3) + 8 * (r >> 2) + 4 * (l >> 5)) + shift
            if 0 <= d <= 7: m |= 1 << l
        if m: e(f"s_mov_b32 exec_lo, {hex(m & 0xffffffff)}", f"s_mov_b32 exec_hi, {hex(m >> 32)}", f"v_mov_b32 v{reg}, 0")
    for r in range(16): setm(MC + r, r, 0)
    e(f"s_cmp_eq_u32 s{sRB}, 0", "s_cbranch_scc1 L_nomp")
    for r in range(12, 16): setm(MP + r, r, 32)
    e.lab("L_nomp")
    e("s_mov_b64 exec, -1")

def h_qprep(e):
    T, QK, SA, SB = 20, 104, 120, 136
    e.c("---- H: Q fragments + max images of positions 1+i, 5+i")
    e(f"s_add_u32 s{sO+1}, s{sI}, 1", f"s_cmp_lt_u32 s{sI}, s{sCB}", f"s_cselect_b32 s{sO+1}, s{sI}, s{sO+1}")
    e(f"s_add_u32 s{sO}, s{sI}, 4", f"s_add_u32 s{sO+2}, s{sI}, 5", f"s_cmp_lt_u32 s{sO}, s{sCB}", f"s_cselect_b32 s{sO+2}, s{sO}, s{sO+2}", f"s_min_u32 s{sO+2}, s{sO+2}, 7")
    e(f"v_and_b32 v{T}, 32, v0", f"v_and_b32 v{T+1}, 7, v0", f"v_lshl_add_u32 v{T}, v{T+1}, 2, v{T}", f"v_bfe_u32 v{T+1}, v0, 3, 2", f"v_add_lshl_u32 v18, v{T}, v{T+1}, 2")
    e(f"v_lshlrev_b32 v{T+2}, 4, v0", f"s_lshl_b32 s{sO+3}, s{sIDX}, 13")
    e(f"s_lshl_b32 s{sO+1}, s{sO+1}, 10", f"s_add_u32 s{sO+1}, s{sO+1}, s{sO+3}", f"s_lshl_b32 s{sO+2}, s{sO+2}, 10", f"s_add_u32 s{sO+2}, s{sO+2}, s{sO+3}")
    e(f"s_lshl_b32 s{sO+4}, s{sI}, 13", f"s_add_u32 s{sO+4}, s{sO+4}, {KW + 32768}")
    e(f"s_lshl_b32 s{sO+5}, s{sI}, 12", f"s_add_u32 s{sO+5}, s{sO+5}, {F1 + 16384}", f"v_lshl_add_u32 v{T+3}, v0, 7, s{sO+5}")
    e(f"s_lshl_b32 s{sO+5}, s{sI}, 2", f"v_add_u32 v17, s{sO+5}, v{vHC}")
    lds_wait(e, vHC, vHT, 5, LAND + 12, sleep=2)
    gpoll(e, T + 3, T + 1, 0xffffffff, 0, sleep=2)
    sig(e, 17, vH1, SOK)
    e(f"buffer_load_dwordx4 {vr(QK+8,4)}, v{T+2}, {sr(R_WS,4)}, s{sO+4} offen{SC}")
    lds_wait(e, vHC, vHT, 4, ACNT, sleep=2)
    e(f"s_lshl_b32 s{sO}, s{sI}, 10", f"s_add_u32 s{sO}, s{sO}, {QI_L+1024}", f"v_add_u32 v{T}, s{sO}, v{T+2}", f"v_and_b32 v{T+1}, 0x1ff, v{T+2}")
    e(f"s_lshl_b32 s{sO}, s{sI}, 9", f"s_add_u32 s{sO}, s{sO}, {NM_L+512}", f"v_add_u32 v{T+1}, s{sO}, v{T+1}")
    for z in range(2):
        e(f"s_lshr_b32 s{sO+3+z}, s{sO+1+z}, 2", f"s_add_u32 s{sO+3+z}, s{sO+3+z}, {CKQ}")
    def ldq(z):
        e(f"buffer_load_dwordx4 {vr(QK+4*z,4)}, v{T+2}, {sr(R_WS,4)}, s{sO+1+z} offen{SC}", f"buffer_load_dword v{QK+12+z}, v18, {sr(R_WS,4)}, s{sO+3+z} offen{SC}")
    lds_wait(e, vHC, vHT, 4, GCNT, sleep=1)
    ldq(0); ldq(1)
    for z in range(2):
        l = e.uniq("qt")
        if z == 1: e(f"s_cmp_eq_u32 s{sI}, 3", "s_cbranch_scc1 L_nop8")
        e(f"s_waitcnt vmcnt({2 - 2*z})", f"s_branch {l}_c")
        e.lab(l)
        ldq(z)
        e("s_waitcnt vmcnt(0)")
        e.lab(l + "_c")
        mk_ck(e, QK+14, QK+4*z)
        e(f"v_cmp_ne_u32 vcc, v{QK+14}, v{QK+12+z}", f"s_cbranch_vccz {l}_d")
        spin_tail(e, l, 4)
        e.lab(l + "_d")
        e(f"{MF32} {vr(SA,16)}, {vr(QK+8,4)}, {vr(QK+4*z,4)}, 0", f"ds_write_b128 v{T}, {vr(QK+4*z,4)} offset:{4096*z}", "s_nop 10")
        negmax(e, SA, 152 + 4*z)
        for r in range(1, 4): e(f"v_mov_b32 v{152+4*z+r}, v{152+4*z}")
        e(f"ds_write_b128 v{T+1}, {vr(152+4*z,4)} offset:{2048*z}")
        if z == 0:
            e(f"s_cmp_eq_u32 s{sI}, 0", "s_cselect_b32 exec_lo, 1, 0", "s_mov_b32 exec_hi, 0", f"ds_write_b32 v{vHC}, v{vH1} offset:{RDY1}", "s_mov_b64 exec, -1")
            stamp(e, 9)
    e.lab("L_nop8")
    sig(e, vHC, vH1, ACNT)
    stamp(e, 10)

class Lst(list):
    def __call__(self, *x): self.extend(x)
def b_dma_groups(j):
    ro = (j & 1) * RINGS
    G = [Lst() for _ in range(5)]
    g = G[0]
    g(f"s_add_u32 s{sO+1}, s{sKC}, {j}", f"s_and_b32 s{sO+1}, s{sO+1}, 7", f"s_lshl_b32 s{sO+2}, s{sO+1}, 7", f"s_mul_i32 s{sO+1}, s{sO+1}, {64*3072}")
    g(f"s_add_u32 s{sO+1}, s{sO+1}, s{sBW}", f"s_add_u32 s{sO+3}, s{sO+2}, s{sBX}")
    for u in range(2):
        g(f"s_add_u32 m0, s{sBXL}, {ro + u*1024}", f"s_add_u32 s{sO}, s{sO+3}, {u*16384}")
        dma(g, 1 + u, R_XB, sO, nt="bnt" in OPT)
    for p in range(3):
        g = G[1 + p]
        for u in range(2):
            g(f"s_add_u32 m0, s{sBWL}, {ro + p*8192 + u*1024}", f"s_add_u32 s{sO}, s{sO+1}, {p*1024 + u*8*3072}")
            dma(g, 4 if u == 0 else 16, R_WB, sO)
    g = G[4]
    g(f"s_add_u32 m0, s{sBHL}, {ro}", f"s_add_u32 s{sO}, s{sO+2}, s{sBH}", "s_mov_b32 exec_hi, 0")
    dma(g, 3, R_XB, sO)
    g("s_mov_b64 exec, -1")
    return G
def wo_groups(R, base):
    G = [Lst() for _ in range(4)]
    G[0](f"s_lshl_b32 s{sO+1}, s{sI}, 17", f"s_lshl_b32 s{sO+2}, s{sHP}, 6", f"s_add_u32 s{sO+1}, s{sO+1}, s{sO+2}", f"s_lshl_b32 s{sO+2}, s{sI}, 13")
    for u in range(8):
        g = G[u >> 1]
        g(f"s_add_u32 m0, s{sO+2}, {base + u*1024}", f"s_add_u32 s{sO}, s{sO+1}, {u*16384}")
        dma(g, 20, R, sO)
    return G
def wo_voff(e):
    e("v_lshrrev_b32 v20, 2, v0", "v_and_b32 v21, 3, v0", "v_lshlrev_b32 v21, 4, v21", "v_lshl_add_u32 v20, v20, 10, v21")

def b_proj(e):
    D, XB_, HX_, WB_, NBUF = 4, FR, FR + 8, FR + 12, 12
    jobs = []
    def wreads(buf, areg, off):
        return [f"ds_read_b64_tr_b16 {vr(buf,2)}, v{areg} offset:{off}", f"ds_read_b64_tr_b16 {vr(buf+2,2)}, v{areg} offset:{off+512}"]
    for j in range(8):
        ro = (j & 1) * RINGS
        for s in range(4):
            x = XB_ + 4 * (s & 1)
            for p, acc in enumerate((aq, ak, av)):
                w = WB_ + 4 * (len(jobs) % NBUF)
                rds = ([f"ds_read_b128 {vr(x,4)}, v{BA+s} offset:{ro}"] if p == 0 else []) + wreads(w, BA + 4, ro + p*8192 + s*2048)
                A_, B_ = (w, x) if p < 2 else (x, w)
                jobs.append((rds, f"{MF32} {vr(acc,16)}, {vr(A_,4)}, {vr(B_,4)}, {'0' if (j == 0 and s == 0) else vr(acc,16)}"))
            s2, p = s >> 1, 1 + (s & 1)
            w = WB_ + 4 * (len(jobs) % NBUF)
            rds = ([f"ds_read_b128 {vr(HX_,4)}, v{BA+5+s2} offset:{ro}"] if p == 1 else []) + wreads(w, BA + 7, ro + p*8192 + s2*4096)
            acc = ahk if p == 1 else ahv
            A_, B_ = (w, HX_) if p == 1 else (HX_, w)
            jobs.append((rds, f"{MF16} {vr(acc,4)}, {vr(A_,4)}, {vr(B_,4)}, {'0' if (j == 0 and s2 == 0) else vr(acc,4)}"))
    q = []
    nxt = [0]
    def issue(upto):
        while nxt[0] < min(upto, 128):
            if "bnord" not in OPT or nxt[0] < 16:
                e(*jobs[nxt[0]][0]); q.extend([nxt[0]] * len(jobs[nxt[0]][0]))
            nxt[0] += 1
    e("s_waitcnt vmcnt(9)")
    sig(e, vHC, vH1, HCNT)
    lds_wait(e, vHC, vHT, 8, HCNT)
    stamp(e, 16)
    e(f"s_setprio {HM}")
    issue(D)
    G = []
    PA = 13
    for n in range(128):
        j, r = n >> 4, n & 15
        if n in q:
            last = len(q) - 1 - q[::-1].index(n)
            e(f"s_waitcnt lgkmcnt({len(q) - 1 - last})")
            del q[:last + 1]
        e(jobs[n][1] if "bnomf" not in OPT else "s_sleep 1")
        lim = 16 * (j + 1)
        if r < PA or j == 7: issue(min(n + 1 + D, lim))
        if r == 15 - D and j < 7:
            e("s_waitcnt vmcnt(0)")
            sig(e, vHC, vH1, HCNT); q.append(-1)
        if r == PA and j < 7:
            if "bwake" in OPT:
                e("s_waitcnt lgkmcnt(0)", "s_wakeup")
            lds_wait(e, vHC, vHT, 4 * (j + 3), HCNT, sleep=BSLEEP); del q[:]
            if j == 3: stamp(e, 17)
            G = b_dma_groups(j + 2) if j < 6 else wo_groups(R_WOB, WOB_L)
        if r >= PA and j < 7: issue(n + 1 + D - (1 if r < 15 else 0))
        for _ in range(2):
            if G: e(*G.pop(0))
    e("s_setprio 3")

def b_attn(e):
    Qf, Kf, Vf, Kp, Vp = 104, 112, 120, 128, 136
    PB = 140
    M = 152
    e.c("---- local attention")
    e("v_bfe_u32 v9, v0, 3, 1", "v_lshlrev_b32 v10, 10, v9", "v_bfe_u32 v9, v0, 4, 1", "v_lshl_add_u32 v10, v9, 7, v10")
    e("v_and_b32 v11, 7, v0", "v_lshl_add_u32 v10, v11, 4, v10", "v_lshrrev_b32 v12, 5, v0", "v_lshl_add_u32 v10, v12, 3, v10")
    e(f"s_and_b32 s{sO}, s{sI}, 2", f"s_lshl_b32 s{sO}, s{sO}, 10", f"s_add_u32 s{sO}, s{sO}, {EX_L}", f"s_and_b32 s{sO+1}, s{sI}, 1")
    e(f"s_lshl_b32 s{sO+2}, s{sO+1}, 8", f"s_add_u32 s{sO+2}, s{sO+2}, s{sO}", f"v_add_u32 v10, s{sO+2}, v10")
    e("v_lshlrev_b32 v13, 10, v12", "v_lshl_add_u32 v13, v9, 8, v13", "v_and_b32 v14, 15, v0", "v_lshl_add_u32 v13, v14, 3, v13")
    e(f"s_lshl_b32 s{sO+2}, s{sO+1}, 7", f"s_add_u32 s{sO+2}, s{sO+2}, s{sO}", f"v_add_u32 v13, s{sO+2}, v13")
    for j in range(4): e(f"v_cvt_pk_bf16_f32 v{16+j}, v{ahk+2*j}, v{ahk+2*j+1}")
    e("ds_write_b64 v10, v[16:17]", "ds_write_b64 v13, v[18:19] offset:512")
    sig(e, vHC, vH1, HCNT)
    e(f"s_lshl_b32 s{sO}, s{sI}, 10", f"s_add_u32 s{sO}, s{sO}, {EX_L}")
    e("v_lshl_add_u32 v11, v12, 3, v11", f"v_lshl_add_u32 v11, v11, 4, s{sO}", f"v_lshl_add_u32 v14, v0, 3, s{sO}")
    for j in range(8): e(f"v_cvt_pk_bf16_f32 v{Kf+j}, v{ak+2*j}, v{ak+2*j+1}")
    for j in range(8): e(f"v_cvt_pk_bf16_f32 v{Qf+j}, v{aq+2*j}, v{aq+2*j+1}")
    Sc0, Sc1, Sp = 24, 40, 8 + 56
    lds_wait(e, vHC, vHT, 40, HCNT)
    e(f"ds_read_b128 {vr(Kp,4)}, v11", f"ds_read_b128 {vr(Kp+4,4)}, v11 offset:256", f"ds_read_b64 {vr(Vp+2,2)}, v14 offset:512")
    e(f"s_setprio {HM}")
    e(f"{MF32} {vr(Sc0,16)}, {vr(Kf,4)}, {vr(Qf,4)}, {vr(MC,16)}", f"{MF32} {vr(Sc1,16)}, {vr(Kf+4,4)}, {vr(Qf+4,4)}, {vr(MC,16)}")
    e("s_setprio 3")
    for g in wo_groups(R_WOA, WOA_L): e(*g)
    for j in range(8): e(f"v_cvt_pk_bf16_f32 v{Vf+j}, v{av+2*j}, v{av+2*j+1}")
    for r in (Vp, Vp+1): e(f"v_mov_b32 v{r}, 0")
    for r in range(12): e(f"v_mov_b32 v{PB+r}, 0")
    e(f"s_lshl_b32 s{sO+1}, s{sRB}, 1", f"s_and_b32 s{sO+2}, s{sI}, 1", f"s_add_u32 s{sO+1}, s{sO+1}, s{sO+2}", f"s_lshl_b32 s{sO+1}, s{sO+1}, 15")
    e(f"s_lshl_b32 s{sO+2}, s{sCB}, 2", f"s_and_b32 s{sO+3}, s{sI}, 2", f"s_add_u32 s{sO+2}, s{sO+2}, s{sO+3}", f"s_lshl_b32 s{sO+2}, s{sO+2}, 10")
    e(f"s_add_u32 s{sO+1}, s{sO+1}, s{sO+2}", f"s_add_u32 s{sO+1}, s{sO+1}, {OB}")
    e("v_lshlrev_b32 v9, 4, v0", f"v_mov_b32 v22, {hex(f32bits(CSC))}", "s_waitcnt lgkmcnt(0)")
    for hd in range(2):
        Sc = (Sc0, Sc1)[hd]
        e(f"s_setprio {HM}", f"{MF32} {vr(Sp,16)}, {vr(Kp+4*hd,4)}, {vr(Qf+4*hd,4)}, {vr(MP,16)}", "s_setprio 3")
        for k in range(4): e(f"v_max_f32 v{M+k}, v{Sc+k}, v{Sc+8+k}")
        e(f"v_max3_f32 v10, v{M}, v{M+1}, v{M+2}", "s_nop 5")
        for k in range(4): e(f"v_max3_f32 v{M+4+k}, v{Sc+4+k}, v{Sc+12+k}, v{Sp+12+k}")
        e(f"v_max3_f32 v10, v10, v{M+3}, v{M+4}", f"v_max3_f32 v10, v10, v{M+5}, v{M+6}", f"v_max_f32 v10, v10, v{M+7}")
        halfmax(e, 10)
        e("v_mul_f32 v10, v22, v10")
        for k in range(4): e(f"v_pk_fma_f32 {vr(M+2*k,2)}, {vr(M+2*k,2)}, v[22:23], v[10:11] op_sel_hi:[1,0,0] neg_lo:[0,0,1] neg_hi:[0,0,1]")
        for k in range(8): e(f"v_exp_f32 v{M+k}, v{M+k}")
        def cv(mask, dst, src):
            e(f"s_mov_b32 exec_lo, {hex(mask)}", f"s_mov_b32 exec_hi, {hex(mask)}")
            e(f"v_cvt_pk_bf16_f32 v{dst}, v{src}, v{src+1}", f"v_cvt_pk_bf16_f32 v{dst+1}, v{src+2}, v{src+3}")
        cv(0x0000ffff, PB, M); cv(0xffff0000, PB+4, M)
        cv(0x00ffff00, PB+2, M+4); cv(0xff000000, PB+6, M+4); cv(0x000000ff, PB+10, M+4)
        e("s_mov_b64 exec, -1")
        e(f"v_pk_add_f32 {vr(M,2)}, {vr(M,2)}, {vr(M+2,2)}", f"v_pk_add_f32 {vr(M+4,2)}, {vr(M+4,2)}, {vr(M+6,2)}")
        e(f"s_setprio {HM}")
        e(f"{MF32} {vr(Sc,16)}, {vr(Vf,4)}, {vr(PB,4)}, 0", f"{MF32} {vr(Sc,16)}, {vr(Vf+4,4)}, {vr(PB+4,4)}, {vr(Sc,16)}", f"{MF32} {vr(Sc,16)}, {vr(Vp,4)}, {vr(PB+8,4)}, {vr(Sc,16)}")
        e("s_setprio 3")
        e(f"v_pk_add_f32 {vr(M,2)}, {vr(M,2)}, {vr(M+4,2)}", f"v_add_f32 v10, v{M}, v{M+1}", "v_mov_b32 v11, v10", "s_nop 1")
        e("v_permlane32_swap_b32 v10, v11", "s_nop 0", "v_add_f32 v10, v10, v11", "v_rcp_f32 v10, v10", "s_nop 2")
        O = Sc + 8 * hd
        for k in range(4): e(f"v_pk_mul_f32 {vr(O+2*k,2)}, {vr(O+2*k,2)}, v[10:11] op_sel_hi:[1,0]")
        o = 12 + 4 * hd
        for j in range(4): e(f"v_cvt_pk_bf16_f32 v{o+j}, v{O+2*j}, v{O+2*j+1}")
        e(f"buffer_store_dwordx4 {vr(o,4)}, v9, {sr(R_WS,4)}, s{sO+1} offen offset:{1024*hd}{SC}")

vL16, vWt, vSt, vFl, vPo, vOC, vEx = 8, 9, 10, 11, 1, 4, 30
GACC, GO, GW = 12, 32, 148
sTK, sOut = sT, sT+1
def out_prep(e, rowshift):
    e(f"v_lshlrev_b32 v{vL16}, 4, v0", "v_lshrrev_b32 v30, 5, v0", "v_bfe_u32 v31, v0, 2, 2", "v_lshl_add_u32 v31, v30, 2, v31", f"v_lshlrev_b32 v{vWt}, 6, v31")
    e("v_and_b32 v31, 1, v0", f"v_lshl_add_u32 v{vWt}, v31, 5, v{vWt}", "v_bfe_u32 v31, v0, 1, 1", f"v_lshl_add_u32 v{vWt}, v31, 3, v{vWt}")
    e("v_bfe_u32 v31, v0, 4, 1", f"v_lshl_add_u32 v{vWt}, v31, 4, v{vWt}")
    e(f"v_and_b32 v{vSt}, 31, v0", f"v_lshlrev_b32 v{vSt}, {rowshift}, v{vSt}", f"v_lshl_add_u32 v{vSt}, v30, 5, v{vSt}")
    e(f"v_lshlrev_b32 v{vPo}, 9, v30", "v_bfe_u32 v31, v0, 3, 2", f"v_lshl_add_u32 v{vPo}, v31, 10, v{vPo}", "v_and_b32 v31, 7, v0", f"v_lshl_add_u32 v{vPo}, v31, 4, v{vPo}")
    e(f"v_and_b32 v{vOC}, 3, v0", f"v_lshlrev_b32 v{vOC}, 8, v{vOC}", f"v_add_u32 v{vOC}, {PR_L + 1024}, v{vOC}")
    e(f"s_lshl_b32 s{sTK}, s{sTB}, 2", f"s_add_u32 s{sTK}, s{sTK}, s{sI}")

def pry_wait(e, lim, sleep=6):
    l = e.uniq("hp")
    e.lab(l)
    e(f"ds_read_b32 v{vHT}, v{vOC}", "s_waitcnt lgkmcnt(0)", f"v_cmp_gt_u32 vcc, {lim}, v{vHT}", f"s_cbranch_vccz {l}_d")
    spin_tail(e, l, sleep)
    e.lab(l + "_d")

pub_sites = []
def pub(e, add, keep=False):
    P = GO
    site = len(pub_sites); pub_sites.append(site)
    e(f"s_add_u32 s{sO+4}, s{sI}, {add}", f"s_mul_i32 s{sO+2}, s{sO+4}, {OS_POS}", f"s_add_u32 s{sO+2}, s{sO+2}, {OS_L}")
    e(f"v_add_u32 v28, s{sO+2}, v{vL16}", "v_and_b32 v29, 31, v0", f"v_lshl_add_u32 v29, v29, 2, s{sO+2}")
    e(f"s_sub_u32 s{sO}, s{sO+4}, 1", f"s_cmp_lt_u32 s{sO}, s{sCB}", f"s_cselect_b32 s{sO}, s{sO}, s{sO+4}")
    e(f"s_cmp_eq_u32 s{sO+4}, 0", f"s_cselect_b32 s{sO}, s{sCB}, s{sO}", f"s_lshl_b32 s{sO}, s{sO}, 12")
    e(f"s_lshr_b32 s{sO+1}, s{sIDX}, 2", f"s_lshl_b32 s{sO+1}, s{sO+1}, 15", f"s_add_u32 s{sO}, s{sO}, s{sO+1}")
    e(f"s_and_b32 s{sO+1}, s{sIDX}, 3", f"s_lshl_b32 s{sO+1}, s{sO+1}, 7", f"s_add_u32 s{sO+3}, s{sO}, s{sO+1}", f"s_add_u32 s{sO+3}, s{sO+3}, {OA}")
    e(f"s_lshr_b32 s{sO+5}, s{sO}, 2", f"s_add_u32 s{sO+5}, s{sO+5}, s{sO+1}", f"s_add_u32 s{sO+5}, s{sO+5}, {CKA}")
    e(f"v_and_b32 v2, 0x3ff, v{vPo}", f"v_lshrrev_b32 v3, 10, v{vPo}", "v_lshl_add_u32 v2, v3, 2, v2")
    e(f"s_mov_b32 s{sRET}, {site}", f"v_mov_b32 v31, {hex(f32bits(LMAX))}")
    pry_wait(e, f"s{sO+2}")
    e(f"ds_read2st64_b32 {vr(P+32,2)}, v29 offset0:8 offset1:17", f"ds_read2st64_b32 {vr(P+34,2)}, v29 offset0:26 offset1:35")
    for a in range(2):
        for s in range(4): e(f"ds_read_b128 {vr(P+8*s+4*a,4)}, v28 offset:{s*OS_PAIR + a*1024}")
    e("s_waitcnt lgkmcnt(8)", f"v_pk_add_f32 {vr(P+32,2)}, {vr(P+32,2)}, {vr(P+34,2)}", f"v_add_f32 v{P+34}, v{P+32}, v{P+33}", f"v_rcp_f32 v{P+32}, v{P+34}")
    for a in range(2):
        e(f"s_waitcnt lgkmcnt({4-4*a})")
        for k in range(2):
            a_, b_, c_, d_ = (vr(P + 8*s + 4*a + 2*k, 2) for s in range(4))
            e(f"v_pk_add_f32 {a_}, {a_}, {b_}", f"v_pk_add_f32 {c_}, {c_}, {d_}", f"v_pk_add_f32 {a_}, {a_}, {c_}")
    e(f"v_pk_mul_f32 {vr(P+8,2)}, {vr(P,2)}, 0")
    for k in range(1, 4): e(f"v_pk_fma_f32 {vr(P+8,2)}, {vr(P+2*k,2)}, 0, {vr(P+8,2)}")
    e(f"v_add_f32 v{P+8}, v{P+8}, v{P+9}", f"v_add_f32 v{P+8}, v{P+8}, v{P+34}")
    e(f"v_cmp_nlt_f32 vcc, v{P+8}, v31" if "forcefb" not in OPT else "v_cmp_eq_u32 vcc, v0, v0", "s_cbranch_vccnz L_exact")
    e.lab(f"L_exact_ret{site}")
    for k in range(4): e(f"v_pk_mul_f32 {vr(P+2*k,2)}, {vr(P+2*k,2)}, {vr(P+32,2)} op_sel_hi:[1,0]")
    for k in range(4): e(f"v_cvt_pk_bf16_f32 v{164+k}, v{P+2*k}, v{P+2*k+1}")
    e(f"buffer_store_dwordx4 v[164:167], v{vPo}, {sr(R_WS,4)}, s{sO+3} offen{SC}")
    mk_ck(e, 3, 164)
    e(f"buffer_store_dword v3, v2, {sr(R_WS,4)}, s{sO+5} offen{SC}")
    if True:
        e(f"s_lshl_b32 s{sO}, s{sIDX}, 3", f"s_add_u32 s{sO}, s{sO}, s{sO+4}", f"s_lshl_b32 s{sO}, s{sO}, 7", f"s_add_u32 s{sO}, s{sO}, {F4}")
        set_flag(e, sO, 28, 29)

def exact(e):
    O, Q, Kr, V, S, NB, m, vo = GO, GO+36, GO+40, GO+44, GO+52, GO+68, GO+84, GO+86
    sK, sV = sO, sO+1
    e.lab("L_exact")
    e(f"s_mov_b32 s{sT+4}, 1")
    e(f"s_lshl_b32 s{sK}, s{sO+4}, 10", f"s_add_u32 s{sK}, s{sK}, {QI_L}", f"v_add_u32 v{m}, s{sK}, v{vL16}", f"ds_read_b128 {vr(Q,4)}, v{m}")
    e(f"v_and_b32 v{m}, 31, v0", f"v_cmp_eq_u32 vcc, 16, v{m}", f"v_mov_b32 v{m+1}, 0x3f803f80", f"v_lshrrev_b32 v{vo}, 5, v0", f"v_cndmask_b32 v{V}, 0, v{m+1}, vcc")
    for r in range(1, 8): e(f"v_mov_b32 v{V+r}, v{V}")
    e(f"v_lshlrev_b32 v{vo}, 8, v{vo}", f"v_and_b32 v{m}, 15, v0", f"v_lshl_add_u32 v{vo}, v{m}, 4, v{vo}")
    for r in range(16): e(f"v_mov_b32 v{O+r}, 0")
    e(f"v_mov_b32 v{m}, 0xff800000", f"s_mov_b32 s{sK}, {KW}", "s_waitcnt lgkmcnt(0)")
    e.lab("L_ex1")
    e(f"buffer_load_dwordx4 {vr(Kr,4)}, v{vL16}, {sr(R_WS,4)}, s{sK} offen{SC}", "s_waitcnt vmcnt(0)")
    e(f"{MF32} {vr(S,16)}, {vr(Kr,4)}, {vr(Q,4)}, 0", "s_nop 11")
    for k in range(0, 16, 2): e(f"v_max3_f32 v{m}, v{m}, v{S+k}, v{S+k+1}")
    e(f"s_add_u32 s{sK}, s{sK}, 1024", f"s_cmp_lt_u32 s{sK}, {KW + 65536}", "s_cbranch_scc1 L_ex1")
    halfmax(e, m)
    for r in range(16): e(f"v_sub_f32 v{NB+r}, 0, v{m}")
    e(f"s_mov_b32 s{sK}, {KW}", f"s_mov_b32 s{sV}, {VW}")
    e.lab("L_ex2")
    e(f"buffer_load_dwordx4 {vr(Kr,4)}, v{vL16}, {sr(R_WS,4)}, s{sK} offen{SC}", "s_mov_b32 exec_lo, 0xffff", "s_mov_b32 exec_hi, 0xffff")
    e(f"buffer_load_dwordx4 {vr(V,4)}, v{vo}, {sr(R_WS,4)}, s{sV} offen{SC}", f"buffer_load_dwordx4 {vr(V+4,4)}, v{vo}, {sr(R_WS,4)}, s{sV} offen offset:512{SC}")
    e("s_mov_b64 exec, -1", "s_waitcnt vmcnt(0)")
    e(f"{MF32} {vr(S,16)}, {vr(Kr,4)}, {vr(Q,4)}, {vr(NB,16)}", "s_nop 11")
    for k in range(16): e(f"v_exp_f32 v{S+k}, v{S+k}")
    e("s_nop 0")
    for j in range(8): e(pk(S, j))
    e("s_nop 1", f"{MF32} {vr(O,16)}, {vr(V,4)}, {vr(S,4)}, {vr(O,16)}", f"{MF32} {vr(O,16)}, {vr(V+4,4)}, {vr(S+8,4)}, {vr(O,16)}")
    e(f"s_add_u32 s{sK}, s{sK}, 1024", f"s_add_u32 s{sV}, s{sV}, 1024", f"s_cmp_lt_u32 s{sK}, {KW + 65536}", "s_cbranch_scc1 L_ex2")
    e("s_nop 11", f"v_mov_b32 v{m}, v{O+8}", "s_nop 1", f"v_permlane32_swap_b32 v{O+8}, v{m}", "s_nop 0", f"v_rcp_f32 v{GO+32}, v{O+8}", "s_nop 0")
    for s in pub_sites[:-1]: e(f"s_cmp_eq_u32 s{sRET}, {s}", f"s_cbranch_scc1 L_exact_ret{s}")
    e(f"s_branch L_exact_ret{pub_sites[-1]}")

def gemm_b(e):
    NB, n = 28, 32
    oreg = lambda k: GO + 36 + 4 * k if k < 20 else GO + 4 * ((k - 20) % 9)
    e(f"s_lshl_b32 s{sT+2}, s{sTK}, 15", f"s_add_u32 s{sT+2}, s{sT+2}, {OB}")
    def ldo(k):
        if k % 4 == 0: e(f"s_add_u32 s{sT+3}, s{sT+2}, {(k>>2)*4096}")
        e(f"buffer_load_dwordx4 {vr(oreg(k),4)}, v{vL16}, {sr(R_WS,4)}, s{sT+3} offen offset:{(k&3)*1024}{SC}")
    def rdw(k):
        b = GW + 4*(k & 3)
        e(f"ds_read_b64_tr_b16 {vr(b,2)}, v{vWt} offset:{WOB_L+k*1024}", f"ds_read_b64_tr_b16 {vr(b+2,2)}, v{vWt} offset:{WOB_L+k*1024+512}")
    for k in range(20, 29): ldo(k)
    for k in range(20): ldo(k)
    e(f"s_add_u32 s{sT+3}, s{sT+2}, {7*4096}")
    for k in range(20, 23): rdw(k)
    e(f"s_setprio {HM}")
    for k in range(20, 32):
        if k + 3 < 32: rdw(k + 3)
        vm = (28 - k) + 20 + min(k - 20, 3) if k < 29 else 31 - k
        e(f"s_waitcnt vmcnt({vm}) lgkmcnt({min(6, 2*(31-k))})")
        e(f"{MF32} {vr(GACC,16)}, {vr(GW+4*(k&3),4)}, {vr(oreg(k),4)}, {'0' if k == 20 else vr(GACC,16)}")
        if k < 23: ldo(k + 9)
    e("s_setprio 3")
    stamp(e, 8)
    e(f"s_mov_b32 s{sT+4}, 0")
    pub(e, 4, keep=True)
    e(f"s_cmp_eq_u32 s{sT+4}, 0", "s_cbranch_scc1 L_hnp")
    for k in range(20): ldo(k)
    e("s_waitcnt vmcnt(0)")
    e.lab("L_hnp")
    stamp(e, 18)
    pry_wait(e, OS_L + 7*OS_POS)
    e("s_setprio 1")
    for k in range(3): rdw(k)
    for k in range(20):
        if k + 3 < 20: rdw(k + 3)
        e(f"s_waitcnt lgkmcnt({min(6, 2*(19-k))})", f"{MF32} {vr(GACC,16)}, {vr(GW+4*(k&3),4)}, {vr(oreg(k),4)}, {vr(GACC,16)}")

def fetch_t(e, b0, b1, base, CK, sleep, between=None):
    nb = b1 - b0
    l = e.uniq("gt")
    e(f"s_lshl_b32 s{sO+2}, s{sTK}, 15", f"s_add_u32 s{sO+2}, s{sO+2}, {OA + b0*4096}")
    e(f"s_lshl_b32 s{sO+3}, s{sTK}, 13", f"s_add_u32 s{sO+3}, s{sO+3}, {CKA + b0*1024}")
    def loads():
        for b in range(nb):
            e(f"buffer_load_dwordx4 {vr(CK+4*b,4)}, v{vL16}, {sr(R_WS,4)}, s{sO+3} offen offset:{b*1024}{SC}")
            e(f"s_add_u32 s{sO}, s{sO+2}, {b*4096}")
            for h in range(4): e(f"buffer_load_dwordx4 {vr(base[b]+4*h,4)}, v{vL16}, {sr(R_WS,4)}, s{sO} offen offset:{h*1024}{SC}")
    if between:
        loads(); between(); e(f"s_branch {l}_v")
    e.lab(l)
    loads()
    e.lab(l + "_v")
    for k in range(4 * nb):
        e(f"s_waitcnt vmcnt({5*nb - (5*(k>>2) + (k&3) + 2)})")
        chk(e, 28, 29, base[k>>2] + 4*(k&3), CK + k, k == 0)
    e("v_cmp_ne_u32 vcc, 0, v28", f"s_cbranch_vccz {l}_d")
    spin_tail(e, l, sleep)
    e.lab(l + "_d")

def mul_a(e, k0, k1, base, pre=True):
    n = k1 - k0
    def rdw(k):
        b = GW + 4*(k & 3)
        e(f"ds_read_b64_tr_b16 {vr(b,2)}, v30 offset:{(k0+k)*1024}", f"ds_read_b64_tr_b16 {vr(b+2,2)}, v30 offset:{(k0+k)*1024+512}")
    if pre:
        for k in range(3): rdw(k)
        return
    for k in range(n):
        if k + 3 < n: rdw(k + 3)
        e(f"s_waitcnt lgkmcnt({min(6, 2*(n-1-k))})")
        e(f"{MF32} {vr(GACC,16)}, {vr(GW+4*(k&3),4)}, {vr(base[k>>2]+4*(k&3),4)}, {'0' if k0 + k == 0 else vr(GACC,16)}")

def out_store(e, off):
    e("s_nop 11")
    for j in range(8): e(f"v_cvt_pk_bf16_f32 v{GW+j}, v{GACC+2*j}, v{GACC+2*j+1}")
    e(f"buffer_store_dwordx4 {vr(GW,4)}, v{vSt}, {sr(R_OUT,4)}, s{sOut} offen offset:{off}", f"buffer_store_dwordx4 {vr(GW+4,4)}, v{vSt}, {sr(R_OUT,4)}, s{sOut} offen offset:{off+16}")

def h_main(e):
    e.lab("L_h2")
    srds(e, (R_XB, R_WB, R_WOB, R_WOA, R_OUT))
    b_prep(e)
    h_qprep(e)
    if "noH" in OPT: finish(e)
    wo_voff(e)
    lds_wait(e, vHC, vHT, 8, GCNT, sleep=2)
    for j in range(2):
        for g in b_dma_groups(j): e(*g)
    stamp(e, 4)
    b_proj(e)
    stamp(e, 5)
    b_attn(e)
    e(f"s_lshl_b32 s{sO+5}, s{sIDX}, 2", f"s_add_u32 s{sO+5}, s{sO+5}, s{sI}", f"s_lshl_b32 s{sO+5}, s{sO+5}, 7", f"s_add_u32 s{sO+5}, s{sO+5}, {F3}")
    out_prep(e, 12)
    e(f"s_lshr_b32 s{sO+2}, s{sTK}, 1", f"s_lshl_b32 s{sOut}, s{sO+2}, 17", f"s_and_b32 s{sO+3}, s{sI}, 1", f"s_lshl_b32 s{sO}, s{sO+3}, 11", f"s_add_u32 s{sOut}, s{sOut}, s{sO}")
    e(f"s_lshl_b32 s{sO}, s{sHP}, 6", f"s_add_u32 s{sOut}, s{sOut}, s{sO}")
    e(f"s_lshl_b32 s{sO+2}, s{sO+2}, 12", f"s_lshl_b32 s{sO+3}, s{sO+3}, 7", f"s_add_u32 s{sO+2}, s{sO+2}, s{sO+3}", f"s_add_u32 s{sO+2}, s{sO+2}, {F3}")
    e(f"v_lshl_add_u32 v{vFl}, v0, 8, s{sO+2}")
    e("s_waitcnt vmcnt(0)")
    set_flag(e, sO+5, 2, 3)
    sig(e, vHC, vH1, HCNT)
    stamp(e, 6)
    gpoll(e, vFl, vHT, 0xffff, 0, sleep=F3SLEEP)
    stamp(e, 7)
    lds_wait(e, vHC, vHT, 44, HCNT)
    gemm_b(e)
    out_store(e, 1024)
    finish(e)

def f_out(e):
    e.lab("L_f3")
    e.c("---- output stage A")
    if "noH" in OPT or "noF" in OPT: finish(e)
    srds(e, (R_OUT,))
    lane_id(e)
    out_prep(e, 11)
    e(f"s_lshl_b32 s{sOut}, s{sTK}, 16", f"s_lshl_b32 s{sO}, s{sHP}, 6", f"s_add_u32 s{sOut}, s{sOut}, s{sO}")
    e(f"v_mov_b32 v{vHC}, {CNT}")
    pub(e, 0)
    stamp(e, 5)
    HB = [GO + 36 + 16*b for b in range(5)]
    e(f"s_lshl_b32 s{sO+2}, s{sTK}, 12", f"s_add_u32 s{sO+2}, s{sO+2}, {F4}", f"v_lshl_add_u32 v{vFl}, v0, 7, s{sO+2}")
    e(f"v_add_u32 v30, {WOA_L}, v{vWt}")
    pry_wait(e, OS_L + 4*OS_POS)
    gpoll(e, vFl, vHT, 0x0f0f0f0f, 0, sleep=6)
    stamp(e, 16)
    fetch_t(e, 0, 3, HB, GO, 4)
    stamp(e, 17)
    lds_wait(e, vHC, vHT, 44, HCNT, sleep=8)
    pry_wait(e, OS_L + 5*OS_POS)
    gpoll(e, vFl, vHT, 0x30303030, 0, sleep=6)
    stamp(e, 18)
    fetch_t(e, 3, 5, HB[3:], GO, 2)
    mul_a(e, 0, 20, HB)
    pry_wait(e, OS_L + 7*OS_POS)
    e("s_setprio 2")
    mul_a(e, 0, 20, HB, pre=False)
    stamp(e, 19)
    mul_a(e, 20, 32, HB)
    gpoll(e, vFl, vHT, 0xc0c0c0c0, 0, sleep=1)
    stamp(e, 9)
    fetch_t(e, 5, 8, HB, GO, 0)
    mul_a(e, 20, 32, HB, pre=False)
    out_store(e, 0)
    e(f"s_or_b32 s{sO}, s{sWG}, s{sI}", "s_cbranch_scc1 L_noep", f"s_mov_b32 s{sO}, {EPOCH_W}")
    set_flag(e, sO, 2, 3)
    e.lab("L_noep")
    finish(e)

def gen():
    e = Em()
    e.L.append(f".globl {KN}\n.p2align 8\n.type {KN},@function\n{KN}:")
    entry(e)
    h_kv(e)
    f_load(e)
    s_qproj(e)
    s_att(e)
    f_att(e)
    h_main(e)
    f_out(e)
    e.lab("L_codeend")
    exact(e)
    e.lab("L_end")
    e("s_endpgm")
    head = f"""; generated by work/gen11.py
; @launch grid=(256,1,1) block=(768,1,1) lds={LDS_BYTES}
.amdgcn_target "amdgcn-amd-amdhsa--gfx950"
.text
"""
    kd = f""".section .rodata,"a"
.p2align 6
.amdhsa_kernel {KN}
  .amdhsa_next_free_vgpr 168
  .amdhsa_next_free_sgpr 102
  .amdhsa_accum_offset 168
  .amdhsa_group_segment_fixed_size 0
  .amdhsa_kernarg_size 88
  .amdhsa_user_sgpr_count 2
  .amdhsa_user_sgpr_kernarg_segment_ptr 1
  .amdhsa_system_sgpr_workgroup_id_x 1
.end_amdhsa_kernel
"""
    return head + e.text() + kd

if __name__ == "__main__":
    args = [a for a in sys.argv[1:] if not a.startswith("-")]
    OPT.update(a[1:] for a in sys.argv[1:] if a.startswith("-"))
    if "stamps" in OPT: STAMPS = True
    for o in OPT:
        if o.startswith("moff"): MOFF = float(o[4:])
        if o.startswith("bd"): BDEPTH = int(o[2:])
        if o.startswith("hm"): HM = int(o[2:])
        if o.startswith("dly"): DLY = tuple(int(x) for x in o[3:].split("_"))
        if o.startswith("bs"): BSLEEP = int(o[2:])
    out = args[0] if args else f"cdna_kernels/{NAME}.s"
    open(out, "w").write(gen())
    print("wrote", out)
```

```python
import sys, math, struct

NAME = "concat_heads__grouped_kv_mqa__sliding_local_dilated__prompt"
KN = NAME + "_kernel"
def f32bits(x): return struct.unpack("<I", struct.pack("<f", x))[0]

class Em:
    def __init__(self): self.L = []; self.n = 0
    def __call__(self, *ss):
        for s in ss:
            if s.startswith("s_nop "):
                self.L += ["    s_nop 0"] * (int(s.split()[1]) + 1)
            else: self.L.append("    " + s)
    def lab(self, s): self.L.append(s + ":")
    def uniq(self, p): self.n += 1; return f"L_{p}_{self.n}"
    def c(self, s): self.L.append("    ; " + s)
    def text(self): return "\n".join(self.L) + "\n"

def vr(b, n): return f"v[{b}:{b+n-1}]" if n > 1 else f"v{b}"
def sr(b, n): return f"s[{b}:{b+n-1}]" if n > 1 else f"s{b}"

sWG, sW = 2, 3
R_XA, R_WQ, R_WKV, R_WOA, R_XB, R_WB, R_WOB, R_OUT, R_WS = 32, 36, 40, 44, 48, 52, 56, 60, 64
sRB, sCB, sTB, sHP, sSB, sKIND, sRET, sI = 72, 73, 74, 75, 76, 77, 78, 79
sT = 80
sO = 92
sPOLL, sEP, sSPIN, sIDX = 98, 99, 100, 101
sTAG = 71
SPIN_MAX = 60000
QW, KW, VW, EPOCH_W, OB, OA, FL = 0, 2 << 20, (2 << 20) + 65536, 3 << 20, 4 << 20, 6 << 20, 8 << 20
F4 = FL + (512 << 10)
F1, F3, CKQ, CKA = FL, FL + (256 << 10), FL + (1 << 20), FL + (2 << 20)
WS_BYTES = 16 << 20
K = 1024
LDS_BYTES = 160 * K
SLOT = 32 * K
WKV_L = 128 * K
QI_L, NM_L, CNT, PR_L = 144 * K, 152 * K, 156 * K + 512, 157 * K
HCNT, ACNT, GCNT, KVF, RDY1, QST, LAND, SOK = 0, 4, 8, 12, 16, 20, 32, 48
RINGS = 34 * K
RXO = 24 * K
OS_L, OS_POS, OS_PAIR = 72 * K, 9216, 2304
EX_L = 68 * K
TB_L = 159 * K
WOA_L, WOB_L = 34 * K, 0
BDEPTH, HM, F3SLEEP, WIN, BSLEEP = 4, 2, 16, 12, 0
PSL = 20
CSC = 0.25 * math.log2(math.e)
MOFF = 96.0
LMAX = 2.0 ** 120
MF32 = "v_mfma_f32_32x32x16_bf16"
MF16 = "v_mfma_f32_16x16x32_bf16"
STAMPS = False
OPT = set()
ST = 12 << 20
SC = " sc1"
OSC = ""

def stamp(e, k):
    if STAMPS: e("s_memrealtime s[30:31]", "s_waitcnt lgkmcnt(0)", f"s_mov_b32 s{8+k}, s30")
def cstamp(e, k):
    if STAMPS: e("s_memtime s[30:31]", "s_waitcnt lgkmcnt(0)", f"s_mov_b32 s{8+k}, s30")
def stamp_init(e):
    if not STAMPS: return
    for k in range(1, 22): e(f"s_mov_b32 s{8+k}, 0")
    e("s_mov_b32 s8, s6", "s_mov_b32 s20, s4")
DLY = None
def finish(e):
    if DLY is not None:
        l = e.uniq("dly")
        stamp(e, 15)
        e(f"s_cmp_lg_u32 s{sW}, {DLY[0]}", f"s_cbranch_scc1 {l}_d")
        e(f"s_sub_u32 s4, s{8+DLY[1]}, s8", "s_lshl_b32 s4, s4, 1", "s_add_u32 s4, s4, 4000", "s_min_u32 s4, s4, 40000")
        e.lab(l)
        e("s_sleep 2", "s_memrealtime s[30:31]", "s_waitcnt lgkmcnt(0)", "s_sub_u32 s5, s30, s8", "s_cmp_lt_u32 s5, s4", f"s_cbranch_scc1 {l}")
        e.lab(l + "_d")
        e("s_endpgm")
        return
    if STAMPS:
        stamp(e, 15); cstamp(e, 14)
        e(f"s_mul_i32 s30, s{sWG}, 12", f"s_add_u32 s30, s30, s{sW}", "s_lshl_b32 s30, s30, 7", f"s_add_u32 s30, s30, {ST}")
        e("s_mov_b64 exec, 1", "v_mov_b32 v0, 0")
        for k in range(22): e(f"v_mov_b32 v{4+k}, s{8+k}")
        for k in range(6): e(f"buffer_store_dwordx4 {vr(4+4*k,4)}, v0, {sr(R_WS,4)}, s30 offen offset:{16*k}")
    e("s_endpgm")

def dma(e, voff, R, soff, nt=False):
    e(f"buffer_load_dwordx4 v{voff}, {sr(R,4)}, s{soff} offen{' nt' if nt else ''} lds")
def spin_tail(e, l, sleep):
    e(f"s_sleep {sleep}", f"s_add_u32 s{sSPIN}, s{sSPIN}, 1", f"s_cmp_lt_u32 s{sSPIN}, {SPIN_MAX}", f"s_cbranch_scc1 {l}")
def lds_wait(e, vaddr, vtmp, target, off=0, sleep=1):
    l = e.uniq("poll")
    e.lab(l)
    e(f"ds_read_b32 v{vtmp}, v{vaddr} offset:{off}", "s_waitcnt lgkmcnt(0)", f"v_readfirstlane_b32 s{sPOLL}, v{vtmp}")
    e(f"s_cmp_ge_u32 s{sPOLL}, {target}", f"s_cbranch_scc1 {l}_d")
    spin_tail(e, l, sleep)
    e.lab(l + "_d")
def sig(e, vaddr, vone, off):
    e("s_mov_b64 exec, 1", f"ds_add_u32 v{vaddr}, v{vone} offset:{off}", "s_mov_b64 exec, -1")
def load_epoch(e):
    e(f"s_mov_b32 s{sEP}, {EPOCH_W}", f"s_load_dword s{sEP}, s[{R_WS}:{R_WS+1}], s{sEP}")
def get_epoch(e):
    e("s_waitcnt lgkmcnt(0)", f"s_add_u32 s{sEP}, s{sEP}, 1", f"s_mul_i32 s{sTAG}, s{sEP}, 0x9e3779b1")
def gpoll(e, vaddr, vtmp, lo, hi, sleep=1):
    l = e.uniq("gp")
    e(f"s_mov_b32 exec_lo, {hex(lo)}", f"s_mov_b32 exec_hi, {hex(hi)}")
    e.lab(l)
    e(f"buffer_load_dword v{vtmp}, v{vaddr}, {sr(R_WS,4)}, 0 offen sc1", "s_waitcnt vmcnt(0)")
    e(f"v_cmp_ne_u32 vcc, s{sEP}, v{vtmp}", "s_and_b64 exec, exec, vcc", f"s_cbranch_execz {l}_d")
    spin_tail(e, l, sleep)
    e.lab(l + "_d")
    e("s_mov_b64 exec, -1")
def gpoll_issue(e, vaddr, vtmp, lo):
    e(f"s_mov_b32 exec_lo, {hex(lo)}", "s_mov_b32 exec_hi, 0", f"buffer_load_dword v{vtmp}, v{vaddr}, {sr(R_WS,4)}, 0 offen sc1", "s_mov_b64 exec, -1")
def gpoll_finish(e, vaddr, vtmp, lo, younger, sleep=1):
    l = e.uniq("gp")
    e(f"s_mov_b32 exec_lo, {hex(lo)}", "s_mov_b32 exec_hi, 0", f"s_waitcnt vmcnt({younger})", f"s_branch {l}_c")
    e.lab(l)
    e(f"buffer_load_dword v{vtmp}, v{vaddr}, {sr(R_WS,4)}, 0 offen sc1", "s_waitcnt vmcnt(0)")
    e.lab(l + "_c")
    e(f"v_cmp_ne_u32 vcc, s{sEP}, v{vtmp}", "s_and_b64 exec, exec, vcc", f"s_cbranch_execz {l}_d")
    spin_tail(e, l, sleep)
    e.lab(l + "_d")
    e("s_mov_b64 exec, -1")
def set_flag(e, soff, va, vd):
    e(f"v_mov_b32 v{va}, 0", f"v_mov_b32 v{vd}, s{sEP}", "s_mov_b64 exec, 1")
    e(f"buffer_store_dword v{vd}, v{va}, {sr(R_WS,4)}, s{soff} offen sc1", "s_mov_b64 exec, -1")
def mk_ck(e, dst, d):
    e(f"v_xad_u32 v{dst}, v{d}, s{sTAG}, v{d+1}", f"v_xad_u32 v{dst}, v{dst}, v{d+2}, v{d+3}")
def chk(e, acc, tmp, d, ck, first):
    mk_ck(e, tmp, d)
    e(f"v_xor_b32 v{acc}, v{tmp}, v{ck}" if first else f"v_bitop3_b32 v{acc}, v{acc}, v{tmp}, v{ck} bitop3:0xf6")
def lane_id(e):
    e("v_mbcnt_lo_u32_b32 v0, -1, 0", "v_mbcnt_hi_u32_b32 v0, -1, v0")
def xa_voff(e, b, t):
    e(f"v_lshrrev_b32 v{t}, 4, v0", f"v_and_b32 v{b}, 15, v0", f"v_xor_b32 v{b}, v{b}, v{t}", f"v_lshlrev_b32 v{b}, 4, v{b}")
    e(f"v_lshl_add_u32 v{b}, v{t}, 10, v{b}")
def halfmax(e, m):
    e(f"v_mov_b32 v{m+1}, v{m}", "s_nop 1", f"v_permlane32_swap_b32 v{m}, v{m+1}", "s_nop 0", f"v_max_f32 v{m}, v{m}, v{m+1}")
def negmax(e, S, m):
    e(f"v_max3_f32 v{m}, v{S}, v{S+1}, v{S+2}")
    for k in range(3, 15, 2): e(f"v_max3_f32 v{m}, v{m}, v{S+k}, v{S+k+1}")
    e(f"v_max_f32 v{m}, v{m}, v{S+15}")
    halfmax(e, m)
    e(f"v_sub_f32 v{m}, {hex(f32bits(-MOFF))}, v{m}")

def entry(e):
    e(f"s_cmp_ge_u32 s{sWG}, 256", "s_cbranch_scc1 L_end")
    e(f"s_and_b32 s{sO}, s{sWG}, 8", f"s_add_u32 s{sO}, s{sO}, 16")
    for R, off in ((R_XA, 0), (R_WQ, 8), (R_WS, 80)): e(f"s_load_dwordx2 s[{R}:{R+1}], s[0:1], {off}")
    e(f"s_load_dwordx2 s[{R_WKV}:{R_WKV+1}], s[0:1], s{sO}")
    if STAMPS: e("s_memrealtime s[6:7]", "s_memtime s[4:5]")
    e("v_lshrrev_b32 v1, 6, v0", "v_and_b32 v0, 63, v0")
    e(f"s_lshr_b32 s{sO+1}, s{sWG}, 3")
    e(f"v_readfirstlane_b32 s{sW}, v1")
    e(f"s_and_b32 s{sO}, s{sWG}, 7", f"s_lshl_b32 s{sIDX}, s{sO}, 5", f"s_add_u32 s{sIDX}, s{sIDX}, s{sO+1}")
    e(f"s_and_b32 s{sI}, s{sW}, 3", f"s_cmp_lt_u32 s{sW}, 8", "s_cbranch_scc1 L_nopf")
    e(f"s_getpc_b64 s[{sO+2}:{sO+3}]")
    e.lab("L_pc")
    e(f"s_lshl_b32 s{sO}, s{sO+1}, 2", f"s_add_u32 s{sO}, s{sO}, s{sI}", f"s_and_b32 s{sO}, s{sO}, 31", f"s_lshl_b32 s{sO}, s{sO}, 10")
    e(f"v_lshl_add_u32 v2, v0, 7, s{sO}", f"v_min_u32 v2, L_codeend-L_pc-4, v2", "s_mov_b64 exec, 0xff")
    e(f"global_load_dword v167, v2, s[{sO+2}:{sO+3}]", "s_mov_b64 exec, -1")
    e.lab("L_nopf")
    e(f"s_lshr_b32 s{sRB}, s{sIDX}, 3", f"s_and_b32 s{sCB}, s{sIDX}, 7", f"s_lshr_b32 s{sTB}, s{sIDX}, 4", f"s_and_b32 s{sHP}, s{sIDX}, 15")
    e(f"s_lshr_b32 s{sSB}, s{sCB}, 1", f"s_and_b32 s{sKIND}, s{sCB}, 1", f"s_mov_b32 s{sSPIN}, 0")
    for R, n in ((R_XA, 2 << 20), (R_WKV, 16384), (R_WQ, 512 << 10), (R_WS, WS_BYTES)):
        e(f"s_mov_b32 s{R+2}, {hex(n)}", f"s_mov_b32 s{R+3}, 0x20000")
    e(f"s_cmp_ge_u32 s{sW}, 8", "s_cbranch_scc1 L_q", f"s_cmp_ge_u32 s{sW}, 4", "s_cbranch_scc1 L_aux")
def srds(e, lst):
    size = {R_WOA: 512 << 10, R_XB: 2 << 20, R_WB: 1536 << 10, R_WOB: 512 << 10, R_OUT: 4 << 20}
    slot = {R_WOA: 32, R_XB: 40, R_WB: 48, R_WOB: 56, R_OUT: 64}
    for R in lst: e(f"s_load_dwordx2 s[{R}:{R+1}], s[0:1], {slot[R]}", f"s_mov_b32 s{R+2}, {hex(size[R])}", f"s_mov_b32 s{R+3}, 0x20000")

vHC, vH1, vHT = 5, 6, 7
def h_kv(e):
    fx, fw, acc = 32, 48, 24
    e.c("---- H: K/V projection")
    e("s_setprio 3")
    xa_voff(e, 8, 12)
    for z in range(1, 4): e(f"v_xor_b32 v{8+z}, {z<<6}, v8")
    e("v_lshlrev_b32 v12, 4, v0")
    e(f"s_add_u32 s{sO+3}, s{sRB}, s{sI}", f"s_and_b32 s{sO+3}, s{sO+3}, 3")
    e(f"s_lshr_b32 s{sO+1}, s{sIDX}, 1", f"s_lshl_b32 s{sO+1}, s{sO+1}, 14", f"s_lshl_b32 s{sO+2}, s{sO+3}, 8", f"s_add_u32 s{sO+1}, s{sO+1}, s{sO+2}")
    e(f"s_lshl_b32 s{sT}, s{sI}, 15", f"s_lshl_b32 s{sO+2}, s{sSB}, 12", f"s_add_u32 s{sT}, s{sT}, s{sO+2}")
    e(f"s_lshl_b32 s{sT+1}, s{sI}, 12", f"s_add_u32 s{sT+1}, s{sT+1}, {WKV_L}", f"s_lshl_b32 s{sO+3}, s{sO+3}, 12")
    e("s_waitcnt lgkmcnt(0)")
    for z in range(4):
        e(f"s_add_u32 m0, s{sT}, {z*1024}", f"s_add_u32 s{sO}, s{sO+1}, {z*4096}")
        dma(e, 8 + z, R_XA, sO, nt=True)
        e(f"s_add_u32 m0, s{sT+1}, {z*1024}", f"s_add_u32 s{sO}, s{sO+3}, {z*1024}")
        dma(e, 12, R_WKV, sO)
    load_epoch(e)
    e("s_barrier")
    stamp_init(e)
    e(f"v_mov_b32 v{vHC}, {CNT}", f"v_mov_b32 v{vH1}, 1")
    e("v_and_b32 v2, 15, v0", "v_lshrrev_b32 v3, 4, v0", "v_xor_b32 v4, v2, v3", "v_lshlrev_b32 v4, 4, v4", "v_lshl_add_u32 v4, v2, 8, v4")
    e(f"v_add_u32 v8, s{sT}, v4")
    for q in range(1, 4): e(f"v_xor_b32 v{8+q}, {q<<6}, v8")
    e("v_bfe_u32 v4, v0, 2, 2", "v_lshl_add_u32 v4, v3, 3, v4", "v_lshlrev_b32 v4, 5, v4", "v_and_b32 v13, 3, v0", "v_lshl_add_u32 v4, v13, 3, v4")
    e(f"v_add_u32 v13, s{sT+1}, v4", f"v_add_u32 v14, s{sT+1}, v12")
    e(f"s_lshl_b32 s{sO}, s{sI}, 2", f"v_add_u32 v15, s{sO}, v{vHC}")
    e(f"s_lshl_b32 s{sO}, s{sRB}, 11")
    e(f"s_lshr_b32 s{sO+1}, s{sSB}, 1", f"s_lshl_b32 s{sO+1}, s{sO+1}, 10", f"s_and_b32 s{sO+2}, s{sSB}, 1", f"s_lshl_b32 s{sO+2}, s{sO+2}, 8")
    e(f"s_add_u32 s{sO+1}, s{sO+1}, s{sO+2}", f"s_add_u32 s{sO+1}, s{sO+1}, {KW}")
    e(f"s_lshl_b32 s{sO+2}, s{sSB}, 9", f"s_add_u32 s{sO+2}, s{sO+2}, {VW}")
    e(f"s_cmp_eq_u32 s{sKIND}, 0", f"s_cselect_b32 s{sO+1}, s{sO+1}, s{sO+2}", f"s_cselect_b32 s{sO+2}, 9, 8", f"s_add_u32 s{sO+4}, s{sO}, s{sO+1}")
    e("v_and_b32 v4, 1, v3", f"v_lshlrev_b32 v4, s{sO+2}, v4", "v_lshl_add_u32 v20, v2, 4, v4")
    e(f"s_lshl_b32 s{sO+5}, s{sIDX}, 7", f"s_add_u32 s{sO+5}, s{sO+5}, {F1}")
    get_epoch(e)
    e("s_waitcnt vmcnt(0)")
    stamp(e, 1)
    for q in range(4):
        e(f"ds_read_b128 {vr(fx+4*q,4)}, v{8+q}")
        e(f"ds_read_b64_tr_b16 {vr(fw+4*q,2)}, v13 offset:{q*1024}", f"ds_read_b64_tr_b16 {vr(fw+4*q+2,2)}, v13 offset:{q*1024+128}")
    sig(e, 15, vH1, LAND)
    e(f"s_cmp_lg_u32 s{sKIND}, 0", "s_cbranch_scc1 L_kv_v")
    for kind in range(2):
        for q in range(4):
            a, b = (fw, fx) if kind == 0 else (fx, fw)
            e(f"s_waitcnt lgkmcnt({10-3*q})", f"{MF16} {vr(acc,4)}, {vr(a+4*q,4)}, {vr(b+4*q,4)}, {'0' if q == 0 else vr(acc,4)}")
        if kind == 0:
            e("s_branch L_kv_d"); e.lab("L_kv_v")
    e.lab("L_kv_d")
    e(f"s_cmp_eq_u32 s{sI}, 0", "s_cbranch_scc1 L_kv_0", "s_nop 5")
    e(f"ds_write_b128 v14, {vr(acc,4)}")
    sig(e, vHC, vH1, HCNT)
    e("s_branch L_h2")
    e.lab("L_kv_0")
    lds_wait(e, vHC, vHT, 3, HCNT, sleep=0)
    for k in range(1, 4): e(f"ds_read_b128 {vr(fx+4*k,4)}, v14 offset:{k*4096}")
    e("s_waitcnt lgkmcnt(1)")
    for k in range(2): e(f"v_pk_add_f32 {vr(fx+4+2*k,2)}, {vr(fx+4+2*k,2)}, {vr(fx+8+2*k,2)}")
    e("s_waitcnt lgkmcnt(0)")
    for k in range(2): e(f"v_pk_add_f32 {vr(acc+2*k,2)}, {vr(acc+2*k,2)}, {vr(fx+12+2*k,2)}")
    for k in range(2): e(f"v_pk_add_f32 {vr(acc+2*k,2)}, {vr(acc+2*k,2)}, {vr(fx+4+2*k,2)}")
    e(f"v_cvt_pk_bf16_f32 v28, v{acc}, v{acc+1}", f"v_cvt_pk_bf16_f32 v29, v{acc+2}, v{acc+3}", "s_nop 1")
    e("v_permlane32_swap_b32 v28, v30", "v_permlane32_swap_b32 v29, v31", "s_mov_b32 exec_hi, 0", "s_nop 0")
    e(f"buffer_store_dwordx4 v[28:31], v20, {sr(R_WS,4)}, s{sO+4} offen{SC}", "s_mov_b64 exec, -1")
    if "gate1" in OPT: sig(e, vHC, vH1, KVF)
    sig(e, vHC, vH1, HCNT)
    stamp(e, 2)
    e("s_waitcnt vmcnt(0)")
    set_flag(e, sO+5, 2, 3)
    if "gate2" in OPT: sig(e, vHC, vH1, KVF)
    stamp(e, 3)
    e("s_branch L_h2")

vT0, vQ16, vAN, vT1, AQ, AK, AV, S0, S1, AO, ANM = 0, 1, 2, 3, 4, 8, 40, 104, 120, 136, 152
vVo, vFa, vC, v1_ = S1, S1+1, S1+2, S1+3
def zero_pr(e):
    e(f"s_lshl_b32 s{sO}, s{sW}, 8", f"s_add_u32 m0, s{sO}, {PR_L - 1024}", "v_mov_b32 v2, 0", "ds_write_addtid_b32 v2")
def f_load(e):
    e.lab("L_aux")
    e.c("---- F: bulk loads")
    zero_pr(e)
    xa_voff(e, 8, 12)
    e(f"s_lshl_b32 s{sO}, s{sI}, 6", f"v_xor_b32 v8, s{sO}, v8")
    e("v_lshrrev_b32 v2, 3, v0", "v_bfe_u32 v3, v0, 4, 1", "v_lshlrev_b32 v3, 2, v3", "v_and_b32 v4, 7, v0", "v_xor_b32 v4, v4, v3")
    e("v_lshlrev_b32 v4, 4, v4", "v_lshl_add_u32 v12, v2, 10, v4")
    e(f"s_lshl_b32 s{sT}, s{sI}, 12")
    e(f"s_lshl_b32 s{sT+1}, s{sI}, 15", f"s_lshl_b32 s{sO}, s{sCB}, 7", f"s_add_u32 s{sT+1}, s{sT+1}, s{sO}")
    e(f"s_lshl_b32 s{sT+2}, s{sRB}, 16", f"s_add_u32 s{sT+2}, s{sT+2}, s{sT}", f"s_lshl_b32 s{sT+9}, s{sI}, 10")
    for du in range(1, 4):
        e(f"s_add_u32 s{sO}, s{sSB}, {du}", f"s_and_b32 s{sO}, s{sO}, 3")
        e(f"s_lshl_b32 s{sT+2+du}, s{sO}, 14", f"s_add_u32 s{sT+2+du}, s{sT+2+du}, s{sT+2}")
        e(f"s_lshl_b32 s{sT+5+du}, s{sO}, 12", f"s_add_u32 s{sT+5+du}, s{sT+5+du}, s{sT+9}")
    e(f"v_mov_b32 v{vC}, {CNT}", f"v_mov_b32 v{v1_}, 1")
    e("s_waitcnt lgkmcnt(0)")
    load_epoch(e)
    e("s_barrier")
    def chunk(sg):
        e(f"s_add_u32 s{sO+1}, s{sRB}, {sg}", f"s_and_b32 s{sO+1}, s{sO+1}, 3", f"s_lshl_b32 s{sO+2}, s{sO+1}, 8")
        e(f"s_lshl_b32 s{sO+1}, s{sO+1}, 17", f"s_add_u32 s{sO+1}, s{sO+1}, s{sT+1}")
        for i in range(4):
            e(f"s_add_u32 m0, s{sT}, {sg*SLOT + 16384 + i*1024}", f"s_add_u32 s{sO}, s{sO+1}, {i*8192}")
            dma(e, 12, R_WQ, sO)
        for du in range(1, 4):
            e(f"s_add_u32 m0, s{sT+5+du}, {sg*SLOT}", f"s_add_u32 s{sO}, s{sT+2+du}, s{sO+2}")
            dma(e, 8, R_XA, sO, nt=True)
    gated = "gate1" in OPT or "gate2" in OPT
    nb = 2 if gated else 4
    for sg in range(nb): chunk(sg)
    stamp_init(e)
    if gated:
        att_consts(e)
        get_epoch(e)
        e("s_waitcnt vmcnt(7)"); sig(e, vC, v1_, LAND)
        lds_wait(e, vC, S0, 1, KVF, sleep=1)
        chunk(2)
        e("s_waitcnt vmcnt(7)"); sig(e, vC, v1_, LAND + 4)
        chunk(3)
        stamp(e, 1)
        for sg in range(2, 4):
            e(f"s_waitcnt vmcnt({21-7*sg})"); sig(e, vC, v1_, LAND + 4*sg)
    else:
        stamp(e, 1)
        for sg in range(4):
            e(f"s_waitcnt vmcnt({21-7*sg})"); sig(e, vC, v1_, LAND + 4*sg)
        att_consts(e)
        get_epoch(e)
    stamp(e, 2)
    e("s_branch L_f2")

sAW, sP, sExp = sT+8, sT+9, sT+10
def att_consts(e):
    e(f"v_and_b32 v{S0}, 31, v0", f"v_cmp_eq_u32 vcc, 16, v{S0}", f"v_mov_b32 v{S0+1}, 0x3f803f80", f"v_lshlrev_b32 v{vQ16}, 4, v0")
    e(f"v_cndmask_b32 v{AV}, 0, v{S0+1}, vcc")
    for r in range(1, 64): e(f"v_mov_b32 v{AV+r}, v{AV}")
    e(f"v_lshlrev_b32 v{vAN}, 4, v{S0}", f"v_add_u32 v{vAN}, {NM_L}, v{vAN}")
    e(f"v_lshrrev_b32 v{vVo}, 5, v0", f"v_lshlrev_b32 v{vVo}, 8, v{vVo}", f"v_and_b32 v{S0+2}, 15, v0", f"v_lshl_add_u32 v{vVo}, v{S0+2}, 4, v{vVo}")
def gather_bases(e):
    e(f"s_sub_u32 s{sAW}, s{sW}, 4", f"s_lshl_b32 s{sO+2}, s{sAW}, 13")
    e(f"s_add_u32 s{sO}, s{sO+2}, {KW}", f"s_add_u32 s{sO+1}, s{sO+2}, {VW}", f"s_add_u32 s{sO+2}, s{sO}, 4096", f"s_add_u32 s{sO+3}, s{sO+1}, 4096")
def gather(e, t0, t1):
    for t in range(t0, t1):
        e(f"buffer_load_dwordx4 {vr(AK+4*t,4)}, v{vQ16}, {sr(R_WS,4)}, s{sO+2*(t>>2)} offen offset:{(t&3)*1024}{SC}")
        e("s_mov_b32 exec_lo, 0xffff", "s_mov_b32 exec_hi, 0xffff")
        for f in (2*t, 2*t+1):
            e(f"buffer_load_dwordx4 {vr(AV+4*f,4)}, v{vVo}, {sr(R_WS,4)}, s{sO+1+2*(t>>2)} offen offset:{(f&7)*512}{SC}")
        e("s_mov_b64 exec, -1")
def att_addrs(e):
    e(f"s_mul_i32 s{sExp}, s{sI}, {OS_PAIR}", f"s_add_u32 s{sExp}, s{sExp}, {OS_L}")
    e(f"v_add_u32 v{vT1}, s{sExp}, v{vQ16}", f"v_lshl_add_u32 v{vT0}, v0, 2, s{sExp}", f"v_add_u32 v{vQ16}, {QI_L}, v{vQ16}")
    e(f"s_lshl_b32 s{sO+4}, s{sI}, 8", f"s_add_u32 m0, s{sO+4}, {PR_L}")

def s_qproj(e):
    vXa, vWa, vXb, vWb, vSt, vLd = 8, 16, 17, 25, 26, 27
    acc, fr, NF, T = 104, 124, 5, 28
    a_, b_, c_, d_ = T, T+1, T+2, T+3
    e.lab("L_q")
    e.c("---- S: Q projection")
    zero_pr(e)
    e(f"s_mov_b32 m0, {CNT}", "s_nop 0", "ds_write_addtid_b32 v2", "s_waitcnt lgkmcnt(0)")
    load_epoch(e)
    e("s_barrier")
    stamp_init(e)
    e(f"v_mov_b32 v{vC}, {CNT}", f"v_mov_b32 v{v1_}, 1")
    att_consts(e)
    e(f"s_and_b32 s{sO}, s{sI}, 1", f"s_lshl_b32 s{sO}, s{sO}, 13")
    e(f"v_and_b32 v{a_}, 31, v0", f"v_lshrrev_b32 v{b_}, 5, v0", f"v_and_b32 v{c_}, 15, v0", f"v_xor_b32 v{c_}, v{c_}, v{b_}")
    e(f"v_lshl_add_u32 v{d_}, v{a_}, 8, s{sO}", f"v_lshl_add_u32 v{vXa}, v{c_}, 4, v{d_}")
    for s in range(1, 8): e(f"v_xor_b32 v{vXa+s}, {s<<5}, v{vXa}")
    e(f"v_bfe_u32 v{a_}, v0, 2, 2", f"v_lshl_add_u32 v{c_}, v{b_}, 3, v{a_}", f"v_lshlrev_b32 v{c_}, 7, v{c_}", f"v_lshrrev_b32 v{a_}, 1, v{a_}")
    e(f"s_lshr_b32 s{sO}, s{sI}, 1", f"v_xor_b32 v{a_}, s{sO}, v{a_}", f"v_lshl_add_u32 v{c_}, v{a_}, 6, v{c_}")
    e(f"v_bfe_u32 v{a_}, v0, 4, 1", f"v_lshl_add_u32 v{c_}, v{a_}, 5, v{c_}", f"v_and_b32 v{a_}, 3, v0", f"v_lshl_add_u32 v{c_}, v{a_}, 3, v{c_}")
    e(f"v_add_u32 v{vWa}, 16384, v{c_}", f"v_lshl_add_u32 v{vLd}, v{a_}, 2, v{vC}")
    e(f"v_bfe_u32 v{a_}, v0, 3, 2", f"v_lshlrev_b32 v{a_}, 13, v{a_}", f"v_lshl_add_u32 v{a_}, v{b_}, 9, v{a_}")
    e(f"v_and_b32 v{c_}, 7, v0", f"v_lshl_add_u32 v{vSt}, v{c_}, 4, v{a_}")
    for s in range(9): e(f"v_add_u32 v{vXb+s}, 65536, v{vXa+s}")
    get_epoch(e)
    e(f"s_mov_b32 s{sT+6}, {hex(f32bits(CSC))}")
    e(f"s_and_b32 s{sO+1}, s{sI}, 1", f"s_lshl_b32 s{sO+2}, s{sRB}, 1", f"s_add_u32 s{sO+1}, s{sO+1}, s{sO+2}", f"s_lshl_b32 s{sO+1}, s{sO+1}, 15")
    e(f"s_lshl_b32 s{sO+2}, s{sCB}, 10", f"s_add_u32 s{sO+1}, s{sO+1}, s{sO+2}")
    e(f"s_lshr_b32 s{sO+2}, s{sI}, 1", f"s_lshl_b32 s{sO+2}, s{sO+2}, 8", f"s_add_u32 s{sT+7}, s{sO+1}, s{sO+2}", f"s_add_u32 s{sO+2}, s{sO+2}, {QI_L}")
    e(f"v_and_b32 v{b_}, 0x3ff, v{vSt}", f"v_add_u32 v{b_}, s{sO+2}, v{b_}")
    e(f"s_lshr_b32 s{sT+5}, s{sO+1}, 2", f"s_and_b32 s{sO}, s{sI}, 2", f"s_lshl_b32 s{sO}, s{sO}, 2", f"s_add_u32 s{sT+5}, s{sT+5}, s{sO}", f"s_add_u32 s{sT+5}, s{sT+5}, {CKQ}")
    e(f"v_and_b32 v{T+4}, 0x70, v{vSt}", f"v_and_b32 v{T+5}, 0xffffff80, v{vSt}", f"v_lshrrev_b32 v{T+5}, 2, v{T+5}", f"v_add_u32 v{T+4}, v{T+4}, v{T+5}")
    e(f"s_and_b32 s{sO}, s{sCB}, 3", f"s_lshl_b32 s{sO}, s{sO}, 3", f"s_lshl_b32 s{sT+11}, 0xff, s{sO}")
    e(f"s_lshr_b32 s{sO}, s{sCB}, 2", f"s_and_b32 s{sO+1}, s{sI}, 1", f"s_cmp_eq_u32 s{sO}, s{sO+1}", f"s_cselect_b32 s{sT+11}, s{sT+11}, 0")
    e(f"s_lshl_b32 s{sO}, s{sI}, 2", f"v_add_u32 v{vFa}, s{sO}, v{vC}")
    gather_bases(e)
    def landwait(mask):
        lq = e.uniq("ql")
        e.lab(lq)
        e(f"ds_read_b32 v{a_}, v{vLd} offset:{LAND}", "s_waitcnt lgkmcnt(0)", f"v_cmp_gt_u32 vcc, 5, v{a_}")
        e(f"s_and_b32 s{sO+5}, vcc_lo, 15", f"s_and_b32 s{sO+4}, s{sO+5}, {mask}", f"s_cbranch_scc0 {lq}_d")
        spin_tail(e, lq, 1)
        e.lab(lq + "_d")
    def rd(n):
        sg, s = n >> 3, n & 7
        so = (sg & 1) * SLOT
        xa, wa = (vXa + s, vWa) if sg < 2 else (vXb + s, vWb)
        f = fr + 8 * (n % NF)
        e(f"ds_read_b128 {vr(f,4)}, v{xa} offset:{so}")
        e(f"ds_read_b64_tr_b16 {vr(f+4,2)}, v{wa} offset:{so+s*2048}", f"ds_read_b64_tr_b16 {vr(f+6,2)}, v{wa} offset:{so+s*2048+512}")
    e("s_setprio 3")
    landwait(1)
    stamp(e, 16)
    for n in range(NF): rd(n)
    for n in range(32):
        f = fr + 8 * (n % NF)
        e(f"s_waitcnt lgkmcnt({min(3*(NF-1), 3*(31-n))})", f"{MF32} {vr(acc,16)}, {vr(f+4,4)}, {vr(f,4)}, {'0' if n == 0 else vr(acc,16)}")
        if n + NF < 32:
            if (n + NF) % 8 == 0:
                bit = 1 << ((n + NF) >> 3)
                sk = e.uniq("lok")
                e(f"s_and_b32 s{sO+4}, s{sO+5}, {bit}", f"s_cbranch_scc0 {sk}")
                landwait(bit)
                e.lab(sk)
                if "qst" in OPT: stamp(e, 16 + ((n + NF) >> 3))
            rd(n + NF)
    if "qst" in OPT: stamp(e, 20)
    e(f"v_mov_b32 v{c_}, s{sT+6}", "s_nop 10")
    for r in range(8): e(f"v_pk_mul_f32 {vr(acc+2*r,2)}, {vr(acc+2*r,2)}, {vr(c_,2)} op_sel_hi:[1,0]")
    P = AO
    for j in range(8): e(f"v_cvt_pk_bf16_f32 v{P+j}, v{acc+2*j}, v{acc+2*j+1}")
    e(f"s_mov_b32 exec_lo, s{sT+11}", f"s_mov_b32 exec_hi, s{sT+11}")
    e(f"ds_write_b128 v{b_}, {vr(P,4)}", f"ds_write_b128 v{b_}, {vr(P+4,4)} offset:128")
    sig(e, vC, v1_, ACNT)
    if "qst" in OPT: stamp(e, 21)
    e(f"buffer_store_dwordx4 {vr(P,4)}, v{vSt}, {sr(R_WS,4)}, s{sT+7} offen{SC}")
    e(f"buffer_store_dwordx4 {vr(P+4,4)}, v{vSt}, {sr(R_WS,4)}, s{sT+7} offen offset:128{SC}")
    mk_ck(e, P+8, P); mk_ck(e, P+9, P+4)
    e(f"buffer_store_dwordx2 {vr(P+8,2)}, v{T+4}, {sr(R_WS,4)}, s{sT+5} offen{SC}")
    if "qfirst" in OPT: sig(e, vC, v1_, QST)
    stamp(e, 2)
    lds_wait(e, vFa, S0+2, 1, SOK)
    lds_wait(e, vC, S0+2, 4, GCNT, sleep=2)
    if "sl" in OPT: lds_wait(e, vC, S0+2, 8, QST, sleep=2)
    if "sdelay" in OPT: lds_wait(e, vC, S0+2, 1, RDY1)
    stamp(e, 7)
    gather(e, 0, 8)
    sig(e, vC, v1_, GCNT)

def pk(S, j):
    d = S + (j if j < 4 else 4 + j)
    return f"v_cvt_pk_bf16_f32 v{d}, v{S+2*j}, v{S+2*j+1}"
def rdq(e):
    e(f"ds_read_b128 {vr(AQ,4)}, v{vQ16}")
    for k in range(4): e(f"ds_read_b128 {vr(ANM+4*k,4)}, v{vAN}")
def dump(e, kind):
    e(f"ds_write_b128 v{vT1}, {vr(AO,4)}", f"ds_write_b128 v{vT1}, {vr(AO+4,4)} offset:1024", f"ds_write_b32 v{vT0}, v{AO+8} offset:2048")
    e(f"ds_write_addtid_b32 v{vT1} offset:{0 if kind == 'F' else 1024}")
def advance(e):
    e(f"v_add_u32 v{vT1}, {OS_POS}, v{vT1}", f"v_add_u32 v{vT0}, {OS_POS}, v{vT0}")
def init_o(e, off):
    e(f"ds_read_b128 {vr(AO,4)}, v{vT1} offset:{off}", f"ds_read_b128 {vr(AO+4,4)}, v{vT1} offset:{off+1024}", f"ds_read_b32 v{AO+8}, v{vT0} offset:{off+2048}")

def att_block(e, mode):
    kind = "F" if mode[0] == "F" else "S"
    lo = 1 if kind == "F" else 0
    def prio(p):
        if mode != "B" and "noprio" not in OPT: e(f"s_setprio {p}")
        elif mode == "B" and "btog" in OPT: e(f"s_setprio {p}")
    for t in range(8):
        Sc, Sn = (S0, S1) if t % 2 == 0 else (S1, S0)
        tp, tn = (t - 1) % 8, (t + 1) % 8
        def X(*toks):
            for k in toks: e(f"v_exp_f32 v{Sc+k}, v{Sc+k}" if isinstance(k, int) else pk(Sc, int(k[1:])))
        c0 = "0" if (t == 1 and kind == "F") else vr(AO, 16)
        pv0 = f"{MF32} {vr(AO,16)}, {vr(AV+8*tp,4)}, {vr(Sn,4)}, {c0}"
        pv1 = f"{MF32} {vr(AO,16)}, {vr(AV+8*tp+4,4)}, {vr(Sn+8,4)}, {vr(AO,16)}"
        qk = f"{MF32} {vr(Sn,16)}, {vr(AK+4*tn,4)}, {vr(AQ,4)}, {vr(ANM,16)}"
        if t == 1 and kind == "S":
            X(0); e(pk(Sn, 7)); X(1, 2)
            e("s_waitcnt lgkmcnt(0)", pv0); X(3, "p0", 4, "p1")
            e(pv1); X(5, 6, "p2", 7)
            e(qk); prio(lo)
            X(8, "p3", 9, 10, "p4", 11, 12)
            e("s_wakeup")
            prio(3)
            X("p5", 13, 14, "p6", 15)
            continue
        skip_pv = mode == "F0" and t == 0
        if mode == "F0" and t > 0: e(f"s_waitcnt vmcnt({max(0, 23 - 3*(t+1))})")
        if not skip_pv: e(pv0)
        X(0)
        if not skip_pv: e(pk(Sn, 7))
        X(1, 2)
        if not skip_pv: e(pv1)
        X(3, "p0", 4, "p1")
        if t == 7 and mode != "F0": e("s_waitcnt lgkmcnt(0)")
        if t == 7 and mode == "B": e(f"v_readfirstlane_b32 s{sPOLL}, v{Sn+4}")
        if skip_pv: e("s_waitcnt vmcnt(20)")
        if not (t == 7 and mode == "F0"): e(qk)
        prio(lo)
        X(5, 6, "p2", 7, 8, "p3")
        if t == 0 and mode != "F0":
            if mode == "S":
                dump(e, kind); init_o(e, OS_POS); advance(e)
            else:
                sk = e.uniq("nodump")
                e(f"s_cmp_eq_u32 s{sP}, {1 if mode == 'F' else 0}", f"s_cbranch_scc1 {sk}")
                dump(e, kind); advance(e)
                if mode == "B": e(f"s_add_u32 s{sExp}, s{sExp}, {OS_POS}")
                e.lab(sk)
                if mode == "B":
                    e(f"s_cmp_ge_u32 s{sPOLL}, s{sExp}", "s_cbranch_scc0 L_swait")
                    e.lab("L_swait_ret")
                    init_o(e, 0)
        X(9)
        if t == 6:
            if mode == "B":
                e(f"s_cmp_eq_u32 s{sP}, 0", "s_cbranch_scc1 L_yprep"); e.lab("L_yprep_ret")
            if mode == "F":
                e(f"s_cmp_eq_u32 s{sP}, 1", "s_cbranch_scc1 L_fprep"); e.lab("L_fprep_ret")
            e(f"v_add_u32 v{vQ16}, 1024, v{vQ16}", f"v_add_u32 v{vAN}, 512, v{vAN}")
            if mode != "F0": rdq(e)
            if mode == "B": e(f"ds_read_addtid_b32 v{Sc+4}")
        X(10, "p4", 11, 12)
        w = WIN if kind == "F" else 12
        if w == 12: prio(3)
        X("p5", 13)
        if w == 13: prio(3)
        X(14)
        if w == 14: prio(3)
        X("p6", 15)
        if w == 15: prio(3)

def att_finish(e, kind):
    e(f"{MF32} {vr(AO,16)}, {vr(AV+8*7,4)}, {vr(S1,4)}, {vr(AO,16)}", pk(S1, 7), "s_nop 1")
    e(f"{MF32} {vr(AO,16)}, {vr(AV+8*7+4,4)}, {vr(S1+8,4)}, {vr(AO,16)}", "s_nop 11")
    dump(e, kind)
    e("s_waitcnt lgkmcnt(0)", "s_wakeup")
def qk0(e):
    e(f"{MF32} {vr(S0,16)}, {vr(AK,4)}, {vr(AQ,4)}, {vr(ANM,16)}", "s_nop 11")

def f_att(e):
    e.lab("L_f2")
    e("s_setprio 3")
    gather_bases(e)
    e(f"s_lshl_b32 s{sO+4}, s{sI}, 12", f"s_add_u32 s{sO+4}, s{sO+4}, {F1}", f"v_lshl_add_u32 v{vFa}, v0, 7, s{sO+4}")
    e(f"s_lshl_b32 s{sO+4}, s{sRB}, 10", f"s_add_u32 s{sO+4}, s{sO+4}, {F1 - 32*256}", "s_mov_b32 exec_lo, 0", f"v_lshl_add_u32 v{vFa}, v0, 8, s{sO+4}")
    e(f"s_lshl_b32 s{sO+4}, s{sRB}, 11", f"s_add_u32 s{sO+4}, s{sO+4}, {KW}")
    stamp(e, 6)
    gpoll(e, vFa, S0, 0xffffffff, 0x3, sleep=1)
    if "qfirst" in OPT: lds_wait(e, vC, S0, 4, QST, sleep=0)
    stamp(e, 7)
    e(f"buffer_load_dwordx4 {vr(AO,4)}, v{vQ16}, {sr(R_WS,4)}, s{sO+4} offen{SC}")
    gather(e, 0, 8)
    sig(e, vC, v1_, GCNT)
    att_addrs(e)
    lds_wait(e, vC, S0, 4, ACNT, sleep=0)
    e(f"ds_read_b128 {vr(AQ,4)}, v{vQ16}")
    stamp(e, 8)
    e("s_waitcnt vmcnt(24) lgkmcnt(0)", f"{MF32} {vr(S0,16)}, {vr(AO,4)}, {vr(AQ,4)}, 0", "s_nop 11")
    negmax(e, S0, ANM)
    for r in range(1, 16): e(f"v_mov_b32 v{ANM+r}, v{ANM}")
    e(f"ds_write_b128 v{vAN}, {vr(ANM,4)}", "s_waitcnt vmcnt(23)")
    stamp(e, 3); cstamp(e, 13)
    qk0(e)
    att_block(e, "F0")
    att_finish(e, "F")
    advance(e)
    stamp(e, 20)
    e(f"v_mov_b32 v{S0}, {CNT}", f"s_mov_b32 s{sP}, 1")
    lds_wait(e, S0, S0+1, 1, RDY1, sleep=2)
    rdq(e)
    stamp(e, 21); cstamp(e, 10)
    e("s_waitcnt lgkmcnt(0)")
    qk0(e)
    e.L.append("    .p2align 3")
    e.lab("L_floop")
    att_block(e, "F")
    e(f"s_add_u32 s{sP}, s{sP}, 1", f"s_cmp_lt_u32 s{sP}, 8", "s_cbranch_scc1 L_floop")
    att_finish(e, "F")
    stamp(e, 4); cstamp(e, 11)
    e("s_branch L_f3")
    e.lab("L_fprep")
    e(f"v_mov_b32 v{S0+4}, {CNT}")
    lds_wait(e, S0+4, S0+5, 8, ACNT, sleep=2)
    e("s_branch L_fprep_ret")

def s_att(e):
    att_addrs(e)
    e(f"s_mov_b32 s{sP}, 0", f"v_mov_b32 v{S0}, m0", "s_setprio 0")
    stamp(e, 8)
    lds_wait(e, S0, S0+1, 1, sleep=6)
    rdq(e)
    e("s_waitcnt vmcnt(0) lgkmcnt(0)")
    stamp(e, 3); cstamp(e, 13)
    qk0(e)
    e.L.append("    .p2align 3")
    e.lab("L_bloop")
    att_block(e, "B")
    e(f"s_add_u32 s{sP}, s{sP}, 1", f"s_cmp_ge_u32 s{sP}, 8", "s_cbranch_scc1 L_sfin")
    e(f"s_cmp_lt_u32 s{sPOLL}, {OS_L + 7*OS_POS}", "s_cbranch_scc1 L_bloop")
    stamp(e, 5)
    e("s_setprio 3")
    e.L.append("    .p2align 3")
    e.lab("L_sloop")
    att_block(e, "S")
    e(f"s_add_u32 s{sP}, s{sP}, 1")
    if STAMPS:
        e(f"s_cmp_lg_u32 s{sP}, 4", "s_cbranch_scc1 L_sns"); stamp(e, 4); cstamp(e, 10); e.lab("L_sns")
    e(f"s_cmp_lt_u32 s{sP}, 8", "s_cbranch_scc1 L_sloop")
    e.lab("L_sfin")
    att_finish(e, "S")
    finish(e)
    e.lab("L_yprep")
    e(f"v_mov_b32 v{S0+4}, {CNT}")
    lds_wait(e, S0+4, S0+5, 1, RDY1, sleep=2)
    e("s_branch L_yprep_ret")
    e.lab("L_swait")
    e(f"v_mov_b32 v{S0+4}, m0")
    lds_wait(e, S0+4, S0+5, f"s{sExp}", sleep=4)
    e("s_branch L_swait_ret")

sBX, sBH, sBW, sKC, sBXL, sBHL, sBWL = sT, sT+1, sT+2, sT+3, sT+4, sT+5, sT+6
BA = 8
aq, ak, av, ahk, ahv, MC = 24, 40, 56, 72, 76, 80
MP = MC + 4
FR = 104
def b_prep(e):
    e.c("---- B prep")
    e("v_lshrrev_b32 v20, 3, v0", "v_and_b32 v21, 7, v0", "v_lshrrev_b32 v22, 1, v20", "v_xor_b32 v23, v21, v22", "v_lshlrev_b32 v23, 4, v23")
    e("v_lshl_add_u32 v1, v20, 11, v23", "v_xor_b32 v2, 64, v1")
    e(f"s_lshl_b32 s{sO}, s{sI}, 5", f"v_xor_b32 v3, s{sO}, v1")
    e("v_and_b32 v22, 1, v22", "v_lshlrev_b32 v22, 2, v22", "v_xor_b32 v23, v21, v22", "v_lshlrev_b32 v23, 4, v23")
    e("v_mul_u32_u24 v20, 3072, v20", "v_add_u32 v4, v20, v23", "v_xor_b32 v16, 32, v4")
    e(f"s_and_b32 s{sO}, s{sI}, 1", f"s_lshr_b32 s{sO+1}, s{sI}, 1", f"s_lshl_b32 s{sO+1}, s{sO+1}, 10")
    e(f"s_lshl_b32 s{sBX}, s{sRB}, 16", f"s_max_u32 s{sBH}, s{sBX}, 16384", f"s_sub_u32 s{sBH}, s{sBH}, 16384")
    e(f"s_add_u32 s{sBX}, s{sBX}, s{sO+1}", f"s_add_u32 s{sBH}, s{sBH}, s{sO+1}")
    e(f"s_lshl_b32 s{sO+1}, s{sO}, 15", f"s_add_u32 s{sBX}, s{sBX}, s{sO+1}")
    e(f"s_lshl_b32 s{sO+1}, s{sO}, 13", f"s_add_u32 s{sBH}, s{sBH}, s{sO+1}")
    e(f"s_mul_i32 s{sBW}, s{sI}, {16*3072}", f"s_lshl_b32 s{sO+1}, s{sCB}, 7", f"s_add_u32 s{sBW}, s{sBW}, s{sO+1}")
    e(f"s_lshl_b32 s{sKC}, s{sRB}, 1", f"s_add_u32 s{sKC}, s{sKC}, s{sCB}")
    e(f"s_lshl_b32 s{sBWL}, s{sI}, 11", f"s_add_u32 s{sBXL}, s{sBWL}, {RXO + 2048}", f"s_lshl_b32 s{sBHL}, s{sI}, 9", f"s_add_u32 s{sBHL}, s{sBHL}, {RXO}")
    e("v_and_b32 v20, 31, v0", "v_lshrrev_b32 v21, 5, v0", "v_bfe_u32 v22, v0, 1, 3", "v_xor_b32 v22, v22, v21", "v_lshlrev_b32 v22, 4, v22", "v_lshl_add_u32 v22, v20, 7, v22")
    e(f"s_lshl_b32 s{sO}, s{sO}, 12", f"s_add_u32 s{sO}, s{sO}, {RXO + 2048}", f"v_add_u32 v{BA}, s{sO}, v22")
    for s in range(1, 4): e(f"v_xor_b32 v{BA+s}, {s<<5}, v{BA}")
    e("v_bfe_u32 v20, v0, 2, 2", "v_and_b32 v23, 3, v0", "v_and_b32 v17, 2, v20", "v_or_b32 v18, v17, v21", "v_bfe_u32 v19, v0, 4, 1")
    e(f"s_and_b32 s{sO}, s{sI}, 2", f"v_or_b32 v19, s{sO}, v19", "v_xor_b32 v18, v18, v19")
    e("v_lshl_add_u32 v22, v21, 3, v20", "v_lshlrev_b32 v22, 7, v22", "v_lshl_add_u32 v22, v18, 5, v22", f"v_lshl_add_u32 v{BA+4}, v23, 3, v22")
    e("v_lshrrev_b32 v21, 4, v0", "v_bfe_u32 v22, v0, 1, 3", "v_xor_b32 v22, v22, v21", "v_lshlrev_b32 v22, 4, v22", "v_and_b32 v19, 15, v0")
    e("v_lshl_add_u32 v22, v19, 7, v22", f"v_add_u32 v{BA+5}, {RXO}, v22", f"v_xor_b32 v{BA+6}, 64, v{BA+5}")
    e("v_and_b32 v18, 1, v21", "v_or_b32 v18, v17, v18", f"v_xor_b32 v18, s{sI}, v18")
    e("v_lshl_add_u32 v22, v21, 3, v20", "v_lshlrev_b32 v22, 7, v22", "v_lshl_add_u32 v22, v18, 5, v22", f"v_lshl_add_u32 v{BA+7}, v23, 3, v22")
    e(f"v_mov_b32 v{MC}, {hex(f32bits(-1e30))}")
    for r in range(1, 20): e(f"v_mov_b32 v{MC+r}, v{MC}")
    def setm(reg, r, shift):
        m = 0
        for l in range(64):
            d = (l & 31) - ((r & 3) + 8 * (r >> 2) + 4 * (l >> 5)) + shift
            if 0 <= d <= 7: m |= 1 << l
        if m: e(f"s_mov_b32 exec_lo, {hex(m & 0xffffffff)}", f"s_mov_b32 exec_hi, {hex(m >> 32)}", f"v_mov_b32 v{reg}, 0")
    for r in range(16): setm(MC + r, r, 0)
    e(f"s_cmp_eq_u32 s{sRB}, 0", "s_cbranch_scc1 L_nomp")
    for r in range(12, 16): setm(MP + r, r, 32)
    e.lab("L_nomp")
    e("s_mov_b64 exec, -1")

def h_qprep(e):
    T, QK, SA, SB = 20, 104, 120, 136
    e.c("---- H: Q fragments + max images of positions 1+i, 5+i")
    e(f"s_add_u32 s{sO+1}, s{sI}, 1", f"s_cmp_lt_u32 s{sI}, s{sCB}", f"s_cselect_b32 s{sO+1}, s{sI}, s{sO+1}")
    e(f"s_add_u32 s{sO}, s{sI}, 4", f"s_add_u32 s{sO+2}, s{sI}, 5", f"s_cmp_lt_u32 s{sO}, s{sCB}", f"s_cselect_b32 s{sO+2}, s{sO}, s{sO+2}", f"s_min_u32 s{sO+2}, s{sO+2}, 7")
    e(f"v_and_b32 v{T}, 32, v0", f"v_and_b32 v{T+1}, 7, v0", f"v_lshl_add_u32 v{T}, v{T+1}, 2, v{T}", f"v_bfe_u32 v{T+1}, v0, 3, 2", f"v_add_lshl_u32 v18, v{T}, v{T+1}, 2")
    e(f"v_lshlrev_b32 v{T+2}, 4, v0", f"s_lshl_b32 s{sO+3}, s{sIDX}, 13")
    e(f"s_lshl_b32 s{sO+1}, s{sO+1}, 10", f"s_add_u32 s{sO+1}, s{sO+1}, s{sO+3}", f"s_lshl_b32 s{sO+2}, s{sO+2}, 10", f"s_add_u32 s{sO+2}, s{sO+2}, s{sO+3}")
    e(f"s_lshl_b32 s{sO+4}, s{sI}, 13", f"s_add_u32 s{sO+4}, s{sO+4}, {KW + 32768}")
    e(f"s_lshl_b32 s{sO+5}, s{sI}, 12", f"s_add_u32 s{sO+5}, s{sO+5}, {F1 + 16384}", f"v_lshl_add_u32 v{T+3}, v0, 7, s{sO+5}")
    e(f"s_lshl_b32 s{sO+5}, s{sI}, 2", f"v_add_u32 v17, s{sO+5}, v{vHC}")
    lds_wait(e, vHC, vHT, 5, LAND + 12, sleep=2)
    gpoll(e, T + 3, T + 1, 0xffffffff, 0, sleep=2)
    sig(e, 17, vH1, SOK)
    e(f"buffer_load_dwordx4 {vr(QK+8,4)}, v{T+2}, {sr(R_WS,4)}, s{sO+4} offen{SC}")
    lds_wait(e, vHC, vHT, 4, ACNT, sleep=2)
    e(f"s_lshl_b32 s{sO}, s{sI}, 10", f"s_add_u32 s{sO}, s{sO}, {QI_L+1024}", f"v_add_u32 v{T}, s{sO}, v{T+2}", f"v_and_b32 v{T+1}, 0x1ff, v{T+2}")
    e(f"s_lshl_b32 s{sO}, s{sI}, 9", f"s_add_u32 s{sO}, s{sO}, {NM_L+512}", f"v_add_u32 v{T+1}, s{sO}, v{T+1}")
    for z in range(2):
        e(f"s_lshr_b32 s{sO+3+z}, s{sO+1+z}, 2", f"s_add_u32 s{sO+3+z}, s{sO+3+z}, {CKQ}")
    def ldq(z):
        e(f"buffer_load_dwordx4 {vr(QK+4*z,4)}, v{T+2}, {sr(R_WS,4)}, s{sO+1+z} offen{SC}", f"buffer_load_dword v{QK+12+z}, v18, {sr(R_WS,4)}, s{sO+3+z} offen{SC}")
    lds_wait(e, vHC, vHT, 8 if 'hlate' in OPT else 4, GCNT, sleep=1)
    ldq(0); ldq(1)
    if 'bnow' in OPT:
        for k in range(5): e(f"s_mov_b32 s{sT+7+k}, s{sO+k}")
        for g in b_dma_groups(0): e(*g)
        if "sl" in OPT: sig(e, vHC, vH1, QST)
        for k in range(5): e(f"s_mov_b32 s{sO+k}, s{sT+7+k}")
    for z in range(2):
        l = e.uniq("qt")
        if z == 1: e(f"s_cmp_eq_u32 s{sI}, 3", "s_cbranch_scc1 L_nop8")
        e(f"s_waitcnt vmcnt({2 - 2*z + (9 if 'bnow' in OPT else 0)})", f"s_branch {l}_c")
        e.lab(l)
        ldq(z)
        e("s_waitcnt vmcnt(0)")
        e.lab(l + "_c")
        mk_ck(e, QK+14, QK+4*z)
        e(f"v_cmp_ne_u32 vcc, v{QK+14}, v{QK+12+z}", f"s_cbranch_vccz {l}_d")
        spin_tail(e, l, 4)
        e.lab(l + "_d")
        e(f"{MF32} {vr(SA,16)}, {vr(QK+8,4)}, {vr(QK+4*z,4)}, 0", f"ds_write_b128 v{T}, {vr(QK+4*z,4)} offset:{4096*z}", "s_nop 10")
        negmax(e, SA, 152 + 4*z)
        for r in range(1, 4): e(f"v_mov_b32 v{152+4*z+r}, v{152+4*z}")
        e(f"ds_write_b128 v{T+1}, {vr(152+4*z,4)} offset:{2048*z}")
        if z == 0:
            e(f"s_cmp_eq_u32 s{sI}, 0", "s_cselect_b32 exec_lo, 1, 0", "s_mov_b32 exec_hi, 0", f"ds_write_b32 v{vHC}, v{vH1} offset:{RDY1}", "s_mov_b64 exec, -1")
            stamp(e, 9)
    e.lab("L_nop8")
    sig(e, vHC, vH1, ACNT)
    stamp(e, 10)

class Lst(list):
    def __call__(self, *x): self.extend(x)
def b_dma_groups(j):
    ro = (j & 1) * RINGS
    G = [Lst() for _ in range(5)]
    g = G[0]
    g(f"s_add_u32 s{sO+1}, s{sKC}, {j}", f"s_and_b32 s{sO+1}, s{sO+1}, 7", f"s_lshl_b32 s{sO+2}, s{sO+1}, 7", f"s_mul_i32 s{sO+1}, s{sO+1}, {64*3072}")
    g(f"s_add_u32 s{sO+1}, s{sO+1}, s{sBW}", f"s_add_u32 s{sO+3}, s{sO+2}, s{sBX}")
    for u in range(2):
        g(f"s_add_u32 m0, s{sBXL}, {ro + u*1024}", f"s_add_u32 s{sO}, s{sO+3}, {u*16384}")
        dma(g, 1 + u, R_XB, sO, nt="bnt" in OPT)
    for p in range(3):
        g = G[1 + p]
        for u in range(2):
            g(f"s_add_u32 m0, s{sBWL}, {ro + p*8192 + u*1024}", f"s_add_u32 s{sO}, s{sO+1}, {p*1024 + u*8*3072}")
            dma(g, 4 if u == 0 else 16, R_WB, sO)
    g = G[4]
    g(f"s_add_u32 m0, s{sBHL}, {ro}", f"s_add_u32 s{sO}, s{sO+2}, s{sBH}", "s_mov_b32 exec_hi, 0")
    dma(g, 3, R_XB, sO)
    g("s_mov_b64 exec, -1")
    return G
def wo_groups(R, base):
    G = [Lst() for _ in range(4)]
    G[0](f"s_lshl_b32 s{sO+1}, s{sI}, 17", f"s_lshl_b32 s{sO+2}, s{sHP}, 6", f"s_add_u32 s{sO+1}, s{sO+1}, s{sO+2}", f"s_lshl_b32 s{sO+2}, s{sI}, 13")
    for u in range(8):
        g = G[u >> 1]
        g(f"s_add_u32 m0, s{sO+2}, {base + u*1024}", f"s_add_u32 s{sO}, s{sO+1}, {u*16384}")
        dma(g, 20, R, sO)
    return G
def wo_voff(e):
    e("v_lshrrev_b32 v20, 2, v0", "v_and_b32 v21, 3, v0", "v_lshlrev_b32 v21, 4, v21", "v_lshl_add_u32 v20, v20, 10, v21", "v_lshlrev_b32 v21, 7, v0")

def b_proj(e):
    D, XB_, HX_, WB_, NBUF = 4, FR, FR + 8, FR + 12, 12
    jobs = []
    def wreads(buf, areg, off):
        return [f"ds_read_b64_tr_b16 {vr(buf,2)}, v{areg} offset:{off}", f"ds_read_b64_tr_b16 {vr(buf+2,2)}, v{areg} offset:{off+512}"]
    for j in range(8):
        ro = (j & 1) * RINGS
        for s in range(4):
            x = XB_ + 4 * (s & 1)
            for p, acc in enumerate((aq, ak, av)):
                w = WB_ + 4 * (len(jobs) % NBUF)
                rds = ([f"ds_read_b128 {vr(x,4)}, v{BA+s} offset:{ro}"] if p == 0 else []) + wreads(w, BA + 4, ro + p*8192 + s*2048)
                A_, B_ = (w, x) if p < 2 else (x, w)
                jobs.append((rds, f"{MF32} {vr(acc,16)}, {vr(A_,4)}, {vr(B_,4)}, {'0' if (j == 0 and s == 0) else vr(acc,16)}"))
            s2, p = s >> 1, 1 + (s & 1)
            w = WB_ + 4 * (len(jobs) % NBUF)
            rds = ([f"ds_read_b128 {vr(HX_,4)}, v{BA+5+s2} offset:{ro}"] if p == 1 else []) + wreads(w, BA + 7, ro + p*8192 + s2*4096)
            acc = ahk if p == 1 else ahv
            A_, B_ = (w, HX_) if p == 1 else (HX_, w)
            jobs.append((rds, f"{MF16} {vr(acc,4)}, {vr(A_,4)}, {vr(B_,4)}, {'0' if (j == 0 and s2 == 0) else vr(acc,4)}"))
    q = []
    nxt = [0]
    def issue(upto):
        while nxt[0] < min(upto, 128):
            if "bnord" not in OPT or nxt[0] < 16:
                e(*jobs[nxt[0]][0]); q.extend([nxt[0]] * len(jobs[nxt[0]][0]))
            nxt[0] += 1
    e("s_waitcnt vmcnt(9)")
    sig(e, vHC, vH1, HCNT)
    lds_wait(e, vHC, vHT, 8, HCNT)
    stamp(e, 16)
    e(f"s_setprio {HM}")
    issue(D)
    G = []
    PA = 13
    for n in range(128):
        j, r = n >> 4, n & 15
        if n in q:
            last = len(q) - 1 - q[::-1].index(n)
            e(f"s_waitcnt lgkmcnt({len(q) - 1 - last})")
            del q[:last + 1]
        e(jobs[n][1] if "bnomf" not in OPT else "s_sleep 1")
        lim = 16 * (j + 1)
        if r < PA or j == 7: issue(min(n + 1 + D, lim))
        if r == 15 - D and j < 7:
            e(f"s_waitcnt vmcnt({1 if (j in (3, 4) and 'wpf' in OPT) else 0})")
            sig(e, vHC, vH1, HCNT); q.append(-1)
        if r == PA and j < 7:
            if "bwake" in OPT:
                e("s_waitcnt lgkmcnt(0)", "s_wakeup")
            lds_wait(e, vHC, vHT, 4 * (j + 3), HCNT, sleep=BSLEEP); del q[:]
            if j == 3: stamp(e, 17)
            G = b_dma_groups(j + 2) if j < 6 else wo_groups(R_WOB, WOB_L)
            if j in (2, 3) and "wpf" in OPT:
                g = Lst()
                g(f"s_and_b32 s{sO}, s{sIDX}, 31", f"s_lshl_b32 s{sO}, s{sO}, 2", f"s_add_u32 s{sO}, s{sO}, s{sI}", f"s_lshl_b32 s{sO}, s{sO}, 12", "s_mov_b32 exec_hi, 0")
                g(f"buffer_load_dword v22, v21, {sr(R_WOB if j == 2 else R_WOA,4)}, s{sO} offen", "s_mov_b64 exec, -1")
                G.append(g)
        if r >= PA and j < 7: issue(n + 1 + D - (1 if r < 15 else 0))
        for _ in range(2):
            if G: e(*G.pop(0))
    e("s_setprio 3")

def b_attn(e):
    Qf, Kf, Vf, Kp, Vp = 104, 112, 120, 128, 136
    PB = 140
    M = 152
    e.c("---- local attention")
    e("v_bfe_u32 v9, v0, 3, 1", "v_lshlrev_b32 v10, 10, v9", "v_bfe_u32 v9, v0, 4, 1", "v_lshl_add_u32 v10, v9, 7, v10")
    e("v_and_b32 v11, 7, v0", "v_lshl_add_u32 v10, v11, 4, v10", "v_lshrrev_b32 v12, 5, v0", "v_lshl_add_u32 v10, v12, 3, v10")
    e(f"s_and_b32 s{sO}, s{sI}, 2", f"s_lshl_b32 s{sO}, s{sO}, 10", f"s_add_u32 s{sO}, s{sO}, {EX_L}", f"s_and_b32 s{sO+1}, s{sI}, 1")
    e(f"s_lshl_b32 s{sO+2}, s{sO+1}, 8", f"s_add_u32 s{sO+2}, s{sO+2}, s{sO}", f"v_add_u32 v10, s{sO+2}, v10")
    e("v_lshlrev_b32 v13, 10, v12", "v_lshl_add_u32 v13, v9, 8, v13", "v_and_b32 v14, 15, v0", "v_lshl_add_u32 v13, v14, 3, v13")
    e(f"s_lshl_b32 s{sO+2}, s{sO+1}, 7", f"s_add_u32 s{sO+2}, s{sO+2}, s{sO}", f"v_add_u32 v13, s{sO+2}, v13")
    for j in range(4): e(f"v_cvt_pk_bf16_f32 v{16+j}, v{ahk+2*j}, v{ahk+2*j+1}")
    e("ds_write_b64 v10, v[16:17]", "ds_write_b64 v13, v[18:19] offset:512")
    sig(e, vHC, vH1, HCNT)
    e(f"s_lshl_b32 s{sO}, s{sI}, 10", f"s_add_u32 s{sO}, s{sO}, {EX_L}")
    e("v_lshl_add_u32 v11, v12, 3, v11", f"v_lshl_add_u32 v11, v11, 4, s{sO}", f"v_lshl_add_u32 v14, v0, 3, s{sO}")
    for j in range(8): e(f"v_cvt_pk_bf16_f32 v{Kf+j}, v{ak+2*j}, v{ak+2*j+1}")
    for j in range(8): e(f"v_cvt_pk_bf16_f32 v{Qf+j}, v{aq+2*j}, v{aq+2*j+1}")
    Sc0, Sc1, Sp = 24, 40, 8 + 56
    lds_wait(e, vHC, vHT, 40, HCNT)
    e(f"ds_read_b128 {vr(Kp,4)}, v11", f"ds_read_b128 {vr(Kp+4,4)}, v11 offset:256", f"ds_read_b64 {vr(Vp+2,2)}, v14 offset:512")
    e(f"s_setprio {HM}")
    e(f"{MF32} {vr(Sc0,16)}, {vr(Kf,4)}, {vr(Qf,4)}, {vr(MC,16)}", f"{MF32} {vr(Sc1,16)}, {vr(Kf+4,4)}, {vr(Qf+4,4)}, {vr(MC,16)}")
    e("s_setprio 3")
    for j in range(8): e(f"v_cvt_pk_bf16_f32 v{Vf+j}, v{av+2*j}, v{av+2*j+1}")
    for r in (Vp, Vp+1): e(f"v_mov_b32 v{r}, 0")
    for r in range(12): e(f"v_mov_b32 v{PB+r}, 0")
    e(f"s_lshl_b32 s{sO+1}, s{sRB}, 1", f"s_and_b32 s{sO+2}, s{sI}, 1", f"s_add_u32 s{sO+1}, s{sO+1}, s{sO+2}", f"s_lshl_b32 s{sO+1}, s{sO+1}, 15")
    e(f"s_lshl_b32 s{sO+2}, s{sCB}, 2", f"s_and_b32 s{sO+3}, s{sI}, 2", f"s_add_u32 s{sO+2}, s{sO+2}, s{sO+3}", f"s_lshl_b32 s{sO+2}, s{sO+2}, 10")
    e(f"s_add_u32 s{sO+1}, s{sO+1}, s{sO+2}", f"s_add_u32 s{sO+1}, s{sO+1}, {OB}")
    e("v_lshlrev_b32 v9, 4, v0", f"v_mov_b32 v22, {hex(f32bits(CSC))}", "s_waitcnt lgkmcnt(0)")
    for hd in range(2):
        Sc = (Sc0, Sc1)[hd]
        e(f"s_setprio {HM}", f"{MF32} {vr(Sp,16)}, {vr(Kp+4*hd,4)}, {vr(Qf+4*hd,4)}, {vr(MP,16)}", "s_setprio 3")
        for k in range(4): e(f"v_max_f32 v{M+k}, v{Sc+k}, v{Sc+8+k}")
        e(f"v_max3_f32 v10, v{M}, v{M+1}, v{M+2}", "s_nop 5")
        for k in range(4): e(f"v_max3_f32 v{M+4+k}, v{Sc+4+k}, v{Sc+12+k}, v{Sp+12+k}")
        e(f"v_max3_f32 v10, v10, v{M+3}, v{M+4}", f"v_max3_f32 v10, v10, v{M+5}, v{M+6}", f"v_max_f32 v10, v10, v{M+7}")
        halfmax(e, 10)
        e("v_mul_f32 v10, v22, v10")
        for k in range(4): e(f"v_pk_fma_f32 {vr(M+2*k,2)}, {vr(M+2*k,2)}, v[22:23], v[10:11] op_sel_hi:[1,0,0] neg_lo:[0,0,1] neg_hi:[0,0,1]")
        for k in range(8): e(f"v_exp_f32 v{M+k}, v{M+k}")
        def cv(mask, dst, src):
            e(f"s_mov_b32 exec_lo, {hex(mask)}", f"s_mov_b32 exec_hi, {hex(mask)}")
            e(f"v_cvt_pk_bf16_f32 v{dst}, v{src}, v{src+1}", f"v_cvt_pk_bf16_f32 v{dst+1}, v{src+2}, v{src+3}")
        cv(0x0000ffff, PB, M); cv(0xffff0000, PB+4, M)
        cv(0x00ffff00, PB+2, M+4); cv(0xff000000, PB+6, M+4); cv(0x000000ff, PB+10, M+4)
        e("s_mov_b64 exec, -1")
        e(f"v_pk_add_f32 {vr(M,2)}, {vr(M,2)}, {vr(M+2,2)}", f"v_pk_add_f32 {vr(M+4,2)}, {vr(M+4,2)}, {vr(M+6,2)}")
        e(f"s_setprio {HM}")
        e(f"{MF32} {vr(Sc,16)}, {vr(Vf,4)}, {vr(PB,4)}, 0", f"{MF32} {vr(Sc,16)}, {vr(Vf+4,4)}, {vr(PB+4,4)}, {vr(Sc,16)}", f"{MF32} {vr(Sc,16)}, {vr(Vp,4)}, {vr(PB+8,4)}, {vr(Sc,16)}")
        e("s_setprio 3")
        e(f"v_pk_add_f32 {vr(M,2)}, {vr(M,2)}, {vr(M+4,2)}", f"v_add_f32 v10, v{M}, v{M+1}", "v_mov_b32 v11, v10", "s_nop 1")
        e("v_permlane32_swap_b32 v10, v11", "s_nop 0", "v_add_f32 v10, v10, v11", "v_rcp_f32 v10, v10", "s_nop 2")
        O = Sc + 8 * hd
        for k in range(4): e(f"v_pk_mul_f32 {vr(O+2*k,2)}, {vr(O+2*k,2)}, v[10:11] op_sel_hi:[1,0]")
        o = 12 + 4 * hd
        for j in range(4): e(f"v_cvt_pk_bf16_f32 v{o+j}, v{O+2*j}, v{O+2*j+1}")
        e(f"buffer_store_dwordx4 {vr(o,4)}, v9, {sr(R_WS,4)}, s{sO+1} offen offset:{1024*hd}{SC}")

vWt, vPo, vCk, vSt, vL16, vFl, vL4, vOC = 8, 9, 10, 11, 1, 2, 3, 4
GACC, GO, GW = 12, 32, 148
sTK, sOut = sT, sT+1
def out_table(e):
    W, Po, Ck, St = 164, 165, 166, 167
    e("v_lshrrev_b32 v30, 5, v0", "v_bfe_u32 v31, v0, 2, 2", "v_lshl_add_u32 v31, v30, 2, v31", f"v_lshlrev_b32 v{W}, 6, v31")
    e("v_and_b32 v31, 1, v0", f"v_lshl_add_u32 v{W}, v31, 5, v{W}", "v_bfe_u32 v31, v0, 1, 1", f"v_lshl_add_u32 v{W}, v31, 3, v{W}")
    e("v_bfe_u32 v31, v0, 4, 1", f"v_lshl_add_u32 v{W}, v31, 4, v{W}")
    e(f"v_and_b32 v{St}, 31, v0", f"v_lshlrev_b32 v{St}, 11, v{St}", f"v_lshl_add_u32 v{St}, v30, 5, v{St}")
    e(f"v_lshlrev_b32 v{Ck}, 9, v30", "v_and_b32 v31, 7, v0", f"v_lshl_add_u32 v{Ck}, v31, 4, v{Ck}", "v_bfe_u32 v31, v0, 3, 2")
    e(f"v_lshl_add_u32 v{Po}, v31, 10, v{Ck}", f"v_lshl_add_u32 v{Ck}, v31, 2, v{Ck}")
    e(f"v_lshlrev_b32 v31, 4, v0", f"v_add_u32 v31, {TB_L}, v31", "ds_write_b128 v31, v[164:167]")
def out_prep(e, role):
    e(f"v_lshlrev_b32 v{vL16}, 4, v0", f"v_add_u32 v31, {TB_L}, v{vL16}", f"ds_read_b128 v[8:11], v31")
    e(f"v_and_b32 v{vOC}, 3, v0", f"v_lshlrev_b32 v{vOC}, 8, v{vOC}", f"v_add_u32 v{vOC}, {PR_L + 1024}, v{vOC}")
    e(f"v_and_b32 v{vL4}, 31, v0", f"v_lshlrev_b32 v{vL4}, 2, v{vL4}")
    e(f"s_lshl_b32 s{sTK}, s{sTB}, 2", f"s_add_u32 s{sTK}, s{sTK}, s{sI}")
    if role == "H": e("s_waitcnt lgkmcnt(0)", f"v_lshl_add_u32 v{vSt}, v{vL4}, 9, v{vSt}")

def pry_wait(e, lim, sleep=6):
    l = e.uniq("hp")
    e.lab(l)
    e(f"ds_read_b32 v{vHT}, v{vOC}", "s_waitcnt lgkmcnt(0)", f"v_cmp_gt_u32 vcc, {lim}, v{vHT}", f"s_cbranch_vccz {l}_d")
    spin_tail(e, l, sleep)
    e.lab(l + "_d")

pub_sites = []
def pub(e, add, keep=False):
    P = GO
    site = len(pub_sites); pub_sites.append(site)
    e(f"s_add_u32 s{sO+4}, s{sI}, {add}", f"s_mul_i32 s{sO+2}, s{sO+4}, {OS_POS}", f"s_add_u32 s{sO+2}, s{sO+2}, {OS_L}")
    e(f"v_add_u32 v28, s{sO+2}, v{vL16}", f"v_add_u32 v29, s{sO+2}, v{vL4}")
    e(f"s_sub_u32 s{sO}, s{sO+4}, 1", f"s_cmp_lt_u32 s{sO}, s{sCB}", f"s_cselect_b32 s{sO}, s{sO}, s{sO+4}")
    e(f"s_cmp_eq_u32 s{sO+4}, 0", f"s_cselect_b32 s{sO}, s{sCB}, s{sO}", f"s_lshl_b32 s{sO}, s{sO}, 12")
    e(f"s_lshr_b32 s{sO+1}, s{sIDX}, 2", f"s_lshl_b32 s{sO+1}, s{sO+1}, 15", f"s_add_u32 s{sO}, s{sO}, s{sO+1}")
    e(f"s_and_b32 s{sO+1}, s{sIDX}, 3", f"s_lshl_b32 s{sO+1}, s{sO+1}, 7", f"s_add_u32 s{sO+3}, s{sO}, s{sO+1}", f"s_add_u32 s{sO+3}, s{sO+3}, {OA}")
    e(f"s_lshr_b32 s{sO+5}, s{sO}, 2", f"s_add_u32 s{sO+5}, s{sO+5}, s{sO+1}", f"s_add_u32 s{sO+5}, s{sO+5}, {CKA}")
    e(f"s_mov_b32 s{sRET}, {site}", f"s_mov_b32 s{sO+1}, {hex(f32bits(LMAX))}")
    e(f"s_sub_u32 s{sO}, s{sO+2}, {OS_POS}")
    pry_wait(e, f"s{sO}", sleep=PSL)
    pry_wait(e, f"s{sO+2}", sleep=5)
    e(f"ds_read2st64_b32 {vr(P+32,2)}, v29 offset0:8 offset1:17", f"ds_read2st64_b32 {vr(P+34,2)}, v29 offset0:26 offset1:35")
    for a in range(2):
        for s in range(4): e(f"ds_read_b128 {vr(P+8*s+4*a,4)}, v28 offset:{s*OS_PAIR + a*1024}")
    e("s_waitcnt lgkmcnt(8)", f"v_pk_add_f32 {vr(P+32,2)}, {vr(P+32,2)}, {vr(P+34,2)}", f"v_add_f32 v{P+34}, v{P+32}, v{P+33}", f"v_rcp_f32 v{P+32}, v{P+34}")
    for a in range(2):
        e(f"s_waitcnt lgkmcnt({4-4*a})")
        for k in range(2):
            a_, b_, c_, d_ = (vr(P + 8*s + 4*a + 2*k, 2) for s in range(4))
            e(f"v_pk_add_f32 {a_}, {a_}, {b_}", f"v_pk_add_f32 {c_}, {c_}, {d_}", f"v_pk_add_f32 {a_}, {a_}, {c_}")
    e(f"v_pk_mul_f32 {vr(P+8,2)}, {vr(P,2)}, 0")
    for k in range(1, 4): e(f"v_pk_fma_f32 {vr(P+8,2)}, {vr(P+2*k,2)}, 0, {vr(P+8,2)}")
    e(f"v_add_f32 v{P+8}, v{P+8}, v{P+9}", f"v_add_f32 v{P+8}, v{P+8}, v{P+34}")
    e(f"v_cmp_ngt_f32 vcc, s{sO+1}, v{P+8}" if "forcefb" not in OPT else "v_cmp_eq_u32 vcc, v0, v0", "s_cbranch_vccnz L_exact")
    e.lab(f"L_exact_ret{site}")
    for k in range(4): e(f"v_pk_mul_f32 {vr(P+2*k,2)}, {vr(P+2*k,2)}, {vr(P+32,2)} op_sel_hi:[1,0]")
    for k in range(4): e(f"v_cvt_pk_bf16_f32 v{164+k}, v{P+2*k}, v{P+2*k+1}")
    e(f"buffer_store_dwordx4 v[164:167], v{vPo}, {sr(R_WS,4)}, s{sO+3} offen{SC}")
    mk_ck(e, 31, 164)
    e(f"buffer_store_dword v31, v{vCk}, {sr(R_WS,4)}, s{sO+5} offen{SC}")
    if True:
        e(f"s_lshl_b32 s{sO}, s{sIDX}, 3", f"s_add_u32 s{sO}, s{sO}, s{sO+4}", f"s_lshl_b32 s{sO}, s{sO}, 7", f"s_add_u32 s{sO}, s{sO}, {F4}")
        set_flag(e, sO, 28, 29)

def exact(e):
    O, Q, Kr, V, S, NB, m, vo = GO, GO+36, GO+40, GO+44, GO+52, GO+68, GO+84, GO+86
    sK, sV = sO, sO+1
    e.lab("L_exact")
    e(f"s_mov_b32 s{sT+4}, 1", "s_waitcnt vmcnt(0)")
    e(f"s_lshl_b32 s{sK}, s{sO+4}, 10", f"s_add_u32 s{sK}, s{sK}, {QI_L}", f"v_add_u32 v{m}, s{sK}, v{vL16}", f"ds_read_b128 {vr(Q,4)}, v{m}")
    e(f"v_and_b32 v{m}, 31, v0", f"v_cmp_eq_u32 vcc, 16, v{m}", f"v_mov_b32 v{m+1}, 0x3f803f80", f"v_lshrrev_b32 v{vo}, 5, v0", f"v_cndmask_b32 v{V}, 0, v{m+1}, vcc")
    for r in range(1, 8): e(f"v_mov_b32 v{V+r}, v{V}")
    e(f"v_lshlrev_b32 v{vo}, 8, v{vo}", f"v_and_b32 v{m}, 15, v0", f"v_lshl_add_u32 v{vo}, v{m}, 4, v{vo}")
    for r in range(16): e(f"v_mov_b32 v{O+r}, 0")
    e(f"v_mov_b32 v{m}, 0xff800000", f"s_mov_b32 s{sK}, {KW}", "s_waitcnt lgkmcnt(0)")
    e.lab("L_ex1")
    e(f"buffer_load_dwordx4 {vr(Kr,4)}, v{vL16}, {sr(R_WS,4)}, s{sK} offen{SC}", "s_waitcnt vmcnt(0)")
    e(f"{MF32} {vr(S,16)}, {vr(Kr,4)}, {vr(Q,4)}, 0", "s_nop 11")
    for k in range(0, 16, 2): e(f"v_max3_f32 v{m}, v{m}, v{S+k}, v{S+k+1}")
    e(f"s_add_u32 s{sK}, s{sK}, 1024", f"s_cmp_lt_u32 s{sK}, {KW + 65536}", "s_cbranch_scc1 L_ex1")
    halfmax(e, m)
    for r in range(16): e(f"v_sub_f32 v{NB+r}, 0, v{m}")
    e(f"s_mov_b32 s{sK}, {KW}", f"s_mov_b32 s{sV}, {VW}")
    e.lab("L_ex2")
    e(f"buffer_load_dwordx4 {vr(Kr,4)}, v{vL16}, {sr(R_WS,4)}, s{sK} offen{SC}", "s_mov_b32 exec_lo, 0xffff", "s_mov_b32 exec_hi, 0xffff")
    e(f"buffer_load_dwordx4 {vr(V,4)}, v{vo}, {sr(R_WS,4)}, s{sV} offen{SC}", f"buffer_load_dwordx4 {vr(V+4,4)}, v{vo}, {sr(R_WS,4)}, s{sV} offen offset:512{SC}")
    e("s_mov_b64 exec, -1", "s_waitcnt vmcnt(0)")
    e(f"{MF32} {vr(S,16)}, {vr(Kr,4)}, {vr(Q,4)}, {vr(NB,16)}", "s_nop 11")
    for k in range(16): e(f"v_exp_f32 v{S+k}, v{S+k}")
    e("s_nop 0")
    for j in range(8): e(pk(S, j))
    e("s_nop 1", f"{MF32} {vr(O,16)}, {vr(V,4)}, {vr(S,4)}, {vr(O,16)}", f"{MF32} {vr(O,16)}, {vr(V+4,4)}, {vr(S+8,4)}, {vr(O,16)}")
    e(f"s_add_u32 s{sK}, s{sK}, 1024", f"s_add_u32 s{sV}, s{sV}, 1024", f"s_cmp_lt_u32 s{sK}, {KW + 65536}", "s_cbranch_scc1 L_ex2")
    e("s_nop 11", f"v_mov_b32 v{m}, v{O+8}", "s_nop 1", f"v_permlane32_swap_b32 v{O+8}, v{m}", "s_nop 0", f"v_rcp_f32 v{GO+32}, v{O+8}", "s_nop 0")
    for s in pub_sites[:-1]: e(f"s_cmp_eq_u32 s{sRET}, {s}", f"s_cbranch_scc1 L_exact_ret{s}")
    e(f"s_branch L_exact_ret{pub_sites[-1]}")

def gemm_b(e):
    NB, n = 28, 32
    oreg = lambda k: GO + 36 + 4 * k if k < 20 else (GO + 4 * (k - 20) if k < 29 else GO + 36 + 4 * (k - 29))
    e(f"s_lshl_b32 s{sT+2}, s{sTK}, 15", f"s_add_u32 s{sT+2}, s{sT+2}, {OB}")
    def ldo(k):
        if k % 4 == 0: e(f"s_add_u32 s{sT+3}, s{sT+2}, {(k>>2)*4096}")
        e(f"buffer_load_dwordx4 {vr(oreg(k),4)}, v{vL16}, {sr(R_WS,4)}, s{sT+3} offen offset:{(k&3)*1024}{SC}")
    def rdw(k):
        b = GW + 4*(k & 3)
        e(f"ds_read_b64_tr_b16 {vr(b,2)}, v{vWt} offset:{WOB_L+k*1024}", f"ds_read_b64_tr_b16 {vr(b+2,2)}, v{vWt} offset:{WOB_L+k*1024+512}")
    for k in range(20): ldo(k)
    stamp(e, 8)
    e(f"s_mov_b32 s{sT+4}, 0")
    pub(e, 4)
    e(f"s_cmp_eq_u32 s{sT+4}, 0", "s_cbranch_scc1 L_hnp")
    for k in range(20): ldo(k)
    e.lab("L_hnp")
    stamp(e, 18)
    for k in range(20, 29): ldo(k)
    lds_wait(e, vHC, vHT, 44, HCNT)
    pry_wait(e, OS_L + 7*OS_POS, sleep=PSL)
    e("s_setprio 1")
    for k in range(3): rdw(k)
    for k in range(32):
        if k + 3 < 32: rdw(k + 3)
        vm = 9 + min(k, 3) if k < 20 else 31 - k
        e(f"s_waitcnt vmcnt({vm}) lgkmcnt({min(6, 2*(31-k))})", f"{MF32} {vr(GACC,16)}, {vr(GW+4*(k&3),4)}, {vr(oreg(k),4)}, {'0' if k == 0 else vr(GACC,16)}")
        if k < 3: ldo(k + 29)

def fetch_bases(e):
    e(f"s_lshl_b32 s{sT+2}, s{sTK}, 15", f"s_add_u32 s{sT+2}, s{sT+2}, {OA}", f"s_lshl_b32 s{sT+3}, s{sTK}, 13", f"s_add_u32 s{sT+3}, s{sT+3}, {CKA}", f"s_add_u32 s{sT+5}, s{sT+3}, 4096")
def fetch(e, b, base, ck=None):
    if ck is not None: e(f"buffer_load_dwordx4 {vr(ck,4)}, v{vL16}, {sr(R_WS,4)}, s{sT+3 if b < 4 else sT+5} offen offset:{(b&3)*1024}{SC}")
    e(f"s_add_u32 s{sO}, s{sT+2}, {b*4096}")
    for h in range(4): e(f"buffer_load_dwordx4 {vr(base+4*h,4)}, v{vL16}, {sr(R_WS,4)}, s{sO} offen offset:{h*1024}{SC}")
def verify(e, b, base, ck, younger, sleep=0):
    l = e.uniq("vf")
    e(f"s_waitcnt vmcnt({younger})", f"s_branch {l}_v")
    e.lab(l)
    fetch(e, b, base, ck)
    e("s_waitcnt vmcnt(0)")
    e.lab(l + "_v")
    for h in range(4): chk(e, 28, 29, base + 4*h, ck + h, h == 0)
    e("v_cmp_ne_u32 vcc, 0, v28", f"s_cbranch_vccz {l}_d")
    spin_tail(e, l, sleep)
    e.lab(l + "_d")

def mul_a(e, k0, k1, base, pre=True):
    n = k1 - k0
    def rdw(k):
        b = GW + 4*(k & 3)
        e(f"ds_read_b64_tr_b16 {vr(b,2)}, v30 offset:{(k0+k)*1024}", f"ds_read_b64_tr_b16 {vr(b+2,2)}, v30 offset:{(k0+k)*1024+512}")
    if pre:
        for k in range(3): rdw(k)
        return
    for k in range(n):
        if k + 3 < n: rdw(k + 3)
        e(f"s_waitcnt lgkmcnt({min(6, 2*(n-1-k))})")
        e(f"{MF32} {vr(GACC,16)}, {vr(GW+4*(k&3),4)}, {vr(base[k>>2]+4*(k&3),4)}, {'0' if k0 + k == 0 else vr(GACC,16)}")

def out_store(e, off):
    e("s_nop 11")
    for j in range(8): e(f"v_cvt_pk_bf16_f32 v{GW+j}, v{GACC+2*j}, v{GACC+2*j+1}")
    e(f"buffer_store_dwordx4 {vr(GW,4)}, v{vSt}, {sr(R_OUT,4)}, s{sOut} offen offset:{off}{OSC}", f"buffer_store_dwordx4 {vr(GW+4,4)}, v{vSt}, {sr(R_OUT,4)}, s{sOut} offen offset:{off+16}{OSC}")

def h_main(e):
    e.lab("L_h2")
    srds(e, (R_XB, R_WB, R_WOB, R_WOA, R_OUT))
    b_prep(e)
    out_table(e)
    h_qprep(e)
    if "noH" in OPT: finish(e)
    wo_voff(e)
    if "bnow" not in OPT: lds_wait(e, vHC, vHT, 8, GCNT, sleep=2)
    for j in range(1 if 'bnow' in OPT else 0, 2):
        for g in b_dma_groups(j): e(*g)
    stamp(e, 4)
    b_proj(e)
    stamp(e, 5)
    b_attn(e)
    e(f"s_lshl_b32 s{sO+5}, s{sIDX}, 2", f"s_add_u32 s{sO+5}, s{sO+5}, s{sI}", f"s_lshl_b32 s{sO+5}, s{sO+5}, 7", f"s_add_u32 s{sO+5}, s{sO+5}, {F3}")
    out_prep(e, "H")
    e(f"s_lshr_b32 s{sO+2}, s{sTK}, 1", f"s_lshl_b32 s{sOut}, s{sO+2}, 17", f"s_and_b32 s{sO+3}, s{sI}, 1", f"s_lshl_b32 s{sO}, s{sO+3}, 11", f"s_add_u32 s{sOut}, s{sOut}, s{sO}")
    e(f"s_lshl_b32 s{sO}, s{sHP}, 6", f"s_add_u32 s{sOut}, s{sOut}, s{sO}")
    e(f"s_lshl_b32 s{sO+2}, s{sO+2}, 12", f"s_lshl_b32 s{sO+3}, s{sO+3}, 7", f"s_add_u32 s{sO+2}, s{sO+2}, s{sO+3}", f"s_add_u32 s{sO+2}, s{sO+2}, {F3}")
    e(f"v_lshl_add_u32 v{vFl}, v0, 8, s{sO+2}")
    e("s_waitcnt vmcnt(0)")
    set_flag(e, sO+5, 28, 29)
    stamp(e, 6)
    for g in wo_groups(R_WOA, WOA_L): e(*g)
    gpoll(e, vFl, vHT, 0xffff, 0, sleep=F3SLEEP)
    sig(e, vHC, vH1, HCNT)
    stamp(e, 7)
    gemm_b(e)
    out_store(e, 1024)
    finish(e)

def f_out(e):
    e.lab("L_f3")
    e.c("---- output stage A")
    if "noH" in OPT or "noF" in OPT: finish(e)
    srds(e, (R_OUT,))
    lane_id(e)
    out_prep(e, "F")
    e(f"s_lshl_b32 s{sOut}, s{sTK}, 16", f"s_lshl_b32 s{sO}, s{sHP}, 6", f"s_add_u32 s{sOut}, s{sOut}, s{sO}")
    e(f"v_mov_b32 v{vHC}, {CNT}")
    pub(e, 0)
    stamp(e, 5)
    HB = [GO + 36 + 16*b for b in range(5)]
    e(f"s_lshl_b32 s{sO+2}, s{sTK}, 12", f"s_add_u32 s{sO+2}, s{sO+2}, {F4}", f"v_lshl_add_u32 v{vFl}, v0, 7, s{sO+2}")
    e(f"v_add_u32 v30, {WOA_L}, v{vWt}")
    fetch_bases(e)
    pry_wait(e, OS_L + 3*OS_POS, sleep=PSL)
    gpoll(e, vFl, vHT, 0x0f0f0f0f, 0, sleep=12)
    stamp(e, 16)
    CKR = lambda b: GO + 16 + 4 * (b % 5)
    for b in range(3): fetch(e, b, HB[b], CKR(b))
    lds_wait(e, vHC, vHT, 44, HCNT, sleep=8)
    pry_wait(e, OS_L + 5*OS_POS, sleep=PSL)
    gpoll(e, vFl, vHT, 0x30303030, 0, sleep=6)
    stamp(e, 18)
    for b in (3, 4): fetch(e, b, HB[b], CKR(b))
    mul_a(e, 0, 4, HB)
    pry_wait(e, OS_L + 6*OS_POS, sleep=PSL)
    pry_wait(e, OS_L + 7*OS_POS, sleep=5)
    gpoll_issue(e, vFl, 6, 0x40404040)
    e("s_setprio 2")
    def blk(b, base, younger):
        verify(e, b, base, CKR(b), younger)
        mul_a(e, 4*b, 4*b+4, [base], pre=False)
        if b < 7: mul_a(e, 4*b+4, 4*b+8, None)
    for b in range(3): blk(b, HB[b], 11)
    gpoll_finish(e, vFl, 6, 0x40404040, 0)
    fetch(e, 5, GO, CKR(5))
    gpoll_issue(e, vFl, 6, 0x80808080)
    for b in (3, 4): blk(b, HB[b], 6)
    stamp(e, 19)
    gpoll_finish(e, vFl, 6, 0x80808080, 0)
    stamp(e, 9)
    fetch(e, 6, HB[0], CKR(6)); fetch(e, 7, HB[1], CKR(7))
    blk(5, GO, 10); blk(6, HB[0], 5); blk(7, HB[1], 0)
    out_store(e, 0)
    e(f"s_or_b32 s{sO}, s{sWG}, s{sI}", "s_cbranch_scc1 L_noep", f"s_mov_b32 s{sO}, {EPOCH_W}")
    set_flag(e, sO, 28, 29)
    e.lab("L_noep")
    finish(e)

def gen():
    e = Em()
    e.L.append(f".globl {KN}\n.p2align 8\n.type {KN},@function\n{KN}:")
    entry(e)
    h_kv(e)
    f_load(e)
    s_qproj(e)
    s_att(e)
    f_att(e)
    h_main(e)
    f_out(e)
    e.lab("L_codeend")
    exact(e)
    e.lab("L_end")
    e("s_endpgm")
    head = f"""; generated by work/gen12.py
; @launch grid=(256,1,1) block=(768,1,1) lds={LDS_BYTES}
.amdgcn_target "amdgcn-amd-amdhsa--gfx950"
.text
"""
    kd = f""".section .rodata,"a"
.p2align 6
.amdhsa_kernel {KN}
  .amdhsa_next_free_vgpr 168
  .amdhsa_next_free_sgpr 102
  .amdhsa_accum_offset 168
  .amdhsa_group_segment_fixed_size 0
  .amdhsa_kernarg_size 88
  .amdhsa_user_sgpr_count 2
  .amdhsa_user_sgpr_kernarg_segment_ptr 1
  .amdhsa_system_sgpr_workgroup_id_x 1
.end_amdhsa_kernel
"""
    return head + e.text() + kd

if __name__ == "__main__":
    args = [a for a in sys.argv[1:] if not a.startswith("-")]
    OPT.update(a[1:] for a in sys.argv[1:] if a.startswith("-"))
    if "stamps" in OPT: STAMPS = True
    OPT.update(("gate1", "qfirst"))
    for o in OPT:
        if o.startswith("moff"): MOFF = float(o[4:])
        if o.startswith("bd"): BDEPTH = int(o[2:])
        if o.startswith("hm"): HM = int(o[2:])
        if o.startswith("win"): WIN = int(o[3:])
        if o.startswith("osc"): OSC = " " + o[3:].replace("_", " ")
        if o.startswith("dly"): DLY = tuple(int(x) for x in o[3:].split("_"))
        if o.startswith("bs"): BSLEEP = int(o[2:])
    out = args[0] if args else f"cdna_kernels/{NAME}.s"
    open(out, "w").write(gen())
    print("wrote", out)
```

```python
import sys, math, struct

NAME = "concat_heads__grouped_kv_mqa__sliding_local_dilated__prompt"
KN = NAME + "_kernel"
def f32bits(x): return struct.unpack("<I", struct.pack("<f", x))[0]

class Em:
    def __init__(self): self.L = []; self.n = 0
    def __call__(self, *ss):
        for s in ss:
            if s.startswith("s_nop "):
                self.L += ["    s_nop 0"] * (int(s.split()[1]) + 1)
            else: self.L.append("    " + s)
    def lab(self, s): self.L.append(s + ":")
    def uniq(self, p): self.n += 1; return f"L_{p}_{self.n}"
    def c(self, s): self.L.append("    ; " + s)
    def text(self): return "\n".join(self.L) + "\n"

def vr(b, n): return f"v[{b}:{b+n-1}]" if n > 1 else f"v{b}"
def sr(b, n): return f"s[{b}:{b+n-1}]" if n > 1 else f"s{b}"

sWG, sW = 2, 3
R_XA, R_WQ, R_WKV, R_WOA, R_XB, R_WB, R_WOB, R_OUT, R_WS = 32, 36, 40, 44, 48, 52, 56, 60, 64
sRB, sCB, sTB, sHP, sSB, sKIND, sRET, sI = 72, 73, 74, 75, 76, 77, 78, 79
sT = 80
sO = 92
sPOLL, sEP, sSPIN, sIDX = 98, 99, 100, 101
sTAG = 71
SPIN_MAX = 60000
OB, OA, KW, VW, EPOCH_W, FL = 0, 2 << 20, 5 << 20, (5 << 20) + 65536, (5 << 20) + 131072, (5 << 20) + (256 << 10)
REC = 1280
F1, F3, F4 = FL, FL + (64 << 10), FL + (256 << 10)
WS_BYTES = 16 << 20
FAST = 8 << 20
K = 1024
LDS_BYTES = 160 * K
SLOT = 32 * K
WKV_L = 128 * K
QI_L, NM_L, CNT, PR_L = 144 * K, 152 * K, 156 * K + 512, 157 * K
HCNT, ACNT, GCNT, KVF, RDY1, QST, LAND, SOK = 0, 4, 8, 12, 16, 20, 32, 48
RINGS = 34 * K
RXO = 24 * K
OS_L, OS_POS, OS_PAIR = 72 * K, 9216, 2304
EX_L = 68 * K
TB_L = 159 * K
WOA_L, WOB_L = 34 * K, 0
BDEPTH, HM, F3SLEEP, WIN, BSLEEP = 4, 1, 16, 12, 0
PSL = 20
FTRY = 16
HGATE = 6
CSC = 0.25 * math.log2(math.e)
MOFF = 100.0
NSAMP = 4
OBW = 0
LOF, LOS, FM = 2, 0, 2
SHOLD = 0
LMAX = 2.0 ** 120
MF32 = "v_mfma_f32_32x32x16_bf16"
MF16 = "v_mfma_f32_16x16x32_bf16"
STAMPS = False
OPT = set()
ST = 12 << 20
SC = " sc1"
OSC = ""

def stamp(e, k):
    if STAMPS: e("s_memrealtime s[30:31]", "s_waitcnt lgkmcnt(0)", f"s_mov_b32 s{8+k}, s30")
def cstamp(e, k):
    if STAMPS: e("s_memtime s[30:31]", "s_waitcnt lgkmcnt(0)", f"s_mov_b32 s{8+k}, s30")
def stamp_init(e):
    if not STAMPS: return
    for k in range(1, 22): e(f"s_mov_b32 s{8+k}, 0")
    e("s_mov_b32 s8, s6", "s_mov_b32 s20, s4")
DLY = None
def finish(e):
    if DLY is not None:
        l = e.uniq("dly")
        stamp(e, 15)
        e(f"s_cmp_lg_u32 s{sW}, {DLY[0]}", f"s_cbranch_scc1 {l}_d")
        e(f"s_sub_u32 s4, s{8+DLY[1]}, s8", "s_lshl_b32 s4, s4, 1", "s_add_u32 s4, s4, 4000", "s_min_u32 s4, s4, 40000")
        e.lab(l)
        e("s_sleep 2", "s_memrealtime s[30:31]", "s_waitcnt lgkmcnt(0)", "s_sub_u32 s5, s30, s8", "s_cmp_lt_u32 s5, s4", f"s_cbranch_scc1 {l}")
        e.lab(l + "_d")
        e("s_endpgm")
        return
    if STAMPS:
        stamp(e, 15); cstamp(e, 14)
        e(f"s_mul_i32 s30, s{sWG}, 12", f"s_add_u32 s30, s30, s{sW}", "s_lshl_b32 s30, s30, 7", f"s_add_u32 s30, s30, {ST}")
        e("s_mov_b64 exec, 1", "v_mov_b32 v0, 0")
        for k in range(22): e(f"v_mov_b32 v{4+k}, s{8+k}")
        for k in range(6): e(f"buffer_store_dwordx4 {vr(4+4*k,4)}, v0, {sr(R_WS,4)}, s30 offen offset:{16*k}")
    e("s_endpgm")

def dma(e, voff, R, soff, nt=False):
    e(f"buffer_load_dwordx4 v{voff}, {sr(R,4)}, s{soff} offen{' nt' if nt else ''} lds")
def spin_tail(e, l, sleep):
    e(f"s_sleep {sleep}", f"s_add_u32 s{sSPIN}, s{sSPIN}, 1", f"s_cmp_lt_u32 s{sSPIN}, {SPIN_MAX}", f"s_cbranch_scc1 {l}")
def lds_wait(e, vaddr, vtmp, target, off=0, sleep=1):
    l = e.uniq("poll")
    e.lab(l)
    e(f"ds_read_b32 v{vtmp}, v{vaddr} offset:{off}", "s_waitcnt lgkmcnt(0)", f"v_readfirstlane_b32 s{sPOLL}, v{vtmp}")
    e(f"s_cmp_ge_u32 s{sPOLL}, {target}", f"s_cbranch_scc1 {l}_d")
    spin_tail(e, l, sleep)
    e.lab(l + "_d")
def sig(e, vaddr, vone, off):
    e("s_mov_b64 exec, 1", f"ds_add_u32 v{vaddr}, v{vone} offset:{off}", "s_mov_b64 exec, -1")
def load_epoch(e):
    e(f"s_mov_b32 s{sEP}, {EPOCH_W}", f"s_load_dword s{sEP}, s[{R_WS}:{R_WS+1}], s{sEP}")
def get_epoch(e):
    e("s_waitcnt lgkmcnt(0)", f"s_add_u32 s{sEP}, s{sEP}, 1", f"s_mul_i32 s{sTAG}, s{sEP}, 0x9e3779b1")
def gpoll(e, vaddr, vtmp, lo, hi, sleep=1):
    l = e.uniq("gp")
    e(f"s_mov_b32 exec_lo, {hex(lo)}", f"s_mov_b32 exec_hi, {hex(hi)}")
    e.lab(l)
    e(f"buffer_load_dword v{vtmp}, v{vaddr}, {sr(R_WS,4)}, 0 offen sc1", "s_waitcnt vmcnt(0)")
    e(f"v_cmp_ne_u32 vcc, s{sEP}, v{vtmp}", "s_and_b64 exec, exec, vcc", f"s_cbranch_execz {l}_d")
    spin_tail(e, l, sleep)
    e.lab(l + "_d")
    e("s_mov_b64 exec, -1")
def gpoll_issue(e, vaddr, vtmp, lo):
    e(f"s_mov_b32 exec_lo, {hex(lo)}", "s_mov_b32 exec_hi, 0", f"buffer_load_dword v{vtmp}, v{vaddr}, {sr(R_WS,4)}, 0 offen sc1", "s_mov_b64 exec, -1")
def gpoll_finish(e, vaddr, vtmp, lo, younger, sleep=1):
    l = e.uniq("gp")
    e(f"s_mov_b32 exec_lo, {hex(lo)}", "s_mov_b32 exec_hi, 0", f"s_waitcnt vmcnt({younger})", f"s_branch {l}_c")
    e.lab(l)
    e(f"buffer_load_dword v{vtmp}, v{vaddr}, {sr(R_WS,4)}, 0 offen sc1", "s_waitcnt vmcnt(0)")
    e.lab(l + "_c")
    e(f"v_cmp_ne_u32 vcc, s{sEP}, v{vtmp}", "s_and_b64 exec, exec, vcc", f"s_cbranch_execz {l}_d")
    spin_tail(e, l, sleep)
    e.lab(l + "_d")
    e("s_mov_b64 exec, -1")
def set_flag(e, soff, va, vd):
    e(f"v_mov_b32 v{va}, 0", f"v_mov_b32 v{vd}, s{sEP}", "s_mov_b64 exec, 1")
    e(f"buffer_store_dword v{vd}, v{va}, {sr(R_WS,4)}, s{soff} offen sc1", "s_mov_b64 exec, -1")
def mk_ck(e, dst, d):
    e(f"v_xad_u32 v{dst}, v{d}, s{sTAG}, v{d+1}", f"v_xad_u32 v{dst}, v{dst}, v{d+2}, v{d+3}")
def chk(e, acc, tmp, d, ck, first):
    mk_ck(e, tmp, d)
    e(f"v_xor_b32 v{acc}, v{tmp}, v{ck}" if first else f"v_bitop3_b32 v{acc}, v{acc}, v{tmp}, v{ck} bitop3:0xf6")
def lane_id(e):
    e("v_mbcnt_lo_u32_b32 v0, -1, 0", "v_mbcnt_hi_u32_b32 v0, -1, v0")
def xa_voff(e, b, t):
    e(f"v_lshrrev_b32 v{t}, 4, v0", f"v_and_b32 v{b}, 15, v0", f"v_xor_b32 v{b}, v{b}, v{t}", f"v_lshlrev_b32 v{b}, 4, v{b}")
    e(f"v_lshl_add_u32 v{b}, v{t}, 10, v{b}")
def halfmax(e, m):
    e(f"v_mov_b32 v{m+1}, v{m}", "s_nop 1", f"v_permlane32_swap_b32 v{m}, v{m+1}", "s_nop 0", f"v_max_f32 v{m}, v{m}, v{m+1}")
def negmax(e, S, m):
    e(f"v_max3_f32 v{m}, v{S}, v{S+1}, v{S+2}")
    for k in range(3, 15, 2): e(f"v_max3_f32 v{m}, v{m}, v{S+k}, v{S+k+1}")
    e(f"v_max_f32 v{m}, v{m}, v{S+15}")
    halfmax(e, m)
    e(f"v_sub_f32 v{m}, {hex(f32bits(-MOFF))}, v{m}")

def entry(e):
    e(f"s_cmp_ge_u32 s{sWG}, 256", "s_cbranch_scc1 L_end")
    e(f"s_and_b32 s{sO}, s{sWG}, 8", f"s_add_u32 s{sO}, s{sO}, 16")
    for R, off in ((R_XA, 0), (R_WQ, 8), (R_WS, 80)): e(f"s_load_dwordx2 s[{R}:{R+1}], s[0:1], {off}")
    e(f"s_load_dwordx2 s[{R_WKV}:{R_WKV+1}], s[0:1], s{sO}")
    if STAMPS: e("s_memrealtime s[6:7]", "s_memtime s[4:5]")
    e("v_lshrrev_b32 v1, 6, v0", "v_and_b32 v0, 63, v0")
    e(f"s_lshr_b32 s{sO+1}, s{sWG}, 3")
    e(f"v_readfirstlane_b32 s{sW}, v1")
    e(f"s_and_b32 s{sO}, s{sWG}, 7", f"s_lshl_b32 s{sIDX}, s{sO}, 5", f"s_add_u32 s{sIDX}, s{sIDX}, s{sO+1}")
    e(f"s_and_b32 s{sI}, s{sW}, 3", f"s_cmp_lt_u32 s{sW}, 8", "s_cbranch_scc1 L_nopf")
    e(f"s_getpc_b64 s[{sO+2}:{sO+3}]")
    e.lab("L_pc")
    e(f"s_lshl_b32 s{sO}, s{sO+1}, 2", f"s_add_u32 s{sO}, s{sO}, s{sI}", f"s_and_b32 s{sO}, s{sO}, 31", f"s_lshl_b32 s{sO}, s{sO}, 10")
    e(f"v_lshl_add_u32 v2, v0, 7, s{sO}", f"v_min_u32 v2, L_codeend-L_pc-4, v2", "s_mov_b64 exec, 0xff")
    e(f"global_load_dword v167, v2, s[{sO+2}:{sO+3}]", "s_mov_b64 exec, -1")
    e.lab("L_nopf")
    e(f"s_lshr_b32 s{sRB}, s{sIDX}, 3", f"s_and_b32 s{sCB}, s{sIDX}, 7", f"s_lshr_b32 s{sTB}, s{sIDX}, 4", f"s_and_b32 s{sHP}, s{sIDX}, 15")
    e(f"s_lshr_b32 s{sSB}, s{sCB}, 1", f"s_and_b32 s{sKIND}, s{sCB}, 1", f"s_mov_b32 s{sSPIN}, 0")
    for R, n in ((R_XA, 2 << 20), (R_WKV, 16384), (R_WQ, 512 << 10), (R_WS, WS_BYTES)):
        e(f"s_mov_b32 s{R+2}, {hex(n)}", f"s_mov_b32 s{R+3}, 0x20000")
    e(f"s_cmp_ge_u32 s{sW}, 8", "s_cbranch_scc1 L_q", f"s_cmp_ge_u32 s{sW}, 4", "s_cbranch_scc1 L_aux")
def srds(e, lst):
    size = {R_WOA: 512 << 10, R_XB: 2 << 20, R_WB: 1536 << 10, R_WOB: 512 << 10, R_OUT: 4 << 20}
    slot = {R_WOA: 32, R_XB: 40, R_WB: 48, R_WOB: 56, R_OUT: 64}
    for R in lst: e(f"s_load_dwordx2 s[{R}:{R+1}], s[0:1], {slot[R]}", f"s_mov_b32 s{R+2}, {hex(size[R])}", f"s_mov_b32 s{R+3}, 0x20000")

vHC, vH1, vHT = 5, 6, 7
def h_kv(e):
    fx, fw, acc = 32, 48, 24
    e.c("---- H: K/V projection")
    e("s_setprio 3")
    xa_voff(e, 8, 12)
    for z in range(1, 4): e(f"v_xor_b32 v{8+z}, {z<<6}, v8")
    e("v_lshlrev_b32 v12, 4, v0")
    e(f"s_add_u32 s{sO+3}, s{sRB}, s{sI}", f"s_and_b32 s{sO+3}, s{sO+3}, 3")
    e(f"s_lshr_b32 s{sO+1}, s{sIDX}, 1", f"s_lshl_b32 s{sO+1}, s{sO+1}, 14", f"s_lshl_b32 s{sO+2}, s{sO+3}, 8", f"s_add_u32 s{sO+1}, s{sO+1}, s{sO+2}")
    e(f"s_lshl_b32 s{sT}, s{sI}, 15", f"s_lshl_b32 s{sO+2}, s{sSB}, 12", f"s_add_u32 s{sT}, s{sT}, s{sO+2}")
    e(f"s_lshl_b32 s{sT+1}, s{sI}, 12", f"s_add_u32 s{sT+1}, s{sT+1}, {WKV_L}", f"s_lshl_b32 s{sO+3}, s{sO+3}, 12")
    e("s_waitcnt lgkmcnt(0)")
    for z in range(4):
        e(f"s_add_u32 m0, s{sT}, {z*1024}", f"s_add_u32 s{sO}, s{sO+1}, {z*4096}")
        dma(e, 8 + z, R_XA, sO, nt=True)
        e(f"s_add_u32 m0, s{sT+1}, {z*1024}", f"s_add_u32 s{sO}, s{sO+3}, {z*1024}")
        dma(e, 12, R_WKV, sO)
    load_epoch(e)
    e("s_barrier")
    stamp_init(e)
    e(f"v_mov_b32 v{vHC}, {CNT}", f"v_mov_b32 v{vH1}, 1")
    e("v_and_b32 v2, 15, v0", "v_lshrrev_b32 v3, 4, v0", "v_xor_b32 v4, v2, v3", "v_lshlrev_b32 v4, 4, v4", "v_lshl_add_u32 v4, v2, 8, v4")
    e(f"v_add_u32 v8, s{sT}, v4")
    for q in range(1, 4): e(f"v_xor_b32 v{8+q}, {q<<6}, v8")
    e("v_bfe_u32 v4, v0, 2, 2", "v_lshl_add_u32 v4, v3, 3, v4", "v_lshlrev_b32 v4, 5, v4", "v_and_b32 v13, 3, v0", "v_lshl_add_u32 v4, v13, 3, v4")
    e(f"v_add_u32 v13, s{sT+1}, v4", f"v_add_u32 v14, s{sT+1}, v12")
    e(f"s_lshl_b32 s{sO}, s{sI}, 2", f"v_add_u32 v15, s{sO}, v{vHC}")
    e(f"s_lshl_b32 s{sO}, s{sRB}, 11")
    e(f"s_lshr_b32 s{sO+1}, s{sSB}, 1", f"s_lshl_b32 s{sO+1}, s{sO+1}, 10", f"s_and_b32 s{sO+2}, s{sSB}, 1", f"s_lshl_b32 s{sO+2}, s{sO+2}, 8")
    e(f"s_add_u32 s{sO+1}, s{sO+1}, s{sO+2}", f"s_add_u32 s{sO+1}, s{sO+1}, {KW}")
    e(f"s_lshl_b32 s{sO+2}, s{sSB}, 9", f"s_add_u32 s{sO+2}, s{sO+2}, {VW}")
    e(f"s_cmp_eq_u32 s{sKIND}, 0", f"s_cselect_b32 s{sO+1}, s{sO+1}, s{sO+2}", f"s_cselect_b32 s{sO+2}, 9, 8", f"s_add_u32 s{sO+4}, s{sO}, s{sO+1}")
    e("v_and_b32 v4, 1, v3", f"v_lshlrev_b32 v4, s{sO+2}, v4", "v_lshl_add_u32 v20, v2, 4, v4")
    e(f"s_lshl_b32 s{sO+5}, s{sIDX}, 7", f"s_add_u32 s{sO+5}, s{sO+5}, {F1}")
    get_epoch(e)
    e("s_waitcnt vmcnt(0)")
    stamp(e, 1)
    for q in range(4):
        e(f"ds_read_b128 {vr(fx+4*q,4)}, v{8+q}")
        e(f"ds_read_b64_tr_b16 {vr(fw+4*q,2)}, v13 offset:{q*1024}", f"ds_read_b64_tr_b16 {vr(fw+4*q+2,2)}, v13 offset:{q*1024+128}")
    sig(e, 15, vH1, LAND)
    e(f"s_cmp_lg_u32 s{sKIND}, 0", "s_cbranch_scc1 L_kv_v")
    for kind in range(2):
        for q in range(4):
            a, b = (fw, fx) if kind == 0 else (fx, fw)
            e(f"s_waitcnt lgkmcnt({10-3*q})", f"{MF16} {vr(acc,4)}, {vr(a+4*q,4)}, {vr(b+4*q,4)}, {'0' if q == 0 else vr(acc,4)}")
        if kind == 0:
            e("s_branch L_kv_d"); e.lab("L_kv_v")
    e.lab("L_kv_d")
    e(f"s_cmp_eq_u32 s{sI}, 0", "s_cbranch_scc1 L_kv_0", "s_nop 5")
    e(f"ds_write_b128 v14, {vr(acc,4)}")
    sig(e, vHC, vH1, HCNT)
    e("s_branch L_h2")
    e.lab("L_kv_0")
    lds_wait(e, vHC, vHT, 3, HCNT, sleep=0)
    for k in range(1, 4): e(f"ds_read_b128 {vr(fx+4*k,4)}, v14 offset:{k*4096}")
    e("s_waitcnt lgkmcnt(1)")
    for k in range(2): e(f"v_pk_add_f32 {vr(fx+4+2*k,2)}, {vr(fx+4+2*k,2)}, {vr(fx+8+2*k,2)}")
    e("s_waitcnt lgkmcnt(0)")
    for k in range(2): e(f"v_pk_add_f32 {vr(acc+2*k,2)}, {vr(acc+2*k,2)}, {vr(fx+12+2*k,2)}")
    for k in range(2): e(f"v_pk_add_f32 {vr(acc+2*k,2)}, {vr(acc+2*k,2)}, {vr(fx+4+2*k,2)}")
    e(f"v_cvt_pk_bf16_f32 v28, v{acc}, v{acc+1}", f"v_cvt_pk_bf16_f32 v29, v{acc+2}, v{acc+3}", "s_nop 1")
    e("v_permlane32_swap_b32 v28, v30", "v_permlane32_swap_b32 v29, v31", "s_mov_b32 exec_hi, 0", "s_nop 0")
    e(f"buffer_store_dwordx4 v[28:31], v20, {sr(R_WS,4)}, s{sO+4} offen{SC}", "s_mov_b64 exec, -1")
    if "gate1" in OPT: sig(e, vHC, vH1, KVF)
    sig(e, vHC, vH1, HCNT)
    stamp(e, 2)
    e("s_waitcnt vmcnt(0)")
    set_flag(e, sO+5, 2, 3)
    if "gate2" in OPT: sig(e, vHC, vH1, KVF)
    stamp(e, 3)
    e("s_branch L_h2")

vT0, vQ16, vAN, vT1, AQ, AK, AV, S0, S1, AO, ANM = 0, 1, 2, 3, 4, 8, 40, 104, 120, 136, 152
vVo, vFa, vC, v1_ = S1, S1+1, S1+2, S1+3
def zero_pr(e):
    e(f"s_lshl_b32 s{sO}, s{sW}, 8", f"s_add_u32 m0, s{sO}, {PR_L - 1024}", "v_mov_b32 v2, 0", "ds_write_addtid_b32 v2")
def f_load(e):
    e.lab("L_aux")
    e.c("---- F: bulk loads")
    zero_pr(e)
    xa_voff(e, 8, 12)
    e(f"s_lshl_b32 s{sO}, s{sI}, 6", f"v_xor_b32 v8, s{sO}, v8")
    e("v_lshrrev_b32 v2, 3, v0", "v_bfe_u32 v3, v0, 4, 1", "v_lshlrev_b32 v3, 2, v3", "v_and_b32 v4, 7, v0", "v_xor_b32 v4, v4, v3")
    e("v_lshlrev_b32 v4, 4, v4", "v_lshl_add_u32 v12, v2, 10, v4")
    e(f"s_lshl_b32 s{sT}, s{sI}, 12")
    e(f"s_lshl_b32 s{sT+1}, s{sI}, 15", f"s_lshl_b32 s{sO}, s{sCB}, 7", f"s_add_u32 s{sT+1}, s{sT+1}, s{sO}")
    e(f"s_lshl_b32 s{sT+2}, s{sRB}, 16", f"s_add_u32 s{sT+2}, s{sT+2}, s{sT}", f"s_lshl_b32 s{sT+9}, s{sI}, 10")
    for du in range(1, 4):
        e(f"s_add_u32 s{sO}, s{sSB}, {du}", f"s_and_b32 s{sO}, s{sO}, 3")
        e(f"s_lshl_b32 s{sT+2+du}, s{sO}, 14", f"s_add_u32 s{sT+2+du}, s{sT+2+du}, s{sT+2}")
        e(f"s_lshl_b32 s{sT+5+du}, s{sO}, 12", f"s_add_u32 s{sT+5+du}, s{sT+5+du}, s{sT+9}")
    e(f"v_mov_b32 v{vC}, {CNT}", f"v_mov_b32 v{v1_}, 1")
    e("s_waitcnt lgkmcnt(0)")
    load_epoch(e)
    e("s_barrier")
    def chunk(sg):
        e(f"s_add_u32 s{sO+1}, s{sRB}, {sg}", f"s_and_b32 s{sO+1}, s{sO+1}, 3", f"s_lshl_b32 s{sO+2}, s{sO+1}, 8")
        e(f"s_lshl_b32 s{sO+1}, s{sO+1}, 17", f"s_add_u32 s{sO+1}, s{sO+1}, s{sT+1}")
        for i in range(4):
            e(f"s_add_u32 m0, s{sT}, {sg*SLOT + 16384 + i*1024}", f"s_add_u32 s{sO}, s{sO+1}, {i*8192}")
            dma(e, 12, R_WQ, sO)
        for du in range(1, 4):
            e(f"s_add_u32 m0, s{sT+5+du}, {sg*SLOT}", f"s_add_u32 s{sO}, s{sT+2+du}, s{sO+2}")
            dma(e, 8, R_XA, sO, nt=True)
    gated = "gate1" in OPT or "gate2" in OPT
    nb = 2 if gated else 4
    for sg in range(nb): chunk(sg)
    stamp_init(e)
    if gated:
        att_consts(e)
        get_epoch(e)
        e("s_waitcnt vmcnt(7)"); sig(e, vC, v1_, LAND)
        lds_wait(e, vC, S0, 1, KVF, sleep=1)
        chunk(2)
        e("s_waitcnt vmcnt(7)"); sig(e, vC, v1_, LAND + 4)
        chunk(3)
        stamp(e, 1)
        for sg in range(2, 4):
            e(f"s_waitcnt vmcnt({21-7*sg})"); sig(e, vC, v1_, LAND + 4*sg)
    else:
        stamp(e, 1)
        for sg in range(4):
            e(f"s_waitcnt vmcnt({21-7*sg})"); sig(e, vC, v1_, LAND + 4*sg)
        att_consts(e)
        get_epoch(e)
    stamp(e, 2)
    e("s_branch L_f2")

sAW, sP, sExp = sT+8, sT+9, sT+10
def att_consts(e):
    e(f"v_and_b32 v{S0}, 31, v0", f"v_cmp_eq_u32 vcc, 16, v{S0}", f"v_mov_b32 v{S0+1}, 0x3f803f80", f"v_lshlrev_b32 v{vQ16}, 4, v0")
    e(f"v_cndmask_b32 v{AV}, 0, v{S0+1}, vcc")
    for r in range(1, 64): e(f"v_mov_b32 v{AV+r}, v{AV}")
    e(f"v_lshlrev_b32 v{vAN}, 4, v{S0}", f"v_add_u32 v{vAN}, {NM_L}, v{vAN}")
    e(f"v_lshrrev_b32 v{vVo}, 5, v0", f"v_lshlrev_b32 v{vVo}, 8, v{vVo}", f"v_and_b32 v{S0+2}, 15, v0", f"v_lshl_add_u32 v{vVo}, v{S0+2}, 4, v{vVo}")
def gather_bases(e):
    e(f"s_sub_u32 s{sAW}, s{sW}, 4", f"s_lshl_b32 s{sO+2}, s{sAW}, 13")
    e(f"s_add_u32 s{sO}, s{sO+2}, {KW}", f"s_add_u32 s{sO+1}, s{sO+2}, {VW}", f"s_add_u32 s{sO+2}, s{sO}, 4096", f"s_add_u32 s{sO+3}, s{sO+1}, 4096")
def gather(e, t0, t1):
    for t in range(t0, t1):
        e(f"buffer_load_dwordx4 {vr(AK+4*t,4)}, v{vQ16}, {sr(R_WS,4)}, s{sO+2*(t>>2)} offen offset:{(t&3)*1024}{SC}")
        e("s_mov_b32 exec_lo, 0xffff", "s_mov_b32 exec_hi, 0xffff")
        for f in (2*t, 2*t+1):
            e(f"buffer_load_dwordx4 {vr(AV+4*f,4)}, v{vVo}, {sr(R_WS,4)}, s{sO+1+2*(t>>2)} offen offset:{(f&7)*512}{SC}")
        e("s_mov_b64 exec, -1")
def att_addrs(e):
    e(f"s_mul_i32 s{sExp}, s{sI}, {OS_PAIR}", f"s_add_u32 s{sExp}, s{sExp}, {OS_L}")
    e(f"v_add_u32 v{vT1}, s{sExp}, v{vQ16}", f"v_lshl_add_u32 v{vT0}, v0, 2, s{sExp}", f"v_add_u32 v{vQ16}, {QI_L}, v{vQ16}")
    e(f"s_lshl_b32 s{sO+4}, s{sI}, 8", f"s_add_u32 m0, s{sO+4}, {PR_L}")

def s_qproj(e):
    vXa, vWa, vXb, vWb, vSt, vLd = 8, 16, 17, 25, 26, 27
    acc, fr, NF, T = 104, 124, 5, 28
    a_, b_, c_, d_ = T, T+1, T+2, T+3
    e.lab("L_q")
    e.c("---- S: Q projection")
    zero_pr(e)
    e(f"s_mov_b32 m0, {CNT}", "s_nop 0", "ds_write_addtid_b32 v2", "s_waitcnt lgkmcnt(0)")
    load_epoch(e)
    e("s_barrier")
    stamp_init(e)
    e(f"v_mov_b32 v{vC}, {CNT}", f"v_mov_b32 v{v1_}, 1")
    att_consts(e)
    e(f"s_and_b32 s{sO}, s{sI}, 1", f"s_lshl_b32 s{sO}, s{sO}, 13")
    e(f"v_and_b32 v{a_}, 31, v0", f"v_lshrrev_b32 v{b_}, 5, v0", f"v_and_b32 v{c_}, 15, v0", f"v_xor_b32 v{c_}, v{c_}, v{b_}")
    e(f"v_lshl_add_u32 v{d_}, v{a_}, 8, s{sO}", f"v_lshl_add_u32 v{vXa}, v{c_}, 4, v{d_}")
    for s in range(1, 8): e(f"v_xor_b32 v{vXa+s}, {s<<5}, v{vXa}")
    e(f"v_bfe_u32 v{a_}, v0, 2, 2", f"v_lshl_add_u32 v{c_}, v{b_}, 3, v{a_}", f"v_lshlrev_b32 v{c_}, 7, v{c_}", f"v_lshrrev_b32 v{a_}, 1, v{a_}")
    e(f"s_lshr_b32 s{sO}, s{sI}, 1", f"v_xor_b32 v{a_}, s{sO}, v{a_}", f"v_lshl_add_u32 v{c_}, v{a_}, 6, v{c_}")
    e(f"v_bfe_u32 v{a_}, v0, 4, 1", f"v_lshl_add_u32 v{c_}, v{a_}, 5, v{c_}", f"v_and_b32 v{a_}, 3, v0", f"v_lshl_add_u32 v{c_}, v{a_}, 3, v{c_}")
    e(f"v_add_u32 v{vWa}, 16384, v{c_}", f"v_lshl_add_u32 v{vLd}, v{a_}, 2, v{vC}")
    for s in range(9): e(f"v_add_u32 v{vXb+s}, 65536, v{vXa+s}")
    get_epoch(e)
    e(f"s_mov_b32 s{sT+6}, {hex(f32bits(CSC))}")
    e(f"s_and_b32 s{sO}, s{sI}, 2", f"s_add_u32 s{sO}, s{sO}, s{sI}", f"s_lshl_b32 s{sO}, s{sO}, 10", f"s_add_u32 s{sO}, s{sO}, {QI_L}", f"v_add_u32 v{b_}, s{sO}, v{vQ16}")
    e(f"s_lshl_b32 s{sO}, s{sI}, 2", f"v_add_u32 v{vFa}, s{sO}, v{vC}")
    gather_bases(e)
    def landwait(mask):
        lq = e.uniq("ql")
        e.lab(lq)
        e(f"ds_read_b32 v{a_}, v{vLd} offset:{LAND}", "s_waitcnt lgkmcnt(0)", f"v_cmp_gt_u32 vcc, 5, v{a_}")
        e(f"s_and_b32 s{sO+5}, vcc_lo, 15", f"s_and_b32 s{sO+4}, s{sO+5}, {mask}", f"s_cbranch_scc0 {lq}_d")
        spin_tail(e, lq, 1)
        e.lab(lq + "_d")
    def rd(n):
        sg, s = n >> 3, n & 7
        so = (sg & 1) * SLOT
        xa, wa = (vXa + s, vWa) if sg < 2 else (vXb + s, vWb)
        f = fr + 8 * (n % NF)
        e(f"ds_read_b128 {vr(f,4)}, v{xa} offset:{so}")
        e(f"ds_read_b64_tr_b16 {vr(f+4,2)}, v{wa} offset:{so+s*2048}", f"ds_read_b64_tr_b16 {vr(f+6,2)}, v{wa} offset:{so+s*2048+512}")
    e("s_setprio 3")
    landwait(1)
    stamp(e, 16)
    for n in range(NF): rd(n)
    for n in range(32):
        f = fr + 8 * (n % NF)
        e(f"s_waitcnt lgkmcnt({min(3*(NF-1), 3*(31-n))})", f"{MF32} {vr(acc,16)}, {vr(f+4,4)}, {vr(f,4)}, {'0' if n == 0 else vr(acc,16)}")
        if n + NF < 32:
            if (n + NF) % 8 == 0:
                bit = 1 << ((n + NF) >> 3)
                sk = e.uniq("lok")
                e(f"s_and_b32 s{sO+4}, s{sO+5}, {bit}", f"s_cbranch_scc0 {sk}")
                landwait(bit)
                e.lab(sk)
                if "qst" in OPT: stamp(e, 16 + ((n + NF) >> 3))
            rd(n + NF)
    if "qst" in OPT: stamp(e, 20)
    e(f"v_mov_b32 v{c_}, s{sT+6}", "s_nop 10")
    for r in range(8): e(f"v_pk_mul_f32 {vr(acc+2*r,2)}, {vr(acc+2*r,2)}, {vr(c_,2)} op_sel_hi:[1,0]")
    P = AO
    for j in range(8): e(f"v_cvt_pk_bf16_f32 v{P+j}, v{acc+2*j}, v{acc+2*j+1}")
    e(f"ds_write_b128 v{b_}, {vr(P,4)}", f"ds_write_b128 v{b_}, {vr(P+4,4)} offset:2048")
    sig(e, vC, v1_, ACNT)
    stamp(e, 2)
    lds_wait(e, vFa, S0+2, 1, SOK)
    lds_wait(e, vC, S0+2, 4, GCNT, sleep=2)
    if "sl" in OPT: lds_wait(e, vC, S0+2, 8, QST, sleep=2)
    if "sdelay" in OPT: lds_wait(e, vC, S0+2, 1, RDY1)
    stamp(e, 7)
    gather(e, 0, 8)
    sig(e, vC, v1_, GCNT)

def pk(S, j):
    d = S + (j if j < 4 else 4 + j)
    return f"v_cvt_pk_bf16_f32 v{d}, v{S+2*j}, v{S+2*j+1}"
def rdq(e):
    e(f"ds_read_b128 {vr(AQ,4)}, v{vQ16}")
    for k in range(4): e(f"ds_read_b128 {vr(ANM+4*k,4)}, v{vAN}")
def dump(e, kind):
    e(f"ds_write_b128 v{vT1}, {vr(AO,4)}", f"ds_write_b128 v{vT1}, {vr(AO+4,4)} offset:1024", f"ds_write_b32 v{vT0}, v{AO+8} offset:2048")
    e(f"ds_write_addtid_b32 v{vT1} offset:{0 if kind == 'F' else 1024}")
def advance(e):
    e(f"v_add_u32 v{vT1}, {OS_POS}, v{vT1}", f"v_add_u32 v{vT0}, {OS_POS}, v{vT0}")
def init_o(e, off):
    e(f"ds_read_b128 {vr(AO,4)}, v{vT1} offset:{off}", f"ds_read_b128 {vr(AO+4,4)}, v{vT1} offset:{off+1024}", f"ds_read_b32 v{AO+8}, v{vT0} offset:{off+2048}")

def att_block(e, mode):
    kind = "F" if mode[0] == "F" else "S"
    lo = LOF if kind == "F" else LOS
    def prio(p):
        if mode != "B" and "noprio" not in OPT: e(f"s_setprio {p}")
        elif mode == "B" and "btog" in OPT: e(f"s_setprio {p}")
    for t in range(8):
        Sc, Sn = (S0, S1) if t % 2 == 0 else (S1, S0)
        tp, tn = (t - 1) % 8, (t + 1) % 8
        def X(*toks):
            for k in toks: e(f"v_exp_f32 v{Sc+k}, v{Sc+k}" if isinstance(k, int) else pk(Sc, int(k[1:])))
        c0 = "0" if (t == 1 and kind == "F") else vr(AO, 16)
        pv0 = f"{MF32} {vr(AO,16)}, {vr(AV+8*tp,4)}, {vr(Sn,4)}, {c0}"
        pv1 = f"{MF32} {vr(AO,16)}, {vr(AV+8*tp+4,4)}, {vr(Sn+8,4)}, {vr(AO,16)}"
        qk = f"{MF32} {vr(Sn,16)}, {vr(AK+4*tn,4)}, {vr(AQ,4)}, {vr(ANM,16)}"
        if t == 1 and kind == "S":
            X(0); e(pk(Sn, 7)); X(1, 2)
            e("s_waitcnt lgkmcnt(0)", pv0); X(3, "p0", 4, "p1")
            e(pv1); X(5, 6, "p2", 7)
            e(qk); prio(lo)
            X(8, "p3", 9, 10, "p4", 11, 12)
            e("s_wakeup")
            prio(3)
            X("p5", 13, 14, "p6", 15)
            continue
        skip_pv = mode == "F0" and t == 0
        if mode == "F0" and t > 0: e(f"s_waitcnt vmcnt({max(0, 23 - 3*(t+1))})")
        if not skip_pv: e(pv0)
        X(0)
        if not skip_pv: e(pk(Sn, 7))
        X(1, 2)
        if not skip_pv: e(pv1)
        X(3, "p0", 4, "p1")
        if t == 7: e("s_waitcnt lgkmcnt(0)")
        if t == 7 and mode == "B": e(f"v_readfirstlane_b32 s{sPOLL}, v{Sn+4}")
        if skip_pv: e("s_waitcnt vmcnt(20)")
        e(qk)
        prio(lo)
        X(5, 6, "p2", 7, 8, "p3")
        if t == 0 and mode != "F0":
            if mode == "S":
                dump(e, kind); init_o(e, OS_POS); advance(e)
            elif mode == "F":
                dump(e, kind); advance(e)
            else:
                sk = e.uniq("nodump")
                e(f"s_cmp_eq_u32 s{sP}, {1 if mode == 'F' else 0}", f"s_cbranch_scc1 {sk}")
                dump(e, kind); advance(e)
                if mode == "B": e(f"s_add_u32 s{sExp}, s{sExp}, {OS_POS}")
                e.lab(sk)
                if mode == "B":
                    e(f"s_cmp_ge_u32 s{sPOLL}, s{sExp}", "s_cbranch_scc0 L_swait")
                    e.lab("L_swait_ret")
                    init_o(e, 0)
        X(9)
        if t == 6:
            if mode == "F0":
                e(f"v_mov_b32 v{Sc+4}, {CNT}")
                lds_wait(e, Sc+4, Sc+5, 8, ACNT, sleep=1)
            e(f"v_add_u32 v{vQ16}, 1024, v{vQ16}", f"v_add_u32 v{vAN}, 512, v{vAN}")
            rdq(e)
            if mode == "B": e(f"ds_read_addtid_b32 v{Sc+4}")
        X(10, "p4", 11, 12)
        w = WIN if kind == "F" else 12
        if w == 12: prio(3)
        X("p5", 13)
        if w == 13: prio(3)
        X(14)
        if w == 14: prio(3)
        X("p6", 15)
        if w == 15: prio(3)

def att_finish(e, kind):
    e(f"{MF32} {vr(AO,16)}, {vr(AV+8*7,4)}, {vr(S1,4)}, {vr(AO,16)}", pk(S1, 7), "s_nop 1")
    e(f"{MF32} {vr(AO,16)}, {vr(AV+8*7+4,4)}, {vr(S1+8,4)}, {vr(AO,16)}", "s_nop 11")
    dump(e, kind)
    e("s_waitcnt lgkmcnt(0)", "s_wakeup")
def qk0(e):
    e(f"{MF32} {vr(S0,16)}, {vr(AK,4)}, {vr(AQ,4)}, {vr(ANM,16)}", "s_nop 11")

def f_att(e):
    e.lab("L_f2")
    e("s_setprio 3")
    gather_bases(e)
    e(f"s_lshl_b32 s{sO+4}, s{sI}, 12", f"s_add_u32 s{sO+4}, s{sO+4}, {F1}", f"v_lshl_add_u32 v{vFa}, v0, 7, s{sO+4}")
    stamp(e, 6)
    gpoll(e, vFa, S0, 0xffffffff, 0, sleep=1)
    stamp(e, 7)
    gather(e, 0, 8)
    sig(e, vC, v1_, GCNT)
    att_addrs(e)
    stamp(e, 8)
    lds_wait(e, vC, S0, 1, RDY1, sleep=0)
    rdq(e)
    e(f"s_mov_b32 s{sP}, 1", "s_waitcnt vmcnt(23) lgkmcnt(0)")
    stamp(e, 3); cstamp(e, 13)
    qk0(e)
    att_block(e, "F0")
    stamp(e, 21); cstamp(e, 10)
    e.L.append("    .p2align 3")
    e.lab("L_floop")
    att_block(e, "F")
    e(f"s_add_u32 s{sP}, s{sP}, 1", f"s_cmp_lt_u32 s{sP}, 8", "s_cbranch_scc1 L_floop")
    att_finish(e, "F")
    stamp(e, 4); cstamp(e, 11)
    e("s_branch L_f3")

def s_att(e):
    att_addrs(e)
    e(f"s_mov_b32 s{sP}, 0", f"v_mov_b32 v{S0}, m0", "s_setprio 0")
    stamp(e, 8)
    if SHOLD: lds_wait(e, vC, S0+1, SHOLD, HCNT, sleep=16)
    lds_wait(e, S0, S0+1, 1, sleep=6)
    rdq(e)
    e("s_waitcnt vmcnt(0) lgkmcnt(0)")
    stamp(e, 3); cstamp(e, 13)
    qk0(e)
    e.L.append("    .p2align 3")
    e.lab("L_bloop")
    att_block(e, "B")
    e(f"s_add_u32 s{sP}, s{sP}, 1", f"s_cmp_ge_u32 s{sP}, 8", "s_cbranch_scc1 L_sfin")
    e(f"s_cmp_lt_u32 s{sPOLL}, {OS_L + 7*OS_POS}", "s_cbranch_scc1 L_bloop")
    stamp(e, 5)
    e("s_setprio 3")
    e.L.append("    .p2align 3")
    e.lab("L_sloop")
    att_block(e, "S")
    e(f"s_add_u32 s{sP}, s{sP}, 1")
    if STAMPS:
        e(f"s_cmp_lg_u32 s{sP}, 4", "s_cbranch_scc1 L_sns"); stamp(e, 4); cstamp(e, 10); e.lab("L_sns")
    e(f"s_cmp_lt_u32 s{sP}, 8", "s_cbranch_scc1 L_sloop")
    e.lab("L_sfin")
    att_finish(e, "S")
    if "s3pub" in OPT:
        e(f"s_cmp_lg_u32 s{sI}, 3", "s_cbranch_scc1 L_sx")
        stamp(e, 9)
        lane_id(e)
        out_prep(e, "F")
        pub(e, 4, fast=True)
        e.lab("L_sx")
    finish(e)
    e.lab("L_swait")
    e(f"v_mov_b32 v{S0+4}, m0")
    lds_wait(e, S0+4, S0+5, f"s{sExp}", sleep=4)
    e("s_branch L_swait_ret")

sBX, sBH, sBW, sKC, sBXL, sBHL, sBWL = sT, sT+1, sT+2, sT+3, sT+4, sT+5, sT+6
BA = 8
aq, ak, av, ahk, ahv, MC = 24, 40, 56, 72, 76, 80
MP = MC + 4
FR = 104
def b_prep(e):
    e.c("---- B prep")
    e("v_lshrrev_b32 v20, 3, v0", "v_and_b32 v21, 7, v0", "v_lshrrev_b32 v22, 1, v20", "v_xor_b32 v23, v21, v22", "v_lshlrev_b32 v23, 4, v23")
    e("v_lshl_add_u32 v1, v20, 11, v23", "v_xor_b32 v2, 64, v1")
    e(f"s_lshl_b32 s{sO}, s{sI}, 5", f"v_xor_b32 v3, s{sO}, v1")
    e("v_and_b32 v22, 1, v22", "v_lshlrev_b32 v22, 2, v22", "v_xor_b32 v23, v21, v22", "v_lshlrev_b32 v23, 4, v23")
    e("v_mul_u32_u24 v20, 3072, v20", "v_add_u32 v4, v20, v23", "v_xor_b32 v16, 32, v4")
    e(f"s_and_b32 s{sO}, s{sI}, 1", f"s_lshr_b32 s{sO+1}, s{sI}, 1", f"s_lshl_b32 s{sO+1}, s{sO+1}, 10")
    e(f"s_lshl_b32 s{sBX}, s{sRB}, 16", f"s_max_u32 s{sBH}, s{sBX}, 16384", f"s_sub_u32 s{sBH}, s{sBH}, 16384")
    e(f"s_add_u32 s{sBX}, s{sBX}, s{sO+1}", f"s_add_u32 s{sBH}, s{sBH}, s{sO+1}")
    e(f"s_lshl_b32 s{sO+1}, s{sO}, 15", f"s_add_u32 s{sBX}, s{sBX}, s{sO+1}")
    e(f"s_lshl_b32 s{sO+1}, s{sO}, 13", f"s_add_u32 s{sBH}, s{sBH}, s{sO+1}")
    e(f"s_mul_i32 s{sBW}, s{sI}, {16*3072}", f"s_lshl_b32 s{sO+1}, s{sCB}, 7", f"s_add_u32 s{sBW}, s{sBW}, s{sO+1}")
    e(f"s_lshl_b32 s{sKC}, s{sRB}, 1", f"s_add_u32 s{sKC}, s{sKC}, s{sCB}")
    e(f"s_lshl_b32 s{sBWL}, s{sI}, 11", f"s_add_u32 s{sBXL}, s{sBWL}, {RXO + 2048}", f"s_lshl_b32 s{sBHL}, s{sI}, 9", f"s_add_u32 s{sBHL}, s{sBHL}, {RXO}")
    e("v_and_b32 v20, 31, v0", "v_lshrrev_b32 v21, 5, v0", "v_bfe_u32 v22, v0, 1, 3", "v_xor_b32 v22, v22, v21", "v_lshlrev_b32 v22, 4, v22", "v_lshl_add_u32 v22, v20, 7, v22")
    e(f"s_lshl_b32 s{sO}, s{sO}, 12", f"s_add_u32 s{sO}, s{sO}, {RXO + 2048}", f"v_add_u32 v{BA}, s{sO}, v22")
    for s in range(1, 4): e(f"v_xor_b32 v{BA+s}, {s<<5}, v{BA}")
    e("v_bfe_u32 v20, v0, 2, 2", "v_and_b32 v23, 3, v0", "v_and_b32 v17, 2, v20", "v_or_b32 v18, v17, v21", "v_bfe_u32 v19, v0, 4, 1")
    e(f"s_and_b32 s{sO}, s{sI}, 2", f"v_or_b32 v19, s{sO}, v19", "v_xor_b32 v18, v18, v19")
    e("v_lshl_add_u32 v22, v21, 3, v20", "v_lshlrev_b32 v22, 7, v22", "v_lshl_add_u32 v22, v18, 5, v22", f"v_lshl_add_u32 v{BA+4}, v23, 3, v22")
    e("v_lshrrev_b32 v21, 4, v0", "v_bfe_u32 v22, v0, 1, 3", "v_xor_b32 v22, v22, v21", "v_lshlrev_b32 v22, 4, v22", "v_and_b32 v19, 15, v0")
    e("v_lshl_add_u32 v22, v19, 7, v22", f"v_add_u32 v{BA+5}, {RXO}, v22", f"v_xor_b32 v{BA+6}, 64, v{BA+5}")
    e("v_and_b32 v18, 1, v21", "v_or_b32 v18, v17, v18", f"v_xor_b32 v18, s{sI}, v18")
    e("v_lshl_add_u32 v22, v21, 3, v20", "v_lshlrev_b32 v22, 7, v22", "v_lshl_add_u32 v22, v18, 5, v22", f"v_lshl_add_u32 v{BA+7}, v23, 3, v22")
    e(f"v_mov_b32 v{MC}, {hex(f32bits(-1e30))}")
    for r in range(1, 20): e(f"v_mov_b32 v{MC+r}, v{MC}")
    def setm(reg, r, shift):
        m = 0
        for l in range(64):
            d = (l & 31) - ((r & 3) + 8 * (r >> 2) + 4 * (l >> 5)) + shift
            if 0 <= d <= 7: m |= 1 << l
        if m: e(f"s_mov_b32 exec_lo, {hex(m & 0xffffffff)}", f"s_mov_b32 exec_hi, {hex(m >> 32)}", f"v_mov_b32 v{reg}, 0")
    for r in range(16): setm(MC + r, r, 0)
    e(f"s_cmp_eq_u32 s{sRB}, 0", "s_cbranch_scc1 L_nomp")
    for r in range(12, 16): setm(MP + r, r, 32)
    e.lab("L_nomp")
    e("s_mov_b64 exec, -1")

def h_qprep(e):
    T, QK, SA, SB, KS = 20, 104, 120, 136, 24
    e.c("---- H: max images of positions i, 4+i")
    e(f"v_lshlrev_b32 v{T+2}, 4, v0")
    e(f"s_lshl_b32 s{sO+4}, s{sI}, 13", f"s_add_u32 s{sO+4}, s{sO+4}, {KW + 32768}")
    e(f"s_lshl_b32 s{sO+5}, s{sI}, 12", f"s_add_u32 s{sO+5}, s{sO+5}, {F1 + 16384}", f"v_lshl_add_u32 v{T+3}, v0, 7, s{sO+5}")
    e(f"s_lshl_b32 s{sO+5}, s{sI}, 2", f"v_add_u32 v17, s{sO+5}, v{vHC}")
    e(f"s_lshl_b32 s{sO}, s{sI}, 10", f"s_add_u32 s{sO}, s{sO}, {QI_L}", f"v_add_u32 v{T}, s{sO}, v{T+2}", f"v_and_b32 v18, 0x1ff, v{T+2}")
    e(f"s_lshl_b32 s{sO}, s{sI}, 9", f"s_add_u32 s{sO}, s{sO}, {NM_L}", f"v_add_u32 v18, s{sO}, v18")
    lds_wait(e, vHC, vHT, 5, LAND + 12, sleep=1)
    gpoll(e, T + 3, T + 1, 0xffffffff, 0, sleep=1)
    for t in range(NSAMP): e(f"buffer_load_dwordx4 {vr(KS+4*t,4)}, v{T+2}, {sr(R_WS,4)}, s{sO+4} offen offset:{1024*t}{SC}")
    sig(e, 17, vH1, SOK)
    lds_wait(e, vHC, vHT, 4, ACNT, sleep=1)
    e(f"ds_read_b128 {vr(QK,4)}, v{T}", f"ds_read_b128 {vr(QK+4,4)}, v{T} offset:4096", "s_waitcnt vmcnt(0) lgkmcnt(0)")
    for z in range(2):
        SS = (SA, SB, 40, 56)
        for t in range(NSAMP): e(f"{MF32} {vr(SS[t],16)}, {vr(KS+4*t,4)}, {vr(QK+4*z,4)}, 0")
        e(f"s_nop {12 - NSAMP}")
        m = 152 + 4*z
        regs = [SS[t] + r for t in range(NSAMP) for r in range(16)]
        e(f"v_max_f32 v{m}, v{regs[0]}, v{regs[1]}")
        for k in range(2, len(regs), 2): e(f"v_max3_f32 v{m}, v{m}, v{regs[k]}, v{regs[k+1]}")
        halfmax(e, m)
        e(f"v_sub_f32 v{m}, {hex(f32bits(-MOFF))}, v{m}")
        for r in range(1, 4): e(f"v_mov_b32 v{m+r}, v{m}")
        e(f"ds_write_b128 v18, {vr(m,4)} offset:{2048*z}")
        if z == 0: e(f"s_cmp_eq_u32 s{sI}, 0", "s_cselect_b32 exec_lo, 1, 0", "s_mov_b32 exec_hi, 0", f"ds_write_b32 v{vHC}, v{vH1} offset:{RDY1}", "s_mov_b64 exec, -1")
        else: sig(e, vHC, vH1, ACNT)
        stamp(e, 9 + z)

class Lst(list):
    def __call__(self, *x): self.extend(x)
def b_dma_groups(j):
    ro = (j & 1) * RINGS
    G = [Lst() for _ in range(5)]
    g = G[0]
    g(f"s_add_u32 s{sO+1}, s{sKC}, {j}", f"s_and_b32 s{sO+1}, s{sO+1}, 7", f"s_lshl_b32 s{sO+2}, s{sO+1}, 7", f"s_mul_i32 s{sO+1}, s{sO+1}, {64*3072}")
    g(f"s_add_u32 s{sO+1}, s{sO+1}, s{sBW}", f"s_add_u32 s{sO+3}, s{sO+2}, s{sBX}")
    for u in range(2):
        g(f"s_add_u32 m0, s{sBXL}, {ro + u*1024}", f"s_add_u32 s{sO}, s{sO+3}, {u*16384}")
        dma(g, 1 + u, R_XB, sO, nt="bnt" in OPT)
    for p in range(3):
        g = G[1 + p]
        for u in range(2):
            g(f"s_add_u32 m0, s{sBWL}, {ro + p*8192 + u*1024}", f"s_add_u32 s{sO}, s{sO+1}, {p*1024 + u*8*3072}")
            dma(g, 4 if u == 0 else 16, R_WB, sO)
    g = G[4]
    g(f"s_add_u32 m0, s{sBHL}, {ro}", f"s_add_u32 s{sO}, s{sO+2}, s{sBH}", "s_mov_b32 exec_hi, 0")
    dma(g, 3, R_XB, sO)
    g("s_mov_b64 exec, -1")
    return G
def wo_groups(R, base):
    G = [Lst() for _ in range(4)]
    G[0](f"s_lshl_b32 s{sO+1}, s{sI}, 17", f"s_lshl_b32 s{sO+2}, s{sHP}, 6", f"s_add_u32 s{sO+1}, s{sO+1}, s{sO+2}", f"s_lshl_b32 s{sO+2}, s{sI}, 13")
    for u in range(8):
        g = G[u >> 1]
        g(f"s_add_u32 m0, s{sO+2}, {base + u*1024}", f"s_add_u32 s{sO}, s{sO+1}, {u*16384}")
        dma(g, 20, R, sO)
    return G
def wo_voff(e):
    e("v_lshrrev_b32 v20, 2, v0", "v_and_b32 v21, 3, v0", "v_lshlrev_b32 v21, 4, v21", "v_lshl_add_u32 v20, v20, 10, v21", "v_lshlrev_b32 v21, 7, v0")

def b_proj(e):
    D, XB_, HX_, WB_, NBUF = 4, FR, FR + 8, FR + 12, 12
    jobs = []
    def wreads(buf, areg, off):
        return [f"ds_read_b64_tr_b16 {vr(buf,2)}, v{areg} offset:{off}", f"ds_read_b64_tr_b16 {vr(buf+2,2)}, v{areg} offset:{off+512}"]
    for j in range(8):
        ro = (j & 1) * RINGS
        for s in range(4):
            x = XB_ + 4 * (s & 1)
            for p, acc in enumerate((aq, ak, av)):
                w = WB_ + 4 * (len(jobs) % NBUF)
                rds = ([f"ds_read_b128 {vr(x,4)}, v{BA+s} offset:{ro}"] if p == 0 else []) + wreads(w, BA + 4, ro + p*8192 + s*2048)
                A_, B_ = (w, x) if p < 2 else (x, w)
                jobs.append((rds, f"{MF32} {vr(acc,16)}, {vr(A_,4)}, {vr(B_,4)}, {'0' if (j == 0 and s == 0) else vr(acc,16)}"))
            s2, p = s >> 1, 1 + (s & 1)
            w = WB_ + 4 * (len(jobs) % NBUF)
            rds = ([f"ds_read_b128 {vr(HX_,4)}, v{BA+5+s2} offset:{ro}"] if p == 1 else []) + wreads(w, BA + 7, ro + p*8192 + s2*4096)
            acc = ahk if p == 1 else ahv
            A_, B_ = (w, HX_) if p == 1 else (HX_, w)
            jobs.append((rds, f"{MF16} {vr(acc,4)}, {vr(A_,4)}, {vr(B_,4)}, {'0' if (j == 0 and s2 == 0) else vr(acc,4)}"))
    q = []
    nxt = [0]
    def issue(upto):
        while nxt[0] < min(upto, 128):
            if "bnord" not in OPT or nxt[0] < 16:
                e(*jobs[nxt[0]][0]); q.extend([nxt[0]] * len(jobs[nxt[0]][0]))
            nxt[0] += 1
    e("s_waitcnt vmcnt(9)")
    sig(e, vHC, vH1, HCNT)
    lds_wait(e, vHC, vHT, 8, HCNT)
    stamp(e, 16)
    e(f"s_setprio {HM}")
    issue(D)
    G = []
    PA = 13
    for n in range(128):
        j, r = n >> 4, n & 15
        if n in q:
            last = len(q) - 1 - q[::-1].index(n)
            e(f"s_waitcnt lgkmcnt({len(q) - 1 - last})")
            del q[:last + 1]
        e(jobs[n][1] if "bnomf" not in OPT else "s_sleep 1")
        lim = 16 * (j + 1)
        if r < PA or j == 7: issue(min(n + 1 + D, lim))
        if r == 15 - D and j < 7:
            e(f"s_waitcnt vmcnt({1 if (j in (3, 4) and 'wpf' in OPT) else 0})")
            sig(e, vHC, vH1, HCNT); q.append(-1)
        if r == PA and j < 7:
            if "bwake" in OPT:
                e("s_waitcnt lgkmcnt(0)", "s_wakeup")
            lds_wait(e, vHC, vHT, 4 * (j + 3), HCNT, sleep=BSLEEP); del q[:]
            if j == 3: stamp(e, 17)
            G = b_dma_groups(j + 2) if j < 6 else wo_groups(R_WOB, WOB_L)
            if j in (2, 3) and "wpf" in OPT:
                g = Lst()
                g(f"s_and_b32 s{sO}, s{sIDX}, 31", f"s_lshl_b32 s{sO}, s{sO}, 2", f"s_add_u32 s{sO}, s{sO}, s{sI}", f"s_lshl_b32 s{sO}, s{sO}, 12", "s_mov_b32 exec_hi, 0")
                g(f"buffer_load_dword v22, v21, {sr(R_WOB if j == 2 else R_WOA,4)}, s{sO} offen", "s_mov_b64 exec, -1")
                G.append(g)
        if r >= PA and j < 7: issue(n + 1 + D - (1 if r < 15 else 0))
        for _ in range(2):
            if G: e(*G.pop(0))
    e("s_setprio 3")

def b_attn(e):
    Qf, Kf, Vf, Kp, Vp = 104, 112, 120, 128, 136
    PB = 140
    M = 152
    e.c("---- local attention")
    e("v_bfe_u32 v9, v0, 3, 1", "v_lshlrev_b32 v10, 10, v9", "v_bfe_u32 v9, v0, 4, 1", "v_lshl_add_u32 v10, v9, 7, v10")
    e("v_and_b32 v11, 7, v0", "v_lshl_add_u32 v10, v11, 4, v10", "v_lshrrev_b32 v12, 5, v0", "v_lshl_add_u32 v10, v12, 3, v10")
    e(f"s_and_b32 s{sO}, s{sI}, 2", f"s_lshl_b32 s{sO}, s{sO}, 10", f"s_add_u32 s{sO}, s{sO}, {EX_L}", f"s_and_b32 s{sO+1}, s{sI}, 1")
    e(f"s_lshl_b32 s{sO+2}, s{sO+1}, 8", f"s_add_u32 s{sO+2}, s{sO+2}, s{sO}", f"v_add_u32 v10, s{sO+2}, v10")
    e("v_lshlrev_b32 v13, 10, v12", "v_lshl_add_u32 v13, v9, 8, v13", "v_and_b32 v14, 15, v0", "v_lshl_add_u32 v13, v14, 3, v13")
    e(f"s_lshl_b32 s{sO+2}, s{sO+1}, 7", f"s_add_u32 s{sO+2}, s{sO+2}, s{sO}", f"v_add_u32 v13, s{sO+2}, v13")
    for j in range(4): e(f"v_cvt_pk_bf16_f32 v{16+j}, v{ahk+2*j}, v{ahk+2*j+1}")
    e("ds_write_b64 v10, v[16:17]", "ds_write_b64 v13, v[18:19] offset:512")
    sig(e, vHC, vH1, HCNT)
    e(f"s_lshl_b32 s{sO}, s{sI}, 10", f"s_add_u32 s{sO}, s{sO}, {EX_L}")
    e("v_lshl_add_u32 v11, v12, 3, v11", f"v_lshl_add_u32 v11, v11, 4, s{sO}", f"v_lshl_add_u32 v14, v0, 3, s{sO}")
    for j in range(8): e(f"v_cvt_pk_bf16_f32 v{Kf+j}, v{ak+2*j}, v{ak+2*j+1}")
    for j in range(8): e(f"v_cvt_pk_bf16_f32 v{Qf+j}, v{aq+2*j}, v{aq+2*j+1}")
    Sc0, Sc1, Sp = 24, 40, 8 + 56
    lds_wait(e, vHC, vHT, 40, HCNT)
    e(f"ds_read_b128 {vr(Kp,4)}, v11", f"ds_read_b128 {vr(Kp+4,4)}, v11 offset:256", f"ds_read_b64 {vr(Vp+2,2)}, v14 offset:512")
    e(f"s_setprio {HM}")
    e(f"{MF32} {vr(Sc0,16)}, {vr(Kf,4)}, {vr(Qf,4)}, {vr(MC,16)}", f"{MF32} {vr(Sc1,16)}, {vr(Kf+4,4)}, {vr(Qf+4,4)}, {vr(MC,16)}")
    e("s_setprio 3")
    for g in wo_groups(R_WOA, WOA_L): e(*g)
    for j in range(8): e(f"v_cvt_pk_bf16_f32 v{Vf+j}, v{av+2*j}, v{av+2*j+1}")
    for r in (Vp, Vp+1): e(f"v_mov_b32 v{r}, 0")
    for r in range(12): e(f"v_mov_b32 v{PB+r}, 0")
    e(f"s_lshl_b32 s{sO+1}, s{sRB}, 1", f"s_and_b32 s{sO+2}, s{sI}, 1", f"s_add_u32 s{sO+1}, s{sO+1}, s{sO+2}", f"s_lshl_b32 s{sO+1}, s{sO+1}, 15")
    e(f"s_lshl_b32 s{sO+2}, s{sCB}, 2", f"s_and_b32 s{sO+3}, s{sI}, 2", f"s_add_u32 s{sO+2}, s{sO+2}, s{sO+3}", f"s_lshl_b32 s{sO+2}, s{sO+2}, 10")
    e(f"s_add_u32 s{sO+1}, s{sO+1}, s{sO+2}", f"s_add_u32 s{sO+1}, s{sO+1}, {OB}")
    e("v_lshlrev_b32 v9, 4, v0", f"v_mov_b32 v22, {hex(f32bits(CSC))}", "s_waitcnt lgkmcnt(0)")
    for hd in range(2):
        Sc = (Sc0, Sc1)[hd]
        e(f"s_setprio {HM}", f"{MF32} {vr(Sp,16)}, {vr(Kp+4*hd,4)}, {vr(Qf+4*hd,4)}, {vr(MP,16)}", "s_setprio 3")
        for k in range(4): e(f"v_max_f32 v{M+k}, v{Sc+k}, v{Sc+8+k}")
        e(f"v_max3_f32 v10, v{M}, v{M+1}, v{M+2}", "s_nop 5")
        for k in range(4): e(f"v_max3_f32 v{M+4+k}, v{Sc+4+k}, v{Sc+12+k}, v{Sp+12+k}")
        e(f"v_max3_f32 v10, v10, v{M+3}, v{M+4}", f"v_max3_f32 v10, v10, v{M+5}, v{M+6}", f"v_max_f32 v10, v10, v{M+7}")
        halfmax(e, 10)
        e("v_mul_f32 v10, v22, v10")
        for k in range(4): e(f"v_pk_fma_f32 {vr(M+2*k,2)}, {vr(M+2*k,2)}, v[22:23], v[10:11] op_sel_hi:[1,0,0] neg_lo:[0,0,1] neg_hi:[0,0,1]")
        for k in range(8): e(f"v_exp_f32 v{M+k}, v{M+k}")
        def cv(mask, dst, src):
            e(f"s_mov_b32 exec_lo, {hex(mask)}", f"s_mov_b32 exec_hi, {hex(mask)}")
            e(f"v_cvt_pk_bf16_f32 v{dst}, v{src}, v{src+1}", f"v_cvt_pk_bf16_f32 v{dst+1}, v{src+2}, v{src+3}")
        cv(0x0000ffff, PB, M); cv(0xffff0000, PB+4, M)
        cv(0x00ffff00, PB+2, M+4); cv(0xff000000, PB+6, M+4); cv(0x000000ff, PB+10, M+4)
        e("s_mov_b64 exec, -1")
        e(f"v_pk_add_f32 {vr(M,2)}, {vr(M,2)}, {vr(M+2,2)}", f"v_pk_add_f32 {vr(M+4,2)}, {vr(M+4,2)}, {vr(M+6,2)}")
        e(f"s_setprio {HM}")
        e(f"{MF32} {vr(Sc,16)}, {vr(Vf,4)}, {vr(PB,4)}, 0", f"{MF32} {vr(Sc,16)}, {vr(Vf+4,4)}, {vr(PB+4,4)}, {vr(Sc,16)}", f"{MF32} {vr(Sc,16)}, {vr(Vp,4)}, {vr(PB+8,4)}, {vr(Sc,16)}")
        e("s_setprio 3")
        e(f"v_pk_add_f32 {vr(M,2)}, {vr(M,2)}, {vr(M+4,2)}", f"v_add_f32 v10, v{M}, v{M+1}", "v_mov_b32 v11, v10", "s_nop 1")
        e("v_permlane32_swap_b32 v10, v11", "s_nop 0", "v_add_f32 v10, v10, v11", "v_rcp_f32 v10, v10", "s_nop 2")
        O = Sc + 8 * hd
        for k in range(4): e(f"v_pk_mul_f32 {vr(O+2*k,2)}, {vr(O+2*k,2)}, v[10:11] op_sel_hi:[1,0]")
        o = 12 + 4 * hd
        for j in range(4): e(f"v_cvt_pk_bf16_f32 v{o+j}, v{O+2*j}, v{O+2*j+1}")
        e(f"buffer_store_dwordx4 {vr(o,4)}, v9, {sr(R_WS,4)}, s{sO+1} offen offset:{1024*hd}{SC}")

vWt, vPo, vCk, vSt, vL16, vFl, vL4, vOC = 8, 9, 10, 11, 1, 2, 3, 4
GACC, GO, GW = 12, 32, 148
sTK, sOut = sT, sT+1
def out_table(e):
    W, Po, Ck, St = 164, 165, 166, 167
    e("v_lshrrev_b32 v30, 5, v0", "v_bfe_u32 v31, v0, 2, 2", "v_lshl_add_u32 v31, v30, 2, v31", f"v_lshlrev_b32 v{W}, 6, v31")
    e("v_and_b32 v31, 1, v0", f"v_lshl_add_u32 v{W}, v31, 5, v{W}", "v_bfe_u32 v31, v0, 1, 1", f"v_lshl_add_u32 v{W}, v31, 3, v{W}")
    e("v_bfe_u32 v31, v0, 4, 1", f"v_lshl_add_u32 v{W}, v31, 4, v{W}")
    e(f"v_and_b32 v{St}, 31, v0", f"v_lshlrev_b32 v{St}, 11, v{St}", f"v_lshl_add_u32 v{St}, v30, 5, v{St}")
    e(f"v_lshlrev_b32 v{Ck}, 2, v0", f"v_lshlrev_b32 v{Po}, 7, v0")
    e(f"v_lshlrev_b32 v31, 4, v0", f"v_add_u32 v31, {TB_L}, v31", "ds_write_b128 v31, v[164:167]")
def out_prep(e, role):
    e(f"v_lshlrev_b32 v{vL16}, 4, v0", f"v_add_u32 v31, {TB_L}, v{vL16}", f"ds_read_b128 v[8:11], v31")
    e(f"v_and_b32 v{vOC}, 3, v0", f"v_lshlrev_b32 v{vOC}, 8, v{vOC}", f"v_add_u32 v{vOC}, {PR_L + 1024}, v{vOC}")
    e(f"v_and_b32 v{vL4}, 31, v0", f"v_lshlrev_b32 v{vL4}, 2, v{vL4}")
    e(f"s_lshl_b32 s{sTK}, s{sTB}, 2", f"s_add_u32 s{sTK}, s{sTK}, s{sI}")
    if role == "H": e("s_waitcnt lgkmcnt(0)", f"v_lshl_add_u32 v{vSt}, v{vL4}, 9, v{vSt}")

def pry_wait(e, lim, sleep=6):
    l = e.uniq("hp")
    e.lab(l)
    e(f"ds_read_b32 v{vHT}, v{vOC}", "s_waitcnt lgkmcnt(0)", f"v_cmp_gt_u32 vcc, {lim}, v{vHT}", f"s_cbranch_vccz {l}_d")
    spin_tail(e, l, sleep)
    e.lab(l + "_d")

pub_sites = []
def pub(e, add, keep=False, fast=False):
    site = len(pub_sites); pub_sites.append(site)
    e(f"s_add_u32 s{sO+4}, s{sI}, {add}", f"s_mov_b32 s{sRET}, {site}")
    if not fast:
        e(f"s_mul_i32 s{sO}, s{sO+4}, {OS_POS}", f"s_add_u32 s{sO}, s{sO}, {OS_L - OS_POS}")
        pry_wait(e, f"s{sO}", sleep=PSL)
    e("s_branch L_pub")
    e.lab(f"L_pub_ret{site}")

def pub_routine(e):
    P = GO
    site = 0
    e.lab("L_pub")
    e(f"s_mul_i32 s{sO+2}, s{sO+4}, {OS_POS}", f"s_add_u32 s{sO+2}, s{sO+2}, {OS_L}")
    e(f"v_add_u32 v28, s{sO+2}, v{vL16}", f"v_add_u32 v29, s{sO+2}, v{vL4}")
    e(f"s_and_b32 s{sO}, s{sO+4}, 1", f"s_lshl_b32 s{sO}, s{sO}, 2", f"s_lshr_b32 s{sO+1}, s{sO+4}, 1", f"s_add_u32 s{sO}, s{sO}, s{sO+1}")
    e(f"s_lshl_b32 s{sO+1}, s{sRB}, 3", f"s_add_u32 s{sO}, s{sO}, s{sO+1}", f"s_lshl_b32 s{sO}, s{sO}, 3", f"s_add_u32 s{sO}, s{sO}, s{sCB}")
    e(f"s_mul_i32 s{sO+3}, s{sO}, {REC}", f"s_add_u32 s{sO+3}, s{sO+3}, {OA}")
    e(f"s_lshl_b32 s{sO+5}, s{sIDX}, 3", f"s_add_u32 s{sO+5}, s{sO+5}, s{sO+4}", f"s_lshl_b32 s{sO+5}, s{sO+5}, 7", f"s_add_u32 s{sO+5}, s{sO+5}, {F4}")
    e(f"s_mov_b32 s{sO+1}, {hex(f32bits(LMAX))}")
    pry_wait(e, f"s{sO+2}", sleep=3)
    e(f"ds_read2st64_b32 {vr(P+32,2)}, v29 offset0:8 offset1:17", f"ds_read2st64_b32 {vr(P+34,2)}, v29 offset0:26 offset1:35")
    for a in range(2):
        for s in range(4): e(f"ds_read_b128 {vr(P+8*s+4*a,4)}, v28 offset:{s*OS_PAIR + a*1024}")
    e("s_waitcnt lgkmcnt(8)", f"v_pk_add_f32 {vr(P+32,2)}, {vr(P+32,2)}, {vr(P+34,2)}", f"v_add_f32 v{P+34}, v{P+32}, v{P+33}", f"v_rcp_f32 v{P+32}, v{P+34}")
    for a in range(2):
        e(f"s_waitcnt lgkmcnt({4-4*a})")
        for k in range(2):
            a_, b_, c_, d_ = (vr(P + 8*s + 4*a + 2*k, 2) for s in range(4))
            e(f"v_pk_add_f32 {a_}, {a_}, {b_}", f"v_pk_add_f32 {c_}, {c_}, {d_}", f"v_pk_add_f32 {a_}, {a_}, {c_}")
    e(f"v_pk_mul_f32 {vr(P+8,2)}, {vr(P,2)}, 0")
    for k in range(1, 4): e(f"v_pk_fma_f32 {vr(P+8,2)}, {vr(P+2*k,2)}, 0, {vr(P+8,2)}")
    e(f"v_add_f32 v{P+8}, v{P+8}, v{P+9}", f"v_add_f32 v{P+8}, v{P+8}, v{P+34}")
    e(f"v_cmp_ngt_f32 vcc, s{sO+1}, v{P+8}" if "forcefb" not in OPT else "v_cmp_eq_u32 vcc, v0, v0", "s_cbranch_vccnz L_exact")
    e.lab(f"L_exact_ret{site}")
    for k in range(4): e(f"v_pk_mul_f32 {vr(P+2*k,2)}, {vr(P+2*k,2)}, {vr(P+32,2)} op_sel_hi:[1,0]")
    for k in range(4): e(f"v_cvt_pk_bf16_f32 v{164+k}, v{P+2*k}, v{P+2*k+1}")
    e(f"s_cmp_ge_u32 s{sO+4}, 4", "s_cbranch_scc1 L_pub_tag")
    e(f"buffer_store_dwordx4 v[164:167], v{vL16}, {sr(R_WS,4)}, s{sO+3} offen{SC}", "s_waitcnt vmcnt(0)")
    set_flag(e, sO+5, 28, 29)
    e("s_branch L_pub_x")
    e.lab("L_pub_tag")
    mk_ck(e, 31, 164)
    if "nofast" not in OPT:
        e(f"s_add_u32 s{sO}, s{sO+3}, {FAST}")
        e(f"buffer_store_dwordx4 v[164:167], v{vL16}, {sr(R_WS,4)}, s{sO} offen", f"buffer_store_dword v31, v{vCk}, {sr(R_WS,4)}, s{sO} offen offset:1024")
    e(f"buffer_store_dwordx4 v[164:167], v{vL16}, {sr(R_WS,4)}, s{sO+3} offen{SC}", f"buffer_store_dword v31, v{vCk}, {sr(R_WS,4)}, s{sO+3} offen offset:1024{SC}")
    if "nofast" in OPT: set_flag(e, sO+5, 28, 29)
    e.lab("L_pub_x")
    for s in pub_sites[:-1]: e(f"s_cmp_eq_u32 s{sRET}, {s}", f"s_cbranch_scc1 L_pub_ret{s}")
    e(f"s_branch L_pub_ret{pub_sites[-1]}")

def exact(e):
    O, Q, Kr, V, S, NB, m, vo = GO, GO+36, GO+40, GO+44, GO+52, GO+68, GO+84, GO+86
    sK, sV = sO, sO+1
    e.lab("L_exact")
    e(f"s_mov_b32 s{sT+4}, 1", "s_waitcnt vmcnt(0)")
    e(f"s_lshl_b32 s{sK}, s{sO+4}, 10", f"s_add_u32 s{sK}, s{sK}, {QI_L}", f"v_add_u32 v{m}, s{sK}, v{vL16}", f"ds_read_b128 {vr(Q,4)}, v{m}")
    e(f"v_and_b32 v{m}, 31, v0", f"v_cmp_eq_u32 vcc, 16, v{m}", f"v_mov_b32 v{m+1}, 0x3f803f80", f"v_lshrrev_b32 v{vo}, 5, v0", f"v_cndmask_b32 v{V}, 0, v{m+1}, vcc")
    for r in range(1, 8): e(f"v_mov_b32 v{V+r}, v{V}")
    e(f"v_lshlrev_b32 v{vo}, 8, v{vo}", f"v_and_b32 v{m}, 15, v0", f"v_lshl_add_u32 v{vo}, v{m}, 4, v{vo}")
    for r in range(16): e(f"v_mov_b32 v{O+r}, 0")
    e(f"v_mov_b32 v{m}, 0xff800000", f"s_mov_b32 s{sK}, {KW}", "s_waitcnt lgkmcnt(0)")
    e.lab("L_ex1")
    e(f"buffer_load_dwordx4 {vr(Kr,4)}, v{vL16}, {sr(R_WS,4)}, s{sK} offen{SC}", "s_waitcnt vmcnt(0)")
    e(f"{MF32} {vr(S,16)}, {vr(Kr,4)}, {vr(Q,4)}, 0", "s_nop 11")
    for k in range(0, 16, 2): e(f"v_max3_f32 v{m}, v{m}, v{S+k}, v{S+k+1}")
    e(f"s_add_u32 s{sK}, s{sK}, 1024", f"s_cmp_lt_u32 s{sK}, {KW + 65536}", "s_cbranch_scc1 L_ex1")
    halfmax(e, m)
    for r in range(16): e(f"v_sub_f32 v{NB+r}, 0, v{m}")
    e(f"s_mov_b32 s{sK}, {KW}", f"s_mov_b32 s{sV}, {VW}")
    e.lab("L_ex2")
    e(f"buffer_load_dwordx4 {vr(Kr,4)}, v{vL16}, {sr(R_WS,4)}, s{sK} offen{SC}", "s_mov_b32 exec_lo, 0xffff", "s_mov_b32 exec_hi, 0xffff")
    e(f"buffer_load_dwordx4 {vr(V,4)}, v{vo}, {sr(R_WS,4)}, s{sV} offen{SC}", f"buffer_load_dwordx4 {vr(V+4,4)}, v{vo}, {sr(R_WS,4)}, s{sV} offen offset:512{SC}")
    e("s_mov_b64 exec, -1", "s_waitcnt vmcnt(0)")
    e(f"{MF32} {vr(S,16)}, {vr(Kr,4)}, {vr(Q,4)}, {vr(NB,16)}", "s_nop 11")
    for k in range(16): e(f"v_exp_f32 v{S+k}, v{S+k}")
    e("s_nop 0")
    for j in range(8): e(pk(S, j))
    e("s_nop 1", f"{MF32} {vr(O,16)}, {vr(V,4)}, {vr(S,4)}, {vr(O,16)}", f"{MF32} {vr(O,16)}, {vr(V+4,4)}, {vr(S+8,4)}, {vr(O,16)}")
    e(f"s_add_u32 s{sK}, s{sK}, 1024", f"s_add_u32 s{sV}, s{sV}, 1024", f"s_cmp_lt_u32 s{sK}, {KW + 65536}", "s_cbranch_scc1 L_ex2")
    e("s_nop 11", f"v_mov_b32 v{m}, v{O+8}", "s_nop 1", f"v_permlane32_swap_b32 v{O+8}, v{m}", "s_nop 0", f"v_rcp_f32 v{GO+32}, v{O+8}", "s_nop 0")
    e("s_branch L_exact_ret0")

def gemm_b(e):
    NB, n = 28, 32
    oreg = lambda k: GO + 36 + 4 * k if k < 20 else (GO + 4 * (k - 20) if k < 29 else GO + 36 + 4 * (k - 29))
    e(f"s_lshl_b32 s{sT+2}, s{sTK}, 15", f"s_add_u32 s{sT+2}, s{sT+2}, {OB}")
    def ldo(k):
        if k % 4 == 0: e(f"s_add_u32 s{sT+3}, s{sT+2}, {(k>>2)*4096}")
        e(f"buffer_load_dwordx4 {vr(oreg(k),4)}, v{vL16}, {sr(R_WS,4)}, s{sT+3} offen offset:{(k&3)*1024}{SC}")
    def rdw(k):
        b = GW + 4*(k & 3)
        e(f"ds_read_b64_tr_b16 {vr(b,2)}, v{vWt} offset:{WOB_L+k*1024}", f"ds_read_b64_tr_b16 {vr(b+2,2)}, v{vWt} offset:{WOB_L+k*1024+512}")
    def loads(k0, k1):
        for k in range(k0, k1):
            ldo(k)
            if OBW and k >= OBW: e(f"s_waitcnt vmcnt({OBW})")
    if "hpubfirst" in OPT:
        e(f"s_cmp_lg_u32 s{sI}, 0", "s_cbranch_scc1 L_hnp0")
        pub(e, 4)
        e.lab("L_hnp0")
    loads(0, 20)
    stamp(e, 8)
    if "fpub" not in OPT:
        e(f"s_mov_b32 s{sT+4}, 0", f"s_cmp_eq_u32 s{sI}, 3", "s_cbranch_scc1 L_hnp")
        e(f"s_cmp_eq_u32 s{sI}, 0", "s_cbranch_scc1 L_hnp")
        pub(e, 4)
        e(f"s_cmp_eq_u32 s{sT+4}, 0", "s_cbranch_scc1 L_hnp")
        for k in range(20): ldo(k)
        e.lab("L_hnp")
        stamp(e, 18)
    loads(20, 29)
    lds_wait(e, vHC, vHT, 44, HCNT)
    pry_wait(e, OS_L + HGATE*OS_POS, sleep=PSL)
    e("s_setprio 1")
    for k in range(3): rdw(k)
    for k in range(32):
        if k + 3 < 32: rdw(k + 3)
        vm = 9 + min(k, 3) if k < 20 else 31 - k
        e(f"s_waitcnt vmcnt({vm}) lgkmcnt({min(6, 2*(31-k))})", f"{MF32} {vr(GACC,16)}, {vr(GW+4*(k&3),4)}, {vr(oreg(k),4)}, {'0' if k == 0 else vr(GACC,16)}")
        if k < 3: ldo(k + 29)

def fetch(e, hl, c0, c1, base, ck=None):
    for c in range(c0, c1):
        e(f"s_add_u32 s{sO}, s{sT+2}, {(hl*8 + c)*REC}")
        e(f"buffer_load_dwordx4 {vr(base+4*c,4)}, v{vL16}, {sr(R_WS,4)}, s{sO} offen{SC}")
        if ck is not None: e(f"buffer_load_dword v{ck+c}, v{vCk}, {sr(R_WS,4)}, s{sO} offen offset:1024{SC}")
def verify(e, c0, c1, base, ck, younger, hl=3, sleep=0):
    l = e.uniq("vf")
    e(f"s_waitcnt vmcnt({younger})", f"s_branch {l}_v")
    e.lab(l)
    if "nofast" not in OPT:
        e(f"s_add_u32 s{sT+6}, s{sT+6}, 1", f"s_and_b32 s{sO}, s{sT+6}, {FTRY-1}", f"s_cselect_b32 s{sO}, 0, {FAST}", f"s_xor_b32 s{sT+5}, s{sT+5}, s{sO}", f"s_add_u32 s{sT+2}, s{sT+3}, s{sT+5}")
    fetch(e, hl, c0, c1, base, ck)
    e("s_waitcnt vmcnt(0)")
    e.lab(l + "_v")
    for c in range(c0, c1): chk(e, 28, 29, base + 4*c, ck + c, c == c0)
    e("v_cmp_ne_u32 vcc, 0, v28", f"s_cbranch_vccz {l}_d")
    spin_tail(e, l, sleep)
    e.lab(l + "_d")
    e(f"s_mov_b32 s{sT+6}, 0")
def mul_a(e, steps, pre=True, vm=None):
    n = len(steps)
    def rdw(k):
        b = GW + 4*(k & 3); o = steps[k][0] * 1024
        e(f"ds_read_b64_tr_b16 {vr(b,2)}, v30 offset:{o}", f"ds_read_b64_tr_b16 {vr(b+2,2)}, v30 offset:{o+512}")
    if pre:
        for k in range(3): rdw(k)
        return
    for k in range(n):
        if k + 3 < n: rdw(k + 3)
        e(f"s_waitcnt {'vmcnt(%d) ' % (n-1-k) if vm else ''}lgkmcnt({min(6, 2*(n-1-k))})")
        e(f"{MF32} {vr(GACC,16)}, {vr(GW+4*(k&3),4)}, {vr(steps[k][1],4)}, {'0' if steps[k][0] == 0 else vr(GACC,16)}")
def gpoll_s(e, vaddr, vtmp, pat, sleep):
    l = e.uniq("gp")
    e(f"s_lshl_b32 exec_lo, {hex(pat)}, s{sT+7}", "s_mov_b32 exec_hi, exec_lo")
    e.lab(l)
    e(f"buffer_load_dword v{vtmp}, v{vaddr}, {sr(R_WS,4)}, s{sT+8} offen sc1", "s_waitcnt vmcnt(0)")
    e(f"v_cmp_ne_u32 vcc, s{sEP}, v{vtmp}", "s_and_b64 exec, exec, vcc", f"s_cbranch_execz {l}_d")
    spin_tail(e, l, sleep)
    e.lab(l + "_d")
    e("s_mov_b64 exec, -1")

def out_store(e, off):
    global OSC
    if "nost" in OPT: return
    if "nostb" in OPT and off: return
    OSC = (" sc1" if "Bsc1" in OPT else " nt" if "bnts" in OPT else "") if off else (" sc1" if "asc1" in OPT else "")
    e("s_nop 11")
    for j in range(8): e(f"v_cvt_pk_bf16_f32 v{GW+j}, v{GACC+2*j}, v{GACC+2*j+1}")
    e(f"buffer_store_dwordx4 {vr(GW,4)}, v{vSt}, {sr(R_OUT,4)}, s{sOut} offen offset:{off}{OSC}", f"buffer_store_dwordx4 {vr(GW+4,4)}, v{vSt}, {sr(R_OUT,4)}, s{sOut} offen offset:{off+16}{OSC}")

def h_main(e):
    e.lab("L_h2")
    srds(e, (R_XB, R_WB, R_WOB, R_WOA, R_OUT))
    b_prep(e)
    out_table(e)
    h_qprep(e)
    if "noH" in OPT: finish(e)
    wo_voff(e)
    lds_wait(e, vHC, vHT, 8, GCNT, sleep=2)
    for j in range(2):
        for g in b_dma_groups(j): e(*g)
    stamp(e, 4)
    b_proj(e)
    stamp(e, 5)
    b_attn(e)
    e(f"s_mov_b32 s{sT+6}, s{sO+1}")
    e(f"s_lshl_b32 s{sO+5}, s{sIDX}, 2", f"s_add_u32 s{sO+5}, s{sO+5}, s{sI}", f"s_lshl_b32 s{sO+5}, s{sO+5}, 7", f"s_add_u32 s{sO+5}, s{sO+5}, {F3}")
    out_prep(e, "H")
    e(f"s_lshr_b32 s{sO+2}, s{sTK}, 1", f"s_lshl_b32 s{sOut}, s{sO+2}, 17", f"s_and_b32 s{sO+3}, s{sI}, 1", f"s_lshl_b32 s{sO}, s{sO+3}, 11", f"s_add_u32 s{sOut}, s{sOut}, s{sO}")
    e(f"s_lshl_b32 s{sO}, s{sHP}, 6", f"s_add_u32 s{sOut}, s{sOut}, s{sO}")
    e(f"s_lshl_b32 s{sO+2}, s{sO+2}, 12", f"s_lshl_b32 s{sO+3}, s{sO+3}, 7", f"s_add_u32 s{sO+2}, s{sO+2}, s{sO+3}", f"s_add_u32 s{sO+2}, s{sO+2}, {F3}")
    e(f"v_lshl_add_u32 v{vFl}, v0, 8, s{sO+2}")
    e("s_waitcnt vmcnt(0)")
    set_flag(e, sO+5, 28, 29)
    if "rb" in OPT:
        e("s_mov_b32 exec_lo, 0xffff", "s_mov_b32 exec_hi, 0", f"buffer_load_dword v28, v21, {sr(R_WS,4)}, s{sT+6} offen{SC}", "s_mov_b64 exec, -1")
    stamp(e, 6)
    sig(e, vHC, vH1, HCNT)
    gpoll(e, vFl, vHT, 0xffff, 0, sleep=F3SLEEP)
    stamp(e, 7)
    gemm_b(e)
    out_store(e, 1024)
    finish(e)

def f_out(e):
    e.lab("L_f3")
    e.c("---- output stage A")
    if "noH" in OPT or "noF" in OPT: finish(e)
    srds(e, (R_OUT,))
    lane_id(e)
    out_prep(e, "F")
    e(f"s_lshl_b32 s{sOut}, s{sTK}, 16", f"s_lshl_b32 s{sO}, s{sHP}, 6", f"s_add_u32 s{sOut}, s{sOut}, s{sO}")
    e(f"v_mov_b32 v{vHC}, {CNT}")
    pub(e, 0)
    stamp(e, 5)
    e(f"v_add_u32 v30, {WOA_L}, v{vWt}")
    e(f"s_mul_i32 s{sT+3}, s{sTK}, {32*REC}", f"s_add_u32 s{sT+3}, s{sT+3}, {OA}", f"s_mov_b32 s{sT+2}, s{sT+3}", f"s_mov_b32 s{sT+6}, 0")
    e(f"s_and_b32 s{sT+7}, s{sI}, 1", f"s_lshr_b32 s{sT+8}, s{sTK}, 1", f"s_lshl_b32 s{sT+8}, s{sT+8}, 13", f"s_add_u32 s{sT+8}, s{sT+8}, {F4}")
    e(f"s_mul_i32 s{sT+9}, s{sT+7}, {OS_POS}")
    if "nofast" not in OPT:
        e(f"s_add_u32 s{sO}, s{sT+3}, {FAST + 24*REC}", f"buffer_load_dword v6, v{vPo}, {sr(R_WS,4)}, s{sO} offen{SC}")
        e(f"s_add_u32 s{sO}, s{sO}, 8192", "s_mov_b64 exec, 0xffff", f"buffer_load_dword v6, v{vPo}, {sr(R_WS,4)}, s{sO} offen{SC}", "s_mov_b64 exec, -1")
    def gate(p, sleep):
        e(f"s_add_u32 s{sO+1}, s{sT+9}, {OS_L + p*OS_POS}")
        pry_wait(e, f"s{sO+1}", sleep=sleep)
    st = lambda hl, base, c0=0, c1=8: [(4*c + hl, base + 4*c) for c in range(c0, c1)]
    gate(3, PSL)
    if True:
        e(f"s_cmp_lg_u32 s{sI}, 1", "s_cbranch_scc1 L_np4")
        pub(e, 3, fast=True)
        e.lab("L_np4")
    gpoll_s(e, vPo, vHT, 0x05050505, 8)
    stamp(e, 16)
    fetch(e, 0, 0, 8, GO); fetch(e, 1, 0, 8, GO + 32)
    lds_wait(e, vHC, vHT, 44, HCNT, sleep=8)
    e(f"s_setprio {FM}")
    A01 = st(0, GO) + st(1, GO + 32)
    if "defer" not in OPT:
        mul_a(e, A01); mul_a(e, A01, pre=False, vm=True)
    stamp(e, 17)
    gate(5, 8)
    if "fpub" in OPT:
        e(f"s_cmp_lt_u32 s{sI}, 2", "s_cbranch_scc1 L_np5", "s_setprio 3")
        pub(e, 3, fast=True)
        e(f"s_setprio {FM}")
        e.lab("L_np5")
    CK = GO + 96
    if "nofast" in OPT: gpoll_s(e, vPo, vHT, 0x10101010, 4)
    else: e(f"s_mov_b32 s{sT+5}, {FAST}", f"s_add_u32 s{sT+2}, s{sT+3}, {FAST}")
    stamp(e, 18)
    fetch(e, 2, 0, 8, GO + 64, CK)
    A2 = st(2, GO + 64)
    mul_a(e, A2)
    verify(e, 0, 8, GO + 64, CK, 0, hl=2, sleep=4)
    mul_a(e, A2, pre=False)
    stamp(e, 19)
    gate(6, 3)
    mul_a(e, st(3, GO, 0, 4))
    if "nofast" in OPT: gpoll_s(e, vPo, vHT, 0x40404040, 1)
    CK = GO + 32
    fetch(e, 3, 0, 8, GO, CK)
    verify(e, 0, 4, GO, CK, 8)
    stamp(e, 9)
    mul_a(e, st(3, GO, 0, 4), pre=False)
    mul_a(e, st(3, GO, 4, 8))
    verify(e, 4, 8, GO, CK, 0)
    mul_a(e, st(3, GO, 4, 8), pre=False)
    out_store(e, 0)
    e(f"s_or_b32 s{sO}, s{sWG}, s{sI}", "s_cbranch_scc1 L_noep", f"s_mov_b32 s{sO}, {EPOCH_W}")
    set_flag(e, sO, 28, 29)
    e.lab("L_noep")
    finish(e)

def gen():
    e = Em()
    e.L.append(f".globl {KN}\n.p2align 8\n.type {KN},@function\n{KN}:")
    entry(e)
    h_kv(e)
    f_load(e)
    s_qproj(e)
    s_att(e)
    f_att(e)
    h_main(e)
    f_out(e)
    pub_routine(e)
    e.lab("L_codeend")
    exact(e)
    e.lab("L_end")
    e("s_endpgm")
    head = f"""; generated by work/gen15.py
; @launch grid=(256,1,1) block=(768,1,1) lds={LDS_BYTES}
.amdgcn_target "amdgcn-amd-amdhsa--gfx950"
.text
"""
    kd = f""".section .rodata,"a"
.p2align 6
.amdhsa_kernel {KN}
  .amdhsa_next_free_vgpr 168
  .amdhsa_next_free_sgpr 102
  .amdhsa_accum_offset 168
  .amdhsa_group_segment_fixed_size 0
  .amdhsa_kernarg_size 88
  .amdhsa_user_sgpr_count 2
  .amdhsa_user_sgpr_kernarg_segment_ptr 1
  .amdhsa_system_sgpr_workgroup_id_x 1
.end_amdhsa_kernel
"""
    return head + e.text() + kd

if __name__ == "__main__":
    args = [a for a in sys.argv[1:] if not a.startswith("-")]
    OPT.update(a[1:] for a in sys.argv[1:] if a.startswith("-"))
    if "stamps" in OPT: STAMPS = True
    OPT.update(("gate1", "wpf", "s3pub"))

    for o in OPT:
        if o.startswith("moff"): MOFF = float(o[4:])
        if o.startswith("bd"): BDEPTH = int(o[2:])
        if o.startswith("hm"): HM = int(o[2:])
        if o.startswith("ns"): NSAMP = int(o[2:])
        if o.startswith("ow"): OBW = int(o[2:])
        if o.startswith("sh"): SHOLD = int(o[2:])
        if o.startswith("hg"): HGATE = int(o[2:])
        if o.startswith("win"): WIN = int(o[3:])
        if o.startswith("osc"): OSC = " " + o[3:].replace("_", " ")
        if o.startswith("dly"): DLY = tuple(int(x) for x in o[3:].split("_"))
        if o.startswith("bs"): BSLEEP = int(o[2:])
    out = args[0] if args else f"cdna_kernels/{NAME}.s"
    open(out, "w").write(gen())
    print("wrote", out)
```

```python
import sys, math, struct

NAME = "concat_heads__grouped_kv_mqa__sliding_local_dilated__prompt"
KN = NAME + "_kernel"
def f32bits(x): return struct.unpack("<I", struct.pack("<f", x))[0]

class Em:
    def __init__(self): self.L = []; self.n = 0
    def __call__(self, *ss):
        for s in ss:
            if s.startswith("s_nop "):
                self.L += ["    s_nop 0"] * (int(s.split()[1]) + 1)
            else: self.L.append("    " + s)
    def lab(self, s): self.L.append(s + ":")
    def uniq(self, p): self.n += 1; return f"L_{p}_{self.n}"
    def c(self, s): self.L.append("    ; " + s)
    def text(self): return "\n".join(self.L) + "\n"

def vr(b, n): return f"v[{b}:{b+n-1}]" if n > 1 else f"v{b}"
def sr(b, n): return f"s[{b}:{b+n-1}]" if n > 1 else f"s{b}"

sWG, sW = 2, 3
R_XA, R_WQ, R_WKV, R_WOA, R_XB, R_WB, R_WOB, R_OUT, R_WS = 32, 36, 40, 44, 48, 52, 56, 60, 64
sRB, sCB, sTB, sHP, sSB, sKIND, sRET, sI = 72, 73, 74, 75, 76, 77, 78, 79
sT = 80
sO = 92
sPOLL, sEP, sSPIN, sIDX = 98, 99, 100, 101
sTAG = 71
SPIN_MAX = 60000
OB, OA, KW, VW, EPOCH_W, FL = 0, 2 << 20, 5 << 20, (5 << 20) + 65536, (5 << 20) + 131072, (5 << 20) + (256 << 10)
REC = 1280
F1, F3, F4 = FL, FL + (64 << 10), FL + (256 << 10)
WS_BYTES = 16 << 20
FAST = 8 << 20
K = 1024
LDS_BYTES = 160 * K
SLOT = 32 * K
WKV_L = 128 * K
QI_L, NM_L, CNT, PR_L = 144 * K, 152 * K, 156 * K + 512, 157 * K
HCNT, ACNT, GCNT, KVF, RDY1, QST, LAND, SOK = 0, 4, 8, 12, 16, 20, 32, 48
RINGS = 34 * K
RXO = 24 * K
OS_L, OS_POS, OS_PAIR = 72 * K, 9216, 2304
EX_L = 68 * K
TB_L = 159 * K
WOA_L, WOB_L = 34 * K, 0
BDEPTH, HM, F3SLEEP, WIN, BSLEEP = 4, 1, 16, 12, 0
PSL = 20
FTRY = 16
HGATE = 6
CSC = 0.25 * math.log2(math.e)
MOFF = 100.0
NSAMP = 4
YS = ()
YMODES = ('F', 'F0')
OBW = 0
LOF, LOS, FM = 2, 0, 2
SHOLD = 0
LMAX = 2.0 ** 120
MF32 = "v_mfma_f32_32x32x16_bf16"
MF16 = "v_mfma_f32_16x16x32_bf16"
STAMPS = False
OPT = set()
ST = 12 << 20
SC = " sc1"
OSC = ""

def stamp(e, k):
    if STAMPS: e("s_memrealtime s[30:31]", "s_waitcnt lgkmcnt(0)", f"s_mov_b32 s{8+k}, s30")
def cstamp(e, k):
    if STAMPS: e("s_memtime s[30:31]", "s_waitcnt lgkmcnt(0)", f"s_mov_b32 s{8+k}, s30")
def stamp_init(e):
    if not STAMPS: return
    for k in range(1, 22): e(f"s_mov_b32 s{8+k}, 0")
    e("s_mov_b32 s8, s6", "s_mov_b32 s20, s4")
DLY = None
def finish(e):
    if DLY is not None:
        l = e.uniq("dly")
        stamp(e, 15)
        e(f"s_cmp_lg_u32 s{sW}, {DLY[0]}", f"s_cbranch_scc1 {l}_d")
        e(f"s_sub_u32 s4, s{8+DLY[1]}, s8", "s_lshl_b32 s4, s4, 1", "s_add_u32 s4, s4, 4000", "s_min_u32 s4, s4, 40000")
        e.lab(l)
        e("s_sleep 2", "s_memrealtime s[30:31]", "s_waitcnt lgkmcnt(0)", "s_sub_u32 s5, s30, s8", "s_cmp_lt_u32 s5, s4", f"s_cbranch_scc1 {l}")
        e.lab(l + "_d")
        e("s_endpgm")
        return
    if STAMPS:
        stamp(e, 15); cstamp(e, 14)
        e(f"s_mul_i32 s30, s{sWG}, 12", f"s_add_u32 s30, s30, s{sW}", "s_lshl_b32 s30, s30, 7", f"s_add_u32 s30, s30, {ST}")
        e("s_mov_b64 exec, 1", "v_mov_b32 v0, 0")
        for k in range(22): e(f"v_mov_b32 v{4+k}, s{8+k}")
        for k in range(6): e(f"buffer_store_dwordx4 {vr(4+4*k,4)}, v0, {sr(R_WS,4)}, s30 offen offset:{16*k}")
    e("s_endpgm")

def dma(e, voff, R, soff, nt=False):
    e(f"buffer_load_dwordx4 v{voff}, {sr(R,4)}, s{soff} offen{' nt' if nt else ''} lds")
def spin_tail(e, l, sleep):
    e(f"s_sleep {sleep}", f"s_add_u32 s{sSPIN}, s{sSPIN}, 1", f"s_cmp_lt_u32 s{sSPIN}, {SPIN_MAX}", f"s_cbranch_scc1 {l}")
def lds_wait(e, vaddr, vtmp, target, off=0, sleep=1):
    l = e.uniq("poll")
    e.lab(l)
    e(f"ds_read_b32 v{vtmp}, v{vaddr} offset:{off}", "s_waitcnt lgkmcnt(0)", f"v_readfirstlane_b32 s{sPOLL}, v{vtmp}")
    e(f"s_cmp_ge_u32 s{sPOLL}, {target}", f"s_cbranch_scc1 {l}_d")
    spin_tail(e, l, sleep)
    e.lab(l + "_d")
def sig(e, vaddr, vone, off):
    e("s_mov_b64 exec, 1", f"ds_add_u32 v{vaddr}, v{vone} offset:{off}", "s_mov_b64 exec, -1")
def load_epoch(e):
    e(f"s_mov_b32 s{sEP}, {EPOCH_W}", f"s_load_dword s{sEP}, s[{R_WS}:{R_WS+1}], s{sEP}")
def get_epoch(e):
    e("s_waitcnt lgkmcnt(0)", f"s_add_u32 s{sEP}, s{sEP}, 1", f"s_mul_i32 s{sTAG}, s{sEP}, 0x9e3779b1")
def gpoll(e, vaddr, vtmp, lo, hi, sleep=1):
    l = e.uniq("gp")
    e(f"s_mov_b32 exec_lo, {hex(lo)}", f"s_mov_b32 exec_hi, {hex(hi)}")
    e.lab(l)
    e(f"buffer_load_dword v{vtmp}, v{vaddr}, {sr(R_WS,4)}, 0 offen sc1", "s_waitcnt vmcnt(0)")
    e(f"v_cmp_ne_u32 vcc, s{sEP}, v{vtmp}", "s_and_b64 exec, exec, vcc", f"s_cbranch_execz {l}_d")
    spin_tail(e, l, sleep)
    e.lab(l + "_d")
    e("s_mov_b64 exec, -1")
def gpoll_issue(e, vaddr, vtmp, lo):
    e(f"s_mov_b32 exec_lo, {hex(lo)}", "s_mov_b32 exec_hi, 0", f"buffer_load_dword v{vtmp}, v{vaddr}, {sr(R_WS,4)}, 0 offen sc1", "s_mov_b64 exec, -1")
def gpoll_finish(e, vaddr, vtmp, lo, younger, sleep=1):
    l = e.uniq("gp")
    e(f"s_mov_b32 exec_lo, {hex(lo)}", "s_mov_b32 exec_hi, 0", f"s_waitcnt vmcnt({younger})", f"s_branch {l}_c")
    e.lab(l)
    e(f"buffer_load_dword v{vtmp}, v{vaddr}, {sr(R_WS,4)}, 0 offen sc1", "s_waitcnt vmcnt(0)")
    e.lab(l + "_c")
    e(f"v_cmp_ne_u32 vcc, s{sEP}, v{vtmp}", "s_and_b64 exec, exec, vcc", f"s_cbranch_execz {l}_d")
    spin_tail(e, l, sleep)
    e.lab(l + "_d")
    e("s_mov_b64 exec, -1")
def set_flag(e, soff, va, vd):
    e(f"v_mov_b32 v{va}, 0", f"v_mov_b32 v{vd}, s{sEP}", "s_mov_b64 exec, 1")
    e(f"buffer_store_dword v{vd}, v{va}, {sr(R_WS,4)}, s{soff} offen sc1", "s_mov_b64 exec, -1")
def mk_ck(e, dst, d):
    e(f"v_xad_u32 v{dst}, v{d}, s{sTAG}, v{d+1}", f"v_xad_u32 v{dst}, v{dst}, v{d+2}, v{d+3}")
def chk(e, acc, tmp, d, ck, first):
    mk_ck(e, tmp, d)
    e(f"v_xor_b32 v{acc}, v{tmp}, v{ck}" if first else f"v_bitop3_b32 v{acc}, v{acc}, v{tmp}, v{ck} bitop3:0xf6")
def lane_id(e):
    e("v_mbcnt_lo_u32_b32 v0, -1, 0", "v_mbcnt_hi_u32_b32 v0, -1, v0")
def xa_voff(e, b, t):
    e(f"v_lshrrev_b32 v{t}, 4, v0", f"v_and_b32 v{b}, 15, v0", f"v_xor_b32 v{b}, v{b}, v{t}", f"v_lshlrev_b32 v{b}, 4, v{b}")
    e(f"v_lshl_add_u32 v{b}, v{t}, 10, v{b}")
def halfmax(e, m):
    e(f"v_mov_b32 v{m+1}, v{m}", "s_nop 1", f"v_permlane32_swap_b32 v{m}, v{m+1}", "s_nop 0", f"v_max_f32 v{m}, v{m}, v{m+1}")
def negmax(e, S, m):
    e(f"v_max3_f32 v{m}, v{S}, v{S+1}, v{S+2}")
    for k in range(3, 15, 2): e(f"v_max3_f32 v{m}, v{m}, v{S+k}, v{S+k+1}")
    e(f"v_max_f32 v{m}, v{m}, v{S+15}")
    halfmax(e, m)
    e(f"v_sub_f32 v{m}, {hex(f32bits(-MOFF))}, v{m}")

def entry(e):
    e(f"s_cmp_ge_u32 s{sWG}, 256", "s_cbranch_scc1 L_end")
    e(f"s_and_b32 s{sO}, s{sWG}, 8", f"s_add_u32 s{sO}, s{sO}, 16")
    for R, off in ((R_XA, 0), (R_WQ, 8), (R_WS, 80)): e(f"s_load_dwordx2 s[{R}:{R+1}], s[0:1], {off}")
    e(f"s_load_dwordx2 s[{R_WKV}:{R_WKV+1}], s[0:1], s{sO}")
    if STAMPS: e("s_memrealtime s[6:7]", "s_memtime s[4:5]")
    e("v_lshrrev_b32 v1, 6, v0", "v_and_b32 v0, 63, v0")
    e(f"s_lshr_b32 s{sO+1}, s{sWG}, 3")
    e(f"v_readfirstlane_b32 s{sW}, v1")
    e(f"s_and_b32 s{sO}, s{sWG}, 7", f"s_lshl_b32 s{sIDX}, s{sO}, 5", f"s_add_u32 s{sIDX}, s{sIDX}, s{sO+1}")
    e(f"s_and_b32 s{sI}, s{sW}, 3", f"s_cmp_lt_u32 s{sW}, 8", "s_cbranch_scc1 L_nopf")
    e(f"s_getpc_b64 s[{sO+2}:{sO+3}]")
    e.lab("L_pc")
    e(f"s_lshl_b32 s{sO}, s{sO+1}, 2", f"s_add_u32 s{sO}, s{sO}, s{sI}", f"s_and_b32 s{sO}, s{sO}, 31", f"s_lshl_b32 s{sO}, s{sO}, 10")
    e(f"v_lshl_add_u32 v2, v0, 7, s{sO}", f"v_min_u32 v2, L_codeend-L_pc-4, v2", "s_mov_b64 exec, 0xff")
    e(f"global_load_dword v167, v2, s[{sO+2}:{sO+3}]", "s_mov_b64 exec, -1")
    e.lab("L_nopf")
    e(f"s_lshr_b32 s{sRB}, s{sIDX}, 3", f"s_and_b32 s{sCB}, s{sIDX}, 7", f"s_lshr_b32 s{sTB}, s{sIDX}, 4", f"s_and_b32 s{sHP}, s{sIDX}, 15")
    e(f"s_lshr_b32 s{sSB}, s{sCB}, 1", f"s_and_b32 s{sKIND}, s{sCB}, 1", f"s_mov_b32 s{sSPIN}, 0")
    for R, n in ((R_XA, 2 << 20), (R_WKV, 16384), (R_WQ, 512 << 10), (R_WS, WS_BYTES)):
        e(f"s_mov_b32 s{R+2}, {hex(n)}", f"s_mov_b32 s{R+3}, 0x20000")
    e(f"s_cmp_ge_u32 s{sW}, 8", "s_cbranch_scc1 L_q", f"s_cmp_ge_u32 s{sW}, 4", "s_cbranch_scc1 L_aux")
def srds(e, lst):
    size = {R_WOA: 512 << 10, R_XB: 2 << 20, R_WB: 1536 << 10, R_WOB: 512 << 10, R_OUT: 4 << 20}
    slot = {R_WOA: 32, R_XB: 40, R_WB: 48, R_WOB: 56, R_OUT: 64}
    for R in lst: e(f"s_load_dwordx2 s[{R}:{R+1}], s[0:1], {slot[R]}", f"s_mov_b32 s{R+2}, {hex(size[R])}", f"s_mov_b32 s{R+3}, 0x20000")

vHC, vH1, vHT = 5, 6, 7
def h_kv(e):
    fx, fw, acc = 32, 48, 24
    e.c("---- H: K/V projection")
    e("s_setprio 3")
    xa_voff(e, 8, 12)
    for z in range(1, 4): e(f"v_xor_b32 v{8+z}, {z<<6}, v8")
    e("v_lshlrev_b32 v12, 4, v0")
    e(f"s_add_u32 s{sO+3}, s{sRB}, s{sI}", f"s_and_b32 s{sO+3}, s{sO+3}, 3")
    e(f"s_lshr_b32 s{sO+1}, s{sIDX}, 1", f"s_lshl_b32 s{sO+1}, s{sO+1}, 14", f"s_lshl_b32 s{sO+2}, s{sO+3}, 8", f"s_add_u32 s{sO+1}, s{sO+1}, s{sO+2}")
    e(f"s_lshl_b32 s{sT}, s{sI}, 15", f"s_lshl_b32 s{sO+2}, s{sSB}, 12", f"s_add_u32 s{sT}, s{sT}, s{sO+2}")
    e(f"s_lshl_b32 s{sT+1}, s{sI}, 12", f"s_add_u32 s{sT+1}, s{sT+1}, {WKV_L}", f"s_lshl_b32 s{sO+3}, s{sO+3}, 12")
    e("s_waitcnt lgkmcnt(0)")
    for z in range(4):
        e(f"s_add_u32 m0, s{sT}, {z*1024}", f"s_add_u32 s{sO}, s{sO+1}, {z*4096}")
        dma(e, 8 + z, R_XA, sO, nt=True)
        e(f"s_add_u32 m0, s{sT+1}, {z*1024}", f"s_add_u32 s{sO}, s{sO+3}, {z*1024}")
        dma(e, 12, R_WKV, sO)
    load_epoch(e)
    e("s_barrier")
    stamp_init(e)
    e(f"v_mov_b32 v{vHC}, {CNT}", f"v_mov_b32 v{vH1}, 1")
    e("v_and_b32 v2, 15, v0", "v_lshrrev_b32 v3, 4, v0", "v_xor_b32 v4, v2, v3", "v_lshlrev_b32 v4, 4, v4", "v_lshl_add_u32 v4, v2, 8, v4")
    e(f"v_add_u32 v8, s{sT}, v4")
    for q in range(1, 4): e(f"v_xor_b32 v{8+q}, {q<<6}, v8")
    e("v_bfe_u32 v4, v0, 2, 2", "v_lshl_add_u32 v4, v3, 3, v4", "v_lshlrev_b32 v4, 5, v4", "v_and_b32 v13, 3, v0", "v_lshl_add_u32 v4, v13, 3, v4")
    e(f"v_add_u32 v13, s{sT+1}, v4", f"v_add_u32 v14, s{sT+1}, v12")
    e(f"s_lshl_b32 s{sO}, s{sI}, 2", f"v_add_u32 v15, s{sO}, v{vHC}")
    e(f"s_lshl_b32 s{sO}, s{sRB}, 11")
    e(f"s_lshr_b32 s{sO+1}, s{sSB}, 1", f"s_lshl_b32 s{sO+1}, s{sO+1}, 10", f"s_and_b32 s{sO+2}, s{sSB}, 1", f"s_lshl_b32 s{sO+2}, s{sO+2}, 8")
    e(f"s_add_u32 s{sO+1}, s{sO+1}, s{sO+2}", f"s_add_u32 s{sO+1}, s{sO+1}, {KW}")
    e(f"s_lshl_b32 s{sO+2}, s{sSB}, 9", f"s_add_u32 s{sO+2}, s{sO+2}, {VW}")
    e(f"s_cmp_eq_u32 s{sKIND}, 0", f"s_cselect_b32 s{sO+1}, s{sO+1}, s{sO+2}", f"s_cselect_b32 s{sO+2}, 9, 8", f"s_add_u32 s{sO+4}, s{sO}, s{sO+1}")
    e("v_and_b32 v4, 1, v3", f"v_lshlrev_b32 v4, s{sO+2}, v4", "v_lshl_add_u32 v20, v2, 4, v4")
    e(f"s_lshl_b32 s{sO+5}, s{sIDX}, 7", f"s_add_u32 s{sO+5}, s{sO+5}, {F1}")
    get_epoch(e)
    e("s_waitcnt vmcnt(0)")
    stamp(e, 1)
    for q in range(4):
        e(f"ds_read_b128 {vr(fx+4*q,4)}, v{8+q}")
        e(f"ds_read_b64_tr_b16 {vr(fw+4*q,2)}, v13 offset:{q*1024}", f"ds_read_b64_tr_b16 {vr(fw+4*q+2,2)}, v13 offset:{q*1024+128}")
    sig(e, 15, vH1, LAND)
    e(f"s_cmp_lg_u32 s{sKIND}, 0", "s_cbranch_scc1 L_kv_v")
    for kind in range(2):
        for q in range(4):
            a, b = (fw, fx) if kind == 0 else (fx, fw)
            e(f"s_waitcnt lgkmcnt({10-3*q})", f"{MF16} {vr(acc,4)}, {vr(a+4*q,4)}, {vr(b+4*q,4)}, {'0' if q == 0 else vr(acc,4)}")
        if kind == 0:
            e("s_branch L_kv_d"); e.lab("L_kv_v")
    e.lab("L_kv_d")
    e(f"s_cmp_eq_u32 s{sI}, 0", "s_cbranch_scc1 L_kv_0", "s_nop 5")
    e(f"ds_write_b128 v14, {vr(acc,4)}")
    sig(e, vHC, vH1, HCNT)
    e("s_branch L_h2")
    e.lab("L_kv_0")
    lds_wait(e, vHC, vHT, 3, HCNT, sleep=0)
    for k in range(1, 4): e(f"ds_read_b128 {vr(fx+4*k,4)}, v14 offset:{k*4096}")
    e("s_waitcnt lgkmcnt(1)")
    for k in range(2): e(f"v_pk_add_f32 {vr(fx+4+2*k,2)}, {vr(fx+4+2*k,2)}, {vr(fx+8+2*k,2)}")
    e("s_waitcnt lgkmcnt(0)")
    for k in range(2): e(f"v_pk_add_f32 {vr(acc+2*k,2)}, {vr(acc+2*k,2)}, {vr(fx+12+2*k,2)}")
    for k in range(2): e(f"v_pk_add_f32 {vr(acc+2*k,2)}, {vr(acc+2*k,2)}, {vr(fx+4+2*k,2)}")
    e(f"v_cvt_pk_bf16_f32 v28, v{acc}, v{acc+1}", f"v_cvt_pk_bf16_f32 v29, v{acc+2}, v{acc+3}", "s_nop 1")
    e("v_permlane32_swap_b32 v28, v30", "v_permlane32_swap_b32 v29, v31", "s_mov_b32 exec_hi, 0", "s_nop 0")
    e(f"buffer_store_dwordx4 v[28:31], v20, {sr(R_WS,4)}, s{sO+4} offen{SC}", "s_mov_b64 exec, -1")
    if "gate1" in OPT: sig(e, vHC, vH1, KVF)
    sig(e, vHC, vH1, HCNT)
    stamp(e, 2)
    e("s_waitcnt vmcnt(0)")
    set_flag(e, sO+5, 2, 3)
    if "gate2" in OPT: sig(e, vHC, vH1, KVF)
    stamp(e, 3)
    e("s_branch L_h2")

vT0, vQ16, vAN, vT1, AQ, AK, AV, S0, S1, AO, ANM = 0, 1, 2, 3, 4, 8, 40, 104, 120, 136, 152
vVo, vFa, vC, v1_ = S1, S1+1, S1+2, S1+3
def zero_pr(e):
    e(f"s_lshl_b32 s{sO}, s{sW}, 8", f"s_add_u32 m0, s{sO}, {PR_L - 1024}", "v_mov_b32 v2, 0", "ds_write_addtid_b32 v2")
def f_load(e):
    e.lab("L_aux")
    e.c("---- F: bulk loads")
    zero_pr(e)
    xa_voff(e, 8, 12)
    e(f"s_lshl_b32 s{sO}, s{sI}, 6", f"v_xor_b32 v8, s{sO}, v8")
    e("v_lshrrev_b32 v2, 3, v0", "v_bfe_u32 v3, v0, 4, 1", "v_lshlrev_b32 v3, 2, v3", "v_and_b32 v4, 7, v0", "v_xor_b32 v4, v4, v3")
    e("v_lshlrev_b32 v4, 4, v4", "v_lshl_add_u32 v12, v2, 10, v4")
    e(f"s_lshl_b32 s{sT}, s{sI}, 12")
    e(f"s_lshl_b32 s{sT+1}, s{sI}, 15", f"s_lshl_b32 s{sO}, s{sCB}, 7", f"s_add_u32 s{sT+1}, s{sT+1}, s{sO}")
    e(f"s_lshl_b32 s{sT+2}, s{sRB}, 16", f"s_add_u32 s{sT+2}, s{sT+2}, s{sT}", f"s_lshl_b32 s{sT+9}, s{sI}, 10")
    for du in range(1, 4):
        e(f"s_add_u32 s{sO}, s{sSB}, {du}", f"s_and_b32 s{sO}, s{sO}, 3")
        e(f"s_lshl_b32 s{sT+2+du}, s{sO}, 14", f"s_add_u32 s{sT+2+du}, s{sT+2+du}, s{sT+2}")
        e(f"s_lshl_b32 s{sT+5+du}, s{sO}, 12", f"s_add_u32 s{sT+5+du}, s{sT+5+du}, s{sT+9}")
    e(f"v_mov_b32 v{vC}, {CNT}", f"v_mov_b32 v{v1_}, 1")
    e("s_waitcnt lgkmcnt(0)")
    load_epoch(e)
    e("s_barrier")
    def chunk(sg):
        e(f"s_add_u32 s{sO+1}, s{sRB}, {sg}", f"s_and_b32 s{sO+1}, s{sO+1}, 3", f"s_lshl_b32 s{sO+2}, s{sO+1}, 8")
        e(f"s_lshl_b32 s{sO+1}, s{sO+1}, 17", f"s_add_u32 s{sO+1}, s{sO+1}, s{sT+1}")
        for i in range(4):
            e(f"s_add_u32 m0, s{sT}, {sg*SLOT + 16384 + i*1024}", f"s_add_u32 s{sO}, s{sO+1}, {i*8192}")
            dma(e, 12, R_WQ, sO)
        for du in range(1, 4):
            e(f"s_add_u32 m0, s{sT+5+du}, {sg*SLOT}", f"s_add_u32 s{sO}, s{sT+2+du}, s{sO+2}")
            dma(e, 8, R_XA, sO, nt=True)
    gated = "gate1" in OPT or "gate2" in OPT
    nb = 2 if gated else 4
    for sg in range(nb): chunk(sg)
    stamp_init(e)
    if gated:
        att_consts(e)
        get_epoch(e)
        e("s_waitcnt vmcnt(7)"); sig(e, vC, v1_, LAND)
        lds_wait(e, vC, S0, 1, KVF, sleep=1)
        chunk(2)
        e("s_waitcnt vmcnt(7)"); sig(e, vC, v1_, LAND + 4)
        chunk(3)
        stamp(e, 1)
        for sg in range(2, 4):
            e(f"s_waitcnt vmcnt({21-7*sg})"); sig(e, vC, v1_, LAND + 4*sg)
    else:
        stamp(e, 1)
        for sg in range(4):
            e(f"s_waitcnt vmcnt({21-7*sg})"); sig(e, vC, v1_, LAND + 4*sg)
        att_consts(e)
        get_epoch(e)
    stamp(e, 2)
    e("s_branch L_f2")

sAW, sP, sExp = sT+8, sT+9, sT+10
def att_consts(e):
    e(f"v_and_b32 v{S0}, 31, v0", f"v_cmp_eq_u32 vcc, 16, v{S0}", f"v_mov_b32 v{S0+1}, 0x3f803f80", f"v_lshlrev_b32 v{vQ16}, 4, v0")
    e(f"v_cndmask_b32 v{AV}, 0, v{S0+1}, vcc")
    for r in range(1, 64): e(f"v_mov_b32 v{AV+r}, v{AV}")
    e(f"v_lshlrev_b32 v{vAN}, 4, v{S0}", f"v_add_u32 v{vAN}, {NM_L}, v{vAN}")
    e(f"v_lshrrev_b32 v{vVo}, 5, v0", f"v_lshlrev_b32 v{vVo}, 8, v{vVo}", f"v_and_b32 v{S0+2}, 15, v0", f"v_lshl_add_u32 v{vVo}, v{S0+2}, 4, v{vVo}")
def gather_bases(e):
    e(f"s_sub_u32 s{sAW}, s{sW}, 4", f"s_lshl_b32 s{sO+2}, s{sAW}, 13")
    e(f"s_add_u32 s{sO}, s{sO+2}, {KW}", f"s_add_u32 s{sO+1}, s{sO+2}, {VW}", f"s_add_u32 s{sO+2}, s{sO}, 4096", f"s_add_u32 s{sO+3}, s{sO+1}, 4096")
def gather(e, t0, t1):
    for t in range(t0, t1):
        e(f"buffer_load_dwordx4 {vr(AK+4*t,4)}, v{vQ16}, {sr(R_WS,4)}, s{sO+2*(t>>2)} offen offset:{(t&3)*1024}{SC}")
        e("s_mov_b32 exec_lo, 0xffff", "s_mov_b32 exec_hi, 0xffff")
        for f in (2*t, 2*t+1):
            e(f"buffer_load_dwordx4 {vr(AV+4*f,4)}, v{vVo}, {sr(R_WS,4)}, s{sO+1+2*(t>>2)} offen offset:{(f&7)*512}{SC}")
        e("s_mov_b64 exec, -1")
def att_addrs(e):
    e(f"s_mul_i32 s{sExp}, s{sI}, {OS_PAIR}", f"s_add_u32 s{sExp}, s{sExp}, {OS_L}")
    e(f"v_add_u32 v{vT1}, s{sExp}, v{vQ16}", f"v_lshl_add_u32 v{vT0}, v0, 2, s{sExp}", f"v_add_u32 v{vQ16}, {QI_L}, v{vQ16}")
    e(f"s_lshl_b32 s{sO+4}, s{sI}, 8", f"s_add_u32 m0, s{sO+4}, {PR_L}")

def s_qproj(e):
    vXa, vWa, vXb, vWb, vSt, vLd = 8, 16, 17, 25, 26, 27
    acc, fr, NF, T = 104, 124, 5, 28
    a_, b_, c_, d_ = T, T+1, T+2, T+3
    e.lab("L_q")
    e.c("---- S: Q projection")
    zero_pr(e)
    e(f"s_mov_b32 m0, {CNT}", "s_nop 0", "ds_write_addtid_b32 v2", "s_waitcnt lgkmcnt(0)")
    load_epoch(e)
    e("s_barrier")
    stamp_init(e)
    e(f"v_mov_b32 v{vC}, {CNT}", f"v_mov_b32 v{v1_}, 1")
    if "tlb" in OPT:
        e("s_load_dwordx8 s[44:51], s[0:1], 32", "s_load_dwordx2 s[52:53], s[0:1], 64", "s_waitcnt lgkmcnt(0)")
        e(f"s_mov_b32 s{sO}, 0x200000", f"s_mov_b32 s{sO+1}, 0x1ffffc")
        for k, R in enumerate((44, 46, 48, 50, 52, R_WS)): e(f"s_load_dword s{54+k}, s[{R}:{R+1}], 0")
        e(f"s_load_dword s60, s[52:53], s{sO}", f"s_load_dword s61, s[{R_WS}:{R_WS+1}], s{sO}", f"s_load_dword s62, s[46:47], s{sO+1}")
    att_consts(e)
    e(f"s_and_b32 s{sO}, s{sI}, 1", f"s_lshl_b32 s{sO}, s{sO}, 13")
    e(f"v_and_b32 v{a_}, 31, v0", f"v_lshrrev_b32 v{b_}, 5, v0", f"v_and_b32 v{c_}, 15, v0", f"v_xor_b32 v{c_}, v{c_}, v{b_}")
    e(f"v_lshl_add_u32 v{d_}, v{a_}, 8, s{sO}", f"v_lshl_add_u32 v{vXa}, v{c_}, 4, v{d_}")
    for s in range(1, 8): e(f"v_xor_b32 v{vXa+s}, {s<<5}, v{vXa}")
    e(f"v_bfe_u32 v{a_}, v0, 2, 2", f"v_lshl_add_u32 v{c_}, v{b_}, 3, v{a_}", f"v_lshlrev_b32 v{c_}, 7, v{c_}", f"v_lshrrev_b32 v{a_}, 1, v{a_}")
    e(f"s_lshr_b32 s{sO}, s{sI}, 1", f"v_xor_b32 v{a_}, s{sO}, v{a_}", f"v_lshl_add_u32 v{c_}, v{a_}, 6, v{c_}")
    e(f"v_bfe_u32 v{a_}, v0, 4, 1", f"v_lshl_add_u32 v{c_}, v{a_}, 5, v{c_}", f"v_and_b32 v{a_}, 3, v0", f"v_lshl_add_u32 v{c_}, v{a_}, 3, v{c_}")
    e(f"v_add_u32 v{vWa}, 16384, v{c_}", f"v_lshl_add_u32 v{vLd}, v{a_}, 2, v{vC}")
    for s in range(9): e(f"v_add_u32 v{vXb+s}, 65536, v{vXa+s}")
    get_epoch(e)
    e(f"s_mov_b32 s{sT+6}, {hex(f32bits(CSC))}")
    e(f"s_and_b32 s{sO}, s{sI}, 2", f"s_add_u32 s{sO}, s{sO}, s{sI}", f"s_lshl_b32 s{sO}, s{sO}, 10", f"s_add_u32 s{sO}, s{sO}, {QI_L}", f"v_add_u32 v{b_}, s{sO}, v{vQ16}")
    e(f"s_lshl_b32 s{sO}, s{sI}, 2", f"v_add_u32 v{vFa}, s{sO}, v{vC}")
    gather_bases(e)
    def landwait(mask):
        lq = e.uniq("ql")
        e.lab(lq)
        e(f"ds_read_b32 v{a_}, v{vLd} offset:{LAND}", "s_waitcnt lgkmcnt(0)", f"v_cmp_gt_u32 vcc, 5, v{a_}")
        e(f"s_and_b32 s{sO+5}, vcc_lo, 15", f"s_and_b32 s{sO+4}, s{sO+5}, {mask}", f"s_cbranch_scc0 {lq}_d")
        spin_tail(e, lq, 1)
        e.lab(lq + "_d")
    def rd(n):
        sg, s = n >> 3, n & 7
        so = (sg & 1) * SLOT
        xa, wa = (vXa + s, vWa) if sg < 2 else (vXb + s, vWb)
        f = fr + 8 * (n % NF)
        e(f"ds_read_b128 {vr(f,4)}, v{xa} offset:{so}")
        e(f"ds_read_b64_tr_b16 {vr(f+4,2)}, v{wa} offset:{so+s*2048}", f"ds_read_b64_tr_b16 {vr(f+6,2)}, v{wa} offset:{so+s*2048+512}")
    e("s_setprio 3")
    landwait(1)
    stamp(e, 16)
    for n in range(NF): rd(n)
    for n in range(32):
        f = fr + 8 * (n % NF)
        e(f"s_waitcnt lgkmcnt({min(3*(NF-1), 3*(31-n))})", f"{MF32} {vr(acc,16)}, {vr(f+4,4)}, {vr(f,4)}, {'0' if n == 0 else vr(acc,16)}")
        if n + NF < 32:
            if (n + NF) % 8 == 0:
                bit = 1 << ((n + NF) >> 3)
                sk = e.uniq("lok")
                e(f"s_and_b32 s{sO+4}, s{sO+5}, {bit}", f"s_cbranch_scc0 {sk}")
                landwait(bit)
                e.lab(sk)
                if "qst" in OPT: stamp(e, 16 + ((n + NF) >> 3))
            rd(n + NF)
    if "qst" in OPT: stamp(e, 20)
    e(f"v_mov_b32 v{c_}, s{sT+6}", "s_nop 10")
    for r in range(8): e(f"v_pk_mul_f32 {vr(acc+2*r,2)}, {vr(acc+2*r,2)}, {vr(c_,2)} op_sel_hi:[1,0]")
    P = AO
    for j in range(8): e(f"v_cvt_pk_bf16_f32 v{P+j}, v{acc+2*j}, v{acc+2*j+1}")
    e(f"ds_write_b128 v{b_}, {vr(P,4)}", f"ds_write_b128 v{b_}, {vr(P+4,4)} offset:2048")
    sig(e, vC, v1_, ACNT)
    stamp(e, 2)
    lds_wait(e, vFa, S0+2, 1, SOK)
    lds_wait(e, vC, S0+2, 4, GCNT, sleep=2)
    if "sl" in OPT: lds_wait(e, vC, S0+2, 8, QST, sleep=2)
    if "sdelay" in OPT: lds_wait(e, vC, S0+2, 1, RDY1)
    stamp(e, 7)
    gather(e, 0, 8)
    sig(e, vC, v1_, GCNT)

def pk(S, j):
    d = S + (j if j < 4 else 4 + j)
    return f"v_cvt_pk_bf16_f32 v{d}, v{S+2*j}, v{S+2*j+1}"
def rdq(e):
    e(f"ds_read_b128 {vr(AQ,4)}, v{vQ16}")
    for k in range(4): e(f"ds_read_b128 {vr(ANM+4*k,4)}, v{vAN}")
def dump(e, kind):
    e(f"ds_write_b128 v{vT1}, {vr(AO,4)}", f"ds_write_b128 v{vT1}, {vr(AO+4,4)} offset:1024", f"ds_write_b32 v{vT0}, v{AO+8} offset:2048")
    e(f"ds_write_addtid_b32 v{vT1} offset:{0 if kind == 'F' else 1024}")
def advance(e):
    e(f"v_add_u32 v{vT1}, {OS_POS}, v{vT1}", f"v_add_u32 v{vT0}, {OS_POS}, v{vT0}")
def init_o(e, off):
    e(f"ds_read_b128 {vr(AO,4)}, v{vT1} offset:{off}", f"ds_read_b128 {vr(AO+4,4)}, v{vT1} offset:{off+1024}", f"ds_read_b32 v{AO+8}, v{vT0} offset:{off+2048}")

def att_block(e, mode):
    kind = "F" if mode[0] == "F" else "S"
    lo = LOF if kind == "F" else LOS
    def prio(p):
        if YS and mode in YMODES: return
        if mode != "B" and "noprio" not in OPT: e(f"s_setprio {p}")
        elif mode == "B" and "btog" in OPT: e(f"s_setprio {p}")
    for t in range(8):
        Sc, Sn = (S0, S1) if t % 2 == 0 else (S1, S0)
        tp, tn = (t - 1) % 8, (t + 1) % 8
        def X(*toks):
            for k in toks:
                X1(k)
                if YS and mode in YMODES and k in YS: e("s_nop 0")
        def X1(*toks):
            for k in toks: e(f"v_exp_f32 v{Sc+k}, v{Sc+k}" if isinstance(k, int) else pk(Sc, int(k[1:])))
        c0 = "0" if (t == 1 and kind == "F") else vr(AO, 16)
        pv0 = f"{MF32} {vr(AO,16)}, {vr(AV+8*tp,4)}, {vr(Sn,4)}, {c0}"
        pv1 = f"{MF32} {vr(AO,16)}, {vr(AV+8*tp+4,4)}, {vr(Sn+8,4)}, {vr(AO,16)}"
        qk = f"{MF32} {vr(Sn,16)}, {vr(AK+4*tn,4)}, {vr(AQ,4)}, {vr(ANM,16)}"
        if t == 1 and kind == "S":
            X(0); e(pk(Sn, 7)); X(1, 2)
            e("s_waitcnt lgkmcnt(0)", pv0); X(3, "p0", 4, "p1")
            e(pv1); X(5, 6, "p2", 7)
            e(qk); prio(lo)
            X(8, "p3", 9, 10, "p4", 11, 12)
            e("s_wakeup")
            prio(3)
            X("p5", 13, 14, "p6", 15)
            continue
        skip_pv = mode == "F0" and t == 0
        if mode == "F0" and t > 0: e(f"s_waitcnt vmcnt({max(0, 23 - 3*(t+1))})")
        if not skip_pv: e(pv0)
        X(0)
        if not skip_pv: e(pk(Sn, 7))
        X(1, 2)
        if not skip_pv: e(pv1)
        X(3, "p0", 4, "p1")
        if t == 7: e("s_waitcnt lgkmcnt(0)")
        if t == 7 and mode == "B": e(f"v_readfirstlane_b32 s{sPOLL}, v{Sn+4}")
        if skip_pv: e("s_waitcnt vmcnt(20)")
        e(qk)
        prio(lo)
        X(5, 6, "p2", 7, 8, "p3")
        if t == 0 and mode != "F0":
            if YS and mode in YMODES and not any(k in YS for k in (5, 6, 7, 8)): e("s_nop 0")
            if mode == "S":
                dump(e, kind); init_o(e, OS_POS); advance(e)
            elif mode == "F":
                dump(e, kind); advance(e)
            else:
                sk = e.uniq("nodump")
                e(f"s_cmp_eq_u32 s{sP}, {1 if mode == 'F' else 0}", f"s_cbranch_scc1 {sk}")
                dump(e, kind); advance(e)
                if mode == "B": e(f"s_add_u32 s{sExp}, s{sExp}, {OS_POS}")
                e.lab(sk)
                if mode == "B":
                    e(f"s_cmp_ge_u32 s{sPOLL}, s{sExp}", "s_cbranch_scc0 L_swait")
                    e.lab("L_swait_ret")
                    init_o(e, 0)
        X(9)
        if t == 6:
            if mode == "F0":
                e(f"v_mov_b32 v{Sc+4}, {CNT}")
                lds_wait(e, Sc+4, Sc+5, 8, ACNT, sleep=1)
            e(f"v_add_u32 v{vQ16}, 1024, v{vQ16}", f"v_add_u32 v{vAN}, 512, v{vAN}")
            rdq(e)
            if mode == "B": e(f"ds_read_addtid_b32 v{Sc+4}")
        X(10, "p4", 11, 12)
        w = WIN if kind == "F" else 12
        if w == 12: prio(3)
        X("p5", 13)
        if w == 13: prio(3)
        X(14)
        if w == 14: prio(3)
        X("p6", 15)
        if w == 15: prio(3)

def att_finish(e, kind):
    e(f"{MF32} {vr(AO,16)}, {vr(AV+8*7,4)}, {vr(S1,4)}, {vr(AO,16)}", pk(S1, 7), "s_nop 1")
    e(f"{MF32} {vr(AO,16)}, {vr(AV+8*7+4,4)}, {vr(S1+8,4)}, {vr(AO,16)}", "s_nop 11")
    dump(e, kind)
    e("s_waitcnt lgkmcnt(0)", "s_wakeup")
def qk0(e):
    e(f"{MF32} {vr(S0,16)}, {vr(AK,4)}, {vr(AQ,4)}, {vr(ANM,16)}", "s_nop 11")

def f_att(e):
    e.lab("L_f2")
    e("s_setprio 3")
    gather_bases(e)
    e(f"s_lshl_b32 s{sO+4}, s{sI}, 12", f"s_add_u32 s{sO+4}, s{sO+4}, {F1}", f"v_lshl_add_u32 v{vFa}, v0, 7, s{sO+4}")
    stamp(e, 6)
    gpoll(e, vFa, S0, 0xffffffff, 0, sleep=1)
    stamp(e, 7)
    gather(e, 0, 8)
    sig(e, vC, v1_, GCNT)
    att_addrs(e)
    stamp(e, 8)
    lds_wait(e, vC, S0, 1, RDY1, sleep=0)
    rdq(e)
    e(f"s_mov_b32 s{sP}, 1", "s_waitcnt vmcnt(23) lgkmcnt(0)")
    stamp(e, 3); cstamp(e, 13)
    qk0(e)
    att_block(e, "F0")
    stamp(e, 21); cstamp(e, 10)
    e.L.append("    .p2align 3")
    e.lab("L_floop")
    att_block(e, "F")
    e(f"s_add_u32 s{sP}, s{sP}, 1", f"s_cmp_lt_u32 s{sP}, 8", "s_cbranch_scc1 L_floop")
    att_finish(e, "F")
    stamp(e, 4); cstamp(e, 11)
    e("s_branch L_f3")

def s_att(e):
    att_addrs(e)
    e(f"s_mov_b32 s{sP}, 0", f"v_mov_b32 v{S0}, m0", "s_setprio 0")
    stamp(e, 8)
    if SHOLD: lds_wait(e, vC, S0+1, SHOLD, HCNT, sleep=16)
    lds_wait(e, S0, S0+1, 1, sleep=6)
    rdq(e)
    e("s_waitcnt vmcnt(0) lgkmcnt(0)")
    stamp(e, 3); cstamp(e, 13)
    qk0(e)
    e.L.append("    .p2align 3")
    e.lab("L_bloop")
    att_block(e, "B")
    e(f"s_add_u32 s{sP}, s{sP}, 1", f"s_cmp_ge_u32 s{sP}, 8", "s_cbranch_scc1 L_sfin")
    e(f"s_cmp_lt_u32 s{sPOLL}, {OS_L + 7*OS_POS}", "s_cbranch_scc1 L_bloop")
    stamp(e, 5)
    e("s_setprio 3")
    e.L.append("    .p2align 3")
    e.lab("L_sloop")
    att_block(e, "S")
    e(f"s_add_u32 s{sP}, s{sP}, 1")
    if STAMPS:
        e(f"s_cmp_lg_u32 s{sP}, 4", "s_cbranch_scc1 L_sns"); stamp(e, 4); cstamp(e, 10); e.lab("L_sns")
    e(f"s_cmp_lt_u32 s{sP}, 8", "s_cbranch_scc1 L_sloop")
    e.lab("L_sfin")
    att_finish(e, "S")
    if "s3pub" in OPT:
        e(f"s_cmp_lg_u32 s{sI}, 3", "s_cbranch_scc1 L_sx")
        stamp(e, 9)
        lane_id(e)
        out_prep(e, "F")
        pub(e, 4, fast=True)
        e.lab("L_sx")
    finish(e)
    e.lab("L_swait")
    e(f"v_mov_b32 v{S0+4}, m0")
    lds_wait(e, S0+4, S0+5, f"s{sExp}", sleep=4)
    e("s_branch L_swait_ret")

sBX, sBH, sBW, sKC, sBXL, sBHL, sBWL = sT, sT+1, sT+2, sT+3, sT+4, sT+5, sT+6
BA = 8
aq, ak, av, ahk, ahv, MC = 24, 40, 56, 72, 76, 80
MP = MC + 4
FR = 104
def b_prep(e):
    e.c("---- B prep")
    e("v_lshrrev_b32 v20, 3, v0", "v_and_b32 v21, 7, v0", "v_lshrrev_b32 v22, 1, v20", "v_xor_b32 v23, v21, v22", "v_lshlrev_b32 v23, 4, v23")
    e("v_lshl_add_u32 v1, v20, 11, v23", "v_xor_b32 v2, 64, v1")
    e(f"s_lshl_b32 s{sO}, s{sI}, 5", f"v_xor_b32 v3, s{sO}, v1")
    e("v_and_b32 v22, 1, v22", "v_lshlrev_b32 v22, 2, v22", "v_xor_b32 v23, v21, v22", "v_lshlrev_b32 v23, 4, v23")
    e("v_mul_u32_u24 v20, 3072, v20", "v_add_u32 v4, v20, v23", "v_xor_b32 v16, 32, v4")
    e(f"s_and_b32 s{sO}, s{sI}, 1", f"s_lshr_b32 s{sO+1}, s{sI}, 1", f"s_lshl_b32 s{sO+1}, s{sO+1}, 10")
    e(f"s_lshl_b32 s{sBX}, s{sRB}, 16", f"s_max_u32 s{sBH}, s{sBX}, 16384", f"s_sub_u32 s{sBH}, s{sBH}, 16384")
    e(f"s_add_u32 s{sBX}, s{sBX}, s{sO+1}", f"s_add_u32 s{sBH}, s{sBH}, s{sO+1}")
    e(f"s_lshl_b32 s{sO+1}, s{sO}, 15", f"s_add_u32 s{sBX}, s{sBX}, s{sO+1}")
    e(f"s_lshl_b32 s{sO+1}, s{sO}, 13", f"s_add_u32 s{sBH}, s{sBH}, s{sO+1}")
    e(f"s_mul_i32 s{sBW}, s{sI}, {16*3072}", f"s_lshl_b32 s{sO+1}, s{sCB}, 7", f"s_add_u32 s{sBW}, s{sBW}, s{sO+1}")
    e(f"s_lshl_b32 s{sKC}, s{sRB}, 1", f"s_add_u32 s{sKC}, s{sKC}, s{sCB}")
    e(f"s_lshl_b32 s{sBWL}, s{sI}, 11", f"s_add_u32 s{sBXL}, s{sBWL}, {RXO + 2048}", f"s_lshl_b32 s{sBHL}, s{sI}, 9", f"s_add_u32 s{sBHL}, s{sBHL}, {RXO}")
    e("v_and_b32 v20, 31, v0", "v_lshrrev_b32 v21, 5, v0", "v_bfe_u32 v22, v0, 1, 3", "v_xor_b32 v22, v22, v21", "v_lshlrev_b32 v22, 4, v22", "v_lshl_add_u32 v22, v20, 7, v22")
    e(f"s_lshl_b32 s{sO}, s{sO}, 12", f"s_add_u32 s{sO}, s{sO}, {RXO + 2048}", f"v_add_u32 v{BA}, s{sO}, v22")
    for s in range(1, 4): e(f"v_xor_b32 v{BA+s}, {s<<5}, v{BA}")
    e("v_bfe_u32 v20, v0, 2, 2", "v_and_b32 v23, 3, v0", "v_and_b32 v17, 2, v20", "v_or_b32 v18, v17, v21", "v_bfe_u32 v19, v0, 4, 1")
    e(f"s_and_b32 s{sO}, s{sI}, 2", f"v_or_b32 v19, s{sO}, v19", "v_xor_b32 v18, v18, v19")
    e("v_lshl_add_u32 v22, v21, 3, v20", "v_lshlrev_b32 v22, 7, v22", "v_lshl_add_u32 v22, v18, 5, v22", f"v_lshl_add_u32 v{BA+4}, v23, 3, v22")
    e("v_lshrrev_b32 v21, 4, v0", "v_bfe_u32 v22, v0, 1, 3", "v_xor_b32 v22, v22, v21", "v_lshlrev_b32 v22, 4, v22", "v_and_b32 v19, 15, v0")
    e("v_lshl_add_u32 v22, v19, 7, v22", f"v_add_u32 v{BA+5}, {RXO}, v22", f"v_xor_b32 v{BA+6}, 64, v{BA+5}")
    e("v_and_b32 v18, 1, v21", "v_or_b32 v18, v17, v18", f"v_xor_b32 v18, s{sI}, v18")
    e("v_lshl_add_u32 v22, v21, 3, v20", "v_lshlrev_b32 v22, 7, v22", "v_lshl_add_u32 v22, v18, 5, v22", f"v_lshl_add_u32 v{BA+7}, v23, 3, v22")
    e(f"v_mov_b32 v{MC}, {hex(f32bits(-1e30))}")
    for r in range(1, 20): e(f"v_mov_b32 v{MC+r}, v{MC}")
    def setm(reg, r, shift):
        m = 0
        for l in range(64):
            d = (l & 31) - ((r & 3) + 8 * (r >> 2) + 4 * (l >> 5)) + shift
            if 0 <= d <= 7: m |= 1 << l
        if m: e(f"s_mov_b32 exec_lo, {hex(m & 0xffffffff)}", f"s_mov_b32 exec_hi, {hex(m >> 32)}", f"v_mov_b32 v{reg}, 0")
    for r in range(16): setm(MC + r, r, 0)
    e(f"s_cmp_eq_u32 s{sRB}, 0", "s_cbranch_scc1 L_nomp")
    for r in range(12, 16): setm(MP + r, r, 32)
    e.lab("L_nomp")
    e("s_mov_b64 exec, -1")

def h_qprep(e):
    T, QK, SA, SB, KS = 20, 104, 120, 136, 24
    e.c("---- H: max images of positions i, 4+i")
    e(f"v_lshlrev_b32 v{T+2}, 4, v0")
    e(f"s_lshl_b32 s{sO+4}, s{sI}, 13", f"s_add_u32 s{sO+4}, s{sO+4}, {KW + 32768}")
    e(f"s_lshl_b32 s{sO+5}, s{sI}, 12", f"s_add_u32 s{sO+5}, s{sO+5}, {F1 + 16384}", f"v_lshl_add_u32 v{T+3}, v0, 7, s{sO+5}")
    e(f"s_lshl_b32 s{sO+5}, s{sI}, 2", f"v_add_u32 v17, s{sO+5}, v{vHC}")
    e(f"s_lshl_b32 s{sO}, s{sI}, 10", f"s_add_u32 s{sO}, s{sO}, {QI_L}", f"v_add_u32 v{T}, s{sO}, v{T+2}", f"v_and_b32 v18, 0x1ff, v{T+2}")
    e(f"s_lshl_b32 s{sO}, s{sI}, 9", f"s_add_u32 s{sO}, s{sO}, {NM_L}", f"v_add_u32 v18, s{sO}, v18")
    lds_wait(e, vHC, vHT, 5, LAND + 12, sleep=1)
    gpoll(e, T + 3, T + 1, 0xffffffff, 0, sleep=1)
    for t in range(NSAMP): e(f"buffer_load_dwordx4 {vr(KS+4*t,4)}, v{T+2}, {sr(R_WS,4)}, s{sO+4} offen offset:{1024*t}{SC}")
    sig(e, 17, vH1, SOK)
    lds_wait(e, vHC, vHT, 4, ACNT, sleep=1)
    e(f"ds_read_b128 {vr(QK,4)}, v{T}", f"ds_read_b128 {vr(QK+4,4)}, v{T} offset:4096", "s_waitcnt vmcnt(0) lgkmcnt(0)")
    for z in range(2):
        SS = (SA, SB, 40, 56)
        for t in range(NSAMP): e(f"{MF32} {vr(SS[t],16)}, {vr(KS+4*t,4)}, {vr(QK+4*z,4)}, 0")
        e(f"s_nop {12 - NSAMP}")
        m = 152 + 4*z
        regs = [SS[t] + r for t in range(NSAMP) for r in range(16)]
        e(f"v_max_f32 v{m}, v{regs[0]}, v{regs[1]}")
        for k in range(2, len(regs), 2): e(f"v_max3_f32 v{m}, v{m}, v{regs[k]}, v{regs[k+1]}")
        halfmax(e, m)
        e(f"v_sub_f32 v{m}, {hex(f32bits(-MOFF))}, v{m}")
        for r in range(1, 4): e(f"v_mov_b32 v{m+r}, v{m}")
        e(f"ds_write_b128 v18, {vr(m,4)} offset:{2048*z}")
        if z == 0: e(f"s_cmp_eq_u32 s{sI}, 0", "s_cselect_b32 exec_lo, 1, 0", "s_mov_b32 exec_hi, 0", f"ds_write_b32 v{vHC}, v{vH1} offset:{RDY1}", "s_mov_b64 exec, -1")
        else: sig(e, vHC, vH1, ACNT)
        stamp(e, 9 + z)

class Lst(list):
    def __call__(self, *x): self.extend(x)
def b_dma_groups(j):
    ro = (j & 1) * RINGS
    G = [Lst() for _ in range(5)]
    g = G[0]
    g(f"s_add_u32 s{sO+1}, s{sKC}, {j}", f"s_and_b32 s{sO+1}, s{sO+1}, 7", f"s_lshl_b32 s{sO+2}, s{sO+1}, 7", f"s_mul_i32 s{sO+1}, s{sO+1}, {64*3072}")
    g(f"s_add_u32 s{sO+1}, s{sO+1}, s{sBW}", f"s_add_u32 s{sO+3}, s{sO+2}, s{sBX}")
    for u in range(2):
        g(f"s_add_u32 m0, s{sBXL}, {ro + u*1024}", f"s_add_u32 s{sO}, s{sO+3}, {u*16384}")
        dma(g, 1 + u, R_XB, sO, nt="bnt" in OPT)
    for p in range(3):
        g = G[1 + p]
        for u in range(2):
            g(f"s_add_u32 m0, s{sBWL}, {ro + p*8192 + u*1024}", f"s_add_u32 s{sO}, s{sO+1}, {p*1024 + u*8*3072}")
            dma(g, 4 if u == 0 else 16, R_WB, sO)
    g = G[4]
    g(f"s_add_u32 m0, s{sBHL}, {ro}", f"s_add_u32 s{sO}, s{sO+2}, s{sBH}", "s_mov_b32 exec_hi, 0")
    dma(g, 3, R_XB, sO)
    g("s_mov_b64 exec, -1")
    return G
def wo_groups(R, base):
    G = [Lst() for _ in range(4)]
    G[0](f"s_lshl_b32 s{sO+1}, s{sI}, 17", f"s_lshl_b32 s{sO+2}, s{sHP}, 6", f"s_add_u32 s{sO+1}, s{sO+1}, s{sO+2}", f"s_lshl_b32 s{sO+2}, s{sI}, 13")
    for u in range(8):
        g = G[u >> 1]
        g(f"s_add_u32 m0, s{sO+2}, {base + u*1024}", f"s_add_u32 s{sO}, s{sO+1}, {u*16384}")
        dma(g, 20, R, sO)
    return G
def wo_voff(e):
    e("v_lshrrev_b32 v20, 2, v0", "v_and_b32 v21, 3, v0", "v_lshlrev_b32 v21, 4, v21", "v_lshl_add_u32 v20, v20, 10, v21", "v_lshlrev_b32 v21, 7, v0")

def b_proj(e):
    D, XB_, HX_, WB_, NBUF = 4, FR, FR + 8, FR + 12, 12
    jobs = []
    def wreads(buf, areg, off):
        return [f"ds_read_b64_tr_b16 {vr(buf,2)}, v{areg} offset:{off}", f"ds_read_b64_tr_b16 {vr(buf+2,2)}, v{areg} offset:{off+512}"]
    for j in range(8):
        ro = (j & 1) * RINGS
        for s in range(4):
            x = XB_ + 4 * (s & 1)
            for p, acc in enumerate((aq, ak, av)):
                w = WB_ + 4 * (len(jobs) % NBUF)
                rds = ([f"ds_read_b128 {vr(x,4)}, v{BA+s} offset:{ro}"] if p == 0 else []) + wreads(w, BA + 4, ro + p*8192 + s*2048)
                A_, B_ = (w, x) if p < 2 else (x, w)
                jobs.append((rds, f"{MF32} {vr(acc,16)}, {vr(A_,4)}, {vr(B_,4)}, {'0' if (j == 0 and s == 0) else vr(acc,16)}"))
            s2, p = s >> 1, 1 + (s & 1)
            w = WB_ + 4 * (len(jobs) % NBUF)
            rds = ([f"ds_read_b128 {vr(HX_,4)}, v{BA+5+s2} offset:{ro}"] if p == 1 else []) + wreads(w, BA + 7, ro + p*8192 + s2*4096)
            acc = ahk if p == 1 else ahv
            A_, B_ = (w, HX_) if p == 1 else (HX_, w)
            jobs.append((rds, f"{MF16} {vr(acc,4)}, {vr(A_,4)}, {vr(B_,4)}, {'0' if (j == 0 and s2 == 0) else vr(acc,4)}"))
    q = []
    nxt = [0]
    def issue(upto):
        while nxt[0] < min(upto, 128):
            if "bnord" not in OPT or nxt[0] < 16:
                e(*jobs[nxt[0]][0]); q.extend([nxt[0]] * len(jobs[nxt[0]][0]))
            nxt[0] += 1
    e("s_waitcnt vmcnt(9)")
    sig(e, vHC, vH1, HCNT)
    lds_wait(e, vHC, vHT, 8, HCNT)
    stamp(e, 16)
    e(f"s_setprio {HM}")
    issue(D)
    G = []
    PA = 13
    for n in range(128):
        j, r = n >> 4, n & 15
        if n in q:
            last = len(q) - 1 - q[::-1].index(n)
            e(f"s_waitcnt lgkmcnt({len(q) - 1 - last})")
            del q[:last + 1]
        e(jobs[n][1] if "bnomf" not in OPT else "s_sleep 1")
        lim = 16 * (j + 1)
        if r < PA or j == 7: issue(min(n + 1 + D, lim))
        if r == 15 - D and j < 7:
            e(f"s_waitcnt vmcnt({1 if (j in (3, 4) and 'wpf' in OPT) else 0})")
            sig(e, vHC, vH1, HCNT); q.append(-1)
        if r == PA and j < 7:
            if "bwake" in OPT:
                e("s_waitcnt lgkmcnt(0)", "s_wakeup")
            lds_wait(e, vHC, vHT, 4 * (j + 3), HCNT, sleep=BSLEEP); del q[:]
            if j == 3: stamp(e, 17)
            G = b_dma_groups(j + 2) if j < 6 else wo_groups(R_WOB, WOB_L)
            if j in (2, 3) and "wpf" in OPT:
                g = Lst()
                g(f"s_and_b32 s{sO}, s{sIDX}, 31", f"s_lshl_b32 s{sO}, s{sO}, 2", f"s_add_u32 s{sO}, s{sO}, s{sI}", f"s_lshl_b32 s{sO}, s{sO}, 12", "s_mov_b32 exec_hi, 0")
                g(f"buffer_load_dword v22, v21, {sr(R_WOB if j == 2 else R_WOA,4)}, s{sO} offen", "s_mov_b64 exec, -1")
                G.append(g)
        if r >= PA and j < 7: issue(n + 1 + D - (1 if r < 15 else 0))
        for _ in range(2):
            if G: e(*G.pop(0))
    e("s_setprio 3")

def b_attn(e):
    Qf, Kf, Vf, Kp, Vp = 104, 112, 120, 128, 136
    PB = 140
    M = 152
    e.c("---- local attention")
    e("v_bfe_u32 v9, v0, 3, 1", "v_lshlrev_b32 v10, 10, v9", "v_bfe_u32 v9, v0, 4, 1", "v_lshl_add_u32 v10, v9, 7, v10")
    e("v_and_b32 v11, 7, v0", "v_lshl_add_u32 v10, v11, 4, v10", "v_lshrrev_b32 v12, 5, v0", "v_lshl_add_u32 v10, v12, 3, v10")
    e(f"s_and_b32 s{sO}, s{sI}, 2", f"s_lshl_b32 s{sO}, s{sO}, 10", f"s_add_u32 s{sO}, s{sO}, {EX_L}", f"s_and_b32 s{sO+1}, s{sI}, 1")
    e(f"s_lshl_b32 s{sO+2}, s{sO+1}, 8", f"s_add_u32 s{sO+2}, s{sO+2}, s{sO}", f"v_add_u32 v10, s{sO+2}, v10")
    e("v_lshlrev_b32 v13, 10, v12", "v_lshl_add_u32 v13, v9, 8, v13", "v_and_b32 v14, 15, v0", "v_lshl_add_u32 v13, v14, 3, v13")
    e(f"s_lshl_b32 s{sO+2}, s{sO+1}, 7", f"s_add_u32 s{sO+2}, s{sO+2}, s{sO}", f"v_add_u32 v13, s{sO+2}, v13")
    for j in range(4): e(f"v_cvt_pk_bf16_f32 v{16+j}, v{ahk+2*j}, v{ahk+2*j+1}")
    e("ds_write_b64 v10, v[16:17]", "ds_write_b64 v13, v[18:19] offset:512")
    sig(e, vHC, vH1, HCNT)
    e(f"s_lshl_b32 s{sO}, s{sI}, 10", f"s_add_u32 s{sO}, s{sO}, {EX_L}")
    e("v_lshl_add_u32 v11, v12, 3, v11", f"v_lshl_add_u32 v11, v11, 4, s{sO}", f"v_lshl_add_u32 v14, v0, 3, s{sO}")
    for j in range(8): e(f"v_cvt_pk_bf16_f32 v{Kf+j}, v{ak+2*j}, v{ak+2*j+1}")
    for j in range(8): e(f"v_cvt_pk_bf16_f32 v{Qf+j}, v{aq+2*j}, v{aq+2*j+1}")
    Sc0, Sc1, Sp = 24, 40, 8 + 56
    lds_wait(e, vHC, vHT, 40, HCNT)
    e(f"ds_read_b128 {vr(Kp,4)}, v11", f"ds_read_b128 {vr(Kp+4,4)}, v11 offset:256", f"ds_read_b64 {vr(Vp+2,2)}, v14 offset:512")
    e(f"s_setprio {HM}")
    e(f"{MF32} {vr(Sc0,16)}, {vr(Kf,4)}, {vr(Qf,4)}, {vr(MC,16)}", f"{MF32} {vr(Sc1,16)}, {vr(Kf+4,4)}, {vr(Qf+4,4)}, {vr(MC,16)}")
    e("s_setprio 3")
    for g in wo_groups(R_WOA, WOA_L): e(*g)
    for j in range(8): e(f"v_cvt_pk_bf16_f32 v{Vf+j}, v{av+2*j}, v{av+2*j+1}")
    for r in (Vp, Vp+1): e(f"v_mov_b32 v{r}, 0")
    for r in range(12): e(f"v_mov_b32 v{PB+r}, 0")
    e(f"s_lshl_b32 s{sO+1}, s{sRB}, 1", f"s_and_b32 s{sO+2}, s{sI}, 1", f"s_add_u32 s{sO+1}, s{sO+1}, s{sO+2}", f"s_lshl_b32 s{sO+1}, s{sO+1}, 15")
    e(f"s_lshl_b32 s{sO+2}, s{sCB}, 2", f"s_and_b32 s{sO+3}, s{sI}, 2", f"s_add_u32 s{sO+2}, s{sO+2}, s{sO+3}", f"s_lshl_b32 s{sO+2}, s{sO+2}, 10")
    e(f"s_add_u32 s{sO+1}, s{sO+1}, s{sO+2}", f"s_add_u32 s{sO+1}, s{sO+1}, {OB}")
    e("v_lshlrev_b32 v9, 4, v0", f"v_mov_b32 v22, {hex(f32bits(CSC))}", "s_waitcnt lgkmcnt(0)")
    for hd in range(2):
        Sc = (Sc0, Sc1)[hd]
        e(f"s_setprio {HM}", f"{MF32} {vr(Sp,16)}, {vr(Kp+4*hd,4)}, {vr(Qf+4*hd,4)}, {vr(MP,16)}", "s_setprio 3")
        for k in range(4): e(f"v_max_f32 v{M+k}, v{Sc+k}, v{Sc+8+k}")
        e(f"v_max3_f32 v10, v{M}, v{M+1}, v{M+2}", "s_nop 5")
        for k in range(4): e(f"v_max3_f32 v{M+4+k}, v{Sc+4+k}, v{Sc+12+k}, v{Sp+12+k}")
        e(f"v_max3_f32 v10, v10, v{M+3}, v{M+4}", f"v_max3_f32 v10, v10, v{M+5}, v{M+6}", f"v_max_f32 v10, v10, v{M+7}")
        halfmax(e, 10)
        e("v_mul_f32 v10, v22, v10")
        for k in range(4): e(f"v_pk_fma_f32 {vr(M+2*k,2)}, {vr(M+2*k,2)}, v[22:23], v[10:11] op_sel_hi:[1,0,0] neg_lo:[0,0,1] neg_hi:[0,0,1]")
        for k in range(8): e(f"v_exp_f32 v{M+k}, v{M+k}")
        def cv(mask, dst, src):
            e(f"s_mov_b32 exec_lo, {hex(mask)}", f"s_mov_b32 exec_hi, {hex(mask)}")
            e(f"v_cvt_pk_bf16_f32 v{dst}, v{src}, v{src+1}", f"v_cvt_pk_bf16_f32 v{dst+1}, v{src+2}, v{src+3}")
        cv(0x0000ffff, PB, M); cv(0xffff0000, PB+4, M)
        cv(0x00ffff00, PB+2, M+4); cv(0xff000000, PB+6, M+4); cv(0x000000ff, PB+10, M+4)
        e("s_mov_b64 exec, -1")
        e(f"v_pk_add_f32 {vr(M,2)}, {vr(M,2)}, {vr(M+2,2)}", f"v_pk_add_f32 {vr(M+4,2)}, {vr(M+4,2)}, {vr(M+6,2)}")
        e(f"s_setprio {HM}")
        e(f"{MF32} {vr(Sc,16)}, {vr(Vf,4)}, {vr(PB,4)}, 0", f"{MF32} {vr(Sc,16)}, {vr(Vf+4,4)}, {vr(PB+4,4)}, {vr(Sc,16)}", f"{MF32} {vr(Sc,16)}, {vr(Vp,4)}, {vr(PB+8,4)}, {vr(Sc,16)}")
        e("s_setprio 3")
        e(f"v_pk_add_f32 {vr(M,2)}, {vr(M,2)}, {vr(M+4,2)}", f"v_add_f32 v10, v{M}, v{M+1}", "v_mov_b32 v11, v10", "s_nop 1")
        e("v_permlane32_swap_b32 v10, v11", "s_nop 0", "v_add_f32 v10, v10, v11", "v_rcp_f32 v10, v10", "s_nop 2")
        O = Sc + 8 * hd
        for k in range(4): e(f"v_pk_mul_f32 {vr(O+2*k,2)}, {vr(O+2*k,2)}, v[10:11] op_sel_hi:[1,0]")
        o = 12 + 4 * hd
        for j in range(4): e(f"v_cvt_pk_bf16_f32 v{o+j}, v{O+2*j}, v{O+2*j+1}")
        e(f"buffer_store_dwordx4 {vr(o,4)}, v9, {sr(R_WS,4)}, s{sO+1} offen offset:{1024*hd}{SC}")

vWt, vPo, vCk, vSt, vL16, vFl, vL4, vOC = 8, 9, 10, 11, 1, 2, 3, 4
GACC, GO, GW = 12, 32, 148
sTK, sOut = sT, sT+1
def out_table(e):
    W, Po, Ck, St = 164, 165, 166, 167
    e("v_lshrrev_b32 v30, 5, v0", "v_bfe_u32 v31, v0, 2, 2", "v_lshl_add_u32 v31, v30, 2, v31", f"v_lshlrev_b32 v{W}, 6, v31")
    e("v_and_b32 v31, 1, v0", f"v_lshl_add_u32 v{W}, v31, 5, v{W}", "v_bfe_u32 v31, v0, 1, 1", f"v_lshl_add_u32 v{W}, v31, 3, v{W}")
    e("v_bfe_u32 v31, v0, 4, 1", f"v_lshl_add_u32 v{W}, v31, 4, v{W}")
    e(f"v_and_b32 v{St}, 31, v0", f"v_lshlrev_b32 v{St}, 11, v{St}", f"v_lshl_add_u32 v{St}, v30, 5, v{St}")
    e(f"v_lshlrev_b32 v{Ck}, 2, v0", f"v_lshlrev_b32 v{Po}, 7, v0")
    e(f"v_lshlrev_b32 v31, 4, v0", f"v_add_u32 v31, {TB_L}, v31", "ds_write_b128 v31, v[164:167]")
def out_prep(e, role):
    e(f"v_lshlrev_b32 v{vL16}, 4, v0", f"v_add_u32 v31, {TB_L}, v{vL16}", f"ds_read_b128 v[8:11], v31")
    e(f"v_and_b32 v{vOC}, 3, v0", f"v_lshlrev_b32 v{vOC}, 8, v{vOC}", f"v_add_u32 v{vOC}, {PR_L + 1024}, v{vOC}")
    e(f"v_and_b32 v{vL4}, 31, v0", f"v_lshlrev_b32 v{vL4}, 2, v{vL4}")
    e(f"s_lshl_b32 s{sTK}, s{sTB}, 2", f"s_add_u32 s{sTK}, s{sTK}, s{sI}")
    if role == "H": e("s_waitcnt lgkmcnt(0)", f"v_lshl_add_u32 v{vSt}, v{vL4}, 9, v{vSt}")

def pry_wait(e, lim, sleep=6):
    l = e.uniq("hp")
    e.lab(l)
    e(f"ds_read_b32 v{vHT}, v{vOC}", "s_waitcnt lgkmcnt(0)", f"v_cmp_gt_u32 vcc, {lim}, v{vHT}", f"s_cbranch_vccz {l}_d")
    spin_tail(e, l, sleep)
    e.lab(l + "_d")

pub_sites = []
def pub(e, add, keep=False, fast=False):
    site = len(pub_sites); pub_sites.append(site)
    e(f"s_add_u32 s{sO+4}, s{sI}, {add}", f"s_mov_b32 s{sRET}, {site}")
    if not fast:
        e(f"s_mul_i32 s{sO}, s{sO+4}, {OS_POS}", f"s_add_u32 s{sO}, s{sO}, {OS_L - OS_POS}")
        pry_wait(e, f"s{sO}", sleep=PSL)
    e("s_branch L_pub")
    e.lab(f"L_pub_ret{site}")

def pub_routine(e):
    P = GO
    site = 0
    e.lab("L_pub")
    e(f"s_mul_i32 s{sO+2}, s{sO+4}, {OS_POS}", f"s_add_u32 s{sO+2}, s{sO+2}, {OS_L}")
    e(f"v_add_u32 v28, s{sO+2}, v{vL16}", f"v_add_u32 v29, s{sO+2}, v{vL4}")
    e(f"s_and_b32 s{sO}, s{sO+4}, 1", f"s_lshl_b32 s{sO}, s{sO}, 2", f"s_lshr_b32 s{sO+1}, s{sO+4}, 1", f"s_add_u32 s{sO}, s{sO}, s{sO+1}")
    e(f"s_lshl_b32 s{sO+1}, s{sRB}, 3", f"s_add_u32 s{sO}, s{sO}, s{sO+1}", f"s_lshl_b32 s{sO}, s{sO}, 3", f"s_add_u32 s{sO}, s{sO}, s{sCB}")
    e(f"s_mul_i32 s{sO+3}, s{sO}, {REC}", f"s_add_u32 s{sO+3}, s{sO+3}, {OA}")
    e(f"s_lshl_b32 s{sO+5}, s{sIDX}, 3", f"s_add_u32 s{sO+5}, s{sO+5}, s{sO+4}", f"s_lshl_b32 s{sO+5}, s{sO+5}, 7", f"s_add_u32 s{sO+5}, s{sO+5}, {F4}")
    e(f"s_mov_b32 s{sO+1}, {hex(f32bits(LMAX))}")
    pry_wait(e, f"s{sO+2}", sleep=3)
    e(f"ds_read2st64_b32 {vr(P+32,2)}, v29 offset0:8 offset1:17", f"ds_read2st64_b32 {vr(P+34,2)}, v29 offset0:26 offset1:35")
    for a in range(2):
        for s in range(4): e(f"ds_read_b128 {vr(P+8*s+4*a,4)}, v28 offset:{s*OS_PAIR + a*1024}")
    e("s_waitcnt lgkmcnt(8)", f"v_pk_add_f32 {vr(P+32,2)}, {vr(P+32,2)}, {vr(P+34,2)}", f"v_add_f32 v{P+34}, v{P+32}, v{P+33}", f"v_rcp_f32 v{P+32}, v{P+34}")
    for a in range(2):
        e(f"s_waitcnt lgkmcnt({4-4*a})")
        for k in range(2):
            a_, b_, c_, d_ = (vr(P + 8*s + 4*a + 2*k, 2) for s in range(4))
            e(f"v_pk_add_f32 {a_}, {a_}, {b_}", f"v_pk_add_f32 {c_}, {c_}, {d_}", f"v_pk_add_f32 {a_}, {a_}, {c_}")
    e(f"v_pk_mul_f32 {vr(P+8,2)}, {vr(P,2)}, 0")
    for k in range(1, 4): e(f"v_pk_fma_f32 {vr(P+8,2)}, {vr(P+2*k,2)}, 0, {vr(P+8,2)}")
    e(f"v_add_f32 v{P+8}, v{P+8}, v{P+9}", f"v_add_f32 v{P+8}, v{P+8}, v{P+34}")
    e(f"v_cmp_ngt_f32 vcc, s{sO+1}, v{P+8}" if "forcefb" not in OPT else "v_cmp_eq_u32 vcc, v0, v0", "s_cbranch_vccnz L_exact")
    e.lab(f"L_exact_ret{site}")
    for k in range(4): e(f"v_pk_mul_f32 {vr(P+2*k,2)}, {vr(P+2*k,2)}, {vr(P+32,2)} op_sel_hi:[1,0]")
    for k in range(4): e(f"v_cvt_pk_bf16_f32 v{164+k}, v{P+2*k}, v{P+2*k+1}")
    e(f"s_cmp_ge_u32 s{sO+4}, 4", "s_cbranch_scc1 L_pub_tag")
    e(f"buffer_store_dwordx4 v[164:167], v{vL16}, {sr(R_WS,4)}, s{sO+3} offen{SC}", "s_waitcnt vmcnt(0)")
    set_flag(e, sO+5, 28, 29)
    e("s_branch L_pub_x")
    e.lab("L_pub_tag")
    mk_ck(e, 31, 164)
    if "nofast" not in OPT:
        e(f"s_add_u32 s{sO}, s{sO+3}, {FAST}")
        e(f"buffer_store_dwordx4 v[164:167], v{vL16}, {sr(R_WS,4)}, s{sO} offen", f"buffer_store_dword v31, v{vCk}, {sr(R_WS,4)}, s{sO} offen offset:1024")
    e(f"buffer_store_dwordx4 v[164:167], v{vL16}, {sr(R_WS,4)}, s{sO+3} offen{SC}", f"buffer_store_dword v31, v{vCk}, {sr(R_WS,4)}, s{sO+3} offen offset:1024{SC}")
    if "nofast" in OPT: set_flag(e, sO+5, 28, 29)
    e.lab("L_pub_x")
    for s in pub_sites[:-1]: e(f"s_cmp_eq_u32 s{sRET}, {s}", f"s_cbranch_scc1 L_pub_ret{s}")
    e(f"s_branch L_pub_ret{pub_sites[-1]}")

def exact(e):
    O, Q, Kr, V, S, NB, m, vo = GO, GO+36, GO+40, GO+44, GO+52, GO+68, GO+84, GO+86
    sK, sV = sO, sO+1
    e.lab("L_exact")
    e(f"s_mov_b32 s{sT+4}, 1", "s_waitcnt vmcnt(0)")
    e(f"s_lshl_b32 s{sK}, s{sO+4}, 10", f"s_add_u32 s{sK}, s{sK}, {QI_L}", f"v_add_u32 v{m}, s{sK}, v{vL16}", f"ds_read_b128 {vr(Q,4)}, v{m}")
    e(f"v_and_b32 v{m}, 31, v0", f"v_cmp_eq_u32 vcc, 16, v{m}", f"v_mov_b32 v{m+1}, 0x3f803f80", f"v_lshrrev_b32 v{vo}, 5, v0", f"v_cndmask_b32 v{V}, 0, v{m+1}, vcc")
    for r in range(1, 8): e(f"v_mov_b32 v{V+r}, v{V}")
    e(f"v_lshlrev_b32 v{vo}, 8, v{vo}", f"v_and_b32 v{m}, 15, v0", f"v_lshl_add_u32 v{vo}, v{m}, 4, v{vo}")
    for r in range(16): e(f"v_mov_b32 v{O+r}, 0")
    e(f"v_mov_b32 v{m}, 0xff800000", f"s_mov_b32 s{sK}, {KW}", "s_waitcnt lgkmcnt(0)")
    e.lab("L_ex1")
    e(f"buffer_load_dwordx4 {vr(Kr,4)}, v{vL16}, {sr(R_WS,4)}, s{sK} offen{SC}", "s_waitcnt vmcnt(0)")
    e(f"{MF32} {vr(S,16)}, {vr(Kr,4)}, {vr(Q,4)}, 0", "s_nop 11")
    for k in range(0, 16, 2): e(f"v_max3_f32 v{m}, v{m}, v{S+k}, v{S+k+1}")
    e(f"s_add_u32 s{sK}, s{sK}, 1024", f"s_cmp_lt_u32 s{sK}, {KW + 65536}", "s_cbranch_scc1 L_ex1")
    halfmax(e, m)
    for r in range(16): e(f"v_sub_f32 v{NB+r}, 0, v{m}")
    e(f"s_mov_b32 s{sK}, {KW}", f"s_mov_b32 s{sV}, {VW}")
    e.lab("L_ex2")
    e(f"buffer_load_dwordx4 {vr(Kr,4)}, v{vL16}, {sr(R_WS,4)}, s{sK} offen{SC}", "s_mov_b32 exec_lo, 0xffff", "s_mov_b32 exec_hi, 0xffff")
    e(f"buffer_load_dwordx4 {vr(V,4)}, v{vo}, {sr(R_WS,4)}, s{sV} offen{SC}", f"buffer_load_dwordx4 {vr(V+4,4)}, v{vo}, {sr(R_WS,4)}, s{sV} offen offset:512{SC}")
    e("s_mov_b64 exec, -1", "s_waitcnt vmcnt(0)")
    e(f"{MF32} {vr(S,16)}, {vr(Kr,4)}, {vr(Q,4)}, {vr(NB,16)}", "s_nop 11")
    for k in range(16): e(f"v_exp_f32 v{S+k}, v{S+k}")
    e("s_nop 0")
    for j in range(8): e(pk(S, j))
    e("s_nop 1", f"{MF32} {vr(O,16)}, {vr(V,4)}, {vr(S,4)}, {vr(O,16)}", f"{MF32} {vr(O,16)}, {vr(V+4,4)}, {vr(S+8,4)}, {vr(O,16)}")
    e(f"s_add_u32 s{sK}, s{sK}, 1024", f"s_add_u32 s{sV}, s{sV}, 1024", f"s_cmp_lt_u32 s{sK}, {KW + 65536}", "s_cbranch_scc1 L_ex2")
    e("s_nop 11", f"v_mov_b32 v{m}, v{O+8}", "s_nop 1", f"v_permlane32_swap_b32 v{O+8}, v{m}", "s_nop 0", f"v_rcp_f32 v{GO+32}, v{O+8}", "s_nop 0")
    e("s_branch L_exact_ret0")

def gemm_b(e):
    NB, n = 28, 32
    oreg = lambda k: GO + 36 + 4 * k if k < 20 else (GO + 4 * (k - 20) if k < 29 else GO + 36 + 4 * (k - 29))
    e(f"s_lshl_b32 s{sT+2}, s{sTK}, 15", f"s_add_u32 s{sT+2}, s{sT+2}, {OB}")
    def ldo(k):
        if k % 4 == 0: e(f"s_add_u32 s{sT+3}, s{sT+2}, {(k>>2)*4096}")
        e(f"buffer_load_dwordx4 {vr(oreg(k),4)}, v{vL16}, {sr(R_WS,4)}, s{sT+3} offen offset:{(k&3)*1024}{SC}")
    def rdw(k):
        b = GW + 4*(k & 3)
        e(f"ds_read_b64_tr_b16 {vr(b,2)}, v{vWt} offset:{WOB_L+k*1024}", f"ds_read_b64_tr_b16 {vr(b+2,2)}, v{vWt} offset:{WOB_L+k*1024+512}")
    def loads(k0, k1):
        for k in range(k0, k1):
            ldo(k)
            if OBW and k >= OBW: e(f"s_waitcnt vmcnt({OBW})")
    if "hpubfirst" in OPT:
        e(f"s_cmp_lg_u32 s{sI}, 0", "s_cbranch_scc1 L_hnp0")
        pub(e, 4)
        e.lab("L_hnp0")
    loads(0, 20)
    stamp(e, 8)
    if "fpub" not in OPT:
        e(f"s_mov_b32 s{sT+4}, 0", f"s_cmp_eq_u32 s{sI}, 3", "s_cbranch_scc1 L_hnp")
        e(f"s_cmp_eq_u32 s{sI}, 0", "s_cbranch_scc1 L_hnp")
        pub(e, 4)
        e(f"s_cmp_eq_u32 s{sT+4}, 0", "s_cbranch_scc1 L_hnp")
        for k in range(20): ldo(k)
        e.lab("L_hnp")
        stamp(e, 18)
    loads(20, 29)
    lds_wait(e, vHC, vHT, 44, HCNT)
    pry_wait(e, OS_L + HGATE*OS_POS, sleep=PSL)
    e("s_setprio 1")
    for k in range(3): rdw(k)
    for k in range(32):
        if k + 3 < 32: rdw(k + 3)
        vm = 9 + min(k, 3) if k < 20 else 31 - k
        e(f"s_waitcnt vmcnt({vm}) lgkmcnt({min(6, 2*(31-k))})", f"{MF32} {vr(GACC,16)}, {vr(GW+4*(k&3),4)}, {vr(oreg(k),4)}, {'0' if k == 0 else vr(GACC,16)}")
        if k < 3: ldo(k + 29)

def fetch(e, hl, c0, c1, base, ck=None):
    for c in range(c0, c1):
        e(f"s_add_u32 s{sO}, s{sT+2}, {(hl*8 + c)*REC}")
        e(f"buffer_load_dwordx4 {vr(base+4*c,4)}, v{vL16}, {sr(R_WS,4)}, s{sO} offen{SC}")
        if ck is not None: e(f"buffer_load_dword v{ck+c}, v{vCk}, {sr(R_WS,4)}, s{sO} offen offset:1024{SC}")
def verify(e, c0, c1, base, ck, younger, hl=3, sleep=0):
    l = e.uniq("vf")
    e(f"s_waitcnt vmcnt({younger})", f"s_branch {l}_v")
    e.lab(l)
    if "nofast" not in OPT:
        e(f"s_add_u32 s{sT+6}, s{sT+6}, 1", f"s_and_b32 s{sO}, s{sT+6}, {FTRY-1}", f"s_cselect_b32 s{sO}, 0, {FAST}", f"s_xor_b32 s{sT+5}, s{sT+5}, s{sO}", f"s_add_u32 s{sT+2}, s{sT+3}, s{sT+5}")
    fetch(e, hl, c0, c1, base, ck)
    e("s_waitcnt vmcnt(0)")
    e.lab(l + "_v")
    for c in range(c0, c1): chk(e, 28, 29, base + 4*c, ck + c, c == c0)
    e("v_cmp_ne_u32 vcc, 0, v28", f"s_cbranch_vccz {l}_d")
    spin_tail(e, l, sleep)
    e.lab(l + "_d")
    e(f"s_mov_b32 s{sT+6}, 0")
def mul_a(e, steps, pre=True, vm=None):
    n = len(steps)
    def rdw(k):
        b = GW + 4*(k & 3); o = steps[k][0] * 1024
        e(f"ds_read_b64_tr_b16 {vr(b,2)}, v30 offset:{o}", f"ds_read_b64_tr_b16 {vr(b+2,2)}, v30 offset:{o+512}")
    if pre:
        for k in range(3): rdw(k)
        return
    for k in range(n):
        if k + 3 < n: rdw(k + 3)
        e(f"s_waitcnt {'vmcnt(%d) ' % (n-1-k) if vm else ''}lgkmcnt({min(6, 2*(n-1-k))})")
        e(f"{MF32} {vr(GACC,16)}, {vr(GW+4*(k&3),4)}, {vr(steps[k][1],4)}, {'0' if steps[k][0] == 0 else vr(GACC,16)}")
def gpoll_s(e, vaddr, vtmp, pat, sleep):
    l = e.uniq("gp")
    e(f"s_lshl_b32 exec_lo, {hex(pat)}, s{sT+7}", "s_mov_b32 exec_hi, exec_lo")
    e.lab(l)
    e(f"buffer_load_dword v{vtmp}, v{vaddr}, {sr(R_WS,4)}, s{sT+8} offen sc1", "s_waitcnt vmcnt(0)")
    e(f"v_cmp_ne_u32 vcc, s{sEP}, v{vtmp}", "s_and_b64 exec, exec, vcc", f"s_cbranch_execz {l}_d")
    spin_tail(e, l, sleep)
    e.lab(l + "_d")
    e("s_mov_b64 exec, -1")

def out_store(e, off):
    global OSC
    if "nost" in OPT: return
    if "nostb" in OPT and off: return
    OSC = (" sc1" if "Bsc1" in OPT else " nt" if "bnts" in OPT else "") if off else (" sc1" if "asc1" in OPT else "")
    e("s_nop 11")
    for j in range(8): e(f"v_cvt_pk_bf16_f32 v{GW+j}, v{GACC+2*j}, v{GACC+2*j+1}")
    e(f"buffer_store_dwordx4 {vr(GW,4)}, v{vSt}, {sr(R_OUT,4)}, s{sOut} offen offset:{off}{OSC}", f"buffer_store_dwordx4 {vr(GW+4,4)}, v{vSt}, {sr(R_OUT,4)}, s{sOut} offen offset:{off+16}{OSC}")

def h_main(e):
    e.lab("L_h2")
    srds(e, (R_XB, R_WB, R_WOB, R_WOA, R_OUT))
    b_prep(e)
    out_table(e)
    h_qprep(e)
    if "noH" in OPT: finish(e)
    wo_voff(e)
    lds_wait(e, vHC, vHT, 8, GCNT, sleep=2)
    for j in range(2):
        for g in b_dma_groups(j): e(*g)
    stamp(e, 4)
    b_proj(e)
    stamp(e, 5)
    b_attn(e)
    e(f"s_mov_b32 s{sT+6}, s{sO+1}")
    e(f"s_lshl_b32 s{sO+5}, s{sIDX}, 2", f"s_add_u32 s{sO+5}, s{sO+5}, s{sI}", f"s_lshl_b32 s{sO+5}, s{sO+5}, 7", f"s_add_u32 s{sO+5}, s{sO+5}, {F3}")
    out_prep(e, "H")
    e(f"s_lshr_b32 s{sO+2}, s{sTK}, 1", f"s_lshl_b32 s{sOut}, s{sO+2}, 17", f"s_and_b32 s{sO+3}, s{sI}, 1", f"s_lshl_b32 s{sO}, s{sO+3}, 11", f"s_add_u32 s{sOut}, s{sOut}, s{sO}")
    e(f"s_lshl_b32 s{sO}, s{sHP}, 6", f"s_add_u32 s{sOut}, s{sOut}, s{sO}")
    e(f"s_lshl_b32 s{sO+2}, s{sO+2}, 12", f"s_lshl_b32 s{sO+3}, s{sO+3}, 7", f"s_add_u32 s{sO+2}, s{sO+2}, s{sO+3}", f"s_add_u32 s{sO+2}, s{sO+2}, {F3}")
    e(f"v_lshl_add_u32 v{vFl}, v0, 8, s{sO+2}")
    e("s_waitcnt vmcnt(0)")
    set_flag(e, sO+5, 28, 29)
    if "rb" in OPT:
        e("s_mov_b32 exec_lo, 0xffff", "s_mov_b32 exec_hi, 0", f"buffer_load_dword v28, v21, {sr(R_WS,4)}, s{sT+6} offen{SC}", "s_mov_b64 exec, -1")
    stamp(e, 6)
    sig(e, vHC, vH1, HCNT)
    gpoll(e, vFl, vHT, 0xffff, 0, sleep=F3SLEEP)
    stamp(e, 7)
    gemm_b(e)
    out_store(e, 1024)
    finish(e)

def f_out(e):
    e.lab("L_f3")
    e.c("---- output stage A")
    if "noH" in OPT or "noF" in OPT: finish(e)
    srds(e, (R_OUT,))
    lane_id(e)
    out_prep(e, "F")
    e(f"s_lshl_b32 s{sOut}, s{sTK}, 16", f"s_lshl_b32 s{sO}, s{sHP}, 6", f"s_add_u32 s{sOut}, s{sOut}, s{sO}")
    e(f"v_mov_b32 v{vHC}, {CNT}")
    pub(e, 0)
    stamp(e, 5)
    e(f"v_add_u32 v30, {WOA_L}, v{vWt}")
    e(f"s_mul_i32 s{sT+3}, s{sTK}, {32*REC}", f"s_add_u32 s{sT+3}, s{sT+3}, {OA}", f"s_mov_b32 s{sT+2}, s{sT+3}", f"s_mov_b32 s{sT+6}, 0")
    e(f"s_and_b32 s{sT+7}, s{sI}, 1", f"s_lshr_b32 s{sT+8}, s{sTK}, 1", f"s_lshl_b32 s{sT+8}, s{sT+8}, 13", f"s_add_u32 s{sT+8}, s{sT+8}, {F4}")
    e(f"s_mul_i32 s{sT+9}, s{sT+7}, {OS_POS}")
    if "nofast" not in OPT:
        e(f"s_add_u32 s{sO}, s{sT+3}, {FAST + 24*REC}", f"buffer_load_dword v6, v{vPo}, {sr(R_WS,4)}, s{sO} offen{SC}")
        e(f"s_add_u32 s{sO}, s{sO}, 8192", "s_mov_b64 exec, 0xffff", f"buffer_load_dword v6, v{vPo}, {sr(R_WS,4)}, s{sO} offen{SC}", "s_mov_b64 exec, -1")
    def gate(p, sleep):
        e(f"s_add_u32 s{sO+1}, s{sT+9}, {OS_L + p*OS_POS}")
        pry_wait(e, f"s{sO+1}", sleep=sleep)
    st = lambda hl, base, c0=0, c1=8: [(4*c + hl, base + 4*c) for c in range(c0, c1)]
    gate(3, PSL)
    if True:
        e(f"s_cmp_lg_u32 s{sI}, 1", "s_cbranch_scc1 L_np4")
        pub(e, 3, fast=True)
        e.lab("L_np4")
    gpoll_s(e, vPo, vHT, 0x05050505, 8)
    stamp(e, 16)
    fetch(e, 0, 0, 8, GO); fetch(e, 1, 0, 8, GO + 32)
    lds_wait(e, vHC, vHT, 44, HCNT, sleep=8)
    e(f"s_setprio {FM}")
    A01 = st(0, GO) + st(1, GO + 32)
    if "defer" not in OPT:
        mul_a(e, A01); mul_a(e, A01, pre=False, vm=True)
    stamp(e, 17)
    gate(5, 8)
    if "fpub" in OPT:
        e(f"s_cmp_lt_u32 s{sI}, 2", "s_cbranch_scc1 L_np5", "s_setprio 3")
        pub(e, 3, fast=True)
        e(f"s_setprio {FM}")
        e.lab("L_np5")
    CK = GO + 96
    if "nofast" in OPT: gpoll_s(e, vPo, vHT, 0x10101010, 4)
    else: e(f"s_mov_b32 s{sT+5}, {FAST}", f"s_add_u32 s{sT+2}, s{sT+3}, {FAST}")
    stamp(e, 18)
    fetch(e, 2, 0, 8, GO + 64, CK)
    A2 = st(2, GO + 64)
    mul_a(e, A2)
    verify(e, 0, 8, GO + 64, CK, 0, hl=2, sleep=4)
    mul_a(e, A2, pre=False)
    stamp(e, 19)
    gate(6, 3)
    mul_a(e, st(3, GO, 0, 4))
    if "nofast" in OPT: gpoll_s(e, vPo, vHT, 0x40404040, 1)
    CK = GO + 32
    fetch(e, 3, 0, 8, GO, CK)
    verify(e, 0, 4, GO, CK, 8)
    stamp(e, 9)
    mul_a(e, st(3, GO, 0, 4), pre=False)
    mul_a(e, st(3, GO, 4, 8))
    verify(e, 4, 8, GO, CK, 0)
    mul_a(e, st(3, GO, 4, 8), pre=False)
    out_store(e, 0)
    e(f"s_or_b32 s{sO}, s{sWG}, s{sI}", "s_cbranch_scc1 L_noep", f"s_mov_b32 s{sO}, {EPOCH_W}")
    set_flag(e, sO, 28, 29)
    e.lab("L_noep")
    finish(e)

def gen():
    e = Em()
    e.L.append(f".globl {KN}\n.p2align 8\n.type {KN},@function\n{KN}:")
    entry(e)
    h_kv(e)
    f_load(e)
    s_qproj(e)
    s_att(e)
    f_att(e)
    h_main(e)
    f_out(e)
    pub_routine(e)
    e.lab("L_codeend")
    exact(e)
    e.lab("L_end")
    e("s_endpgm")
    head = f"""; generated by work/gen15.py
; @launch grid=(256,1,1) block=(768,1,1) lds={LDS_BYTES}
.amdgcn_target "amdgcn-amd-amdhsa--gfx950"
.text
"""
    kd = f""".section .rodata,"a"
.p2align 6
.amdhsa_kernel {KN}
  .amdhsa_next_free_vgpr 168
  .amdhsa_next_free_sgpr 102
  .amdhsa_accum_offset 168
  .amdhsa_group_segment_fixed_size 0
  .amdhsa_kernarg_size 88
  .amdhsa_user_sgpr_count 2
  .amdhsa_user_sgpr_kernarg_segment_ptr 1
  .amdhsa_system_sgpr_workgroup_id_x 1
.end_amdhsa_kernel
"""
    return head + e.text() + kd

if __name__ == "__main__":
    args = [a for a in sys.argv[1:] if not a.startswith("-")]
    OPT.update(a[1:] for a in sys.argv[1:] if a.startswith("-"))
    if "stamps" in OPT: STAMPS = True
    OPT.update(("gate1", "wpf", "s3pub"))
    if "fast" not in OPT: OPT.add("nofast")

    for o in OPT:
        if o.startswith("moff"): MOFF = float(o[4:])
        if o.startswith("bd"): BDEPTH = int(o[2:])
        if o.startswith("hm"): HM = int(o[2:])
        if o.startswith("ns"): NSAMP = int(o[2:])
        if o.startswith("ys"): YS = tuple(int(x) for x in o[2:].split("_"))
        if o == "yall": YMODES = ('F', 'F0', 'S')
        if o.startswith("ow"): OBW = int(o[2:])
        if o.startswith("sh"): SHOLD = int(o[2:])
        if o.startswith("hg"): HGATE = int(o[2:])
        if o.startswith("win"): WIN = int(o[3:])
        if o.startswith("osc"): OSC = " " + o[3:].replace("_", " ")
        if o.startswith("dly"): DLY = tuple(int(x) for x in o[3:].split("_"))
        if o.startswith("bs"): BSLEEP = int(o[2:])
    out = args[0] if args else f"cdna_kernels/{NAME}.s"
    open(out, "w").write(gen())
    print("wrote", out)
```

```python
import sys, math, struct

NAME = "concat_heads__grouped_kv_mqa__sliding_local_dilated__prompt"
KN = NAME + "_kernel"
def f32bits(x): return struct.unpack("<I", struct.pack("<f", x))[0]

class Em:
    def __init__(self): self.L = []; self.n = 0
    def __call__(self, *ss):
        for s in ss:
            if s.startswith("s_nop "):
                self.L += ["    s_nop 0"] * (int(s.split()[1]) + 1)
            else: self.L.append("    " + s)
    def lab(self, s): self.L.append(s + ":")
    def uniq(self, p): self.n += 1; return f"L_{p}_{self.n}"
    def c(self, s): self.L.append("    ; " + s)
    def text(self): return "\n".join(self.L) + "\n"

def vr(b, n): return f"v[{b}:{b+n-1}]" if n > 1 else f"v{b}"
def sr(b, n): return f"s[{b}:{b+n-1}]" if n > 1 else f"s{b}"

sWG, sW = 2, 3
R_XA, R_WQ, R_WKV, R_WOA, R_XB, R_WB, R_WOB, R_OUT, R_WS = 32, 36, 40, 44, 48, 52, 56, 60, 64
R_WO = R_WKV
sRB, sCB, sTB, sHP, sSB, sKIND, sRET, sI = 72, 73, 74, 75, 76, 77, 78, 79
sT = 80
sO = 92
sPOLL, sEP, sSPIN, sIDX = 98, 99, 100, 101
sTAG = 71
SPIN_MAX = 60000
OB, OA, KW, VW, EPOCH_W, FL = 0, 2 << 20, 5 << 20, (5 << 20) + 65536, (5 << 20) + 131072, (5 << 20) + (256 << 10)
REC = 1280
F1, F3, F4 = FL, FL + (64 << 10), FL + (256 << 10)
WS_BYTES = 16 << 20
FAST = 8 << 20
K = 1024
LDS_BYTES = 160 * K
SLOT = 32 * K
WKV_L = 128 * K
QI_L, NM_L, CNT, PR_L = 144 * K, 152 * K, 156 * K + 512, 157 * K
HCNT, ACNT, GCNT, KVF, RDY1, QST, LAND, SOK = 0, 4, 8, 12, 16, 20, 32, 48
RINGS = 34 * K
RXO = 24 * K
OS_L, OS_POS, OS_PAIR = 72 * K, 9216, 2304
EX_L = 68 * K
TB_L = 159 * K
WOA_L, WOB_L = 34 * K, 0
BDEPTH, HM, F3SLEEP, WIN, BSLEEP = 4, 1, 16, 12, 0
PSL = 20
FTRY = 16
HGATE = 0
CSC = 0.25 * math.log2(math.e)
MOFF = 100.0
NSAMP = 4
YS = ()
YMODES = ('F', 'F0')
OBW = 0
LOF, LOS, FM = 2, 0, 2
SHOLD = 0
LMAX = 2.0 ** 120
MF32 = "v_mfma_f32_32x32x16_bf16"
MF16 = "v_mfma_f32_16x16x32_bf16"
STAMPS = False
OPT = set()
ST = 12 << 20
SC = " sc1"
OSC = ""

def stamp(e, k):
    if STAMPS: e("s_memrealtime s[30:31]", "s_waitcnt lgkmcnt(0)", f"s_mov_b32 s{8+k}, s30")
def cstamp(e, k):
    if STAMPS: e("s_memtime s[30:31]", "s_waitcnt lgkmcnt(0)", f"s_mov_b32 s{8+k}, s30")
def stamp_init(e):
    if not STAMPS: return
    for k in range(1, 22): e(f"s_mov_b32 s{8+k}, 0")
    e("s_mov_b32 s8, s6", "s_mov_b32 s20, s4")
DLY = None
def finish(e):
    if DLY is not None:
        l = e.uniq("dly")
        stamp(e, 15)
        e(f"s_cmp_lg_u32 s{sW}, {DLY[0]}", f"s_cbranch_scc1 {l}_d")
        e(f"s_sub_u32 s4, s{8+DLY[1]}, s8", "s_lshl_b32 s4, s4, 1", "s_add_u32 s4, s4, 4000", "s_min_u32 s4, s4, 40000")
        e.lab(l)
        e("s_sleep 2", "s_memrealtime s[30:31]", "s_waitcnt lgkmcnt(0)", "s_sub_u32 s5, s30, s8", "s_cmp_lt_u32 s5, s4", f"s_cbranch_scc1 {l}")
        e.lab(l + "_d")
        e("s_endpgm")
        return
    if STAMPS:
        stamp(e, 15); cstamp(e, 14)
        e(f"s_mul_i32 s30, s{sWG}, 12", f"s_add_u32 s30, s30, s{sW}", "s_lshl_b32 s30, s30, 7", f"s_add_u32 s30, s30, {ST}")
        e("s_mov_b64 exec, 1", "v_mov_b32 v0, 0")
        for k in range(22): e(f"v_mov_b32 v{4+k}, s{8+k}")
        for k in range(6): e(f"buffer_store_dwordx4 {vr(4+4*k,4)}, v0, {sr(R_WS,4)}, s30 offen offset:{16*k}")
    e("s_endpgm")

def dma(e, voff, R, soff, nt=False):
    e(f"buffer_load_dwordx4 v{voff}, {sr(R,4)}, s{soff} offen{' nt' if nt else ''} lds")
def spin_tail(e, l, sleep):
    e(f"s_sleep {sleep}", f"s_add_u32 s{sSPIN}, s{sSPIN}, 1", f"s_cmp_lt_u32 s{sSPIN}, {SPIN_MAX}", f"s_cbranch_scc1 {l}")
def lds_wait(e, vaddr, vtmp, target, off=0, sleep=1):
    l = e.uniq("poll")
    e.lab(l)
    e(f"ds_read_b32 v{vtmp}, v{vaddr} offset:{off}", "s_waitcnt lgkmcnt(0)", f"v_readfirstlane_b32 s{sPOLL}, v{vtmp}")
    e(f"s_cmp_ge_u32 s{sPOLL}, {target}", f"s_cbranch_scc1 {l}_d")
    spin_tail(e, l, sleep)
    e.lab(l + "_d")
def sig(e, vaddr, vone, off):
    e("s_mov_b64 exec, 1", f"ds_add_u32 v{vaddr}, v{vone} offset:{off}", "s_mov_b64 exec, -1")
def load_epoch(e):
    e(f"s_mov_b32 s{sEP}, {EPOCH_W}", f"s_load_dword s{sEP}, s[{R_WS}:{R_WS+1}], s{sEP}")
def get_epoch(e):
    e("s_waitcnt lgkmcnt(0)", f"s_add_u32 s{sEP}, s{sEP}, 1", f"s_mul_i32 s{sTAG}, s{sEP}, 0x9e3779b1")
def gpoll(e, vaddr, vtmp, lo, hi, sleep=1):
    l = e.uniq("gp")
    e(f"s_mov_b32 exec_lo, {hex(lo)}", f"s_mov_b32 exec_hi, {hex(hi)}")
    e.lab(l)
    e(f"buffer_load_dword v{vtmp}, v{vaddr}, {sr(R_WS,4)}, 0 offen sc1", "s_waitcnt vmcnt(0)")
    e(f"v_cmp_ne_u32 vcc, s{sEP}, v{vtmp}", "s_and_b64 exec, exec, vcc", f"s_cbranch_execz {l}_d")
    spin_tail(e, l, sleep)
    e.lab(l + "_d")
    e("s_mov_b64 exec, -1")
def gpoll_issue(e, vaddr, vtmp, lo):
    e(f"s_mov_b32 exec_lo, {hex(lo)}", "s_mov_b32 exec_hi, 0", f"buffer_load_dword v{vtmp}, v{vaddr}, {sr(R_WS,4)}, 0 offen sc1", "s_mov_b64 exec, -1")
def gpoll_finish(e, vaddr, vtmp, lo, younger, sleep=1):
    l = e.uniq("gp")
    e(f"s_mov_b32 exec_lo, {hex(lo)}", "s_mov_b32 exec_hi, 0", f"s_waitcnt vmcnt({younger})", f"s_branch {l}_c")
    e.lab(l)
    e(f"buffer_load_dword v{vtmp}, v{vaddr}, {sr(R_WS,4)}, 0 offen sc1", "s_waitcnt vmcnt(0)")
    e.lab(l + "_c")
    e(f"v_cmp_ne_u32 vcc, s{sEP}, v{vtmp}", "s_and_b64 exec, exec, vcc", f"s_cbranch_execz {l}_d")
    spin_tail(e, l, sleep)
    e.lab(l + "_d")
    e("s_mov_b64 exec, -1")
def set_flag(e, soff, va, vd):
    e(f"v_mov_b32 v{va}, 0", f"v_mov_b32 v{vd}, s{sEP}", "s_mov_b64 exec, 1")
    e(f"buffer_store_dword v{vd}, v{va}, {sr(R_WS,4)}, s{soff} offen sc1", "s_mov_b64 exec, -1")
def mk_ck(e, dst, d):
    e(f"v_xad_u32 v{dst}, v{d}, s{sTAG}, v{d+1}", f"v_xad_u32 v{dst}, v{dst}, v{d+2}, v{d+3}")
def chk(e, acc, tmp, d, ck, first):
    mk_ck(e, tmp, d)
    e(f"v_xor_b32 v{acc}, v{tmp}, v{ck}" if first else f"v_bitop3_b32 v{acc}, v{acc}, v{tmp}, v{ck} bitop3:0xf6")
def lane_id(e):
    e("v_mbcnt_lo_u32_b32 v0, -1, 0", "v_mbcnt_hi_u32_b32 v0, -1, v0")
def xa_voff(e, b, t):
    e(f"v_lshrrev_b32 v{t}, 4, v0", f"v_and_b32 v{b}, 15, v0", f"v_xor_b32 v{b}, v{b}, v{t}", f"v_lshlrev_b32 v{b}, 4, v{b}")
    e(f"v_lshl_add_u32 v{b}, v{t}, 10, v{b}")
def halfmax(e, m):
    e(f"v_mov_b32 v{m+1}, v{m}", "s_nop 1", f"v_permlane32_swap_b32 v{m}, v{m+1}", "s_nop 0", f"v_max_f32 v{m}, v{m}, v{m+1}")
def negmax(e, S, m):
    e(f"v_max3_f32 v{m}, v{S}, v{S+1}, v{S+2}")
    for k in range(3, 15, 2): e(f"v_max3_f32 v{m}, v{m}, v{S+k}, v{S+k+1}")
    e(f"v_max_f32 v{m}, v{m}, v{S+15}")
    halfmax(e, m)
    e(f"v_sub_f32 v{m}, {hex(f32bits(-MOFF))}, v{m}")

def entry(e):
    e(f"s_cmp_ge_u32 s{sWG}, 256", "s_cbranch_scc1 L_end")
    e(f"s_and_b32 s{sO}, s{sWG}, 8", f"s_add_u32 s{sO}, s{sO}, 16")
    for R, off in ((R_XA, 0), (R_WQ, 8), (R_WS, 80)): e(f"s_load_dwordx2 s[{R}:{R+1}], s[0:1], {off}")
    e(f"s_load_dwordx2 s[{R_WKV}:{R_WKV+1}], s[0:1], s{sO}")
    if STAMPS: e("s_memrealtime s[6:7]", "s_memtime s[4:5]")
    e("v_lshrrev_b32 v1, 6, v0", "v_and_b32 v0, 63, v0")
    e(f"s_lshr_b32 s{sO+1}, s{sWG}, 3")
    e(f"v_readfirstlane_b32 s{sW}, v1")
    e(f"s_and_b32 s{sO}, s{sWG}, 7", f"s_lshl_b32 s{sIDX}, s{sO}, 5", f"s_add_u32 s{sIDX}, s{sIDX}, s{sO+1}")
    e(f"s_and_b32 s{sI}, s{sW}, 3", f"s_cmp_lt_u32 s{sW}, 8", "s_cbranch_scc1 L_nopf")
    e(f"s_getpc_b64 s[{sO+2}:{sO+3}]")
    e.lab("L_pc")
    e(f"s_lshl_b32 s{sO}, s{sO+1}, 2", f"s_add_u32 s{sO}, s{sO}, s{sI}", f"s_and_b32 s{sO}, s{sO}, 31", f"s_lshl_b32 s{sO}, s{sO}, 10")
    e(f"v_lshl_add_u32 v2, v0, 7, s{sO}", f"v_min_u32 v2, L_codeend-L_pc-4, v2", "s_mov_b64 exec, 0xff")
    e(f"global_load_dword v167, v2, s[{sO+2}:{sO+3}]", "s_mov_b64 exec, -1")
    e.lab("L_nopf")
    e(f"s_lshr_b32 s{sRB}, s{sIDX}, 3", f"s_and_b32 s{sCB}, s{sIDX}, 7", f"s_lshr_b32 s{sTB}, s{sIDX}, 4", f"s_and_b32 s{sHP}, s{sIDX}, 15")
    e(f"s_lshr_b32 s{sSB}, s{sCB}, 1", f"s_and_b32 s{sKIND}, s{sCB}, 1", f"s_mov_b32 s{sSPIN}, 0")
    for R, n in ((R_XA, 2 << 20), (R_WKV, 16384), (R_WQ, 512 << 10), (R_WS, WS_BYTES)):
        e(f"s_mov_b32 s{R+2}, {hex(n)}", f"s_mov_b32 s{R+3}, 0x20000")
    e(f"s_cmp_ge_u32 s{sW}, 8", "s_cbranch_scc1 L_q", f"s_cmp_ge_u32 s{sW}, 4", "s_cbranch_scc1 L_aux")
def srds(e, lst):
    size = {R_WOA: 512 << 10, R_XB: 2 << 20, R_WB: 1536 << 10, R_WOB: 512 << 10, R_OUT: 4 << 20}
    slot = {R_WOA: 32, R_XB: 40, R_WB: 48, R_WOB: 56, R_OUT: 64}
    for R in lst: e(f"s_load_dwordx2 s[{R}:{R+1}], s[0:1], {slot[R]}", f"s_mov_b32 s{R+2}, {hex(size[R])}", f"s_mov_b32 s{R+3}, 0x20000")

vHC, vH1, vHT = 5, 6, 7
def h_kv(e):
    fx, fw, acc = 32, 48, 24
    e.c("---- H: K/V projection")
    e("s_setprio 3")
    xa_voff(e, 8, 12)
    for z in range(1, 4): e(f"v_xor_b32 v{8+z}, {z<<6}, v8")
    e("v_lshlrev_b32 v12, 4, v0")
    e(f"s_add_u32 s{sO+3}, s{sRB}, s{sI}", f"s_and_b32 s{sO+3}, s{sO+3}, 3")
    e(f"s_lshr_b32 s{sO+1}, s{sIDX}, 1", f"s_lshl_b32 s{sO+1}, s{sO+1}, 14", f"s_lshl_b32 s{sO+2}, s{sO+3}, 8", f"s_add_u32 s{sO+1}, s{sO+1}, s{sO+2}")
    e(f"s_lshl_b32 s{sT}, s{sI}, 15", f"s_lshl_b32 s{sO+2}, s{sSB}, 12", f"s_add_u32 s{sT}, s{sT}, s{sO+2}")
    e(f"s_lshl_b32 s{sT+1}, s{sI}, 12", f"s_add_u32 s{sT+1}, s{sT+1}, {WKV_L}", f"s_lshl_b32 s{sO+3}, s{sO+3}, 12")
    e("s_waitcnt lgkmcnt(0)")
    for z in range(4):
        e(f"s_add_u32 m0, s{sT}, {z*1024}", f"s_add_u32 s{sO}, s{sO+1}, {z*4096}")
        dma(e, 8 + z, R_XA, sO, nt=True)
        e(f"s_add_u32 m0, s{sT+1}, {z*1024}", f"s_add_u32 s{sO}, s{sO+3}, {z*1024}")
        dma(e, 12, R_WKV, sO)
    load_epoch(e)
    e("s_barrier")
    stamp_init(e)
    e(f"v_mov_b32 v{vHC}, {CNT}", f"v_mov_b32 v{vH1}, 1")
    e("v_and_b32 v2, 15, v0", "v_lshrrev_b32 v3, 4, v0", "v_xor_b32 v4, v2, v3", "v_lshlrev_b32 v4, 4, v4", "v_lshl_add_u32 v4, v2, 8, v4")
    e(f"v_add_u32 v8, s{sT}, v4")
    for q in range(1, 4): e(f"v_xor_b32 v{8+q}, {q<<6}, v8")
    e("v_bfe_u32 v4, v0, 2, 2", "v_lshl_add_u32 v4, v3, 3, v4", "v_lshlrev_b32 v4, 5, v4", "v_and_b32 v13, 3, v0", "v_lshl_add_u32 v4, v13, 3, v4")
    e(f"v_add_u32 v13, s{sT+1}, v4", f"v_add_u32 v14, s{sT+1}, v12")
    e(f"s_lshl_b32 s{sO}, s{sI}, 2", f"v_add_u32 v15, s{sO}, v{vHC}")
    e(f"s_lshl_b32 s{sO}, s{sRB}, 11")
    e(f"s_lshr_b32 s{sO+1}, s{sSB}, 1", f"s_lshl_b32 s{sO+1}, s{sO+1}, 10", f"s_and_b32 s{sO+2}, s{sSB}, 1", f"s_lshl_b32 s{sO+2}, s{sO+2}, 8")
    e(f"s_add_u32 s{sO+1}, s{sO+1}, s{sO+2}", f"s_add_u32 s{sO+1}, s{sO+1}, {KW}")
    e(f"s_lshl_b32 s{sO+2}, s{sSB}, 9", f"s_add_u32 s{sO+2}, s{sO+2}, {VW}")
    e(f"s_cmp_eq_u32 s{sKIND}, 0", f"s_cselect_b32 s{sO+1}, s{sO+1}, s{sO+2}", f"s_cselect_b32 s{sO+2}, 9, 8", f"s_add_u32 s{sO+4}, s{sO}, s{sO+1}")
    e("v_and_b32 v4, 1, v3", f"v_lshlrev_b32 v4, s{sO+2}, v4", "v_lshl_add_u32 v20, v2, 4, v4")
    e(f"s_lshl_b32 s{sO+5}, s{sIDX}, 7", f"s_add_u32 s{sO+5}, s{sO+5}, {F1}")
    get_epoch(e)
    e("s_waitcnt vmcnt(0)")
    stamp(e, 1)
    for q in range(4):
        e(f"ds_read_b128 {vr(fx+4*q,4)}, v{8+q}")
        e(f"ds_read_b64_tr_b16 {vr(fw+4*q,2)}, v13 offset:{q*1024}", f"ds_read_b64_tr_b16 {vr(fw+4*q+2,2)}, v13 offset:{q*1024+128}")
    sig(e, 15, vH1, LAND)
    e(f"s_cmp_lg_u32 s{sKIND}, 0", "s_cbranch_scc1 L_kv_v")
    for kind in range(2):
        for q in range(4):
            a, b = (fw, fx) if kind == 0 else (fx, fw)
            e(f"s_waitcnt lgkmcnt({10-3*q})", f"{MF16} {vr(acc,4)}, {vr(a+4*q,4)}, {vr(b+4*q,4)}, {'0' if q == 0 else vr(acc,4)}")
        if kind == 0:
            e("s_branch L_kv_d"); e.lab("L_kv_v")
    e.lab("L_kv_d")
    e(f"s_cmp_eq_u32 s{sI}, 0", "s_cbranch_scc1 L_kv_0", "s_nop 5")
    e(f"ds_write_b128 v14, {vr(acc,4)}")
    sig(e, vHC, vH1, HCNT)
    e("s_branch L_h2")
    e.lab("L_kv_0")
    lds_wait(e, vHC, vHT, 3, HCNT, sleep=0)
    for k in range(1, 4): e(f"ds_read_b128 {vr(fx+4*k,4)}, v14 offset:{k*4096}")
    e("s_waitcnt lgkmcnt(1)")
    for k in range(2): e(f"v_pk_add_f32 {vr(fx+4+2*k,2)}, {vr(fx+4+2*k,2)}, {vr(fx+8+2*k,2)}")
    e("s_waitcnt lgkmcnt(0)")
    for k in range(2): e(f"v_pk_add_f32 {vr(acc+2*k,2)}, {vr(acc+2*k,2)}, {vr(fx+12+2*k,2)}")
    for k in range(2): e(f"v_pk_add_f32 {vr(acc+2*k,2)}, {vr(acc+2*k,2)}, {vr(fx+4+2*k,2)}")
    e(f"v_cvt_pk_bf16_f32 v28, v{acc}, v{acc+1}", f"v_cvt_pk_bf16_f32 v29, v{acc+2}, v{acc+3}", "s_nop 1")
    e("v_permlane32_swap_b32 v28, v30", "v_permlane32_swap_b32 v29, v31", "s_mov_b32 exec_hi, 0", "s_nop 0")
    e(f"buffer_store_dwordx4 v[28:31], v20, {sr(R_WS,4)}, s{sO+4} offen{SC}", "s_mov_b64 exec, -1")
    if "gate1" in OPT: sig(e, vHC, vH1, KVF)
    sig(e, vHC, vH1, HCNT)
    stamp(e, 2)
    e("s_waitcnt vmcnt(0)")
    set_flag(e, sO+5, 2, 3)
    if "gate2" in OPT: sig(e, vHC, vH1, KVF)
    stamp(e, 3)
    e("s_branch L_h2")

vT0, vQ16, vAN, vT1, AQ, AK, AV, S0, S1, AO, ANM = 0, 1, 2, 3, 4, 8, 40, 104, 120, 136, 152
vVo, vFa, vC, v1_ = S1, S1+1, S1+2, S1+3
def zero_pr(e):
    e(f"s_lshl_b32 s{sO}, s{sW}, 8", f"s_add_u32 m0, s{sO}, {PR_L - 1024}", "v_mov_b32 v2, 0", "ds_write_addtid_b32 v2")
def f_load(e):
    e.lab("L_aux")
    e.c("---- F: bulk loads")
    zero_pr(e)
    xa_voff(e, 8, 12)
    e(f"s_lshl_b32 s{sO}, s{sI}, 6", f"v_xor_b32 v8, s{sO}, v8")
    e("v_lshrrev_b32 v2, 3, v0", "v_bfe_u32 v3, v0, 4, 1", "v_lshlrev_b32 v3, 2, v3", "v_and_b32 v4, 7, v0", "v_xor_b32 v4, v4, v3")
    e("v_lshlrev_b32 v4, 4, v4", "v_lshl_add_u32 v12, v2, 10, v4")
    e(f"s_lshl_b32 s{sT}, s{sI}, 12")
    e(f"s_lshl_b32 s{sT+1}, s{sI}, 15", f"s_lshl_b32 s{sO}, s{sCB}, 7", f"s_add_u32 s{sT+1}, s{sT+1}, s{sO}")
    e(f"s_lshl_b32 s{sT+2}, s{sRB}, 16", f"s_add_u32 s{sT+2}, s{sT+2}, s{sT}", f"s_lshl_b32 s{sT+9}, s{sI}, 10")
    for du in range(1, 4):
        e(f"s_add_u32 s{sO}, s{sSB}, {du}", f"s_and_b32 s{sO}, s{sO}, 3")
        e(f"s_lshl_b32 s{sT+2+du}, s{sO}, 14", f"s_add_u32 s{sT+2+du}, s{sT+2+du}, s{sT+2}")
        e(f"s_lshl_b32 s{sT+5+du}, s{sO}, 12", f"s_add_u32 s{sT+5+du}, s{sT+5+du}, s{sT+9}")
    e(f"v_mov_b32 v{vC}, {CNT}", f"v_mov_b32 v{v1_}, 1")
    e("s_waitcnt lgkmcnt(0)")
    load_epoch(e)
    e("s_barrier")
    def chunk(sg):
        e(f"s_add_u32 s{sO+1}, s{sRB}, {sg}", f"s_and_b32 s{sO+1}, s{sO+1}, 3", f"s_lshl_b32 s{sO+2}, s{sO+1}, 8")
        e(f"s_lshl_b32 s{sO+1}, s{sO+1}, 17", f"s_add_u32 s{sO+1}, s{sO+1}, s{sT+1}")
        for i in range(4):
            e(f"s_add_u32 m0, s{sT}, {sg*SLOT + 16384 + i*1024}", f"s_add_u32 s{sO}, s{sO+1}, {i*8192}")
            dma(e, 12, R_WQ, sO)
        for du in range(1, 4):
            e(f"s_add_u32 m0, s{sT+5+du}, {sg*SLOT}", f"s_add_u32 s{sO}, s{sT+2+du}, s{sO+2}")
            dma(e, 8, R_XA, sO, nt=True)
    gated = "gate1" in OPT or "gate2" in OPT
    nb = 2 if gated else 4
    for sg in range(nb): chunk(sg)
    stamp_init(e)
    if gated:
        att_consts(e)
        get_epoch(e)
        e("s_waitcnt vmcnt(7)"); sig(e, vC, v1_, LAND)
        lds_wait(e, vC, S0, 1, KVF, sleep=1)
        chunk(2)
        e("s_waitcnt vmcnt(7)"); sig(e, vC, v1_, LAND + 4)
        chunk(3)
        stamp(e, 1)
        for sg in range(2, 4):
            e(f"s_waitcnt vmcnt({21-7*sg})"); sig(e, vC, v1_, LAND + 4*sg)
    else:
        stamp(e, 1)
        for sg in range(4):
            e(f"s_waitcnt vmcnt({21-7*sg})"); sig(e, vC, v1_, LAND + 4*sg)
        att_consts(e)
        get_epoch(e)
    stamp(e, 2)
    e("s_branch L_f2")

sAW, sP, sExp = sT+8, sT+9, sT+10
def att_consts(e):
    e(f"v_and_b32 v{S0}, 31, v0", f"v_cmp_eq_u32 vcc, 16, v{S0}", f"v_mov_b32 v{S0+1}, 0x3f803f80", f"v_lshlrev_b32 v{vQ16}, 4, v0")
    e(f"v_cndmask_b32 v{AV}, 0, v{S0+1}, vcc")
    for r in range(1, 64): e(f"v_mov_b32 v{AV+r}, v{AV}")
    e(f"v_lshlrev_b32 v{vAN}, 4, v{S0}", f"v_add_u32 v{vAN}, {NM_L}, v{vAN}")
    e(f"v_lshrrev_b32 v{vVo}, 5, v0", f"v_lshlrev_b32 v{vVo}, 8, v{vVo}", f"v_and_b32 v{S0+2}, 15, v0", f"v_lshl_add_u32 v{vVo}, v{S0+2}, 4, v{vVo}")
def gather_bases(e):
    e(f"s_sub_u32 s{sAW}, s{sW}, 4", f"s_lshl_b32 s{sO+2}, s{sAW}, 13")
    e(f"s_add_u32 s{sO}, s{sO+2}, {KW}", f"s_add_u32 s{sO+1}, s{sO+2}, {VW}", f"s_add_u32 s{sO+2}, s{sO}, 4096", f"s_add_u32 s{sO+3}, s{sO+1}, 4096")
def gather(e, t0, t1):
    for t in range(t0, t1):
        e(f"buffer_load_dwordx4 {vr(AK+4*t,4)}, v{vQ16}, {sr(R_WS,4)}, s{sO+2*(t>>2)} offen offset:{(t&3)*1024}{SC}")
        e("s_mov_b32 exec_lo, 0xffff", "s_mov_b32 exec_hi, 0xffff")
        for f in (2*t, 2*t+1):
            e(f"buffer_load_dwordx4 {vr(AV+4*f,4)}, v{vVo}, {sr(R_WS,4)}, s{sO+1+2*(t>>2)} offen offset:{(f&7)*512}{SC}")
        e("s_mov_b64 exec, -1")
def att_addrs(e):
    e(f"s_mul_i32 s{sExp}, s{sI}, {OS_PAIR}", f"s_add_u32 s{sExp}, s{sExp}, {OS_L}")
    e(f"v_add_u32 v{vT1}, s{sExp}, v{vQ16}", f"v_lshl_add_u32 v{vT0}, v0, 2, s{sExp}", f"v_add_u32 v{vQ16}, {QI_L}, v{vQ16}")
    e(f"s_lshl_b32 s{sO+4}, s{sI}, 8", f"s_add_u32 m0, s{sO+4}, {PR_L}")

def s_qproj(e):
    vXa, vWa, vXb, vWb, vSt, vLd = 8, 16, 17, 25, 26, 27
    acc, fr, NF, T = 104, 124, 5, 28
    a_, b_, c_, d_ = T, T+1, T+2, T+3
    e.lab("L_q")
    e.c("---- S: Q projection")
    zero_pr(e)
    e(f"s_mov_b32 m0, {CNT}", "s_nop 0", "ds_write_addtid_b32 v2", "s_waitcnt lgkmcnt(0)")
    load_epoch(e)
    e("s_barrier")
    stamp_init(e)
    e(f"v_mov_b32 v{vC}, {CNT}", f"v_mov_b32 v{v1_}, 1")
    if "tlb" in OPT:
        e("s_load_dwordx8 s[44:51], s[0:1], 32", "s_load_dwordx2 s[52:53], s[0:1], 64", "s_waitcnt lgkmcnt(0)")
        e(f"s_mov_b32 s{sO}, 0x200000", f"s_mov_b32 s{sO+1}, 0x1ffffc")
        for k, R in enumerate((44, 46, 48, 50, 52, R_WS)): e(f"s_load_dword s{54+k}, s[{R}:{R+1}], 0")
        e(f"s_load_dword s60, s[52:53], s{sO}", f"s_load_dword s61, s[{R_WS}:{R_WS+1}], s{sO}", f"s_load_dword s62, s[46:47], s{sO+1}")
    att_consts(e)
    e(f"s_and_b32 s{sO}, s{sI}, 1", f"s_lshl_b32 s{sO}, s{sO}, 13")
    e(f"v_and_b32 v{a_}, 31, v0", f"v_lshrrev_b32 v{b_}, 5, v0", f"v_and_b32 v{c_}, 15, v0", f"v_xor_b32 v{c_}, v{c_}, v{b_}")
    e(f"v_lshl_add_u32 v{d_}, v{a_}, 8, s{sO}", f"v_lshl_add_u32 v{vXa}, v{c_}, 4, v{d_}")
    for s in range(1, 8): e(f"v_xor_b32 v{vXa+s}, {s<<5}, v{vXa}")
    e(f"v_bfe_u32 v{a_}, v0, 2, 2", f"v_lshl_add_u32 v{c_}, v{b_}, 3, v{a_}", f"v_lshlrev_b32 v{c_}, 7, v{c_}", f"v_lshrrev_b32 v{a_}, 1, v{a_}")
    e(f"s_lshr_b32 s{sO}, s{sI}, 1", f"v_xor_b32 v{a_}, s{sO}, v{a_}", f"v_lshl_add_u32 v{c_}, v{a_}, 6, v{c_}")
    e(f"v_bfe_u32 v{a_}, v0, 4, 1", f"v_lshl_add_u32 v{c_}, v{a_}, 5, v{c_}", f"v_and_b32 v{a_}, 3, v0", f"v_lshl_add_u32 v{c_}, v{a_}, 3, v{c_}")
    e(f"v_add_u32 v{vWa}, 16384, v{c_}", f"v_lshl_add_u32 v{vLd}, v{a_}, 2, v{vC}")
    for s in range(9): e(f"v_add_u32 v{vXb+s}, 65536, v{vXa+s}")
    get_epoch(e)
    e(f"s_mov_b32 s{sT+6}, {hex(f32bits(CSC))}")
    e(f"s_and_b32 s{sO}, s{sI}, 2", f"s_add_u32 s{sO}, s{sO}, s{sI}", f"s_lshl_b32 s{sO}, s{sO}, 10", f"s_add_u32 s{sO}, s{sO}, {QI_L}", f"v_add_u32 v{b_}, s{sO}, v{vQ16}")
    e(f"s_lshl_b32 s{sO}, s{sI}, 2", f"v_add_u32 v{vFa}, s{sO}, v{vC}")
    gather_bases(e)
    def landwait(mask):
        lq = e.uniq("ql")
        e.lab(lq)
        e(f"ds_read_b32 v{a_}, v{vLd} offset:{LAND}", "s_waitcnt lgkmcnt(0)", f"v_cmp_gt_u32 vcc, 5, v{a_}")
        e(f"s_and_b32 s{sO+5}, vcc_lo, 15", f"s_and_b32 s{sO+4}, s{sO+5}, {mask}", f"s_cbranch_scc0 {lq}_d")
        spin_tail(e, lq, 1)
        e.lab(lq + "_d")
    def rd(n):
        sg, s = n >> 3, n & 7
        so = (sg & 1) * SLOT
        xa, wa = (vXa + s, vWa) if sg < 2 else (vXb + s, vWb)
        f = fr + 8 * (n % NF)
        e(f"ds_read_b128 {vr(f,4)}, v{xa} offset:{so}")
        e(f"ds_read_b64_tr_b16 {vr(f+4,2)}, v{wa} offset:{so+s*2048}", f"ds_read_b64_tr_b16 {vr(f+6,2)}, v{wa} offset:{so+s*2048+512}")
    e("s_setprio 3")
    landwait(1)
    stamp(e, 16)
    for n in range(NF): rd(n)
    for n in range(32):
        f = fr + 8 * (n % NF)
        e(f"s_waitcnt lgkmcnt({min(3*(NF-1), 3*(31-n))})", f"{MF32} {vr(acc,16)}, {vr(f+4,4)}, {vr(f,4)}, {'0' if n == 0 else vr(acc,16)}")
        if n + NF < 32:
            if (n + NF) % 8 == 0:
                bit = 1 << ((n + NF) >> 3)
                sk = e.uniq("lok")
                e(f"s_and_b32 s{sO+4}, s{sO+5}, {bit}", f"s_cbranch_scc0 {sk}")
                landwait(bit)
                e.lab(sk)
                if "qst" in OPT: stamp(e, 16 + ((n + NF) >> 3))
            rd(n + NF)
    if "qst" in OPT: stamp(e, 20)
    e(f"v_mov_b32 v{c_}, s{sT+6}", "s_nop 10")
    for r in range(8): e(f"v_pk_mul_f32 {vr(acc+2*r,2)}, {vr(acc+2*r,2)}, {vr(c_,2)} op_sel_hi:[1,0]")
    P = AO
    for j in range(8): e(f"v_cvt_pk_bf16_f32 v{P+j}, v{acc+2*j}, v{acc+2*j+1}")
    e(f"ds_write_b128 v{b_}, {vr(P,4)}", f"ds_write_b128 v{b_}, {vr(P+4,4)} offset:2048")
    sig(e, vC, v1_, ACNT)
    stamp(e, 2)
    lds_wait(e, vFa, S0+2, 1, SOK)
    lds_wait(e, vC, S0+2, 4, GCNT, sleep=2)
    if "sl" in OPT: lds_wait(e, vC, S0+2, 8, QST, sleep=2)
    if "sdelay" in OPT: lds_wait(e, vC, S0+2, 1, RDY1)
    stamp(e, 7)
    gather(e, 0, 8)
    sig(e, vC, v1_, GCNT)

def pk(S, j):
    d = S + (j if j < 4 else 4 + j)
    return f"v_cvt_pk_bf16_f32 v{d}, v{S+2*j}, v{S+2*j+1}"
def rdq(e):
    e(f"ds_read_b128 {vr(AQ,4)}, v{vQ16}")
    for k in range(4): e(f"ds_read_b128 {vr(ANM+4*k,4)}, v{vAN}")
def dump(e, kind):
    e(f"ds_write_b128 v{vT1}, {vr(AO,4)}", f"ds_write_b128 v{vT1}, {vr(AO+4,4)} offset:1024", f"ds_write_b32 v{vT0}, v{AO+8} offset:2048")
    e(f"ds_write_addtid_b32 v{vT1} offset:{0 if kind == 'F' else 1024}")
def advance(e):
    e(f"v_add_u32 v{vT1}, {OS_POS}, v{vT1}", f"v_add_u32 v{vT0}, {OS_POS}, v{vT0}")
def init_o(e, off):
    e(f"ds_read_b128 {vr(AO,4)}, v{vT1} offset:{off}", f"ds_read_b128 {vr(AO+4,4)}, v{vT1} offset:{off+1024}", f"ds_read_b32 v{AO+8}, v{vT0} offset:{off+2048}")

def att_block(e, mode):
    kind = "F" if mode[0] == "F" else "S"
    lo = LOF if kind == "F" else LOS
    def prio(p):
        if YS and mode in YMODES: return
        if mode != "B" and "noprio" not in OPT: e(f"s_setprio {p}")
        elif mode == "B" and "btog" in OPT: e(f"s_setprio {p}")
    for t in range(8):
        Sc, Sn = (S0, S1) if t % 2 == 0 else (S1, S0)
        tp, tn = (t - 1) % 8, (t + 1) % 8
        def X(*toks):
            for k in toks:
                X1(k)
                if YS and mode in YMODES and k in YS: e("s_nop 0")
        def X1(*toks):
            for k in toks: e(f"v_exp_f32 v{Sc+k}, v{Sc+k}" if isinstance(k, int) else pk(Sc, int(k[1:])))
        c0 = "0" if (t == 1 and kind == "F") else vr(AO, 16)
        pv0 = f"{MF32} {vr(AO,16)}, {vr(AV+8*tp,4)}, {vr(Sn,4)}, {c0}"
        pv1 = f"{MF32} {vr(AO,16)}, {vr(AV+8*tp+4,4)}, {vr(Sn+8,4)}, {vr(AO,16)}"
        qk = f"{MF32} {vr(Sn,16)}, {vr(AK+4*tn,4)}, {vr(AQ,4)}, {vr(ANM,16)}"
        if t == 1 and kind == "S":
            X(0); e(pk(Sn, 7)); X(1, 2)
            e("s_waitcnt lgkmcnt(0)", pv0); X(3, "p0", 4, "p1")
            e(pv1); X(5, 6, "p2", 7)
            e(qk); prio(lo)
            X(8, "p3", 9, 10, "p4", 11, 12)
            e("s_wakeup")
            prio(3)
            X("p5", 13, 14, "p6", 15)
            continue
        skip_pv = mode == "F0" and t == 0
        if mode == "F0" and t > 0: e(f"s_waitcnt vmcnt({max(0, 23 - 3*(t+1))})")
        if not skip_pv: e(pv0)
        X(0)
        if not skip_pv: e(pk(Sn, 7))
        X(1, 2)
        if not skip_pv: e(pv1)
        X(3, "p0", 4, "p1")
        if t == 7: e("s_waitcnt lgkmcnt(0)")
        if t == 7 and mode == "B": e(f"v_readfirstlane_b32 s{sPOLL}, v{Sn+4}")
        if skip_pv: e("s_waitcnt vmcnt(20)")
        e(qk)
        prio(lo)
        X(5, 6, "p2", 7, 8, "p3")
        if t == 0 and mode != "F0":
            if YS and mode in YMODES and not any(k in YS for k in (5, 6, 7, 8)): e("s_nop 0")
            if mode == "S":
                dump(e, kind); init_o(e, OS_POS); advance(e)
            elif mode == "F":
                dump(e, kind); advance(e)
            else:
                sk = e.uniq("nodump")
                e(f"s_cmp_eq_u32 s{sP}, {1 if mode == 'F' else 0}", f"s_cbranch_scc1 {sk}")
                dump(e, kind); advance(e)
                if mode == "B": e(f"s_add_u32 s{sExp}, s{sExp}, {OS_POS}")
                e.lab(sk)
                if mode == "B":
                    e(f"s_cmp_ge_u32 s{sPOLL}, s{sExp}", "s_cbranch_scc0 L_swait")
                    e.lab("L_swait_ret")
                    init_o(e, 0)
        X(9)
        if t == 6:
            if mode == "F0":
                e(f"v_mov_b32 v{Sc+4}, {CNT}")
                lds_wait(e, Sc+4, Sc+5, 8, ACNT, sleep=1)
            e(f"v_add_u32 v{vQ16}, 1024, v{vQ16}", f"v_add_u32 v{vAN}, 512, v{vAN}")
            rdq(e)
            if mode == "B": e(f"ds_read_addtid_b32 v{Sc+4}")
        X(10, "p4", 11, 12)
        w = WIN if kind == "F" else 12
        if w == 12: prio(3)
        X("p5", 13)
        if w == 13: prio(3)
        X(14)
        if w == 14: prio(3)
        X("p6", 15)
        if w == 15: prio(3)

def att_finish(e, kind):
    e(f"{MF32} {vr(AO,16)}, {vr(AV+8*7,4)}, {vr(S1,4)}, {vr(AO,16)}", pk(S1, 7), "s_nop 1")
    e(f"{MF32} {vr(AO,16)}, {vr(AV+8*7+4,4)}, {vr(S1+8,4)}, {vr(AO,16)}", "s_nop 11")
    dump(e, kind)
    e("s_waitcnt lgkmcnt(0)", "s_wakeup")
def qk0(e):
    e(f"{MF32} {vr(S0,16)}, {vr(AK,4)}, {vr(AQ,4)}, {vr(ANM,16)}", "s_nop 11")

def f_att(e):
    e.lab("L_f2")
    e("s_setprio 3")
    gather_bases(e)
    e(f"s_lshl_b32 s{sO+4}, s{sI}, 12", f"s_add_u32 s{sO+4}, s{sO+4}, {F1}", f"v_lshl_add_u32 v{vFa}, v0, 7, s{sO+4}")
    stamp(e, 6)
    gpoll(e, vFa, S0, 0xffffffff, 0, sleep=1)
    stamp(e, 7)
    gather(e, 0, 8)
    sig(e, vC, v1_, GCNT)
    att_addrs(e)
    stamp(e, 8)
    lds_wait(e, vC, S0, 1, RDY1, sleep=0)
    rdq(e)
    e(f"s_mov_b32 s{sP}, 1", "s_waitcnt vmcnt(23) lgkmcnt(0)")
    stamp(e, 3); cstamp(e, 13)
    qk0(e)
    att_block(e, "F0")
    stamp(e, 21); cstamp(e, 10)
    e.L.append("    .p2align 3")
    e.lab("L_floop")
    att_block(e, "F")
    e(f"s_add_u32 s{sP}, s{sP}, 1", f"s_cmp_lt_u32 s{sP}, 8", "s_cbranch_scc1 L_floop")
    att_finish(e, "F")
    stamp(e, 4); cstamp(e, 11)
    e("s_branch L_f3")

def s_att(e):
    att_addrs(e)
    e(f"s_mov_b32 s{sP}, 0", f"v_mov_b32 v{S0}, m0", "s_setprio 0")
    stamp(e, 8)
    if SHOLD: lds_wait(e, vC, S0+1, SHOLD, HCNT, sleep=16)
    lds_wait(e, S0, S0+1, 1, sleep=6)
    rdq(e)
    e("s_waitcnt vmcnt(0) lgkmcnt(0)")
    stamp(e, 3); cstamp(e, 13)
    qk0(e)
    e.L.append("    .p2align 3")
    e.lab("L_bloop")
    att_block(e, "B")
    e(f"s_add_u32 s{sP}, s{sP}, 1", f"s_cmp_ge_u32 s{sP}, 8", "s_cbranch_scc1 L_sfin")
    e(f"s_cmp_lt_u32 s{sPOLL}, {OS_L + 7*OS_POS}", "s_cbranch_scc1 L_bloop")
    stamp(e, 5)
    e("s_setprio 3")
    e.L.append("    .p2align 3")
    e.lab("L_sloop")
    att_block(e, "S")
    e(f"s_add_u32 s{sP}, s{sP}, 1")
    if STAMPS:
        e(f"s_cmp_lg_u32 s{sP}, 4", "s_cbranch_scc1 L_sns"); stamp(e, 4); cstamp(e, 10); e.lab("L_sns")
    e(f"s_cmp_lt_u32 s{sP}, 8", "s_cbranch_scc1 L_sloop")
    e.lab("L_sfin")
    att_finish(e, "S")
    if "s3pub" in OPT:
        e(f"s_cmp_lg_u32 s{sI}, 3", "s_cbranch_scc1 L_sx")
        stamp(e, 9)
        lane_id(e)
        out_prep(e)
        pub(e, 4, fast=True)
        e(f"v_mov_b32 v{vHC}, {CNT}", f"ds_write_b32 v{vHC}, v{vHC} offset:{QST}", "s_waitcnt lgkmcnt(0)", "s_wakeup")
        e.lab("L_sx")
    finish(e)
    e.lab("L_swait")
    e(f"v_mov_b32 v{S0+4}, m0")
    lds_wait(e, S0+4, S0+5, f"s{sExp}", sleep=4)
    e("s_branch L_swait_ret")

sBX, sBH, sBW, sKC, sBXL, sBHL, sBWL = sT, sT+1, sT+2, sT+3, sT+4, sT+5, sT+6
BA = 8
aq, ak, av, ahk, ahv, MC = 24, 40, 56, 72, 76, 80
MP = MC + 4
FR = 104
def b_prep(e):
    e.c("---- B prep")
    e("v_lshrrev_b32 v20, 3, v0", "v_and_b32 v21, 7, v0", "v_lshrrev_b32 v22, 1, v20", "v_xor_b32 v23, v21, v22", "v_lshlrev_b32 v23, 4, v23")
    e("v_lshl_add_u32 v1, v20, 11, v23", "v_xor_b32 v2, 64, v1")
    e(f"s_lshl_b32 s{sO}, s{sI}, 5", f"v_xor_b32 v3, s{sO}, v1")
    e("v_and_b32 v22, 1, v22", "v_lshlrev_b32 v22, 2, v22", "v_xor_b32 v23, v21, v22", "v_lshlrev_b32 v23, 4, v23")
    e("v_mul_u32_u24 v20, 3072, v20", "v_add_u32 v4, v20, v23", "v_xor_b32 v16, 32, v4")
    e(f"s_and_b32 s{sO}, s{sI}, 1", f"s_lshr_b32 s{sO+1}, s{sI}, 1", f"s_lshl_b32 s{sO+1}, s{sO+1}, 10")
    e(f"s_lshl_b32 s{sBX}, s{sRB}, 16", f"s_max_u32 s{sBH}, s{sBX}, 16384", f"s_sub_u32 s{sBH}, s{sBH}, 16384")
    e(f"s_add_u32 s{sBX}, s{sBX}, s{sO+1}", f"s_add_u32 s{sBH}, s{sBH}, s{sO+1}")
    e(f"s_lshl_b32 s{sO+1}, s{sO}, 15", f"s_add_u32 s{sBX}, s{sBX}, s{sO+1}")
    e(f"s_lshl_b32 s{sO+1}, s{sO}, 13", f"s_add_u32 s{sBH}, s{sBH}, s{sO+1}")
    e(f"s_mul_i32 s{sBW}, s{sI}, {16*3072}", f"s_lshl_b32 s{sO+1}, s{sCB}, 7", f"s_add_u32 s{sBW}, s{sBW}, s{sO+1}")
    e(f"s_lshl_b32 s{sKC}, s{sRB}, 1", f"s_add_u32 s{sKC}, s{sKC}, s{sCB}")
    e(f"s_lshl_b32 s{sBWL}, s{sI}, 11", f"s_add_u32 s{sBXL}, s{sBWL}, {RXO + 2048}", f"s_lshl_b32 s{sBHL}, s{sI}, 9", f"s_add_u32 s{sBHL}, s{sBHL}, {RXO}")
    e("v_and_b32 v20, 31, v0", "v_lshrrev_b32 v21, 5, v0", "v_bfe_u32 v22, v0, 1, 3", "v_xor_b32 v22, v22, v21", "v_lshlrev_b32 v22, 4, v22", "v_lshl_add_u32 v22, v20, 7, v22")
    e(f"s_lshl_b32 s{sO}, s{sO}, 12", f"s_add_u32 s{sO}, s{sO}, {RXO + 2048}", f"v_add_u32 v{BA}, s{sO}, v22")
    for s in range(1, 4): e(f"v_xor_b32 v{BA+s}, {s<<5}, v{BA}")
    e("v_bfe_u32 v20, v0, 2, 2", "v_and_b32 v23, 3, v0", "v_and_b32 v17, 2, v20", "v_or_b32 v18, v17, v21", "v_bfe_u32 v19, v0, 4, 1")
    e(f"s_and_b32 s{sO}, s{sI}, 2", f"v_or_b32 v19, s{sO}, v19", "v_xor_b32 v18, v18, v19")
    e("v_lshl_add_u32 v22, v21, 3, v20", "v_lshlrev_b32 v22, 7, v22", "v_lshl_add_u32 v22, v18, 5, v22", f"v_lshl_add_u32 v{BA+4}, v23, 3, v22")
    e("v_lshrrev_b32 v21, 4, v0", "v_bfe_u32 v22, v0, 1, 3", "v_xor_b32 v22, v22, v21", "v_lshlrev_b32 v22, 4, v22", "v_and_b32 v19, 15, v0")
    e("v_lshl_add_u32 v22, v19, 7, v22", f"v_add_u32 v{BA+5}, {RXO}, v22", f"v_xor_b32 v{BA+6}, 64, v{BA+5}")
    e("v_and_b32 v18, 1, v21", "v_or_b32 v18, v17, v18", f"v_xor_b32 v18, s{sI}, v18")
    e("v_lshl_add_u32 v22, v21, 3, v20", "v_lshlrev_b32 v22, 7, v22", "v_lshl_add_u32 v22, v18, 5, v22", f"v_lshl_add_u32 v{BA+7}, v23, 3, v22")
    e(f"v_mov_b32 v{MC}, {hex(f32bits(-1e30))}")
    for r in range(1, 20): e(f"v_mov_b32 v{MC+r}, v{MC}")
    def setm(reg, r, shift):
        m = 0
        for l in range(64):
            d = (l & 31) - ((r & 3) + 8 * (r >> 2) + 4 * (l >> 5)) + shift
            if 0 <= d <= 7: m |= 1 << l
        if m: e(f"s_mov_b32 exec_lo, {hex(m & 0xffffffff)}", f"s_mov_b32 exec_hi, {hex(m >> 32)}", f"v_mov_b32 v{reg}, 0")
    for r in range(16): setm(MC + r, r, 0)
    e(f"s_cmp_eq_u32 s{sRB}, 0", "s_cbranch_scc1 L_nomp")
    for r in range(12, 16): setm(MP + r, r, 32)
    e.lab("L_nomp")
    e("s_mov_b64 exec, -1")

def h_qprep(e):
    T, QK, SA, SB, KS = 20, 104, 120, 136, 24
    e.c("---- H: max images of positions i, 4+i")
    e(f"v_lshlrev_b32 v{T+2}, 4, v0")
    e(f"s_lshl_b32 s{sO+4}, s{sI}, 13", f"s_add_u32 s{sO+4}, s{sO+4}, {KW + 32768}")
    e(f"s_lshl_b32 s{sO+5}, s{sI}, 12", f"s_add_u32 s{sO+5}, s{sO+5}, {F1 + 16384}", f"v_lshl_add_u32 v{T+3}, v0, 7, s{sO+5}")
    e(f"s_lshl_b32 s{sO+5}, s{sI}, 2", f"v_add_u32 v17, s{sO+5}, v{vHC}")
    e(f"s_lshl_b32 s{sO}, s{sI}, 10", f"s_add_u32 s{sO}, s{sO}, {QI_L}", f"v_add_u32 v{T}, s{sO}, v{T+2}", f"v_and_b32 v18, 0x1ff, v{T+2}")
    e(f"s_lshl_b32 s{sO}, s{sI}, 9", f"s_add_u32 s{sO}, s{sO}, {NM_L}", f"v_add_u32 v18, s{sO}, v18")
    lds_wait(e, vHC, vHT, 5, LAND + (8 if "early" in OPT else 12), sleep=1)
    gpoll(e, T + 3, T + 1, 0x5555 if "sub" in OPT else 0xffffffff, 0, sleep=1)
    for t in range(NSAMP): e(f"buffer_load_dwordx4 {vr(KS+4*t,4)}, v{T+2}, {sr(R_WS,4)}, s{sO+4} offen offset:{1024*t}{SC}")
    if "sub" in OPT: gpoll_issue(e, T + 3, T + 1, 0xffffaaaa)
    else: sig(e, 17, vH1, SOK)
    lds_wait(e, vHC, vHT, 4, ACNT, sleep=1)
    e(f"ds_read_b128 {vr(QK,4)}, v{T}", f"ds_read_b128 {vr(QK+4,4)}, v{T} offset:4096", f"s_waitcnt vmcnt({1 if 'sub' in OPT else 0}) lgkmcnt(0)")
    for z in range(2):
        SS = (SA, SB, 40, 56)
        for t in range(NSAMP): e(f"{MF32} {vr(SS[t],16)}, {vr(KS+4*t,4)}, {vr(QK+4*z,4)}, 0")
        e(f"s_nop {12 - NSAMP}")
        m = 152 + 4*z
        regs = [SS[t] + r for t in range(NSAMP) for r in range(16)]
        e(f"v_max_f32 v{m}, v{regs[0]}, v{regs[1]}")
        for k in range(2, len(regs), 2): e(f"v_max3_f32 v{m}, v{m}, v{regs[k]}, v{regs[k+1]}")
        halfmax(e, m)
        e(f"v_sub_f32 v{m}, {hex(f32bits(-MOFF))}, v{m}")
        for r in range(1, 4): e(f"v_mov_b32 v{m+r}, v{m}")
        e(f"ds_write_b128 v18, {vr(m,4)} offset:{2048*z}")
        if z == 0: e(f"s_cmp_eq_u32 s{sI}, 0", "s_cselect_b32 exec_lo, 1, 0", "s_mov_b32 exec_hi, 0", f"ds_write_b32 v{vHC}, v{vH1} offset:{RDY1}", "s_mov_b64 exec, -1")
        else: sig(e, vHC, vH1, ACNT)
        stamp(e, 9 + z)
        if z == 0 and "sub" in OPT:
            gpoll_finish(e, T + 3, T + 1, 0xffffaaaa, 0)
            sig(e, 17, vH1, SOK)

class Lst(list):
    def __call__(self, *x): self.extend(x)
def b_dma_groups(j):
    ro = (j & 1) * RINGS
    G = [Lst() for _ in range(5)]
    g = G[0]
    g(f"s_add_u32 s{sO+1}, s{sKC}, {j}", f"s_and_b32 s{sO+1}, s{sO+1}, 7", f"s_lshl_b32 s{sO+2}, s{sO+1}, 7", f"s_mul_i32 s{sO+1}, s{sO+1}, {64*3072}")
    g(f"s_add_u32 s{sO+1}, s{sO+1}, s{sBW}", f"s_add_u32 s{sO+3}, s{sO+2}, s{sBX}")
    for u in range(2):
        g(f"s_add_u32 m0, s{sBXL}, {ro + u*1024}", f"s_add_u32 s{sO}, s{sO+3}, {u*16384}")
        dma(g, 1 + u, R_XB, sO, nt="bnt" in OPT)
    for p in range(3):
        g = G[1 + p]
        for u in range(2):
            g(f"s_add_u32 m0, s{sBWL}, {ro + p*8192 + u*1024}", f"s_add_u32 s{sO}, s{sO+1}, {p*1024 + u*8*3072}")
            dma(g, 4 if u == 0 else 16, R_WB, sO)
    g = G[4]
    g(f"s_add_u32 m0, s{sBHL}, {ro}", f"s_add_u32 s{sO}, s{sO+2}, s{sBH}", "s_mov_b32 exec_hi, 0")
    dma(g, 3, R_XB, sO)
    g("s_mov_b64 exec, -1")
    return G
def wo_groups(half):
    G = [Lst() for _ in range(4)]
    G[0](f"s_lshl_b32 s{sO+1}, s{sI}, 16", f"s_lshr_b32 s{sO+2}, s{sHP}, 1", f"s_lshl_b32 s{sO+2}, s{sO+2}, 7", f"s_add_u32 s{sO+1}, s{sO+1}, s{sO+2}", f"s_lshl_b32 s{sO+2}, s{sI}, 13")
    for u in range(8):
        g = G[u >> 1]
        g(f"s_add_u32 m0, s{sO+2}, {half*32768 + u*1024}", f"s_add_u32 s{sO}, s{sO+1}, {half*262144 + u*8192}")
        dma(g, 20, R_WO, sO)
    return G
def wo_voff(e):
    e("v_lshrrev_b32 v20, 3, v0", "v_bfe_u32 v21, v0, 4, 1", "v_lshlrev_b32 v21, 2, v21", "v_and_b32 v22, 7, v0", "v_xor_b32 v21, v21, v22", "v_lshlrev_b32 v21, 4, v21")
    e("v_lshl_add_u32 v20, v20, 10, v21", "v_lshlrev_b32 v21, 7, v0")
    e(f"s_cmp_eq_u32 s{sKIND}, 0", f"s_cselect_b32 s{R_WO}, s{R_WOA}, s{R_WOB}", f"s_cselect_b32 s{R_WO+1}, s{R_WOA+1}, s{R_WOB+1}", f"s_mov_b32 s{R_WO+2}, {hex(512 << 10)}")

def b_proj(e):
    D, XB_, HX_, WB_, NBUF = 4, FR, FR + 8, FR + 12, 12
    jobs = []
    def wreads(buf, areg, off):
        return [f"ds_read_b64_tr_b16 {vr(buf,2)}, v{areg} offset:{off}", f"ds_read_b64_tr_b16 {vr(buf+2,2)}, v{areg} offset:{off+512}"]
    for j in range(8):
        ro = (j & 1) * RINGS
        for s in range(4):
            x = XB_ + 4 * (s & 1)
            for p, acc in enumerate((aq, ak, av)):
                w = WB_ + 4 * (len(jobs) % NBUF)
                rds = ([f"ds_read_b128 {vr(x,4)}, v{BA+s} offset:{ro}"] if p == 0 else []) + wreads(w, BA + 4, ro + p*8192 + s*2048)
                A_, B_ = (w, x) if p < 2 else (x, w)
                jobs.append((rds, f"{MF32} {vr(acc,16)}, {vr(A_,4)}, {vr(B_,4)}, {'0' if (j == 0 and s == 0) else vr(acc,16)}"))
            s2, p = s >> 1, 1 + (s & 1)
            w = WB_ + 4 * (len(jobs) % NBUF)
            rds = ([f"ds_read_b128 {vr(HX_,4)}, v{BA+5+s2} offset:{ro}"] if p == 1 else []) + wreads(w, BA + 7, ro + p*8192 + s2*4096)
            acc = ahk if p == 1 else ahv
            A_, B_ = (w, HX_) if p == 1 else (HX_, w)
            jobs.append((rds, f"{MF16} {vr(acc,4)}, {vr(A_,4)}, {vr(B_,4)}, {'0' if (j == 0 and s2 == 0) else vr(acc,4)}"))
    q = []
    nxt = [0]
    def issue(upto):
        while nxt[0] < min(upto, 128):
            if "bnord" not in OPT or nxt[0] < 16:
                e(*jobs[nxt[0]][0]); q.extend([nxt[0]] * len(jobs[nxt[0]][0]))
            nxt[0] += 1
    e("s_waitcnt vmcnt(9)")
    sig(e, vHC, vH1, HCNT)
    lds_wait(e, vHC, vHT, 8, HCNT)
    stamp(e, 16)
    e(f"s_setprio {HM}")
    issue(D)
    G = []
    PA = 13
    for n in range(128):
        j, r = n >> 4, n & 15
        if n in q:
            last = len(q) - 1 - q[::-1].index(n)
            e(f"s_waitcnt lgkmcnt({len(q) - 1 - last})")
            del q[:last + 1]
        e(jobs[n][1] if "bnomf" not in OPT else "s_sleep 1")
        lim = 16 * (j + 1)
        if r < PA or j == 7: issue(min(n + 1 + D, lim))
        if r == 15 - D and j < 7:
            e(f"s_waitcnt vmcnt({1 if (j in (3, 4) and 'wpf' in OPT) else 0})")
            sig(e, vHC, vH1, HCNT); q.append(-1)
        if r == PA and j < 7:
            if "bwake" in OPT:
                e("s_waitcnt lgkmcnt(0)", "s_wakeup")
            lds_wait(e, vHC, vHT, 4 * (j + 3), HCNT, sleep=BSLEEP); del q[:]
            if j == 3: stamp(e, 17)
            G = b_dma_groups(j + 2) if j < 6 else wo_groups(0)
            if j in (2, 3) and "wpf" in OPT:
                g = Lst()
                g(f"s_and_b32 s{sO}, s{sIDX}, 31", f"s_lshl_b32 s{sO}, s{sO}, 2", f"s_add_u32 s{sO}, s{sO}, s{sI}", f"s_lshl_b32 s{sO}, s{sO}, 12", "s_mov_b32 exec_hi, 0")
                g(f"buffer_load_dword v22, v21, {sr(R_WOB if j == 2 else R_WOA,4)}, s{sO} offen", "s_mov_b64 exec, -1")
                G.append(g)
        if r >= PA and j < 7: issue(n + 1 + D - (1 if r < 15 else 0))
        for _ in range(2):
            if G: e(*G.pop(0))
    e("s_setprio 3")

def b_attn(e):
    Qf, Kf, Vf, Kp, Vp = 104, 112, 120, 128, 136
    PB = 140
    M = 152
    e.c("---- local attention")
    e("v_bfe_u32 v9, v0, 3, 1", "v_lshlrev_b32 v10, 10, v9", "v_bfe_u32 v9, v0, 4, 1", "v_lshl_add_u32 v10, v9, 7, v10")
    e("v_and_b32 v11, 7, v0", "v_lshl_add_u32 v10, v11, 4, v10", "v_lshrrev_b32 v12, 5, v0", "v_lshl_add_u32 v10, v12, 3, v10")
    e(f"s_and_b32 s{sO}, s{sI}, 2", f"s_lshl_b32 s{sO}, s{sO}, 10", f"s_add_u32 s{sO}, s{sO}, {EX_L}", f"s_and_b32 s{sO+1}, s{sI}, 1")
    e(f"s_lshl_b32 s{sO+2}, s{sO+1}, 8", f"s_add_u32 s{sO+2}, s{sO+2}, s{sO}", f"v_add_u32 v10, s{sO+2}, v10")
    e("v_lshlrev_b32 v13, 10, v12", "v_lshl_add_u32 v13, v9, 8, v13", "v_and_b32 v14, 15, v0", "v_lshl_add_u32 v13, v14, 3, v13")
    e(f"s_lshl_b32 s{sO+2}, s{sO+1}, 7", f"s_add_u32 s{sO+2}, s{sO+2}, s{sO}", f"v_add_u32 v13, s{sO+2}, v13")
    for j in range(4): e(f"v_cvt_pk_bf16_f32 v{16+j}, v{ahk+2*j}, v{ahk+2*j+1}")
    e("ds_write_b64 v10, v[16:17]", "ds_write_b64 v13, v[18:19] offset:512")
    sig(e, vHC, vH1, HCNT)
    e(f"s_lshl_b32 s{sO}, s{sI}, 10", f"s_add_u32 s{sO}, s{sO}, {EX_L}")
    e("v_lshl_add_u32 v11, v12, 3, v11", f"v_lshl_add_u32 v11, v11, 4, s{sO}", f"v_lshl_add_u32 v14, v0, 3, s{sO}")
    for j in range(8): e(f"v_cvt_pk_bf16_f32 v{Kf+j}, v{ak+2*j}, v{ak+2*j+1}")
    for j in range(8): e(f"v_cvt_pk_bf16_f32 v{Qf+j}, v{aq+2*j}, v{aq+2*j+1}")
    Sc0, Sc1, Sp = 24, 40, 8 + 56
    lds_wait(e, vHC, vHT, 40, HCNT)
    e(f"ds_read_b128 {vr(Kp,4)}, v11", f"ds_read_b128 {vr(Kp+4,4)}, v11 offset:256", f"ds_read_b64 {vr(Vp+2,2)}, v14 offset:512")
    e(f"s_setprio {HM}")
    e(f"{MF32} {vr(Sc0,16)}, {vr(Kf,4)}, {vr(Qf,4)}, {vr(MC,16)}", f"{MF32} {vr(Sc1,16)}, {vr(Kf+4,4)}, {vr(Qf+4,4)}, {vr(MC,16)}")
    e("s_setprio 3")
    for g in wo_groups(1): e(*g)
    for j in range(8): e(f"v_cvt_pk_bf16_f32 v{Vf+j}, v{av+2*j}, v{av+2*j+1}")
    for r in (Vp, Vp+1): e(f"v_mov_b32 v{r}, 0")
    for r in range(12): e(f"v_mov_b32 v{PB+r}, 0")
    e(f"s_lshl_b32 s{sO+1}, s{sRB}, 1", f"s_and_b32 s{sO+2}, s{sI}, 1", f"s_add_u32 s{sO+1}, s{sO+1}, s{sO+2}", f"s_lshl_b32 s{sO+1}, s{sO+1}, 15")
    e(f"s_lshl_b32 s{sO+2}, s{sCB}, 2", f"s_and_b32 s{sO+3}, s{sI}, 2", f"s_add_u32 s{sO+2}, s{sO+2}, s{sO+3}", f"s_lshl_b32 s{sO+2}, s{sO+2}, 10")
    e(f"s_add_u32 s{sO+1}, s{sO+1}, s{sO+2}", f"s_add_u32 s{sO+1}, s{sO+1}, {OB}")
    e("v_lshlrev_b32 v9, 4, v0", f"v_mov_b32 v22, {hex(f32bits(CSC))}", "s_waitcnt lgkmcnt(0)")
    for hd in range(2):
        Sc = (Sc0, Sc1)[hd]
        e(f"s_setprio {HM}", f"{MF32} {vr(Sp,16)}, {vr(Kp+4*hd,4)}, {vr(Qf+4*hd,4)}, {vr(MP,16)}", "s_setprio 3")
        for k in range(4): e(f"v_max_f32 v{M+k}, v{Sc+k}, v{Sc+8+k}")
        e(f"v_max3_f32 v10, v{M}, v{M+1}, v{M+2}", "s_nop 5")
        for k in range(4): e(f"v_max3_f32 v{M+4+k}, v{Sc+4+k}, v{Sc+12+k}, v{Sp+12+k}")
        e(f"v_max3_f32 v10, v10, v{M+3}, v{M+4}", f"v_max3_f32 v10, v10, v{M+5}, v{M+6}", f"v_max_f32 v10, v10, v{M+7}")
        halfmax(e, 10)
        e("v_mul_f32 v10, v22, v10")
        for k in range(4): e(f"v_pk_fma_f32 {vr(M+2*k,2)}, {vr(M+2*k,2)}, v[22:23], v[10:11] op_sel_hi:[1,0,0] neg_lo:[0,0,1] neg_hi:[0,0,1]")
        for k in range(8): e(f"v_exp_f32 v{M+k}, v{M+k}")
        def cv(mask, dst, src):
            e(f"s_mov_b32 exec_lo, {hex(mask)}", f"s_mov_b32 exec_hi, {hex(mask)}")
            e(f"v_cvt_pk_bf16_f32 v{dst}, v{src}, v{src+1}", f"v_cvt_pk_bf16_f32 v{dst+1}, v{src+2}, v{src+3}")
        cv(0x0000ffff, PB, M); cv(0xffff0000, PB+4, M)
        cv(0x00ffff00, PB+2, M+4); cv(0xff000000, PB+6, M+4); cv(0x000000ff, PB+10, M+4)
        e("s_mov_b64 exec, -1")
        e(f"v_pk_add_f32 {vr(M,2)}, {vr(M,2)}, {vr(M+2,2)}", f"v_pk_add_f32 {vr(M+4,2)}, {vr(M+4,2)}, {vr(M+6,2)}")
        e(f"s_setprio {HM}")
        e(f"{MF32} {vr(Sc,16)}, {vr(Vf,4)}, {vr(PB,4)}, 0", f"{MF32} {vr(Sc,16)}, {vr(Vf+4,4)}, {vr(PB+4,4)}, {vr(Sc,16)}", f"{MF32} {vr(Sc,16)}, {vr(Vp,4)}, {vr(PB+8,4)}, {vr(Sc,16)}")
        e("s_setprio 3")
        e(f"v_pk_add_f32 {vr(M,2)}, {vr(M,2)}, {vr(M+4,2)}", f"v_add_f32 v10, v{M}, v{M+1}", "v_mov_b32 v11, v10", "s_nop 1")
        e("v_permlane32_swap_b32 v10, v11", "s_nop 0", "v_add_f32 v10, v10, v11", "v_rcp_f32 v10, v10", "s_nop 2")
        O = Sc + 8 * hd
        for k in range(4): e(f"v_pk_mul_f32 {vr(O+2*k,2)}, {vr(O+2*k,2)}, v[10:11] op_sel_hi:[1,0]")
        o = 12 + 4 * hd
        for j in range(4): e(f"v_cvt_pk_bf16_f32 v{o+j}, v{O+2*j}, v{O+2*j+1}")
        e(f"buffer_store_dwordx4 {vr(o,4)}, v9, {sr(R_WS,4)}, s{sO+1} offen offset:{1024*hd}{SC}")

vWt, vPo, vCk, vSt, vL16, vFl, vL4, vOC = 8, 9, 10, 11, 1, 2, 3, 4
tA, tB, vWt1, tD = 12, 13, 14, 15
GACC, GO, GW = 16, 48, 132
sTK, sOut = sT, sT+1
def out_table(e):
    W, Po, Ck, St = 164, 165, 166, 167
    e("v_lshrrev_b32 v30, 5, v0", "v_bfe_u32 v31, v0, 2, 2", "v_lshl_add_u32 v31, v30, 2, v31", f"v_lshlrev_b32 v{W}, 7, v31")
    e("v_bfe_u32 v31, v0, 3, 1", f"v_lshl_add_u32 v{W}, v31, 6, v{W}")
    e("v_and_b32 v31, 1, v0", f"v_lshl_add_u32 v{W}, v31, 5, v{W}", "v_bfe_u32 v31, v0, 1, 1", f"v_lshl_add_u32 v{W}, v31, 3, v{W}")
    e("v_bfe_u32 v31, v0, 4, 1", f"v_lshl_add_u32 v{W}, v31, 4, v{W}")
    e(f"v_and_b32 v{St}, 31, v0", f"v_lshlrev_b32 v{St}, 11, v{St}", f"v_lshl_add_u32 v{St}, v30, 5, v{St}")
    e(f"v_lshlrev_b32 v{Ck}, 2, v0", f"v_lshlrev_b32 v{Po}, 7, v0")
    e(f"v_lshlrev_b32 v31, 4, v0", f"v_add_u32 v31, {TB_L}, v31", "ds_write_b128 v31, v[164:167]")
def out_prep(e):
    e(f"v_lshlrev_b32 v{vL16}, 4, v0", f"v_add_u32 v{vFl}, {TB_L}, v{vL16}", f"ds_read_b128 v[8:11], v{vFl}")
    e(f"v_and_b32 v{vOC}, 3, v0", f"v_lshlrev_b32 v{vOC}, 8, v{vOC}", f"v_add_u32 v{vOC}, {PR_L + 1024}, v{vOC}")
    e(f"v_and_b32 v{vL4}, 31, v0", f"v_lshlrev_b32 v{vL4}, 2, v{vL4}")
    e(f"s_lshl_b32 s{sTK}, s{sTB}, 2", f"s_add_u32 s{sTK}, s{sTK}, s{sI}")

def pry_wait(e, lim, sleep=6):
    l = e.uniq("hp")
    e.lab(l)
    e(f"ds_read_b32 v{vHT}, v{vOC}", "s_waitcnt lgkmcnt(0)", f"v_cmp_gt_u32 vcc, {lim}, v{vHT}", f"s_cbranch_vccz {l}_d")
    spin_tail(e, l, sleep)
    e.lab(l + "_d")

pub_sites = []
def pub(e, add, keep=False, fast=False):
    site = len(pub_sites); pub_sites.append(site)
    e(f"s_add_u32 s{sO+4}, s{sI}, {add}", f"s_mov_b32 s{sRET}, {site}")
    if not fast:
        e(f"s_mul_i32 s{sO}, s{sO+4}, {OS_POS}", f"s_add_u32 s{sO}, s{sO}, {OS_L - OS_POS}")
        pry_wait(e, f"s{sO}", sleep=PSL)
    e("s_branch L_pub")
    e.lab(f"L_pub_ret{site}")

def pub_routine(e):
    P = GO
    site = 0
    e.lab("L_pub")
    e(f"s_mul_i32 s{sO+2}, s{sO+4}, {OS_POS}", f"s_add_u32 s{sO+2}, s{sO+2}, {OS_L}")
    e(f"v_add_u32 v{tA}, s{sO+2}, v{vL16}", f"v_add_u32 v{tB}, s{sO+2}, v{vL4}")
    e(f"s_and_b32 s{sO}, s{sO+4}, 1", f"s_lshl_b32 s{sO}, s{sO}, 2", f"s_lshr_b32 s{sO+1}, s{sO+4}, 1", f"s_add_u32 s{sO}, s{sO}, s{sO+1}")
    e(f"s_lshl_b32 s{sO+1}, s{sRB}, 3", f"s_add_u32 s{sO}, s{sO}, s{sO+1}", f"s_lshl_b32 s{sO}, s{sO}, 3", f"s_add_u32 s{sO}, s{sO}, s{sCB}")
    e(f"s_mul_i32 s{sO+3}, s{sO}, {REC}", f"s_add_u32 s{sO+3}, s{sO+3}, {OA}")
    e(f"s_lshl_b32 s{sO+5}, s{sIDX}, 3", f"s_add_u32 s{sO+5}, s{sO+5}, s{sO+4}", f"s_lshl_b32 s{sO+5}, s{sO+5}, 7", f"s_add_u32 s{sO+5}, s{sO+5}, {F4}")
    e(f"s_mov_b32 s{sO+1}, {hex(f32bits(LMAX))}")
    pry_wait(e, f"s{sO+2}", sleep=3)
    e(f"ds_read2st64_b32 {vr(P+32,2)}, v{tB} offset0:8 offset1:17", f"ds_read2st64_b32 {vr(P+34,2)}, v{tB} offset0:26 offset1:35")
    for a in range(2):
        for s in range(4): e(f"ds_read_b128 {vr(P+8*s+4*a,4)}, v{tA} offset:{s*OS_PAIR + a*1024}")
    e("s_waitcnt lgkmcnt(8)", f"v_pk_add_f32 {vr(P+32,2)}, {vr(P+32,2)}, {vr(P+34,2)}", f"v_add_f32 v{P+34}, v{P+32}, v{P+33}", f"v_rcp_f32 v{P+32}, v{P+34}")
    for a in range(2):
        e(f"s_waitcnt lgkmcnt({4-4*a})")
        for k in range(2):
            a_, b_, c_, d_ = (vr(P + 8*s + 4*a + 2*k, 2) for s in range(4))
            e(f"v_pk_add_f32 {a_}, {a_}, {b_}", f"v_pk_add_f32 {c_}, {c_}, {d_}", f"v_pk_add_f32 {a_}, {a_}, {c_}")
    e(f"v_pk_mul_f32 {vr(P+8,2)}, {vr(P,2)}, 0")
    for k in range(1, 4): e(f"v_pk_fma_f32 {vr(P+8,2)}, {vr(P+2*k,2)}, 0, {vr(P+8,2)}")
    e(f"v_add_f32 v{P+8}, v{P+8}, v{P+9}", f"v_add_f32 v{P+8}, v{P+8}, v{P+34}")
    e(f"v_cmp_ngt_f32 vcc, s{sO+1}, v{P+8}" if "forcefb" not in OPT else "v_cmp_eq_u32 vcc, v0, v0", "s_cbranch_vccnz L_exact")
    e.lab(f"L_exact_ret{site}")
    for k in range(4): e(f"v_pk_mul_f32 {vr(P+2*k,2)}, {vr(P+2*k,2)}, {vr(P+32,2)} op_sel_hi:[1,0]")
    for k in range(4): e(f"v_cvt_pk_bf16_f32 v{164+k}, v{P+2*k}, v{P+2*k+1}")
    e(f"s_cmp_ge_u32 s{sO+4}, 4", "s_cbranch_scc1 L_pub_tag")
    e(f"buffer_store_dwordx4 v[164:167], v{vL16}, {sr(R_WS,4)}, s{sO+3} offen{SC}", "s_waitcnt vmcnt(0)")
    set_flag(e, sO+5, tA, tB)
    e("s_branch L_pub_x")
    e.lab("L_pub_tag")
    mk_ck(e, tD, 164)
    if "nofast" not in OPT:
        e(f"s_add_u32 s{sO}, s{sO+3}, {FAST}")
        e(f"buffer_store_dwordx4 v[164:167], v{vL16}, {sr(R_WS,4)}, s{sO} offen", f"buffer_store_dword v{tD}, v{vCk}, {sr(R_WS,4)}, s{sO} offen offset:1024")
    e(f"buffer_store_dwordx4 v[164:167], v{vL16}, {sr(R_WS,4)}, s{sO+3} offen{SC}", f"buffer_store_dword v{tD}, v{vCk}, {sr(R_WS,4)}, s{sO+3} offen offset:1024{SC}")
    if "nofast" in OPT: set_flag(e, sO+5, tA, tB)
    e.lab("L_pub_x")
    for s in pub_sites[:-1]: e(f"s_cmp_eq_u32 s{sRET}, {s}", f"s_cbranch_scc1 L_pub_ret{s}")
    e(f"s_branch L_pub_ret{pub_sites[-1]}")

def exact(e):
    O, Q, Kr, V, S, NB, m, vo = GO, GO+36, GO+40, GO+44, GO+52, GO+68, GO+84, GO+86
    sK, sV = sO, sO+1
    e.lab("L_exact")
    e(f"s_mov_b32 s{sT+4}, 1", "s_waitcnt vmcnt(0)")
    e(f"s_lshl_b32 s{sK}, s{sO+4}, 10", f"s_add_u32 s{sK}, s{sK}, {QI_L}", f"v_add_u32 v{m}, s{sK}, v{vL16}", f"ds_read_b128 {vr(Q,4)}, v{m}")
    e(f"v_and_b32 v{m}, 31, v0", f"v_cmp_eq_u32 vcc, 16, v{m}", f"v_mov_b32 v{m+1}, 0x3f803f80", f"v_lshrrev_b32 v{vo}, 5, v0", f"v_cndmask_b32 v{V}, 0, v{m+1}, vcc")
    for r in range(1, 8): e(f"v_mov_b32 v{V+r}, v{V}")
    e(f"v_lshlrev_b32 v{vo}, 8, v{vo}", f"v_and_b32 v{m}, 15, v0", f"v_lshl_add_u32 v{vo}, v{m}, 4, v{vo}")
    for r in range(16): e(f"v_mov_b32 v{O+r}, 0")
    e(f"v_mov_b32 v{m}, 0xff800000", f"s_mov_b32 s{sK}, {KW}", "s_waitcnt lgkmcnt(0)")
    e.lab("L_ex1")
    e(f"buffer_load_dwordx4 {vr(Kr,4)}, v{vL16}, {sr(R_WS,4)}, s{sK} offen{SC}", "s_waitcnt vmcnt(0)")
    e(f"{MF32} {vr(S,16)}, {vr(Kr,4)}, {vr(Q,4)}, 0", "s_nop 11")
    for k in range(0, 16, 2): e(f"v_max3_f32 v{m}, v{m}, v{S+k}, v{S+k+1}")
    e(f"s_add_u32 s{sK}, s{sK}, 1024", f"s_cmp_lt_u32 s{sK}, {KW + 65536}", "s_cbranch_scc1 L_ex1")
    halfmax(e, m)
    for r in range(16): e(f"v_sub_f32 v{NB+r}, 0, v{m}")
    e(f"s_mov_b32 s{sK}, {KW}", f"s_mov_b32 s{sV}, {VW}")
    e.lab("L_ex2")
    e(f"buffer_load_dwordx4 {vr(Kr,4)}, v{vL16}, {sr(R_WS,4)}, s{sK} offen{SC}", "s_mov_b32 exec_lo, 0xffff", "s_mov_b32 exec_hi, 0xffff")
    e(f"buffer_load_dwordx4 {vr(V,4)}, v{vo}, {sr(R_WS,4)}, s{sV} offen{SC}", f"buffer_load_dwordx4 {vr(V+4,4)}, v{vo}, {sr(R_WS,4)}, s{sV} offen offset:512{SC}")
    e("s_mov_b64 exec, -1", "s_waitcnt vmcnt(0)")
    e(f"{MF32} {vr(S,16)}, {vr(Kr,4)}, {vr(Q,4)}, {vr(NB,16)}", "s_nop 11")
    for k in range(16): e(f"v_exp_f32 v{S+k}, v{S+k}")
    e("s_nop 0")
    for j in range(8): e(pk(S, j))
    e("s_nop 1", f"{MF32} {vr(O,16)}, {vr(V,4)}, {vr(S,4)}, {vr(O,16)}", f"{MF32} {vr(O,16)}, {vr(V+4,4)}, {vr(S+8,4)}, {vr(O,16)}")
    e(f"s_add_u32 s{sK}, s{sK}, 1024", f"s_add_u32 s{sV}, s{sV}, 1024", f"s_cmp_lt_u32 s{sK}, {KW + 65536}", "s_cbranch_scc1 L_ex2")
    e("s_nop 11", f"v_mov_b32 v{m}, v{O+8}", "s_nop 1", f"v_permlane32_swap_b32 v{O+8}, v{m}", "s_nop 0", f"v_rcp_f32 v{GO+32}, v{O+8}", "s_nop 0")
    e("s_branch L_exact_ret0")

def fetch(e, hl, c0, c1, base, ck=None):
    for c in range(c0, c1):
        e(f"s_add_u32 s{sO}, s{sT+2}, {(hl*8 + c)*REC}")
        e(f"buffer_load_dwordx4 {vr(base+4*c,4)}, v{vL16}, {sr(R_WS,4)}, s{sO} offen{SC}")
        if ck is not None: e(f"buffer_load_dword v{ck+c}, v{vCk}, {sr(R_WS,4)}, s{sO} offen offset:1024{SC}")
def verify(e, c0, c1, base, ck, younger, hl=3, sleep=0):
    l = e.uniq("vf")
    e(f"s_waitcnt vmcnt({younger})", f"s_branch {l}_v")
    e.lab(l)
    if "nofast" not in OPT:
        e(f"s_add_u32 s{sT+6}, s{sT+6}, 1", f"s_and_b32 s{sO}, s{sT+6}, {FTRY-1}", f"s_cselect_b32 s{sO}, 0, {FAST}", f"s_xor_b32 s{sT+5}, s{sT+5}, s{sO}", f"s_add_u32 s{sT+2}, s{sT+3}, s{sT+5}")
    fetch(e, hl, c0, c1, base, ck)
    e("s_waitcnt vmcnt(0)")
    e.lab(l + "_v")
    for c in range(c0, c1): chk(e, tA, tB, base + 4*c, ck + c, c == c0)
    e(f"v_cmp_ne_u32 vcc, 0, v{tA}", f"s_cbranch_vccz {l}_d")
    spin_tail(e, l, sleep)
    e.lab(l + "_d")
    e(f"s_mov_b32 s{sT+6}, 0")
def mul_a(e, steps, pre=True, vm=None, after=None):
    n = len(steps)
    def rdw(k):
        b = GW + 8*(k & 3); o = steps[k][0] * 2048
        for ct, va in enumerate((vWt, vWt1)):
            e(f"ds_read_b64_tr_b16 {vr(b+4*ct,2)}, v{va} offset:{o}", f"ds_read_b64_tr_b16 {vr(b+4*ct+2,2)}, v{va} offset:{o+1024}")
    if pre:
        for k in range(2): rdw(k)
        return
    for k in range(n):
        if k + 2 < n: rdw(k + 2)
        e(f"s_waitcnt {'vmcnt(%d) ' % vm(k) if vm else ''}lgkmcnt({min(8, 4*(n-1-k))})")
        for ct in range(2):
            e(f"{MF32} {vr(GACC+16*ct,16)}, {vr(GW+8*(k&3)+4*ct,4)}, {vr(steps[k][1],4)}, {'0' if steps[k][0] == 0 else vr(GACC+16*ct,16)}")
        if after: after(k)
def gpoll_s(e, vaddr, vtmp, pat, sleep):
    l = e.uniq("gp")
    e(f"s_lshl_b32 exec_lo, {hex(pat)}, s{sT+7}", "s_mov_b32 exec_hi, exec_lo")
    e.lab(l)
    e(f"buffer_load_dword v{vtmp}, v{vaddr}, {sr(R_WS,4)}, s{sT+8} offen sc1", "s_waitcnt vmcnt(0)")
    e(f"v_cmp_ne_u32 vcc, s{sEP}, v{vtmp}", "s_and_b64 exec, exec, vcc", f"s_cbranch_execz {l}_d")
    spin_tail(e, l, sleep)
    e.lab(l + "_d")
    e("s_mov_b64 exec, -1")

def out_store(e):
    e("s_nop 10")
    for ct in range(2):
        for j in range(8): e(f"v_cvt_pk_bf16_f32 v{GW+8*ct+j}, v{GACC+16*ct+2*j}, v{GACC+16*ct+2*j+1}")
        for z in range(2): e(f"buffer_store_dwordx4 {vr(GW+8*ct+4*z,4)}, v{vSt}, {sr(R_OUT,4)}, s{sOut} offen offset:{64*ct+16*z}")

def late_pubs(e):
    e.lab("L_latepub")
    e(f"s_cmp_eq_u32 s{sI}, 3", "s_cbranch_scc1 L_lpx")
    pub(e, 4)
    e.lab("L_lpx")
    finish(e)

def h_main(e):
    e.lab("L_h2")
    srds(e, (R_XB, R_WB, R_WOB, R_WOA, R_OUT))
    b_prep(e)
    out_table(e)
    h_qprep(e)
    if "noH" in OPT: finish(e)
    wo_voff(e)
    lds_wait(e, vHC, vHT, 8, GCNT, sleep=2)
    for j in range(2):
        for g in b_dma_groups(j): e(*g)
    stamp(e, 4)
    b_proj(e)
    stamp(e, 5)
    b_attn(e)
    e(f"s_lshl_b32 s{sO+5}, s{sIDX}, 2", f"s_add_u32 s{sO+5}, s{sO+5}, s{sI}", f"s_lshl_b32 s{sO+5}, s{sO+5}, 7", f"s_add_u32 s{sO+5}, s{sO+5}, {F3}")
    out_prep(e)
    e("s_waitcnt vmcnt(0)")
    set_flag(e, sO+5, tA, tB)
    sig(e, vHC, vH1, HCNT)
    stamp(e, 6)
    e(f"s_cmp_eq_u32 s{sKIND}, 0", "s_cbranch_scc1 L_latepub")
    e.c("---- B out-projection")
    e(f"s_lshr_b32 s{sO+2}, s{sTK}, 1", f"s_lshl_b32 s{sOut}, s{sO+2}, 17", f"s_and_b32 s{sO+3}, s{sI}, 1", f"s_lshl_b32 s{sO}, s{sO+3}, 11", f"s_add_u32 s{sOut}, s{sOut}, s{sO}")
    e(f"s_lshl_b32 s{sO}, s{sHP}, 6", f"s_add_u32 s{sOut}, s{sOut}, s{sO}", f"s_add_u32 s{sOut}, s{sOut}, {1024 - 64}")
    e(f"s_lshl_b32 s{sO+2}, s{sO+2}, 12", f"s_lshl_b32 s{sO+3}, s{sO+3}, 7", f"s_add_u32 s{sO+2}, s{sO+2}, s{sO+3}", f"s_add_u32 s{sO+2}, s{sO+2}, {F3}")
    e(f"v_lshl_add_u32 v{vFl}, v0, 8, s{sO+2}")
    e(f"s_lshl_b32 s{sT+2}, s{sTK}, 15", f"s_add_u32 s{sT+2}, s{sT+2}, {OB}")
    gpoll(e, vFl, vHT, 0xffff, 0, sleep=F3SLEEP)
    stamp(e, 7)
    NB = 21
    oreg = lambda k: GO + 4 * (k % NB)
    def ldo(k):
        e(f"s_add_u32 s{sT+3}, s{sT+2}, {(k>>2)*4096}", f"buffer_load_dwordx4 {vr(oreg(k),4)}, v{vL16}, {sr(R_WS,4)}, s{sT+3} offen offset:{(k&3)*1024}{SC}")
    for k in range(NB):
        ldo(k)
        if OBW and k >= OBW: e(f"s_waitcnt vmcnt({OBW})")
    lds_wait(e, vHC, vHT, 44, HCNT)
    e(f"v_lshl_add_u32 v{vSt}, v{vL4}, 9, v{vSt}", f"v_xor_b32 v{vWt1}, 64, v{vWt}")
    stamp(e, 8)
    e(f"s_setprio {FM}")
    SB_ = [(k, oreg(k)) for k in range(32)]
    if HGATE:
        S1_, S2_ = SB_[:32-NB], SB_[32-NB:]
        mul_a(e, S1_)
        mul_a(e, S1_, pre=False, vm=lambda k: min(OBW or 63, NB - 1), after=lambda k: ldo(k + NB))
        stamp(e, 18)
        mul_a(e, S2_)
        if HGATE == 8: lds_wait(e, vHC, vHT, 1, QST, sleep=PSL)
        else: pry_wait(e, OS_L + HGATE*OS_POS, sleep=PSL)
        e("s_setprio 1")
        mul_a(e, S2_, pre=False, vm=lambda k: NB - 1 - k)
    else:
        mul_a(e, SB_)
        mul_a(e, SB_, pre=False, vm=lambda k: min(NB - 1, 31 - k), after=lambda k: ldo(k + NB) if k + NB < 32 else None)
    out_store(e)
    finish(e)

def f_out(e):
    e.lab("L_f3")
    e.c("---- output stage A")
    if "noH" in OPT or "noF" in OPT: finish(e)
    srds(e, (R_OUT,))
    lane_id(e)
    out_prep(e)
    e(f"v_mov_b32 v{vHC}, {CNT}")
    pub(e, 0)
    stamp(e, 5)
    e(f"s_cmp_lg_u32 s{sKIND}, 0", "s_cbranch_scc1 L_latepub")
    e(f"s_lshl_b32 s{sOut}, s{sTK}, 16", f"s_lshl_b32 s{sO}, s{sHP}, 6", f"s_add_u32 s{sOut}, s{sOut}, s{sO}")
    e(f"v_xor_b32 v{vWt1}, 64, v{vWt}")
    e(f"s_mul_i32 s{sT+3}, s{sTK}, {32*REC}", f"s_add_u32 s{sT+3}, s{sT+3}, {OA}", f"s_mov_b32 s{sT+2}, s{sT+3}", f"s_mov_b32 s{sT+6}, 0")
    e(f"s_and_b32 s{sT+7}, s{sI}, 1", f"s_lshr_b32 s{sT+8}, s{sTK}, 1", f"s_lshl_b32 s{sT+8}, s{sT+8}, 13", f"s_add_u32 s{sT+8}, s{sT+8}, {F4}")
    e(f"s_mul_i32 s{sT+9}, s{sT+7}, {OS_POS}")
    if "nofast" not in OPT:
        e(f"s_add_u32 s{sO}, s{sT+3}, {FAST + 24*REC}", f"buffer_load_dword v6, v{vPo}, {sr(R_WS,4)}, s{sO} offen{SC}")
        e(f"s_add_u32 s{sO}, s{sO}, 8192", "s_mov_b64 exec, 0xffff", f"buffer_load_dword v6, v{vPo}, {sr(R_WS,4)}, s{sO} offen{SC}", "s_mov_b64 exec, -1")
    def gate(p, sleep):
        e(f"s_add_u32 s{sO+1}, s{sT+9}, {OS_L + p*OS_POS}")
        pry_wait(e, f"s{sO+1}", sleep=sleep)
    st = lambda hl, base, c0=0, c1=8: [(4*c + hl, base + 4*c) for c in range(c0, c1)]
    gate(3, PSL)
    gpoll_s(e, vPo, vHT, 0x05050505, 8)
    stamp(e, 16)
    fetch(e, 0, 0, 8, GO); fetch(e, 1, 0, 8, GO + 32)
    lds_wait(e, vHC, vHT, 44, HCNT, sleep=8)
    e(f"s_setprio {FM}")
    A01 = st(0, GO) + st(1, GO + 32)
    mul_a(e, A01); mul_a(e, A01, pre=False, vm=lambda k: 15 - k)
    stamp(e, 17)
    gate(5, 8)
    CK = GO + 64
    if "nofast" in OPT: gpoll_s(e, vPo, vHT, 0x10101010, 4)
    else: e(f"s_mov_b32 s{sT+5}, {FAST}", f"s_add_u32 s{sT+2}, s{sT+3}, {FAST}")
    stamp(e, 18)
    fetch(e, 2, 0, 8, GO, CK)
    A2 = st(2, GO)
    mul_a(e, A2)
    verify(e, 0, 8, GO, CK, 0, hl=2, sleep=4)
    mul_a(e, A2, pre=False)
    stamp(e, 19)
    gate(6, 3)
    mul_a(e, st(3, GO, 0, 4))
    if "nofast" in OPT: gpoll_s(e, vPo, vHT, 0x40404040, 1)
    fetch(e, 3, 0, 8, GO, CK)
    verify(e, 0, 4, GO, CK, 8)
    stamp(e, 9)
    mul_a(e, st(3, GO, 0, 4), pre=False)
    mul_a(e, st(3, GO, 4, 8))
    verify(e, 4, 8, GO, CK, 0)
    mul_a(e, st(3, GO, 4, 8), pre=False)
    out_store(e)
    e(f"s_xor_b32 s{sO}, s{sI}, 1", f"s_or_b32 s{sO}, s{sWG}, s{sO}", "s_cbranch_scc1 L_noep", f"s_mov_b32 s{sO}, {EPOCH_W}")
    set_flag(e, sO, tA, tB)
    e.lab("L_noep")
    finish(e)

def gen():
    e = Em()
    e.L.append(f".globl {KN}\n.p2align 8\n.type {KN},@function\n{KN}:")
    entry(e)
    h_kv(e)
    f_load(e)
    s_qproj(e)
    s_att(e)
    f_att(e)
    h_main(e)
    f_out(e)
    late_pubs(e)
    pub_routine(e)
    e.lab("L_codeend")
    exact(e)
    e.lab("L_end")
    e("s_endpgm")
    head = f"""; generated by work/gen16.py
; @launch grid=(256,1,1) block=(768,1,1) lds={LDS_BYTES}
.amdgcn_target "amdgcn-amd-amdhsa--gfx950"
.text
"""
    kd = f""".section .rodata,"a"
.p2align 6
.amdhsa_kernel {KN}
  .amdhsa_next_free_vgpr 168
  .amdhsa_next_free_sgpr 102
  .amdhsa_accum_offset 168
  .amdhsa_group_segment_fixed_size 0
  .amdhsa_kernarg_size 88
  .amdhsa_user_sgpr_count 2
  .amdhsa_user_sgpr_kernarg_segment_ptr 1
  .amdhsa_system_sgpr_workgroup_id_x 1
.end_amdhsa_kernel
"""
    return head + e.text() + kd

if __name__ == "__main__":
    args = [a for a in sys.argv[1:] if not a.startswith("-")]
    OPT.update(a[1:] for a in sys.argv[1:] if a.startswith("-"))
    if "stamps" in OPT: STAMPS = True
    OPT.update(("gate1", "wpf", "s3pub", "sub"))
    if "fast" not in OPT: OPT.add("nofast")

    for o in OPT:
        if o.startswith("moff"): MOFF = float(o[4:])
        if o.startswith("bd"): BDEPTH = int(o[2:])
        if o.startswith("hm"): HM = int(o[2:])
        if o.startswith("ns"): NSAMP = int(o[2:])
        if o.startswith("ys"): YS = tuple(int(x) for x in o[2:].split("_"))
        if o == "yall": YMODES = ('F', 'F0', 'S')
        if o.startswith("ow"): OBW = int(o[2:])
        if o.startswith("sh"): SHOLD = int(o[2:])
        if o.startswith("hg"): HGATE = int(o[2:])
        if o.startswith("win"): WIN = int(o[3:])
        if o.startswith("osc"): OSC = " " + o[3:].replace("_", " ")
        if o.startswith("dly"): DLY = tuple(int(x) for x in o[3:].split("_"))
        if o.startswith("bs"): BSLEEP = int(o[2:])
    out = args[0] if args else f"cdna_kernels/{NAME}.s"
    open(out, "w").write(gen())
    print("wrote", out)
```

```python
import sys, math, struct

NAME = "concat_heads__grouped_kv_mqa__sliding_local_dilated__prompt"
KN = NAME + "_kernel"
def f32bits(x): return struct.unpack("<I", struct.pack("<f", x))[0]

class Em:
    def __init__(self): self.L = []; self.n = 0
    def __call__(self, *ss):
        for s in ss:
            if s.startswith("s_nop "):
                self.L += ["    s_nop 0"] * (int(s.split()[1]) + 1)
            else: self.L.append("    " + s)
    def lab(self, s): self.L.append(s + ":")
    def uniq(self, p): self.n += 1; return f"L_{p}_{self.n}"
    def c(self, s): self.L.append("    ; " + s)
    def text(self): return "\n".join(self.L) + "\n"

def vr(b, n): return f"v[{b}:{b+n-1}]" if n > 1 else f"v{b}"
def sr(b, n): return f"s[{b}:{b+n-1}]" if n > 1 else f"s{b}"

sWG, sW = 2, 3
R_XA, R_WQ, R_WKV, R_WOA, R_XB, R_WB, R_WOB, R_OUT, R_WS = 32, 36, 40, 44, 48, 52, 56, 60, 64
R_WO = R_WKV
sRB, sCB, sTB, sHP, sSB, sKIND, sRET, sI = 72, 73, 74, 75, 76, 77, 78, 79
sT = 80
sO = 92
sPOLL, sEP, sSPIN, sIDX = 98, 99, 100, 101
sTAG = 71
SPIN_MAX = 60000
OB, OA, KW, VW, EPOCH_W, FL = 0, 2 << 20, 5 << 20, (5 << 20) + 65536, (5 << 20) + 131072, (5 << 20) + (256 << 10)
REC = 1280
F1, F3, F4 = FL, FL + (64 << 10), FL + (256 << 10)
WS_BYTES = 16 << 20
FAST = 8 << 20
K = 1024
LDS_BYTES = 160 * K
SLOT = 32 * K
WKV_L = 128 * K
QI_L, NM_L, CNT, PR_L = 144 * K, 152 * K, 156 * K + 512, 157 * K
HCNT, ACNT, GCNT, KVF, RDY1, QST, LAND, SOK = 0, 4, 8, 12, 16, 20, 32, 48
RINGS = 34 * K
RXO = 24 * K
OS_L, OS_POS, OS_PAIR = 72 * K, 9216, 2304
EX_L = 68 * K
TB_L = 159 * K
WOA_L, WOB_L = 34 * K, 0
BDEPTH, HM, F3SLEEP, WIN, BSLEEP = 4, 1, 16, 12, 0
PSL = 20
FTRY = 16
HGATE = 8
CSC = 0.25 * math.log2(math.e)
MOFF = 100.0
NSAMP = 4
NB1 = 1
PGATE = 8
APR = 3
YS = ()
YMODES = ('F', 'F0')
OBW = 4
LOF, LOS, FM = 2, 2, 1
SHOLD = 0
LMAX = 2.0 ** 120
MF32 = "v_mfma_f32_32x32x16_bf16"
MF16 = "v_mfma_f32_16x16x32_bf16"
STAMPS = False
OPT = set()
ST = 12 << 20
SC = " sc1"
OSC = ""

def stamp(e, k):
    if STAMPS: e("s_memrealtime s[30:31]", "s_waitcnt lgkmcnt(0)", f"s_mov_b32 s{8+k}, s30")
def cstamp(e, k):
    if STAMPS: e("s_memtime s[30:31]", "s_waitcnt lgkmcnt(0)", f"s_mov_b32 s{8+k}, s30")
def stamp_init(e):
    if not STAMPS: return
    for k in range(1, 22): e(f"s_mov_b32 s{8+k}, 0")
    e("s_mov_b32 s8, s6", "s_mov_b32 s20, s4")
DLY = None
def finish(e):
    if DLY is not None:
        l = e.uniq("dly")
        stamp(e, 15)
        e(f"s_cmp_lg_u32 s{sW}, {DLY[0]}", f"s_cbranch_scc1 {l}_d")
        e(f"s_sub_u32 s4, s{8+DLY[1]}, s8", "s_lshl_b32 s4, s4, 1", "s_add_u32 s4, s4, 4000", "s_min_u32 s4, s4, 40000")
        e.lab(l)
        e("s_sleep 2", "s_memrealtime s[30:31]", "s_waitcnt lgkmcnt(0)", "s_sub_u32 s5, s30, s8", "s_cmp_lt_u32 s5, s4", f"s_cbranch_scc1 {l}")
        e.lab(l + "_d")
        e("s_endpgm")
        return
    if STAMPS:
        stamp(e, 15); cstamp(e, 14)
        e(f"s_mul_i32 s30, s{sWG}, 12", f"s_add_u32 s30, s30, s{sW}", "s_lshl_b32 s30, s30, 7", f"s_add_u32 s30, s30, {ST}")
        e("s_mov_b64 exec, 1", "v_mov_b32 v0, 0")
        for k in range(22): e(f"v_mov_b32 v{4+k}, s{8+k}")
        for k in range(6): e(f"buffer_store_dwordx4 {vr(4+4*k,4)}, v0, {sr(R_WS,4)}, s30 offen offset:{16*k}")
    e("s_endpgm")

def dma(e, voff, R, soff, nt=False):
    e(f"buffer_load_dwordx4 v{voff}, {sr(R,4)}, s{soff} offen{' nt' if nt else ''} lds")
def spin_tail(e, l, sleep):
    e(f"s_sleep {sleep}", f"s_add_u32 s{sSPIN}, s{sSPIN}, 1", f"s_cmp_lt_u32 s{sSPIN}, {SPIN_MAX}", f"s_cbranch_scc1 {l}")
def lds_wait(e, vaddr, vtmp, target, off=0, sleep=1):
    l = e.uniq("poll")
    e.lab(l)
    e(f"ds_read_b32 v{vtmp}, v{vaddr} offset:{off}", "s_waitcnt lgkmcnt(0)", f"v_readfirstlane_b32 s{sPOLL}, v{vtmp}")
    e(f"s_cmp_ge_u32 s{sPOLL}, {target}", f"s_cbranch_scc1 {l}_d")
    spin_tail(e, l, sleep)
    e.lab(l + "_d")
def sig(e, vaddr, vone, off):
    e("s_mov_b64 exec, 1", f"ds_add_u32 v{vaddr}, v{vone} offset:{off}", "s_mov_b64 exec, -1")
def load_epoch(e):
    e(f"s_mov_b32 s{sEP}, {EPOCH_W}", f"s_load_dword s{sEP}, s[{R_WS}:{R_WS+1}], s{sEP}")
def get_epoch(e):
    e("s_waitcnt lgkmcnt(0)", f"s_add_u32 s{sEP}, s{sEP}, 1", f"s_mul_i32 s{sTAG}, s{sEP}, 0x9e3779b1")
def gpoll(e, vaddr, vtmp, lo, hi, sleep=1):
    l = e.uniq("gp")
    e(f"s_mov_b32 exec_lo, {hex(lo)}", f"s_mov_b32 exec_hi, {hex(hi)}")
    e.lab(l)
    e(f"buffer_load_dword v{vtmp}, v{vaddr}, {sr(R_WS,4)}, 0 offen sc1", "s_waitcnt vmcnt(0)")
    e(f"v_cmp_ne_u32 vcc, s{sEP}, v{vtmp}", "s_and_b64 exec, exec, vcc", f"s_cbranch_execz {l}_d")
    spin_tail(e, l, sleep)
    e.lab(l + "_d")
    e("s_mov_b64 exec, -1")
def gpoll_issue(e, vaddr, vtmp, lo):
    e(f"s_mov_b32 exec_lo, {hex(lo)}", "s_mov_b32 exec_hi, 0", f"buffer_load_dword v{vtmp}, v{vaddr}, {sr(R_WS,4)}, 0 offen sc1", "s_mov_b64 exec, -1")
def gpoll_finish(e, vaddr, vtmp, lo, younger, sleep=1):
    l = e.uniq("gp")
    e(f"s_mov_b32 exec_lo, {hex(lo)}", "s_mov_b32 exec_hi, 0", f"s_waitcnt vmcnt({younger})", f"s_branch {l}_c")
    e.lab(l)
    e(f"buffer_load_dword v{vtmp}, v{vaddr}, {sr(R_WS,4)}, 0 offen sc1", "s_waitcnt vmcnt(0)")
    e.lab(l + "_c")
    e(f"v_cmp_ne_u32 vcc, s{sEP}, v{vtmp}", "s_and_b64 exec, exec, vcc", f"s_cbranch_execz {l}_d")
    spin_tail(e, l, sleep)
    e.lab(l + "_d")
    e("s_mov_b64 exec, -1")
def set_flag(e, soff, va, vd):
    e(f"v_mov_b32 v{va}, 0", f"v_mov_b32 v{vd}, s{sEP}", "s_mov_b64 exec, 1")
    e(f"buffer_store_dword v{vd}, v{va}, {sr(R_WS,4)}, s{soff} offen sc1", "s_mov_b64 exec, -1")
def mk_ck(e, dst, d):
    e(f"v_xad_u32 v{dst}, v{d}, s{sTAG}, v{d+1}", f"v_xad_u32 v{dst}, v{dst}, v{d+2}, v{d+3}")
def chk(e, acc, tmp, d, ck, first):
    mk_ck(e, tmp, d)
    e(f"v_xor_b32 v{acc}, v{tmp}, v{ck}" if first else f"v_bitop3_b32 v{acc}, v{acc}, v{tmp}, v{ck} bitop3:0xf6")
def lane_id(e):
    e("v_mbcnt_lo_u32_b32 v0, -1, 0", "v_mbcnt_hi_u32_b32 v0, -1, v0")
def xa_voff(e, b, t):
    e(f"v_lshrrev_b32 v{t}, 4, v0", f"v_and_b32 v{b}, 15, v0", f"v_xor_b32 v{b}, v{b}, v{t}", f"v_lshlrev_b32 v{b}, 4, v{b}")
    e(f"v_lshl_add_u32 v{b}, v{t}, 10, v{b}")
def halfmax(e, m):
    e(f"v_mov_b32 v{m+1}, v{m}", "s_nop 1", f"v_permlane32_swap_b32 v{m}, v{m+1}", "s_nop 0", f"v_max_f32 v{m}, v{m}, v{m+1}")
def negmax(e, S, m):
    e(f"v_max3_f32 v{m}, v{S}, v{S+1}, v{S+2}")
    for k in range(3, 15, 2): e(f"v_max3_f32 v{m}, v{m}, v{S+k}, v{S+k+1}")
    e(f"v_max_f32 v{m}, v{m}, v{S+15}")
    halfmax(e, m)
    e(f"v_sub_f32 v{m}, {hex(f32bits(-MOFF))}, v{m}")

def entry(e):
    e(f"s_cmp_ge_u32 s{sWG}, 256", "s_cbranch_scc1 L_end")
    e(f"s_and_b32 s{sO}, s{sWG}, 8", f"s_add_u32 s{sO}, s{sO}, 16")
    for R, off in ((R_XA, 0), (R_WQ, 8), (R_WS, 80)): e(f"s_load_dwordx2 s[{R}:{R+1}], s[0:1], {off}")
    e(f"s_load_dwordx2 s[{R_WKV}:{R_WKV+1}], s[0:1], s{sO}")
    if STAMPS: e("s_memrealtime s[6:7]", "s_memtime s[4:5]")
    e("v_lshrrev_b32 v1, 6, v0", "v_and_b32 v0, 63, v0")
    e(f"s_lshr_b32 s{sO+1}, s{sWG}, 3")
    e(f"v_readfirstlane_b32 s{sW}, v1")
    e(f"s_and_b32 s{sO}, s{sWG}, 7", f"s_lshl_b32 s{sIDX}, s{sO}, 5", f"s_add_u32 s{sIDX}, s{sIDX}, s{sO+1}")
    e(f"s_and_b32 s{sI}, s{sW}, 3", f"s_cmp_lt_u32 s{sW}, 8", "s_cbranch_scc1 L_nopf")
    e(f"s_getpc_b64 s[{sO+2}:{sO+3}]")
    e.lab("L_pc")
    e(f"s_lshl_b32 s{sO}, s{sO+1}, 2", f"s_add_u32 s{sO}, s{sO}, s{sI}", f"s_and_b32 s{sO}, s{sO}, 31", f"s_lshl_b32 s{sO}, s{sO}, 10")
    e(f"v_lshl_add_u32 v2, v0, 7, s{sO}", f"v_min_u32 v2, L_codeend-L_pc-4, v2", "s_mov_b64 exec, 0xff")
    e(f"global_load_dword v167, v2, s[{sO+2}:{sO+3}]", "s_mov_b64 exec, -1")
    e.lab("L_nopf")
    e(f"s_lshr_b32 s{sRB}, s{sIDX}, 3", f"s_and_b32 s{sCB}, s{sIDX}, 7", f"s_lshr_b32 s{sTB}, s{sIDX}, 4", f"s_and_b32 s{sHP}, s{sIDX}, 15")
    e(f"s_lshr_b32 s{sSB}, s{sCB}, 1", f"s_and_b32 s{sKIND}, s{sCB}, 1", f"s_mov_b32 s{sSPIN}, 0")
    for R, n in ((R_XA, 2 << 20), (R_WKV, 16384), (R_WQ, 512 << 10), (R_WS, WS_BYTES)):
        e(f"s_mov_b32 s{R+2}, {hex(n)}", f"s_mov_b32 s{R+3}, 0x20000")
    e(f"s_cmp_ge_u32 s{sW}, 8", "s_cbranch_scc1 L_q", f"s_cmp_ge_u32 s{sW}, 4", "s_cbranch_scc1 L_aux")
def srds(e, lst):
    size = {R_WOA: 512 << 10, R_XB: 2 << 20, R_WB: 1536 << 10, R_WOB: 512 << 10, R_OUT: 4 << 20}
    slot = {R_WOA: 32, R_XB: 40, R_WB: 48, R_WOB: 56, R_OUT: 64}
    for R in lst: e(f"s_load_dwordx2 s[{R}:{R+1}], s[0:1], {slot[R]}", f"s_mov_b32 s{R+2}, {hex(size[R])}", f"s_mov_b32 s{R+3}, 0x20000")

vHC, vH1, vHT = 5, 6, 7
def h_kv(e):
    fx, fw, acc = 32, 48, 24
    e.c("---- H: K/V projection")
    e("s_setprio 3")
    xa_voff(e, 8, 12)
    for z in range(1, 4): e(f"v_xor_b32 v{8+z}, {z<<6}, v8")
    e("v_lshlrev_b32 v12, 4, v0")
    e(f"s_add_u32 s{sO+3}, s{sRB}, s{sI}", f"s_and_b32 s{sO+3}, s{sO+3}, 3")
    e(f"s_lshr_b32 s{sO+1}, s{sIDX}, 1", f"s_lshl_b32 s{sO+1}, s{sO+1}, 14", f"s_lshl_b32 s{sO+2}, s{sO+3}, 8", f"s_add_u32 s{sO+1}, s{sO+1}, s{sO+2}")
    e(f"s_lshl_b32 s{sT}, s{sI}, 15", f"s_lshl_b32 s{sO+2}, s{sSB}, 12", f"s_add_u32 s{sT}, s{sT}, s{sO+2}")
    e(f"s_lshl_b32 s{sT+1}, s{sI}, 12", f"s_add_u32 s{sT+1}, s{sT+1}, {WKV_L}", f"s_lshl_b32 s{sO+3}, s{sO+3}, 12")
    e("s_waitcnt lgkmcnt(0)")
    for z in range(4):
        e(f"s_add_u32 m0, s{sT}, {z*1024}", f"s_add_u32 s{sO}, s{sO+1}, {z*4096}")
        dma(e, 8 + z, R_XA, sO, nt=True)
        e(f"s_add_u32 m0, s{sT+1}, {z*1024}", f"s_add_u32 s{sO}, s{sO+3}, {z*1024}")
        dma(e, 12, R_WKV, sO)
    load_epoch(e)
    e("s_barrier")
    stamp_init(e)
    e(f"v_mov_b32 v{vHC}, {CNT}", f"v_mov_b32 v{vH1}, 1")
    e("v_and_b32 v2, 15, v0", "v_lshrrev_b32 v3, 4, v0", "v_xor_b32 v4, v2, v3", "v_lshlrev_b32 v4, 4, v4", "v_lshl_add_u32 v4, v2, 8, v4")
    e(f"v_add_u32 v8, s{sT}, v4")
    for q in range(1, 4): e(f"v_xor_b32 v{8+q}, {q<<6}, v8")
    e("v_bfe_u32 v4, v0, 2, 2", "v_lshl_add_u32 v4, v3, 3, v4", "v_lshlrev_b32 v4, 5, v4", "v_and_b32 v13, 3, v0", "v_lshl_add_u32 v4, v13, 3, v4")
    e(f"v_add_u32 v13, s{sT+1}, v4", f"v_add_u32 v14, s{sT+1}, v12")
    e(f"s_lshl_b32 s{sO}, s{sI}, 2", f"v_add_u32 v15, s{sO}, v{vHC}")
    e(f"s_lshl_b32 s{sO}, s{sRB}, 11")
    e(f"s_lshr_b32 s{sO+1}, s{sSB}, 1", f"s_lshl_b32 s{sO+1}, s{sO+1}, 10", f"s_and_b32 s{sO+2}, s{sSB}, 1", f"s_lshl_b32 s{sO+2}, s{sO+2}, 8")
    e(f"s_add_u32 s{sO+1}, s{sO+1}, s{sO+2}", f"s_add_u32 s{sO+1}, s{sO+1}, {KW}")
    e(f"s_lshl_b32 s{sO+2}, s{sSB}, 9", f"s_add_u32 s{sO+2}, s{sO+2}, {VW}")
    e(f"s_cmp_eq_u32 s{sKIND}, 0", f"s_cselect_b32 s{sO+1}, s{sO+1}, s{sO+2}", f"s_cselect_b32 s{sO+2}, 9, 8", f"s_add_u32 s{sO+4}, s{sO}, s{sO+1}")
    e("v_and_b32 v4, 1, v3", f"v_lshlrev_b32 v4, s{sO+2}, v4", "v_lshl_add_u32 v20, v2, 4, v4")
    e(f"s_lshl_b32 s{sO}, s{sKIND}, 28", f"s_add_u32 s{sO}, s{sO}, 0x3f800000", f"v_mov_b32 v22, s{sO}")
    e(f"s_lshl_b32 s{sO+5}, s{sIDX}, 7", f"s_add_u32 s{sO+5}, s{sO+5}, {F1}")
    get_epoch(e)
    e("s_waitcnt vmcnt(0)")
    stamp(e, 1)
    for q in range(4):
        e(f"ds_read_b128 {vr(fx+4*q,4)}, v{8+q}")
        e(f"ds_read_b64_tr_b16 {vr(fw+4*q,2)}, v13 offset:{q*1024}", f"ds_read_b64_tr_b16 {vr(fw+4*q+2,2)}, v13 offset:{q*1024+128}")
    sig(e, 15, vH1, LAND)
    e(f"s_cmp_lg_u32 s{sKIND}, 0", "s_cbranch_scc1 L_kv_v")
    for kind in range(2):
        for q in range(4):
            a, b = (fw, fx) if kind == 0 else (fx, fw)
            e(f"s_waitcnt lgkmcnt({10-3*q})", f"{MF16} {vr(acc,4)}, {vr(a+4*q,4)}, {vr(b+4*q,4)}, {'0' if q == 0 else vr(acc,4)}")
        if kind == 0:
            e("s_branch L_kv_d"); e.lab("L_kv_v")
    e.lab("L_kv_d")
    e(f"s_cmp_eq_u32 s{sI}, 0", "s_cbranch_scc1 L_kv_0", "s_nop 5")
    e(f"ds_write_b128 v14, {vr(acc,4)}")
    sig(e, vHC, vH1, HCNT)
    e("s_branch L_h2")
    e.lab("L_kv_0")
    lds_wait(e, vHC, vHT, 3, HCNT, sleep=0)
    for k in range(1, 4): e(f"ds_read_b128 {vr(fx+4*k,4)}, v14 offset:{k*4096}")
    e("s_waitcnt lgkmcnt(1)")
    for k in range(2): e(f"v_pk_add_f32 {vr(fx+4+2*k,2)}, {vr(fx+4+2*k,2)}, {vr(fx+8+2*k,2)}")
    e("s_waitcnt lgkmcnt(0)")
    for k in range(2): e(f"v_pk_add_f32 {vr(acc+2*k,2)}, {vr(acc+2*k,2)}, {vr(fx+12+2*k,2)}")
    for k in range(2): e(f"v_pk_add_f32 {vr(acc+2*k,2)}, {vr(acc+2*k,2)}, {vr(fx+4+2*k,2)}")
    for k in range(2): e(f"v_pk_mul_f32 {vr(acc+2*k,2)}, {vr(acc+2*k,2)}, v[22:23] op_sel_hi:[1,0]")
    e(f"v_cvt_pk_bf16_f32 v28, v{acc}, v{acc+1}", f"v_cvt_pk_bf16_f32 v29, v{acc+2}, v{acc+3}", "s_nop 1")
    e("v_permlane32_swap_b32 v28, v30", "v_permlane32_swap_b32 v29, v31", "s_mov_b32 exec_hi, 0", "s_nop 0")
    e(f"buffer_store_dwordx4 v[28:31], v20, {sr(R_WS,4)}, s{sO+4} offen{SC}", "s_mov_b64 exec, -1")
    if "gate1" in OPT: sig(e, vHC, vH1, KVF)
    sig(e, vHC, vH1, HCNT)
    stamp(e, 2)
    e("s_waitcnt vmcnt(0)")
    set_flag(e, sO+5, 2, 3)
    if "gate2" in OPT: sig(e, vHC, vH1, KVF)
    stamp(e, 3)
    e("s_branch L_h2")

vT0, vQ16, vAN, vT1, AQ, AK, AV, S0, S1, AO, ANM = 0, 1, 2, 3, 4, 8, 40, 104, 120, 136, 152
vVo, vFa, vC, v1_ = S1, S1+1, S1+2, S1+3
def zero_pr(e):
    e(f"s_lshl_b32 s{sO}, s{sW}, 8", f"s_add_u32 m0, s{sO}, {PR_L - 1024}", "v_mov_b32 v2, 0", "ds_write_addtid_b32 v2")
def f_load(e):
    e.lab("L_aux")
    e.c("---- F: bulk loads")
    zero_pr(e)
    xa_voff(e, 8, 12)
    e(f"s_lshl_b32 s{sO}, s{sI}, 6", f"v_xor_b32 v8, s{sO}, v8")
    e("v_lshrrev_b32 v2, 3, v0", "v_bfe_u32 v3, v0, 4, 1", "v_lshlrev_b32 v3, 2, v3", "v_and_b32 v4, 7, v0", "v_xor_b32 v4, v4, v3")
    e("v_lshlrev_b32 v4, 4, v4", "v_lshl_add_u32 v12, v2, 10, v4")
    e(f"s_lshl_b32 s{sT}, s{sI}, 12")
    e(f"s_lshl_b32 s{sT+1}, s{sI}, 15", f"s_lshl_b32 s{sO}, s{sCB}, 7", f"s_add_u32 s{sT+1}, s{sT+1}, s{sO}")
    e(f"s_lshl_b32 s{sT+2}, s{sRB}, 16", f"s_add_u32 s{sT+2}, s{sT+2}, s{sT}", f"s_lshl_b32 s{sT+9}, s{sI}, 10")
    for du in range(1, 4):
        e(f"s_add_u32 s{sO}, s{sSB}, {du}", f"s_and_b32 s{sO}, s{sO}, 3")
        e(f"s_lshl_b32 s{sT+2+du}, s{sO}, 14", f"s_add_u32 s{sT+2+du}, s{sT+2+du}, s{sT+2}")
        e(f"s_lshl_b32 s{sT+5+du}, s{sO}, 12", f"s_add_u32 s{sT+5+du}, s{sT+5+du}, s{sT+9}")
    e(f"v_mov_b32 v{vC}, {CNT}", f"v_mov_b32 v{v1_}, 1")
    e("s_waitcnt lgkmcnt(0)")
    load_epoch(e)
    e("s_barrier")
    def chunk(sg):
        e(f"s_add_u32 s{sO+1}, s{sRB}, {sg}", f"s_and_b32 s{sO+1}, s{sO+1}, 3", f"s_lshl_b32 s{sO+2}, s{sO+1}, 8")
        e(f"s_lshl_b32 s{sO+1}, s{sO+1}, 17", f"s_add_u32 s{sO+1}, s{sO+1}, s{sT+1}")
        for i in range(4):
            e(f"s_add_u32 m0, s{sT}, {sg*SLOT + 16384 + i*1024}", f"s_add_u32 s{sO}, s{sO+1}, {i*8192}")
            dma(e, 12, R_WQ, sO)
        for du in range(1, 4):
            e(f"s_add_u32 m0, s{sT+5+du}, {sg*SLOT}", f"s_add_u32 s{sO}, s{sT+2+du}, s{sO+2}")
            dma(e, 8, R_XA, sO, nt=True)
    nb = NB1
    for sg in range(nb): chunk(sg)
    stamp_init(e)
    att_consts(e)
    get_epoch(e)
    done = 0
    if nb < 4:
        e(f"s_waitcnt vmcnt({7*(nb-1)})"); sig(e, vC, v1_, LAND); done = 1
        if "nogate" not in OPT: lds_wait(e, vC, S0, 1, KVF, sleep=1)
        for sg in range(nb, 4):
            chunk(sg)
            if sg < 3:
                e(f"s_waitcnt vmcnt({7*(sg-done)})"); sig(e, vC, v1_, LAND + 4*done); done += 1
    stamp(e, 1)
    for sg in range(done, 4):
        e(f"s_waitcnt vmcnt({21-7*sg})"); sig(e, vC, v1_, LAND + 4*sg)
    stamp(e, 2)
    e("s_branch L_f2")

sAW, sP, sExp = sT+8, sT+9, sT+10
def att_consts(e):
    e(f"v_and_b32 v{S0}, 31, v0", f"v_cmp_eq_u32 vcc, 16, v{S0}", f"v_mov_b32 v{S0+1}, 0x4f804f80", f"v_lshlrev_b32 v{vQ16}, 4, v0")
    e(f"v_cndmask_b32 v{AV}, 0, v{S0+1}, vcc")
    for r in range(1, 64): e(f"v_mov_b32 v{AV+r}, v{AV}")
    e(f"v_lshlrev_b32 v{vAN}, 4, v{S0}", f"v_add_u32 v{vAN}, {NM_L}, v{vAN}")
    e(f"v_lshrrev_b32 v{vVo}, 5, v0", f"v_lshlrev_b32 v{vVo}, 8, v{vVo}", f"v_and_b32 v{S0+2}, 15, v0", f"v_lshl_add_u32 v{vVo}, v{S0+2}, 4, v{vVo}")
def gather_bases(e):
    e(f"s_sub_u32 s{sAW}, s{sW}, 4", f"s_lshl_b32 s{sO+2}, s{sAW}, 13")
    e(f"s_add_u32 s{sO}, s{sO+2}, {KW}", f"s_add_u32 s{sO+1}, s{sO+2}, {VW}", f"s_add_u32 s{sO+2}, s{sO}, 4096", f"s_add_u32 s{sO+3}, s{sO+1}, 4096")
def gather(e, t0, t1):
    for t in range(t0, t1):
        e(f"buffer_load_dwordx4 {vr(AK+4*t,4)}, v{vQ16}, {sr(R_WS,4)}, s{sO+2*(t>>2)} offen offset:{(t&3)*1024}{SC}")
        e("s_mov_b32 exec_lo, 0xffff", "s_mov_b32 exec_hi, 0xffff")
        for f in (2*t, 2*t+1):
            e(f"buffer_load_dwordx4 {vr(AV+4*f,4)}, v{vVo}, {sr(R_WS,4)}, s{sO+1+2*(t>>2)} offen offset:{(f&7)*512}{SC}")
        e("s_mov_b64 exec, -1")
def att_addrs(e):
    e(f"s_mul_i32 s{sExp}, s{sI}, {OS_PAIR}", f"s_add_u32 s{sExp}, s{sExp}, {OS_L}")
    e(f"v_add_u32 v{vT1}, s{sExp}, v{vQ16}", f"v_lshl_add_u32 v{vT0}, v0, 2, s{sExp}", f"v_add_u32 v{vQ16}, {QI_L}, v{vQ16}")
    e(f"s_lshl_b32 s{sO+4}, s{sI}, 8", f"s_add_u32 m0, s{sO+4}, {PR_L}")

def s_qproj(e):
    vXa, vWa, vXb, vWb, vSt, vLd = 8, 16, 17, 25, 26, 27
    acc, fr, NF, T = 104, 124, 5, 28
    a_, b_, c_, d_ = T, T+1, T+2, T+3
    e.lab("L_q")
    e.c("---- S: Q projection")
    zero_pr(e)
    e(f"s_mov_b32 m0, {CNT}", "s_nop 0", "ds_write_addtid_b32 v2", "s_waitcnt lgkmcnt(0)")
    load_epoch(e)
    e("s_barrier")
    stamp_init(e)
    e(f"v_mov_b32 v{vC}, {CNT}", f"v_mov_b32 v{v1_}, 1")
    if "tlb" in OPT:
        e("s_load_dwordx8 s[44:51], s[0:1], 32", "s_load_dwordx2 s[52:53], s[0:1], 64", "s_waitcnt lgkmcnt(0)")
        e(f"s_mov_b32 s{sO}, 0x200000", f"s_mov_b32 s{sO+1}, 0x1ffffc")
        for k, R in enumerate((44, 46, 48, 50, 52, R_WS)): e(f"s_load_dword s{54+k}, s[{R}:{R+1}], 0")
        e(f"s_load_dword s60, s[52:53], s{sO}", f"s_load_dword s61, s[{R_WS}:{R_WS+1}], s{sO}", f"s_load_dword s62, s[46:47], s{sO+1}")
    att_consts(e)
    e(f"s_and_b32 s{sO}, s{sI}, 1", f"s_lshl_b32 s{sO}, s{sO}, 13")
    e(f"v_and_b32 v{a_}, 31, v0", f"v_lshrrev_b32 v{b_}, 5, v0", f"v_and_b32 v{c_}, 15, v0", f"v_xor_b32 v{c_}, v{c_}, v{b_}")
    e(f"v_lshl_add_u32 v{d_}, v{a_}, 8, s{sO}", f"v_lshl_add_u32 v{vXa}, v{c_}, 4, v{d_}")
    for s in range(1, 8): e(f"v_xor_b32 v{vXa+s}, {s<<5}, v{vXa}")
    e(f"v_bfe_u32 v{a_}, v0, 2, 2", f"v_lshl_add_u32 v{c_}, v{b_}, 3, v{a_}", f"v_lshlrev_b32 v{c_}, 7, v{c_}", f"v_lshrrev_b32 v{a_}, 1, v{a_}")
    e(f"s_lshr_b32 s{sO}, s{sI}, 1", f"v_xor_b32 v{a_}, s{sO}, v{a_}", f"v_lshl_add_u32 v{c_}, v{a_}, 6, v{c_}")
    e(f"v_bfe_u32 v{a_}, v0, 4, 1", f"v_lshl_add_u32 v{c_}, v{a_}, 5, v{c_}", f"v_and_b32 v{a_}, 3, v0", f"v_lshl_add_u32 v{c_}, v{a_}, 3, v{c_}")
    e(f"v_add_u32 v{vWa}, 16384, v{c_}", f"v_lshl_add_u32 v{vLd}, v{a_}, 2, v{vC}")
    for s in range(9): e(f"v_add_u32 v{vXb+s}, 65536, v{vXa+s}")
    get_epoch(e)
    e(f"s_mov_b32 s{sT+6}, {hex(f32bits(CSC))}")
    e(f"s_and_b32 s{sO}, s{sI}, 2", f"s_add_u32 s{sO}, s{sO}, s{sI}", f"s_lshl_b32 s{sO}, s{sO}, 10", f"s_add_u32 s{sO}, s{sO}, {QI_L}", f"v_add_u32 v{b_}, s{sO}, v{vQ16}")
    e(f"s_lshl_b32 s{sO}, s{sI}, 2", f"v_add_u32 v{vFa}, s{sO}, v{vC}")
    gather_bases(e)
    def landwait(mask):
        lq = e.uniq("ql")
        e.lab(lq)
        e(f"ds_read_b32 v{a_}, v{vLd} offset:{LAND}", "s_waitcnt lgkmcnt(0)", f"v_cmp_gt_u32 vcc, 5, v{a_}")
        e(f"s_and_b32 s{sO+5}, vcc_lo, 15", f"s_and_b32 s{sO+4}, s{sO+5}, {mask}", f"s_cbranch_scc0 {lq}_d")
        spin_tail(e, lq, 1)
        e.lab(lq + "_d")
    def rd(n):
        sg, s = n >> 3, n & 7
        so = (sg & 1) * SLOT
        xa, wa = (vXa + s, vWa) if sg < 2 else (vXb + s, vWb)
        f = fr + 8 * (n % NF)
        e(f"ds_read_b128 {vr(f,4)}, v{xa} offset:{so}")
        e(f"ds_read_b64_tr_b16 {vr(f+4,2)}, v{wa} offset:{so+s*2048}", f"ds_read_b64_tr_b16 {vr(f+6,2)}, v{wa} offset:{so+s*2048+512}")
    e("s_setprio 3")
    landwait(1)
    stamp(e, 16)
    for n in range(NF): rd(n)
    for n in range(32):
        f = fr + 8 * (n % NF)
        e(f"s_waitcnt lgkmcnt({min(3*(NF-1), 3*(31-n))})", f"{MF32} {vr(acc,16)}, {vr(f+4,4)}, {vr(f,4)}, {'0' if n == 0 else vr(acc,16)}")
        if n + NF < 32:
            if (n + NF) % 8 == 0:
                bit = 1 << ((n + NF) >> 3)
                sk = e.uniq("lok")
                e(f"s_and_b32 s{sO+4}, s{sO+5}, {bit}", f"s_cbranch_scc0 {sk}")
                landwait(bit)
                e.lab(sk)
                if "qst" in OPT: stamp(e, 16 + ((n + NF) >> 3))
            rd(n + NF)
    if "qst" in OPT: stamp(e, 20)
    e(f"v_mov_b32 v{c_}, s{sT+6}", "s_nop 10")
    for r in range(8): e(f"v_pk_mul_f32 {vr(acc+2*r,2)}, {vr(acc+2*r,2)}, {vr(c_,2)} op_sel_hi:[1,0]")
    P = AO
    for j in range(8): e(f"v_cvt_pk_bf16_f32 v{P+j}, v{acc+2*j}, v{acc+2*j+1}")
    e(f"ds_write_b128 v{b_}, {vr(P,4)}", f"ds_write_b128 v{b_}, {vr(P+4,4)} offset:2048")
    sig(e, vC, v1_, ACNT)
    stamp(e, 2)
    lds_wait(e, vFa, S0+2, 2 if 'proxy' in OPT else 1, SOK)
    lds_wait(e, vC, S0+2, 4, GCNT, sleep=2)
    if "sl" in OPT: lds_wait(e, vC, S0+2, 8, QST, sleep=2)
    if "sdelay" in OPT: lds_wait(e, vC, S0+2, 1, RDY1)
    stamp(e, 7)
    gather(e, 0, 8)
    sig(e, vC, v1_, GCNT)

def pk(S, j):
    d = S + (j if j < 4 else 4 + j)
    return f"v_cvt_pk_bf16_f32 v{d}, v{S+2*j}, v{S+2*j+1}"
def rdq(e):
    e(f"ds_read_b128 {vr(AQ,4)}, v{vQ16}")
    for k in range(4): e(f"ds_read_b128 {vr(ANM+4*k,4)}, v{vAN}")
def dump(e, kind):
    e(f"ds_write_b128 v{vT1}, {vr(AO,4)}", f"ds_write_b128 v{vT1}, {vr(AO+4,4)} offset:1024", f"ds_write_b32 v{vT0}, v{AO+8} offset:2048")
    e(f"ds_write_addtid_b32 v{vT1} offset:{0 if kind == 'F' else 1024}")
def advance(e):
    e(f"v_add_u32 v{vT1}, {OS_POS}, v{vT1}", f"v_add_u32 v{vT0}, {OS_POS}, v{vT0}")
def init_o(e, off):
    e(f"ds_read_b128 {vr(AO,4)}, v{vT1} offset:{off}", f"ds_read_b128 {vr(AO+4,4)}, v{vT1} offset:{off+1024}", f"ds_read_b32 v{AO+8}, v{vT0} offset:{off+2048}")

def att_block(e, mode):
    kind = "F" if mode[0] == "F" else "S"
    lo = LOF if kind == "F" else LOS
    def prio(p):
        if YS and mode in YMODES: return
        if mode != "B" and "noprio" not in OPT: e(f"s_setprio {p}")
        elif mode == "B" and "btog" in OPT: e(f"s_setprio {p}")
    for t in range(8):
        Sc, Sn = (S0, S1) if t % 2 == 0 else (S1, S0)
        tp, tn = (t - 1) % 8, (t + 1) % 8
        def X(*toks):
            for k in toks:
                X1(k)
                if YS and mode in YMODES and k in YS: e("s_nop 0")
        def X1(*toks):
            for k in toks: e(f"v_exp_f32 v{Sc+k}, v{Sc+k}" if isinstance(k, int) else pk(Sc, int(k[1:])))
        c0 = "0" if (t == 1 and kind == "F") else vr(AO, 16)
        pv0 = f"{MF32} {vr(AO,16)}, {vr(AV+8*tp,4)}, {vr(Sn,4)}, {c0}"
        pv1 = f"{MF32} {vr(AO,16)}, {vr(AV+8*tp+4,4)}, {vr(Sn+8,4)}, {vr(AO,16)}"
        qk = f"{MF32} {vr(Sn,16)}, {vr(AK+4*tn,4)}, {vr(AQ,4)}, {vr(ANM,16)}"
        if t == 1 and kind == "S":
            X(0); e(pk(Sn, 7)); X(1, 2)
            e("s_waitcnt lgkmcnt(0)", pv0); X(3, "p0", 4, "p1")
            e(pv1); X(5, 6, "p2", 7)
            e(qk); prio(lo)
            X(8, "p3", 9, 10, "p4", 11, 12)
            e("s_wakeup")
            prio(3)
            X("p5", 13, 14, "p6", 15)
            continue
        skip_pv = mode == "F0" and t == 0
        if mode == "F0" and t > 0: e(f"s_waitcnt vmcnt({max(0, 23 - 3*(t+1))})")
        if not skip_pv: e(pv0)
        X(0)
        if not skip_pv: e(pk(Sn, 7))
        X(1, 2)
        if not skip_pv: e(pv1)
        X(3, "p0", 4, "p1")
        if t == 7: e("s_waitcnt lgkmcnt(0)")
        if t == 7 and mode == "B": e(f"v_readfirstlane_b32 s{sPOLL}, v{Sn+4}")
        if skip_pv: e("s_waitcnt vmcnt(20)")
        e(qk)
        prio(lo)
        X(5, 6, "p2", 7, 8, "p3")
        if t == 0 and mode != "F0":
            if YS and mode in YMODES and not any(k in YS for k in (5, 6, 7, 8)): e("s_nop 0")
            if mode == "S":
                dump(e, kind); init_o(e, OS_POS); advance(e)
            elif mode == "F":
                dump(e, kind); advance(e)
            else:
                sk = e.uniq("nodump")
                e(f"s_cmp_eq_u32 s{sP}, {1 if mode == 'F' else 0}", f"s_cbranch_scc1 {sk}")
                dump(e, kind); advance(e)
                if mode == "B": e(f"s_add_u32 s{sExp}, s{sExp}, {OS_POS}")
                e.lab(sk)
                if mode == "B":
                    e(f"s_cmp_ge_u32 s{sPOLL}, s{sExp}", "s_cbranch_scc0 L_swait")
                    e.lab("L_swait_ret")
                    init_o(e, 0)
        X(9)
        if t == 6:
            if mode == "F0":
                e(f"v_mov_b32 v{Sc+4}, {CNT}")
                lds_wait(e, Sc+4, Sc+5, 8, ACNT, sleep=1)
            e(f"v_add_u32 v{vQ16}, 1024, v{vQ16}", f"v_add_u32 v{vAN}, 512, v{vAN}")
            rdq(e)
            if mode == "B": e(f"ds_read_addtid_b32 v{Sc+4}")
        X(10, "p4", 11, 12)
        w = WIN if kind == "F" else 12
        if w == 12: prio(3)
        X("p5", 13)
        if w == 13: prio(3)
        X(14)
        if w == 14: prio(3)
        X("p6", 15)
        if w == 15: prio(3)

def att_finish(e, kind):
    e(f"{MF32} {vr(AO,16)}, {vr(AV+8*7,4)}, {vr(S1,4)}, {vr(AO,16)}", pk(S1, 7), "s_nop 1")
    e(f"{MF32} {vr(AO,16)}, {vr(AV+8*7+4,4)}, {vr(S1+8,4)}, {vr(AO,16)}", "s_nop 11")
    dump(e, kind)
    e("s_waitcnt lgkmcnt(0)", "s_wakeup")
def qk0(e):
    e(f"{MF32} {vr(S0,16)}, {vr(AK,4)}, {vr(AQ,4)}, {vr(ANM,16)}", "s_nop 11")

def f_att(e):
    e.lab("L_f2")
    e("s_setprio 3")
    gather_bases(e)
    e(f"s_lshl_b32 s{sO+4}, s{sI}, 12", f"s_add_u32 s{sO+4}, s{sO+4}, {F1}", f"v_lshl_add_u32 v{vFa}, v0, 7, s{sO+4}")
    stamp(e, 6)
    if "proxy" in OPT:
        e(f"s_lshl_b32 s{sO+4}, s{sI}, 2", f"v_add_u32 v{vFa}, s{sO+4}, v{vC}")
        lds_wait(e, vFa, S0, 1, SOK, sleep=0)
    else: gpoll(e, vFa, S0, 0xffffffff, 0, sleep=1)
    stamp(e, 7)
    gather(e, 0, 8)
    sig(e, vC, v1_, GCNT)
    att_addrs(e)
    stamp(e, 8)
    lds_wait(e, vC, S0, 1, RDY1, sleep=0)
    rdq(e)
    e(f"s_mov_b32 s{sP}, 1", "s_waitcnt vmcnt(23) lgkmcnt(0)")
    stamp(e, 3); cstamp(e, 13)
    qk0(e)
    att_block(e, "F0")
    stamp(e, 21); cstamp(e, 10)
    e.L.append("    .p2align 3")
    e.lab("L_floop")
    att_block(e, "F")
    e(f"s_add_u32 s{sP}, s{sP}, 1", f"s_cmp_lt_u32 s{sP}, 8", "s_cbranch_scc1 L_floop")
    att_finish(e, "F")
    stamp(e, 4); cstamp(e, 11)
    e("s_branch L_f3")

def s_att(e):
    att_addrs(e)
    e(f"s_mov_b32 s{sP}, 0", f"v_mov_b32 v{S0}, m0", "s_setprio 0")
    stamp(e, 8)
    if SHOLD: lds_wait(e, vC, S0+1, SHOLD, HCNT, sleep=16)
    lds_wait(e, S0, S0+1, 1, sleep=6)
    rdq(e)
    e("s_waitcnt vmcnt(0) lgkmcnt(0)")
    stamp(e, 3); cstamp(e, 13)
    qk0(e)
    e.L.append("    .p2align 3")
    e.lab("L_bloop")
    att_block(e, "B")
    e(f"s_add_u32 s{sP}, s{sP}, 1", f"s_cmp_ge_u32 s{sP}, 8", "s_cbranch_scc1 L_sfin")
    e(f"s_cmp_lt_u32 s{sPOLL}, {OS_L + 7*OS_POS}", "s_cbranch_scc1 L_bloop")
    stamp(e, 5)
    e("s_setprio 3")
    e.L.append("    .p2align 3")
    e.lab("L_sloop")
    att_block(e, "S")
    e(f"s_add_u32 s{sP}, s{sP}, 1")
    if STAMPS:
        e(f"s_cmp_lg_u32 s{sP}, 4", "s_cbranch_scc1 L_sns"); stamp(e, 4); cstamp(e, 10); e.lab("L_sns")
    e(f"s_cmp_lt_u32 s{sP}, 8", "s_cbranch_scc1 L_sloop")
    e.lab("L_sfin")
    att_finish(e, "S")
    if "s3pub" in OPT:
        e(f"s_cmp_lg_u32 s{sI}, 3", "s_cbranch_scc1 L_sx")
        stamp(e, 9)
        lane_id(e)
        out_prep(e)
        pub(e, 4, fast=True)
        e(f"v_mov_b32 v{vHC}, {CNT}", f"ds_write_b32 v{vHC}, v{vHC} offset:{QST}", "s_waitcnt lgkmcnt(0)", "s_wakeup")
        e.lab("L_sx")
    finish(e)
    e.lab("L_swait")
    e(f"v_mov_b32 v{S0+4}, m0")
    lds_wait(e, S0+4, S0+5, f"s{sExp}", sleep=4)
    e("s_branch L_swait_ret")

sBX, sBH, sBW, sKC, sBXL, sBHL, sBWL = sT, sT+1, sT+2, sT+3, sT+4, sT+5, sT+6
BA = 8
aq, ak, av, ahk, ahv, MC = 24, 40, 56, 72, 76, 80
MP = MC + 4
FR = 104
def b_prep(e):
    e.c("---- B prep")
    e("v_lshrrev_b32 v20, 3, v0", "v_and_b32 v21, 7, v0", "v_lshrrev_b32 v22, 1, v20", "v_xor_b32 v23, v21, v22", "v_lshlrev_b32 v23, 4, v23")
    e("v_lshl_add_u32 v1, v20, 11, v23", "v_xor_b32 v2, 64, v1")
    e(f"s_lshl_b32 s{sO}, s{sI}, 5", f"v_xor_b32 v3, s{sO}, v1")
    e("v_and_b32 v22, 1, v22", "v_lshlrev_b32 v22, 2, v22", "v_xor_b32 v23, v21, v22", "v_lshlrev_b32 v23, 4, v23")
    e("v_mul_u32_u24 v20, 3072, v20", "v_add_u32 v4, v20, v23", "v_xor_b32 v16, 32, v4")
    e(f"s_and_b32 s{sO}, s{sI}, 1", f"s_lshr_b32 s{sO+1}, s{sI}, 1", f"s_lshl_b32 s{sO+1}, s{sO+1}, 10")
    e(f"s_lshl_b32 s{sBX}, s{sRB}, 16", f"s_max_u32 s{sBH}, s{sBX}, 16384", f"s_sub_u32 s{sBH}, s{sBH}, 16384")
    e(f"s_add_u32 s{sBX}, s{sBX}, s{sO+1}", f"s_add_u32 s{sBH}, s{sBH}, s{sO+1}")
    e(f"s_lshl_b32 s{sO+1}, s{sO}, 15", f"s_add_u32 s{sBX}, s{sBX}, s{sO+1}")
    e(f"s_lshl_b32 s{sO+1}, s{sO}, 13", f"s_add_u32 s{sBH}, s{sBH}, s{sO+1}")
    e(f"s_mul_i32 s{sBW}, s{sI}, {16*3072}", f"s_lshl_b32 s{sO+1}, s{sCB}, 7", f"s_add_u32 s{sBW}, s{sBW}, s{sO+1}")
    e(f"s_lshl_b32 s{sKC}, s{sRB}, 1", f"s_add_u32 s{sKC}, s{sKC}, s{sCB}")
    e(f"s_lshl_b32 s{sBWL}, s{sI}, 11", f"s_add_u32 s{sBXL}, s{sBWL}, {RXO + 2048}", f"s_lshl_b32 s{sBHL}, s{sI}, 9", f"s_add_u32 s{sBHL}, s{sBHL}, {RXO}")
    e("v_and_b32 v20, 31, v0", "v_lshrrev_b32 v21, 5, v0", "v_bfe_u32 v22, v0, 1, 3", "v_xor_b32 v22, v22, v21", "v_lshlrev_b32 v22, 4, v22", "v_lshl_add_u32 v22, v20, 7, v22")
    e(f"s_lshl_b32 s{sO}, s{sO}, 12", f"s_add_u32 s{sO}, s{sO}, {RXO + 2048}", f"v_add_u32 v{BA}, s{sO}, v22")
    for s in range(1, 4): e(f"v_xor_b32 v{BA+s}, {s<<5}, v{BA}")
    e("v_bfe_u32 v20, v0, 2, 2", "v_and_b32 v23, 3, v0", "v_and_b32 v17, 2, v20", "v_or_b32 v18, v17, v21", "v_bfe_u32 v19, v0, 4, 1")
    e(f"s_and_b32 s{sO}, s{sI}, 2", f"v_or_b32 v19, s{sO}, v19", "v_xor_b32 v18, v18, v19")
    e("v_lshl_add_u32 v22, v21, 3, v20", "v_lshlrev_b32 v22, 7, v22", "v_lshl_add_u32 v22, v18, 5, v22", f"v_lshl_add_u32 v{BA+4}, v23, 3, v22")
    e("v_lshrrev_b32 v21, 4, v0", "v_bfe_u32 v22, v0, 1, 3", "v_xor_b32 v22, v22, v21", "v_lshlrev_b32 v22, 4, v22", "v_and_b32 v19, 15, v0")
    e("v_lshl_add_u32 v22, v19, 7, v22", f"v_add_u32 v{BA+5}, {RXO}, v22", f"v_xor_b32 v{BA+6}, 64, v{BA+5}")
    e("v_and_b32 v18, 1, v21", "v_or_b32 v18, v17, v18", f"v_xor_b32 v18, s{sI}, v18")
    e("v_lshl_add_u32 v22, v21, 3, v20", "v_lshlrev_b32 v22, 7, v22", "v_lshl_add_u32 v22, v18, 5, v22", f"v_lshl_add_u32 v{BA+7}, v23, 3, v22")
    e(f"v_mov_b32 v{MC}, {hex(f32bits(-1e30))}")
    for r in range(1, 20): e(f"v_mov_b32 v{MC+r}, v{MC}")
    def setm(reg, r, shift):
        m = 0
        for l in range(64):
            d = (l & 31) - ((r & 3) + 8 * (r >> 2) + 4 * (l >> 5)) + shift
            if 0 <= d <= 7: m |= 1 << l
        if m: e(f"s_mov_b32 exec_lo, {hex(m & 0xffffffff)}", f"s_mov_b32 exec_hi, {hex(m >> 32)}", f"v_mov_b32 v{reg}, 0")
    for r in range(16): setm(MC + r, r, 0)
    e(f"s_cmp_eq_u32 s{sRB}, 0", "s_cbranch_scc1 L_nomp")
    for r in range(12, 16): setm(MP + r, r, 32)
    e.lab("L_nomp")
    e("s_mov_b64 exec, -1")

def h_qprep(e):
    T, QK, SA, SB, KS = 20, 104, 120, 136, 24
    e.c("---- H: max images of positions i, 4+i")
    e(f"v_lshlrev_b32 v{T+2}, 4, v0")
    e(f"s_lshl_b32 s{sO+4}, s{sI}, 13", f"s_add_u32 s{sO+4}, s{sO+4}, {KW + 32768}")
    e(f"s_lshl_b32 s{sO+5}, s{sI}, 12", f"s_add_u32 s{sO+5}, s{sO+5}, {F1 + 16384}", f"v_lshl_add_u32 v{T+3}, v0, 7, s{sO+5}")
    e(f"s_lshl_b32 s{sO+5}, s{sI}, 2", f"v_add_u32 v17, s{sO+5}, v{vHC}")
    e(f"s_lshl_b32 s{sO}, s{sI}, 10", f"s_add_u32 s{sO}, s{sO}, {QI_L}", f"v_add_u32 v{T}, s{sO}, v{T+2}", f"v_and_b32 v18, 0x1ff, v{T+2}")
    e(f"s_lshl_b32 s{sO}, s{sI}, 9", f"s_add_u32 s{sO}, s{sO}, {NM_L}", f"v_add_u32 v18, s{sO}, v18")
    if "proxy" in OPT:
        e(f"v_subrev_u32 v19, 16384, v{T+3}", f"s_sub_u32 s{sO+4}, s{sO+4}, 32768")
        lds_wait(e, vHC, vHT, 5, LAND + PGATE, sleep=1)
        gpoll(e, 19, T + 1, 0xffffffff, 0, sleep=1)
        for t in range(NSAMP): e(f"buffer_load_dwordx4 {vr(KS+4*t,4)}, v{T+2}, {sr(R_WS,4)}, s{sO+4} offen offset:{1024*t}{SC}")
        sig(e, 17, vH1, SOK)
        gpoll_issue(e, T + 3, T + 1, 0xffffffff)
    else:
        lds_wait(e, vHC, vHT, 5, LAND + (8 if "early" in OPT else 12), sleep=1)
        gpoll(e, T + 3, T + 1, 0x5555 if "sub" in OPT else 0xffffffff, 0, sleep=1)
        for t in range(NSAMP): e(f"buffer_load_dwordx4 {vr(KS+4*t,4)}, v{T+2}, {sr(R_WS,4)}, s{sO+4} offen offset:{1024*t}{SC}")
        if "sub" in OPT: gpoll_issue(e, T + 3, T + 1, 0xffffaaaa)
        else: sig(e, 17, vH1, SOK)
    lds_wait(e, vHC, vHT, 4, ACNT, sleep=1)
    e(f"ds_read_b128 {vr(QK,4)}, v{T}", f"ds_read_b128 {vr(QK+4,4)}, v{T} offset:4096", f"s_waitcnt vmcnt({1 if 'sub' in OPT else 0}) lgkmcnt(0)")
    for z in range(2):
        SS = (SA, SB, 40, 56)
        for t in range(NSAMP): e(f"{MF32} {vr(SS[t],16)}, {vr(KS+4*t,4)}, {vr(QK+4*z,4)}, 0")
        e(f"s_nop {12 - NSAMP}")
        m = 152 + 4*z
        regs = [SS[t] + r for t in range(NSAMP) for r in range(16)]
        e(f"v_max_f32 v{m}, v{regs[0]}, v{regs[1]}")
        for k in range(2, len(regs), 2): e(f"v_max3_f32 v{m}, v{m}, v{regs[k]}, v{regs[k+1]}")
        halfmax(e, m)
        e(f"v_sub_f32 v{m}, {hex(f32bits(-MOFF))}, v{m}")
        for r in range(1, 4): e(f"v_mov_b32 v{m+r}, v{m}")
        e(f"ds_write_b128 v18, {vr(m,4)} offset:{2048*z}")
        if z == 0: e(f"s_cmp_eq_u32 s{sI}, 0", "s_cselect_b32 exec_lo, 1, 0", "s_mov_b32 exec_hi, 0", f"ds_write_b32 v{vHC}, v{vH1} offset:{RDY1}", "s_mov_b64 exec, -1")
        else: sig(e, vHC, vH1, ACNT)
        stamp(e, 9 + z)
        if z == 0 and "sub" in OPT:
            gpoll_finish(e, T + 3, T + 1, 0xffffffff if "proxy" in OPT else 0xffffaaaa, 0)
            sig(e, 17, vH1, SOK)

class Lst(list):
    def __call__(self, *x): self.extend(x)
def b_dma_groups(j):
    ro = (j & 1) * RINGS
    G = [Lst() for _ in range(5)]
    g = G[0]
    g(f"s_add_u32 s{sO+1}, s{sKC}, {j}", f"s_and_b32 s{sO+1}, s{sO+1}, 7", f"s_lshl_b32 s{sO+2}, s{sO+1}, 7", f"s_mul_i32 s{sO+1}, s{sO+1}, {64*3072}")
    g(f"s_add_u32 s{sO+1}, s{sO+1}, s{sBW}", f"s_add_u32 s{sO+3}, s{sO+2}, s{sBX}")
    for u in range(2):
        g(f"s_add_u32 m0, s{sBXL}, {ro + u*1024}", f"s_add_u32 s{sO}, s{sO+3}, {u*16384}")
        dma(g, 1 + u, R_XB, sO, nt="bnt" in OPT)
    for p in range(3):
        g = G[1 + p]
        for u in range(2):
            g(f"s_add_u32 m0, s{sBWL}, {ro + p*8192 + u*1024}", f"s_add_u32 s{sO}, s{sO+1}, {p*1024 + u*8*3072}")
            dma(g, 4 if u == 0 else 16, R_WB, sO)
    g = G[4]
    g(f"s_add_u32 m0, s{sBHL}, {ro}", f"s_add_u32 s{sO}, s{sO+2}, s{sBH}", "s_mov_b32 exec_hi, 0")
    dma(g, 3, R_XB, sO)
    g("s_mov_b64 exec, -1")
    return G
def wo_groups(half):
    G = [Lst() for _ in range(4)]
    G[0](f"s_lshl_b32 s{sO+1}, s{sI}, 16", f"s_lshr_b32 s{sO+2}, s{sHP}, 1", f"s_lshl_b32 s{sO+2}, s{sO+2}, 7", f"s_add_u32 s{sO+1}, s{sO+1}, s{sO+2}", f"s_lshl_b32 s{sO+2}, s{sI}, 13")
    for u in range(8):
        g = G[u >> 1]
        g(f"s_add_u32 m0, s{sO+2}, {half*32768 + u*1024}", f"s_add_u32 s{sO}, s{sO+1}, {half*262144 + u*8192}")
        dma(g, 20, R_WO, sO)
    return G
def wo_voff(e):
    e("v_lshrrev_b32 v20, 3, v0", "v_bfe_u32 v21, v0, 4, 1", "v_lshlrev_b32 v21, 2, v21", "v_and_b32 v22, 7, v0", "v_xor_b32 v21, v21, v22", "v_lshlrev_b32 v21, 4, v21")
    e("v_lshl_add_u32 v20, v20, 10, v21", "v_lshlrev_b32 v21, 7, v0")
    e(f"s_cmp_eq_u32 s{sKIND}, 0", f"s_cselect_b32 s{R_WO}, s{R_WOA}, s{R_WOB}", f"s_cselect_b32 s{R_WO+1}, s{R_WOA+1}, s{R_WOB+1}", f"s_mov_b32 s{R_WO+2}, {hex(512 << 10)}")

def b_proj(e):
    D, XB_, HX_, WB_, NBUF = 4, FR, FR + 8, FR + 12, 12
    jobs = []
    def wreads(buf, areg, off):
        return [f"ds_read_b64_tr_b16 {vr(buf,2)}, v{areg} offset:{off}", f"ds_read_b64_tr_b16 {vr(buf+2,2)}, v{areg} offset:{off+512}"]
    for j in range(8):
        ro = (j & 1) * RINGS
        for s in range(4):
            x = XB_ + 4 * (s & 1)
            for p, acc in enumerate((aq, ak, av)):
                w = WB_ + 4 * (len(jobs) % NBUF)
                rds = ([f"ds_read_b128 {vr(x,4)}, v{BA+s} offset:{ro}"] if p == 0 else []) + wreads(w, BA + 4, ro + p*8192 + s*2048)
                A_, B_ = (w, x) if p < 2 else (x, w)
                jobs.append((rds, f"{MF32} {vr(acc,16)}, {vr(A_,4)}, {vr(B_,4)}, {'0' if (j == 0 and s == 0) else vr(acc,16)}"))
            s2, p = s >> 1, 1 + (s & 1)
            w = WB_ + 4 * (len(jobs) % NBUF)
            rds = ([f"ds_read_b128 {vr(HX_,4)}, v{BA+5+s2} offset:{ro}"] if p == 1 else []) + wreads(w, BA + 7, ro + p*8192 + s2*4096)
            acc = ahk if p == 1 else ahv
            A_, B_ = (w, HX_) if p == 1 else (HX_, w)
            jobs.append((rds, f"{MF16} {vr(acc,4)}, {vr(A_,4)}, {vr(B_,4)}, {'0' if (j == 0 and s2 == 0) else vr(acc,4)}"))
    q = []
    nxt = [0]
    def issue(upto):
        while nxt[0] < min(upto, 128):
            if "bnord" not in OPT or nxt[0] < 16:
                e(*jobs[nxt[0]][0]); q.extend([nxt[0]] * len(jobs[nxt[0]][0]))
            nxt[0] += 1
    e("s_waitcnt vmcnt(9)")
    sig(e, vHC, vH1, HCNT)
    lds_wait(e, vHC, vHT, 8, HCNT)
    stamp(e, 16)
    e(f"s_setprio {HM}")
    issue(D)
    G = []
    PA = 13
    for n in range(128):
        j, r = n >> 4, n & 15
        if n in q:
            last = len(q) - 1 - q[::-1].index(n)
            e(f"s_waitcnt lgkmcnt({len(q) - 1 - last})")
            del q[:last + 1]
        e(jobs[n][1] if "bnomf" not in OPT else "s_sleep 1")
        lim = 16 * (j + 1)
        if r < PA or j == 7: issue(min(n + 1 + D, lim))
        if r == 15 - D and j < 7:
            e(f"s_waitcnt vmcnt({1 if (j in (3, 4) and 'wpf' in OPT) else 0})")
            sig(e, vHC, vH1, HCNT); q.append(-1)
        if r == PA and j < 7:
            if "bwake" in OPT:
                e("s_waitcnt lgkmcnt(0)", "s_wakeup")
            lds_wait(e, vHC, vHT, 4 * (j + 3), HCNT, sleep=BSLEEP); del q[:]
            if j == 3: stamp(e, 17)
            G = b_dma_groups(j + 2) if j < 6 else wo_groups(0)
            if j in (2, 3) and "wpf" in OPT:
                g = Lst()
                g(f"s_and_b32 s{sO}, s{sIDX}, 31", f"s_lshl_b32 s{sO}, s{sO}, 2", f"s_add_u32 s{sO}, s{sO}, s{sI}", f"s_lshl_b32 s{sO}, s{sO}, 12", "s_mov_b32 exec_hi, 0")
                g(f"buffer_load_dword v22, v21, {sr(R_WOB if j == 2 else R_WOA,4)}, s{sO} offen", "s_mov_b64 exec, -1")
                G.append(g)
        if r >= PA and j < 7: issue(n + 1 + D - (1 if r < 15 else 0))
        for _ in range(2):
            if G: e(*G.pop(0))
    e("s_setprio 3")

def b_attn(e):
    Qf, Kf, Vf, Kp, Vp = 104, 112, 120, 128, 136
    PB = 140
    M = 152
    e.c("---- local attention")
    e(f"s_setprio {APR}")
    e("v_bfe_u32 v9, v0, 3, 1", "v_lshlrev_b32 v10, 10, v9", "v_bfe_u32 v9, v0, 4, 1", "v_lshl_add_u32 v10, v9, 7, v10")
    e("v_and_b32 v11, 7, v0", "v_lshl_add_u32 v10, v11, 4, v10", "v_lshrrev_b32 v12, 5, v0", "v_lshl_add_u32 v10, v12, 3, v10")
    e(f"s_and_b32 s{sO}, s{sI}, 2", f"s_lshl_b32 s{sO}, s{sO}, 10", f"s_add_u32 s{sO}, s{sO}, {EX_L}", f"s_and_b32 s{sO+1}, s{sI}, 1")
    e(f"s_lshl_b32 s{sO+2}, s{sO+1}, 8", f"s_add_u32 s{sO+2}, s{sO+2}, s{sO}", f"v_add_u32 v10, s{sO+2}, v10")
    e("v_lshlrev_b32 v13, 10, v12", "v_lshl_add_u32 v13, v9, 8, v13", "v_and_b32 v14, 15, v0", "v_lshl_add_u32 v13, v14, 3, v13")
    e(f"s_lshl_b32 s{sO+2}, s{sO+1}, 7", f"s_add_u32 s{sO+2}, s{sO+2}, s{sO}", f"v_add_u32 v13, s{sO+2}, v13")
    for j in range(4): e(f"v_cvt_pk_bf16_f32 v{16+j}, v{ahk+2*j}, v{ahk+2*j+1}")
    e("ds_write_b64 v10, v[16:17]", "ds_write_b64 v13, v[18:19] offset:512")
    sig(e, vHC, vH1, HCNT)
    e(f"s_lshl_b32 s{sO}, s{sI}, 10", f"s_add_u32 s{sO}, s{sO}, {EX_L}")
    e("v_lshl_add_u32 v11, v12, 3, v11", f"v_lshl_add_u32 v11, v11, 4, s{sO}", f"v_lshl_add_u32 v14, v0, 3, s{sO}")
    for j in range(8): e(f"v_cvt_pk_bf16_f32 v{Kf+j}, v{ak+2*j}, v{ak+2*j+1}")
    for j in range(8): e(f"v_cvt_pk_bf16_f32 v{Qf+j}, v{aq+2*j}, v{aq+2*j+1}")
    Sc0, Sc1, Sp = 24, 40, 8 + 56
    lds_wait(e, vHC, vHT, 40, HCNT)
    e(f"ds_read_b128 {vr(Kp,4)}, v11", f"ds_read_b128 {vr(Kp+4,4)}, v11 offset:256", f"ds_read_b64 {vr(Vp+2,2)}, v14 offset:512")
    e(f"s_setprio {HM}")
    e(f"{MF32} {vr(Sc0,16)}, {vr(Kf,4)}, {vr(Qf,4)}, {vr(MC,16)}", f"{MF32} {vr(Sc1,16)}, {vr(Kf+4,4)}, {vr(Qf+4,4)}, {vr(MC,16)}")
    e(f"s_setprio {APR}")
    for g in wo_groups(1): e(*g)
    for j in range(8): e(f"v_cvt_pk_bf16_f32 v{Vf+j}, v{av+2*j}, v{av+2*j+1}")
    for r in (Vp, Vp+1): e(f"v_mov_b32 v{r}, 0")
    for r in range(12): e(f"v_mov_b32 v{PB+r}, 0")
    e(f"s_lshl_b32 s{sO+1}, s{sRB}, 1", f"s_and_b32 s{sO+2}, s{sI}, 1", f"s_add_u32 s{sO+1}, s{sO+1}, s{sO+2}", f"s_lshl_b32 s{sO+1}, s{sO+1}, 15")
    e(f"s_lshl_b32 s{sO+2}, s{sCB}, 2", f"s_and_b32 s{sO+3}, s{sI}, 2", f"s_add_u32 s{sO+2}, s{sO+2}, s{sO+3}", f"s_lshl_b32 s{sO+2}, s{sO+2}, 10")
    e(f"s_add_u32 s{sO+1}, s{sO+1}, s{sO+2}", f"s_add_u32 s{sO+1}, s{sO+1}, {OB}")
    e("v_lshlrev_b32 v9, 4, v0", f"v_mov_b32 v22, {hex(f32bits(CSC))}", "s_waitcnt lgkmcnt(0)")
    for hd in range(2):
        Sc = (Sc0, Sc1)[hd]
        e(f"s_setprio {HM}", f"{MF32} {vr(Sp,16)}, {vr(Kp+4*hd,4)}, {vr(Qf+4*hd,4)}, {vr(MP,16)}", f"s_setprio {APR}")
        for k in range(4): e(f"v_max_f32 v{M+k}, v{Sc+k}, v{Sc+8+k}")
        e(f"v_max3_f32 v10, v{M}, v{M+1}, v{M+2}", "s_nop 5")
        for k in range(4): e(f"v_max3_f32 v{M+4+k}, v{Sc+4+k}, v{Sc+12+k}, v{Sp+12+k}")
        e(f"v_max3_f32 v10, v10, v{M+3}, v{M+4}", f"v_max3_f32 v10, v10, v{M+5}, v{M+6}", f"v_max_f32 v10, v10, v{M+7}")
        halfmax(e, 10)
        e("v_mul_f32 v10, v22, v10")
        for k in range(4): e(f"v_pk_fma_f32 {vr(M+2*k,2)}, {vr(M+2*k,2)}, v[22:23], v[10:11] op_sel_hi:[1,0,0] neg_lo:[0,0,1] neg_hi:[0,0,1]")
        for k in range(8): e(f"v_exp_f32 v{M+k}, v{M+k}")
        def cv(mask, dst, src):
            e(f"s_mov_b32 exec_lo, {hex(mask)}", f"s_mov_b32 exec_hi, {hex(mask)}")
            e(f"v_cvt_pk_bf16_f32 v{dst}, v{src}, v{src+1}", f"v_cvt_pk_bf16_f32 v{dst+1}, v{src+2}, v{src+3}")
        cv(0x0000ffff, PB, M); cv(0xffff0000, PB+4, M)
        cv(0x00ffff00, PB+2, M+4); cv(0xff000000, PB+6, M+4); cv(0x000000ff, PB+10, M+4)
        e("s_mov_b64 exec, -1")
        e(f"v_pk_add_f32 {vr(M,2)}, {vr(M,2)}, {vr(M+2,2)}", f"v_pk_add_f32 {vr(M+4,2)}, {vr(M+4,2)}, {vr(M+6,2)}")
        e(f"s_setprio {HM}")
        e(f"{MF32} {vr(Sc,16)}, {vr(Vf,4)}, {vr(PB,4)}, 0", f"{MF32} {vr(Sc,16)}, {vr(Vf+4,4)}, {vr(PB+4,4)}, {vr(Sc,16)}", f"{MF32} {vr(Sc,16)}, {vr(Vp,4)}, {vr(PB+8,4)}, {vr(Sc,16)}")
        e(f"s_setprio {APR}")
        e(f"v_pk_add_f32 {vr(M,2)}, {vr(M,2)}, {vr(M+4,2)}", f"v_add_f32 v10, v{M}, v{M+1}", "v_mov_b32 v11, v10", "s_nop 1")
        e("v_permlane32_swap_b32 v10, v11", "s_nop 0", "v_add_f32 v10, v10, v11", "v_rcp_f32 v10, v10", "s_nop 2")
        O = Sc + 8 * hd
        for k in range(4): e(f"v_pk_mul_f32 {vr(O+2*k,2)}, {vr(O+2*k,2)}, v[10:11] op_sel_hi:[1,0]")
        o = 12 + 4 * hd
        for j in range(4): e(f"v_cvt_pk_bf16_f32 v{o+j}, v{O+2*j}, v{O+2*j+1}")
        e(f"buffer_store_dwordx4 {vr(o,4)}, v9, {sr(R_WS,4)}, s{sO+1} offen offset:{1024*hd}{SC}")

vWt, vPo, vCk, vSt, vL16, vFl, vL4, vOC = 8, 9, 10, 11, 1, 2, 3, 4
tA, tB, vWt1, tD = 12, 13, 14, 15
GACC, GO, GW = 16, 48, 132
sTK, sOut = sT, sT+1
def out_table(e):
    W, Po, Ck, St = 164, 165, 166, 167
    e("v_lshrrev_b32 v30, 5, v0", "v_bfe_u32 v31, v0, 2, 2", "v_lshl_add_u32 v31, v30, 2, v31", f"v_lshlrev_b32 v{W}, 7, v31")
    e("v_bfe_u32 v31, v0, 3, 1", f"v_lshl_add_u32 v{W}, v31, 6, v{W}")
    e("v_and_b32 v31, 1, v0", f"v_lshl_add_u32 v{W}, v31, 5, v{W}", "v_bfe_u32 v31, v0, 1, 1", f"v_lshl_add_u32 v{W}, v31, 3, v{W}")
    e("v_bfe_u32 v31, v0, 4, 1", f"v_lshl_add_u32 v{W}, v31, 4, v{W}")
    e(f"v_and_b32 v{St}, 31, v0", f"v_lshlrev_b32 v{St}, 11, v{St}", f"v_lshl_add_u32 v{St}, v30, 5, v{St}")
    e(f"v_lshlrev_b32 v{Ck}, 2, v0", f"v_lshlrev_b32 v{Po}, 7, v0")
    e(f"v_lshlrev_b32 v31, 4, v0", f"v_add_u32 v31, {TB_L}, v31", "ds_write_b128 v31, v[164:167]")
def out_prep(e):
    e(f"v_lshlrev_b32 v{vL16}, 4, v0", f"v_add_u32 v{vFl}, {TB_L}, v{vL16}", f"ds_read_b128 v[8:11], v{vFl}")
    e(f"v_and_b32 v{vOC}, 3, v0", f"v_lshlrev_b32 v{vOC}, 8, v{vOC}", f"v_add_u32 v{vOC}, {PR_L + 1024}, v{vOC}")
    e(f"v_and_b32 v{vL4}, 31, v0", f"v_lshlrev_b32 v{vL4}, 2, v{vL4}")
    e(f"s_lshl_b32 s{sTK}, s{sTB}, 2", f"s_add_u32 s{sTK}, s{sTK}, s{sI}")

def pry_wait(e, lim, sleep=6):
    l = e.uniq("hp")
    e.lab(l)
    e(f"ds_read_b32 v{vHT}, v{vOC}", "s_waitcnt lgkmcnt(0)", f"v_cmp_gt_u32 vcc, {lim}, v{vHT}", f"s_cbranch_vccz {l}_d")
    spin_tail(e, l, sleep)
    e.lab(l + "_d")

pub_sites = []
def pub(e, add, keep=False, fast=False):
    site = len(pub_sites); pub_sites.append(site)
    e(f"s_add_u32 s{sO+4}, s{sI}, {add}", f"s_mov_b32 s{sRET}, {site}")
    if not fast:
        e(f"s_mul_i32 s{sO}, s{sO+4}, {OS_POS}", f"s_add_u32 s{sO}, s{sO}, {OS_L - OS_POS}")
        pry_wait(e, f"s{sO}", sleep=PSL)
    e("s_branch L_pub")
    e.lab(f"L_pub_ret{site}")

def pub_routine(e):
    P = GO
    site = 0
    e.lab("L_pub")
    e(f"s_mul_i32 s{sO+2}, s{sO+4}, {OS_POS}", f"s_add_u32 s{sO+2}, s{sO+2}, {OS_L}")
    e(f"v_add_u32 v{tA}, s{sO+2}, v{vL16}", f"v_add_u32 v{tB}, s{sO+2}, v{vL4}")
    e(f"s_and_b32 s{sO}, s{sO+4}, 1", f"s_lshl_b32 s{sO}, s{sO}, 2", f"s_lshr_b32 s{sO+1}, s{sO+4}, 1", f"s_add_u32 s{sO}, s{sO}, s{sO+1}")
    e(f"s_lshl_b32 s{sO+1}, s{sRB}, 3", f"s_add_u32 s{sO}, s{sO}, s{sO+1}", f"s_lshl_b32 s{sO}, s{sO}, 3", f"s_add_u32 s{sO}, s{sO}, s{sCB}")
    e(f"s_mul_i32 s{sO+3}, s{sO}, {REC}", f"s_add_u32 s{sO+3}, s{sO+3}, {OA}")
    e(f"s_lshl_b32 s{sO+5}, s{sIDX}, 3", f"s_add_u32 s{sO+5}, s{sO+5}, s{sO+4}", f"s_lshl_b32 s{sO+5}, s{sO+5}, 7", f"s_add_u32 s{sO+5}, s{sO+5}, {F4}")
    e(f"s_mov_b32 s{sO+1}, {hex(f32bits(LMAX))}")
    pry_wait(e, f"s{sO+2}", sleep=3)
    e(f"ds_read2st64_b32 {vr(P+32,2)}, v{tB} offset0:8 offset1:17", f"ds_read2st64_b32 {vr(P+34,2)}, v{tB} offset0:26 offset1:35")
    for a in range(2):
        for s in range(4): e(f"ds_read_b128 {vr(P+8*s+4*a,4)}, v{tA} offset:{s*OS_PAIR + a*1024}")
    e("s_waitcnt lgkmcnt(8)", f"v_pk_add_f32 {vr(P+32,2)}, {vr(P+32,2)}, {vr(P+34,2)}", f"v_add_f32 v{P+34}, v{P+32}, v{P+33}", f"v_rcp_f32 v{P+32}, v{P+34}")
    for a in range(2):
        e(f"s_waitcnt lgkmcnt({4-4*a})")
        for k in range(2):
            a_, b_, c_, d_ = (vr(P + 8*s + 4*a + 2*k, 2) for s in range(4))
            e(f"v_pk_add_f32 {a_}, {a_}, {b_}", f"v_pk_add_f32 {c_}, {c_}, {d_}", f"v_pk_add_f32 {a_}, {a_}, {c_}")
    e(f"v_pk_mul_f32 {vr(P+8,2)}, {vr(P,2)}, 0")
    for k in range(1, 4): e(f"v_pk_fma_f32 {vr(P+8,2)}, {vr(P+2*k,2)}, 0, {vr(P+8,2)}")
    e(f"v_add_f32 v{P+8}, v{P+8}, v{P+9}", f"v_add_f32 v{P+8}, v{P+8}, v{P+34}")
    e(f"v_cmp_ngt_f32 vcc, s{sO+1}, v{P+8}" if "forcefb" not in OPT else "v_cmp_eq_u32 vcc, v0, v0", "s_cbranch_vccnz L_exact")
    e(f"v_max3_f32 v{P+8}, abs(v{P}), abs(v{P+1}), abs(v{P+2})", f"v_max3_f32 v{P+9}, abs(v{P+3}), abs(v{P+4}), abs(v{P+5})")
    e(f"v_max3_f32 v{P+8}, v{P+8}, abs(v{P+6}), abs(v{P+7})", f"v_max_f32 v{P+8}, v{P+8}, v{P+9}")
    e(f"v_cmp_gt_f32 vcc, {hex(f32bits(2.0 ** -104))}, v{P+8}", "s_cbranch_vccnz L_exact")
    e.lab(f"L_exact_ret{site}")
    for k in range(4): e(f"v_pk_mul_f32 {vr(P+2*k,2)}, {vr(P+2*k,2)}, {vr(P+32,2)} op_sel_hi:[1,0]")
    for k in range(4): e(f"v_cvt_pk_bf16_f32 v{164+k}, v{P+2*k}, v{P+2*k+1}")
    e(f"s_cmp_ge_u32 s{sO+4}, 4", "s_cbranch_scc1 L_pub_tag")
    e(f"buffer_store_dwordx4 v[164:167], v{vL16}, {sr(R_WS,4)}, s{sO+3} offen{SC}", "s_waitcnt vmcnt(0)")
    set_flag(e, sO+5, tA, tB)
    e("s_branch L_pub_x")
    e.lab("L_pub_tag")
    mk_ck(e, tD, 164)
    if "nofast" not in OPT:
        e(f"s_add_u32 s{sO}, s{sO+3}, {FAST}")
        e(f"buffer_store_dwordx4 v[164:167], v{vL16}, {sr(R_WS,4)}, s{sO} offen", f"buffer_store_dword v{tD}, v{vCk}, {sr(R_WS,4)}, s{sO} offen offset:1024")
    e(f"buffer_store_dwordx4 v[164:167], v{vL16}, {sr(R_WS,4)}, s{sO+3} offen{SC}", f"buffer_store_dword v{tD}, v{vCk}, {sr(R_WS,4)}, s{sO+3} offen offset:1024{SC}")
    if "nofast" in OPT: set_flag(e, sO+5, tA, tB)
    e.lab("L_pub_x")
    for s in pub_sites[:-1]: e(f"s_cmp_eq_u32 s{sRET}, {s}", f"s_cbranch_scc1 L_pub_ret{s}")
    e(f"s_branch L_pub_ret{pub_sites[-1]}")

def exact(e):
    O, Q, Kr, V, S, NB, m, vo = GO, GO+36, GO+40, GO+44, GO+52, GO+68, GO+84, GO+86
    sK, sV = sO, sO+1
    e.lab("L_exact")
    e(f"s_mov_b32 s{sT+4}, 1", "s_waitcnt vmcnt(0)")
    e(f"s_lshl_b32 s{sK}, s{sO+4}, 10", f"s_add_u32 s{sK}, s{sK}, {QI_L}", f"v_add_u32 v{m}, s{sK}, v{vL16}", f"ds_read_b128 {vr(Q,4)}, v{m}")
    e(f"v_and_b32 v{m}, 31, v0", f"v_cmp_eq_u32 vcc, 16, v{m}", f"v_mov_b32 v{m+1}, 0x4f804f80", f"v_lshrrev_b32 v{vo}, 5, v0", f"v_cndmask_b32 v{V}, 0, v{m+1}, vcc")
    for r in range(1, 8): e(f"v_mov_b32 v{V+r}, v{V}")
    e(f"v_lshlrev_b32 v{vo}, 8, v{vo}", f"v_and_b32 v{m}, 15, v0", f"v_lshl_add_u32 v{vo}, v{m}, 4, v{vo}")
    for r in range(16): e(f"v_mov_b32 v{O+r}, 0")
    e(f"v_mov_b32 v{m}, 0xff800000", f"s_mov_b32 s{sK}, {KW}", "s_waitcnt lgkmcnt(0)")
    e.lab("L_ex1")
    e(f"buffer_load_dwordx4 {vr(Kr,4)}, v{vL16}, {sr(R_WS,4)}, s{sK} offen{SC}", "s_waitcnt vmcnt(0)")
    e(f"{MF32} {vr(S,16)}, {vr(Kr,4)}, {vr(Q,4)}, 0", "s_nop 11")
    for k in range(0, 16, 2): e(f"v_max3_f32 v{m}, v{m}, v{S+k}, v{S+k+1}")
    e(f"s_add_u32 s{sK}, s{sK}, 1024", f"s_cmp_lt_u32 s{sK}, {KW + 65536}", "s_cbranch_scc1 L_ex1")
    halfmax(e, m)
    for r in range(16): e(f"v_sub_f32 v{NB+r}, 0, v{m}")
    e(f"s_mov_b32 s{sK}, {KW}", f"s_mov_b32 s{sV}, {VW}")
    e.lab("L_ex2")
    e(f"buffer_load_dwordx4 {vr(Kr,4)}, v{vL16}, {sr(R_WS,4)}, s{sK} offen{SC}", "s_mov_b32 exec_lo, 0xffff", "s_mov_b32 exec_hi, 0xffff")
    e(f"buffer_load_dwordx4 {vr(V,4)}, v{vo}, {sr(R_WS,4)}, s{sV} offen{SC}", f"buffer_load_dwordx4 {vr(V+4,4)}, v{vo}, {sr(R_WS,4)}, s{sV} offen offset:512{SC}")
    e("s_mov_b64 exec, -1", "s_waitcnt vmcnt(0)")
    e(f"{MF32} {vr(S,16)}, {vr(Kr,4)}, {vr(Q,4)}, {vr(NB,16)}", "s_nop 11")
    for k in range(16): e(f"v_exp_f32 v{S+k}, v{S+k}")
    e("s_nop 0")
    for j in range(8): e(pk(S, j))
    e("s_nop 1", f"{MF32} {vr(O,16)}, {vr(V,4)}, {vr(S,4)}, {vr(O,16)}", f"{MF32} {vr(O,16)}, {vr(V+4,4)}, {vr(S+8,4)}, {vr(O,16)}")
    e(f"s_add_u32 s{sK}, s{sK}, 1024", f"s_add_u32 s{sV}, s{sV}, 1024", f"s_cmp_lt_u32 s{sK}, {KW + 65536}", "s_cbranch_scc1 L_ex2")
    e("s_nop 11", f"v_mov_b32 v{m}, v{O+8}", "s_nop 1", f"v_permlane32_swap_b32 v{O+8}, v{m}", "s_nop 0", f"v_rcp_f32 v{GO+32}, v{O+8}", "s_nop 0")
    e("s_branch L_exact_ret0")

def fetch(e, hl, c0, c1, base, ck=None):
    for c in range(c0, c1):
        e(f"s_add_u32 s{sO}, s{sT+2}, {(hl*8 + c)*REC}")
        e(f"buffer_load_dwordx4 {vr(base+4*c,4)}, v{vL16}, {sr(R_WS,4)}, s{sO} offen{SC}")
        if ck is not None: e(f"buffer_load_dword v{ck+c}, v{vCk}, {sr(R_WS,4)}, s{sO} offen offset:1024{SC}")
def verify(e, c0, c1, base, ck, younger, hl=3, sleep=0):
    l = e.uniq("vf")
    e(f"s_waitcnt vmcnt({younger})", f"s_branch {l}_v")
    e.lab(l)
    if "nofast" not in OPT:
        e(f"s_add_u32 s{sT+6}, s{sT+6}, 1", f"s_and_b32 s{sO}, s{sT+6}, {FTRY-1}", f"s_cselect_b32 s{sO}, 0, {FAST}", f"s_xor_b32 s{sT+5}, s{sT+5}, s{sO}", f"s_add_u32 s{sT+2}, s{sT+3}, s{sT+5}")
    fetch(e, hl, c0, c1, base, ck)
    e("s_waitcnt vmcnt(0)")
    e.lab(l + "_v")
    for c in range(c0, c1): chk(e, tA, tB, base + 4*c, ck + c, c == c0)
    e(f"v_cmp_ne_u32 vcc, 0, v{tA}", f"s_cbranch_vccz {l}_d")
    spin_tail(e, l, sleep)
    e.lab(l + "_d")
    e(f"s_mov_b32 s{sT+6}, 0")
def mul_a(e, steps, pre=True, vm=None, after=None):
    n = len(steps)
    def rdw(k):
        b = GW + 8*(k & 3); o = steps[k][0] * 2048
        for ct, va in enumerate((vWt, vWt1)):
            e(f"ds_read_b64_tr_b16 {vr(b+4*ct,2)}, v{va} offset:{o}", f"ds_read_b64_tr_b16 {vr(b+4*ct+2,2)}, v{va} offset:{o+1024}")
    if pre:
        for k in range(2): rdw(k)
        return
    for k in range(n):
        if k + 2 < n: rdw(k + 2)
        e(f"s_waitcnt {'vmcnt(%d) ' % vm(k) if vm else ''}lgkmcnt({min(8, 4*(n-1-k))})")
        for ct in range(2):
            e(f"{MF32} {vr(GACC+16*ct,16)}, {vr(GW+8*(k&3)+4*ct,4)}, {vr(steps[k][1],4)}, {'0' if steps[k][0] == 0 else vr(GACC+16*ct,16)}")
        if after: after(k)
def gpoll_s(e, vaddr, vtmp, pat, sleep):
    l = e.uniq("gp")
    e(f"s_lshl_b32 exec_lo, {hex(pat)}, s{sT+7}", "s_mov_b32 exec_hi, exec_lo")
    e.lab(l)
    e(f"buffer_load_dword v{vtmp}, v{vaddr}, {sr(R_WS,4)}, s{sT+8} offen sc1", "s_waitcnt vmcnt(0)")
    e(f"v_cmp_ne_u32 vcc, s{sEP}, v{vtmp}", "s_and_b64 exec, exec, vcc", f"s_cbranch_execz {l}_d")
    spin_tail(e, l, sleep)
    e.lab(l + "_d")
    e("s_mov_b64 exec, -1")

def out_store(e):
    e("s_nop 10")
    for ct in range(2):
        for j in range(8): e(f"v_cvt_pk_bf16_f32 v{GW+8*ct+j}, v{GACC+16*ct+2*j}, v{GACC+16*ct+2*j+1}")
        for z in range(2): e(f"buffer_store_dwordx4 {vr(GW+8*ct+4*z,4)}, v{vSt}, {sr(R_OUT,4)}, s{sOut} offen offset:{64*ct+16*z}")

def late_pubs(e):
    e.lab("L_latepub")
    e(f"s_cmp_eq_u32 s{sI}, 3", "s_cbranch_scc1 L_lpx")
    pub(e, 4)
    e.lab("L_lpx")
    finish(e)

def h_main(e):
    e.lab("L_h2")
    srds(e, (R_XB, R_WB, R_WOB, R_WOA, R_OUT))
    b_prep(e)
    out_table(e)
    h_qprep(e)
    if "noH" in OPT: finish(e)
    wo_voff(e)
    lds_wait(e, vHC, vHT, 8, GCNT, sleep=2)
    for j in range(2):
        for g in b_dma_groups(j): e(*g)
    stamp(e, 4)
    b_proj(e)
    stamp(e, 5)
    b_attn(e)
    e("s_setprio 3")
    e(f"s_lshl_b32 s{sO+5}, s{sIDX}, 2", f"s_add_u32 s{sO+5}, s{sO+5}, s{sI}", f"s_lshl_b32 s{sO+5}, s{sO+5}, 7", f"s_add_u32 s{sO+5}, s{sO+5}, {F3}")
    out_prep(e)
    e("s_waitcnt vmcnt(0)")
    set_flag(e, sO+5, tA, tB)
    sig(e, vHC, vH1, HCNT)
    stamp(e, 6)
    e(f"s_cmp_eq_u32 s{sKIND}, 0", "s_cbranch_scc1 L_latepub")
    e.c("---- B out-projection")
    e(f"s_lshr_b32 s{sO+2}, s{sTK}, 1", f"s_lshl_b32 s{sOut}, s{sO+2}, 17", f"s_and_b32 s{sO+3}, s{sI}, 1", f"s_lshl_b32 s{sO}, s{sO+3}, 11", f"s_add_u32 s{sOut}, s{sOut}, s{sO}")
    e(f"s_lshl_b32 s{sO}, s{sHP}, 6", f"s_add_u32 s{sOut}, s{sOut}, s{sO}", f"s_add_u32 s{sOut}, s{sOut}, {1024 - 64}")
    e(f"s_lshl_b32 s{sO+2}, s{sO+2}, 12", f"s_lshl_b32 s{sO+3}, s{sO+3}, 7", f"s_add_u32 s{sO+2}, s{sO+2}, s{sO+3}", f"s_add_u32 s{sO+2}, s{sO+2}, {F3}")
    e(f"v_lshl_add_u32 v{vFl}, v0, 8, s{sO+2}")
    e(f"s_lshl_b32 s{sT+2}, s{sTK}, 15", f"s_add_u32 s{sT+2}, s{sT+2}, {OB}")
    gpoll(e, vFl, vHT, 0xffff, 0, sleep=F3SLEEP)
    stamp(e, 7)
    NB = 21
    oreg = lambda k: GO + 4 * (k % NB)
    def ldo(k):
        e(f"s_add_u32 s{sT+3}, s{sT+2}, {(k>>2)*4096}", f"buffer_load_dwordx4 {vr(oreg(k),4)}, v{vL16}, {sr(R_WS,4)}, s{sT+3} offen offset:{(k&3)*1024}{SC}")
    for k in range(NB):
        ldo(k)
        if OBW and k >= OBW: e(f"s_waitcnt vmcnt({OBW})")
    lds_wait(e, vHC, vHT, 44, HCNT)
    e(f"v_lshl_add_u32 v{vSt}, v{vL4}, 9, v{vSt}", f"v_xor_b32 v{vWt1}, 64, v{vWt}")
    stamp(e, 8)
    e(f"s_setprio {FM}")
    SB_ = [(k, oreg(k)) for k in range(32)]
    if HGATE:
        S1_, S2_ = SB_[:32-NB], SB_[32-NB:]
        mul_a(e, S1_)
        mul_a(e, S1_, pre=False, vm=lambda k: min(OBW or 63, NB - 1), after=lambda k: ldo(k + NB))
        stamp(e, 18)
        mul_a(e, S2_)
        if HGATE == 8: lds_wait(e, vHC, vHT, 1, QST, sleep=PSL)
        else: pry_wait(e, OS_L + HGATE*OS_POS, sleep=PSL)
        e("s_setprio 1")
        mul_a(e, S2_, pre=False, vm=lambda k: NB - 1 - k)
    else:
        mul_a(e, SB_)
        mul_a(e, SB_, pre=False, vm=lambda k: min(NB - 1, 31 - k), after=lambda k: ldo(k + NB) if k + NB < 32 else None)
    out_store(e)
    finish(e)

def f_out(e):
    e.lab("L_f3")
    e.c("---- output stage A")
    if "noH" in OPT or "noF" in OPT: finish(e)
    srds(e, (R_OUT,))
    lane_id(e)
    out_prep(e)
    e(f"v_mov_b32 v{vHC}, {CNT}")
    pub(e, 0)
    stamp(e, 5)
    e(f"s_cmp_lg_u32 s{sKIND}, 0", "s_cbranch_scc1 L_latepub")
    e(f"s_lshl_b32 s{sOut}, s{sTK}, 16", f"s_lshl_b32 s{sO}, s{sHP}, 6", f"s_add_u32 s{sOut}, s{sOut}, s{sO}")
    e(f"v_xor_b32 v{vWt1}, 64, v{vWt}")
    e(f"s_mul_i32 s{sT+3}, s{sTK}, {32*REC}", f"s_add_u32 s{sT+3}, s{sT+3}, {OA}", f"s_mov_b32 s{sT+2}, s{sT+3}", f"s_mov_b32 s{sT+6}, 0")
    e(f"s_and_b32 s{sT+7}, s{sI}, 1", f"s_lshr_b32 s{sT+8}, s{sTK}, 1", f"s_lshl_b32 s{sT+8}, s{sT+8}, 13", f"s_add_u32 s{sT+8}, s{sT+8}, {F4}")
    e(f"s_mul_i32 s{sT+9}, s{sT+7}, {OS_POS}")
    if "nofast" not in OPT:
        e(f"s_add_u32 s{sO}, s{sT+3}, {FAST + 24*REC}", f"buffer_load_dword v6, v{vPo}, {sr(R_WS,4)}, s{sO} offen{SC}")
        e(f"s_add_u32 s{sO}, s{sO}, 8192", "s_mov_b64 exec, 0xffff", f"buffer_load_dword v6, v{vPo}, {sr(R_WS,4)}, s{sO} offen{SC}", "s_mov_b64 exec, -1")
    def gate(p, sleep):
        e(f"s_add_u32 s{sO+1}, s{sT+9}, {OS_L + p*OS_POS}")
        pry_wait(e, f"s{sO+1}", sleep=sleep)
    st = lambda hl, base, c0=0, c1=8: [(4*c + hl, base + 4*c) for c in range(c0, c1)]
    gate(3, PSL)
    gpoll_s(e, vPo, vHT, 0x05050505, 8)
    stamp(e, 16)
    fetch(e, 0, 0, 8, GO); fetch(e, 1, 0, 8, GO + 32)
    lds_wait(e, vHC, vHT, 44, HCNT, sleep=8)
    e(f"s_setprio {FM}")
    A01 = st(0, GO) + st(1, GO + 32)
    mul_a(e, A01); mul_a(e, A01, pre=False, vm=lambda k: 15 - k)
    stamp(e, 17)
    gate(5, 8)
    CK = GO + 64
    if "nofast" in OPT: gpoll_s(e, vPo, vHT, 0x10101010, 4)
    else: e(f"s_mov_b32 s{sT+5}, {FAST}", f"s_add_u32 s{sT+2}, s{sT+3}, {FAST}")
    stamp(e, 18)
    fetch(e, 2, 0, 8, GO, CK)
    A2 = st(2, GO)
    mul_a(e, A2)
    if "a2late" in OPT: lds_wait(e, vHC, vHT, f"s{sT+7}", QST, sleep=PSL)
    verify(e, 0, 8, GO, CK, 0, hl=2, sleep=4)
    mul_a(e, A2, pre=False)
    stamp(e, 19)
    gate(6, 3)
    mul_a(e, st(3, GO, 0, 4))
    if "nofast" in OPT: gpoll_s(e, vPo, vHT, 0x40404040, 1)
    fetch(e, 3, 0, 8, GO, CK)
    verify(e, 0, 4, GO, CK, 8)
    stamp(e, 9)
    mul_a(e, st(3, GO, 0, 4), pre=False)
    mul_a(e, st(3, GO, 4, 8))
    verify(e, 4, 8, GO, CK, 0)
    mul_a(e, st(3, GO, 4, 8), pre=False)
    out_store(e)
    e(f"s_xor_b32 s{sO}, s{sI}, 1", f"s_or_b32 s{sO}, s{sWG}, s{sO}", "s_cbranch_scc1 L_noep", f"s_mov_b32 s{sO}, {EPOCH_W}")
    set_flag(e, sO, tA, tB)
    e.lab("L_noep")
    finish(e)

def gen():
    e = Em()
    e.L.append(f".globl {KN}\n.p2align 8\n.type {KN},@function\n{KN}:")
    entry(e)
    h_kv(e)
    f_load(e)
    s_qproj(e)
    s_att(e)
    f_att(e)
    h_main(e)
    f_out(e)
    late_pubs(e)
    pub_routine(e)
    e.lab("L_codeend")
    exact(e)
    e.lab("L_end")
    e("s_endpgm")
    head = f"""; generated by work/gen16.py
; @launch grid=(256,1,1) block=(768,1,1) lds={LDS_BYTES}
.amdgcn_target "amdgcn-amd-amdhsa--gfx950"
.text
"""
    kd = f""".section .rodata,"a"
.p2align 6
.amdhsa_kernel {KN}
  .amdhsa_next_free_vgpr 168
  .amdhsa_next_free_sgpr 102
  .amdhsa_accum_offset 168
  .amdhsa_group_segment_fixed_size 0
  .amdhsa_kernarg_size 88
  .amdhsa_user_sgpr_count 2
  .amdhsa_user_sgpr_kernarg_segment_ptr 1
  .amdhsa_system_sgpr_workgroup_id_x 1
.end_amdhsa_kernel
"""
    return head + e.text() + kd

if __name__ == "__main__":
    args = [a for a in sys.argv[1:] if not a.startswith("-")]
    OPT.update(a[1:] for a in sys.argv[1:] if a.startswith("-"))
    if "stamps" in OPT: STAMPS = True
    OPT.update(("wpf", "s3pub", "sub"))
    if "gate1" not in OPT: OPT.add("nogate")
    if "fast" not in OPT: OPT.add("nofast")

    for o in OPT:
        if o.startswith("moff"): MOFF = float(o[4:])
        if o.startswith("bd"): BDEPTH = int(o[2:])
        if o.startswith("hm"): HM = int(o[2:])
        if o.startswith("ns"): NSAMP = int(o[2:])
        if o.startswith("nb"): NB1 = int(o[2:])
        if o.startswith("pg"): PGATE = int(o[2:])
        if o.startswith("lf"): LOF = int(o[2:])
        if o.startswith("ls"): LOS = int(o[2:])
        if o.startswith("fm"): FM = int(o[2:])
        if o.startswith("ap"): APR = int(o[2:])
        if o.startswith("ys"): YS = tuple(int(x) for x in o[2:].split("_"))
        if o == "yall": YMODES = ('F', 'F0', 'S')
        if o.startswith("ow"): OBW = int(o[2:])
        if o.startswith("sh"): SHOLD = int(o[2:])
        if o.startswith("hg"): HGATE = int(o[2:])
        if o.startswith("win"): WIN = int(o[3:])
        if o.startswith("osc"): OSC = " " + o[3:].replace("_", " ")
        if o.startswith("dly"): DLY = tuple(int(x) for x in o[3:].split("_"))
        if o.startswith("bs"): BSLEEP = int(o[2:])
    out = args[0] if args else f"cdna_kernels/{NAME}.s"
    open(out, "w").write(gen())
    print("wrote", out)
```

```python
import sys, math, struct

NAME = "concat_heads__grouped_kv_mqa__sliding_local_dilated__prompt"
KN = NAME + "_kernel"
def f32bits(x): return struct.unpack("<I", struct.pack("<f", x))[0]

class Em:
    def __init__(self): self.L = []; self.n = 0
    def __call__(self, *ss):
        for s in ss:
            if s.startswith("s_nop "):
                self.L += ["    s_nop 0"] * (int(s.split()[1]) + 1)
            else: self.L.append("    " + s)
    def lab(self, s): self.L.append(s + ":")
    def uniq(self, p): self.n += 1; return f"L_{p}_{self.n}"
    def c(self, s): self.L.append("    ; " + s)
    def text(self): return "\n".join(self.L) + "\n"

def vr(b, n): return f"v[{b}:{b+n-1}]" if n > 1 else f"v{b}"
def sr(b, n): return f"s[{b}:{b+n-1}]" if n > 1 else f"s{b}"

sWG, sW = 2, 3
R_XA, R_WQ, R_WKV, R_WOA, R_XB, R_WB, R_WOB, R_OUT, R_WS = 32, 36, 40, 44, 48, 52, 56, 60, 64
R_WO = R_WKV
sRB, sCB, sTB, sHP, sSB, sKIND, sRET, sI = 72, 73, 74, 75, 76, 77, 78, 79
sT = 80
sO = 92
sPOLL, sEP, sSPIN, sIDX = 98, 99, 100, 101
sTAG = 71
SPIN_MAX = 60000
OB, OA, KW, VW, EPOCH_W, FL = 0, 2 << 20, 5 << 20, (5 << 20) + 65536, (5 << 20) + 131072, (5 << 20) + (256 << 10)
REC = 1280
F1, F3, F4 = FL, FL + (64 << 10), FL + (256 << 10)
WS_BYTES = 16 << 20
FAST = 8 << 20
K = 1024
LDS_BYTES = 160 * K
SLOT = 32 * K
WKV_L = 128 * K
QI_L, NM_L, CNT, PR_L = 144 * K, 152 * K, 156 * K + 512, 157 * K
HCNT, ACNT, GCNT, KVF, RDY1, QST, LAND, SOK = 0, 4, 8, 12, 16, 20, 32, 48
RINGS = 34 * K
RXO = 24 * K
OS_L, OS_POS, OS_PAIR = 72 * K, 9216, 2304
EX_L = 68 * K
TB_L = 159 * K
WOA_L, WOB_L = 34 * K, 0
BDEPTH, HM, F3SLEEP, WIN, BSLEEP = 4, 1, 16, 12, 0
PSL = 20
FTRY = 16
HGATE = 8
CSC = 0.25 * math.log2(math.e)
MOFF = 100.0
NSAMP = 4
TAGH, FASTH = 2, 4
NB1 = 2
PGATE = 8
APR = 3
YS = ()
YMODES = ('F', 'F0')
OBW = 4
LOF, LOS, FM = 2, 0, 2
SHOLD = 0
LMAX = 2.0 ** 120
MF32 = "v_mfma_f32_32x32x16_bf16"
MF16 = "v_mfma_f32_16x16x32_bf16"
STAMPS = False
OPT = set()
ST = 12 << 20
SC = " sc1"
OSC = ""

def stamp(e, k):
    if STAMPS: e("s_memrealtime s[30:31]", "s_waitcnt lgkmcnt(0)", f"s_mov_b32 s{8+k}, s30")
def cstamp(e, k):
    if STAMPS: e("s_memtime s[30:31]", "s_waitcnt lgkmcnt(0)", f"s_mov_b32 s{8+k}, s30")
def stamp_init(e):
    if not STAMPS: return
    for k in range(1, 22): e(f"s_mov_b32 s{8+k}, 0")
    e("s_mov_b32 s8, s6", "s_mov_b32 s20, s4")
DLY = None
def finish(e):
    if DLY is not None:
        l = e.uniq("dly")
        stamp(e, 15)
        e(f"s_cmp_lg_u32 s{sW}, {DLY[0]}", f"s_cbranch_scc1 {l}_d")
        e(f"s_sub_u32 s4, s{8+DLY[1]}, s8", "s_lshl_b32 s4, s4, 1", "s_add_u32 s4, s4, 4000", "s_min_u32 s4, s4, 40000")
        e.lab(l)
        e("s_sleep 2", "s_memrealtime s[30:31]", "s_waitcnt lgkmcnt(0)", "s_sub_u32 s5, s30, s8", "s_cmp_lt_u32 s5, s4", f"s_cbranch_scc1 {l}")
        e.lab(l + "_d")
        e("s_endpgm")
        return
    if STAMPS:
        stamp(e, 15); cstamp(e, 14)
        e(f"s_mul_i32 s30, s{sWG}, 12", f"s_add_u32 s30, s30, s{sW}", "s_lshl_b32 s30, s30, 7", f"s_add_u32 s30, s30, {ST}")
        e("s_mov_b64 exec, 1", "v_mov_b32 v0, 0")
        for k in range(22): e(f"v_mov_b32 v{4+k}, s{8+k}")
        for k in range(6): e(f"buffer_store_dwordx4 {vr(4+4*k,4)}, v0, {sr(R_WS,4)}, s30 offen offset:{16*k}")
    e("s_endpgm")

def dma(e, voff, R, soff, nt=False):
    e(f"buffer_load_dwordx4 v{voff}, {sr(R,4)}, s{soff} offen{' nt' if nt else ''} lds")
def spin_tail(e, l, sleep):
    e(f"s_sleep {sleep}", f"s_add_u32 s{sSPIN}, s{sSPIN}, 1", f"s_cmp_lt_u32 s{sSPIN}, {SPIN_MAX}", f"s_cbranch_scc1 {l}")
def lds_wait(e, vaddr, vtmp, target, off=0, sleep=1):
    l = e.uniq("poll")
    e.lab(l)
    e(f"ds_read_b32 v{vtmp}, v{vaddr} offset:{off}", "s_waitcnt lgkmcnt(0)", f"v_readfirstlane_b32 s{sPOLL}, v{vtmp}")
    e(f"s_cmp_ge_u32 s{sPOLL}, {target}", f"s_cbranch_scc1 {l}_d")
    spin_tail(e, l, sleep)
    e.lab(l + "_d")
def sig(e, vaddr, vone, off):
    e("s_mov_b64 exec, 1", f"ds_add_u32 v{vaddr}, v{vone} offset:{off}", "s_mov_b64 exec, -1")
def load_epoch(e):
    e(f"s_mov_b32 s{sEP}, {EPOCH_W}", f"s_load_dword s{sEP}, s[{R_WS}:{R_WS+1}], s{sEP}")
def get_epoch(e):
    e("s_waitcnt lgkmcnt(0)", f"s_add_u32 s{sEP}, s{sEP}, 1", f"s_mul_i32 s{sTAG}, s{sEP}, 0x9e3779b1")
def gpoll(e, vaddr, vtmp, lo, hi, sleep=1):
    l = e.uniq("gp")
    e(f"s_mov_b32 exec_lo, {hex(lo)}", f"s_mov_b32 exec_hi, {hex(hi)}")
    e.lab(l)
    e(f"buffer_load_dword v{vtmp}, v{vaddr}, {sr(R_WS,4)}, 0 offen sc1", "s_waitcnt vmcnt(0)")
    e(f"v_cmp_ne_u32 vcc, s{sEP}, v{vtmp}", "s_and_b64 exec, exec, vcc", f"s_cbranch_execz {l}_d")
    spin_tail(e, l, sleep)
    e.lab(l + "_d")
    e("s_mov_b64 exec, -1")
def gpoll_issue(e, vaddr, vtmp, lo):
    e(f"s_mov_b32 exec_lo, {hex(lo)}", "s_mov_b32 exec_hi, 0", f"buffer_load_dword v{vtmp}, v{vaddr}, {sr(R_WS,4)}, 0 offen sc1", "s_mov_b64 exec, -1")
def gpoll_finish(e, vaddr, vtmp, lo, younger, sleep=1):
    l = e.uniq("gp")
    e(f"s_mov_b32 exec_lo, {hex(lo)}", "s_mov_b32 exec_hi, 0", f"s_waitcnt vmcnt({younger})", f"s_branch {l}_c")
    e.lab(l)
    e(f"buffer_load_dword v{vtmp}, v{vaddr}, {sr(R_WS,4)}, 0 offen sc1", "s_waitcnt vmcnt(0)")
    e.lab(l + "_c")
    e(f"v_cmp_ne_u32 vcc, s{sEP}, v{vtmp}", "s_and_b64 exec, exec, vcc", f"s_cbranch_execz {l}_d")
    spin_tail(e, l, sleep)
    e.lab(l + "_d")
    e("s_mov_b64 exec, -1")
def set_flag(e, soff, va, vd):
    e(f"v_mov_b32 v{va}, 0", f"v_mov_b32 v{vd}, s{sEP}", "s_mov_b64 exec, 1")
    e(f"buffer_store_dword v{vd}, v{va}, {sr(R_WS,4)}, s{soff} offen sc1", "s_mov_b64 exec, -1")
def mk_ck(e, dst, d):
    e(f"v_xad_u32 v{dst}, v{d}, s{sTAG}, v{d+1}", f"v_xad_u32 v{dst}, v{dst}, v{d+2}, v{d+3}")
def chk(e, acc, tmp, d, ck, first):
    mk_ck(e, tmp, d)
    e(f"v_xor_b32 v{acc}, v{tmp}, v{ck}" if first else f"v_bitop3_b32 v{acc}, v{acc}, v{tmp}, v{ck} bitop3:0xf6")
def lane_id(e):
    e("v_mbcnt_lo_u32_b32 v0, -1, 0", "v_mbcnt_hi_u32_b32 v0, -1, v0")
def xa_voff(e, b, t):
    e(f"v_lshrrev_b32 v{t}, 4, v0", f"v_and_b32 v{b}, 15, v0", f"v_xor_b32 v{b}, v{b}, v{t}", f"v_lshlrev_b32 v{b}, 4, v{b}")
    e(f"v_lshl_add_u32 v{b}, v{t}, 10, v{b}")
def halfmax(e, m):
    e(f"v_mov_b32 v{m+1}, v{m}", "s_nop 1", f"v_permlane32_swap_b32 v{m}, v{m+1}", "s_nop 0", f"v_max_f32 v{m}, v{m}, v{m+1}")
def negmax(e, S, m):
    e(f"v_max3_f32 v{m}, v{S}, v{S+1}, v{S+2}")
    for k in range(3, 15, 2): e(f"v_max3_f32 v{m}, v{m}, v{S+k}, v{S+k+1}")
    e(f"v_max_f32 v{m}, v{m}, v{S+15}")
    halfmax(e, m)
    e(f"v_sub_f32 v{m}, {hex(f32bits(-MOFF))}, v{m}")

def entry(e):
    e(f"s_cmp_ge_u32 s{sWG}, 256", "s_cbranch_scc1 L_end")
    e(f"s_and_b32 s{sO}, s{sWG}, 8", f"s_add_u32 s{sO}, s{sO}, 16")
    for R, off in ((R_XA, 0), (R_WQ, 8), (R_WS, 80)): e(f"s_load_dwordx2 s[{R}:{R+1}], s[0:1], {off}")
    e(f"s_load_dwordx2 s[{R_WKV}:{R_WKV+1}], s[0:1], s{sO}")
    if STAMPS: e("s_memrealtime s[6:7]", "s_memtime s[4:5]")
    e("v_lshrrev_b32 v1, 6, v0", "v_and_b32 v0, 63, v0")
    e(f"s_lshr_b32 s{sO+1}, s{sWG}, 3")
    e(f"v_readfirstlane_b32 s{sW}, v1")
    e(f"s_and_b32 s{sO}, s{sWG}, 7", f"s_lshl_b32 s{sIDX}, s{sO}, 5", f"s_add_u32 s{sIDX}, s{sIDX}, s{sO+1}")
    e(f"s_and_b32 s{sI}, s{sW}, 3", f"s_cmp_lt_u32 s{sW}, 8", "s_cbranch_scc1 L_nopf")
    e(f"s_getpc_b64 s[{sO+2}:{sO+3}]")
    e.lab("L_pc")
    e(f"s_lshl_b32 s{sO}, s{sO+1}, 2", f"s_add_u32 s{sO}, s{sO}, s{sI}", f"s_and_b32 s{sO}, s{sO}, 31", f"s_lshl_b32 s{sO}, s{sO}, 10")
    e(f"v_lshl_add_u32 v2, v0, 7, s{sO}", f"v_min_u32 v2, L_codeend-L_pc-4, v2", "s_mov_b64 exec, 0xff")
    e(f"global_load_dword v167, v2, s[{sO+2}:{sO+3}]", "s_mov_b64 exec, -1")
    e.lab("L_nopf")
    e(f"s_lshr_b32 s{sRB}, s{sIDX}, 3", f"s_and_b32 s{sCB}, s{sIDX}, 7", f"s_lshr_b32 s{sTB}, s{sIDX}, 4", f"s_and_b32 s{sHP}, s{sIDX}, 15")
    e(f"s_lshr_b32 s{sSB}, s{sCB}, 1", f"s_and_b32 s{sKIND}, s{sCB}, 1", f"s_mov_b32 s{sSPIN}, 0")
    for R, n in ((R_XA, 2 << 20), (R_WKV, 16384), (R_WQ, 512 << 10), (R_WS, WS_BYTES)):
        e(f"s_mov_b32 s{R+2}, {hex(n)}", f"s_mov_b32 s{R+3}, 0x20000")
    e(f"s_cmp_ge_u32 s{sW}, 8", "s_cbranch_scc1 L_q", f"s_cmp_ge_u32 s{sW}, 4", "s_cbranch_scc1 L_aux")
def srds(e, lst):
    size = {R_WOA: 512 << 10, R_XB: 2 << 20, R_WB: 1536 << 10, R_WOB: 512 << 10, R_OUT: 4 << 20}
    slot = {R_WOA: 32, R_XB: 40, R_WB: 48, R_WOB: 56, R_OUT: 64}
    for R in lst: e(f"s_load_dwordx2 s[{R}:{R+1}], s[0:1], {slot[R]}", f"s_mov_b32 s{R+2}, {hex(size[R])}", f"s_mov_b32 s{R+3}, 0x20000")

vHC, vH1, vHT = 5, 6, 7
def h_kv(e):
    fx, fw, acc = 32, 48, 24
    e.c("---- H: K/V projection")
    e("s_setprio 3")
    xa_voff(e, 8, 12)
    for z in range(1, 4): e(f"v_xor_b32 v{8+z}, {z<<6}, v8")
    e("v_lshlrev_b32 v12, 4, v0")
    e(f"s_add_u32 s{sO+3}, s{sRB}, s{sI}", f"s_and_b32 s{sO+3}, s{sO+3}, 3")
    e(f"s_lshr_b32 s{sO+1}, s{sIDX}, 1", f"s_lshl_b32 s{sO+1}, s{sO+1}, 14", f"s_lshl_b32 s{sO+2}, s{sO+3}, 8", f"s_add_u32 s{sO+1}, s{sO+1}, s{sO+2}")
    e(f"s_lshl_b32 s{sT}, s{sI}, 15", f"s_lshl_b32 s{sO+2}, s{sSB}, 12", f"s_add_u32 s{sT}, s{sT}, s{sO+2}")
    e(f"s_lshl_b32 s{sT+1}, s{sI}, 12", f"s_add_u32 s{sT+1}, s{sT+1}, {WKV_L}", f"s_lshl_b32 s{sO+3}, s{sO+3}, 12")
    e("s_waitcnt lgkmcnt(0)")
    for z in range(4):
        e(f"s_add_u32 m0, s{sT}, {z*1024}", f"s_add_u32 s{sO}, s{sO+1}, {z*4096}")
        dma(e, 8 + z, R_XA, sO, nt=True)
        e(f"s_add_u32 m0, s{sT+1}, {z*1024}", f"s_add_u32 s{sO}, s{sO+3}, {z*1024}")
        dma(e, 12, R_WKV, sO)
    load_epoch(e)
    e("s_barrier")
    stamp_init(e)
    e(f"v_mov_b32 v{vHC}, {CNT}", f"v_mov_b32 v{vH1}, 1")
    e("v_and_b32 v2, 15, v0", "v_lshrrev_b32 v3, 4, v0", "v_xor_b32 v4, v2, v3", "v_lshlrev_b32 v4, 4, v4", "v_lshl_add_u32 v4, v2, 8, v4")
    e(f"v_add_u32 v8, s{sT}, v4")
    for q in range(1, 4): e(f"v_xor_b32 v{8+q}, {q<<6}, v8")
    e("v_bfe_u32 v4, v0, 2, 2", "v_lshl_add_u32 v4, v3, 3, v4", "v_lshlrev_b32 v4, 5, v4", "v_and_b32 v13, 3, v0", "v_lshl_add_u32 v4, v13, 3, v4")
    e(f"v_add_u32 v13, s{sT+1}, v4", f"v_add_u32 v14, s{sT+1}, v12")
    e(f"s_lshl_b32 s{sO}, s{sI}, 2", f"v_add_u32 v15, s{sO}, v{vHC}")
    e(f"s_lshl_b32 s{sO}, s{sRB}, 11")
    e(f"s_lshr_b32 s{sO+1}, s{sSB}, 1", f"s_lshl_b32 s{sO+1}, s{sO+1}, 10", f"s_and_b32 s{sO+2}, s{sSB}, 1", f"s_lshl_b32 s{sO+2}, s{sO+2}, 8")
    e(f"s_add_u32 s{sO+1}, s{sO+1}, s{sO+2}", f"s_add_u32 s{sO+1}, s{sO+1}, {KW}")
    e(f"s_lshl_b32 s{sO+2}, s{sSB}, 9", f"s_add_u32 s{sO+2}, s{sO+2}, {VW}")
    e(f"s_cmp_eq_u32 s{sKIND}, 0", f"s_cselect_b32 s{sO+1}, s{sO+1}, s{sO+2}", f"s_cselect_b32 s{sO+2}, 9, 8", f"s_add_u32 s{sO+4}, s{sO}, s{sO+1}")
    e("v_and_b32 v4, 1, v3", f"v_lshlrev_b32 v4, s{sO+2}, v4", "v_lshl_add_u32 v20, v2, 4, v4")
    e(f"s_lshl_b32 s{sO}, s{sKIND}, 28", f"s_add_u32 s{sO}, s{sO}, 0x3f800000", f"v_mov_b32 v22, s{sO}")
    e(f"s_lshl_b32 s{sO+5}, s{sIDX}, 7", f"s_add_u32 s{sO+5}, s{sO+5}, {F1}")
    get_epoch(e)
    e("s_waitcnt vmcnt(0)")
    stamp(e, 1)
    for q in range(4):
        e(f"ds_read_b128 {vr(fx+4*q,4)}, v{8+q}")
        e(f"ds_read_b64_tr_b16 {vr(fw+4*q,2)}, v13 offset:{q*1024}", f"ds_read_b64_tr_b16 {vr(fw+4*q+2,2)}, v13 offset:{q*1024+128}")
    sig(e, 15, vH1, LAND)
    e(f"s_cmp_lg_u32 s{sKIND}, 0", "s_cbranch_scc1 L_kv_v")
    for kind in range(2):
        for q in range(4):
            a, b = (fw, fx) if kind == 0 else (fx, fw)
            e(f"s_waitcnt lgkmcnt({10-3*q})", f"{MF16} {vr(acc,4)}, {vr(a+4*q,4)}, {vr(b+4*q,4)}, {'0' if q == 0 else vr(acc,4)}")
        if kind == 0:
            e("s_branch L_kv_d"); e.lab("L_kv_v")
    e.lab("L_kv_d")
    e(f"s_cmp_eq_u32 s{sI}, 0", "s_cbranch_scc1 L_kv_0", "s_nop 5")
    e(f"ds_write_b128 v14, {vr(acc,4)}")
    sig(e, vHC, vH1, HCNT)
    e("s_branch L_h2")
    e.lab("L_kv_0")
    lds_wait(e, vHC, vHT, 3, HCNT, sleep=0)
    for k in range(1, 4): e(f"ds_read_b128 {vr(fx+4*k,4)}, v14 offset:{k*4096}")
    e("s_waitcnt lgkmcnt(1)")
    for k in range(2): e(f"v_pk_add_f32 {vr(fx+4+2*k,2)}, {vr(fx+4+2*k,2)}, {vr(fx+8+2*k,2)}")
    e("s_waitcnt lgkmcnt(0)")
    for k in range(2): e(f"v_pk_add_f32 {vr(acc+2*k,2)}, {vr(acc+2*k,2)}, {vr(fx+12+2*k,2)}")
    for k in range(2): e(f"v_pk_add_f32 {vr(acc+2*k,2)}, {vr(acc+2*k,2)}, {vr(fx+4+2*k,2)}")
    for k in range(2): e(f"v_pk_mul_f32 {vr(acc+2*k,2)}, {vr(acc+2*k,2)}, v[22:23] op_sel_hi:[1,0]")
    e(f"v_cvt_pk_bf16_f32 v28, v{acc}, v{acc+1}", f"v_cvt_pk_bf16_f32 v29, v{acc+2}, v{acc+3}", "s_nop 1")
    e("v_permlane32_swap_b32 v28, v30", "v_permlane32_swap_b32 v29, v31", "s_mov_b32 exec_hi, 0", "s_nop 0")
    e(f"buffer_store_dwordx4 v[28:31], v20, {sr(R_WS,4)}, s{sO+4} offen{SC}", "s_mov_b64 exec, -1")
    if "gate1" in OPT: sig(e, vHC, vH1, KVF)
    sig(e, vHC, vH1, HCNT)
    stamp(e, 2)
    e("s_waitcnt vmcnt(0)")
    set_flag(e, sO+5, 2, 3)
    if "gate2" in OPT: sig(e, vHC, vH1, KVF)
    stamp(e, 3)
    e("s_branch L_h2")

vT0, vQ16, vAN, vT1, AQ, AK, AV, S0, S1, AO, ANM = 0, 1, 2, 3, 4, 8, 40, 104, 120, 136, 152
vVo, vFa, vC, v1_ = S1, S1+1, S1+2, S1+3
def zero_pr(e):
    e(f"s_lshl_b32 s{sO}, s{sW}, 8", f"s_add_u32 m0, s{sO}, {PR_L - 1024}", "v_mov_b32 v2, 0", "ds_write_addtid_b32 v2")
def f_load(e):
    e.lab("L_aux")
    e.c("---- F: bulk loads")
    zero_pr(e)
    xa_voff(e, 8, 12)
    e(f"s_lshl_b32 s{sO}, s{sI}, 6", f"v_xor_b32 v8, s{sO}, v8")
    e("v_lshrrev_b32 v2, 3, v0", "v_bfe_u32 v3, v0, 4, 1", "v_lshlrev_b32 v3, 2, v3", "v_and_b32 v4, 7, v0", "v_xor_b32 v4, v4, v3")
    e("v_lshlrev_b32 v4, 4, v4", "v_lshl_add_u32 v12, v2, 10, v4")
    e(f"s_lshl_b32 s{sT}, s{sI}, 12")
    e(f"s_lshl_b32 s{sT+1}, s{sI}, 15", f"s_lshl_b32 s{sO}, s{sCB}, 7", f"s_add_u32 s{sT+1}, s{sT+1}, s{sO}")
    e(f"s_lshl_b32 s{sT+2}, s{sRB}, 16", f"s_add_u32 s{sT+2}, s{sT+2}, s{sT}", f"s_lshl_b32 s{sT+9}, s{sI}, 10")
    for du in range(1, 4):
        e(f"s_add_u32 s{sO}, s{sSB}, {du}", f"s_and_b32 s{sO}, s{sO}, 3")
        e(f"s_lshl_b32 s{sT+2+du}, s{sO}, 14", f"s_add_u32 s{sT+2+du}, s{sT+2+du}, s{sT+2}")
        e(f"s_lshl_b32 s{sT+5+du}, s{sO}, 12", f"s_add_u32 s{sT+5+du}, s{sT+5+du}, s{sT+9}")
    e(f"v_mov_b32 v{vC}, {CNT}", f"v_mov_b32 v{v1_}, 1")
    e("s_waitcnt lgkmcnt(0)")
    load_epoch(e)
    e("s_barrier")
    def chunk(sg):
        e(f"s_add_u32 s{sO+1}, s{sRB}, {sg}", f"s_and_b32 s{sO+1}, s{sO+1}, 3", f"s_lshl_b32 s{sO+2}, s{sO+1}, 8")
        e(f"s_lshl_b32 s{sO+1}, s{sO+1}, 17", f"s_add_u32 s{sO+1}, s{sO+1}, s{sT+1}")
        for i in range(4):
            e(f"s_add_u32 m0, s{sT}, {sg*SLOT + 16384 + i*1024}", f"s_add_u32 s{sO}, s{sO+1}, {i*8192}")
            dma(e, 12, R_WQ, sO)
        for du in range(1, 4):
            e(f"s_add_u32 m0, s{sT+5+du}, {sg*SLOT}", f"s_add_u32 s{sO}, s{sT+2+du}, s{sO+2}")
            dma(e, 8, R_XA, sO, nt=True)
    nb = NB1
    for sg in range(nb): chunk(sg)
    stamp_init(e)
    att_consts(e)
    get_epoch(e)
    done = 0
    if nb < 4:
        e(f"s_waitcnt vmcnt({7*(nb-1)})"); sig(e, vC, v1_, LAND); done = 1
        if "nogate" not in OPT: lds_wait(e, vC, S0, 1, KVF, sleep=1)
        for sg in range(nb, 4):
            chunk(sg)
            if sg < 3:
                e(f"s_waitcnt vmcnt({7*(sg-done)})"); sig(e, vC, v1_, LAND + 4*done); done += 1
    stamp(e, 1)
    for sg in range(done, 4):
        e(f"s_waitcnt vmcnt({21-7*sg})"); sig(e, vC, v1_, LAND + 4*sg)
    stamp(e, 2)
    e("s_branch L_f2")

sAW, sP, sExp = sT+8, sT+9, sT+10
def att_consts(e):
    e(f"v_and_b32 v{S0}, 31, v0", f"v_cmp_eq_u32 vcc, 16, v{S0}", f"v_mov_b32 v{S0+1}, 0x4f804f80", f"v_lshlrev_b32 v{vQ16}, 4, v0")
    e(f"v_cndmask_b32 v{AV}, 0, v{S0+1}, vcc")
    for r in range(1, 64): e(f"v_mov_b32 v{AV+r}, v{AV}")
    e(f"v_lshlrev_b32 v{vAN}, 4, v{S0}", f"v_add_u32 v{vAN}, {NM_L}, v{vAN}")
    e(f"v_lshrrev_b32 v{vVo}, 5, v0", f"v_lshlrev_b32 v{vVo}, 8, v{vVo}", f"v_and_b32 v{S0+2}, 15, v0", f"v_lshl_add_u32 v{vVo}, v{S0+2}, 4, v{vVo}")
def gather_bases(e):
    e(f"s_sub_u32 s{sAW}, s{sW}, 4", f"s_lshl_b32 s{sO+2}, s{sAW}, 13")
    e(f"s_add_u32 s{sO}, s{sO+2}, {KW}", f"s_add_u32 s{sO+1}, s{sO+2}, {VW}", f"s_add_u32 s{sO+2}, s{sO}, 4096", f"s_add_u32 s{sO+3}, s{sO+1}, 4096")
def gather(e, t0, t1):
    for t in range(t0, t1):
        e(f"buffer_load_dwordx4 {vr(AK+4*t,4)}, v{vQ16}, {sr(R_WS,4)}, s{sO+2*(t>>2)} offen offset:{(t&3)*1024}{SC}")
        e("s_mov_b32 exec_lo, 0xffff", "s_mov_b32 exec_hi, 0xffff")
        for f in (2*t, 2*t+1):
            e(f"buffer_load_dwordx4 {vr(AV+4*f,4)}, v{vVo}, {sr(R_WS,4)}, s{sO+1+2*(t>>2)} offen offset:{(f&7)*512}{SC}")
        e("s_mov_b64 exec, -1")
def att_addrs(e):
    e(f"s_mul_i32 s{sExp}, s{sI}, {OS_PAIR}", f"s_add_u32 s{sExp}, s{sExp}, {OS_L}")
    e(f"v_add_u32 v{vT1}, s{sExp}, v{vQ16}", f"v_lshl_add_u32 v{vT0}, v0, 2, s{sExp}", f"v_add_u32 v{vQ16}, {QI_L}, v{vQ16}")
    e(f"s_lshl_b32 s{sO+4}, s{sI}, 8", f"s_add_u32 m0, s{sO+4}, {PR_L}")

def s_qproj(e):
    vXa, vWa, vXb, vWb, vSt, vLd = 8, 16, 17, 25, 26, 27
    acc, fr, NF, T = 104, 124, 5, 28
    a_, b_, c_, d_ = T, T+1, T+2, T+3
    e.lab("L_q")
    e.c("---- S: Q projection")
    zero_pr(e)
    e(f"s_mov_b32 m0, {CNT}", "s_nop 0", "ds_write_addtid_b32 v2", "s_waitcnt lgkmcnt(0)")
    load_epoch(e)
    e("s_barrier")
    stamp_init(e)
    e(f"v_mov_b32 v{vC}, {CNT}", f"v_mov_b32 v{v1_}, 1")
    if "tlb" in OPT:
        e("s_load_dwordx8 s[44:51], s[0:1], 32", "s_load_dwordx2 s[52:53], s[0:1], 64", "s_waitcnt lgkmcnt(0)")
        e(f"s_mov_b32 s{sO}, 0x200000", f"s_mov_b32 s{sO+1}, 0x1ffffc")
        for k, R in enumerate((44, 46, 48, 50, 52, R_WS)): e(f"s_load_dword s{54+k}, s[{R}:{R+1}], 0")
        e(f"s_load_dword s60, s[52:53], s{sO}", f"s_load_dword s61, s[{R_WS}:{R_WS+1}], s{sO}", f"s_load_dword s62, s[46:47], s{sO+1}")
    att_consts(e)
    e(f"s_and_b32 s{sO}, s{sI}, 1", f"s_lshl_b32 s{sO}, s{sO}, 13")
    e(f"v_and_b32 v{a_}, 31, v0", f"v_lshrrev_b32 v{b_}, 5, v0", f"v_and_b32 v{c_}, 15, v0", f"v_xor_b32 v{c_}, v{c_}, v{b_}")
    e(f"v_lshl_add_u32 v{d_}, v{a_}, 8, s{sO}", f"v_lshl_add_u32 v{vXa}, v{c_}, 4, v{d_}")
    for s in range(1, 8): e(f"v_xor_b32 v{vXa+s}, {s<<5}, v{vXa}")
    e(f"v_bfe_u32 v{a_}, v0, 2, 2", f"v_lshl_add_u32 v{c_}, v{b_}, 3, v{a_}", f"v_lshlrev_b32 v{c_}, 7, v{c_}", f"v_lshrrev_b32 v{a_}, 1, v{a_}")
    e(f"s_lshr_b32 s{sO}, s{sI}, 1", f"v_xor_b32 v{a_}, s{sO}, v{a_}", f"v_lshl_add_u32 v{c_}, v{a_}, 6, v{c_}")
    e(f"v_bfe_u32 v{a_}, v0, 4, 1", f"v_lshl_add_u32 v{c_}, v{a_}, 5, v{c_}", f"v_and_b32 v{a_}, 3, v0", f"v_lshl_add_u32 v{c_}, v{a_}, 3, v{c_}")
    e(f"v_add_u32 v{vWa}, 16384, v{c_}", f"v_lshl_add_u32 v{vLd}, v{a_}, 2, v{vC}")
    for s in range(9): e(f"v_add_u32 v{vXb+s}, 65536, v{vXa+s}")
    get_epoch(e)
    e(f"s_mov_b32 s{sT+6}, {hex(f32bits(CSC))}")
    e(f"s_and_b32 s{sO}, s{sI}, 2", f"s_add_u32 s{sO}, s{sO}, s{sI}", f"s_lshl_b32 s{sO}, s{sO}, 10", f"s_add_u32 s{sO}, s{sO}, {QI_L}", f"v_add_u32 v{b_}, s{sO}, v{vQ16}")
    e(f"s_lshl_b32 s{sO}, s{sI}, 2", f"v_add_u32 v{vFa}, s{sO}, v{vC}")
    gather_bases(e)
    def landwait(mask):
        lq = e.uniq("ql")
        e.lab(lq)
        e(f"ds_read_b32 v{a_}, v{vLd} offset:{LAND}", "s_waitcnt lgkmcnt(0)", f"v_cmp_gt_u32 vcc, 5, v{a_}")
        e(f"s_and_b32 s{sO+5}, vcc_lo, 15", f"s_and_b32 s{sO+4}, s{sO+5}, {mask}", f"s_cbranch_scc0 {lq}_d")
        spin_tail(e, lq, 1)
        e.lab(lq + "_d")
    def rd(n):
        sg, s = n >> 3, n & 7
        so = (sg & 1) * SLOT
        xa, wa = (vXa + s, vWa) if sg < 2 else (vXb + s, vWb)
        f = fr + 8 * (n % NF)
        e(f"ds_read_b128 {vr(f,4)}, v{xa} offset:{so}")
        e(f"ds_read_b64_tr_b16 {vr(f+4,2)}, v{wa} offset:{so+s*2048}", f"ds_read_b64_tr_b16 {vr(f+6,2)}, v{wa} offset:{so+s*2048+512}")
    e("s_setprio 3")
    landwait(1)
    stamp(e, 16)
    for n in range(NF): rd(n)
    for n in range(32):
        f = fr + 8 * (n % NF)
        e(f"s_waitcnt lgkmcnt({min(3*(NF-1), 3*(31-n))})", f"{MF32} {vr(acc,16)}, {vr(f+4,4)}, {vr(f,4)}, {'0' if n == 0 else vr(acc,16)}")
        if n + NF < 32:
            if (n + NF) % 8 == 0:
                bit = 1 << ((n + NF) >> 3)
                sk = e.uniq("lok")
                e(f"s_and_b32 s{sO+4}, s{sO+5}, {bit}", f"s_cbranch_scc0 {sk}")
                landwait(bit)
                e.lab(sk)
                if "qst" in OPT: stamp(e, 16 + ((n + NF) >> 3))
            rd(n + NF)
    if "qst" in OPT: stamp(e, 20)
    e(f"v_mov_b32 v{c_}, s{sT+6}", "s_nop 10")
    for r in range(8): e(f"v_pk_mul_f32 {vr(acc+2*r,2)}, {vr(acc+2*r,2)}, {vr(c_,2)} op_sel_hi:[1,0]")
    P = AO
    for j in range(8): e(f"v_cvt_pk_bf16_f32 v{P+j}, v{acc+2*j}, v{acc+2*j+1}")
    e(f"ds_write_b128 v{b_}, {vr(P,4)}", f"ds_write_b128 v{b_}, {vr(P+4,4)} offset:2048")
    sig(e, vC, v1_, ACNT)
    stamp(e, 2)
    lds_wait(e, vFa, S0+2, 2 if 'proxy' in OPT else 1, SOK)
    lds_wait(e, vC, S0+2, 4, GCNT, sleep=2)
    if "sl" in OPT: lds_wait(e, vC, S0+2, 8, QST, sleep=2)
    if "sdelay" in OPT: lds_wait(e, vC, S0+2, 1, RDY1)
    stamp(e, 7)
    gather(e, 0, 8)
    sig(e, vC, v1_, GCNT)

def pk(S, j):
    d = S + (j if j < 4 else 4 + j)
    return f"v_cvt_pk_bf16_f32 v{d}, v{S+2*j}, v{S+2*j+1}"
def rdq(e):
    e(f"ds_read_b128 {vr(AQ,4)}, v{vQ16}")
    for k in range(4): e(f"ds_read_b128 {vr(ANM+4*k,4)}, v{vAN}")
def dump(e, kind):
    e(f"ds_write_b128 v{vT1}, {vr(AO,4)}", f"ds_write_b128 v{vT1}, {vr(AO+4,4)} offset:1024", f"ds_write_b32 v{vT0}, v{AO+8} offset:2048")
    e(f"ds_write_addtid_b32 v{vT1} offset:{0 if kind == 'F' else 1024}")
def advance(e):
    e(f"v_add_u32 v{vT1}, {OS_POS}, v{vT1}", f"v_add_u32 v{vT0}, {OS_POS}, v{vT0}")
def init_o(e, off):
    e(f"ds_read_b128 {vr(AO,4)}, v{vT1} offset:{off}", f"ds_read_b128 {vr(AO+4,4)}, v{vT1} offset:{off+1024}", f"ds_read_b32 v{AO+8}, v{vT0} offset:{off+2048}")

def att_block(e, mode):
    kind = "F" if mode[0] == "F" else "S"
    lo = LOF if kind == "F" else LOS
    def prio(p):
        if YS and mode in YMODES: return
        if mode != "B" and "noprio" not in OPT: e(f"s_setprio {p}")
        elif mode == "B" and "btog" in OPT: e(f"s_setprio {p}")
    for t in range(8):
        Sc, Sn = (S0, S1) if t % 2 == 0 else (S1, S0)
        tp, tn = (t - 1) % 8, (t + 1) % 8
        def X(*toks):
            for k in toks:
                X1(k)
                if YS and mode in YMODES and k in YS: e("s_nop 0")
        def X1(*toks):
            for k in toks: e(f"v_exp_f32 v{Sc+k}, v{Sc+k}" if isinstance(k, int) else pk(Sc, int(k[1:])))
        c0 = "0" if (t == 1 and kind == "F") else vr(AO, 16)
        pv0 = f"{MF32} {vr(AO,16)}, {vr(AV+8*tp,4)}, {vr(Sn,4)}, {c0}"
        pv1 = f"{MF32} {vr(AO,16)}, {vr(AV+8*tp+4,4)}, {vr(Sn+8,4)}, {vr(AO,16)}"
        qk = f"{MF32} {vr(Sn,16)}, {vr(AK+4*tn,4)}, {vr(AQ,4)}, {vr(ANM,16)}"
        if t == 1 and kind == "S":
            X(0); e(pk(Sn, 7)); X(1, 2)
            e("s_waitcnt lgkmcnt(0)", pv0); X(3, "p0", 4, "p1")
            e(pv1); X(5, 6, "p2", 7)
            e(qk); prio(lo)
            X(8, "p3", 9, 10, "p4", 11, 12)
            e("s_wakeup")
            prio(3)
            X("p5", 13, 14, "p6", 15)
            continue
        skip_pv = mode == "F0" and t == 0
        if mode == "F0" and t > 0: e(f"s_waitcnt vmcnt({max(0, 23 - 3*(t+1))})")
        if not skip_pv: e(pv0)
        X(0)
        if not skip_pv: e(pk(Sn, 7))
        X(1, 2)
        if not skip_pv: e(pv1)
        X(3, "p0", 4, "p1")
        if t == 7: e("s_waitcnt lgkmcnt(0)")
        if t == 7 and mode == "B": e(f"v_readfirstlane_b32 s{sPOLL}, v{Sn+4}")
        if skip_pv: e("s_waitcnt vmcnt(20)")
        e(qk)
        prio(lo)
        X(5, 6, "p2", 7, 8, "p3")
        if t == 0 and mode != "F0":
            if YS and mode in YMODES and not any(k in YS for k in (5, 6, 7, 8)): e("s_nop 0")
            if mode == "S":
                dump(e, kind); init_o(e, OS_POS); advance(e)
            elif mode == "F":
                dump(e, kind); advance(e)
            else:
                sk = e.uniq("nodump")
                e(f"s_cmp_eq_u32 s{sP}, {1 if mode == 'F' else 0}", f"s_cbranch_scc1 {sk}")
                dump(e, kind); advance(e)
                if mode == "B": e(f"s_add_u32 s{sExp}, s{sExp}, {OS_POS}")
                e.lab(sk)
                if mode == "B":
                    e(f"s_cmp_ge_u32 s{sPOLL}, s{sExp}", "s_cbranch_scc0 L_swait")
                    e.lab("L_swait_ret")
                    init_o(e, 0)
        X(9)
        if t == 6:
            if mode == "F0":
                e(f"v_mov_b32 v{Sc+4}, {CNT}")
                lds_wait(e, Sc+4, Sc+5, 8, ACNT, sleep=1)
            e(f"v_add_u32 v{vQ16}, 1024, v{vQ16}", f"v_add_u32 v{vAN}, 512, v{vAN}")
            rdq(e)
            if mode == "B": e(f"ds_read_addtid_b32 v{Sc+4}")
        X(10, "p4", 11, 12)
        w = WIN if kind == "F" else 12
        if w == 12: prio(3)
        X("p5", 13)
        if w == 13: prio(3)
        X(14)
        if w == 14: prio(3)
        X("p6", 15)
        if w == 15: prio(3)

def att_finish(e, kind):
    e(f"{MF32} {vr(AO,16)}, {vr(AV+8*7,4)}, {vr(S1,4)}, {vr(AO,16)}", pk(S1, 7), "s_nop 1")
    e(f"{MF32} {vr(AO,16)}, {vr(AV+8*7+4,4)}, {vr(S1+8,4)}, {vr(AO,16)}", "s_nop 11")
    dump(e, kind)
    e("s_waitcnt lgkmcnt(0)", "s_wakeup")
def qk0(e):
    e(f"{MF32} {vr(S0,16)}, {vr(AK,4)}, {vr(AQ,4)}, {vr(ANM,16)}", "s_nop 11")

def f_att(e):
    e.lab("L_f2")
    e("s_setprio 3")
    gather_bases(e)
    e(f"s_lshl_b32 s{sO+4}, s{sI}, 12", f"s_add_u32 s{sO+4}, s{sO+4}, {F1}", f"v_lshl_add_u32 v{vFa}, v0, 7, s{sO+4}")
    stamp(e, 6)
    if "proxy" in OPT:
        e(f"s_lshl_b32 s{sO+4}, s{sI}, 2", f"v_add_u32 v{vFa}, s{sO+4}, v{vC}")
        lds_wait(e, vFa, S0, 1, SOK, sleep=0)
    else: gpoll(e, vFa, S0, 0xffffffff, 0, sleep=1)
    stamp(e, 7)
    gather(e, 0, 8)
    sig(e, vC, v1_, GCNT)
    att_addrs(e)
    stamp(e, 8)
    lds_wait(e, vC, S0, 1, RDY1, sleep=0)
    rdq(e)
    e(f"s_mov_b32 s{sP}, 1", "s_waitcnt vmcnt(23) lgkmcnt(0)")
    stamp(e, 3); cstamp(e, 13)
    qk0(e)
    att_block(e, "F0")
    stamp(e, 21); cstamp(e, 10)
    e.L.append("    .p2align 3")
    e.lab("L_floop")
    att_block(e, "F")
    e(f"s_add_u32 s{sP}, s{sP}, 1", f"s_cmp_lt_u32 s{sP}, 8", "s_cbranch_scc1 L_floop")
    att_finish(e, "F")
    stamp(e, 4); cstamp(e, 11)
    e("s_branch L_f3")

def s_att(e):
    att_addrs(e)
    e(f"s_mov_b32 s{sP}, 0", f"v_mov_b32 v{S0}, m0", "s_setprio 0")
    stamp(e, 8)
    if SHOLD: lds_wait(e, vC, S0+1, SHOLD, HCNT, sleep=16)
    lds_wait(e, S0, S0+1, 1, sleep=6)
    rdq(e)
    e("s_waitcnt vmcnt(0) lgkmcnt(0)")
    stamp(e, 3); cstamp(e, 13)
    qk0(e)
    e.L.append("    .p2align 3")
    e.lab("L_bloop")
    att_block(e, "B")
    e(f"s_add_u32 s{sP}, s{sP}, 1", f"s_cmp_ge_u32 s{sP}, 8", "s_cbranch_scc1 L_sfin")
    e(f"s_cmp_lt_u32 s{sPOLL}, {OS_L + 7*OS_POS}", "s_cbranch_scc1 L_bloop")
    stamp(e, 5)
    e("s_setprio 3")
    e.L.append("    .p2align 3")
    e.lab("L_sloop")
    att_block(e, "S")
    e(f"s_add_u32 s{sP}, s{sP}, 1")
    if STAMPS:
        e(f"s_cmp_lg_u32 s{sP}, 4", "s_cbranch_scc1 L_sns"); stamp(e, 4); cstamp(e, 10); e.lab("L_sns")
    e(f"s_cmp_lt_u32 s{sP}, 8", "s_cbranch_scc1 L_sloop")
    e.lab("L_sfin")
    att_finish(e, "S")
    if "s3pub" in OPT:
        e(f"s_cmp_lg_u32 s{sI}, 3", "s_cbranch_scc1 L_sx")
        stamp(e, 9)
        lane_id(e)
        out_prep(e)
        pub(e, 4, fast=True)
        e(f"v_mov_b32 v{vHC}, {CNT}", f"ds_write_b32 v{vHC}, v{vHC} offset:{QST}", "s_waitcnt lgkmcnt(0)", "s_wakeup")
        e.lab("L_sx")
    finish(e)
    e.lab("L_swait")
    e(f"v_mov_b32 v{S0+4}, m0")
    lds_wait(e, S0+4, S0+5, f"s{sExp}", sleep=4)
    e("s_branch L_swait_ret")

sBX, sBH, sBW, sKC, sBXL, sBHL, sBWL = sT, sT+1, sT+2, sT+3, sT+4, sT+5, sT+6
BA = 8
aq, ak, av, ahk, ahv, MC = 24, 40, 56, 72, 76, 80
MP = MC + 4
FR = 104
def b_prep(e):
    e.c("---- B prep")
    e("v_lshrrev_b32 v20, 3, v0", "v_and_b32 v21, 7, v0", "v_lshrrev_b32 v22, 1, v20", "v_xor_b32 v23, v21, v22", "v_lshlrev_b32 v23, 4, v23")
    e("v_lshl_add_u32 v1, v20, 11, v23", "v_xor_b32 v2, 64, v1")
    e(f"s_lshl_b32 s{sO}, s{sI}, 5", f"v_xor_b32 v3, s{sO}, v1")
    e("v_and_b32 v22, 1, v22", "v_lshlrev_b32 v22, 2, v22", "v_xor_b32 v23, v21, v22", "v_lshlrev_b32 v23, 4, v23")
    e("v_mul_u32_u24 v20, 3072, v20", "v_add_u32 v4, v20, v23", "v_xor_b32 v16, 32, v4")
    e(f"s_and_b32 s{sO}, s{sI}, 1", f"s_lshr_b32 s{sO+1}, s{sI}, 1", f"s_lshl_b32 s{sO+1}, s{sO+1}, 10")
    e(f"s_lshl_b32 s{sBX}, s{sRB}, 16", f"s_max_u32 s{sBH}, s{sBX}, 16384", f"s_sub_u32 s{sBH}, s{sBH}, 16384")
    e(f"s_add_u32 s{sBX}, s{sBX}, s{sO+1}", f"s_add_u32 s{sBH}, s{sBH}, s{sO+1}")
    e(f"s_lshl_b32 s{sO+1}, s{sO}, 15", f"s_add_u32 s{sBX}, s{sBX}, s{sO+1}")
    e(f"s_lshl_b32 s{sO+1}, s{sO}, 13", f"s_add_u32 s{sBH}, s{sBH}, s{sO+1}")
    e(f"s_mul_i32 s{sBW}, s{sI}, {16*3072}", f"s_lshl_b32 s{sO+1}, s{sCB}, 7", f"s_add_u32 s{sBW}, s{sBW}, s{sO+1}")
    e(f"s_lshl_b32 s{sKC}, s{sRB}, 1", f"s_add_u32 s{sKC}, s{sKC}, s{sCB}")
    e(f"s_lshl_b32 s{sBWL}, s{sI}, 11", f"s_add_u32 s{sBXL}, s{sBWL}, {RXO + 2048}", f"s_lshl_b32 s{sBHL}, s{sI}, 9", f"s_add_u32 s{sBHL}, s{sBHL}, {RXO}")
    e("v_and_b32 v20, 31, v0", "v_lshrrev_b32 v21, 5, v0", "v_bfe_u32 v22, v0, 1, 3", "v_xor_b32 v22, v22, v21", "v_lshlrev_b32 v22, 4, v22", "v_lshl_add_u32 v22, v20, 7, v22")
    e(f"s_lshl_b32 s{sO}, s{sO}, 12", f"s_add_u32 s{sO}, s{sO}, {RXO + 2048}", f"v_add_u32 v{BA}, s{sO}, v22")
    for s in range(1, 4): e(f"v_xor_b32 v{BA+s}, {s<<5}, v{BA}")
    e("v_bfe_u32 v20, v0, 2, 2", "v_and_b32 v23, 3, v0", "v_and_b32 v17, 2, v20", "v_or_b32 v18, v17, v21", "v_bfe_u32 v19, v0, 4, 1")
    e(f"s_and_b32 s{sO}, s{sI}, 2", f"v_or_b32 v19, s{sO}, v19", "v_xor_b32 v18, v18, v19")
    e("v_lshl_add_u32 v22, v21, 3, v20", "v_lshlrev_b32 v22, 7, v22", "v_lshl_add_u32 v22, v18, 5, v22", f"v_lshl_add_u32 v{BA+4}, v23, 3, v22")
    e("v_lshrrev_b32 v21, 4, v0", "v_bfe_u32 v22, v0, 1, 3", "v_xor_b32 v22, v22, v21", "v_lshlrev_b32 v22, 4, v22", "v_and_b32 v19, 15, v0")
    e("v_lshl_add_u32 v22, v19, 7, v22", f"v_add_u32 v{BA+5}, {RXO}, v22", f"v_xor_b32 v{BA+6}, 64, v{BA+5}")
    e("v_and_b32 v18, 1, v21", "v_or_b32 v18, v17, v18", f"v_xor_b32 v18, s{sI}, v18")
    e("v_lshl_add_u32 v22, v21, 3, v20", "v_lshlrev_b32 v22, 7, v22", "v_lshl_add_u32 v22, v18, 5, v22", f"v_lshl_add_u32 v{BA+7}, v23, 3, v22")
    e(f"v_mov_b32 v{MC}, {hex(f32bits(-1e30))}")
    for r in range(1, 20): e(f"v_mov_b32 v{MC+r}, v{MC}")
    def setm(reg, r, shift):
        m = 0
        for l in range(64):
            d = (l & 31) - ((r & 3) + 8 * (r >> 2) + 4 * (l >> 5)) + shift
            if 0 <= d <= 7: m |= 1 << l
        if m: e(f"s_mov_b32 exec_lo, {hex(m & 0xffffffff)}", f"s_mov_b32 exec_hi, {hex(m >> 32)}", f"v_mov_b32 v{reg}, 0")
    for r in range(16): setm(MC + r, r, 0)
    e(f"s_cmp_eq_u32 s{sRB}, 0", "s_cbranch_scc1 L_nomp")
    for r in range(12, 16): setm(MP + r, r, 32)
    e.lab("L_nomp")
    e("s_mov_b64 exec, -1")

def h_qprep(e):
    T, QK, SA, SB, KS = 20, 104, 120, 136, 24
    e.c("---- H: max images of positions i, 4+i")
    e(f"v_lshlrev_b32 v{T+2}, 4, v0")
    e(f"s_lshl_b32 s{sO+4}, s{sI}, 13", f"s_add_u32 s{sO+4}, s{sO+4}, {KW + 32768}")
    e(f"s_lshl_b32 s{sO+5}, s{sI}, 12", f"s_add_u32 s{sO+5}, s{sO+5}, {F1 + 16384}", f"v_lshl_add_u32 v{T+3}, v0, 7, s{sO+5}")
    e(f"s_lshl_b32 s{sO+5}, s{sI}, 2", f"v_add_u32 v17, s{sO+5}, v{vHC}")
    e(f"s_lshl_b32 s{sO}, s{sI}, 10", f"s_add_u32 s{sO}, s{sO}, {QI_L}", f"v_add_u32 v{T}, s{sO}, v{T+2}", f"v_and_b32 v18, 0x1ff, v{T+2}")
    e(f"s_lshl_b32 s{sO}, s{sI}, 9", f"s_add_u32 s{sO}, s{sO}, {NM_L}", f"v_add_u32 v18, s{sO}, v18")
    if "proxy" in OPT:
        e(f"v_subrev_u32 v19, 16384, v{T+3}", f"s_sub_u32 s{sO+4}, s{sO+4}, 32768")
        lds_wait(e, vHC, vHT, 5, LAND + PGATE, sleep=1)
        gpoll(e, 19, T + 1, 0xffffffff, 0, sleep=1)
        for t in range(NSAMP): e(f"buffer_load_dwordx4 {vr(KS+4*t,4)}, v{T+2}, {sr(R_WS,4)}, s{sO+4} offen offset:{1024*t}{SC}")
        sig(e, 17, vH1, SOK)
        gpoll_issue(e, T + 3, T + 1, 0xffffffff)
    else:
        lds_wait(e, vHC, vHT, 5, LAND + (8 if "early" in OPT else 12), sleep=1)
        gpoll(e, T + 3, T + 1, 0x5555 if "sub" in OPT else 0xffffffff, 0, sleep=1)
        for t in range(NSAMP): e(f"buffer_load_dwordx4 {vr(KS+4*t,4)}, v{T+2}, {sr(R_WS,4)}, s{sO+4} offen offset:{1024*t}{SC}")
        if "sub" in OPT: gpoll_issue(e, T + 3, T + 1, 0xffffaaaa)
        else: sig(e, 17, vH1, SOK)
    lds_wait(e, vHC, vHT, 4, ACNT, sleep=1)
    e(f"ds_read_b128 {vr(QK,4)}, v{T}", f"ds_read_b128 {vr(QK+4,4)}, v{T} offset:4096", f"s_waitcnt vmcnt({1 if 'sub' in OPT else 0}) lgkmcnt(0)")
    for z in range(2):
        SS = (SA, SB, 40, 56)
        for t in range(NSAMP): e(f"{MF32} {vr(SS[t],16)}, {vr(KS+4*t,4)}, {vr(QK+4*z,4)}, 0")
        e(f"s_nop {12 - NSAMP}")
        m = 152 + 4*z
        regs = [SS[t] + r for t in range(NSAMP) for r in range(16)]
        e(f"v_max_f32 v{m}, v{regs[0]}, v{regs[1]}")
        for k in range(2, len(regs), 2): e(f"v_max3_f32 v{m}, v{m}, v{regs[k]}, v{regs[k+1]}")
        halfmax(e, m)
        e(f"v_sub_f32 v{m}, {hex(f32bits(-MOFF))}, v{m}")
        for r in range(1, 4): e(f"v_mov_b32 v{m+r}, v{m}")
        e(f"ds_write_b128 v18, {vr(m,4)} offset:{2048*z}")
        if z == 0: e(f"s_cmp_eq_u32 s{sI}, 0", "s_cselect_b32 exec_lo, 1, 0", "s_mov_b32 exec_hi, 0", f"ds_write_b32 v{vHC}, v{vH1} offset:{RDY1}", "s_mov_b64 exec, -1")
        else: sig(e, vHC, vH1, ACNT)
        stamp(e, 9 + z)
        if z == 0 and "sub" in OPT:
            gpoll_finish(e, T + 3, T + 1, 0xffffffff if "proxy" in OPT else 0xffffaaaa, 0)
            sig(e, 17, vH1, SOK)

class Lst(list):
    def __call__(self, *x): self.extend(x)
def b_dma_groups(j):
    ro = (j & 1) * RINGS
    G = [Lst() for _ in range(5)]
    g = G[0]
    g(f"s_add_u32 s{sO+1}, s{sKC}, {j}", f"s_and_b32 s{sO+1}, s{sO+1}, 7", f"s_lshl_b32 s{sO+2}, s{sO+1}, 7", f"s_mul_i32 s{sO+1}, s{sO+1}, {64*3072}")
    g(f"s_add_u32 s{sO+1}, s{sO+1}, s{sBW}", f"s_add_u32 s{sO+3}, s{sO+2}, s{sBX}")
    for u in range(2):
        g(f"s_add_u32 m0, s{sBXL}, {ro + u*1024}", f"s_add_u32 s{sO}, s{sO+3}, {u*16384}")
        dma(g, 1 + u, R_XB, sO, nt="bnt" in OPT)
    for p in range(3):
        g = G[1 + p]
        for u in range(2):
            g(f"s_add_u32 m0, s{sBWL}, {ro + p*8192 + u*1024}", f"s_add_u32 s{sO}, s{sO+1}, {p*1024 + u*8*3072}")
            dma(g, 4 if u == 0 else 16, R_WB, sO)
    g = G[4]
    g(f"s_add_u32 m0, s{sBHL}, {ro}", f"s_add_u32 s{sO}, s{sO+2}, s{sBH}", "s_mov_b32 exec_hi, 0")
    dma(g, 3, R_XB, sO)
    g("s_mov_b64 exec, -1")
    return G
def wo_groups(half):
    G = [Lst() for _ in range(4)]
    G[0](f"s_lshl_b32 s{sO+1}, s{sI}, 16", f"s_lshr_b32 s{sO+2}, s{sHP}, 1", f"s_lshl_b32 s{sO+2}, s{sO+2}, 7", f"s_add_u32 s{sO+1}, s{sO+1}, s{sO+2}", f"s_lshl_b32 s{sO+2}, s{sI}, 13")
    for u in range(8):
        g = G[u >> 1]
        g(f"s_add_u32 m0, s{sO+2}, {half*32768 + u*1024}", f"s_add_u32 s{sO}, s{sO+1}, {half*262144 + u*8192}")
        dma(g, 20, R_WO, sO)
    return G
def wo_voff(e):
    e("v_lshrrev_b32 v20, 3, v0", "v_bfe_u32 v21, v0, 4, 1", "v_lshlrev_b32 v21, 2, v21", "v_and_b32 v22, 7, v0", "v_xor_b32 v21, v21, v22", "v_lshlrev_b32 v21, 4, v21")
    e("v_lshl_add_u32 v20, v20, 10, v21", "v_lshlrev_b32 v21, 7, v0")
    e(f"s_cmp_eq_u32 s{sKIND}, 0", f"s_cselect_b32 s{R_WO}, s{R_WOA}, s{R_WOB}", f"s_cselect_b32 s{R_WO+1}, s{R_WOA+1}, s{R_WOB+1}", f"s_mov_b32 s{R_WO+2}, {hex(512 << 10)}")

def b_proj(e):
    D, XB_, HX_, WB_, NBUF = 4, FR, FR + 8, FR + 12, 12
    jobs = []
    def wreads(buf, areg, off):
        return [f"ds_read_b64_tr_b16 {vr(buf,2)}, v{areg} offset:{off}", f"ds_read_b64_tr_b16 {vr(buf+2,2)}, v{areg} offset:{off+512}"]
    for j in range(8):
        ro = (j & 1) * RINGS
        for s in range(4):
            x = XB_ + 4 * (s & 1)
            for p, acc in enumerate((aq, ak, av)):
                w = WB_ + 4 * (len(jobs) % NBUF)
                rds = ([f"ds_read_b128 {vr(x,4)}, v{BA+s} offset:{ro}"] if p == 0 else []) + wreads(w, BA + 4, ro + p*8192 + s*2048)
                A_, B_ = (w, x) if p < 2 else (x, w)
                jobs.append((rds, f"{MF32} {vr(acc,16)}, {vr(A_,4)}, {vr(B_,4)}, {'0' if (j == 0 and s == 0) else vr(acc,16)}"))
            s2, p = s >> 1, 1 + (s & 1)
            w = WB_ + 4 * (len(jobs) % NBUF)
            rds = ([f"ds_read_b128 {vr(HX_,4)}, v{BA+5+s2} offset:{ro}"] if p == 1 else []) + wreads(w, BA + 7, ro + p*8192 + s2*4096)
            acc = ahk if p == 1 else ahv
            A_, B_ = (w, HX_) if p == 1 else (HX_, w)
            jobs.append((rds, f"{MF16} {vr(acc,4)}, {vr(A_,4)}, {vr(B_,4)}, {'0' if (j == 0 and s2 == 0) else vr(acc,4)}"))
    q = []
    nxt = [0]
    def issue(upto):
        while nxt[0] < min(upto, 128):
            if "bnord" not in OPT or nxt[0] < 16:
                e(*jobs[nxt[0]][0]); q.extend([nxt[0]] * len(jobs[nxt[0]][0]))
            nxt[0] += 1
    e("s_waitcnt vmcnt(9)")
    sig(e, vHC, vH1, HCNT)
    lds_wait(e, vHC, vHT, 8, HCNT)
    stamp(e, 16)
    e(f"s_setprio {HM}")
    issue(D)
    G = []
    PA = 13
    for n in range(128):
        j, r = n >> 4, n & 15
        if n in q:
            last = len(q) - 1 - q[::-1].index(n)
            e(f"s_waitcnt lgkmcnt({len(q) - 1 - last})")
            del q[:last + 1]
        e(jobs[n][1] if "bnomf" not in OPT else "s_sleep 1")
        lim = 16 * (j + 1)
        if r < PA or j == 7: issue(min(n + 1 + D, lim))
        if r == 15 - D and j < 7:
            e(f"s_waitcnt vmcnt({1 if (j in (3, 4) and 'wpf' in OPT) else 3 if (j == 1 and 'touch' in OPT) else 0})")
            sig(e, vHC, vH1, HCNT); q.append(-1)
        if r == PA and j < 7:
            if "bwake" in OPT:
                e("s_waitcnt lgkmcnt(0)", "s_wakeup")
            lds_wait(e, vHC, vHT, 4 * (j + 3), HCNT, sleep=BSLEEP); del q[:]
            if j == 3: stamp(e, 17)
            G = b_dma_groups(j + 2) if j < 6 else wo_groups(0)
            if j == 0 and "touch" in OPT:
                g = Lst()
                g(f"s_lshl_b32 s{sO}, s{sRB}, 3", f"s_add_u32 s{sO}, s{sO}, s{sI}", f"s_lshl_b32 s{sO}, s{sO}, 3", f"s_add_u32 s{sO}, s{sO}, s{sCB}", f"s_mul_i32 s{sO}, s{sO}, {REC}", f"s_add_u32 s{sO}, s{sO}, {OA}")
                g("s_mov_b64 exec, 0x3ff", f"buffer_load_dword v22, v21, {sr(R_WS,4)}, s{sO} offen", f"s_add_u32 s{sO}, s{sO}, {32*REC}", f"buffer_load_dword v22, v21, {sr(R_WS,4)}, s{sO} offen")
                g(f"s_lshl_b32 s{sO}, s{sIDX}, 10", f"s_add_u32 s{sO}, s{sO}, {F4}", "s_mov_b64 exec, 0xff", f"buffer_load_dword v22, v21, {sr(R_WS,4)}, s{sO} offen", "s_mov_b64 exec, -1")
                G.append(g)
            if j in (2, 3) and "wpf" in OPT:
                g = Lst()
                g(f"s_and_b32 s{sO}, s{sIDX}, 31", f"s_lshl_b32 s{sO}, s{sO}, 2", f"s_add_u32 s{sO}, s{sO}, s{sI}", f"s_lshl_b32 s{sO}, s{sO}, 12", "s_mov_b32 exec_hi, 0")
                g(f"buffer_load_dword v22, v21, {sr(R_WOB if j == 2 else R_WOA,4)}, s{sO} offen", "s_mov_b64 exec, -1")
                G.append(g)
        if r >= PA and j < 7: issue(n + 1 + D - (1 if r < 15 else 0))
        for _ in range(2):
            if G: e(*G.pop(0))
    e("s_setprio 3")

def b_attn(e):
    Qf, Kf, Vf, Kp, Vp = 104, 112, 120, 128, 136
    PB = 140
    M = 152
    e.c("---- local attention")
    e(f"s_setprio {APR}")
    e("v_bfe_u32 v9, v0, 3, 1", "v_lshlrev_b32 v10, 10, v9", "v_bfe_u32 v9, v0, 4, 1", "v_lshl_add_u32 v10, v9, 7, v10")
    e("v_and_b32 v11, 7, v0", "v_lshl_add_u32 v10, v11, 4, v10", "v_lshrrev_b32 v12, 5, v0", "v_lshl_add_u32 v10, v12, 3, v10")
    e(f"s_and_b32 s{sO}, s{sI}, 2", f"s_lshl_b32 s{sO}, s{sO}, 10", f"s_add_u32 s{sO}, s{sO}, {EX_L}", f"s_and_b32 s{sO+1}, s{sI}, 1")
    e(f"s_lshl_b32 s{sO+2}, s{sO+1}, 8", f"s_add_u32 s{sO+2}, s{sO+2}, s{sO}", f"v_add_u32 v10, s{sO+2}, v10")
    e("v_lshlrev_b32 v13, 10, v12", "v_lshl_add_u32 v13, v9, 8, v13", "v_and_b32 v14, 15, v0", "v_lshl_add_u32 v13, v14, 3, v13")
    e(f"s_lshl_b32 s{sO+2}, s{sO+1}, 7", f"s_add_u32 s{sO+2}, s{sO+2}, s{sO}", f"v_add_u32 v13, s{sO+2}, v13")
    for j in range(4): e(f"v_cvt_pk_bf16_f32 v{16+j}, v{ahk+2*j}, v{ahk+2*j+1}")
    e("ds_write_b64 v10, v[16:17]", "ds_write_b64 v13, v[18:19] offset:512")
    sig(e, vHC, vH1, HCNT)
    e(f"s_lshl_b32 s{sO}, s{sI}, 10", f"s_add_u32 s{sO}, s{sO}, {EX_L}")
    e("v_lshl_add_u32 v11, v12, 3, v11", f"v_lshl_add_u32 v11, v11, 4, s{sO}", f"v_lshl_add_u32 v14, v0, 3, s{sO}")
    for j in range(8): e(f"v_cvt_pk_bf16_f32 v{Kf+j}, v{ak+2*j}, v{ak+2*j+1}")
    for j in range(8): e(f"v_cvt_pk_bf16_f32 v{Qf+j}, v{aq+2*j}, v{aq+2*j+1}")
    Sc0, Sc1, Sp = 24, 40, 8 + 56
    lds_wait(e, vHC, vHT, 40, HCNT)
    e(f"ds_read_b128 {vr(Kp,4)}, v11", f"ds_read_b128 {vr(Kp+4,4)}, v11 offset:256", f"ds_read_b64 {vr(Vp+2,2)}, v14 offset:512")
    e(f"s_setprio {HM}")
    e(f"{MF32} {vr(Sc0,16)}, {vr(Kf,4)}, {vr(Qf,4)}, {vr(MC,16)}", f"{MF32} {vr(Sc1,16)}, {vr(Kf+4,4)}, {vr(Qf+4,4)}, {vr(MC,16)}")
    e(f"s_setprio {APR}")
    for g in wo_groups(1): e(*g)
    for j in range(8): e(f"v_cvt_pk_bf16_f32 v{Vf+j}, v{av+2*j}, v{av+2*j+1}")
    for r in (Vp, Vp+1): e(f"v_mov_b32 v{r}, 0")
    for r in range(12): e(f"v_mov_b32 v{PB+r}, 0")
    e(f"s_lshl_b32 s{sO+1}, s{sRB}, 1", f"s_and_b32 s{sO+2}, s{sI}, 1", f"s_add_u32 s{sO+1}, s{sO+1}, s{sO+2}", f"s_lshl_b32 s{sO+1}, s{sO+1}, 15")
    e(f"s_lshl_b32 s{sO+2}, s{sCB}, 2", f"s_and_b32 s{sO+3}, s{sI}, 2", f"s_add_u32 s{sO+2}, s{sO+2}, s{sO+3}", f"s_lshl_b32 s{sO+2}, s{sO+2}, 10")
    e(f"s_add_u32 s{sO+1}, s{sO+1}, s{sO+2}", f"s_add_u32 s{sO+1}, s{sO+1}, {OB}")
    e("v_lshlrev_b32 v9, 4, v0", f"v_mov_b32 v22, {hex(f32bits(CSC))}", "s_waitcnt lgkmcnt(0)")
    for hd in range(2):
        Sc = (Sc0, Sc1)[hd]
        e(f"s_setprio {HM}", f"{MF32} {vr(Sp,16)}, {vr(Kp+4*hd,4)}, {vr(Qf+4*hd,4)}, {vr(MP,16)}", f"s_setprio {APR}")
        for k in range(4): e(f"v_max_f32 v{M+k}, v{Sc+k}, v{Sc+8+k}")
        e(f"v_max3_f32 v10, v{M}, v{M+1}, v{M+2}", "s_nop 5")
        for k in range(4): e(f"v_max3_f32 v{M+4+k}, v{Sc+4+k}, v{Sc+12+k}, v{Sp+12+k}")
        e(f"v_max3_f32 v10, v10, v{M+3}, v{M+4}", f"v_max3_f32 v10, v10, v{M+5}, v{M+6}", f"v_max_f32 v10, v10, v{M+7}")
        halfmax(e, 10)
        e("v_mul_f32 v10, v22, v10")
        for k in range(4): e(f"v_pk_fma_f32 {vr(M+2*k,2)}, {vr(M+2*k,2)}, v[22:23], v[10:11] op_sel_hi:[1,0,0] neg_lo:[0,0,1] neg_hi:[0,0,1]")
        for k in range(8): e(f"v_exp_f32 v{M+k}, v{M+k}")
        def cv(mask, dst, src):
            e(f"s_mov_b32 exec_lo, {hex(mask)}", f"s_mov_b32 exec_hi, {hex(mask)}")
            e(f"v_cvt_pk_bf16_f32 v{dst}, v{src}, v{src+1}", f"v_cvt_pk_bf16_f32 v{dst+1}, v{src+2}, v{src+3}")
        cv(0x0000ffff, PB, M); cv(0xffff0000, PB+4, M)
        cv(0x00ffff00, PB+2, M+4); cv(0xff000000, PB+6, M+4); cv(0x000000ff, PB+10, M+4)
        e("s_mov_b64 exec, -1")
        e(f"v_pk_add_f32 {vr(M,2)}, {vr(M,2)}, {vr(M+2,2)}", f"v_pk_add_f32 {vr(M+4,2)}, {vr(M+4,2)}, {vr(M+6,2)}")
        e(f"s_setprio {HM}")
        e(f"{MF32} {vr(Sc,16)}, {vr(Vf,4)}, {vr(PB,4)}, 0", f"{MF32} {vr(Sc,16)}, {vr(Vf+4,4)}, {vr(PB+4,4)}, {vr(Sc,16)}", f"{MF32} {vr(Sc,16)}, {vr(Vp,4)}, {vr(PB+8,4)}, {vr(Sc,16)}")
        e(f"s_setprio {APR}")
        e(f"v_pk_add_f32 {vr(M,2)}, {vr(M,2)}, {vr(M+4,2)}", f"v_add_f32 v10, v{M}, v{M+1}", "v_mov_b32 v11, v10", "s_nop 1")
        e("v_permlane32_swap_b32 v10, v11", "s_nop 0", "v_add_f32 v10, v10, v11", "v_rcp_f32 v10, v10", "s_nop 2")
        O = Sc + 8 * hd
        for k in range(4): e(f"v_pk_mul_f32 {vr(O+2*k,2)}, {vr(O+2*k,2)}, v[10:11] op_sel_hi:[1,0]")
        o = 12 + 4 * hd
        for j in range(4): e(f"v_cvt_pk_bf16_f32 v{o+j}, v{O+2*j}, v{O+2*j+1}")
        e(f"buffer_store_dwordx4 {vr(o,4)}, v9, {sr(R_WS,4)}, s{sO+1} offen offset:{1024*hd}{SC}")

vWt, vPo, vCk, vSt, vL16, vFl, vL4, vOC = 8, 9, 10, 11, 1, 2, 3, 4
tA, tB, vWt1, tD = 12, 13, 14, 15
GACC, GO, GW = 16, 48, 132
sTK, sOut = sT, sT+1
def out_table(e):
    W, Po, Ck, St = 164, 165, 166, 167
    e("v_lshrrev_b32 v30, 5, v0", "v_bfe_u32 v31, v0, 2, 2", "v_lshl_add_u32 v31, v30, 2, v31", f"v_lshlrev_b32 v{W}, 7, v31")
    e("v_bfe_u32 v31, v0, 3, 1", f"v_lshl_add_u32 v{W}, v31, 6, v{W}")
    e("v_and_b32 v31, 1, v0", f"v_lshl_add_u32 v{W}, v31, 5, v{W}", "v_bfe_u32 v31, v0, 1, 1", f"v_lshl_add_u32 v{W}, v31, 3, v{W}")
    e("v_bfe_u32 v31, v0, 4, 1", f"v_lshl_add_u32 v{W}, v31, 4, v{W}")
    e(f"v_and_b32 v{St}, 31, v0", f"v_lshlrev_b32 v{St}, 11, v{St}", f"v_lshl_add_u32 v{St}, v30, 5, v{St}")
    e(f"v_lshlrev_b32 v{Ck}, 2, v0", f"v_lshlrev_b32 v{Po}, 7, v0")
    e(f"v_lshlrev_b32 v31, 4, v0", f"v_add_u32 v31, {TB_L}, v31", "ds_write_b128 v31, v[164:167]")
def out_prep(e):
    e(f"v_lshlrev_b32 v{vL16}, 4, v0", f"v_add_u32 v{vFl}, {TB_L}, v{vL16}", f"ds_read_b128 v[8:11], v{vFl}")
    e(f"v_and_b32 v{vOC}, 3, v0", f"v_lshlrev_b32 v{vOC}, 8, v{vOC}", f"v_add_u32 v{vOC}, {PR_L + 1024}, v{vOC}")
    e(f"v_and_b32 v{vL4}, 31, v0", f"v_lshlrev_b32 v{vL4}, 2, v{vL4}")
    e(f"s_lshl_b32 s{sTK}, s{sTB}, 2", f"s_add_u32 s{sTK}, s{sTK}, s{sI}")

def pry_wait(e, lim, sleep=6):
    l = e.uniq("hp")
    e.lab(l)
    e(f"ds_read_b32 v{vHT}, v{vOC}", "s_waitcnt lgkmcnt(0)", f"v_cmp_gt_u32 vcc, {lim}, v{vHT}", f"s_cbranch_vccz {l}_d")
    spin_tail(e, l, sleep)
    e.lab(l + "_d")

pub_sites = []
def pub(e, add, keep=False, fast=False):
    site = len(pub_sites); pub_sites.append(site)
    e(f"s_add_u32 s{sO+4}, s{sI}, {add}", f"s_mov_b32 s{sRET}, {site}")
    if not fast:
        e(f"s_mul_i32 s{sO}, s{sO+4}, {OS_POS}", f"s_add_u32 s{sO}, s{sO}, {OS_L - OS_POS}")
        pry_wait(e, f"s{sO}", sleep=PSL)
    e("s_branch L_pub")
    e.lab(f"L_pub_ret{site}")

def pub_routine(e):
    P = GO
    site = 0
    e.lab("L_pub")
    e(f"s_mul_i32 s{sO+2}, s{sO+4}, {OS_POS}", f"s_add_u32 s{sO+2}, s{sO+2}, {OS_L}")
    e(f"v_add_u32 v{tA}, s{sO+2}, v{vL16}", f"v_add_u32 v{tB}, s{sO+2}, v{vL4}")
    e(f"s_and_b32 s{sO}, s{sO+4}, 1", f"s_lshl_b32 s{sO}, s{sO}, 2", f"s_lshr_b32 s{sO+1}, s{sO+4}, 1", f"s_add_u32 s{sO}, s{sO}, s{sO+1}")
    e(f"s_lshl_b32 s{sO+1}, s{sRB}, 3", f"s_add_u32 s{sO}, s{sO}, s{sO+1}", f"s_lshl_b32 s{sO}, s{sO}, 3", f"s_add_u32 s{sO}, s{sO}, s{sCB}")
    e(f"s_mul_i32 s{sO+3}, s{sO}, {REC}", f"s_add_u32 s{sO+3}, s{sO+3}, {OA}")
    e(f"s_lshl_b32 s{sO+5}, s{sIDX}, 3", f"s_add_u32 s{sO+5}, s{sO+5}, s{sO+4}", f"s_lshl_b32 s{sO+5}, s{sO+5}, 7", f"s_add_u32 s{sO+5}, s{sO+5}, {F4}")
    e(f"s_mov_b32 s{sO+1}, {hex(f32bits(LMAX))}")
    pry_wait(e, f"s{sO+2}", sleep=3)
    e(f"ds_read2st64_b32 {vr(P+32,2)}, v{tB} offset0:8 offset1:17", f"ds_read2st64_b32 {vr(P+34,2)}, v{tB} offset0:26 offset1:35")
    for a in range(2):
        for s in range(4): e(f"ds_read_b128 {vr(P+8*s+4*a,4)}, v{tA} offset:{s*OS_PAIR + a*1024}")
    e("s_waitcnt lgkmcnt(8)", f"v_pk_add_f32 {vr(P+32,2)}, {vr(P+32,2)}, {vr(P+34,2)}", f"v_add_f32 v{P+34}, v{P+32}, v{P+33}", f"v_rcp_f32 v{P+32}, v{P+34}")
    for a in range(2):
        e(f"s_waitcnt lgkmcnt({4-4*a})")
        for k in range(2):
            a_, b_, c_, d_ = (vr(P + 8*s + 4*a + 2*k, 2) for s in range(4))
            e(f"v_pk_add_f32 {a_}, {a_}, {b_}", f"v_pk_add_f32 {c_}, {c_}, {d_}", f"v_pk_add_f32 {a_}, {a_}, {c_}")
    e(f"v_pk_mul_f32 {vr(P+8,2)}, {vr(P,2)}, 0")
    for k in range(1, 4): e(f"v_pk_fma_f32 {vr(P+8,2)}, {vr(P+2*k,2)}, 0, {vr(P+8,2)}")
    e(f"v_add_f32 v{P+8}, v{P+8}, v{P+9}", f"v_add_f32 v{P+8}, v{P+8}, v{P+34}")
    e(f"v_cmp_ngt_f32 vcc, s{sO+1}, v{P+8}" if "forcefb" not in OPT else "v_cmp_eq_u32 vcc, v0, v0", "s_cbranch_vccnz L_exact")
    e(f"v_max3_f32 v{P+8}, abs(v{P}), abs(v{P+1}), abs(v{P+2})", f"v_max3_f32 v{P+9}, abs(v{P+3}), abs(v{P+4}), abs(v{P+5})")
    e(f"v_max3_f32 v{P+8}, v{P+8}, abs(v{P+6}), abs(v{P+7})", f"v_max_f32 v{P+8}, v{P+8}, v{P+9}")
    e(f"v_cmp_gt_f32 vcc, {hex(f32bits(2.0 ** -104))}, v{P+8}", "s_cbranch_vccnz L_exact")
    e.lab(f"L_exact_ret{site}")
    for k in range(4): e(f"v_pk_mul_f32 {vr(P+2*k,2)}, {vr(P+2*k,2)}, {vr(P+32,2)} op_sel_hi:[1,0]")
    for k in range(4): e(f"v_cvt_pk_bf16_f32 v{164+k}, v{P+2*k}, v{P+2*k+1}")
    e(f"s_cmp_ge_u32 s{sO+4}, {2*TAGH}", "s_cbranch_scc1 L_pub_tag")
    e(f"buffer_store_dwordx4 v[164:167], v{vL16}, {sr(R_WS,4)}, s{sO+3} offen{SC}", "s_waitcnt vmcnt(0)")
    set_flag(e, sO+5, tA, tB)
    e("s_branch L_pub_x")
    e.lab("L_pub_tag")
    mk_ck(e, tD, 164)
    if FASTH < 4:
        e(f"s_cmp_lt_u32 s{sO+4}, {2*FASTH}", "s_cbranch_scc1 L_pub_nf", f"s_add_u32 s{sO}, s{sO+3}, {FAST}")
        e(f"buffer_store_dwordx4 v[164:167], v{vL16}, {sr(R_WS,4)}, s{sO} offen", f"buffer_store_dword v{tD}, v{vCk}, {sr(R_WS,4)}, s{sO} offen offset:1024")
        e.lab("L_pub_nf")
    e(f"buffer_store_dwordx4 v[164:167], v{vL16}, {sr(R_WS,4)}, s{sO+3} offen{SC}", f"buffer_store_dword v{tD}, v{vCk}, {sr(R_WS,4)}, s{sO+3} offen offset:1024{SC}")
    set_flag(e, sO+5, tA, tB)
    e.lab("L_pub_x")
    for s in pub_sites[:-1]: e(f"s_cmp_eq_u32 s{sRET}, {s}", f"s_cbranch_scc1 L_pub_ret{s}")
    e(f"s_branch L_pub_ret{pub_sites[-1]}")

def exact(e):
    O, Q, Kr, V, S, NB, m, vo = GO, GO+36, GO+40, GO+44, GO+52, GO+68, GO+84, GO+86
    sK, sV = sO, sO+1
    e.lab("L_exact")
    e(f"s_mov_b32 s{sT+4}, 1", "s_waitcnt vmcnt(0)")
    e(f"s_lshl_b32 s{sK}, s{sO+4}, 10", f"s_add_u32 s{sK}, s{sK}, {QI_L}", f"v_add_u32 v{m}, s{sK}, v{vL16}", f"ds_read_b128 {vr(Q,4)}, v{m}")
    e(f"v_and_b32 v{m}, 31, v0", f"v_cmp_eq_u32 vcc, 16, v{m}", f"v_mov_b32 v{m+1}, 0x4f804f80", f"v_lshrrev_b32 v{vo}, 5, v0", f"v_cndmask_b32 v{V}, 0, v{m+1}, vcc")
    for r in range(1, 8): e(f"v_mov_b32 v{V+r}, v{V}")
    e(f"v_lshlrev_b32 v{vo}, 8, v{vo}", f"v_and_b32 v{m}, 15, v0", f"v_lshl_add_u32 v{vo}, v{m}, 4, v{vo}")
    for r in range(16): e(f"v_mov_b32 v{O+r}, 0")
    e(f"v_mov_b32 v{m}, 0xff800000", f"s_mov_b32 s{sK}, {KW}", "s_waitcnt lgkmcnt(0)")
    e.lab("L_ex1")
    e(f"buffer_load_dwordx4 {vr(Kr,4)}, v{vL16}, {sr(R_WS,4)}, s{sK} offen{SC}", "s_waitcnt vmcnt(0)")
    e(f"{MF32} {vr(S,16)}, {vr(Kr,4)}, {vr(Q,4)}, 0", "s_nop 11")
    for k in range(0, 16, 2): e(f"v_max3_f32 v{m}, v{m}, v{S+k}, v{S+k+1}")
    e(f"s_add_u32 s{sK}, s{sK}, 1024", f"s_cmp_lt_u32 s{sK}, {KW + 65536}", "s_cbranch_scc1 L_ex1")
    halfmax(e, m)
    for r in range(16): e(f"v_sub_f32 v{NB+r}, 0, v{m}")
    e(f"s_mov_b32 s{sK}, {KW}", f"s_mov_b32 s{sV}, {VW}")
    e.lab("L_ex2")
    e(f"buffer_load_dwordx4 {vr(Kr,4)}, v{vL16}, {sr(R_WS,4)}, s{sK} offen{SC}", "s_mov_b32 exec_lo, 0xffff", "s_mov_b32 exec_hi, 0xffff")
    e(f"buffer_load_dwordx4 {vr(V,4)}, v{vo}, {sr(R_WS,4)}, s{sV} offen{SC}", f"buffer_load_dwordx4 {vr(V+4,4)}, v{vo}, {sr(R_WS,4)}, s{sV} offen offset:512{SC}")
    e("s_mov_b64 exec, -1", "s_waitcnt vmcnt(0)")
    e(f"{MF32} {vr(S,16)}, {vr(Kr,4)}, {vr(Q,4)}, {vr(NB,16)}", "s_nop 11")
    for k in range(16): e(f"v_exp_f32 v{S+k}, v{S+k}")
    e("s_nop 0")
    for j in range(8): e(pk(S, j))
    e("s_nop 1", f"{MF32} {vr(O,16)}, {vr(V,4)}, {vr(S,4)}, {vr(O,16)}", f"{MF32} {vr(O,16)}, {vr(V+4,4)}, {vr(S+8,4)}, {vr(O,16)}")
    e(f"s_add_u32 s{sK}, s{sK}, 1024", f"s_add_u32 s{sV}, s{sV}, 1024", f"s_cmp_lt_u32 s{sK}, {KW + 65536}", "s_cbranch_scc1 L_ex2")
    e("s_nop 11", f"v_mov_b32 v{m}, v{O+8}", "s_nop 1", f"v_permlane32_swap_b32 v{O+8}, v{m}", "s_nop 0", f"v_rcp_f32 v{GO+32}, v{O+8}", "s_nop 0")
    e("s_branch L_exact_ret0")

def fetch(e, hl, c0, c1, base, ck=None):
    for c in range(c0, c1):
        e(f"s_add_u32 s{sO}, s{sT+2}, {(hl*8 + c)*REC}")
        e(f"buffer_load_dwordx4 {vr(base+4*c,4)}, v{vL16}, {sr(R_WS,4)}, s{sO} offen{SC}")
        if ck is not None: e(f"buffer_load_dword v{ck+c}, v{vCk}, {sr(R_WS,4)}, s{sO} offen offset:1024{SC}")
def verify(e, c0, c1, base, ck, younger, hl=3, sleep=0):
    l = e.uniq("vf")
    e(f"s_waitcnt vmcnt({younger})", f"s_branch {l}_v")
    e.lab(l)
    if hl >= FASTH:
        e(f"s_add_u32 s{sT+6}, s{sT+6}, 1", f"s_and_b32 s{sO}, s{sT+6}, {FTRY-1}", f"s_cselect_b32 s{sO}, 0, {FAST}", f"s_xor_b32 s{sT+5}, s{sT+5}, s{sO}", f"s_add_u32 s{sT+2}, s{sT+3}, s{sT+5}")
    fetch(e, hl, c0, c1, base, ck)
    e("s_waitcnt vmcnt(0)")
    e.lab(l + "_v")
    for c in range(c0, c1): chk(e, tA, tB, base + 4*c, ck + c, c == c0)
    e(f"v_cmp_ne_u32 vcc, 0, v{tA}", f"s_cbranch_vccz {l}_d")
    spin_tail(e, l, sleep)
    e.lab(l + "_d")
    e(f"s_mov_b32 s{sT+6}, 0")
def mul_a(e, steps, pre=True, vm=None, after=None):
    n = len(steps)
    def rdw(k):
        b = GW + 8*(k & 3); o = steps[k][0] * 2048
        for ct, va in enumerate((vWt, vWt1)):
            e(f"ds_read_b64_tr_b16 {vr(b+4*ct,2)}, v{va} offset:{o}", f"ds_read_b64_tr_b16 {vr(b+4*ct+2,2)}, v{va} offset:{o+1024}")
    if pre:
        for k in range(2): rdw(k)
        return
    for k in range(n):
        if k + 2 < n: rdw(k + 2)
        e(f"s_waitcnt {'vmcnt(%d) ' % vm(k) if vm else ''}lgkmcnt({min(8, 4*(n-1-k))})")
        for ct in range(2):
            e(f"{MF32} {vr(GACC+16*ct,16)}, {vr(GW+8*(k&3)+4*ct,4)}, {vr(steps[k][1],4)}, {'0' if steps[k][0] == 0 else vr(GACC+16*ct,16)}")
        if after: after(k)
def gpoll_s(e, vaddr, vtmp, pat, sleep):
    l = e.uniq("gp")
    e(f"s_lshl_b32 exec_lo, {hex(pat)}, s{sT+7}", "s_mov_b32 exec_hi, exec_lo")
    e.lab(l)
    e(f"buffer_load_dword v{vtmp}, v{vaddr}, {sr(R_WS,4)}, s{sT+8} offen sc1", "s_waitcnt vmcnt(0)")
    e(f"v_cmp_ne_u32 vcc, s{sEP}, v{vtmp}", "s_and_b64 exec, exec, vcc", f"s_cbranch_execz {l}_d")
    spin_tail(e, l, sleep)
    e.lab(l + "_d")
    e("s_mov_b64 exec, -1")

def out_store(e):
    e("s_nop 10")
    for ct in range(2):
        for j in range(8): e(f"v_cvt_pk_bf16_f32 v{GW+8*ct+j}, v{GACC+16*ct+2*j}, v{GACC+16*ct+2*j+1}")
        for z in range(2): e(f"buffer_store_dwordx4 {vr(GW+8*ct+4*z,4)}, v{vSt}, {sr(R_OUT,4)}, s{sOut} offen offset:{64*ct+16*z}")

def late_pubs(e):
    e.lab("L_latepub")
    e(f"s_cmp_eq_u32 s{sI}, 3", "s_cbranch_scc1 L_lpx")
    pub(e, 4)
    e.lab("L_lpx")
    finish(e)

def h_main(e):
    e.lab("L_h2")
    srds(e, (R_XB, R_WB, R_WOB, R_WOA, R_OUT))
    b_prep(e)
    out_table(e)
    h_qprep(e)
    if "noH" in OPT: finish(e)
    wo_voff(e)
    lds_wait(e, vHC, vHT, 8, GCNT, sleep=2)
    for j in range(2):
        for g in b_dma_groups(j): e(*g)
    stamp(e, 4)
    b_proj(e)
    stamp(e, 5)
    b_attn(e)
    e("s_setprio 3")
    e(f"s_lshl_b32 s{sO+5}, s{sIDX}, 2", f"s_add_u32 s{sO+5}, s{sO+5}, s{sI}", f"s_lshl_b32 s{sO+5}, s{sO+5}, 7", f"s_add_u32 s{sO+5}, s{sO+5}, {F3}")
    out_prep(e)
    e("s_waitcnt vmcnt(0)")
    set_flag(e, sO+5, tA, tB)
    sig(e, vHC, vH1, HCNT)
    stamp(e, 6)
    e(f"s_cmp_eq_u32 s{sKIND}, 0", "s_cbranch_scc1 L_latepub")
    e.c("---- B out-projection")
    e(f"s_lshr_b32 s{sO+2}, s{sTK}, 1", f"s_lshl_b32 s{sOut}, s{sO+2}, 17", f"s_and_b32 s{sO+3}, s{sI}, 1", f"s_lshl_b32 s{sO}, s{sO+3}, 11", f"s_add_u32 s{sOut}, s{sOut}, s{sO}")
    e(f"s_lshl_b32 s{sO}, s{sHP}, 6", f"s_add_u32 s{sOut}, s{sOut}, s{sO}", f"s_add_u32 s{sOut}, s{sOut}, {1024 - 64}")
    e(f"s_lshl_b32 s{sO+2}, s{sO+2}, 12", f"s_lshl_b32 s{sO+3}, s{sO+3}, 7", f"s_add_u32 s{sO+2}, s{sO+2}, s{sO+3}", f"s_add_u32 s{sO+2}, s{sO+2}, {F3}")
    e(f"v_lshl_add_u32 v{vFl}, v0, 8, s{sO+2}")
    e(f"s_lshl_b32 s{sT+2}, s{sTK}, 15", f"s_add_u32 s{sT+2}, s{sT+2}, {OB}")
    gpoll(e, vFl, vHT, 0xffff, 0, sleep=F3SLEEP)
    stamp(e, 7)
    NB = 21
    oreg = lambda k: GO + 4 * (k % NB)
    def ldo(k):
        e(f"s_add_u32 s{sT+3}, s{sT+2}, {(k>>2)*4096}", f"buffer_load_dwordx4 {vr(oreg(k),4)}, v{vL16}, {sr(R_WS,4)}, s{sT+3} offen offset:{(k&3)*1024}{SC}")
    for k in range(NB):
        ldo(k)
        if OBW and k >= OBW: e(f"s_waitcnt vmcnt({OBW})")
    lds_wait(e, vHC, vHT, 44, HCNT)
    e(f"v_lshl_add_u32 v{vSt}, v{vL4}, 9, v{vSt}", f"v_xor_b32 v{vWt1}, 64, v{vWt}")
    stamp(e, 8)
    e(f"s_setprio {FM}")
    SB_ = [(k, oreg(k)) for k in range(32)]
    if HGATE:
        S1_, S2_ = SB_[:32-NB], SB_[32-NB:]
        mul_a(e, S1_)
        mul_a(e, S1_, pre=False, vm=lambda k: min(OBW or 63, NB - 1), after=lambda k: ldo(k + NB))
        stamp(e, 18)
        mul_a(e, S2_)
        if HGATE == 8: lds_wait(e, vHC, vHT, 1, QST, sleep=PSL)
        else: pry_wait(e, OS_L + HGATE*OS_POS, sleep=PSL)
        e("s_setprio 1")
        mul_a(e, S2_, pre=False, vm=lambda k: NB - 1 - k)
    else:
        mul_a(e, SB_)
        mul_a(e, SB_, pre=False, vm=lambda k: min(NB - 1, 31 - k), after=lambda k: ldo(k + NB) if k + NB < 32 else None)
    out_store(e)
    finish(e)

def f_out(e):
    e.lab("L_f3")
    e.c("---- output stage A")
    if "noH" in OPT or "noF" in OPT: finish(e)
    srds(e, (R_OUT,))
    lane_id(e)
    out_prep(e)
    e(f"v_mov_b32 v{vHC}, {CNT}")
    pub(e, 0)
    stamp(e, 5)
    e(f"s_cmp_lg_u32 s{sKIND}, 0", "s_cbranch_scc1 L_latepub")
    e(f"s_lshl_b32 s{sOut}, s{sTK}, 16", f"s_lshl_b32 s{sO}, s{sHP}, 6", f"s_add_u32 s{sOut}, s{sOut}, s{sO}")
    e(f"v_xor_b32 v{vWt1}, 64, v{vWt}")
    e(f"s_mul_i32 s{sT+3}, s{sTK}, {32*REC}", f"s_add_u32 s{sT+3}, s{sT+3}, {OA}", f"s_mov_b32 s{sT+2}, s{sT+3}", f"s_mov_b32 s{sT+6}, 0")
    e(f"s_and_b32 s{sT+7}, s{sI}, 1", f"s_lshr_b32 s{sT+8}, s{sTK}, 1", f"s_lshl_b32 s{sT+8}, s{sT+8}, 13", f"s_add_u32 s{sT+8}, s{sT+8}, {F4}")
    e(f"s_mul_i32 s{sT+9}, s{sT+7}, {OS_POS}")
    if FASTH < 4:
        e(f"s_add_u32 s{sO}, s{sT+3}, {FAST + 24*REC}", f"buffer_load_dword v6, v{vPo}, {sr(R_WS,4)}, s{sO} offen{SC}")
        e(f"s_add_u32 s{sO}, s{sO}, 8192", "s_mov_b64 exec, 0xffff", f"buffer_load_dword v6, v{vPo}, {sr(R_WS,4)}, s{sO} offen{SC}", "s_mov_b64 exec, -1")
    def gate(p, sleep):
        e(f"s_add_u32 s{sO+1}, s{sT+9}, {OS_L + p*OS_POS}")
        pry_wait(e, f"s{sO+1}", sleep=sleep)
    st = lambda hl, base, c0=0, c1=8: [(4*c + hl, base + 4*c) for c in range(c0, c1)]
    CK = GO + 64
    for hl in range(3):
        gate(2*hl + 1, PSL if hl < 2 else 8)
        if hl < FASTH: gpoll_s(e, vPo, vHT, 0x01010101 << (2*hl), 6)
        elif hl == FASTH: e(f"s_mov_b32 s{sT+5}, {FAST}", f"s_add_u32 s{sT+2}, s{sT+3}, {FAST}")
        stamp(e, 16 + hl)
        fetch(e, hl, 0, 8, GO, CK if hl >= TAGH else None)
        if hl == 0:
            lds_wait(e, vHC, vHT, 44, HCNT, sleep=8)
            e(f"s_setprio {FM}")
        A_ = st(hl, GO)
        mul_a(e, A_)
        if hl >= TAGH:
            verify(e, 0, 8, GO, CK, 0, hl=hl, sleep=4)
            mul_a(e, A_, pre=False)
        else: mul_a(e, A_, pre=False, vm=lambda k: 7 - k)
    stamp(e, 19)
    gate(6, 3)
    mul_a(e, st(3, GO, 0, 4))
    if FASTH > 3: gpoll_s(e, vPo, vHT, 0x40404040, 1)
    elif FASTH == 3: e(f"s_mov_b32 s{sT+5}, {FAST}", f"s_add_u32 s{sT+2}, s{sT+3}, {FAST}")
    fetch(e, 3, 0, 8, GO, CK)
    verify(e, 0, 4, GO, CK, 8)
    stamp(e, 9)
    mul_a(e, st(3, GO, 0, 4), pre=False)
    mul_a(e, st(3, GO, 4, 8))
    verify(e, 4, 8, GO, CK, 0)
    mul_a(e, st(3, GO, 4, 8), pre=False)
    out_store(e)
    e(f"s_xor_b32 s{sO}, s{sI}, 1", f"s_or_b32 s{sO}, s{sWG}, s{sO}", "s_cbranch_scc1 L_noep", f"s_mov_b32 s{sO}, {EPOCH_W}")
    set_flag(e, sO, tA, tB)
    e.lab("L_noep")
    finish(e)

def gen():
    e = Em()
    e.L.append(f".globl {KN}\n.p2align 8\n.type {KN},@function\n{KN}:")
    entry(e)
    h_kv(e)
    f_load(e)
    s_qproj(e)
    s_att(e)
    f_att(e)
    h_main(e)
    f_out(e)
    late_pubs(e)
    pub_routine(e)
    e.lab("L_codeend")
    exact(e)
    e.lab("L_end")
    e("s_endpgm")
    head = f"""; generated by work/gen16.py
; @launch grid=(256,1,1) block=(768,1,1) lds={LDS_BYTES}
.amdgcn_target "amdgcn-amd-amdhsa--gfx950"
.text
"""
    kd = f""".section .rodata,"a"
.p2align 6
.amdhsa_kernel {KN}
  .amdhsa_next_free_vgpr 168
  .amdhsa_next_free_sgpr 102
  .amdhsa_accum_offset 168
  .amdhsa_group_segment_fixed_size 0
  .amdhsa_kernarg_size 88
  .amdhsa_user_sgpr_count 2
  .amdhsa_user_sgpr_kernarg_segment_ptr 1
  .amdhsa_system_sgpr_workgroup_id_x 1
.end_amdhsa_kernel
"""
    return head + e.text() + kd

if __name__ == "__main__":
    args = [a for a in sys.argv[1:] if not a.startswith("-")]
    OPT.update(a[1:] for a in sys.argv[1:] if a.startswith("-"))
    if "stamps" in OPT: STAMPS = True
    OPT.update(("wpf", "s3pub", "sub"))
    if "nogate" not in OPT: OPT.add("gate1")
    if "fast" not in OPT: OPT.add("nofast")

    for o in OPT:
        if o.startswith("moff"): MOFF = float(o[4:])
        if o.startswith("bd"): BDEPTH = int(o[2:])
        if o.startswith("hm"): HM = int(o[2:])
        if o.startswith("ns"): NSAMP = int(o[2:])
        if o.startswith("tg"): TAGH = int(o[2:])
        if o.startswith("fh"): FASTH = int(o[2:])
        if o.startswith("nb"): NB1 = int(o[2:])
        if o.startswith("pg"): PGATE = int(o[2:])
        if o.startswith("lf"): LOF = int(o[2:])
        if o.startswith("ls"): LOS = int(o[2:])
        if o.startswith("fm"): FM = int(o[2:])
        if o.startswith("ap"): APR = int(o[2:])
        if o.startswith("ys"): YS = tuple(int(x) for x in o[2:].split("_"))
        if o == "yall": YMODES = ('F', 'F0', 'S')
        if o.startswith("ow"): OBW = int(o[2:])
        if o.startswith("sh"): SHOLD = int(o[2:])
        if o.startswith("hg"): HGATE = int(o[2:])
        if o.startswith("win"): WIN = int(o[3:])
        if o.startswith("osc"): OSC = " " + o[3:].replace("_", " ")
        if o.startswith("dly"): DLY = tuple(int(x) for x in o[3:].split("_"))
        if o.startswith("bs"): BSLEEP = int(o[2:])
    out = args[0] if args else f"cdna_kernels/{NAME}.s"
    open(out, "w").write(gen())
    print("wrote", out)
```

```python
import sys, math, struct

NAME = "concat_heads__grouped_kv_mqa__sliding_local_dilated__prompt"
KN = NAME + "_kernel"
def f32bits(x): return struct.unpack("<I", struct.pack("<f", x))[0]

class Em:
    def __init__(self): self.L = []; self.n = 0
    def __call__(self, *ss):
        for s in ss:
            if s.startswith("s_nop "):
                self.L += ["    s_nop 0"] * (int(s.split()[1]) + 1)
            else: self.L.append("    " + s)
    def lab(self, s): self.L.append(s + ":")
    def uniq(self, p): self.n += 1; return f"L_{p}_{self.n}"
    def c(self, s): self.L.append("    ; " + s)
    def text(self): return "\n".join(self.L) + "\n"

def vr(b, n): return f"v[{b}:{b+n-1}]" if n > 1 else f"v{b}"
def sr(b, n): return f"s[{b}:{b+n-1}]" if n > 1 else f"s{b}"

sWG, sW = 2, 3
R_XA, R_WQ, R_WKV, R_WOA, R_XB, R_WB, R_WOB, R_OUT, R_WS = 32, 36, 40, 44, 48, 52, 56, 60, 64
R_WO = R_WKV
sRB, sCB, sTB, sHP, sSB, sKIND, sRET, sI = 72, 73, 74, 75, 76, 77, 78, 79
sT = 80
sO = 92
sPOLL, sEP, sSPIN, sIDX = 98, 99, 100, 101
sTAG = 71
SPIN_MAX = 60000
OB, OA, KW, VW, EPOCH_W, FL = 0, 2 << 20, 5 << 20, (5 << 20) + 65536, (5 << 20) + 131072, (5 << 20) + (256 << 10)
REC = 1280
F1, F3, F4 = FL, FL + (64 << 10), FL + (256 << 10)
WS_BYTES = 16 << 20
FAST = 8 << 20
K = 1024
LDS_BYTES = 160 * K
SLOT = 32 * K
WKV_L = 128 * K
QI_L, NM_L, CNT, PR_L = 144 * K, 152 * K, 156 * K + 512, 157 * K
HCNT, ACNT, GCNT, KVF, RDY1, QST, LAND, SOK = 0, 4, 8, 12, 16, 20, 32, 48
RINGS = 34 * K
RXO = 24 * K
OS_L, OS_POS, OS_PAIR = 72 * K, 9216, 2304
EX_L = 68 * K
TB_L = 159 * K
WOA_L, WOB_L = 34 * K, 0
BDEPTH, HM, F3SLEEP, WIN, BSLEEP = 4, 1, 16, 12, 0
PSL = 20
FTRY = 16
HGATE = 8
CSC = 0.25 * math.log2(math.e)
MOFF = 100.0
NSAMP = 4
PFB, PFG, SPF = 0, 0, 0
TAGH, FASTH = 1, 3
NB1 = 2
PGATE = 8
APR = 3
YS = ()
YMODES = ('F', 'F0')
OBW = 4
LOF, LOS, FM = 2, 0, 2
SHOLD = 0
LMAX = 2.0 ** 120
MF32 = "v_mfma_f32_32x32x16_bf16"
MF16 = "v_mfma_f32_16x16x32_bf16"
STAMPS = False
OPT = set()
ST = 12 << 20
SC = " sc1"
OSC = ""

def stamp(e, k):
    if STAMPS: e("s_memrealtime s[30:31]", "s_waitcnt lgkmcnt(0)", f"s_mov_b32 s{8+k}, s30")
def cstamp(e, k):
    if STAMPS: e("s_memtime s[30:31]", "s_waitcnt lgkmcnt(0)", f"s_mov_b32 s{8+k}, s30")
def stamp_init(e):
    if not STAMPS: return
    for k in range(1, 22): e(f"s_mov_b32 s{8+k}, 0")
    e("s_mov_b32 s8, s6", "s_mov_b32 s20, s4")
DLY = None
def finish(e):
    if DLY is not None:
        l = e.uniq("dly")
        stamp(e, 15)
        e(f"s_cmp_lg_u32 s{sW}, {DLY[0]}", f"s_cbranch_scc1 {l}_d")
        e(f"s_sub_u32 s4, s{8+DLY[1]}, s8", "s_lshl_b32 s4, s4, 1", "s_add_u32 s4, s4, 4000", "s_min_u32 s4, s4, 40000")
        e.lab(l)
        e("s_sleep 2", "s_memrealtime s[30:31]", "s_waitcnt lgkmcnt(0)", "s_sub_u32 s5, s30, s8", "s_cmp_lt_u32 s5, s4", f"s_cbranch_scc1 {l}")
        e.lab(l + "_d")
        e("s_endpgm")
        return
    if STAMPS:
        stamp(e, 15); cstamp(e, 14)
        e(f"s_mul_i32 s30, s{sWG}, 12", f"s_add_u32 s30, s30, s{sW}", "s_lshl_b32 s30, s30, 7", f"s_add_u32 s30, s30, {ST}")
        e("s_mov_b64 exec, 1", "v_mov_b32 v0, 0")
        for k in range(22): e(f"v_mov_b32 v{4+k}, s{8+k}")
        for k in range(6): e(f"buffer_store_dwordx4 {vr(4+4*k,4)}, v0, {sr(R_WS,4)}, s30 offen offset:{16*k}")
    e("s_endpgm")

def dma(e, voff, R, soff, nt=False):
    e(f"buffer_load_dwordx4 v{voff}, {sr(R,4)}, s{soff} offen{' nt' if nt else ''} lds")
def spin_tail(e, l, sleep):
    e(f"s_sleep {sleep}", f"s_add_u32 s{sSPIN}, s{sSPIN}, 1", f"s_cmp_lt_u32 s{sSPIN}, {SPIN_MAX}", f"s_cbranch_scc1 {l}")
def lds_wait(e, vaddr, vtmp, target, off=0, sleep=1):
    l = e.uniq("poll")
    e.lab(l)
    e(f"ds_read_b32 v{vtmp}, v{vaddr} offset:{off}", "s_waitcnt lgkmcnt(0)", f"v_readfirstlane_b32 s{sPOLL}, v{vtmp}")
    e(f"s_cmp_ge_u32 s{sPOLL}, {target}", f"s_cbranch_scc1 {l}_d")
    spin_tail(e, l, sleep)
    e.lab(l + "_d")
def sig(e, vaddr, vone, off):
    e("s_mov_b64 exec, 1", f"ds_add_u32 v{vaddr}, v{vone} offset:{off}", "s_mov_b64 exec, -1")
def load_epoch(e):
    e(f"s_mov_b32 s{sEP}, {EPOCH_W}", f"s_load_dword s{sEP}, s[{R_WS}:{R_WS+1}], s{sEP}")
def get_epoch(e):
    e("s_waitcnt lgkmcnt(0)", f"s_add_u32 s{sEP}, s{sEP}, 1", f"s_mul_i32 s{sTAG}, s{sEP}, 0x9e3779b1")
def gpoll(e, vaddr, vtmp, lo, hi, sleep=1):
    l = e.uniq("gp")
    e(f"s_mov_b32 exec_lo, {hex(lo)}", f"s_mov_b32 exec_hi, {hex(hi)}")
    e.lab(l)
    e(f"buffer_load_dword v{vtmp}, v{vaddr}, {sr(R_WS,4)}, 0 offen sc1", "s_waitcnt vmcnt(0)")
    e(f"v_cmp_ne_u32 vcc, s{sEP}, v{vtmp}", "s_and_b64 exec, exec, vcc", f"s_cbranch_execz {l}_d")
    spin_tail(e, l, sleep)
    e.lab(l + "_d")
    e("s_mov_b64 exec, -1")
def gpoll_issue(e, vaddr, vtmp, lo):
    e(f"s_mov_b32 exec_lo, {hex(lo)}", "s_mov_b32 exec_hi, 0", f"buffer_load_dword v{vtmp}, v{vaddr}, {sr(R_WS,4)}, 0 offen sc1", "s_mov_b64 exec, -1")
def gpoll_finish(e, vaddr, vtmp, lo, younger, sleep=1):
    l = e.uniq("gp")
    e(f"s_mov_b32 exec_lo, {hex(lo)}", "s_mov_b32 exec_hi, 0", f"s_waitcnt vmcnt({younger})", f"s_branch {l}_c")
    e.lab(l)
    e(f"buffer_load_dword v{vtmp}, v{vaddr}, {sr(R_WS,4)}, 0 offen sc1", "s_waitcnt vmcnt(0)")
    e.lab(l + "_c")
    e(f"v_cmp_ne_u32 vcc, s{sEP}, v{vtmp}", "s_and_b64 exec, exec, vcc", f"s_cbranch_execz {l}_d")
    spin_tail(e, l, sleep)
    e.lab(l + "_d")
    e("s_mov_b64 exec, -1")
def set_flag(e, soff, va, vd):
    e(f"v_mov_b32 v{va}, 0", f"v_mov_b32 v{vd}, s{sEP}", "s_mov_b64 exec, 1")
    e(f"buffer_store_dword v{vd}, v{va}, {sr(R_WS,4)}, s{soff} offen sc1", "s_mov_b64 exec, -1")
def mk_ck(e, dst, d):
    e(f"v_xad_u32 v{dst}, v{d}, s{sTAG}, v{d+1}", f"v_xad_u32 v{dst}, v{dst}, v{d+2}, v{d+3}")
def chk(e, acc, tmp, d, ck, first):
    mk_ck(e, tmp, d)
    e(f"v_xor_b32 v{acc}, v{tmp}, v{ck}" if first else f"v_bitop3_b32 v{acc}, v{acc}, v{tmp}, v{ck} bitop3:0xf6")
def lane_id(e):
    e("v_mbcnt_lo_u32_b32 v0, -1, 0", "v_mbcnt_hi_u32_b32 v0, -1, v0")
def xa_voff(e, b, t):
    e(f"v_lshrrev_b32 v{t}, 4, v0", f"v_and_b32 v{b}, 15, v0", f"v_xor_b32 v{b}, v{b}, v{t}", f"v_lshlrev_b32 v{b}, 4, v{b}")
    e(f"v_lshl_add_u32 v{b}, v{t}, 10, v{b}")
def halfmax(e, m):
    e(f"v_mov_b32 v{m+1}, v{m}", "s_nop 1", f"v_permlane32_swap_b32 v{m}, v{m+1}", "s_nop 0", f"v_max_f32 v{m}, v{m}, v{m+1}")
def negmax(e, S, m):
    e(f"v_max3_f32 v{m}, v{S}, v{S+1}, v{S+2}")
    for k in range(3, 15, 2): e(f"v_max3_f32 v{m}, v{m}, v{S+k}, v{S+k+1}")
    e(f"v_max_f32 v{m}, v{m}, v{S+15}")
    halfmax(e, m)
    e(f"v_sub_f32 v{m}, {hex(f32bits(-MOFF))}, v{m}")

def entry(e):
    e(f"s_cmp_ge_u32 s{sWG}, 256", "s_cbranch_scc1 L_end")
    e(f"s_and_b32 s{sO}, s{sWG}, 8", f"s_add_u32 s{sO}, s{sO}, 16")
    for R, off in ((R_XA, 0), (R_WQ, 8), (R_WS, 80)): e(f"s_load_dwordx2 s[{R}:{R+1}], s[0:1], {off}")
    e(f"s_load_dwordx2 s[{R_WKV}:{R_WKV+1}], s[0:1], s{sO}")
    if STAMPS: e("s_memrealtime s[6:7]", "s_memtime s[4:5]")
    e("v_lshrrev_b32 v1, 6, v0", "v_and_b32 v0, 63, v0")
    e(f"s_lshr_b32 s{sO+1}, s{sWG}, 3")
    e(f"v_readfirstlane_b32 s{sW}, v1")
    e(f"s_and_b32 s{sO}, s{sWG}, 7", f"s_lshl_b32 s{sIDX}, s{sO}, 5", f"s_add_u32 s{sIDX}, s{sIDX}, s{sO+1}")
    e(f"s_and_b32 s{sI}, s{sW}, 3", f"s_cmp_lt_u32 s{sW}, 8", "s_cbranch_scc1 L_nopf")
    e(f"s_getpc_b64 s[{sO+2}:{sO+3}]")
    e.lab("L_pc")
    e(f"s_lshl_b32 s{sO}, s{sO+1}, 2", f"s_add_u32 s{sO}, s{sO}, s{sI}", f"s_and_b32 s{sO}, s{sO}, 31", f"s_lshl_b32 s{sO}, s{sO}, 10")
    e(f"v_lshl_add_u32 v2, v0, 7, s{sO}", f"v_min_u32 v2, L_codeend-L_pc-4, v2", "s_mov_b64 exec, 0xff")
    e(f"global_load_dword v167, v2, s[{sO+2}:{sO+3}]", "s_mov_b64 exec, -1")
    e.lab("L_nopf")
    e(f"s_lshr_b32 s{sRB}, s{sIDX}, 3", f"s_and_b32 s{sCB}, s{sIDX}, 7", f"s_lshr_b32 s{sTB}, s{sIDX}, 4", f"s_and_b32 s{sHP}, s{sIDX}, 15")
    e(f"s_lshr_b32 s{sSB}, s{sCB}, 1", f"s_and_b32 s{sKIND}, s{sCB}, 1", f"s_mov_b32 s{sSPIN}, 0")
    for R, n in ((R_XA, 2 << 20), (R_WKV, 16384), (R_WQ, 512 << 10), (R_WS, WS_BYTES)):
        e(f"s_mov_b32 s{R+2}, {hex(n)}", f"s_mov_b32 s{R+3}, 0x20000")
    e(f"s_cmp_ge_u32 s{sW}, 8", "s_cbranch_scc1 L_q", f"s_cmp_ge_u32 s{sW}, 4", "s_cbranch_scc1 L_aux")
def srds(e, lst):
    size = {R_WOA: 512 << 10, R_XB: 2 << 20, R_WB: 1536 << 10, R_WOB: 512 << 10, R_OUT: 4 << 20}
    slot = {R_WOA: 32, R_XB: 40, R_WB: 48, R_WOB: 56, R_OUT: 64}
    for R in lst: e(f"s_load_dwordx2 s[{R}:{R+1}], s[0:1], {slot[R]}", f"s_mov_b32 s{R+2}, {hex(size[R])}", f"s_mov_b32 s{R+3}, 0x20000")

vHC, vH1, vHT = 5, 6, 7
def h_kv(e):
    fx, fw, acc = 32, 48, 24
    e.c("---- H: K/V projection")
    e("s_setprio 3")
    xa_voff(e, 8, 12)
    for z in range(1, 4): e(f"v_xor_b32 v{8+z}, {z<<6}, v8")
    e("v_lshlrev_b32 v12, 4, v0")
    e(f"s_add_u32 s{sO+3}, s{sRB}, s{sI}", f"s_and_b32 s{sO+3}, s{sO+3}, 3")
    e(f"s_lshr_b32 s{sO+1}, s{sIDX}, 1", f"s_lshl_b32 s{sO+1}, s{sO+1}, 14", f"s_lshl_b32 s{sO+2}, s{sO+3}, 8", f"s_add_u32 s{sO+1}, s{sO+1}, s{sO+2}")
    e(f"s_lshl_b32 s{sT}, s{sI}, 15", f"s_lshl_b32 s{sO+2}, s{sSB}, 12", f"s_add_u32 s{sT}, s{sT}, s{sO+2}")
    e(f"s_lshl_b32 s{sT+1}, s{sI}, 12", f"s_add_u32 s{sT+1}, s{sT+1}, {WKV_L}", f"s_lshl_b32 s{sO+3}, s{sO+3}, 12")
    e("s_waitcnt lgkmcnt(0)")
    for z in range(4):
        e(f"s_add_u32 m0, s{sT}, {z*1024}", f"s_add_u32 s{sO}, s{sO+1}, {z*4096}")
        dma(e, 8 + z, R_XA, sO, nt=True)
        e(f"s_add_u32 m0, s{sT+1}, {z*1024}", f"s_add_u32 s{sO}, s{sO+3}, {z*1024}")
        dma(e, 12, R_WKV, sO)
    load_epoch(e)
    e("s_barrier")
    stamp_init(e)
    e(f"v_mov_b32 v{vHC}, {CNT}", f"v_mov_b32 v{vH1}, 1")
    e("v_and_b32 v2, 15, v0", "v_lshrrev_b32 v3, 4, v0", "v_xor_b32 v4, v2, v3", "v_lshlrev_b32 v4, 4, v4", "v_lshl_add_u32 v4, v2, 8, v4")
    e(f"v_add_u32 v8, s{sT}, v4")
    for q in range(1, 4): e(f"v_xor_b32 v{8+q}, {q<<6}, v8")
    e("v_bfe_u32 v4, v0, 2, 2", "v_lshl_add_u32 v4, v3, 3, v4", "v_lshlrev_b32 v4, 5, v4", "v_and_b32 v13, 3, v0", "v_lshl_add_u32 v4, v13, 3, v4")
    e(f"v_add_u32 v13, s{sT+1}, v4", f"v_add_u32 v14, s{sT+1}, v12")
    e(f"s_lshl_b32 s{sO}, s{sI}, 2", f"v_add_u32 v15, s{sO}, v{vHC}")
    e(f"s_lshl_b32 s{sO}, s{sRB}, 11")
    e(f"s_lshr_b32 s{sO+1}, s{sSB}, 1", f"s_lshl_b32 s{sO+1}, s{sO+1}, 10", f"s_and_b32 s{sO+2}, s{sSB}, 1", f"s_lshl_b32 s{sO+2}, s{sO+2}, 8")
    e(f"s_add_u32 s{sO+1}, s{sO+1}, s{sO+2}", f"s_add_u32 s{sO+1}, s{sO+1}, {KW}")
    e(f"s_lshl_b32 s{sO+2}, s{sSB}, 9", f"s_add_u32 s{sO+2}, s{sO+2}, {VW}")
    e(f"s_cmp_eq_u32 s{sKIND}, 0", f"s_cselect_b32 s{sO+1}, s{sO+1}, s{sO+2}", f"s_cselect_b32 s{sO+2}, 9, 8", f"s_add_u32 s{sO+4}, s{sO}, s{sO+1}")
    e("v_and_b32 v4, 1, v3", f"v_lshlrev_b32 v4, s{sO+2}, v4", "v_lshl_add_u32 v20, v2, 4, v4")
    e(f"s_lshl_b32 s{sO}, s{sKIND}, 28", f"s_add_u32 s{sO}, s{sO}, 0x3f800000", f"v_mov_b32 v22, s{sO}")
    e(f"s_lshl_b32 s{sO+5}, s{sIDX}, 7", f"s_add_u32 s{sO+5}, s{sO+5}, {F1}")
    get_epoch(e)
    e("s_waitcnt vmcnt(0)")
    stamp(e, 1)
    for q in range(4):
        e(f"ds_read_b128 {vr(fx+4*q,4)}, v{8+q}")
        e(f"ds_read_b64_tr_b16 {vr(fw+4*q,2)}, v13 offset:{q*1024}", f"ds_read_b64_tr_b16 {vr(fw+4*q+2,2)}, v13 offset:{q*1024+128}")
    sig(e, 15, vH1, LAND)
    e(f"s_cmp_lg_u32 s{sKIND}, 0", "s_cbranch_scc1 L_kv_v")
    for kind in range(2):
        for q in range(4):
            a, b = (fw, fx) if kind == 0 else (fx, fw)
            e(f"s_waitcnt lgkmcnt({10-3*q})", f"{MF16} {vr(acc,4)}, {vr(a+4*q,4)}, {vr(b+4*q,4)}, {'0' if q == 0 else vr(acc,4)}")
        if kind == 0:
            e("s_branch L_kv_d"); e.lab("L_kv_v")
    e.lab("L_kv_d")
    e(f"s_cmp_eq_u32 s{sI}, 0", "s_cbranch_scc1 L_kv_0", "s_nop 5")
    e(f"ds_write_b128 v14, {vr(acc,4)}")
    sig(e, vHC, vH1, HCNT)
    e("s_branch L_h2")
    e.lab("L_kv_0")
    lds_wait(e, vHC, vHT, 3, HCNT, sleep=0)
    for k in range(1, 4): e(f"ds_read_b128 {vr(fx+4*k,4)}, v14 offset:{k*4096}")
    e("s_waitcnt lgkmcnt(1)")
    for k in range(2): e(f"v_pk_add_f32 {vr(fx+4+2*k,2)}, {vr(fx+4+2*k,2)}, {vr(fx+8+2*k,2)}")
    e("s_waitcnt lgkmcnt(0)")
    for k in range(2): e(f"v_pk_add_f32 {vr(acc+2*k,2)}, {vr(acc+2*k,2)}, {vr(fx+12+2*k,2)}")
    for k in range(2): e(f"v_pk_add_f32 {vr(acc+2*k,2)}, {vr(acc+2*k,2)}, {vr(fx+4+2*k,2)}")
    for k in range(2): e(f"v_pk_mul_f32 {vr(acc+2*k,2)}, {vr(acc+2*k,2)}, v[22:23] op_sel_hi:[1,0]")
    e(f"v_cvt_pk_bf16_f32 v28, v{acc}, v{acc+1}", f"v_cvt_pk_bf16_f32 v29, v{acc+2}, v{acc+3}", "s_nop 1")
    e("v_permlane32_swap_b32 v28, v30", "v_permlane32_swap_b32 v29, v31", "s_mov_b32 exec_hi, 0", "s_nop 0")
    e(f"buffer_store_dwordx4 v[28:31], v20, {sr(R_WS,4)}, s{sO+4} offen{SC}", "s_mov_b64 exec, -1")
    if "gate1" in OPT: sig(e, vHC, vH1, KVF)
    sig(e, vHC, vH1, HCNT)
    stamp(e, 2)
    e("s_waitcnt vmcnt(0)")
    set_flag(e, sO+5, 2, 3)
    if "gate2" in OPT: sig(e, vHC, vH1, KVF)
    stamp(e, 3)
    e("s_branch L_h2")

vT0, vQ16, vAN, vT1, AQ, AK, AV, S0, S1, AO, ANM = 0, 1, 2, 3, 4, 8, 40, 104, 120, 136, 152
vVo, vFa, vC, v1_ = S1, S1+1, S1+2, S1+3
def zero_pr(e):
    e(f"s_lshl_b32 s{sO}, s{sW}, 8", f"s_add_u32 m0, s{sO}, {PR_L - 1024}", "v_mov_b32 v2, 0", "ds_write_addtid_b32 v2")
def f_load(e):
    e.lab("L_aux")
    e.c("---- F: bulk loads")
    zero_pr(e)
    xa_voff(e, 8, 12)
    e(f"s_lshl_b32 s{sO}, s{sI}, 6", f"v_xor_b32 v8, s{sO}, v8")
    e("v_lshrrev_b32 v2, 3, v0", "v_bfe_u32 v3, v0, 4, 1", "v_lshlrev_b32 v3, 2, v3", "v_and_b32 v4, 7, v0", "v_xor_b32 v4, v4, v3")
    e("v_lshlrev_b32 v4, 4, v4", "v_lshl_add_u32 v12, v2, 10, v4")
    e(f"s_lshl_b32 s{sT}, s{sI}, 12")
    e(f"s_lshl_b32 s{sT+1}, s{sI}, 15", f"s_lshl_b32 s{sO}, s{sCB}, 7", f"s_add_u32 s{sT+1}, s{sT+1}, s{sO}")
    e(f"s_lshl_b32 s{sT+2}, s{sRB}, 16", f"s_add_u32 s{sT+2}, s{sT+2}, s{sT}", f"s_lshl_b32 s{sT+9}, s{sI}, 10")
    for du in range(1, 4):
        e(f"s_add_u32 s{sO}, s{sSB}, {du}", f"s_and_b32 s{sO}, s{sO}, 3")
        e(f"s_lshl_b32 s{sT+2+du}, s{sO}, 14", f"s_add_u32 s{sT+2+du}, s{sT+2+du}, s{sT+2}")
        e(f"s_lshl_b32 s{sT+5+du}, s{sO}, 12", f"s_add_u32 s{sT+5+du}, s{sT+5+du}, s{sT+9}")
    e(f"v_mov_b32 v{vC}, {CNT}", f"v_mov_b32 v{v1_}, 1")
    e("s_waitcnt lgkmcnt(0)")
    load_epoch(e)
    e("s_barrier")
    def chunk(sg):
        e(f"s_add_u32 s{sO+1}, s{sRB}, {sg}", f"s_and_b32 s{sO+1}, s{sO+1}, 3", f"s_lshl_b32 s{sO+2}, s{sO+1}, 8")
        e(f"s_lshl_b32 s{sO+1}, s{sO+1}, 17", f"s_add_u32 s{sO+1}, s{sO+1}, s{sT+1}")
        for i in range(4):
            e(f"s_add_u32 m0, s{sT}, {sg*SLOT + 16384 + i*1024}", f"s_add_u32 s{sO}, s{sO+1}, {i*8192}")
            dma(e, 12, R_WQ, sO)
        for du in range(1, 4):
            e(f"s_add_u32 m0, s{sT+5+du}, {sg*SLOT}", f"s_add_u32 s{sO}, s{sT+2+du}, s{sO+2}")
            dma(e, 8, R_XA, sO, nt=True)
    nb = NB1
    for sg in range(nb): chunk(sg)
    stamp_init(e)
    att_consts(e)
    get_epoch(e)
    done = 0
    if nb < 4:
        e(f"s_waitcnt vmcnt({7*(nb-1)})"); sig(e, vC, v1_, LAND); done = 1
        if "nogate" not in OPT: lds_wait(e, vC, S0, 1, KVF, sleep=1)
        for sg in range(nb, 4):
            chunk(sg)
            if sg < 3:
                e(f"s_waitcnt vmcnt({7*(sg-done)})"); sig(e, vC, v1_, LAND + 4*done); done += 1
    stamp(e, 1)
    for sg in range(done, 4):
        e(f"s_waitcnt vmcnt({21-7*sg})"); sig(e, vC, v1_, LAND + 4*sg)
    stamp(e, 2)
    e("s_branch L_f2")

sAW, sP, sExp = sT+8, sT+9, sT+10
def att_consts(e):
    e(f"v_and_b32 v{S0}, 31, v0", f"v_cmp_eq_u32 vcc, 16, v{S0}", f"v_mov_b32 v{S0+1}, 0x4f804f80", f"v_lshlrev_b32 v{vQ16}, 4, v0")
    e(f"v_cndmask_b32 v{AV}, 0, v{S0+1}, vcc")
    for r in range(1, 64): e(f"v_mov_b32 v{AV+r}, v{AV}")
    e(f"v_lshlrev_b32 v{vAN}, 4, v{S0}", f"v_add_u32 v{vAN}, {NM_L}, v{vAN}")
    e(f"v_lshrrev_b32 v{vVo}, 5, v0", f"v_lshlrev_b32 v{vVo}, 8, v{vVo}", f"v_and_b32 v{S0+2}, 15, v0", f"v_lshl_add_u32 v{vVo}, v{S0+2}, 4, v{vVo}")
def gather_bases(e):
    e(f"s_sub_u32 s{sAW}, s{sW}, 4", f"s_lshl_b32 s{sO+2}, s{sAW}, 13")
    e(f"s_add_u32 s{sO}, s{sO+2}, {KW}", f"s_add_u32 s{sO+1}, s{sO+2}, {VW}", f"s_add_u32 s{sO+2}, s{sO}, 4096", f"s_add_u32 s{sO+3}, s{sO+1}, 4096")
def gather(e, t0, t1):
    for t in range(t0, t1):
        e(f"buffer_load_dwordx4 {vr(AK+4*t,4)}, v{vQ16}, {sr(R_WS,4)}, s{sO+2*(t>>2)} offen offset:{(t&3)*1024}{SC}")
        e("s_mov_b32 exec_lo, 0xffff", "s_mov_b32 exec_hi, 0xffff")
        for f in (2*t, 2*t+1):
            e(f"buffer_load_dwordx4 {vr(AV+4*f,4)}, v{vVo}, {sr(R_WS,4)}, s{sO+1+2*(t>>2)} offen offset:{(f&7)*512}{SC}")
        e("s_mov_b64 exec, -1")
def att_addrs(e):
    e(f"s_mul_i32 s{sExp}, s{sI}, {OS_PAIR}", f"s_add_u32 s{sExp}, s{sExp}, {OS_L}")
    e(f"v_add_u32 v{vT1}, s{sExp}, v{vQ16}", f"v_lshl_add_u32 v{vT0}, v0, 2, s{sExp}", f"v_add_u32 v{vQ16}, {QI_L}, v{vQ16}")
    e(f"s_lshl_b32 s{sO+4}, s{sI}, 8", f"s_add_u32 m0, s{sO+4}, {PR_L}")

def s_qproj(e):
    vXa, vWa, vXb, vWb, vSt, vLd = 8, 16, 17, 25, 26, 27
    acc, fr, NF, T = 104, 124, 5, 28
    a_, b_, c_, d_ = T, T+1, T+2, T+3
    e.lab("L_q")
    e.c("---- S: Q projection")
    zero_pr(e)
    e(f"s_mov_b32 m0, {CNT}", "s_nop 0", "ds_write_addtid_b32 v2", "s_waitcnt lgkmcnt(0)")
    load_epoch(e)
    e("s_barrier")
    stamp_init(e)
    e(f"v_mov_b32 v{vC}, {CNT}", f"v_mov_b32 v{v1_}, 1")
    if SPF:
        e("s_load_dwordx4 s[44:47], s[0:1], 40", f"s_lshl_b32 s{sO}, s{sIDX}, 2", f"s_add_u32 s{sO}, s{sO}, s{sI}")
        e(f"s_lshl_b32 s{sO+1}, s{sO}, 11", f"s_mul_i32 s{sO}, s{sO}, 1536", "s_waitcnt lgkmcnt(0)")
        e(f"s_add_u32 s44, s44, s{sO+1}", "s_addc_u32 s45, s45, 0", f"s_add_u32 s46, s46, s{sO}", "s_addc_u32 s47, s47, 0")
        for o_ in range(0, 1536, SPF): e(f"s_load_dword s48, s[46:47], {o_}")
        for o_ in range(0, 2048, SPF): e(f"s_load_dword s48, s[44:45], {o_}")
    if "tlb" in OPT:
        e("s_load_dwordx8 s[44:51], s[0:1], 32", "s_load_dwordx2 s[52:53], s[0:1], 64", "s_waitcnt lgkmcnt(0)")
        e(f"s_mov_b32 s{sO}, 0x200000", f"s_mov_b32 s{sO+1}, 0x1ffffc")
        for k, R in enumerate((44, 46, 48, 50, 52, R_WS)): e(f"s_load_dword s{54+k}, s[{R}:{R+1}], 0")
        e(f"s_load_dword s60, s[52:53], s{sO}", f"s_load_dword s61, s[{R_WS}:{R_WS+1}], s{sO}", f"s_load_dword s62, s[46:47], s{sO+1}")
    att_consts(e)
    e(f"s_and_b32 s{sO}, s{sI}, 1", f"s_lshl_b32 s{sO}, s{sO}, 13")
    e(f"v_and_b32 v{a_}, 31, v0", f"v_lshrrev_b32 v{b_}, 5, v0", f"v_and_b32 v{c_}, 15, v0", f"v_xor_b32 v{c_}, v{c_}, v{b_}")
    e(f"v_lshl_add_u32 v{d_}, v{a_}, 8, s{sO}", f"v_lshl_add_u32 v{vXa}, v{c_}, 4, v{d_}")
    for s in range(1, 8): e(f"v_xor_b32 v{vXa+s}, {s<<5}, v{vXa}")
    e(f"v_bfe_u32 v{a_}, v0, 2, 2", f"v_lshl_add_u32 v{c_}, v{b_}, 3, v{a_}", f"v_lshlrev_b32 v{c_}, 7, v{c_}", f"v_lshrrev_b32 v{a_}, 1, v{a_}")
    e(f"s_lshr_b32 s{sO}, s{sI}, 1", f"v_xor_b32 v{a_}, s{sO}, v{a_}", f"v_lshl_add_u32 v{c_}, v{a_}, 6, v{c_}")
    e(f"v_bfe_u32 v{a_}, v0, 4, 1", f"v_lshl_add_u32 v{c_}, v{a_}, 5, v{c_}", f"v_and_b32 v{a_}, 3, v0", f"v_lshl_add_u32 v{c_}, v{a_}, 3, v{c_}")
    e(f"v_add_u32 v{vWa}, 16384, v{c_}", f"v_lshl_add_u32 v{vLd}, v{a_}, 2, v{vC}")
    for s in range(9): e(f"v_add_u32 v{vXb+s}, 65536, v{vXa+s}")
    get_epoch(e)
    e(f"s_mov_b32 s{sT+6}, {hex(f32bits(CSC))}")
    e(f"s_and_b32 s{sO}, s{sI}, 2", f"s_add_u32 s{sO}, s{sO}, s{sI}", f"s_lshl_b32 s{sO}, s{sO}, 10", f"s_add_u32 s{sO}, s{sO}, {QI_L}", f"v_add_u32 v{b_}, s{sO}, v{vQ16}")
    e(f"s_lshl_b32 s{sO}, s{sI}, 2", f"v_add_u32 v{vFa}, s{sO}, v{vC}")
    gather_bases(e)
    def landwait(mask):
        lq = e.uniq("ql")
        e.lab(lq)
        e(f"ds_read_b32 v{a_}, v{vLd} offset:{LAND}", "s_waitcnt lgkmcnt(0)", f"v_cmp_gt_u32 vcc, 5, v{a_}")
        e(f"s_and_b32 s{sO+5}, vcc_lo, 15", f"s_and_b32 s{sO+4}, s{sO+5}, {mask}", f"s_cbranch_scc0 {lq}_d")
        spin_tail(e, lq, 1)
        e.lab(lq + "_d")
    def rd(n):
        sg, s = n >> 3, n & 7
        so = (sg & 1) * SLOT
        xa, wa = (vXa + s, vWa) if sg < 2 else (vXb + s, vWb)
        f = fr + 8 * (n % NF)
        e(f"ds_read_b128 {vr(f,4)}, v{xa} offset:{so}")
        e(f"ds_read_b64_tr_b16 {vr(f+4,2)}, v{wa} offset:{so+s*2048}", f"ds_read_b64_tr_b16 {vr(f+6,2)}, v{wa} offset:{so+s*2048+512}")
    e("s_setprio 3")
    landwait(1)
    stamp(e, 16)
    for n in range(NF): rd(n)
    for n in range(32):
        f = fr + 8 * (n % NF)
        e(f"s_waitcnt lgkmcnt({min(3*(NF-1), 3*(31-n))})", f"{MF32} {vr(acc,16)}, {vr(f+4,4)}, {vr(f,4)}, {'0' if n == 0 else vr(acc,16)}")
        if n + NF < 32:
            if (n + NF) % 8 == 0:
                bit = 1 << ((n + NF) >> 3)
                sk = e.uniq("lok")
                e(f"s_and_b32 s{sO+4}, s{sO+5}, {bit}", f"s_cbranch_scc0 {sk}")
                landwait(bit)
                e.lab(sk)
                if "qst" in OPT: stamp(e, 16 + ((n + NF) >> 3))
            rd(n + NF)
    if "qst" in OPT: stamp(e, 20)
    e(f"v_mov_b32 v{c_}, s{sT+6}", "s_nop 10")
    for r in range(8): e(f"v_pk_mul_f32 {vr(acc+2*r,2)}, {vr(acc+2*r,2)}, {vr(c_,2)} op_sel_hi:[1,0]")
    P = AO
    for j in range(8): e(f"v_cvt_pk_bf16_f32 v{P+j}, v{acc+2*j}, v{acc+2*j+1}")
    e(f"ds_write_b128 v{b_}, {vr(P,4)}", f"ds_write_b128 v{b_}, {vr(P+4,4)} offset:2048")
    sig(e, vC, v1_, ACNT)
    stamp(e, 2)
    lds_wait(e, vFa, S0+2, 2 if 'proxy' in OPT else 1, SOK)
    lds_wait(e, vC, S0+2, 4, GCNT, sleep=2)
    if "sl" in OPT: lds_wait(e, vC, S0+2, 8, QST, sleep=2)
    if "sdelay" in OPT: lds_wait(e, vC, S0+2, 1, RDY1)
    stamp(e, 7)
    gather(e, 0, 8)
    sig(e, vC, v1_, GCNT)

def pk(S, j):
    d = S + (j if j < 4 else 4 + j)
    return f"v_cvt_pk_bf16_f32 v{d}, v{S+2*j}, v{S+2*j+1}"
def rdq(e):
    e(f"ds_read_b128 {vr(AQ,4)}, v{vQ16}")
    for k in range(4): e(f"ds_read_b128 {vr(ANM+4*k,4)}, v{vAN}")
def dump(e, kind):
    e(f"ds_write_b128 v{vT1}, {vr(AO,4)}", f"ds_write_b128 v{vT1}, {vr(AO+4,4)} offset:1024", f"ds_write_b32 v{vT0}, v{AO+8} offset:2048")
    e(f"ds_write_addtid_b32 v{vT1} offset:{0 if kind == 'F' else 1024}")
def advance(e):
    e(f"v_add_u32 v{vT1}, {OS_POS}, v{vT1}", f"v_add_u32 v{vT0}, {OS_POS}, v{vT0}")
def init_o(e, off):
    e(f"ds_read_b128 {vr(AO,4)}, v{vT1} offset:{off}", f"ds_read_b128 {vr(AO+4,4)}, v{vT1} offset:{off+1024}", f"ds_read_b32 v{AO+8}, v{vT0} offset:{off+2048}")

def att_block(e, mode):
    kind = "F" if mode[0] == "F" else "S"
    lo = LOF if kind == "F" else LOS
    def prio(p):
        if YS and mode in YMODES: return
        if mode != "B" and "noprio" not in OPT: e(f"s_setprio {p}")
        elif mode == "B" and "btog" in OPT: e(f"s_setprio {p}")
    for t in range(8):
        Sc, Sn = (S0, S1) if t % 2 == 0 else (S1, S0)
        tp, tn = (t - 1) % 8, (t + 1) % 8
        def X(*toks):
            for k in toks:
                X1(k)
                if YS and mode in YMODES and k in YS: e("s_nop 0")
        def X1(*toks):
            for k in toks: e(f"v_exp_f32 v{Sc+k}, v{Sc+k}" if isinstance(k, int) else pk(Sc, int(k[1:])))
        c0 = "0" if (t == 1 and kind == "F") else vr(AO, 16)
        pv0 = f"{MF32} {vr(AO,16)}, {vr(AV+8*tp,4)}, {vr(Sn,4)}, {c0}"
        pv1 = f"{MF32} {vr(AO,16)}, {vr(AV+8*tp+4,4)}, {vr(Sn+8,4)}, {vr(AO,16)}"
        qk = f"{MF32} {vr(Sn,16)}, {vr(AK+4*tn,4)}, {vr(AQ,4)}, {vr(ANM,16)}"
        if t == 1 and kind == "S":
            X(0); e(pk(Sn, 7)); X(1, 2)
            e("s_waitcnt lgkmcnt(0)", pv0); X(3, "p0", 4, "p1")
            e(pv1); X(5, 6, "p2", 7)
            e(qk); prio(lo)
            X(8, "p3", 9, 10, "p4", 11, 12)
            e("s_wakeup")
            prio(3)
            X("p5", 13, 14, "p6", 15)
            continue
        skip_pv = mode == "F0" and t == 0
        if mode == "F0" and t > 0: e(f"s_waitcnt vmcnt({max(0, 23 - 3*(t+1))})")
        if not skip_pv: e(pv0)
        X(0)
        if not skip_pv: e(pk(Sn, 7))
        X(1, 2)
        if not skip_pv: e(pv1)
        X(3, "p0", 4, "p1")
        if t == 7: e("s_waitcnt lgkmcnt(0)")
        if t == 7 and mode == "B": e(f"v_readfirstlane_b32 s{sPOLL}, v{Sn+4}")
        if skip_pv: e("s_waitcnt vmcnt(20)")
        e(qk)
        prio(lo)
        X(5, 6, "p2", 7, 8, "p3")
        if t == 0 and mode != "F0":
            if YS and mode in YMODES and not any(k in YS for k in (5, 6, 7, 8)): e("s_nop 0")
            if mode == "S":
                dump(e, kind); init_o(e, OS_POS); advance(e)
            elif mode == "F":
                dump(e, kind); advance(e)
            else:
                sk = e.uniq("nodump")
                e(f"s_cmp_eq_u32 s{sP}, {1 if mode == 'F' else 0}", f"s_cbranch_scc1 {sk}")
                dump(e, kind); advance(e)
                if mode == "B": e(f"s_add_u32 s{sExp}, s{sExp}, {OS_POS}")
                e.lab(sk)
                if mode == "B":
                    e(f"s_cmp_ge_u32 s{sPOLL}, s{sExp}", "s_cbranch_scc0 L_swait")
                    e.lab("L_swait_ret")
                    init_o(e, 0)
        X(9)
        if t == 6:
            if mode == "F0":
                e(f"v_mov_b32 v{Sc+4}, {CNT}")
                lds_wait(e, Sc+4, Sc+5, 8, ACNT, sleep=1)
            e(f"v_add_u32 v{vQ16}, 1024, v{vQ16}", f"v_add_u32 v{vAN}, 512, v{vAN}")
            rdq(e)
            if mode == "B": e(f"ds_read_addtid_b32 v{Sc+4}")
        X(10, "p4", 11, 12)
        w = WIN if kind == "F" else 12
        if w == 12: prio(3)
        X("p5", 13)
        if w == 13: prio(3)
        X(14)
        if w == 14: prio(3)
        X("p6", 15)
        if w == 15: prio(3)

def att_finish(e, kind):
    e(f"{MF32} {vr(AO,16)}, {vr(AV+8*7,4)}, {vr(S1,4)}, {vr(AO,16)}", pk(S1, 7), "s_nop 1")
    e(f"{MF32} {vr(AO,16)}, {vr(AV+8*7+4,4)}, {vr(S1+8,4)}, {vr(AO,16)}", "s_nop 11")
    dump(e, kind)
    e("s_waitcnt lgkmcnt(0)", "s_wakeup")
def qk0(e):
    e(f"{MF32} {vr(S0,16)}, {vr(AK,4)}, {vr(AQ,4)}, {vr(ANM,16)}", "s_nop 11")

def f_att(e):
    e.lab("L_f2")
    e("s_setprio 3")
    gather_bases(e)
    e(f"s_lshl_b32 s{sO+4}, s{sI}, 12", f"s_add_u32 s{sO+4}, s{sO+4}, {F1}", f"v_lshl_add_u32 v{vFa}, v0, 7, s{sO+4}")
    stamp(e, 6)
    if "proxy" in OPT:
        e(f"s_lshl_b32 s{sO+4}, s{sI}, 2", f"v_add_u32 v{vFa}, s{sO+4}, v{vC}")
        lds_wait(e, vFa, S0, 1, SOK, sleep=0)
    else: gpoll(e, vFa, S0, 0xffffffff, 0, sleep=1)
    stamp(e, 7)
    gather(e, 0, 8)
    sig(e, vC, v1_, GCNT)
    att_addrs(e)
    stamp(e, 8)
    lds_wait(e, vC, S0, 1, RDY1, sleep=0)
    rdq(e)
    e(f"s_mov_b32 s{sP}, 1", "s_waitcnt vmcnt(23) lgkmcnt(0)")
    stamp(e, 3); cstamp(e, 13)
    qk0(e)
    att_block(e, "F0")
    stamp(e, 21); cstamp(e, 10)
    e.L.append("    .p2align 3")
    e.lab("L_floop")
    att_block(e, "F")
    e(f"s_add_u32 s{sP}, s{sP}, 1", f"s_cmp_lt_u32 s{sP}, 8", "s_cbranch_scc1 L_floop")
    att_finish(e, "F")
    stamp(e, 4); cstamp(e, 11)
    e("s_branch L_f3")

def s_att(e):
    att_addrs(e)
    e(f"s_mov_b32 s{sP}, 0", f"v_mov_b32 v{S0}, m0", "s_setprio 0")
    stamp(e, 8)
    if SHOLD: lds_wait(e, vC, S0+1, SHOLD, HCNT, sleep=16)
    lds_wait(e, S0, S0+1, 1, sleep=6)
    rdq(e)
    e("s_waitcnt vmcnt(0) lgkmcnt(0)")
    stamp(e, 3); cstamp(e, 13)
    qk0(e)
    e.L.append("    .p2align 3")
    e.lab("L_bloop")
    att_block(e, "B")
    e(f"s_add_u32 s{sP}, s{sP}, 1", f"s_cmp_ge_u32 s{sP}, 8", "s_cbranch_scc1 L_sfin")
    e(f"s_cmp_lt_u32 s{sPOLL}, {OS_L + 7*OS_POS}", "s_cbranch_scc1 L_bloop")
    stamp(e, 5)
    e("s_setprio 3")
    e.L.append("    .p2align 3")
    e.lab("L_sloop")
    att_block(e, "S")
    e(f"s_add_u32 s{sP}, s{sP}, 1")
    if STAMPS:
        e(f"s_cmp_lg_u32 s{sP}, 4", "s_cbranch_scc1 L_sns"); stamp(e, 4); cstamp(e, 10); e.lab("L_sns")
    e(f"s_cmp_lt_u32 s{sP}, 8", "s_cbranch_scc1 L_sloop")
    e.lab("L_sfin")
    att_finish(e, "S")
    if "s3pub" in OPT:
        e(f"s_cmp_lg_u32 s{sI}, 3", "s_cbranch_scc1 L_sx")
        stamp(e, 9)
        lane_id(e)
        out_prep(e)
        pub(e, 4, fast=True)
        e(f"v_mov_b32 v{vHC}, {CNT}", f"ds_write_b32 v{vHC}, v{vHC} offset:{QST}", "s_waitcnt lgkmcnt(0)", "s_wakeup")
        e.lab("L_sx")
    finish(e)
    e.lab("L_swait")
    e(f"v_mov_b32 v{S0+4}, m0")
    lds_wait(e, S0+4, S0+5, f"s{sExp}", sleep=4)
    e("s_branch L_swait_ret")

sBX, sBH, sBW, sKC, sBXL, sBHL, sBWL = sT, sT+1, sT+2, sT+3, sT+4, sT+5, sT+6
BA = 8
aq, ak, av, ahk, ahv, MC = 24, 40, 56, 72, 76, 80
MP = MC + 4
FR = 104
def b_prep(e):
    e.c("---- B prep")
    e("v_lshrrev_b32 v20, 3, v0", "v_and_b32 v21, 7, v0", "v_lshrrev_b32 v22, 1, v20", "v_xor_b32 v23, v21, v22", "v_lshlrev_b32 v23, 4, v23")
    e("v_lshl_add_u32 v1, v20, 11, v23", "v_xor_b32 v2, 64, v1")
    e(f"s_lshl_b32 s{sO}, s{sI}, 5", f"v_xor_b32 v3, s{sO}, v1")
    e("v_and_b32 v22, 1, v22", "v_lshlrev_b32 v22, 2, v22", "v_xor_b32 v23, v21, v22", "v_lshlrev_b32 v23, 4, v23")
    e("v_mul_u32_u24 v20, 3072, v20", "v_add_u32 v4, v20, v23", "v_xor_b32 v16, 32, v4")
    e(f"s_and_b32 s{sO}, s{sI}, 1", f"s_lshr_b32 s{sO+1}, s{sI}, 1", f"s_lshl_b32 s{sO+1}, s{sO+1}, 10")
    e(f"s_lshl_b32 s{sBX}, s{sRB}, 16", f"s_max_u32 s{sBH}, s{sBX}, 16384", f"s_sub_u32 s{sBH}, s{sBH}, 16384")
    e(f"s_add_u32 s{sBX}, s{sBX}, s{sO+1}", f"s_add_u32 s{sBH}, s{sBH}, s{sO+1}")
    e(f"s_lshl_b32 s{sO+1}, s{sO}, 15", f"s_add_u32 s{sBX}, s{sBX}, s{sO+1}")
    e(f"s_lshl_b32 s{sO+1}, s{sO}, 13", f"s_add_u32 s{sBH}, s{sBH}, s{sO+1}")
    e(f"s_mul_i32 s{sBW}, s{sI}, {16*3072}", f"s_lshl_b32 s{sO+1}, s{sCB}, 7", f"s_add_u32 s{sBW}, s{sBW}, s{sO+1}")
    e(f"s_lshl_b32 s{sKC}, s{sRB}, 1", f"s_add_u32 s{sKC}, s{sKC}, s{sCB}")
    e(f"s_lshl_b32 s{sBWL}, s{sI}, 11", f"s_add_u32 s{sBXL}, s{sBWL}, {RXO + 2048}", f"s_lshl_b32 s{sBHL}, s{sI}, 9", f"s_add_u32 s{sBHL}, s{sBHL}, {RXO}")
    e("v_and_b32 v20, 31, v0", "v_lshrrev_b32 v21, 5, v0", "v_bfe_u32 v22, v0, 1, 3", "v_xor_b32 v22, v22, v21", "v_lshlrev_b32 v22, 4, v22", "v_lshl_add_u32 v22, v20, 7, v22")
    e(f"s_lshl_b32 s{sO}, s{sO}, 12", f"s_add_u32 s{sO}, s{sO}, {RXO + 2048}", f"v_add_u32 v{BA}, s{sO}, v22")
    for s in range(1, 4): e(f"v_xor_b32 v{BA+s}, {s<<5}, v{BA}")
    e("v_bfe_u32 v20, v0, 2, 2", "v_and_b32 v23, 3, v0", "v_and_b32 v17, 2, v20", "v_or_b32 v18, v17, v21", "v_bfe_u32 v19, v0, 4, 1")
    e(f"s_and_b32 s{sO}, s{sI}, 2", f"v_or_b32 v19, s{sO}, v19", "v_xor_b32 v18, v18, v19")
    e("v_lshl_add_u32 v22, v21, 3, v20", "v_lshlrev_b32 v22, 7, v22", "v_lshl_add_u32 v22, v18, 5, v22", f"v_lshl_add_u32 v{BA+4}, v23, 3, v22")
    e("v_lshrrev_b32 v21, 4, v0", "v_bfe_u32 v22, v0, 1, 3", "v_xor_b32 v22, v22, v21", "v_lshlrev_b32 v22, 4, v22", "v_and_b32 v19, 15, v0")
    e("v_lshl_add_u32 v22, v19, 7, v22", f"v_add_u32 v{BA+5}, {RXO}, v22", f"v_xor_b32 v{BA+6}, 64, v{BA+5}")
    e("v_and_b32 v18, 1, v21", "v_or_b32 v18, v17, v18", f"v_xor_b32 v18, s{sI}, v18")
    e("v_lshl_add_u32 v22, v21, 3, v20", "v_lshlrev_b32 v22, 7, v22", "v_lshl_add_u32 v22, v18, 5, v22", f"v_lshl_add_u32 v{BA+7}, v23, 3, v22")
    e(f"v_mov_b32 v{MC}, {hex(f32bits(-1e30))}")
    for r in range(1, 20): e(f"v_mov_b32 v{MC+r}, v{MC}")
    def setm(reg, r, shift):
        m = 0
        for l in range(64):
            d = (l & 31) - ((r & 3) + 8 * (r >> 2) + 4 * (l >> 5)) + shift
            if 0 <= d <= 7: m |= 1 << l
        if m: e(f"s_mov_b32 exec_lo, {hex(m & 0xffffffff)}", f"s_mov_b32 exec_hi, {hex(m >> 32)}", f"v_mov_b32 v{reg}, 0")
    for r in range(16): setm(MC + r, r, 0)
    e(f"s_cmp_eq_u32 s{sRB}, 0", "s_cbranch_scc1 L_nomp")
    for r in range(12, 16): setm(MP + r, r, 32)
    e.lab("L_nomp")
    e("s_mov_b64 exec, -1")

def h_qprep(e):
    T, QK, SA, SB, KS = 20, 104, 120, 136, 24
    e.c("---- H: max images of positions i, 4+i")
    e(f"v_lshlrev_b32 v{T+2}, 4, v0")
    e(f"s_lshl_b32 s{sO+4}, s{sI}, 13", f"s_add_u32 s{sO+4}, s{sO+4}, {KW + 32768}")
    e(f"s_lshl_b32 s{sO+5}, s{sI}, 12", f"s_add_u32 s{sO+5}, s{sO+5}, {F1 + 16384}", f"v_lshl_add_u32 v{T+3}, v0, 7, s{sO+5}")
    e(f"s_lshl_b32 s{sO+5}, s{sI}, 2", f"v_add_u32 v17, s{sO+5}, v{vHC}")
    e(f"s_lshl_b32 s{sO}, s{sI}, 10", f"s_add_u32 s{sO}, s{sO}, {QI_L}", f"v_add_u32 v{T}, s{sO}, v{T+2}", f"v_and_b32 v18, 0x1ff, v{T+2}")
    e(f"s_lshl_b32 s{sO}, s{sI}, 9", f"s_add_u32 s{sO}, s{sO}, {NM_L}", f"v_add_u32 v18, s{sO}, v18")
    if "proxy" in OPT:
        e(f"v_subrev_u32 v19, 16384, v{T+3}", f"s_sub_u32 s{sO+4}, s{sO+4}, 32768")
        lds_wait(e, vHC, vHT, 5, LAND + PGATE, sleep=1)
        gpoll(e, 19, T + 1, 0xffffffff, 0, sleep=1)
        for t in range(NSAMP): e(f"buffer_load_dwordx4 {vr(KS+4*t,4)}, v{T+2}, {sr(R_WS,4)}, s{sO+4} offen offset:{1024*t}{SC}")
        sig(e, 17, vH1, SOK)
        gpoll_issue(e, T + 3, T + 1, 0xffffffff)
    else:
        lds_wait(e, vHC, vHT, 5, LAND + (8 if "early" in OPT else 12), sleep=1)
        gpoll(e, T + 3, T + 1, 0x5555 if "sub" in OPT else 0xffffffff, 0, sleep=1)
        for t in range(NSAMP): e(f"buffer_load_dwordx4 {vr(KS+4*t,4)}, v{T+2}, {sr(R_WS,4)}, s{sO+4} offen offset:{1024*t}{SC}")
        if "sub" in OPT: gpoll_issue(e, T + 3, T + 1, 0xffffaaaa)
        else: sig(e, 17, vH1, SOK)
    lds_wait(e, vHC, vHT, 4, ACNT, sleep=1)
    e(f"ds_read_b128 {vr(QK,4)}, v{T}", f"ds_read_b128 {vr(QK+4,4)}, v{T} offset:4096", f"s_waitcnt vmcnt({1 if 'sub' in OPT else 0}) lgkmcnt(0)")
    for z in range(2):
        SS = (SA, SB, 40, 56)
        for t in range(NSAMP): e(f"{MF32} {vr(SS[t],16)}, {vr(KS+4*t,4)}, {vr(QK+4*z,4)}, 0")
        e(f"s_nop {12 - NSAMP}")
        m = 152 + 4*z
        regs = [SS[t] + r for t in range(NSAMP) for r in range(16)]
        e(f"v_max_f32 v{m}, v{regs[0]}, v{regs[1]}")
        for k in range(2, len(regs), 2): e(f"v_max3_f32 v{m}, v{m}, v{regs[k]}, v{regs[k+1]}")
        halfmax(e, m)
        e(f"v_sub_f32 v{m}, {hex(f32bits(-MOFF))}, v{m}")
        for r in range(1, 4): e(f"v_mov_b32 v{m+r}, v{m}")
        e(f"ds_write_b128 v18, {vr(m,4)} offset:{2048*z}")
        if z == 0: e(f"s_cmp_eq_u32 s{sI}, 0", "s_cselect_b32 exec_lo, 1, 0", "s_mov_b32 exec_hi, 0", f"ds_write_b32 v{vHC}, v{vH1} offset:{RDY1}", "s_mov_b64 exec, -1")
        else: sig(e, vHC, vH1, ACNT)
        stamp(e, 9 + z)
        if z == 0 and "sub" in OPT:
            gpoll_finish(e, T + 3, T + 1, 0xffffffff if "proxy" in OPT else 0xffffaaaa, 0)
            sig(e, 17, vH1, SOK)

class Lst(list):
    def __call__(self, *x): self.extend(x)
def b_dma_groups(j):
    ro = (j & 1) * RINGS
    G = [Lst() for _ in range(5)]
    g = G[0]
    g(f"s_add_u32 s{sO+1}, s{sKC}, {j}", f"s_and_b32 s{sO+1}, s{sO+1}, 7", f"s_lshl_b32 s{sO+2}, s{sO+1}, 7", f"s_mul_i32 s{sO+1}, s{sO+1}, {64*3072}")
    g(f"s_add_u32 s{sO+1}, s{sO+1}, s{sBW}", f"s_add_u32 s{sO+3}, s{sO+2}, s{sBX}")
    for u in range(2):
        g(f"s_add_u32 m0, s{sBXL}, {ro + u*1024}", f"s_add_u32 s{sO}, s{sO+3}, {u*16384}")
        dma(g, 1 + u, R_XB, sO, nt="bnt" in OPT)
    for p in range(3):
        g = G[1 + p]
        for u in range(2):
            g(f"s_add_u32 m0, s{sBWL}, {ro + p*8192 + u*1024}", f"s_add_u32 s{sO}, s{sO+1}, {p*1024 + u*8*3072}")
            dma(g, 4 if u == 0 else 16, R_WB, sO)
    g = G[4]
    g(f"s_add_u32 m0, s{sBHL}, {ro}", f"s_add_u32 s{sO}, s{sO+2}, s{sBH}", "s_mov_b32 exec_hi, 0")
    dma(g, 3, R_XB, sO)
    g("s_mov_b64 exec, -1")
    return G
def wo_groups(half):
    G = [Lst() for _ in range(4)]
    G[0](f"s_lshl_b32 s{sO+1}, s{sI}, 16", f"s_lshr_b32 s{sO+2}, s{sHP}, 1", f"s_lshl_b32 s{sO+2}, s{sO+2}, 7", f"s_add_u32 s{sO+1}, s{sO+1}, s{sO+2}", f"s_lshl_b32 s{sO+2}, s{sI}, 13")
    for u in range(8):
        g = G[u >> 1]
        g(f"s_add_u32 m0, s{sO+2}, {half*32768 + u*1024}", f"s_add_u32 s{sO}, s{sO+1}, {half*262144 + u*8192}")
        dma(g, 20, R_WO, sO)
    return G
def wo_voff(e):
    e("v_lshrrev_b32 v20, 3, v0", "v_bfe_u32 v21, v0, 4, 1", "v_lshlrev_b32 v21, 2, v21", "v_and_b32 v22, 7, v0", "v_xor_b32 v21, v21, v22", "v_lshlrev_b32 v21, 4, v21")
    e("v_lshl_add_u32 v20, v20, 10, v21", "v_lshlrev_b32 v21, 7, v0")
    e(f"s_cmp_eq_u32 s{sKIND}, 0", f"s_cselect_b32 s{R_WO}, s{R_WOA}, s{R_WOB}", f"s_cselect_b32 s{R_WO+1}, s{R_WOA+1}, s{R_WOB+1}", f"s_mov_b32 s{R_WO+2}, {hex(512 << 10)}")

def b_proj(e):
    D, XB_, HX_, WB_, NBUF = 4, FR, FR + 8, FR + 12, 12
    jobs = []
    def wreads(buf, areg, off):
        return [f"ds_read_b64_tr_b16 {vr(buf,2)}, v{areg} offset:{off}", f"ds_read_b64_tr_b16 {vr(buf+2,2)}, v{areg} offset:{off+512}"]
    for j in range(8):
        ro = (j & 1) * RINGS
        for s in range(4):
            x = XB_ + 4 * (s & 1)
            for p, acc in enumerate((aq, ak, av)):
                w = WB_ + 4 * (len(jobs) % NBUF)
                rds = ([f"ds_read_b128 {vr(x,4)}, v{BA+s} offset:{ro}"] if p == 0 else []) + wreads(w, BA + 4, ro + p*8192 + s*2048)
                A_, B_ = (w, x) if p < 2 else (x, w)
                jobs.append((rds, f"{MF32} {vr(acc,16)}, {vr(A_,4)}, {vr(B_,4)}, {'0' if (j == 0 and s == 0) else vr(acc,16)}"))
            s2, p = s >> 1, 1 + (s & 1)
            w = WB_ + 4 * (len(jobs) % NBUF)
            rds = ([f"ds_read_b128 {vr(HX_,4)}, v{BA+5+s2} offset:{ro}"] if p == 1 else []) + wreads(w, BA + 7, ro + p*8192 + s2*4096)
            acc = ahk if p == 1 else ahv
            A_, B_ = (w, HX_) if p == 1 else (HX_, w)
            jobs.append((rds, f"{MF16} {vr(acc,4)}, {vr(A_,4)}, {vr(B_,4)}, {'0' if (j == 0 and s2 == 0) else vr(acc,4)}"))
    q = []
    nxt = [0]
    def issue(upto):
        while nxt[0] < min(upto, 128):
            if "bnord" not in OPT or nxt[0] < 16:
                e(*jobs[nxt[0]][0]); q.extend([nxt[0]] * len(jobs[nxt[0]][0]))
            nxt[0] += 1
    e("s_waitcnt vmcnt(9)")
    sig(e, vHC, vH1, HCNT)
    lds_wait(e, vHC, vHT, 8, HCNT)
    stamp(e, 16)
    e(f"s_setprio {HM}")
    issue(D)
    G = []
    PA = 13
    for n in range(128):
        j, r = n >> 4, n & 15
        if n in q:
            last = len(q) - 1 - q[::-1].index(n)
            e(f"s_waitcnt lgkmcnt({len(q) - 1 - last})")
            del q[:last + 1]
        e(jobs[n][1] if "bnomf" not in OPT else "s_sleep 1")
        lim = 16 * (j + 1)
        if r < PA or j == 7: issue(min(n + 1 + D, lim))
        if r == 15 - D and j < 7:
            e(f"s_waitcnt vmcnt({1 if (j in (3, 4) and 'wpf' in OPT) else 3 if (j == 1 and 'touch' in OPT) else 0})")
            sig(e, vHC, vH1, HCNT); q.append(-1)
        if r == PA and j < 7:
            if "bwake" in OPT:
                e("s_waitcnt lgkmcnt(0)", "s_wakeup")
            lds_wait(e, vHC, vHT, 4 * (j + 3), HCNT, sleep=BSLEEP); del q[:]
            if j == 3: stamp(e, 17)
            G = b_dma_groups(j + 2) if j < 6 else wo_groups(0)
            if j == 0 and "touch" in OPT:
                g = Lst()
                g(f"s_lshl_b32 s{sO}, s{sRB}, 3", f"s_add_u32 s{sO}, s{sO}, s{sI}", f"s_lshl_b32 s{sO}, s{sO}, 3", f"s_add_u32 s{sO}, s{sO}, s{sCB}", f"s_mul_i32 s{sO}, s{sO}, {REC}", f"s_add_u32 s{sO}, s{sO}, {OA}")
                g("s_mov_b64 exec, 0x3ff", f"buffer_load_dword v22, v21, {sr(R_WS,4)}, s{sO} offen", f"s_add_u32 s{sO}, s{sO}, {32*REC}", f"buffer_load_dword v22, v21, {sr(R_WS,4)}, s{sO} offen")
                g(f"s_lshl_b32 s{sO}, s{sIDX}, 10", f"s_add_u32 s{sO}, s{sO}, {F4}", "s_mov_b64 exec, 0xff", f"buffer_load_dword v22, v21, {sr(R_WS,4)}, s{sO} offen", "s_mov_b64 exec, -1")
                G.append(g)
            if j in (2, 3) and "wpf" in OPT:
                g = Lst()
                g(f"s_and_b32 s{sO}, s{sIDX}, 31", f"s_lshl_b32 s{sO}, s{sO}, 2", f"s_add_u32 s{sO}, s{sO}, s{sI}", f"s_lshl_b32 s{sO}, s{sO}, 12", "s_mov_b32 exec_hi, 0")
                g(f"buffer_load_dword v22, v21, {sr(R_WOB if j == 2 else R_WOA,4)}, s{sO} offen", "s_mov_b64 exec, -1")
                G.append(g)
        if r >= PA and j < 7: issue(n + 1 + D - (1 if r < 15 else 0))
        for _ in range(2):
            if G: e(*G.pop(0))
    e("s_setprio 3")

def b_attn(e):
    Qf, Kf, Vf, Kp, Vp = 104, 112, 120, 128, 136
    PB = 140
    M = 152
    e.c("---- local attention")
    e(f"s_setprio {APR}")
    e("v_bfe_u32 v9, v0, 3, 1", "v_lshlrev_b32 v10, 10, v9", "v_bfe_u32 v9, v0, 4, 1", "v_lshl_add_u32 v10, v9, 7, v10")
    e("v_and_b32 v11, 7, v0", "v_lshl_add_u32 v10, v11, 4, v10", "v_lshrrev_b32 v12, 5, v0", "v_lshl_add_u32 v10, v12, 3, v10")
    e(f"s_and_b32 s{sO}, s{sI}, 2", f"s_lshl_b32 s{sO}, s{sO}, 10", f"s_add_u32 s{sO}, s{sO}, {EX_L}", f"s_and_b32 s{sO+1}, s{sI}, 1")
    e(f"s_lshl_b32 s{sO+2}, s{sO+1}, 8", f"s_add_u32 s{sO+2}, s{sO+2}, s{sO}", f"v_add_u32 v10, s{sO+2}, v10")
    e("v_lshlrev_b32 v13, 10, v12", "v_lshl_add_u32 v13, v9, 8, v13", "v_and_b32 v14, 15, v0", "v_lshl_add_u32 v13, v14, 3, v13")
    e(f"s_lshl_b32 s{sO+2}, s{sO+1}, 7", f"s_add_u32 s{sO+2}, s{sO+2}, s{sO}", f"v_add_u32 v13, s{sO+2}, v13")
    for j in range(4): e(f"v_cvt_pk_bf16_f32 v{16+j}, v{ahk+2*j}, v{ahk+2*j+1}")
    e("ds_write_b64 v10, v[16:17]", "ds_write_b64 v13, v[18:19] offset:512")
    sig(e, vHC, vH1, HCNT)
    e(f"s_lshl_b32 s{sO}, s{sI}, 10", f"s_add_u32 s{sO}, s{sO}, {EX_L}")
    e("v_lshl_add_u32 v11, v12, 3, v11", f"v_lshl_add_u32 v11, v11, 4, s{sO}", f"v_lshl_add_u32 v14, v0, 3, s{sO}")
    for j in range(8): e(f"v_cvt_pk_bf16_f32 v{Kf+j}, v{ak+2*j}, v{ak+2*j+1}")
    for j in range(8): e(f"v_cvt_pk_bf16_f32 v{Qf+j}, v{aq+2*j}, v{aq+2*j+1}")
    Sc0, Sc1, Sp = 24, 40, 8 + 56
    lds_wait(e, vHC, vHT, 40, HCNT)
    e(f"ds_read_b128 {vr(Kp,4)}, v11", f"ds_read_b128 {vr(Kp+4,4)}, v11 offset:256", f"ds_read_b64 {vr(Vp+2,2)}, v14 offset:512")
    e(f"s_setprio {HM}")
    e(f"{MF32} {vr(Sc0,16)}, {vr(Kf,4)}, {vr(Qf,4)}, {vr(MC,16)}", f"{MF32} {vr(Sc1,16)}, {vr(Kf+4,4)}, {vr(Qf+4,4)}, {vr(MC,16)}")
    e(f"s_setprio {APR}")
    for g in wo_groups(1): e(*g)
    for j in range(8): e(f"v_cvt_pk_bf16_f32 v{Vf+j}, v{av+2*j}, v{av+2*j+1}")
    for r in (Vp, Vp+1): e(f"v_mov_b32 v{r}, 0")
    for r in range(12): e(f"v_mov_b32 v{PB+r}, 0")
    e(f"s_lshl_b32 s{sO+1}, s{sRB}, 1", f"s_and_b32 s{sO+2}, s{sI}, 1", f"s_add_u32 s{sO+1}, s{sO+1}, s{sO+2}", f"s_lshl_b32 s{sO+1}, s{sO+1}, 15")
    e(f"s_lshl_b32 s{sO+2}, s{sCB}, 2", f"s_and_b32 s{sO+3}, s{sI}, 2", f"s_add_u32 s{sO+2}, s{sO+2}, s{sO+3}", f"s_lshl_b32 s{sO+2}, s{sO+2}, 10")
    e(f"s_add_u32 s{sO+1}, s{sO+1}, s{sO+2}", f"s_add_u32 s{sO+1}, s{sO+1}, {OB}")
    e("v_lshlrev_b32 v9, 4, v0", f"v_mov_b32 v22, {hex(f32bits(CSC))}", "s_waitcnt lgkmcnt(0)")
    for hd in range(2):
        Sc = (Sc0, Sc1)[hd]
        e(f"s_setprio {HM}", f"{MF32} {vr(Sp,16)}, {vr(Kp+4*hd,4)}, {vr(Qf+4*hd,4)}, {vr(MP,16)}", f"s_setprio {APR}")
        for k in range(4): e(f"v_max_f32 v{M+k}, v{Sc+k}, v{Sc+8+k}")
        e(f"v_max3_f32 v10, v{M}, v{M+1}, v{M+2}", "s_nop 5")
        for k in range(4): e(f"v_max3_f32 v{M+4+k}, v{Sc+4+k}, v{Sc+12+k}, v{Sp+12+k}")
        e(f"v_max3_f32 v10, v10, v{M+3}, v{M+4}", f"v_max3_f32 v10, v10, v{M+5}, v{M+6}", f"v_max_f32 v10, v10, v{M+7}")
        halfmax(e, 10)
        e("v_mul_f32 v10, v22, v10")
        for k in range(4): e(f"v_pk_fma_f32 {vr(M+2*k,2)}, {vr(M+2*k,2)}, v[22:23], v[10:11] op_sel_hi:[1,0,0] neg_lo:[0,0,1] neg_hi:[0,0,1]")
        for k in range(8): e(f"v_exp_f32 v{M+k}, v{M+k}")
        def cv(mask, dst, src):
            e(f"s_mov_b32 exec_lo, {hex(mask)}", f"s_mov_b32 exec_hi, {hex(mask)}")
            e(f"v_cvt_pk_bf16_f32 v{dst}, v{src}, v{src+1}", f"v_cvt_pk_bf16_f32 v{dst+1}, v{src+2}, v{src+3}")
        cv(0x0000ffff, PB, M); cv(0xffff0000, PB+4, M)
        cv(0x00ffff00, PB+2, M+4); cv(0xff000000, PB+6, M+4); cv(0x000000ff, PB+10, M+4)
        e("s_mov_b64 exec, -1")
        e(f"v_pk_add_f32 {vr(M,2)}, {vr(M,2)}, {vr(M+2,2)}", f"v_pk_add_f32 {vr(M+4,2)}, {vr(M+4,2)}, {vr(M+6,2)}")
        e(f"s_setprio {HM}")
        e(f"{MF32} {vr(Sc,16)}, {vr(Vf,4)}, {vr(PB,4)}, 0", f"{MF32} {vr(Sc,16)}, {vr(Vf+4,4)}, {vr(PB+4,4)}, {vr(Sc,16)}", f"{MF32} {vr(Sc,16)}, {vr(Vp,4)}, {vr(PB+8,4)}, {vr(Sc,16)}")
        e(f"s_setprio {APR}")
        e(f"v_pk_add_f32 {vr(M,2)}, {vr(M,2)}, {vr(M+4,2)}", f"v_add_f32 v10, v{M}, v{M+1}", "v_mov_b32 v11, v10", "s_nop 1")
        e("v_permlane32_swap_b32 v10, v11", "s_nop 0", "v_add_f32 v10, v10, v11", "v_rcp_f32 v10, v10", "s_nop 2")
        O = Sc + 8 * hd
        for k in range(4): e(f"v_pk_mul_f32 {vr(O+2*k,2)}, {vr(O+2*k,2)}, v[10:11] op_sel_hi:[1,0]")
        o = 12 + 4 * hd
        for j in range(4): e(f"v_cvt_pk_bf16_f32 v{o+j}, v{O+2*j}, v{O+2*j+1}")
        e(f"buffer_store_dwordx4 {vr(o,4)}, v9, {sr(R_WS,4)}, s{sO+1} offen offset:{1024*hd}{SC}")

vWt, vPo, vCk, vSt, vL16, vFl, vL4, vOC = 8, 9, 10, 11, 1, 2, 3, 4
tA, tB, vWt1, tD = 12, 13, 14, 15
GACC, GO, GW = 16, 48, 132
sTK, sOut = sT, sT+1
def out_table(e):
    W, Po, Ck, St = 164, 165, 166, 167
    e("v_lshrrev_b32 v30, 5, v0", "v_bfe_u32 v31, v0, 2, 2", "v_lshl_add_u32 v31, v30, 2, v31", f"v_lshlrev_b32 v{W}, 7, v31")
    e("v_bfe_u32 v31, v0, 3, 1", f"v_lshl_add_u32 v{W}, v31, 6, v{W}")
    e("v_and_b32 v31, 1, v0", f"v_lshl_add_u32 v{W}, v31, 5, v{W}", "v_bfe_u32 v31, v0, 1, 1", f"v_lshl_add_u32 v{W}, v31, 3, v{W}")
    e("v_bfe_u32 v31, v0, 4, 1", f"v_lshl_add_u32 v{W}, v31, 4, v{W}")
    e(f"v_and_b32 v{St}, 31, v0", f"v_lshlrev_b32 v{St}, 11, v{St}", f"v_lshl_add_u32 v{St}, v30, 5, v{St}")
    e(f"v_lshlrev_b32 v{Ck}, 2, v0", f"v_lshlrev_b32 v{Po}, 7, v0")
    e(f"v_lshlrev_b32 v31, 4, v0", f"v_add_u32 v31, {TB_L}, v31", "ds_write_b128 v31, v[164:167]")
def out_prep(e):
    e(f"v_lshlrev_b32 v{vL16}, 4, v0", f"v_add_u32 v{vFl}, {TB_L}, v{vL16}", f"ds_read_b128 v[8:11], v{vFl}")
    e(f"v_and_b32 v{vOC}, 3, v0", f"v_lshlrev_b32 v{vOC}, 8, v{vOC}", f"v_add_u32 v{vOC}, {PR_L + 1024}, v{vOC}")
    e(f"v_and_b32 v{vL4}, 31, v0", f"v_lshlrev_b32 v{vL4}, 2, v{vL4}")
    e(f"s_lshl_b32 s{sTK}, s{sTB}, 2", f"s_add_u32 s{sTK}, s{sTK}, s{sI}")

def pry_wait(e, lim, sleep=6):
    l = e.uniq("hp")
    e.lab(l)
    e(f"ds_read_b32 v{vHT}, v{vOC}", "s_waitcnt lgkmcnt(0)", f"v_cmp_gt_u32 vcc, {lim}, v{vHT}", f"s_cbranch_vccz {l}_d")
    spin_tail(e, l, sleep)
    e.lab(l + "_d")

pub_sites = []
def pub(e, add, keep=False, fast=False):
    site = len(pub_sites); pub_sites.append(site)
    e(f"s_add_u32 s{sO+4}, s{sI}, {add}", f"s_mov_b32 s{sRET}, {site}")
    if not fast:
        e(f"s_mul_i32 s{sO}, s{sO+4}, {OS_POS}", f"s_add_u32 s{sO}, s{sO}, {OS_L - OS_POS}")
        pry_wait(e, f"s{sO}", sleep=PSL)
    e("s_branch L_pub")
    e.lab(f"L_pub_ret{site}")

def pub_routine(e):
    P = GO
    site = 0
    e.lab("L_pub")
    e(f"s_mul_i32 s{sO+2}, s{sO+4}, {OS_POS}", f"s_add_u32 s{sO+2}, s{sO+2}, {OS_L}")
    e(f"v_add_u32 v{tA}, s{sO+2}, v{vL16}", f"v_add_u32 v{tB}, s{sO+2}, v{vL4}")
    e(f"s_and_b32 s{sO}, s{sO+4}, 1", f"s_lshl_b32 s{sO}, s{sO}, 2", f"s_lshr_b32 s{sO+1}, s{sO+4}, 1", f"s_add_u32 s{sO}, s{sO}, s{sO+1}")
    e(f"s_lshl_b32 s{sO+1}, s{sRB}, 3", f"s_add_u32 s{sO}, s{sO}, s{sO+1}", f"s_lshl_b32 s{sO}, s{sO}, 3", f"s_add_u32 s{sO}, s{sO}, s{sCB}")
    e(f"s_mul_i32 s{sO+3}, s{sO}, {REC}", f"s_add_u32 s{sO+3}, s{sO+3}, {OA}")
    e(f"s_lshl_b32 s{sO+5}, s{sIDX}, 3", f"s_add_u32 s{sO+5}, s{sO+5}, s{sO+4}", f"s_lshl_b32 s{sO+5}, s{sO+5}, 7", f"s_add_u32 s{sO+5}, s{sO+5}, {F4}")
    e(f"s_mov_b32 s{sO+1}, {hex(f32bits(LMAX))}")
    pry_wait(e, f"s{sO+2}", sleep=3)
    e(f"ds_read2st64_b32 {vr(P+32,2)}, v{tB} offset0:8 offset1:17", f"ds_read2st64_b32 {vr(P+34,2)}, v{tB} offset0:26 offset1:35")
    for a in range(2):
        for s in range(4): e(f"ds_read_b128 {vr(P+8*s+4*a,4)}, v{tA} offset:{s*OS_PAIR + a*1024}")
    e("s_waitcnt lgkmcnt(8)", f"v_pk_add_f32 {vr(P+32,2)}, {vr(P+32,2)}, {vr(P+34,2)}", f"v_add_f32 v{P+34}, v{P+32}, v{P+33}", f"v_rcp_f32 v{P+32}, v{P+34}")
    for a in range(2):
        e(f"s_waitcnt lgkmcnt({4-4*a})")
        for k in range(2):
            a_, b_, c_, d_ = (vr(P + 8*s + 4*a + 2*k, 2) for s in range(4))
            e(f"v_pk_add_f32 {a_}, {a_}, {b_}", f"v_pk_add_f32 {c_}, {c_}, {d_}", f"v_pk_add_f32 {a_}, {a_}, {c_}")
    e(f"v_pk_mul_f32 {vr(P+8,2)}, {vr(P,2)}, 0")
    for k in range(1, 4): e(f"v_pk_fma_f32 {vr(P+8,2)}, {vr(P+2*k,2)}, 0, {vr(P+8,2)}")
    e(f"v_add_f32 v{P+8}, v{P+8}, v{P+9}", f"v_add_f32 v{P+8}, v{P+8}, v{P+34}")
    e(f"v_cmp_ngt_f32 vcc, s{sO+1}, v{P+8}" if "forcefb" not in OPT else "v_cmp_eq_u32 vcc, v0, v0", "s_cbranch_vccnz L_exact")
    e(f"v_max3_f32 v{P+8}, abs(v{P}), abs(v{P+1}), abs(v{P+2})", f"v_max3_f32 v{P+9}, abs(v{P+3}), abs(v{P+4}), abs(v{P+5})")
    e(f"v_max3_f32 v{P+8}, v{P+8}, abs(v{P+6}), abs(v{P+7})", f"v_max_f32 v{P+8}, v{P+8}, v{P+9}")
    e(f"v_cmp_gt_f32 vcc, {hex(f32bits(2.0 ** -104))}, v{P+8}", "s_cbranch_vccnz L_exact")
    e.lab(f"L_exact_ret{site}")
    for k in range(4): e(f"v_pk_mul_f32 {vr(P+2*k,2)}, {vr(P+2*k,2)}, {vr(P+32,2)} op_sel_hi:[1,0]")
    for k in range(4): e(f"v_cvt_pk_bf16_f32 v{164+k}, v{P+2*k}, v{P+2*k+1}")
    e(f"s_cmp_ge_u32 s{sO+4}, {2*TAGH}", "s_cbranch_scc1 L_pub_tag")
    e(f"buffer_store_dwordx4 v[164:167], v{vL16}, {sr(R_WS,4)}, s{sO+3} offen{SC}", "s_waitcnt vmcnt(0)")
    set_flag(e, sO+5, tA, tB)
    e("s_branch L_pub_x")
    e.lab("L_pub_tag")
    mk_ck(e, tD, 164)
    if FASTH < 4:
        e(f"s_cmp_lt_u32 s{sO+4}, {2*FASTH}", "s_cbranch_scc1 L_pub_nf", f"s_add_u32 s{sO}, s{sO+3}, {FAST}")
        e(f"buffer_store_dwordx4 v[164:167], v{vL16}, {sr(R_WS,4)}, s{sO} offen", f"buffer_store_dword v{tD}, v{vCk}, {sr(R_WS,4)}, s{sO} offen offset:1024")
        e.lab("L_pub_nf")
    e(f"buffer_store_dwordx4 v[164:167], v{vL16}, {sr(R_WS,4)}, s{sO+3} offen{SC}", f"buffer_store_dword v{tD}, v{vCk}, {sr(R_WS,4)}, s{sO+3} offen offset:1024{SC}")
    set_flag(e, sO+5, tA, tB)
    e.lab("L_pub_x")
    for s in pub_sites[:-1]: e(f"s_cmp_eq_u32 s{sRET}, {s}", f"s_cbranch_scc1 L_pub_ret{s}")
    e(f"s_branch L_pub_ret{pub_sites[-1]}")

def exact(e):
    O, Q, Kr, V, S, NB, m, vo = GO, GO+36, GO+40, GO+44, GO+52, GO+68, GO+84, GO+86
    sK, sV = sO, sO+1
    e.lab("L_exact")
    e(f"s_mov_b32 s{sT+4}, 1", "s_waitcnt vmcnt(0)")
    e(f"s_lshl_b32 s{sK}, s{sO+4}, 10", f"s_add_u32 s{sK}, s{sK}, {QI_L}", f"v_add_u32 v{m}, s{sK}, v{vL16}", f"ds_read_b128 {vr(Q,4)}, v{m}")
    e(f"v_and_b32 v{m}, 31, v0", f"v_cmp_eq_u32 vcc, 16, v{m}", f"v_mov_b32 v{m+1}, 0x4f804f80", f"v_lshrrev_b32 v{vo}, 5, v0", f"v_cndmask_b32 v{V}, 0, v{m+1}, vcc")
    for r in range(1, 8): e(f"v_mov_b32 v{V+r}, v{V}")
    e(f"v_lshlrev_b32 v{vo}, 8, v{vo}", f"v_and_b32 v{m}, 15, v0", f"v_lshl_add_u32 v{vo}, v{m}, 4, v{vo}")
    for r in range(16): e(f"v_mov_b32 v{O+r}, 0")
    e(f"v_mov_b32 v{m}, 0xff800000", f"s_mov_b32 s{sK}, {KW}", "s_waitcnt lgkmcnt(0)")
    e.lab("L_ex1")
    e(f"buffer_load_dwordx4 {vr(Kr,4)}, v{vL16}, {sr(R_WS,4)}, s{sK} offen{SC}", "s_waitcnt vmcnt(0)")
    e(f"{MF32} {vr(S,16)}, {vr(Kr,4)}, {vr(Q,4)}, 0", "s_nop 11")
    for k in range(0, 16, 2): e(f"v_max3_f32 v{m}, v{m}, v{S+k}, v{S+k+1}")
    e(f"s_add_u32 s{sK}, s{sK}, 1024", f"s_cmp_lt_u32 s{sK}, {KW + 65536}", "s_cbranch_scc1 L_ex1")
    halfmax(e, m)
    for r in range(16): e(f"v_sub_f32 v{NB+r}, 0, v{m}")
    e(f"s_mov_b32 s{sK}, {KW}", f"s_mov_b32 s{sV}, {VW}")
    e.lab("L_ex2")
    e(f"buffer_load_dwordx4 {vr(Kr,4)}, v{vL16}, {sr(R_WS,4)}, s{sK} offen{SC}", "s_mov_b32 exec_lo, 0xffff", "s_mov_b32 exec_hi, 0xffff")
    e(f"buffer_load_dwordx4 {vr(V,4)}, v{vo}, {sr(R_WS,4)}, s{sV} offen{SC}", f"buffer_load_dwordx4 {vr(V+4,4)}, v{vo}, {sr(R_WS,4)}, s{sV} offen offset:512{SC}")
    e("s_mov_b64 exec, -1", "s_waitcnt vmcnt(0)")
    e(f"{MF32} {vr(S,16)}, {vr(Kr,4)}, {vr(Q,4)}, {vr(NB,16)}", "s_nop 11")
    for k in range(16): e(f"v_exp_f32 v{S+k}, v{S+k}")
    e("s_nop 0")
    for j in range(8): e(pk(S, j))
    e("s_nop 1", f"{MF32} {vr(O,16)}, {vr(V,4)}, {vr(S,4)}, {vr(O,16)}", f"{MF32} {vr(O,16)}, {vr(V+4,4)}, {vr(S+8,4)}, {vr(O,16)}")
    e(f"s_add_u32 s{sK}, s{sK}, 1024", f"s_add_u32 s{sV}, s{sV}, 1024", f"s_cmp_lt_u32 s{sK}, {KW + 65536}", "s_cbranch_scc1 L_ex2")
    e("s_nop 11", f"v_mov_b32 v{m}, v{O+8}", "s_nop 1", f"v_permlane32_swap_b32 v{O+8}, v{m}", "s_nop 0", f"v_rcp_f32 v{GO+32}, v{O+8}", "s_nop 0")
    e("s_branch L_exact_ret0")

def fetch(e, hl, c0, c1, base, ck=None):
    for c in range(c0, c1):
        e(f"s_add_u32 s{sO}, s{sT+2}, {(hl*8 + c)*REC}")
        e(f"buffer_load_dwordx4 {vr(base+4*c,4)}, v{vL16}, {sr(R_WS,4)}, s{sO} offen{SC}")
        if ck is not None: e(f"buffer_load_dword v{ck+c}, v{vCk}, {sr(R_WS,4)}, s{sO} offen offset:1024{SC}")
def verify(e, c0, c1, base, ck, younger, hl=3, sleep=0):
    l = e.uniq("vf")
    e(f"s_waitcnt vmcnt({younger})", f"s_branch {l}_v")
    e.lab(l)
    if hl >= FASTH:
        e(f"s_add_u32 s{sT+6}, s{sT+6}, 1", f"s_and_b32 s{sO}, s{sT+6}, {FTRY-1}", f"s_cselect_b32 s{sO}, 0, {FAST}", f"s_xor_b32 s{sT+5}, s{sT+5}, s{sO}", f"s_add_u32 s{sT+2}, s{sT+3}, s{sT+5}")
    fetch(e, hl, c0, c1, base, ck)
    e("s_waitcnt vmcnt(0)")
    e.lab(l + "_v")
    for c in range(c0, c1): chk(e, tA, tB, base + 4*c, ck + c, c == c0)
    e(f"v_cmp_ne_u32 vcc, 0, v{tA}", f"s_cbranch_vccz {l}_d")
    spin_tail(e, l, sleep)
    e.lab(l + "_d")
    e(f"s_mov_b32 s{sT+6}, 0")
def mul_a(e, steps, pre=True, vm=None, after=None):
    n = len(steps)
    def rdw(k):
        b = GW + 8*(k & 3); o = steps[k][0] * 2048
        for ct, va in enumerate((vWt, vWt1)):
            e(f"ds_read_b64_tr_b16 {vr(b+4*ct,2)}, v{va} offset:{o}", f"ds_read_b64_tr_b16 {vr(b+4*ct+2,2)}, v{va} offset:{o+1024}")
    if pre:
        for k in range(2): rdw(k)
        return
    for k in range(n):
        if k + 2 < n: rdw(k + 2)
        e(f"s_waitcnt {'vmcnt(%d) ' % vm(k) if vm else ''}lgkmcnt({min(8, 4*(n-1-k))})")
        for ct in range(2):
            e(f"{MF32} {vr(GACC+16*ct,16)}, {vr(GW+8*(k&3)+4*ct,4)}, {vr(steps[k][1],4)}, {'0' if steps[k][0] == 0 else vr(GACC+16*ct,16)}")
        if after: after(k)
def gpoll_s(e, vaddr, vtmp, pat, sleep):
    l = e.uniq("gp")
    e(f"s_lshl_b32 exec_lo, {hex(pat)}, s{sT+7}", "s_mov_b32 exec_hi, exec_lo")
    e.lab(l)
    e(f"buffer_load_dword v{vtmp}, v{vaddr}, {sr(R_WS,4)}, s{sT+8} offen sc1", "s_waitcnt vmcnt(0)")
    e(f"v_cmp_ne_u32 vcc, s{sEP}, v{vtmp}", "s_and_b64 exec, exec, vcc", f"s_cbranch_execz {l}_d")
    spin_tail(e, l, sleep)
    e.lab(l + "_d")
    e("s_mov_b64 exec, -1")

def out_store(e):
    e("s_nop 10")
    for ct in range(2):
        for j in range(8): e(f"v_cvt_pk_bf16_f32 v{GW+8*ct+j}, v{GACC+16*ct+2*j}, v{GACC+16*ct+2*j+1}")
        for z in range(2): e(f"buffer_store_dwordx4 {vr(GW+8*ct+4*z,4)}, v{vSt}, {sr(R_OUT,4)}, s{sOut} offen offset:{64*ct+16*z}")

def late_pubs(e):
    e.lab("L_latepub")
    e(f"s_cmp_eq_u32 s{sI}, 3", "s_cbranch_scc1 L_lpx")
    pub(e, 4)
    e.lab("L_lpx")
    finish(e)

def h_main(e):
    e.lab("L_h2")
    srds(e, (R_XB, R_WB, R_WOB, R_WOA, R_OUT))
    b_prep(e)
    out_table(e)
    if PFB:
        import re as _re
        lds_wait(e, vHC, vHT, 5, LAND + PFG, sleep=1)
        e("s_mov_b32 exec_lo, 0x01010101", "s_mov_b32 exec_hi, 0x01010101")
        for j in range(PFB):
            for g in b_dma_groups(j)[:4]:
                for x in g:
                    if "m0" in x: continue
                    m = _re.match(r"buffer_load_dwordx4 (v\d+), (.*) offen.* lds", x)
                    e(f"buffer_load_dword v100, {m.group(1)}, {m.group(2)} offen" if m else x)
        e("s_mov_b64 exec, -1")
    h_qprep(e)
    if "noH" in OPT: finish(e)
    wo_voff(e)
    lds_wait(e, vHC, vHT, 8, GCNT, sleep=2)
    for j in range(2):
        for g in b_dma_groups(j): e(*g)
    stamp(e, 4)
    b_proj(e)
    stamp(e, 5)
    b_attn(e)
    e("s_setprio 3")
    e(f"s_lshl_b32 s{sO+5}, s{sIDX}, 2", f"s_add_u32 s{sO+5}, s{sO+5}, s{sI}", f"s_lshl_b32 s{sO+5}, s{sO+5}, 7", f"s_add_u32 s{sO+5}, s{sO+5}, {F3}")
    out_prep(e)
    e("s_waitcnt vmcnt(0)")
    set_flag(e, sO+5, tA, tB)
    sig(e, vHC, vH1, HCNT)
    stamp(e, 6)
    e(f"s_cmp_eq_u32 s{sKIND}, 0", "s_cbranch_scc1 L_latepub")
    e.c("---- B out-projection")
    e(f"s_lshr_b32 s{sO+2}, s{sTK}, 1", f"s_lshl_b32 s{sOut}, s{sO+2}, 17", f"s_and_b32 s{sO+3}, s{sI}, 1", f"s_lshl_b32 s{sO}, s{sO+3}, 11", f"s_add_u32 s{sOut}, s{sOut}, s{sO}")
    e(f"s_lshl_b32 s{sO}, s{sHP}, 6", f"s_add_u32 s{sOut}, s{sOut}, s{sO}", f"s_add_u32 s{sOut}, s{sOut}, {1024 - 64}")
    e(f"s_lshl_b32 s{sO+2}, s{sO+2}, 12", f"s_lshl_b32 s{sO+3}, s{sO+3}, 7", f"s_add_u32 s{sO+2}, s{sO+2}, s{sO+3}", f"s_add_u32 s{sO+2}, s{sO+2}, {F3}")
    e(f"v_lshl_add_u32 v{vFl}, v0, 8, s{sO+2}")
    e(f"s_lshl_b32 s{sT+2}, s{sTK}, 15", f"s_add_u32 s{sT+2}, s{sT+2}, {OB}")
    gpoll(e, vFl, vHT, 0xffff, 0, sleep=F3SLEEP)
    stamp(e, 7)
    NB = 21
    oreg = lambda k: GO + 4 * (k % NB)
    def ldo(k):
        e(f"s_add_u32 s{sT+3}, s{sT+2}, {(k>>2)*4096}", f"buffer_load_dwordx4 {vr(oreg(k),4)}, v{vL16}, {sr(R_WS,4)}, s{sT+3} offen offset:{(k&3)*1024}{SC}")
    for k in range(NB):
        ldo(k)
        if OBW and k >= OBW: e(f"s_waitcnt vmcnt({OBW})")
    lds_wait(e, vHC, vHT, 44, HCNT)
    e(f"v_lshl_add_u32 v{vSt}, v{vL4}, 9, v{vSt}", f"v_xor_b32 v{vWt1}, 64, v{vWt}")
    stamp(e, 8)
    e(f"s_setprio {FM}")
    SB_ = [(k, oreg(k)) for k in range(32)]
    if HGATE:
        S1_, S2_ = SB_[:32-NB], SB_[32-NB:]
        mul_a(e, S1_)
        mul_a(e, S1_, pre=False, vm=lambda k: min(OBW or 63, NB - 1), after=lambda k: ldo(k + NB))
        stamp(e, 18)
        mul_a(e, S2_)
        if HGATE == 8: lds_wait(e, vHC, vHT, 1, QST, sleep=PSL)
        else: pry_wait(e, OS_L + HGATE*OS_POS, sleep=PSL)
        e("s_setprio 1")
        mul_a(e, S2_, pre=False, vm=lambda k: NB - 1 - k)
    else:
        mul_a(e, SB_)
        mul_a(e, SB_, pre=False, vm=lambda k: min(NB - 1, 31 - k), after=lambda k: ldo(k + NB) if k + NB < 32 else None)
    out_store(e)
    finish(e)

def f_out(e):
    e.lab("L_f3")
    e.c("---- output stage A")
    if "noH" in OPT or "noF" in OPT: finish(e)
    srds(e, (R_OUT,))
    lane_id(e)
    out_prep(e)
    e(f"v_mov_b32 v{vHC}, {CNT}")
    pub(e, 0)
    stamp(e, 5)
    e(f"s_cmp_lg_u32 s{sKIND}, 0", "s_cbranch_scc1 L_latepub")
    e(f"s_lshl_b32 s{sOut}, s{sTK}, 16", f"s_lshl_b32 s{sO}, s{sHP}, 6", f"s_add_u32 s{sOut}, s{sOut}, s{sO}")
    e(f"v_xor_b32 v{vWt1}, 64, v{vWt}")
    e(f"s_mul_i32 s{sT+3}, s{sTK}, {32*REC}", f"s_add_u32 s{sT+3}, s{sT+3}, {OA}", f"s_mov_b32 s{sT+2}, s{sT+3}", f"s_mov_b32 s{sT+6}, 0")
    e(f"s_and_b32 s{sT+7}, s{sI}, 1", f"s_lshr_b32 s{sT+8}, s{sTK}, 1", f"s_lshl_b32 s{sT+8}, s{sT+8}, 13", f"s_add_u32 s{sT+8}, s{sT+8}, {F4}")
    e(f"s_mul_i32 s{sT+9}, s{sT+7}, {OS_POS}")
    if FASTH < 4:
        e(f"s_add_u32 s{sO}, s{sT+3}, {FAST + 24*REC}", f"buffer_load_dword v6, v{vPo}, {sr(R_WS,4)}, s{sO} offen{SC}")
        e(f"s_add_u32 s{sO}, s{sO}, 8192", "s_mov_b64 exec, 0xffff", f"buffer_load_dword v6, v{vPo}, {sr(R_WS,4)}, s{sO} offen{SC}", "s_mov_b64 exec, -1")
    def gate(p, sleep):
        e(f"s_add_u32 s{sO+1}, s{sT+9}, {OS_L + p*OS_POS}")
        pry_wait(e, f"s{sO+1}", sleep=sleep)
    st = lambda hl, base, c0=0, c1=8: [(4*c + hl, base + 4*c) for c in range(c0, c1)]
    CK = GO + 64
    for hl in range(3):
        gate(2*hl + 1, PSL if hl < 2 else 8)
        if hl < FASTH: gpoll_s(e, vPo, vHT, 0x01010101 << (2*hl), 6)
        elif hl == FASTH: e(f"s_mov_b32 s{sT+5}, {FAST}", f"s_add_u32 s{sT+2}, s{sT+3}, {FAST}")
        stamp(e, 16 + hl)
        fetch(e, hl, 0, 8, GO, CK if hl >= TAGH else None)
        if hl == 0:
            lds_wait(e, vHC, vHT, 44, HCNT, sleep=8)
            e(f"s_setprio {FM}")
        A_ = st(hl, GO)
        mul_a(e, A_)
        if hl >= TAGH:
            verify(e, 0, 8, GO, CK, 0, hl=hl, sleep=4)
            mul_a(e, A_, pre=False)
        else: mul_a(e, A_, pre=False, vm=lambda k: 7 - k)
    stamp(e, 19)
    gate(6, 3)
    mul_a(e, st(3, GO, 0, 4))
    if FASTH > 3: gpoll_s(e, vPo, vHT, 0x40404040, 1)
    elif FASTH == 3: e(f"s_mov_b32 s{sT+5}, {FAST}", f"s_add_u32 s{sT+2}, s{sT+3}, {FAST}")
    fetch(e, 3, 0, 8, GO, CK)
    verify(e, 0, 4, GO, CK, 8)
    stamp(e, 9)
    mul_a(e, st(3, GO, 0, 4), pre=False)
    mul_a(e, st(3, GO, 4, 8))
    verify(e, 4, 8, GO, CK, 0)
    mul_a(e, st(3, GO, 4, 8), pre=False)
    out_store(e)
    e(f"s_xor_b32 s{sO}, s{sI}, 1", f"s_or_b32 s{sO}, s{sWG}, s{sO}", "s_cbranch_scc1 L_noep", f"s_mov_b32 s{sO}, {EPOCH_W}")
    set_flag(e, sO, tA, tB)
    e.lab("L_noep")
    finish(e)

def gen():
    e = Em()
    e.L.append(f".globl {KN}\n.p2align 8\n.type {KN},@function\n{KN}:")
    entry(e)
    h_kv(e)
    f_load(e)
    s_qproj(e)
    s_att(e)
    f_att(e)
    h_main(e)
    f_out(e)
    late_pubs(e)
    pub_routine(e)
    e.lab("L_codeend")
    exact(e)
    e.lab("L_end")
    e("s_endpgm")
    head = f"""; generated by work/gen16.py
; @launch grid=(256,1,1) block=(768,1,1) lds={LDS_BYTES}
.amdgcn_target "amdgcn-amd-amdhsa--gfx950"
.text
"""
    kd = f""".section .rodata,"a"
.p2align 6
.amdhsa_kernel {KN}
  .amdhsa_next_free_vgpr 168
  .amdhsa_next_free_sgpr 102
  .amdhsa_accum_offset 168
  .amdhsa_group_segment_fixed_size 0
  .amdhsa_kernarg_size 88
  .amdhsa_user_sgpr_count 2
  .amdhsa_user_sgpr_kernarg_segment_ptr 1
  .amdhsa_system_sgpr_workgroup_id_x 1
.end_amdhsa_kernel
"""
    return head + e.text() + kd

if __name__ == "__main__":
    args = [a for a in sys.argv[1:] if not a.startswith("-")]
    OPT.update(a[1:] for a in sys.argv[1:] if a.startswith("-"))
    if "stamps" in OPT: STAMPS = True
    OPT.update(("wpf", "s3pub", "sub"))
    if "nogate" not in OPT: OPT.add("gate1")
    if "fast" not in OPT: OPT.add("nofast")

    for o in OPT:
        if o.startswith("moff"): MOFF = float(o[4:])
        if o.startswith("bd"): BDEPTH = int(o[2:])
        if o.startswith("hm"): HM = int(o[2:])
        if o.startswith("ns"): NSAMP = int(o[2:])
        if o.startswith("pfb"): PFB = int(o[3:])
        if o.startswith("spf"): SPF = int(o[3:])
        if o.startswith("pfg"): PFG = int(o[3:])
        if o.startswith("tg"): TAGH = int(o[2:])
        if o.startswith("fh"): FASTH = int(o[2:])
        if o.startswith("nb"): NB1 = int(o[2:])
        if o.startswith("pg"): PGATE = int(o[2:])
        if o.startswith("lf"): LOF = int(o[2:])
        if o.startswith("ls"): LOS = int(o[2:])
        if o.startswith("fm"): FM = int(o[2:])
        if o.startswith("ap"): APR = int(o[2:])
        if o.startswith("ys"): YS = tuple(int(x) for x in o[2:].split("_"))
        if o == "yall": YMODES = ('F', 'F0', 'S')
        if o.startswith("ow"): OBW = int(o[2:])
        if o.startswith("sh"): SHOLD = int(o[2:])
        if o.startswith("hg"): HGATE = int(o[2:])
        if o.startswith("win"): WIN = int(o[3:])
        if o.startswith("osc"): OSC = " " + o[3:].replace("_", " ")
        if o.startswith("dly"): DLY = tuple(int(x) for x in o[3:].split("_"))
        if o.startswith("bs"): BSLEEP = int(o[2:])
    out = args[0] if args else f"cdna_kernels/{NAME}.s"
    open(out, "w").write(gen())
    print("wrote", out)
```

```python
import sys, math, struct

NAME = "concat_heads__grouped_kv_mqa__sliding_local_dilated__prompt"
KN = NAME + "_kernel"
def f32bits(x): return struct.unpack("<I", struct.pack("<f", x))[0]

class Em:
    def __init__(self): self.L = []; self.n = 0
    def __call__(self, *ss):
        for s in ss:
            if s.startswith("s_nop "):
                self.L += ["    s_nop 0"] * (int(s.split()[1]) + 1)
            else: self.L.append("    " + s)
    def lab(self, s): self.L.append(s + ":")
    def uniq(self, p): self.n += 1; return f"L_{p}_{self.n}"
    def c(self, s): self.L.append("    ; " + s)
    def text(self): return "\n".join(self.L) + "\n"

def vr(b, n): return f"v[{b}:{b+n-1}]" if n > 1 else f"v{b}"
def sr(b, n): return f"s[{b}:{b+n-1}]" if n > 1 else f"s{b}"

sWG, sW = 2, 3
R_XA, R_WQ, R_WKV, R_WOA, R_XB, R_WB, R_WOB, R_OUT, R_WS = 32, 36, 40, 44, 48, 52, 56, 60, 64
R_WO = R_WKV
sRB, sCB, sTB, sHP, sSB, sKIND, sRET, sI = 72, 73, 74, 75, 76, 77, 78, 79
sT = 80
sO = 92
sPOLL, sEP, sSPIN, sIDX = 98, 99, 100, 101
sTAG = 71
SPIN_MAX = 60000
OB, OA, KW, VW, EPOCH_W, FL = 0, 2 << 20, 5 << 20, (5 << 20) + 65536, (5 << 20) + 131072, (5 << 20) + (256 << 10)
REC = 1280
F1, F3, F4 = FL, FL + (64 << 10), FL + (256 << 10)
WS_BYTES = 16 << 20
FAST = 8 << 20
K = 1024
LDS_BYTES = 160 * K
SLOT = 32 * K
WKV_L = 128 * K
QI_L, NM_L, CNT, PR_L = 144 * K, 152 * K, 156 * K + 512, 157 * K
HCNT, ACNT, GCNT, KVF, RDY1, QST, WLD, LAND, SOK = 0, 4, 8, 12, 16, 20, 24, 32, 48
RINGS = 34 * K
RXO = 24 * K
OS_L, OS_POS, OS_PAIR = 72 * K, 9216, 2304
EX_L = 68 * K
TB_L = 159 * K
WOA_L, WOB_L = 34 * K, 0
BDEPTH, HM, F3SLEEP, WIN, BSLEEP = 4, 1, 16, 12, 0
PSL = 20
FTRY = 16
HGATE = 8
CSC = 0.25 * math.log2(math.e)
MOFF = 100.0
NSAMP = 4
G0 = 3
NT = 21
PFB, PFG, SPF = 0, 0, 0
TAGH, FASTH = 1, 3
NB1 = 2
PGATE = 8
APR = 3
YS = ()
YMODES = ('F', 'F0')
OBW = 4
LOF, LOS, FM = 2, 0, 2
SHOLD = 0
LMAX = 2.0 ** 120
MF32 = "v_mfma_f32_32x32x16_bf16"
MF16 = "v_mfma_f32_16x16x32_bf16"
STAMPS = False
OPT = set()
ST = 12 << 20
SC = " sc1"
OSC = ""

def stamp(e, k):
    if STAMPS: e("s_memrealtime s[30:31]", "s_waitcnt lgkmcnt(0)", f"s_mov_b32 s{8+k}, s30")
def cstamp(e, k):
    if STAMPS: e("s_memtime s[30:31]", "s_waitcnt lgkmcnt(0)", f"s_mov_b32 s{8+k}, s30")
def stamp_init(e):
    if not STAMPS: return
    for k in range(1, 22): e(f"s_mov_b32 s{8+k}, 0")
    e("s_mov_b32 s8, s6", "s_mov_b32 s20, s4")
DLY = None
def finish(e):
    if DLY is not None:
        l = e.uniq("dly")
        stamp(e, 15)
        e(f"s_cmp_lg_u32 s{sW}, {DLY[0]}", f"s_cbranch_scc1 {l}_d")
        e(f"s_sub_u32 s4, s{8+DLY[1]}, s8", "s_lshl_b32 s4, s4, 1", "s_add_u32 s4, s4, 4000", "s_min_u32 s4, s4, 40000")
        e.lab(l)
        e("s_sleep 2", "s_memrealtime s[30:31]", "s_waitcnt lgkmcnt(0)", "s_sub_u32 s5, s30, s8", "s_cmp_lt_u32 s5, s4", f"s_cbranch_scc1 {l}")
        e.lab(l + "_d")
        e("s_endpgm")
        return
    if STAMPS:
        stamp(e, 15); cstamp(e, 14)
        e(f"s_mul_i32 s30, s{sWG}, 12", f"s_add_u32 s30, s30, s{sW}", "s_lshl_b32 s30, s30, 7", f"s_add_u32 s30, s30, {ST}")
        e("s_mov_b64 exec, 1", "v_mov_b32 v0, 0")
        for k in range(22): e(f"v_mov_b32 v{4+k}, s{8+k}")
        for k in range(6): e(f"buffer_store_dwordx4 {vr(4+4*k,4)}, v0, {sr(R_WS,4)}, s30 offen offset:{16*k}")
    e("s_endpgm")

def dma(e, voff, R, soff, nt=False):
    e(f"buffer_load_dwordx4 v{voff}, {sr(R,4)}, s{soff} offen{' nt' if nt else ''} lds")
def spin_tail(e, l, sleep):
    e(f"s_sleep {sleep}", f"s_add_u32 s{sSPIN}, s{sSPIN}, 1", f"s_cmp_lt_u32 s{sSPIN}, {SPIN_MAX}", f"s_cbranch_scc1 {l}")
def lds_wait(e, vaddr, vtmp, target, off=0, sleep=1):
    l = e.uniq("poll")
    e.lab(l)
    e(f"ds_read_b32 v{vtmp}, v{vaddr} offset:{off}", "s_waitcnt lgkmcnt(0)", f"v_readfirstlane_b32 s{sPOLL}, v{vtmp}")
    e(f"s_cmp_ge_u32 s{sPOLL}, {target}", f"s_cbranch_scc1 {l}_d")
    spin_tail(e, l, sleep)
    e.lab(l + "_d")
def sig(e, vaddr, vone, off):
    e("s_mov_b64 exec, 1", f"ds_add_u32 v{vaddr}, v{vone} offset:{off}", "s_mov_b64 exec, -1")
def load_epoch(e):
    e(f"s_mov_b32 s{sEP}, {EPOCH_W}", f"s_load_dword s{sEP}, s[{R_WS}:{R_WS+1}], s{sEP}")
def get_epoch(e):
    e("s_waitcnt lgkmcnt(0)", f"s_add_u32 s{sEP}, s{sEP}, 1", f"s_mul_i32 s{sTAG}, s{sEP}, 0x9e3779b1")
def gpoll(e, vaddr, vtmp, lo, hi, sleep=1):
    l = e.uniq("gp")
    e(f"s_mov_b32 exec_lo, {hex(lo)}", f"s_mov_b32 exec_hi, {hex(hi)}")
    e.lab(l)
    e(f"buffer_load_dword v{vtmp}, v{vaddr}, {sr(R_WS,4)}, 0 offen sc1", "s_waitcnt vmcnt(0)")
    e(f"v_cmp_ne_u32 vcc, s{sEP}, v{vtmp}", "s_and_b64 exec, exec, vcc", f"s_cbranch_execz {l}_d")
    spin_tail(e, l, sleep)
    e.lab(l + "_d")
    e("s_mov_b64 exec, -1")
def gpoll_issue(e, vaddr, vtmp, lo):
    e(f"s_mov_b32 exec_lo, {hex(lo)}", "s_mov_b32 exec_hi, 0", f"buffer_load_dword v{vtmp}, v{vaddr}, {sr(R_WS,4)}, 0 offen sc1", "s_mov_b64 exec, -1")
def gpoll_finish(e, vaddr, vtmp, lo, younger, sleep=1):
    l = e.uniq("gp")
    e(f"s_mov_b32 exec_lo, {hex(lo)}", "s_mov_b32 exec_hi, 0", f"s_waitcnt vmcnt({younger})", f"s_branch {l}_c")
    e.lab(l)
    e(f"buffer_load_dword v{vtmp}, v{vaddr}, {sr(R_WS,4)}, 0 offen sc1", "s_waitcnt vmcnt(0)")
    e.lab(l + "_c")
    e(f"v_cmp_ne_u32 vcc, s{sEP}, v{vtmp}", "s_and_b64 exec, exec, vcc", f"s_cbranch_execz {l}_d")
    spin_tail(e, l, sleep)
    e.lab(l + "_d")
    e("s_mov_b64 exec, -1")
def set_flag(e, soff, va, vd):
    e(f"v_mov_b32 v{va}, 0", f"v_mov_b32 v{vd}, s{sEP}", "s_mov_b64 exec, 1")
    e(f"buffer_store_dword v{vd}, v{va}, {sr(R_WS,4)}, s{soff} offen sc1", "s_mov_b64 exec, -1")
def mk_ck(e, dst, d):
    e(f"v_xad_u32 v{dst}, v{d}, s{sTAG}, v{d+1}", f"v_xad_u32 v{dst}, v{dst}, v{d+2}, v{d+3}")
def chk(e, acc, tmp, d, ck, first):
    mk_ck(e, tmp, d)
    e(f"v_xor_b32 v{acc}, v{tmp}, v{ck}" if first else f"v_bitop3_b32 v{acc}, v{acc}, v{tmp}, v{ck} bitop3:0xf6")
def lane_id(e):
    e("v_mbcnt_lo_u32_b32 v0, -1, 0", "v_mbcnt_hi_u32_b32 v0, -1, v0")
def xa_voff(e, b, t):
    e(f"v_lshrrev_b32 v{t}, 4, v0", f"v_and_b32 v{b}, 15, v0", f"v_xor_b32 v{b}, v{b}, v{t}", f"v_lshlrev_b32 v{b}, 4, v{b}")
    e(f"v_lshl_add_u32 v{b}, v{t}, 10, v{b}")
def halfmax(e, m):
    e(f"v_mov_b32 v{m+1}, v{m}", "s_nop 1", f"v_permlane32_swap_b32 v{m}, v{m+1}", "s_nop 0", f"v_max_f32 v{m}, v{m}, v{m+1}")
def negmax(e, S, m):
    e(f"v_max3_f32 v{m}, v{S}, v{S+1}, v{S+2}")
    for k in range(3, 15, 2): e(f"v_max3_f32 v{m}, v{m}, v{S+k}, v{S+k+1}")
    e(f"v_max_f32 v{m}, v{m}, v{S+15}")
    halfmax(e, m)
    e(f"v_sub_f32 v{m}, {hex(f32bits(-MOFF))}, v{m}")

def entry(e):
    e(f"s_cmp_ge_u32 s{sWG}, 256", "s_cbranch_scc1 L_end")
    e(f"s_and_b32 s{sO}, s{sWG}, 8", f"s_add_u32 s{sO}, s{sO}, 16")
    for R, off in ((R_XA, 0), (R_WQ, 8), (R_WS, 80)): e(f"s_load_dwordx2 s[{R}:{R+1}], s[0:1], {off}")
    e(f"s_load_dwordx2 s[{R_WKV}:{R_WKV+1}], s[0:1], s{sO}")
    if STAMPS: e("s_memrealtime s[6:7]", "s_memtime s[4:5]")
    e("v_lshrrev_b32 v1, 6, v0", "v_and_b32 v0, 63, v0")
    e(f"s_lshr_b32 s{sO+1}, s{sWG}, 3")
    e(f"v_readfirstlane_b32 s{sW}, v1")
    e(f"s_and_b32 s{sO}, s{sWG}, 7", f"s_lshl_b32 s{sIDX}, s{sO}, 5", f"s_add_u32 s{sIDX}, s{sIDX}, s{sO+1}")
    e(f"s_and_b32 s{sI}, s{sW}, 3", f"s_cmp_lt_u32 s{sW}, 8", "s_cbranch_scc1 L_nopf")
    e(f"s_getpc_b64 s[{sO+2}:{sO+3}]")
    e.lab("L_pc")
    e(f"s_lshl_b32 s{sO}, s{sO+1}, 2", f"s_add_u32 s{sO}, s{sO}, s{sI}", f"s_and_b32 s{sO}, s{sO}, 31", f"s_lshl_b32 s{sO}, s{sO}, 10")
    e(f"v_lshl_add_u32 v2, v0, 7, s{sO}", f"v_min_u32 v2, L_codeend-L_pc-4, v2", "s_mov_b64 exec, 0xff")
    e(f"global_load_dword v167, v2, s[{sO+2}:{sO+3}]", "s_mov_b64 exec, -1")
    e.lab("L_nopf")
    e(f"s_lshr_b32 s{sRB}, s{sIDX}, 3", f"s_and_b32 s{sCB}, s{sIDX}, 7", f"s_lshr_b32 s{sTB}, s{sIDX}, 4", f"s_and_b32 s{sHP}, s{sIDX}, 15")
    e(f"s_lshr_b32 s{sSB}, s{sCB}, 1", f"s_and_b32 s{sKIND}, s{sCB}, 1", f"s_mov_b32 s{sSPIN}, 0")
    for R, n in ((R_XA, 2 << 20), (R_WKV, 16384), (R_WQ, 512 << 10), (R_WS, WS_BYTES)):
        e(f"s_mov_b32 s{R+2}, {hex(n)}", f"s_mov_b32 s{R+3}, 0x20000")
    e(f"s_cmp_ge_u32 s{sW}, 8", "s_cbranch_scc1 L_q", f"s_cmp_ge_u32 s{sW}, 4", "s_cbranch_scc1 L_aux")
def srds(e, lst):
    size = {R_WOA: 512 << 10, R_XB: 2 << 20, R_WB: 1536 << 10, R_WOB: 512 << 10, R_OUT: 4 << 20}
    slot = {R_WOA: 32, R_XB: 40, R_WB: 48, R_WOB: 56, R_OUT: 64}
    for R in lst: e(f"s_load_dwordx2 s[{R}:{R+1}], s[0:1], {slot[R]}", f"s_mov_b32 s{R+2}, {hex(size[R])}", f"s_mov_b32 s{R+3}, 0x20000")

vHC, vH1, vHT = 5, 6, 7
def h_kv(e):
    fx, fw, acc = 32, 48, 24
    e.c("---- H: K/V projection")
    e("s_setprio 3")
    xa_voff(e, 8, 12)
    for z in range(1, 4): e(f"v_xor_b32 v{8+z}, {z<<6}, v8")
    e("v_lshlrev_b32 v12, 4, v0")
    e(f"s_add_u32 s{sO+3}, s{sRB}, s{sI}", f"s_and_b32 s{sO+3}, s{sO+3}, 3")
    e(f"s_lshr_b32 s{sO+1}, s{sIDX}, 1", f"s_lshl_b32 s{sO+1}, s{sO+1}, 14", f"s_lshl_b32 s{sO+2}, s{sO+3}, 8", f"s_add_u32 s{sO+1}, s{sO+1}, s{sO+2}")
    e(f"s_lshl_b32 s{sT}, s{sI}, 15", f"s_lshl_b32 s{sO+2}, s{sSB}, 12", f"s_add_u32 s{sT}, s{sT}, s{sO+2}")
    e(f"s_lshl_b32 s{sT+1}, s{sI}, 12", f"s_add_u32 s{sT+1}, s{sT+1}, {WKV_L}", f"s_lshl_b32 s{sO+3}, s{sO+3}, 12")
    e("s_waitcnt lgkmcnt(0)")
    for z in range(4):
        e(f"s_add_u32 m0, s{sT}, {z*1024}", f"s_add_u32 s{sO}, s{sO+1}, {z*4096}")
        dma(e, 8 + z, R_XA, sO, nt=True)
        e(f"s_add_u32 m0, s{sT+1}, {z*1024}", f"s_add_u32 s{sO}, s{sO+3}, {z*1024}")
        dma(e, 12, R_WKV, sO)
    load_epoch(e)
    e("s_barrier")
    stamp_init(e)
    e(f"v_mov_b32 v{vHC}, {CNT}", f"v_mov_b32 v{vH1}, 1")
    e("v_and_b32 v2, 15, v0", "v_lshrrev_b32 v3, 4, v0", "v_xor_b32 v4, v2, v3", "v_lshlrev_b32 v4, 4, v4", "v_lshl_add_u32 v4, v2, 8, v4")
    e(f"v_add_u32 v8, s{sT}, v4")
    for q in range(1, 4): e(f"v_xor_b32 v{8+q}, {q<<6}, v8")
    e("v_bfe_u32 v4, v0, 2, 2", "v_lshl_add_u32 v4, v3, 3, v4", "v_lshlrev_b32 v4, 5, v4", "v_and_b32 v13, 3, v0", "v_lshl_add_u32 v4, v13, 3, v4")
    e(f"v_add_u32 v13, s{sT+1}, v4", f"v_add_u32 v14, s{sT+1}, v12")
    e(f"s_lshl_b32 s{sO}, s{sI}, 2", f"v_add_u32 v15, s{sO}, v{vHC}")
    e(f"s_lshl_b32 s{sO}, s{sRB}, 11")
    e(f"s_lshr_b32 s{sO+1}, s{sSB}, 1", f"s_lshl_b32 s{sO+1}, s{sO+1}, 10", f"s_and_b32 s{sO+2}, s{sSB}, 1", f"s_lshl_b32 s{sO+2}, s{sO+2}, 8")
    e(f"s_add_u32 s{sO+1}, s{sO+1}, s{sO+2}", f"s_add_u32 s{sO+1}, s{sO+1}, {KW}")
    e(f"s_lshl_b32 s{sO+2}, s{sSB}, 9", f"s_add_u32 s{sO+2}, s{sO+2}, {VW}")
    e(f"s_cmp_eq_u32 s{sKIND}, 0", f"s_cselect_b32 s{sO+1}, s{sO+1}, s{sO+2}", f"s_cselect_b32 s{sO+2}, 9, 8", f"s_add_u32 s{sO+4}, s{sO}, s{sO+1}")
    e("v_and_b32 v4, 1, v3", f"v_lshlrev_b32 v4, s{sO+2}, v4", "v_lshl_add_u32 v20, v2, 4, v4")
    e(f"s_lshl_b32 s{sO}, s{sKIND}, 28", f"s_add_u32 s{sO}, s{sO}, 0x3f800000", f"v_mov_b32 v22, s{sO}")
    e(f"s_lshl_b32 s{sO+5}, s{sIDX}, 7", f"s_add_u32 s{sO+5}, s{sO+5}, {F1}")
    get_epoch(e)
    e("s_waitcnt vmcnt(0)")
    stamp(e, 1)
    for q in range(4):
        e(f"ds_read_b128 {vr(fx+4*q,4)}, v{8+q}")
        e(f"ds_read_b64_tr_b16 {vr(fw+4*q,2)}, v13 offset:{q*1024}", f"ds_read_b64_tr_b16 {vr(fw+4*q+2,2)}, v13 offset:{q*1024+128}")
    sig(e, 15, vH1, LAND)
    e(f"s_cmp_lg_u32 s{sKIND}, 0", "s_cbranch_scc1 L_kv_v")
    for kind in range(2):
        for q in range(4):
            a, b = (fw, fx) if kind == 0 else (fx, fw)
            e(f"s_waitcnt lgkmcnt({10-3*q})", f"{MF16} {vr(acc,4)}, {vr(a+4*q,4)}, {vr(b+4*q,4)}, {'0' if q == 0 else vr(acc,4)}")
        if kind == 0:
            e("s_branch L_kv_d"); e.lab("L_kv_v")
    e.lab("L_kv_d")
    e(f"s_cmp_eq_u32 s{sI}, 0", "s_cbranch_scc1 L_kv_0", "s_nop 5")
    e(f"ds_write_b128 v14, {vr(acc,4)}")
    sig(e, vHC, vH1, HCNT)
    e("s_branch L_h2")
    e.lab("L_kv_0")
    lds_wait(e, vHC, vHT, 3, HCNT, sleep=0)
    for k in range(1, 4): e(f"ds_read_b128 {vr(fx+4*k,4)}, v14 offset:{k*4096}")
    e("s_waitcnt lgkmcnt(1)")
    for k in range(2): e(f"v_pk_add_f32 {vr(fx+4+2*k,2)}, {vr(fx+4+2*k,2)}, {vr(fx+8+2*k,2)}")
    e("s_waitcnt lgkmcnt(0)")
    for k in range(2): e(f"v_pk_add_f32 {vr(acc+2*k,2)}, {vr(acc+2*k,2)}, {vr(fx+12+2*k,2)}")
    for k in range(2): e(f"v_pk_add_f32 {vr(acc+2*k,2)}, {vr(acc+2*k,2)}, {vr(fx+4+2*k,2)}")
    for k in range(2): e(f"v_pk_mul_f32 {vr(acc+2*k,2)}, {vr(acc+2*k,2)}, v[22:23] op_sel_hi:[1,0]")
    e(f"v_cvt_pk_bf16_f32 v28, v{acc}, v{acc+1}", f"v_cvt_pk_bf16_f32 v29, v{acc+2}, v{acc+3}", "s_nop 1")
    e("v_permlane32_swap_b32 v28, v30", "v_permlane32_swap_b32 v29, v31", "s_mov_b32 exec_hi, 0", "s_nop 0")
    e(f"buffer_store_dwordx4 v[28:31], v20, {sr(R_WS,4)}, s{sO+4} offen{SC}", "s_mov_b64 exec, -1")
    if "gate1" in OPT: sig(e, vHC, vH1, KVF)
    sig(e, vHC, vH1, HCNT)
    stamp(e, 2)
    e("s_waitcnt vmcnt(0)")
    set_flag(e, sO+5, 2, 3)
    if "gate2" in OPT: sig(e, vHC, vH1, KVF)
    stamp(e, 3)
    e("s_branch L_h2")

vT0, vQ16, vAN, vT1, AQ, AK, AV, S0, S1, AO, ANM = 0, 1, 2, 3, 4, 8, 40, 104, 120, 136, 152
vVo, vFa, vC, v1_ = S1, S1+1, S1+2, S1+3
def zero_pr(e):
    e(f"s_lshl_b32 s{sO}, s{sW}, 8", f"s_add_u32 m0, s{sO}, {PR_L - 1024}", "v_mov_b32 v2, 0", "ds_write_addtid_b32 v2")
def f_load(e):
    e.lab("L_aux")
    e.c("---- F: bulk loads")
    zero_pr(e)
    xa_voff(e, 8, 12)
    e(f"s_lshl_b32 s{sO}, s{sI}, 6", f"v_xor_b32 v8, s{sO}, v8")
    e("v_lshrrev_b32 v2, 3, v0", "v_bfe_u32 v3, v0, 4, 1", "v_lshlrev_b32 v3, 2, v3", "v_and_b32 v4, 7, v0", "v_xor_b32 v4, v4, v3")
    e("v_lshlrev_b32 v4, 4, v4", "v_lshl_add_u32 v12, v2, 10, v4")
    e(f"s_lshl_b32 s{sT}, s{sI}, 12")
    e(f"s_lshl_b32 s{sT+1}, s{sI}, 15", f"s_lshl_b32 s{sO}, s{sCB}, 7", f"s_add_u32 s{sT+1}, s{sT+1}, s{sO}")
    e(f"s_lshl_b32 s{sT+2}, s{sRB}, 16", f"s_add_u32 s{sT+2}, s{sT+2}, s{sT}", f"s_lshl_b32 s{sT+9}, s{sI}, 10")
    for du in range(1, 4):
        e(f"s_add_u32 s{sO}, s{sSB}, {du}", f"s_and_b32 s{sO}, s{sO}, 3")
        e(f"s_lshl_b32 s{sT+2+du}, s{sO}, 14", f"s_add_u32 s{sT+2+du}, s{sT+2+du}, s{sT+2}")
        e(f"s_lshl_b32 s{sT+5+du}, s{sO}, 12", f"s_add_u32 s{sT+5+du}, s{sT+5+du}, s{sT+9}")
    e(f"v_mov_b32 v{vC}, {CNT}", f"v_mov_b32 v{v1_}, 1")
    e("s_waitcnt lgkmcnt(0)")
    load_epoch(e)
    e("s_barrier")
    def chunk(sg):
        e(f"s_add_u32 s{sO+1}, s{sRB}, {sg}", f"s_and_b32 s{sO+1}, s{sO+1}, 3", f"s_lshl_b32 s{sO+2}, s{sO+1}, 8")
        e(f"s_lshl_b32 s{sO+1}, s{sO+1}, 17", f"s_add_u32 s{sO+1}, s{sO+1}, s{sT+1}")
        for i in range(4):
            e(f"s_add_u32 m0, s{sT}, {sg*SLOT + 16384 + i*1024}", f"s_add_u32 s{sO}, s{sO+1}, {i*8192}")
            dma(e, 12, R_WQ, sO)
        for du in range(1, 4):
            e(f"s_add_u32 m0, s{sT+5+du}, {sg*SLOT}", f"s_add_u32 s{sO}, s{sT+2+du}, s{sO+2}")
            dma(e, 8, R_XA, sO, nt=True)
    nb = NB1
    for sg in range(nb): chunk(sg)
    stamp_init(e)
    att_consts(e)
    get_epoch(e)
    done = 0
    if nb < 4:
        e(f"s_waitcnt vmcnt({7*(nb-1)})"); sig(e, vC, v1_, LAND); done = 1
        if "nogate" not in OPT: lds_wait(e, vC, S0, 1, KVF, sleep=1)
        for sg in range(nb, 4):
            chunk(sg)
            if sg < 3:
                e(f"s_waitcnt vmcnt({7*(sg-done)})"); sig(e, vC, v1_, LAND + 4*done); done += 1
    stamp(e, 1)
    for sg in range(done, 4):
        e(f"s_waitcnt vmcnt({21-7*sg})"); sig(e, vC, v1_, LAND + 4*sg)
    stamp(e, 2)
    e("s_branch L_f2")

sAW, sP, sExp = sT+8, sT+9, sT+10
def att_consts(e):
    e(f"v_and_b32 v{S0}, 31, v0", f"v_cmp_eq_u32 vcc, 16, v{S0}", f"v_mov_b32 v{S0+1}, 0x4f804f80", f"v_lshlrev_b32 v{vQ16}, 4, v0")
    e(f"v_cndmask_b32 v{AV}, 0, v{S0+1}, vcc")
    for r in range(1, 64): e(f"v_mov_b32 v{AV+r}, v{AV}")
    e(f"v_lshlrev_b32 v{vAN}, 4, v{S0}", f"v_add_u32 v{vAN}, {NM_L}, v{vAN}")
    e(f"v_lshrrev_b32 v{vVo}, 5, v0", f"v_lshlrev_b32 v{vVo}, 8, v{vVo}", f"v_and_b32 v{S0+2}, 15, v0", f"v_lshl_add_u32 v{vVo}, v{S0+2}, 4, v{vVo}")
def gather_bases(e):
    e(f"s_sub_u32 s{sAW}, s{sW}, 4", f"s_lshl_b32 s{sO+2}, s{sAW}, 13")
    e(f"s_add_u32 s{sO}, s{sO+2}, {KW}", f"s_add_u32 s{sO+1}, s{sO+2}, {VW}", f"s_add_u32 s{sO+2}, s{sO}, 4096", f"s_add_u32 s{sO+3}, s{sO+1}, 4096")
def gather(e, t0, t1):
    for t in range(t0, t1):
        e(f"buffer_load_dwordx4 {vr(AK+4*t,4)}, v{vQ16}, {sr(R_WS,4)}, s{sO+2*(t>>2)} offen offset:{(t&3)*1024}{SC}")
        e("s_mov_b32 exec_lo, 0xffff", "s_mov_b32 exec_hi, 0xffff")
        for f in (2*t, 2*t+1):
            e(f"buffer_load_dwordx4 {vr(AV+4*f,4)}, v{vVo}, {sr(R_WS,4)}, s{sO+1+2*(t>>2)} offen offset:{(f&7)*512}{SC}")
        e("s_mov_b64 exec, -1")
def att_addrs(e):
    e(f"s_mul_i32 s{sExp}, s{sI}, {OS_PAIR}", f"s_add_u32 s{sExp}, s{sExp}, {OS_L}")
    e(f"v_add_u32 v{vT1}, s{sExp}, v{vQ16}", f"v_lshl_add_u32 v{vT0}, v0, 2, s{sExp}", f"v_add_u32 v{vQ16}, {QI_L}, v{vQ16}")
    e(f"s_lshl_b32 s{sO+4}, s{sI}, 8", f"s_add_u32 m0, s{sO+4}, {PR_L}")

def s_qproj(e):
    vXa, vWa, vXb, vWb, vSt, vLd = 8, 16, 17, 25, 26, 27
    acc, fr, NF, T = 104, 124, 5, 28
    a_, b_, c_, d_ = T, T+1, T+2, T+3
    e.lab("L_q")
    e.c("---- S: Q projection")
    zero_pr(e)
    e(f"s_mov_b32 m0, {CNT}", "s_nop 0", "ds_write_addtid_b32 v2", "s_waitcnt lgkmcnt(0)")
    load_epoch(e)
    e("s_barrier")
    stamp_init(e)
    e(f"v_mov_b32 v{vC}, {CNT}", f"v_mov_b32 v{v1_}, 1")
    if SPF:
        e("s_load_dwordx4 s[44:47], s[0:1], 40", f"s_lshl_b32 s{sO}, s{sIDX}, 2", f"s_add_u32 s{sO}, s{sO}, s{sI}")
        e(f"s_lshl_b32 s{sO+1}, s{sO}, 11", f"s_mul_i32 s{sO}, s{sO}, 1536", "s_waitcnt lgkmcnt(0)")
        e(f"s_add_u32 s44, s44, s{sO+1}", "s_addc_u32 s45, s45, 0", f"s_add_u32 s46, s46, s{sO}", "s_addc_u32 s47, s47, 0")
        for o_ in range(0, 1536, SPF): e(f"s_load_dword s48, s[46:47], {o_}")
        for o_ in range(0, 2048, SPF): e(f"s_load_dword s48, s[44:45], {o_}")
    if "tlb" in OPT:
        e("s_load_dwordx8 s[44:51], s[0:1], 32", "s_load_dwordx2 s[52:53], s[0:1], 64", "s_waitcnt lgkmcnt(0)")
        e(f"s_mov_b32 s{sO}, 0x200000", f"s_mov_b32 s{sO+1}, 0x1ffffc")
        for k, R in enumerate((44, 46, 48, 50, 52, R_WS)): e(f"s_load_dword s{54+k}, s[{R}:{R+1}], 0")
        e(f"s_load_dword s60, s[52:53], s{sO}", f"s_load_dword s61, s[{R_WS}:{R_WS+1}], s{sO}", f"s_load_dword s62, s[46:47], s{sO+1}")
    att_consts(e)
    e(f"s_and_b32 s{sO}, s{sI}, 1", f"s_lshl_b32 s{sO}, s{sO}, 13")
    e(f"v_and_b32 v{a_}, 31, v0", f"v_lshrrev_b32 v{b_}, 5, v0", f"v_and_b32 v{c_}, 15, v0", f"v_xor_b32 v{c_}, v{c_}, v{b_}")
    e(f"v_lshl_add_u32 v{d_}, v{a_}, 8, s{sO}", f"v_lshl_add_u32 v{vXa}, v{c_}, 4, v{d_}")
    for s in range(1, 8): e(f"v_xor_b32 v{vXa+s}, {s<<5}, v{vXa}")
    e(f"v_bfe_u32 v{a_}, v0, 2, 2", f"v_lshl_add_u32 v{c_}, v{b_}, 3, v{a_}", f"v_lshlrev_b32 v{c_}, 7, v{c_}", f"v_lshrrev_b32 v{a_}, 1, v{a_}")
    e(f"s_lshr_b32 s{sO}, s{sI}, 1", f"v_xor_b32 v{a_}, s{sO}, v{a_}", f"v_lshl_add_u32 v{c_}, v{a_}, 6, v{c_}")
    e(f"v_bfe_u32 v{a_}, v0, 4, 1", f"v_lshl_add_u32 v{c_}, v{a_}, 5, v{c_}", f"v_and_b32 v{a_}, 3, v0", f"v_lshl_add_u32 v{c_}, v{a_}, 3, v{c_}")
    e(f"v_add_u32 v{vWa}, 16384, v{c_}", f"v_lshl_add_u32 v{vLd}, v{a_}, 2, v{vC}")
    for s in range(9): e(f"v_add_u32 v{vXb+s}, 65536, v{vXa+s}")
    get_epoch(e)
    e(f"s_mov_b32 s{sT+6}, {hex(f32bits(CSC))}")
    e(f"s_and_b32 s{sO}, s{sI}, 2", f"s_add_u32 s{sO}, s{sO}, s{sI}")
    if "swap" in OPT:
        e(f"s_lshr_b32 s{sO+1}, s{sI}, 1", f"s_xor_b32 s{sO+1}, s{sO+1}, 1", f"s_xor_b32 s{sO+1}, s{sO+1}, s{sO}", f"s_xor_b32 s{sO}, s{sO}, 1")
    else: e(f"s_mov_b32 s{sO+1}, s{sO}")
    e(f"s_lshl_b32 s{sO}, s{sO}, 10", f"s_add_u32 s{sO}, s{sO}, {QI_L}", f"v_add_u32 v{b_}, s{sO}, v{vQ16}")
    e(f"s_lshl_b32 s{sO+1}, s{sO+1}, 10", f"s_add_u32 s{sO+1}, s{sO+1}, {QI_L}", f"v_add_u32 v{vSt}, s{sO+1}, v{vQ16}")
    e(f"s_lshl_b32 s{sO}, s{sI}, 2", f"v_add_u32 v{vFa}, s{sO}, v{vC}")
    gather_bases(e)
    def landwait(mask):
        lq = e.uniq("ql")
        e.lab(lq)
        e(f"ds_read_b32 v{a_}, v{vLd} offset:{LAND}", "s_waitcnt lgkmcnt(0)", f"v_cmp_gt_u32 vcc, 5, v{a_}")
        e(f"s_and_b32 s{sO+5}, vcc_lo, 15", f"s_and_b32 s{sO+4}, s{sO+5}, {mask}", f"s_cbranch_scc0 {lq}_d")
        spin_tail(e, lq, 1)
        e.lab(lq + "_d")
    def rd(n):
        sg, s = n >> 3, n & 7
        so = (sg & 1) * SLOT
        xa, wa = (vXa + s, vWa) if sg < 2 else (vXb + s, vWb)
        f = fr + 8 * (n % NF)
        e(f"ds_read_b128 {vr(f,4)}, v{xa} offset:{so}")
        e(f"ds_read_b64_tr_b16 {vr(f+4,2)}, v{wa} offset:{so+s*2048}", f"ds_read_b64_tr_b16 {vr(f+6,2)}, v{wa} offset:{so+s*2048+512}")
    e("s_setprio 3")
    landwait(1)
    stamp(e, 16)
    for n in range(NF): rd(n)
    for n in range(32):
        f = fr + 8 * (n % NF)
        e(f"s_waitcnt lgkmcnt({min(3*(NF-1), 3*(31-n))})", f"{MF32} {vr(acc,16)}, {vr(f+4,4)}, {vr(f,4)}, {'0' if n == 0 else vr(acc,16)}")
        if n + NF < 32:
            if (n + NF) % 8 == 0:
                bit = 1 << ((n + NF) >> 3)
                sk = e.uniq("lok")
                e(f"s_and_b32 s{sO+4}, s{sO+5}, {bit}", f"s_cbranch_scc0 {sk}")
                landwait(bit)
                e.lab(sk)
                if "qst" in OPT: stamp(e, 16 + ((n + NF) >> 3))
            rd(n + NF)
    if "qst" in OPT: stamp(e, 20)
    e(f"v_mov_b32 v{c_}, s{sT+6}", "s_nop 10")
    for r in range(8): e(f"v_pk_mul_f32 {vr(acc+2*r,2)}, {vr(acc+2*r,2)}, {vr(c_,2)} op_sel_hi:[1,0]")
    P = AO
    for j in range(8): e(f"v_cvt_pk_bf16_f32 v{P+j}, v{acc+2*j}, v{acc+2*j+1}")
    e(f"ds_write_b128 v{b_}, {vr(P,4)}", f"ds_write_b128 v{vSt}, {vr(P+4,4)} offset:2048")
    sig(e, vC, v1_, ACNT)
    stamp(e, 2)
    lds_wait(e, vFa, S0+2, 2 if 'proxy' in OPT else 1, SOK)
    lds_wait(e, vC, S0+2, 4, GCNT, sleep=2)
    if "sl" in OPT: lds_wait(e, vC, S0+2, 8, QST, sleep=2)
    if "sdelay" in OPT: lds_wait(e, vC, S0+2, 1, RDY1)
    stamp(e, 7)
    gather(e, 0, 8)
    sig(e, vC, v1_, GCNT)

def pk(S, j):
    d = S + (j if j < 4 else 4 + j)
    return f"v_cvt_pk_bf16_f32 v{d}, v{S+2*j}, v{S+2*j+1}"
def rdq(e):
    e(f"ds_read_b128 {vr(AQ,4)}, v{vQ16}")
    for k in range(4): e(f"ds_read_b128 {vr(ANM+4*k,4)}, v{vAN}")
def dump(e, kind):
    e(f"ds_write_b128 v{vT1}, {vr(AO,4)}", f"ds_write_b128 v{vT1}, {vr(AO+4,4)} offset:1024", f"ds_write_b32 v{vT0}, v{AO+8} offset:2048")
    e(f"ds_write_addtid_b32 v{vT1} offset:{0 if kind == 'F' else 1024}")
def advance(e):
    e(f"v_add_u32 v{vT1}, {OS_POS}, v{vT1}", f"v_add_u32 v{vT0}, {OS_POS}, v{vT0}")
def init_o(e, off):
    e(f"ds_read_b128 {vr(AO,4)}, v{vT1} offset:{off}", f"ds_read_b128 {vr(AO+4,4)}, v{vT1} offset:{off+1024}", f"ds_read_b32 v{AO+8}, v{vT0} offset:{off+2048}")

def att_block(e, mode):
    kind = "F" if mode[0] == "F" else "S"
    lo = LOF if kind == "F" else LOS
    def prio(p):
        if YS and mode in YMODES: return
        if mode != "B" and "noprio" not in OPT: e(f"s_setprio {p}")
        elif mode == "B" and "btog" in OPT: e(f"s_setprio {p}")
    for t in range(8):
        Sc, Sn = (S0, S1) if t % 2 == 0 else (S1, S0)
        tp, tn = (t - 1) % 8, (t + 1) % 8
        def X(*toks):
            for k in toks:
                X1(k)
                if YS and mode in YMODES and k in YS: e("s_nop 0")
        def X1(*toks):
            for k in toks: e(f"v_exp_f32 v{Sc+k}, v{Sc+k}" if isinstance(k, int) else pk(Sc, int(k[1:])))
        c0 = "0" if (t == 1 and kind == "F") else vr(AO, 16)
        pv0 = f"{MF32} {vr(AO,16)}, {vr(AV+8*tp,4)}, {vr(Sn,4)}, {c0}"
        pv1 = f"{MF32} {vr(AO,16)}, {vr(AV+8*tp+4,4)}, {vr(Sn+8,4)}, {vr(AO,16)}"
        qk = f"{MF32} {vr(Sn,16)}, {vr(AK+4*tn,4)}, {vr(AQ,4)}, {vr(ANM,16)}"
        if t == 1 and kind == "S":
            X(0); e(pk(Sn, 7)); X(1, 2)
            e("s_waitcnt lgkmcnt(0)", pv0); X(3, "p0", 4, "p1")
            e(pv1); X(5, 6, "p2", 7)
            e(qk); prio(lo)
            X(8, "p3", 9, 10, "p4", 11, 12)
            e("s_wakeup")
            prio(3)
            X("p5", 13, 14, "p6", 15)
            continue
        skip_pv = mode == "F0" and t == 0
        if mode == "F0" and t > 0: e(f"s_waitcnt vmcnt({max(0, 23 - 3*(t+1))})")
        if not skip_pv: e(pv0)
        X(0)
        if not skip_pv: e(pk(Sn, 7))
        X(1, 2)
        if not skip_pv: e(pv1)
        X(3, "p0", 4, "p1")
        if t == 7: e("s_waitcnt lgkmcnt(0)")
        if t == 7 and mode == "B": e(f"v_readfirstlane_b32 s{sPOLL}, v{Sn+4}")
        if skip_pv: e("s_waitcnt vmcnt(20)")
        e(qk)
        prio(lo)
        X(5, 6, "p2", 7, 8, "p3")
        if t == 0 and mode != "F0":
            if YS and mode in YMODES and not any(k in YS for k in (5, 6, 7, 8)): e("s_nop 0")
            if mode == "S":
                dump(e, kind); init_o(e, OS_POS); advance(e)
            elif mode == "F":
                dump(e, kind); advance(e)
            else:
                sk = e.uniq("nodump")
                e(f"s_cmp_eq_u32 s{sP}, {1 if mode == 'F' else 0}", f"s_cbranch_scc1 {sk}")
                dump(e, kind); advance(e)
                if mode == "B": e(f"s_add_u32 s{sExp}, s{sExp}, {OS_POS}")
                e.lab(sk)
                if mode == "B":
                    e(f"s_cmp_ge_u32 s{sPOLL}, s{sExp}", "s_cbranch_scc0 L_swait")
                    e.lab("L_swait_ret")
                    init_o(e, 0)
        X(9)
        if t == 6:
            if mode == "F0":
                e(f"v_mov_b32 v{Sc+4}, {CNT}")
                lds_wait(e, Sc+4, Sc+5, 8, ACNT, sleep=1)
            e(f"v_add_u32 v{vQ16}, 1024, v{vQ16}", f"v_add_u32 v{vAN}, 512, v{vAN}")
            rdq(e)
            if mode == "B": e(f"ds_read_addtid_b32 v{Sc+4}")
        X(10, "p4", 11, 12)
        w = WIN if kind == "F" else 12
        if w == 12: prio(3)
        X("p5", 13)
        if w == 13: prio(3)
        X(14)
        if w == 14: prio(3)
        X("p6", 15)
        if w == 15: prio(3)

def att_finish(e, kind):
    e(f"{MF32} {vr(AO,16)}, {vr(AV+8*7,4)}, {vr(S1,4)}, {vr(AO,16)}", pk(S1, 7), "s_nop 1")
    e(f"{MF32} {vr(AO,16)}, {vr(AV+8*7+4,4)}, {vr(S1+8,4)}, {vr(AO,16)}", "s_nop 11")
    dump(e, kind)
    e("s_waitcnt lgkmcnt(0)", "s_wakeup")
def qk0(e):
    e(f"{MF32} {vr(S0,16)}, {vr(AK,4)}, {vr(AQ,4)}, {vr(ANM,16)}", "s_nop 11")

def f_att(e):
    e.lab("L_f2")
    e("s_setprio 3")
    gather_bases(e)
    e(f"s_lshl_b32 s{sO+4}, s{sI}, 12", f"s_add_u32 s{sO+4}, s{sO+4}, {F1}", f"v_lshl_add_u32 v{vFa}, v0, 7, s{sO+4}")
    stamp(e, 6)
    if "proxy" in OPT:
        e(f"s_lshl_b32 s{sO+4}, s{sI}, 2", f"v_add_u32 v{vFa}, s{sO+4}, v{vC}")
        lds_wait(e, vFa, S0, 1, SOK, sleep=0)
    else: gpoll(e, vFa, S0, 0xffffffff, 0, sleep=1)
    stamp(e, 7)
    gather(e, 0, 8)
    sig(e, vC, v1_, GCNT)
    att_addrs(e)
    stamp(e, 8)
    lds_wait(e, vC, S0, 1, RDY1, sleep=0)
    rdq(e)
    e(f"s_mov_b32 s{sP}, 1", "s_waitcnt vmcnt(23) lgkmcnt(0)")
    stamp(e, 3); cstamp(e, 13)
    qk0(e)
    att_block(e, "F0")
    stamp(e, 21); cstamp(e, 10)
    e.L.append("    .p2align 3")
    e.lab("L_floop")
    att_block(e, "F")
    e(f"s_add_u32 s{sP}, s{sP}, 1", f"s_cmp_lt_u32 s{sP}, 8", "s_cbranch_scc1 L_floop")
    att_finish(e, "F")
    stamp(e, 4); cstamp(e, 11)
    e("s_branch L_f3")

def s_att(e):
    att_addrs(e)
    e(f"s_mov_b32 s{sP}, 0", f"v_mov_b32 v{S0}, m0", "s_setprio 0")
    stamp(e, 8)
    if SHOLD: lds_wait(e, vC, S0+1, SHOLD, HCNT, sleep=16)
    lds_wait(e, S0, S0+1, 1, sleep=6)
    rdq(e)
    e("s_waitcnt vmcnt(0) lgkmcnt(0)")
    stamp(e, 3); cstamp(e, 13)
    qk0(e)
    e.L.append("    .p2align 3")
    e.lab("L_bloop")
    att_block(e, "B")
    e(f"s_add_u32 s{sP}, s{sP}, 1", f"s_cmp_ge_u32 s{sP}, 8", "s_cbranch_scc1 L_sfin")
    e(f"s_cmp_lt_u32 s{sPOLL}, {OS_L + 7*OS_POS}", "s_cbranch_scc1 L_bloop")
    stamp(e, 5)
    e("s_setprio 3")
    e.L.append("    .p2align 3")
    e.lab("L_sloop")
    att_block(e, "S")
    e(f"s_add_u32 s{sP}, s{sP}, 1")
    if STAMPS:
        e(f"s_cmp_lg_u32 s{sP}, 4", "s_cbranch_scc1 L_sns"); stamp(e, 4); cstamp(e, 10); e.lab("L_sns")
    e(f"s_cmp_lt_u32 s{sP}, 8", "s_cbranch_scc1 L_sloop")
    e.lab("L_sfin")
    att_finish(e, "S")
    if "s3pub" in OPT:
        e(f"s_cmp_lg_u32 s{sI}, 3", "s_cbranch_scc1 L_sx")
        stamp(e, 9)
        lane_id(e)
        out_prep(e)
        pub(e, 4, fast=True)
        e(f"v_mov_b32 v{vHC}, {CNT}", f"ds_write_b32 v{vHC}, v{vHC} offset:{QST}", "s_waitcnt lgkmcnt(0)", "s_wakeup")
        e.lab("L_sx")
    finish(e)
    e.lab("L_swait")
    e(f"v_mov_b32 v{S0+4}, m0")
    lds_wait(e, S0+4, S0+5, f"s{sExp}", sleep=4)
    e("s_branch L_swait_ret")

sBX, sBH, sBW, sKC, sBXL, sBHL, sBWL = sT, sT+1, sT+2, sT+3, sT+4, sT+5, sT+6
BA = 8
aq, ak, av, ahk, ahv, MC = 24, 40, 56, 72, 76, 80
MP = MC + 4
FR = 104
def b_prep(e):
    e.c("---- B prep")
    e("v_lshrrev_b32 v20, 3, v0", "v_and_b32 v21, 7, v0", "v_lshrrev_b32 v22, 1, v20", "v_xor_b32 v23, v21, v22", "v_lshlrev_b32 v23, 4, v23")
    e("v_lshl_add_u32 v1, v20, 11, v23", "v_xor_b32 v2, 64, v1")
    e(f"s_lshl_b32 s{sO}, s{sI}, 5", f"v_xor_b32 v3, s{sO}, v1")
    e("v_and_b32 v22, 1, v22", "v_lshlrev_b32 v22, 2, v22", "v_xor_b32 v23, v21, v22", "v_lshlrev_b32 v23, 4, v23")
    e("v_mul_u32_u24 v20, 3072, v20", "v_add_u32 v4, v20, v23", "v_xor_b32 v16, 32, v4")
    e(f"s_and_b32 s{sO}, s{sI}, 1", f"s_lshr_b32 s{sO+1}, s{sI}, 1", f"s_lshl_b32 s{sO+1}, s{sO+1}, 10")
    e(f"s_lshl_b32 s{sBX}, s{sRB}, 16", f"s_max_u32 s{sBH}, s{sBX}, 16384", f"s_sub_u32 s{sBH}, s{sBH}, 16384")
    e(f"s_add_u32 s{sBX}, s{sBX}, s{sO+1}", f"s_add_u32 s{sBH}, s{sBH}, s{sO+1}")
    e(f"s_lshl_b32 s{sO+1}, s{sO}, 15", f"s_add_u32 s{sBX}, s{sBX}, s{sO+1}")
    e(f"s_lshl_b32 s{sO+1}, s{sO}, 13", f"s_add_u32 s{sBH}, s{sBH}, s{sO+1}")
    e(f"s_mul_i32 s{sBW}, s{sI}, {16*3072}", f"s_lshl_b32 s{sO+1}, s{sCB}, 7", f"s_add_u32 s{sBW}, s{sBW}, s{sO+1}")
    e(f"s_lshl_b32 s{sKC}, s{sRB}, 1", f"s_add_u32 s{sKC}, s{sKC}, s{sCB}")
    e(f"s_lshl_b32 s{sBWL}, s{sI}, 11", f"s_add_u32 s{sBXL}, s{sBWL}, {RXO + 2048}", f"s_lshl_b32 s{sBHL}, s{sI}, 9", f"s_add_u32 s{sBHL}, s{sBHL}, {RXO}")
    e("v_and_b32 v20, 31, v0", "v_lshrrev_b32 v21, 5, v0", "v_bfe_u32 v22, v0, 1, 3", "v_xor_b32 v22, v22, v21", "v_lshlrev_b32 v22, 4, v22", "v_lshl_add_u32 v22, v20, 7, v22")
    e(f"s_lshl_b32 s{sO}, s{sO}, 12", f"s_add_u32 s{sO}, s{sO}, {RXO + 2048}", f"v_add_u32 v{BA}, s{sO}, v22")
    for s in range(1, 4): e(f"v_xor_b32 v{BA+s}, {s<<5}, v{BA}")
    e("v_bfe_u32 v20, v0, 2, 2", "v_and_b32 v23, 3, v0", "v_and_b32 v17, 2, v20", "v_or_b32 v18, v17, v21", "v_bfe_u32 v19, v0, 4, 1")
    e(f"s_and_b32 s{sO}, s{sI}, 2", f"v_or_b32 v19, s{sO}, v19", "v_xor_b32 v18, v18, v19")
    e("v_lshl_add_u32 v22, v21, 3, v20", "v_lshlrev_b32 v22, 7, v22", "v_lshl_add_u32 v22, v18, 5, v22", f"v_lshl_add_u32 v{BA+4}, v23, 3, v22")
    e("v_lshrrev_b32 v21, 4, v0", "v_bfe_u32 v22, v0, 1, 3", "v_xor_b32 v22, v22, v21", "v_lshlrev_b32 v22, 4, v22", "v_and_b32 v19, 15, v0")
    e("v_lshl_add_u32 v22, v19, 7, v22", f"v_add_u32 v{BA+5}, {RXO}, v22", f"v_xor_b32 v{BA+6}, 64, v{BA+5}")
    e("v_and_b32 v18, 1, v21", "v_or_b32 v18, v17, v18", f"v_xor_b32 v18, s{sI}, v18")
    e("v_lshl_add_u32 v22, v21, 3, v20", "v_lshlrev_b32 v22, 7, v22", "v_lshl_add_u32 v22, v18, 5, v22", f"v_lshl_add_u32 v{BA+7}, v23, 3, v22")
    e(f"v_mov_b32 v{MC}, {hex(f32bits(-1e30))}")
    for r in range(1, 20): e(f"v_mov_b32 v{MC+r}, v{MC}")
    def setm(reg, r, shift):
        m = 0
        for l in range(64):
            d = (l & 31) - ((r & 3) + 8 * (r >> 2) + 4 * (l >> 5)) + shift
            if 0 <= d <= 7: m |= 1 << l
        if m: e(f"s_mov_b32 exec_lo, {hex(m & 0xffffffff)}", f"s_mov_b32 exec_hi, {hex(m >> 32)}", f"v_mov_b32 v{reg}, 0")
    for r in range(16): setm(MC + r, r, 0)
    e(f"s_cmp_eq_u32 s{sRB}, 0", "s_cbranch_scc1 L_nomp")
    for r in range(12, 16): setm(MP + r, r, 32)
    e.lab("L_nomp")
    e("s_mov_b64 exec, -1")

def h_qprep(e):
    T, QK, SA, SB, KS = 20, 104, 120, 136, 24
    e.c("---- H: max images of positions i, 4+i")
    e(f"v_lshlrev_b32 v{T+2}, 4, v0")
    e(f"s_lshl_b32 s{sO+4}, s{sI}, 13", f"s_add_u32 s{sO+4}, s{sO+4}, {KW + 32768}")
    e(f"s_lshl_b32 s{sO+5}, s{sI}, 12", f"s_add_u32 s{sO+5}, s{sO+5}, {F1 + 16384}", f"v_lshl_add_u32 v{T+3}, v0, 7, s{sO+5}")
    e(f"s_lshl_b32 s{sO+5}, s{sI}, 2", f"v_add_u32 v17, s{sO+5}, v{vHC}")
    e(f"s_lshl_b32 s{sO}, s{sI}, 10", f"s_add_u32 s{sO}, s{sO}, {QI_L}", f"v_add_u32 v{T}, s{sO}, v{T+2}", f"v_and_b32 v18, 0x1ff, v{T+2}")
    e(f"s_lshl_b32 s{sO}, s{sI}, 9", f"s_add_u32 s{sO}, s{sO}, {NM_L}", f"v_add_u32 v18, s{sO}, v18")
    if "proxy" in OPT:
        e(f"v_subrev_u32 v19, 16384, v{T+3}", f"s_sub_u32 s{sO+4}, s{sO+4}, 32768")
        lds_wait(e, vHC, vHT, 5, LAND + PGATE, sleep=1)
        gpoll(e, 19, T + 1, 0xffffffff, 0, sleep=1)
        for t in range(NSAMP): e(f"buffer_load_dwordx4 {vr(KS+4*t,4)}, v{T+2}, {sr(R_WS,4)}, s{sO+4} offen offset:{1024*t}{SC}")
        sig(e, 17, vH1, SOK)
        gpoll_issue(e, T + 3, T + 1, 0xffffffff)
    else:
        lds_wait(e, vHC, vHT, 5, LAND + (8 if "early" in OPT else 12), sleep=1)
        gpoll(e, T + 3, T + 1, 0x5555 if "sub" in OPT else 0xffffffff, 0, sleep=1)
        for t in range(NSAMP): e(f"buffer_load_dwordx4 {vr(KS+4*t,4)}, v{T+2}, {sr(R_WS,4)}, s{sO+4} offen offset:{1024*t}{SC}")
        if "sub" in OPT: gpoll_issue(e, T + 3, T + 1, 0xffffaaaa)
        else: sig(e, 17, vH1, SOK)
    lds_wait(e, vHC, vHT, 4, ACNT, sleep=1)
    e(f"ds_read_b128 {vr(QK,4)}, v{T}", f"ds_read_b128 {vr(QK+4,4)}, v{T} offset:4096", f"s_waitcnt vmcnt({1 if 'sub' in OPT else 0}) lgkmcnt(0)")
    for z in range(2):
        SS = (SA, SB, 40, 56)
        for t in range(NSAMP): e(f"{MF32} {vr(SS[t],16)}, {vr(KS+4*t,4)}, {vr(QK+4*z,4)}, 0")
        e(f"s_nop {12 - NSAMP}")
        m = 152 + 4*z
        regs = [SS[t] + r for t in range(NSAMP) for r in range(16)]
        e(f"v_max_f32 v{m}, v{regs[0]}, v{regs[1]}")
        for k in range(2, len(regs), 2): e(f"v_max3_f32 v{m}, v{m}, v{regs[k]}, v{regs[k+1]}")
        halfmax(e, m)
        e(f"v_sub_f32 v{m}, {hex(f32bits(-MOFF))}, v{m}")
        for r in range(1, 4): e(f"v_mov_b32 v{m+r}, v{m}")
        e(f"ds_write_b128 v18, {vr(m,4)} offset:{2048*z}")
        if z == 0: e(f"s_cmp_eq_u32 s{sI}, 0", "s_cselect_b32 exec_lo, 1, 0", "s_mov_b32 exec_hi, 0", f"ds_write_b32 v{vHC}, v{vH1} offset:{RDY1}", "s_mov_b64 exec, -1")
        else: sig(e, vHC, vH1, ACNT)
        stamp(e, 9 + z)
        if z == 0 and "sub" in OPT:
            gpoll_finish(e, T + 3, T + 1, 0xffffffff if "proxy" in OPT else 0xffffaaaa, 0)
            sig(e, 17, vH1, SOK)

class Lst(list):
    def __call__(self, *x): self.extend(x)
def b_dma_groups(j):
    ro = (j & 1) * RINGS
    G = [Lst() for _ in range(5)]
    g = G[0]
    g(f"s_add_u32 s{sO+1}, s{sKC}, {j}", f"s_and_b32 s{sO+1}, s{sO+1}, 7", f"s_lshl_b32 s{sO+2}, s{sO+1}, 7", f"s_mul_i32 s{sO+1}, s{sO+1}, {64*3072}")
    g(f"s_add_u32 s{sO+1}, s{sO+1}, s{sBW}", f"s_add_u32 s{sO+3}, s{sO+2}, s{sBX}")
    for u in range(2):
        g(f"s_add_u32 m0, s{sBXL}, {ro + u*1024}", f"s_add_u32 s{sO}, s{sO+3}, {u*16384}")
        dma(g, 1 + u, R_XB, sO, nt="bnt" in OPT)
    for p in range(3):
        g = G[1 + p]
        for u in range(2):
            g(f"s_add_u32 m0, s{sBWL}, {ro + p*8192 + u*1024}", f"s_add_u32 s{sO}, s{sO+1}, {p*1024 + u*8*3072}")
            dma(g, 4 if u == 0 else 16, R_WB, sO)
    g = G[4]
    g(f"s_add_u32 m0, s{sBHL}, {ro}", f"s_add_u32 s{sO}, s{sO+2}, s{sBH}", "s_mov_b32 exec_hi, 0")
    dma(g, 3, R_XB, sO)
    g("s_mov_b64 exec, -1")
    return G
def wo_groups(half):
    G = [Lst() for _ in range(4)]
    G[0](f"s_lshl_b32 s{sO+1}, s{sI}, 16", f"s_lshr_b32 s{sO+2}, s{sHP}, 1", f"s_lshl_b32 s{sO+2}, s{sO+2}, 7", f"s_add_u32 s{sO+1}, s{sO+1}, s{sO+2}", f"s_lshl_b32 s{sO+2}, s{sI}, 13")
    for u in range(8):
        g = G[u >> 1]
        g(f"s_add_u32 m0, s{sO+2}, {half*32768 + u*1024}", f"s_add_u32 s{sO}, s{sO+1}, {half*262144 + u*8192}")
        dma(g, 20, R_WO, sO)
    return G
def wo_voff(e):
    e("v_lshrrev_b32 v20, 3, v0", "v_bfe_u32 v21, v0, 4, 1", "v_lshlrev_b32 v21, 2, v21", "v_and_b32 v22, 7, v0", "v_xor_b32 v21, v21, v22", "v_lshlrev_b32 v21, 4, v21")
    e("v_lshl_add_u32 v20, v20, 10, v21", "v_lshlrev_b32 v21, 7, v0")
    e(f"s_cmp_eq_u32 s{sKIND}, 0", f"s_cselect_b32 s{R_WO}, s{R_WOA}, s{R_WOB}", f"s_cselect_b32 s{R_WO+1}, s{R_WOA+1}, s{R_WOB+1}", f"s_mov_b32 s{R_WO+2}, {hex(512 << 10)}")

def b_proj(e):
    D, XB_, HX_, WB_, NBUF = 4, FR, FR + 8, FR + 12, 12
    jobs = []
    def wreads(buf, areg, off):
        return [f"ds_read_b64_tr_b16 {vr(buf,2)}, v{areg} offset:{off}", f"ds_read_b64_tr_b16 {vr(buf+2,2)}, v{areg} offset:{off+512}"]
    for j in range(8):
        ro = (j & 1) * RINGS
        for s in range(4):
            x = XB_ + 4 * (s & 1)
            for p, acc in enumerate((aq, ak, av)):
                w = WB_ + 4 * (len(jobs) % NBUF)
                rds = ([f"ds_read_b128 {vr(x,4)}, v{BA+s} offset:{ro}"] if p == 0 else []) + wreads(w, BA + 4, ro + p*8192 + s*2048)
                A_, B_ = (w, x) if p < 2 else (x, w)
                jobs.append((rds, f"{MF32} {vr(acc,16)}, {vr(A_,4)}, {vr(B_,4)}, {'0' if (j == 0 and s == 0) else vr(acc,16)}"))
            s2, p = s >> 1, 1 + (s & 1)
            w = WB_ + 4 * (len(jobs) % NBUF)
            rds = ([f"ds_read_b128 {vr(HX_,4)}, v{BA+5+s2} offset:{ro}"] if p == 1 else []) + wreads(w, BA + 7, ro + p*8192 + s2*4096)
            acc = ahk if p == 1 else ahv
            A_, B_ = (w, HX_) if p == 1 else (HX_, w)
            jobs.append((rds, f"{MF16} {vr(acc,4)}, {vr(A_,4)}, {vr(B_,4)}, {'0' if (j == 0 and s2 == 0) else vr(acc,4)}"))
    q = []
    nxt = [0]
    def issue(upto):
        while nxt[0] < min(upto, 128):
            if "bnord" not in OPT or nxt[0] < 16:
                e(*jobs[nxt[0]][0]); q.extend([nxt[0]] * len(jobs[nxt[0]][0]))
            nxt[0] += 1
    e("s_waitcnt vmcnt(9)")
    sig(e, vHC, vH1, HCNT)
    lds_wait(e, vHC, vHT, 8, HCNT)
    stamp(e, 16)
    e(f"s_setprio {HM}")
    issue(D)
    G = []
    PA = 13
    for n in range(128):
        j, r = n >> 4, n & 15
        if n in q:
            last = len(q) - 1 - q[::-1].index(n)
            e(f"s_waitcnt lgkmcnt({len(q) - 1 - last})")
            del q[:last + 1]
        if "b16" in OPT and jobs[n][1].startswith(MF32):
            import re as _r
            m_ = _r.match(r"\S+ v\[(\d+):\d+\], (\S+) (\S+) ", jobs[n][1]); d_ = int(m_.group(1)) + 8*(n & 1)
            for z_ in range(2): e(f"{MF16} {vr(d_+4*z_,4)}, {m_.group(2)} {m_.group(3)} {vr(d_+4*z_,4)}")
        else: e(jobs[n][1] if "bnomf" not in OPT else "s_sleep 1")
        lim = 16 * (j + 1)
        if r < PA or j == 7: issue(min(n + 1 + D, lim))
        if r == 15 - D and j < 7:
            e(f"s_waitcnt vmcnt({1 if (j in (3, 4) and 'wpf' in OPT) else 3 if (j == 1 and 'touch' in OPT) else 0})")
            sig(e, vHC, vH1, HCNT); q.append(-1)
        if r == PA and j < 7:
            if "bwake" in OPT:
                e("s_waitcnt lgkmcnt(0)", "s_wakeup")
            lds_wait(e, vHC, vHT, 4 * (j + 3), HCNT, sleep=BSLEEP); del q[:]
            if j == 3: stamp(e, 17)
            G = b_dma_groups(j + 2) if j < 6 else wo_groups(0)
            if j == 0 and "touch" in OPT:
                g = Lst()
                g(f"s_lshl_b32 s{sO}, s{sRB}, 3", f"s_add_u32 s{sO}, s{sO}, s{sI}", f"s_lshl_b32 s{sO}, s{sO}, 3", f"s_add_u32 s{sO}, s{sO}, s{sCB}", f"s_mul_i32 s{sO}, s{sO}, {REC}", f"s_add_u32 s{sO}, s{sO}, {OA}")
                g("s_mov_b64 exec, 0x3ff", f"buffer_load_dword v22, v21, {sr(R_WS,4)}, s{sO} offen", f"s_add_u32 s{sO}, s{sO}, {32*REC}", f"buffer_load_dword v22, v21, {sr(R_WS,4)}, s{sO} offen")
                g(f"s_lshl_b32 s{sO}, s{sIDX}, 10", f"s_add_u32 s{sO}, s{sO}, {F4}", "s_mov_b64 exec, 0xff", f"buffer_load_dword v22, v21, {sr(R_WS,4)}, s{sO} offen", "s_mov_b64 exec, -1")
                G.append(g)
            if j in (2, 3) and "wpf" in OPT:
                g = Lst()
                g(f"s_and_b32 s{sO}, s{sIDX}, 31", f"s_lshl_b32 s{sO}, s{sO}, 2", f"s_add_u32 s{sO}, s{sO}, s{sI}", f"s_lshl_b32 s{sO}, s{sO}, 12", "s_mov_b32 exec_hi, 0")
                g(f"buffer_load_dword v22, v21, {sr(R_WOB if j == 2 else R_WOA,4)}, s{sO} offen", "s_mov_b64 exec, -1")
                G.append(g)
        if r >= PA and j < 7: issue(n + 1 + D - (1 if r < 15 else 0))
        for _ in range(2):
            if G: e(*G.pop(0))
    e("s_setprio 3")

def b_attn(e):
    Qf, Kf, Vf, Kp, Vp = 104, 112, 120, 128, 136
    PB = 140
    M = 152
    e.c("---- local attention")
    e(f"s_setprio {APR}")
    e("v_bfe_u32 v9, v0, 3, 1", "v_lshlrev_b32 v10, 10, v9", "v_bfe_u32 v9, v0, 4, 1", "v_lshl_add_u32 v10, v9, 7, v10")
    e("v_and_b32 v11, 7, v0", "v_lshl_add_u32 v10, v11, 4, v10", "v_lshrrev_b32 v12, 5, v0", "v_lshl_add_u32 v10, v12, 3, v10")
    e(f"s_and_b32 s{sO}, s{sI}, 2", f"s_lshl_b32 s{sO}, s{sO}, 10", f"s_add_u32 s{sO}, s{sO}, {EX_L}", f"s_and_b32 s{sO+1}, s{sI}, 1")
    e(f"s_lshl_b32 s{sO+2}, s{sO+1}, 8", f"s_add_u32 s{sO+2}, s{sO+2}, s{sO}", f"v_add_u32 v10, s{sO+2}, v10")
    e("v_lshlrev_b32 v13, 10, v12", "v_lshl_add_u32 v13, v9, 8, v13", "v_and_b32 v14, 15, v0", "v_lshl_add_u32 v13, v14, 3, v13")
    e(f"s_lshl_b32 s{sO+2}, s{sO+1}, 7", f"s_add_u32 s{sO+2}, s{sO+2}, s{sO}", f"v_add_u32 v13, s{sO+2}, v13")
    for j in range(4): e(f"v_cvt_pk_bf16_f32 v{16+j}, v{ahk+2*j}, v{ahk+2*j+1}")
    e("ds_write_b64 v10, v[16:17]", "ds_write_b64 v13, v[18:19] offset:512")
    sig(e, vHC, vH1, HCNT)
    e(f"s_lshl_b32 s{sO}, s{sI}, 10", f"s_add_u32 s{sO}, s{sO}, {EX_L}")
    e("v_lshl_add_u32 v11, v12, 3, v11", f"v_lshl_add_u32 v11, v11, 4, s{sO}", f"v_lshl_add_u32 v14, v0, 3, s{sO}")
    for j in range(8): e(f"v_cvt_pk_bf16_f32 v{Kf+j}, v{ak+2*j}, v{ak+2*j+1}")
    for j in range(8): e(f"v_cvt_pk_bf16_f32 v{Qf+j}, v{aq+2*j}, v{aq+2*j+1}")
    Sc0, Sc1, Sp = 24, 40, 8 + 56
    lds_wait(e, vHC, vHT, 40, HCNT)
    e(f"ds_read_b128 {vr(Kp,4)}, v11", f"ds_read_b128 {vr(Kp+4,4)}, v11 offset:256", f"ds_read_b64 {vr(Vp+2,2)}, v14 offset:512")
    e(f"s_setprio {HM}")
    e(f"{MF32} {vr(Sc0,16)}, {vr(Kf,4)}, {vr(Qf,4)}, {vr(MC,16)}", f"{MF32} {vr(Sc1,16)}, {vr(Kf+4,4)}, {vr(Qf+4,4)}, {vr(MC,16)}")
    e(f"s_setprio {APR}")
    for g in wo_groups(1): e(*g)
    for j in range(8): e(f"v_cvt_pk_bf16_f32 v{Vf+j}, v{av+2*j}, v{av+2*j+1}")
    for r in (Vp, Vp+1): e(f"v_mov_b32 v{r}, 0")
    for r in range(12): e(f"v_mov_b32 v{PB+r}, 0")
    e(f"s_lshl_b32 s{sO+1}, s{sRB}, 1", f"s_and_b32 s{sO+2}, s{sI}, 1", f"s_add_u32 s{sO+1}, s{sO+1}, s{sO+2}", f"s_lshl_b32 s{sO+1}, s{sO+1}, 15")
    e(f"s_lshl_b32 s{sO+2}, s{sCB}, 2", f"s_and_b32 s{sO+3}, s{sI}, 2", f"s_add_u32 s{sO+2}, s{sO+2}, s{sO+3}", f"s_lshl_b32 s{sO+2}, s{sO+2}, 10")
    e(f"s_add_u32 s{sO+1}, s{sO+1}, s{sO+2}", f"s_add_u32 s{sO+1}, s{sO+1}, {OB}")
    e("v_lshlrev_b32 v9, 4, v0", f"v_mov_b32 v22, {hex(f32bits(CSC))}", "s_waitcnt lgkmcnt(0)")
    for hd in range(2):
        Sc = (Sc0, Sc1)[hd]
        e(f"s_setprio {HM}", f"{MF32} {vr(Sp,16)}, {vr(Kp+4*hd,4)}, {vr(Qf+4*hd,4)}, {vr(MP,16)}", f"s_setprio {APR}")
        for k in range(4): e(f"v_max_f32 v{M+k}, v{Sc+k}, v{Sc+8+k}")
        e(f"v_max3_f32 v10, v{M}, v{M+1}, v{M+2}", "s_nop 5")
        for k in range(4): e(f"v_max3_f32 v{M+4+k}, v{Sc+4+k}, v{Sc+12+k}, v{Sp+12+k}")
        e(f"v_max3_f32 v10, v10, v{M+3}, v{M+4}", f"v_max3_f32 v10, v10, v{M+5}, v{M+6}", f"v_max_f32 v10, v10, v{M+7}")
        halfmax(e, 10)
        e("v_mul_f32 v10, v22, v10")
        for k in range(4): e(f"v_pk_fma_f32 {vr(M+2*k,2)}, {vr(M+2*k,2)}, v[22:23], v[10:11] op_sel_hi:[1,0,0] neg_lo:[0,0,1] neg_hi:[0,0,1]")
        for k in range(8): e(f"v_exp_f32 v{M+k}, v{M+k}")
        def cv(mask, dst, src):
            e(f"s_mov_b32 exec_lo, {hex(mask)}", f"s_mov_b32 exec_hi, {hex(mask)}")
            e(f"v_cvt_pk_bf16_f32 v{dst}, v{src}, v{src+1}", f"v_cvt_pk_bf16_f32 v{dst+1}, v{src+2}, v{src+3}")
        cv(0x0000ffff, PB, M); cv(0xffff0000, PB+4, M)
        cv(0x00ffff00, PB+2, M+4); cv(0xff000000, PB+6, M+4); cv(0x000000ff, PB+10, M+4)
        e("s_mov_b64 exec, -1")
        e(f"v_pk_add_f32 {vr(M,2)}, {vr(M,2)}, {vr(M+2,2)}", f"v_pk_add_f32 {vr(M+4,2)}, {vr(M+4,2)}, {vr(M+6,2)}")
        e(f"s_setprio {HM}")
        e(f"{MF32} {vr(Sc,16)}, {vr(Vf,4)}, {vr(PB,4)}, 0", f"{MF32} {vr(Sc,16)}, {vr(Vf+4,4)}, {vr(PB+4,4)}, {vr(Sc,16)}", f"{MF32} {vr(Sc,16)}, {vr(Vp,4)}, {vr(PB+8,4)}, {vr(Sc,16)}")
        e(f"s_setprio {APR}")
        e(f"v_pk_add_f32 {vr(M,2)}, {vr(M,2)}, {vr(M+4,2)}", f"v_add_f32 v10, v{M}, v{M+1}", "v_mov_b32 v11, v10", "s_nop 1")
        e("v_permlane32_swap_b32 v10, v11", "s_nop 0", "v_add_f32 v10, v10, v11", "v_rcp_f32 v10, v10", "s_nop 2")
        O = Sc + 8 * hd
        for k in range(4): e(f"v_pk_mul_f32 {vr(O+2*k,2)}, {vr(O+2*k,2)}, v[10:11] op_sel_hi:[1,0]")
        o = 12 + 4 * hd
        for j in range(4): e(f"v_cvt_pk_bf16_f32 v{o+j}, v{O+2*j}, v{O+2*j+1}")
        if hd == 0:
            e("s_waitcnt vmcnt(0)")
            sig(e, vHC, vH1, WLD)
        e(f"buffer_store_dwordx4 {vr(o,4)}, v9, {sr(R_WS,4)}, s{sO+1} offen offset:{1024*hd}{SC}")

vWt, vPo, vCk, vSt, vL16, vFl, vL4, vOC = 8, 9, 10, 11, 1, 2, 3, 4
tA, tB, vWt1, tD = 12, 13, 14, 15
GACC, GO, GW = 16, 48, 132
sTK, sOut = sT, sT+1
def out_table(e):
    W, Po, Ck, St = 164, 165, 166, 167
    e("v_lshrrev_b32 v30, 5, v0", "v_bfe_u32 v31, v0, 2, 2", "v_lshl_add_u32 v31, v30, 2, v31", f"v_lshlrev_b32 v{W}, 7, v31")
    e("v_bfe_u32 v31, v0, 3, 1", f"v_lshl_add_u32 v{W}, v31, 6, v{W}")
    e("v_and_b32 v31, 1, v0", f"v_lshl_add_u32 v{W}, v31, 5, v{W}", "v_bfe_u32 v31, v0, 1, 1", f"v_lshl_add_u32 v{W}, v31, 3, v{W}")
    e("v_bfe_u32 v31, v0, 4, 1", f"v_lshl_add_u32 v{W}, v31, 4, v{W}")
    e(f"v_and_b32 v{St}, 31, v0", f"v_lshlrev_b32 v{St}, 11, v{St}", f"v_lshl_add_u32 v{St}, v30, 5, v{St}")
    e(f"v_lshlrev_b32 v{Ck}, 2, v0", f"v_lshlrev_b32 v{Po}, 7, v0")
    e(f"v_lshlrev_b32 v31, 4, v0", f"v_add_u32 v31, {TB_L}, v31", "ds_write_b128 v31, v[164:167]")
def out_prep(e):
    e(f"v_lshlrev_b32 v{vL16}, 4, v0", f"v_add_u32 v{vFl}, {TB_L}, v{vL16}", f"ds_read_b128 v[8:11], v{vFl}")
    e(f"v_and_b32 v{vOC}, 3, v0", f"v_lshlrev_b32 v{vOC}, 8, v{vOC}", f"v_add_u32 v{vOC}, {PR_L + 1024}, v{vOC}")
    e(f"v_and_b32 v{vL4}, 31, v0", f"v_lshlrev_b32 v{vL4}, 2, v{vL4}")
    e(f"s_lshl_b32 s{sTK}, s{sTB}, 2", f"s_add_u32 s{sTK}, s{sTK}, s{sI}")

def pry_wait(e, lim, sleep=6):
    l = e.uniq("hp")
    e.lab(l)
    e(f"ds_read_b32 v{vHT}, v{vOC}", "s_waitcnt lgkmcnt(0)", f"v_cmp_gt_u32 vcc, {lim}, v{vHT}", f"s_cbranch_vccz {l}_d")
    spin_tail(e, l, sleep)
    e.lab(l + "_d")

pub_sites = []
def pub(e, add, keep=False, fast=False):
    site = len(pub_sites); pub_sites.append(site)
    e(f"s_add_u32 s{sO+4}, s{sI}, {add}", f"s_mov_b32 s{sRET}, {site}")
    if not fast:
        e(f"s_mul_i32 s{sO}, s{sO+4}, {OS_POS}", f"s_add_u32 s{sO}, s{sO}, {OS_L - OS_POS}")
        pry_wait(e, f"s{sO}", sleep=PSL)
    e("s_branch L_pub")
    e.lab(f"L_pub_ret{site}")

def pub_routine(e):
    P = GO
    site = 0
    e.lab("L_pub")
    e(f"s_mul_i32 s{sO+2}, s{sO+4}, {OS_POS}", f"s_add_u32 s{sO+2}, s{sO+2}, {OS_L}")
    e(f"v_add_u32 v{tA}, s{sO+2}, v{vL16}", f"v_add_u32 v{tB}, s{sO+2}, v{vL4}")
    e(f"s_and_b32 s{sO}, s{sO+4}, 1")
    if "swap" in OPT: e(f"s_cmp_lt_u32 s{sO+4}, 6", f"s_cselect_b32 s{sO+1}, 1, 0", f"s_xor_b32 s{sO}, s{sO}, s{sO+1}")
    e(f"s_lshl_b32 s{sO}, s{sO}, 2", f"s_lshr_b32 s{sO+1}, s{sO+4}, 1", f"s_add_u32 s{sO}, s{sO}, s{sO+1}")
    e(f"s_lshl_b32 s{sO+1}, s{sRB}, 3", f"s_add_u32 s{sO}, s{sO}, s{sO+1}", f"s_lshl_b32 s{sO}, s{sO}, 3", f"s_add_u32 s{sO}, s{sO}, s{sCB}")
    e(f"s_mul_i32 s{sO+3}, s{sO}, {REC}", f"s_add_u32 s{sO+3}, s{sO+3}, {OA}")
    e(f"s_lshl_b32 s{sO+5}, s{sIDX}, 3", f"s_add_u32 s{sO+5}, s{sO+5}, s{sO+4}", f"s_lshl_b32 s{sO+5}, s{sO+5}, 7", f"s_add_u32 s{sO+5}, s{sO+5}, {F4}")
    e(f"s_mov_b32 s{sO+1}, {hex(f32bits(LMAX))}")
    pry_wait(e, f"s{sO+2}", sleep=3)
    e(f"ds_read2st64_b32 {vr(P+32,2)}, v{tB} offset0:8 offset1:17", f"ds_read2st64_b32 {vr(P+34,2)}, v{tB} offset0:26 offset1:35")
    for a in range(2):
        for s in range(4): e(f"ds_read_b128 {vr(P+8*s+4*a,4)}, v{tA} offset:{s*OS_PAIR + a*1024}")
    e("s_waitcnt lgkmcnt(8)", f"v_pk_add_f32 {vr(P+32,2)}, {vr(P+32,2)}, {vr(P+34,2)}", f"v_add_f32 v{P+34}, v{P+32}, v{P+33}", f"v_rcp_f32 v{P+32}, v{P+34}")
    for a in range(2):
        e(f"s_waitcnt lgkmcnt({4-4*a})")
        for k in range(2):
            a_, b_, c_, d_ = (vr(P + 8*s + 4*a + 2*k, 2) for s in range(4))
            e(f"v_pk_add_f32 {a_}, {a_}, {b_}", f"v_pk_add_f32 {c_}, {c_}, {d_}", f"v_pk_add_f32 {a_}, {a_}, {c_}")
    e(f"v_pk_mul_f32 {vr(P+8,2)}, {vr(P,2)}, 0")
    for k in range(1, 4): e(f"v_pk_fma_f32 {vr(P+8,2)}, {vr(P+2*k,2)}, 0, {vr(P+8,2)}")
    e(f"v_add_f32 v{P+8}, v{P+8}, v{P+9}", f"v_add_f32 v{P+8}, v{P+8}, v{P+34}")
    e(f"v_cmp_ngt_f32 vcc, s{sO+1}, v{P+8}" if "forcefb" not in OPT else "v_cmp_eq_u32 vcc, v0, v0", "s_cbranch_vccnz L_exact")
    e(f"v_max3_f32 v{P+8}, abs(v{P}), abs(v{P+1}), abs(v{P+2})", f"v_max3_f32 v{P+9}, abs(v{P+3}), abs(v{P+4}), abs(v{P+5})")
    e(f"v_max3_f32 v{P+8}, v{P+8}, abs(v{P+6}), abs(v{P+7})", f"v_max_f32 v{P+8}, v{P+8}, v{P+9}")
    e(f"v_cmp_gt_f32 vcc, {hex(f32bits(2.0 ** -104))}, v{P+8}", "s_cbranch_vccnz L_exact")
    e.lab(f"L_exact_ret{site}")
    for k in range(4): e(f"v_pk_mul_f32 {vr(P+2*k,2)}, {vr(P+2*k,2)}, {vr(P+32,2)} op_sel_hi:[1,0]")
    for k in range(4): e(f"v_cvt_pk_bf16_f32 v{164+k}, v{P+2*k}, v{P+2*k+1}")
    e(f"s_cmp_ge_u32 s{sO+4}, {2*TAGH}", "s_cbranch_scc1 L_pub_tag")
    e(f"buffer_store_dwordx4 v[164:167], v{vL16}, {sr(R_WS,4)}, s{sO+3} offen{SC}", "s_waitcnt vmcnt(0)")
    set_flag(e, sO+5, tA, tB)
    e("s_branch L_pub_x")
    e.lab("L_pub_tag")
    mk_ck(e, tD, 164)
    if FASTH < 4:
        e(f"s_cmp_lt_u32 s{sO+4}, {2*FASTH}", "s_cbranch_scc1 L_pub_nf", f"s_add_u32 s{sO}, s{sO+3}, {FAST}")
        e(f"buffer_store_dwordx4 v[164:167], v{vL16}, {sr(R_WS,4)}, s{sO} offen", f"buffer_store_dword v{tD}, v{vCk}, {sr(R_WS,4)}, s{sO} offen offset:1024")
        e.lab("L_pub_nf")
    e(f"buffer_store_dwordx4 v[164:167], v{vL16}, {sr(R_WS,4)}, s{sO+3} offen{SC}", f"buffer_store_dword v{tD}, v{vCk}, {sr(R_WS,4)}, s{sO+3} offen offset:1024{SC}")
    set_flag(e, sO+5, tA, tB)
    e.lab("L_pub_x")
    for s in pub_sites[:-1]: e(f"s_cmp_eq_u32 s{sRET}, {s}", f"s_cbranch_scc1 L_pub_ret{s}")
    e(f"s_branch L_pub_ret{pub_sites[-1]}")

def exact(e):
    O, Q, Kr, V, S, NB, m, vo = GO, GO+36, GO+40, GO+44, GO+52, GO+68, GO+84, GO+86
    sK, sV = sO, sO+1
    e.lab("L_exact")
    e(f"s_mov_b32 s{sT+4}, 1", "s_waitcnt vmcnt(0)")
    e(f"s_lshl_b32 s{sK}, s{sO+4}, 10", f"s_add_u32 s{sK}, s{sK}, {QI_L}", f"v_add_u32 v{m}, s{sK}, v{vL16}", f"ds_read_b128 {vr(Q,4)}, v{m}")
    e(f"v_and_b32 v{m}, 31, v0", f"v_cmp_eq_u32 vcc, 16, v{m}", f"v_mov_b32 v{m+1}, 0x4f804f80", f"v_lshrrev_b32 v{vo}, 5, v0", f"v_cndmask_b32 v{V}, 0, v{m+1}, vcc")
    for r in range(1, 8): e(f"v_mov_b32 v{V+r}, v{V}")
    e(f"v_lshlrev_b32 v{vo}, 8, v{vo}", f"v_and_b32 v{m}, 15, v0", f"v_lshl_add_u32 v{vo}, v{m}, 4, v{vo}")
    for r in range(16): e(f"v_mov_b32 v{O+r}, 0")
    e(f"v_mov_b32 v{m}, 0xff800000", f"s_mov_b32 s{sK}, {KW}", "s_waitcnt lgkmcnt(0)")
    e.lab("L_ex1")
    e(f"buffer_load_dwordx4 {vr(Kr,4)}, v{vL16}, {sr(R_WS,4)}, s{sK} offen{SC}", "s_waitcnt vmcnt(0)")
    e(f"{MF32} {vr(S,16)}, {vr(Kr,4)}, {vr(Q,4)}, 0", "s_nop 11")
    for k in range(0, 16, 2): e(f"v_max3_f32 v{m}, v{m}, v{S+k}, v{S+k+1}")
    e(f"s_add_u32 s{sK}, s{sK}, 1024", f"s_cmp_lt_u32 s{sK}, {KW + 65536}", "s_cbranch_scc1 L_ex1")
    halfmax(e, m)
    for r in range(16): e(f"v_sub_f32 v{NB+r}, 0, v{m}")
    e(f"s_mov_b32 s{sK}, {KW}", f"s_mov_b32 s{sV}, {VW}")
    e.lab("L_ex2")
    e(f"buffer_load_dwordx4 {vr(Kr,4)}, v{vL16}, {sr(R_WS,4)}, s{sK} offen{SC}", "s_mov_b32 exec_lo, 0xffff", "s_mov_b32 exec_hi, 0xffff")
    e(f"buffer_load_dwordx4 {vr(V,4)}, v{vo}, {sr(R_WS,4)}, s{sV} offen{SC}", f"buffer_load_dwordx4 {vr(V+4,4)}, v{vo}, {sr(R_WS,4)}, s{sV} offen offset:512{SC}")
    e("s_mov_b64 exec, -1", "s_waitcnt vmcnt(0)")
    e(f"{MF32} {vr(S,16)}, {vr(Kr,4)}, {vr(Q,4)}, {vr(NB,16)}", "s_nop 11")
    for k in range(16): e(f"v_exp_f32 v{S+k}, v{S+k}")
    e("s_nop 0")
    for j in range(8): e(pk(S, j))
    e("s_nop 1", f"{MF32} {vr(O,16)}, {vr(V,4)}, {vr(S,4)}, {vr(O,16)}", f"{MF32} {vr(O,16)}, {vr(V+4,4)}, {vr(S+8,4)}, {vr(O,16)}")
    e(f"s_add_u32 s{sK}, s{sK}, 1024", f"s_add_u32 s{sV}, s{sV}, 1024", f"s_cmp_lt_u32 s{sK}, {KW + 65536}", "s_cbranch_scc1 L_ex2")
    e("s_nop 11", f"v_mov_b32 v{m}, v{O+8}", "s_nop 1", f"v_permlane32_swap_b32 v{O+8}, v{m}", "s_nop 0", f"v_rcp_f32 v{GO+32}, v{O+8}", "s_nop 0")
    e("s_branch L_exact_ret0")

def fetch(e, hl, c0, c1, base, ck=None):
    for c in range(c0, c1):
        e(f"s_add_u32 s{sO}, s{sT+2}, {(hl*8 + c)*REC}")
        e(f"buffer_load_dwordx4 {vr(base+4*c,4)}, v{vL16}, {sr(R_WS,4)}, s{sO} offen{SC}")
        if ck is not None: e(f"buffer_load_dword v{ck+c}, v{vCk}, {sr(R_WS,4)}, s{sO} offen offset:1024{SC}")
def verify(e, c0, c1, base, ck, younger, hl=3, sleep=0):
    l = e.uniq("vf")
    e(f"s_waitcnt vmcnt({younger})", f"s_branch {l}_v")
    e.lab(l)
    if hl >= FASTH:
        e(f"s_add_u32 s{sT+6}, s{sT+6}, 1", f"s_and_b32 s{sO}, s{sT+6}, {FTRY-1}", f"s_cselect_b32 s{sO}, 0, {FAST}", f"s_xor_b32 s{sT+5}, s{sT+5}, s{sO}", f"s_add_u32 s{sT+2}, s{sT+3}, s{sT+5}")
    fetch(e, hl, c0, c1, base, ck)
    e("s_waitcnt vmcnt(0)")
    e.lab(l + "_v")
    for c in range(c0, c1): chk(e, tA, tB, base + 4*c, ck + c, c == c0)
    e(f"v_cmp_ne_u32 vcc, 0, v{tA}", f"s_cbranch_vccz {l}_d")
    spin_tail(e, l, sleep)
    e.lab(l + "_d")
    e(f"s_mov_b32 s{sT+6}, 0")
def mul_a(e, steps, pre=True, vm=None, after=None):
    n = len(steps)
    def rdw(k):
        b = GW + 8*(k & 3); o = steps[k][0] * 2048
        for ct, va in enumerate((vWt, vWt1)):
            e(f"ds_read_b64_tr_b16 {vr(b+4*ct,2)}, v{va} offset:{o}", f"ds_read_b64_tr_b16 {vr(b+4*ct+2,2)}, v{va} offset:{o+1024}")
    if pre:
        for k in range(2): rdw(k)
        return
    for k in range(n):
        if k + 2 < n: rdw(k + 2)
        e(f"s_waitcnt {'vmcnt(%d) ' % vm(k) if vm else ''}lgkmcnt({min(8, 4*(n-1-k))})")
        for ct in range(2):
            e(f"{MF32} {vr(GACC+16*ct,16)}, {vr(GW+8*(k&3)+4*ct,4)}, {vr(steps[k][1],4)}, {'0' if steps[k][0] == 0 else vr(GACC+16*ct,16)}")
        if after: after(k)
def gpoll_s(e, vaddr, vtmp, pat, sleep):
    l = e.uniq("gp")
    e(f"s_lshl_b32 exec_lo, {hex(pat)}, s{sT+7}", "s_mov_b32 exec_hi, exec_lo")
    e.lab(l)
    e(f"buffer_load_dword v{vtmp}, v{vaddr}, {sr(R_WS,4)}, s{sT+8} offen sc1", "s_waitcnt vmcnt(0)")
    e(f"v_cmp_ne_u32 vcc, s{sEP}, v{vtmp}", "s_and_b64 exec, exec, vcc", f"s_cbranch_execz {l}_d")
    spin_tail(e, l, sleep)
    e.lab(l + "_d")
    e("s_mov_b64 exec, -1")

def out_store(e):
    e("s_nop 10")
    for ct in range(2):
        for j in range(8): e(f"v_cvt_pk_bf16_f32 v{GW+8*ct+j}, v{GACC+16*ct+2*j}, v{GACC+16*ct+2*j+1}")
        for z in range(2): e(f"buffer_store_dwordx4 {vr(GW+8*ct+4*z,4)}, v{vSt}, {sr(R_OUT,4)}, s{sOut} offen offset:{64*ct+16*z}")

def late_pubs(e):
    e.lab("L_latepub")
    if "s3pub" in OPT: e(f"s_cmp_eq_u32 s{sI}, 3", "s_cbranch_scc1 L_lpx")
    pub(e, 4)
    if "s3pub" not in OPT:
        e(f"s_cmp_lg_u32 s{sI}, 3", "s_cbranch_scc1 L_lpx")
        e(f"ds_write_b32 v{vHC}, v{vHC} offset:{QST}", "s_waitcnt lgkmcnt(0)", "s_wakeup")
    e.lab("L_lpx")
    finish(e)

def h_main(e):
    e.lab("L_h2")
    srds(e, (R_XB, R_WB, R_WOB, R_WOA, R_OUT))
    b_prep(e)
    out_table(e)
    if PFB:
        import re as _re
        lds_wait(e, vHC, vHT, 5, LAND + PFG, sleep=1)
        e("s_mov_b32 exec_lo, 0x01010101", "s_mov_b32 exec_hi, 0x01010101")
        for j in range(PFB):
            for g in b_dma_groups(j)[:4]:
                for x in g:
                    if "m0" in x: continue
                    m = _re.match(r"buffer_load_dwordx4 (v\d+), (.*) offen.* lds", x)
                    e(f"buffer_load_dword v100, {m.group(1)}, {m.group(2)} offen" if m else x)
        e("s_mov_b64 exec, -1")
    h_qprep(e)
    if "noH" in OPT: finish(e)
    wo_voff(e)
    lds_wait(e, vHC, vHT, 8, GCNT, sleep=2)
    for j in range(2):
        for g in b_dma_groups(j): e(*g)
    stamp(e, 4)
    b_proj(e)
    stamp(e, 5)
    b_attn(e)
    e("s_setprio 3")
    e(f"s_lshl_b32 s{sO+5}, s{sIDX}, 2", f"s_add_u32 s{sO+5}, s{sO+5}, s{sI}", f"s_lshl_b32 s{sO+5}, s{sO+5}, 7", f"s_add_u32 s{sO+5}, s{sO+5}, {F3}")
    out_prep(e)
    e("s_waitcnt vmcnt(0)")
    set_flag(e, sO+5, tA, tB)
    stamp(e, 6)
    e(f"s_cmp_eq_u32 s{sKIND}, 0", "s_cbranch_scc1 L_latepub")
    e.c("---- B out-projection")
    e(f"s_lshr_b32 s{sO+2}, s{sTK}, 1", f"s_lshl_b32 s{sOut}, s{sO+2}, 17", f"s_and_b32 s{sO+3}, s{sI}, 1", f"s_lshl_b32 s{sO}, s{sO+3}, 11", f"s_add_u32 s{sOut}, s{sOut}, s{sO}")
    e(f"s_lshl_b32 s{sO}, s{sHP}, 6", f"s_add_u32 s{sOut}, s{sOut}, s{sO}", f"s_add_u32 s{sOut}, s{sOut}, {1024 - 64}")
    e(f"s_lshl_b32 s{sO+2}, s{sO+2}, 12", f"s_lshl_b32 s{sO+3}, s{sO+3}, 7", f"s_add_u32 s{sO+2}, s{sO+2}, s{sO+3}", f"s_add_u32 s{sO+2}, s{sO+2}, {F3}")
    e(f"v_lshl_add_u32 v{vFl}, v0, 8, s{sO+2}")
    e(f"s_lshl_b32 s{sT+2}, s{sTK}, 15", f"s_add_u32 s{sT+2}, s{sT+2}, {OB}")
    gpoll(e, vFl, vHT, 0xffff, 0, sleep=F3SLEEP)
    stamp(e, 7)
    NB = 21
    oreg = lambda k: GO + 4 * (k % NB)
    def ldo(k):
        e(f"s_add_u32 s{sT+3}, s{sT+2}, {(k>>2)*4096}", f"buffer_load_dwordx4 {vr(oreg(k),4)}, v{vL16}, {sr(R_WS,4)}, s{sT+3} offen offset:{(k&3)*1024}{SC}")
    for k in range(NB):
        ldo(k)
        if OBW and k >= OBW: e(f"s_waitcnt vmcnt({OBW})")
    lds_wait(e, vHC, vHT, 4, WLD)
    e(f"v_lshl_add_u32 v{vSt}, v{vL4}, 9, v{vSt}", f"v_xor_b32 v{vWt1}, 64, v{vWt}")
    stamp(e, 8)
    e(f"s_setprio {FM}")
    SB_ = [(k, oreg(k)) for k in range(32)]
    if HGATE:
        S1_, S2_ = SB_[:32-NT], SB_[32-NT:]
        mul_a(e, S1_)
        mul_a(e, S1_, pre=False, vm=lambda k: min(OBW or 63, NB - 1), after=lambda k: ldo(k + NB) if k + NB < 32 else None)
        stamp(e, 18)
        mul_a(e, S2_)
        if HGATE == 8: lds_wait(e, vHC, vHT, 1, QST, sleep=PSL)
        else: pry_wait(e, OS_L + HGATE*OS_POS, sleep=PSL)
        e("s_setprio 1")
        mul_a(e, S2_, pre=False, vm=lambda k: NT - 1 - k)
    else:
        mul_a(e, SB_)
        mul_a(e, SB_, pre=False, vm=lambda k: min(NB - 1, 31 - k), after=lambda k: ldo(k + NB) if k + NB < 32 else None)
    out_store(e)
    finish(e)

def f_out(e):
    e.lab("L_f3")
    e.c("---- output stage A")
    if "noH" in OPT or "noF" in OPT: finish(e)
    srds(e, (R_OUT,))
    lane_id(e)
    out_prep(e)
    e(f"v_mov_b32 v{vHC}, {CNT}")
    pub(e, 0)
    stamp(e, 5)
    e(f"s_cmp_lg_u32 s{sKIND}, 0", "s_cbranch_scc1 L_latepub")
    e(f"s_lshl_b32 s{sOut}, s{sTK}, 16", f"s_lshl_b32 s{sO}, s{sHP}, 6", f"s_add_u32 s{sOut}, s{sOut}, s{sO}")
    e(f"v_xor_b32 v{vWt1}, 64, v{vWt}")
    e(f"s_mul_i32 s{sT+3}, s{sTK}, {32*REC}", f"s_add_u32 s{sT+3}, s{sT+3}, {OA}", f"s_mov_b32 s{sT+2}, s{sT+3}", f"s_mov_b32 s{sT+6}, 0")
    e(f"s_and_b32 s{sT+7}, s{sI}, 1", f"s_lshr_b32 s{sT+8}, s{sTK}, 1", f"s_lshl_b32 s{sT+8}, s{sT+8}, 13", f"s_add_u32 s{sT+8}, s{sT+8}, {F4}")
    if "swap" in OPT: e(f"s_xor_b32 s{sT+7}, s{sT+7}, 1")
    e(f"s_mul_i32 s{sT+9}, s{sT+7}, {OS_POS}")
    if FASTH < 4:
        e(f"s_add_u32 s{sO}, s{sT+3}, {FAST + 24*REC}", f"buffer_load_dword v6, v{vPo}, {sr(R_WS,4)}, s{sO} offen{SC}")
        e(f"s_add_u32 s{sO}, s{sO}, 8192", "s_mov_b64 exec, 0xffff", f"buffer_load_dword v6, v{vPo}, {sr(R_WS,4)}, s{sO} offen{SC}", "s_mov_b64 exec, -1")
    def gate(p, sleep):
        e(f"s_add_u32 s{sO+1}, s{sT+9}, {OS_L + p*OS_POS}")
        pry_wait(e, f"s{sO+1}", sleep=sleep)
    st = lambda hl, base, c0=0, c1=8: [(4*c + hl, base + 4*c) for c in range(c0, c1)]
    CK = GO + 64
    for hl in range(3):
        gate(2*hl + (1 if hl < G0 else 0), PSL if hl < 2 else 8)
        if hl < FASTH: gpoll_s(e, vPo, vHT, 0x01010101 << (2*hl), 6)
        elif hl == FASTH: e(f"s_mov_b32 s{sT+5}, {FAST}", f"s_add_u32 s{sT+2}, s{sT+3}, {FAST}")
        stamp(e, 16 + hl)
        fetch(e, hl, 0, 8, GO, CK if hl >= TAGH else None)
        if hl == 0:
            lds_wait(e, vHC, vHT, 4, WLD, sleep=8)
            e(f"s_setprio {FM}")
        A_ = st(hl, GO)
        mul_a(e, A_)
        if hl >= TAGH:
            verify(e, 0, 8, GO, CK, 0, hl=hl, sleep=4)
            mul_a(e, A_, pre=False)
        else: mul_a(e, A_, pre=False, vm=lambda k: 7 - k)
    stamp(e, 19)
    if "swap" in OPT: e(f"s_xor_b32 s{sT+7}, s{sT+7}, 1", f"s_mul_i32 s{sT+9}, s{sT+7}, {OS_POS}")
    gate(6, 3)
    mul_a(e, st(3, GO, 0, 4))
    if FASTH > 3: gpoll_s(e, vPo, vHT, 0x40404040, 1)
    elif FASTH == 3: e(f"s_mov_b32 s{sT+5}, {FAST}", f"s_add_u32 s{sT+2}, s{sT+3}, {FAST}")
    fetch(e, 3, 0, 8, GO, CK)
    verify(e, 0, 4, GO, CK, 8)
    stamp(e, 9)
    mul_a(e, st(3, GO, 0, 4), pre=False)
    mul_a(e, st(3, GO, 4, 8))
    verify(e, 4, 8, GO, CK, 0)
    mul_a(e, st(3, GO, 4, 8), pre=False)
    out_store(e)
    e(f"s_xor_b32 s{sO}, s{sI}, 1", f"s_or_b32 s{sO}, s{sWG}, s{sO}", "s_cbranch_scc1 L_noep", f"s_mov_b32 s{sO}, {EPOCH_W}")
    set_flag(e, sO, tA, tB)
    e.lab("L_noep")
    finish(e)

def gen():
    e = Em()
    e.L.append(f".globl {KN}\n.p2align 8\n.type {KN},@function\n{KN}:")
    entry(e)
    h_kv(e)
    f_load(e)
    s_qproj(e)
    s_att(e)
    f_att(e)
    h_main(e)
    f_out(e)
    late_pubs(e)
    pub_routine(e)
    e.lab("L_codeend")
    exact(e)
    e.lab("L_end")
    e("s_endpgm")
    head = f"""; generated by work/gen16.py
; @launch grid=(256,1,1) block=(768,1,1) lds={LDS_BYTES}
.amdgcn_target "amdgcn-amd-amdhsa--gfx950"
.text
"""
    kd = f""".section .rodata,"a"
.p2align 6
.amdhsa_kernel {KN}
  .amdhsa_next_free_vgpr 168
  .amdhsa_next_free_sgpr 102
  .amdhsa_accum_offset 168
  .amdhsa_group_segment_fixed_size 0
  .amdhsa_kernarg_size 88
  .amdhsa_user_sgpr_count 2
  .amdhsa_user_sgpr_kernarg_segment_ptr 1
  .amdhsa_system_sgpr_workgroup_id_x 1
.end_amdhsa_kernel
"""
    return head + e.text() + kd

if __name__ == "__main__":
    args = [a for a in sys.argv[1:] if not a.startswith("-")]
    OPT.update(a[1:] for a in sys.argv[1:] if a.startswith("-"))
    if "stamps" in OPT: STAMPS = True
    OPT.update(("wpf", "sub"))
    if "ipub" not in OPT: OPT.add("s3pub")
    if "nogate" not in OPT: OPT.add("gate1")
    if "fast" not in OPT: OPT.add("nofast")

    for o in OPT:
        if o.startswith("moff"): MOFF = float(o[4:])
        if o.startswith("bd"): BDEPTH = int(o[2:])
        if o.startswith("hm"): HM = int(o[2:])
        if o.startswith("ns"): NSAMP = int(o[2:])
        if o.startswith("gz"): G0 = int(o[2:])
        if o.startswith("nt"): NT = int(o[2:])
        if o.startswith("pfb"): PFB = int(o[3:])
        if o.startswith("spf"): SPF = int(o[3:])
        if o.startswith("pfg"): PFG = int(o[3:])
        if o.startswith("tg"): TAGH = int(o[2:])
        if o.startswith("fh"): FASTH = int(o[2:])
        if o.startswith("nb"): NB1 = int(o[2:])
        if o.startswith("pg"): PGATE = int(o[2:])
        if o.startswith("lf"): LOF = int(o[2:])
        if o.startswith("ls"): LOS = int(o[2:])
        if o.startswith("fm"): FM = int(o[2:])
        if o.startswith("ap"): APR = int(o[2:])
        if o.startswith("ys"): YS = tuple(int(x) for x in o[2:].split("_"))
        if o == "yall": YMODES = ('F', 'F0', 'S')
        if o.startswith("ow"): OBW = int(o[2:])
        if o.startswith("sh"): SHOLD = int(o[2:])
        if o.startswith("hg"): HGATE = int(o[2:])
        if o.startswith("win"): WIN = int(o[3:])
        if o.startswith("osc"): OSC = " " + o[3:].replace("_", " ")
        if o.startswith("dly"): DLY = tuple(int(x) for x in o[3:].split("_"))
        if o.startswith("bs"): BSLEEP = int(o[2:])
    out = args[0] if args else f"cdna_kernels/{NAME}.s"
    open(out, "w").write(gen())
    print("wrote", out)
```

```python
import sys, math, struct

NAME = "concat_heads__grouped_kv_mqa__sliding_local_dilated__prompt"
KN = NAME + "_kernel"
def f32bits(x): return struct.unpack("<I", struct.pack("<f", x))[0]

class Em:
    def __init__(self): self.L = []; self.n = 0
    def __call__(self, *ss):
        for s in ss:
            if s.startswith("s_nop "):
                self.L += ["    s_nop 0"] * (int(s.split()[1]) + 1)
            else: self.L.append("    " + s)
    def lab(self, s): self.L.append(s + ":")
    def uniq(self, p): self.n += 1; return f"L_{p}_{self.n}"
    def c(self, s): self.L.append("    ; " + s)
    def text(self): return "\n".join(self.L) + "\n"

class Lst(list):
    def __call__(self, *x): self.extend(x)

def vr(b, n): return f"v[{b}:{b+n-1}]" if n > 1 else f"v{b}"
def sr(b, n): return f"s[{b}:{b+n-1}]" if n > 1 else f"s{b}"

sWG, sW = 2, 3
R_XA, R_WQ, R_WKV, R_WOA, R_XB, R_WB, R_WOB, R_OUT, R_WS = 32, 36, 40, 44, 48, 52, 56, 60, 64
R_WO = R_WKV
sRB, sCB, sTB, sHP, sSB, sKIND, sRET, sI = 72, 73, 74, 75, 76, 77, 78, 79
sT = 80
sO = 92
sPOLL, sEP, sSPIN, sIDX = 98, 99, 100, 101
sTAG = 71
SPIN_MAX = 60000
OB, OA, KW, VW, EPOCH_W, FL = 0, 2 << 20, 5 << 20, (5 << 20) + 65536, (5 << 20) + 131072, (5 << 20) + (256 << 10)
REC = 1280
F1, F3, F4 = FL, FL + (64 << 10), FL + (256 << 10)
WS_BYTES = 16 << 20
FAST = 8 << 20
K = 1024
LDS_BYTES = 160 * K
SLOT = 32 * K
WKV_L = 128 * K
QI_L, NM_L, CNT, PR_L = 144 * K, 152 * K, 156 * K + 512, 157 * K
HCNT, ACNT, GCNT, KVF, RDY1, QST, WLD, LAND, SOK = 0, 4, 8, 12, 16, 20, 24, 32, 48
RINGS = 34 * K
RXO = 24 * K
OS_L, OS_POS, OS_PAIR = 72 * K, 9216, 2304
EX_L = 68 * K
TB_L = 159 * K
WOA_L, WOB_L = 34 * K, 0
BDEPTH, HM, F3SLEEP, WIN, BSLEEP = 4, 1, 16, 12, 0
PSL = 20
FTRY = 16
HGATE = 8
CSC = 0.25 * math.log2(math.e)
MOFF = 100.0
NSAMP = 4
G0 = 3
NT = 21
PFB, PFG, SPF = 0, 0, 0
TAGH, FASTH = 1, 3
NB1 = 2
PGATE = 8
APR = 3
YS = ()
YMODES = ('F', 'F0')
OBW = 4
LOF, LOS, FM = 2, 0, 2
SHOLD = 0
LMAX = 2.0 ** 120
MF32 = "v_mfma_f32_32x32x16_bf16"
MF16 = "v_mfma_f32_16x16x32_bf16"
STAMPS = False
OPT = set()
ST = 12 << 20
SC = " sc1"
OSC = ""

def stamp(e, k):
    if STAMPS: e("s_memrealtime s[30:31]", "s_waitcnt lgkmcnt(0)", f"s_mov_b32 s{8+k}, s30")
def cstamp(e, k):
    if STAMPS: e("s_memtime s[30:31]", "s_waitcnt lgkmcnt(0)", f"s_mov_b32 s{8+k}, s30")
def stamp_init(e):
    if not STAMPS: return
    for k in range(1, 22): e(f"s_mov_b32 s{8+k}, 0")
    e("s_mov_b32 s8, s6", "s_mov_b32 s20, s4")
DLY = None
def finish(e):
    if DLY is not None:
        l = e.uniq("dly")
        stamp(e, 15)
        e(f"s_cmp_lg_u32 s{sW}, {DLY[0]}", f"s_cbranch_scc1 {l}_d")
        e(f"s_sub_u32 s4, s{8+DLY[1]}, s8", "s_lshl_b32 s4, s4, 1", "s_add_u32 s4, s4, 4000", "s_min_u32 s4, s4, 40000")
        e.lab(l)
        e("s_sleep 2", "s_memrealtime s[30:31]", "s_waitcnt lgkmcnt(0)", "s_sub_u32 s5, s30, s8", "s_cmp_lt_u32 s5, s4", f"s_cbranch_scc1 {l}")
        e.lab(l + "_d")
        e("s_endpgm")
        return
    if STAMPS:
        stamp(e, 15); cstamp(e, 14)
        e(f"s_mul_i32 s30, s{sWG}, 12", f"s_add_u32 s30, s30, s{sW}", "s_lshl_b32 s30, s30, 7", f"s_add_u32 s30, s30, {ST}")
        e("s_mov_b64 exec, 1", "v_mov_b32 v0, 0")
        for k in range(22): e(f"v_mov_b32 v{4+k}, s{8+k}")
        for k in range(6): e(f"buffer_store_dwordx4 {vr(4+4*k,4)}, v0, {sr(R_WS,4)}, s30 offen offset:{16*k}")
    e("s_endpgm")

def dma(e, voff, R, soff, nt=False):
    e(f"buffer_load_dwordx4 v{voff}, {sr(R,4)}, s{soff} offen{' nt' if nt else ''} lds")
def spin_tail(e, l, sleep):
    e(f"s_sleep {sleep}", f"s_add_u32 s{sSPIN}, s{sSPIN}, 1", f"s_cmp_lt_u32 s{sSPIN}, {SPIN_MAX}", f"s_cbranch_scc1 {l}")
def lds_wait(e, vaddr, vtmp, target, off=0, sleep=1):
    l = e.uniq("poll")
    e.lab(l)
    e(f"ds_read_b32 v{vtmp}, v{vaddr} offset:{off}", "s_waitcnt lgkmcnt(0)", f"v_readfirstlane_b32 s{sPOLL}, v{vtmp}")
    e(f"s_cmp_ge_u32 s{sPOLL}, {target}", f"s_cbranch_scc1 {l}_d")
    spin_tail(e, l, sleep)
    e.lab(l + "_d")
def sig(e, vaddr, vone, off):
    e("s_mov_b64 exec, 1", f"ds_add_u32 v{vaddr}, v{vone} offset:{off}", "s_mov_b64 exec, -1")
def load_epoch(e):
    e(f"s_mov_b32 s{sEP}, {EPOCH_W}", f"s_load_dword s{sEP}, s[{R_WS}:{R_WS+1}], s{sEP}")
def get_epoch(e):
    e("s_waitcnt lgkmcnt(0)", f"s_add_u32 s{sEP}, s{sEP}, 1", f"s_mul_i32 s{sTAG}, s{sEP}, 0x9e3779b1")
def gpoll(e, vaddr, vtmp, lo, hi, sleep=1):
    l = e.uniq("gp")
    e(f"s_mov_b32 exec_lo, {hex(lo)}", f"s_mov_b32 exec_hi, {hex(hi)}")
    e.lab(l)
    e(f"buffer_load_dword v{vtmp}, v{vaddr}, {sr(R_WS,4)}, 0 offen sc1", "s_waitcnt vmcnt(0)")
    e(f"v_cmp_ne_u32 vcc, s{sEP}, v{vtmp}", "s_and_b64 exec, exec, vcc", f"s_cbranch_execz {l}_d")
    spin_tail(e, l, sleep)
    e.lab(l + "_d")
    e("s_mov_b64 exec, -1")
def gpoll_issue(e, vaddr, vtmp, lo):
    e(f"s_mov_b32 exec_lo, {hex(lo)}", "s_mov_b32 exec_hi, 0", f"buffer_load_dword v{vtmp}, v{vaddr}, {sr(R_WS,4)}, 0 offen sc1", "s_mov_b64 exec, -1")
def gpoll_finish(e, vaddr, vtmp, lo, younger, sleep=1):
    l = e.uniq("gp")
    e(f"s_mov_b32 exec_lo, {hex(lo)}", "s_mov_b32 exec_hi, 0", f"s_waitcnt vmcnt({younger})", f"s_branch {l}_c")
    e.lab(l)
    e(f"buffer_load_dword v{vtmp}, v{vaddr}, {sr(R_WS,4)}, 0 offen sc1", "s_waitcnt vmcnt(0)")
    e.lab(l + "_c")
    e(f"v_cmp_ne_u32 vcc, s{sEP}, v{vtmp}", "s_and_b64 exec, exec, vcc", f"s_cbranch_execz {l}_d")
    spin_tail(e, l, sleep)
    e.lab(l + "_d")
    e("s_mov_b64 exec, -1")
def set_flag(e, soff, va, vd):
    e(f"v_mov_b32 v{va}, 0", f"v_mov_b32 v{vd}, s{sEP}", "s_mov_b64 exec, 1")
    e(f"buffer_store_dword v{vd}, v{va}, {sr(R_WS,4)}, s{soff} offen sc1", "s_mov_b64 exec, -1")
def mk_ck(e, dst, d):
    e(f"v_xad_u32 v{dst}, v{d}, s{sTAG}, v{d+1}", f"v_xad_u32 v{dst}, v{dst}, v{d+2}, v{d+3}")
def chk(e, acc, tmp, d, ck, first):
    mk_ck(e, tmp, d)
    e(f"v_xor_b32 v{acc}, v{tmp}, v{ck}" if first else f"v_bitop3_b32 v{acc}, v{acc}, v{tmp}, v{ck} bitop3:0xf6")
def lane_id(e):
    e("v_mbcnt_lo_u32_b32 v0, -1, 0", "v_mbcnt_hi_u32_b32 v0, -1, v0")
def xa_voff(e, b, t):
    e(f"v_lshrrev_b32 v{t}, 4, v0", f"v_and_b32 v{b}, 15, v0", f"v_xor_b32 v{b}, v{b}, v{t}", f"v_lshlrev_b32 v{b}, 4, v{b}")
    e(f"v_lshl_add_u32 v{b}, v{t}, 10, v{b}")
def halfmax(e, m):
    e(f"v_mov_b32 v{m+1}, v{m}", "s_nop 1", f"v_permlane32_swap_b32 v{m}, v{m+1}", "s_nop 0", f"v_max_f32 v{m}, v{m}, v{m+1}")
def negmax(e, S, m):
    e(f"v_max3_f32 v{m}, v{S}, v{S+1}, v{S+2}")
    for k in range(3, 15, 2): e(f"v_max3_f32 v{m}, v{m}, v{S+k}, v{S+k+1}")
    e(f"v_max_f32 v{m}, v{m}, v{S+15}")
    halfmax(e, m)
    e(f"v_sub_f32 v{m}, {hex(f32bits(-MOFF))}, v{m}")

def entry(e):
    e(f"s_cmp_ge_u32 s{sWG}, 256", "s_cbranch_scc1 L_end")
    e(f"s_and_b32 s{sO}, s{sWG}, 8", f"s_add_u32 s{sO}, s{sO}, 16")
    for R, off in ((R_XA, 0), (R_WQ, 8), (R_WS, 80)): e(f"s_load_dwordx2 s[{R}:{R+1}], s[0:1], {off}")
    e(f"s_load_dwordx2 s[{R_WKV}:{R_WKV+1}], s[0:1], s{sO}")
    if STAMPS: e("s_memrealtime s[6:7]", "s_memtime s[4:5]")
    e("v_lshrrev_b32 v1, 6, v0", "v_and_b32 v0, 63, v0")
    e(f"s_lshr_b32 s{sO+1}, s{sWG}, 3")
    e(f"v_readfirstlane_b32 s{sW}, v1")
    e(f"s_and_b32 s{sO}, s{sWG}, 7", f"s_lshl_b32 s{sIDX}, s{sO}, 5", f"s_add_u32 s{sIDX}, s{sIDX}, s{sO+1}")
    e(f"s_and_b32 s{sI}, s{sW}, 3", f"s_cmp_lt_u32 s{sW}, 8", "s_cbranch_scc1 L_nopf")
    e(f"s_getpc_b64 s[{sO+2}:{sO+3}]")
    e.lab("L_pc")
    e(f"s_lshl_b32 s{sO}, s{sO+1}, 2", f"s_add_u32 s{sO}, s{sO}, s{sI}", f"s_and_b32 s{sO}, s{sO}, 31", f"s_lshl_b32 s{sO}, s{sO}, 10")
    e(f"v_lshl_add_u32 v2, v0, 7, s{sO}", f"v_min_u32 v2, L_codeend-L_pc-4, v2", "s_mov_b64 exec, 0xff")
    e(f"global_load_dword v167, v2, s[{sO+2}:{sO+3}]", "s_mov_b64 exec, -1")
    e.lab("L_nopf")
    e(f"s_lshr_b32 s{sRB}, s{sIDX}, 3", f"s_and_b32 s{sCB}, s{sIDX}, 7", f"s_lshr_b32 s{sTB}, s{sIDX}, 4", f"s_and_b32 s{sHP}, s{sIDX}, 15")
    e(f"s_lshr_b32 s{sSB}, s{sCB}, 1", f"s_and_b32 s{sKIND}, s{sCB}, 1", f"s_mov_b32 s{sSPIN}, 0")
    if "perm" in OPT: e("s_mov_b32 s70, 0x07060302")
    for R, n in ((R_XA, 2 << 20), (R_WKV, 16384), (R_WQ, 512 << 10), (R_WS, WS_BYTES)):
        e(f"s_mov_b32 s{R+2}, {hex(n)}", f"s_mov_b32 s{R+3}, 0x20000")
    e(f"s_cmp_ge_u32 s{sW}, 8", "s_cbranch_scc1 L_q", f"s_cmp_ge_u32 s{sW}, 4", "s_cbranch_scc1 L_aux")
def srds(e, lst):
    size = {R_WOA: 512 << 10, R_XB: 2 << 20, R_WB: 1536 << 10, R_WOB: 512 << 10, R_OUT: 4 << 20}
    slot = {R_WOA: 32, R_XB: 40, R_WB: 48, R_WOB: 56, R_OUT: 64}
    for R in lst: e(f"s_load_dwordx2 s[{R}:{R+1}], s[0:1], {slot[R]}", f"s_mov_b32 s{R+2}, {hex(size[R])}", f"s_mov_b32 s{R+3}, 0x20000")

vHC, vH1, vHT = 5, 6, 7
def h_kv(e):
    fx, fw, acc = 32, 48, 24
    e.c("---- H: K/V projection")
    e("s_setprio 3")
    xa_voff(e, 8, 12)
    for z in range(1, 4): e(f"v_xor_b32 v{8+z}, {z<<6}, v8")
    e("v_lshlrev_b32 v12, 4, v0")
    e(f"s_add_u32 s{sO+3}, s{sRB}, s{sI}", f"s_and_b32 s{sO+3}, s{sO+3}, 3")
    e(f"s_lshr_b32 s{sO+1}, s{sIDX}, 1", f"s_lshl_b32 s{sO+1}, s{sO+1}, 14", f"s_lshl_b32 s{sO+2}, s{sO+3}, 8", f"s_add_u32 s{sO+1}, s{sO+1}, s{sO+2}")
    e(f"s_lshl_b32 s{sT}, s{sI}, 15", f"s_lshl_b32 s{sO+2}, s{sSB}, 12", f"s_add_u32 s{sT}, s{sT}, s{sO+2}")
    e(f"s_lshl_b32 s{sT+1}, s{sI}, 12", f"s_add_u32 s{sT+1}, s{sT+1}, {WKV_L}", f"s_lshl_b32 s{sO+3}, s{sO+3}, 12")
    e("s_waitcnt lgkmcnt(0)")
    for z in range(4):
        e(f"s_add_u32 m0, s{sT}, {z*1024}", f"s_add_u32 s{sO}, s{sO+1}, {z*4096}")
        dma(e, 8 + z, R_XA, sO, nt=True)
        e(f"s_add_u32 m0, s{sT+1}, {z*1024}", f"s_add_u32 s{sO}, s{sO+3}, {z*1024}")
        dma(e, 12, R_WKV, sO)
    load_epoch(e)
    e("s_barrier")
    stamp_init(e)
    e(f"v_mov_b32 v{vHC}, {CNT}", f"v_mov_b32 v{vH1}, 1")
    e("v_and_b32 v2, 15, v0", "v_lshrrev_b32 v3, 4, v0", "v_xor_b32 v4, v2, v3", "v_lshlrev_b32 v4, 4, v4", "v_lshl_add_u32 v4, v2, 8, v4")
    e(f"v_add_u32 v8, s{sT}, v4")
    for q in range(1, 4): e(f"v_xor_b32 v{8+q}, {q<<6}, v8")
    e("v_bfe_u32 v4, v0, 2, 2", "v_lshl_add_u32 v4, v3, 3, v4", "v_lshlrev_b32 v4, 5, v4", "v_and_b32 v13, 3, v0", "v_lshl_add_u32 v4, v13, 3, v4")
    e(f"v_add_u32 v13, s{sT+1}, v4", f"v_add_u32 v14, s{sT+1}, v12")
    e(f"s_lshl_b32 s{sO}, s{sI}, 2", f"v_add_u32 v15, s{sO}, v{vHC}")
    e(f"s_lshl_b32 s{sO}, s{sRB}, 11")
    e(f"s_lshr_b32 s{sO+1}, s{sSB}, 1", f"s_lshl_b32 s{sO+1}, s{sO+1}, 10", f"s_and_b32 s{sO+2}, s{sSB}, 1", f"s_lshl_b32 s{sO+2}, s{sO+2}, 8")
    e(f"s_add_u32 s{sO+1}, s{sO+1}, s{sO+2}", f"s_add_u32 s{sO+1}, s{sO+1}, {KW}")
    e(f"s_lshl_b32 s{sO+2}, s{sSB}, 9", f"s_add_u32 s{sO+2}, s{sO+2}, {VW}")
    e(f"s_cmp_eq_u32 s{sKIND}, 0", f"s_cselect_b32 s{sO+1}, s{sO+1}, s{sO+2}", f"s_cselect_b32 s{sO+2}, 9, 8", f"s_add_u32 s{sO+4}, s{sO}, s{sO+1}")
    e("v_and_b32 v4, 1, v3", f"v_lshlrev_b32 v4, s{sO+2}, v4", "v_lshl_add_u32 v20, v2, 4, v4")
    e(f"s_lshl_b32 s{sO}, s{sKIND}, 28", f"s_add_u32 s{sO}, s{sO}, 0x3f800000", f"v_mov_b32 v22, s{sO}")
    e(f"s_lshl_b32 s{sO+5}, s{sIDX}, 7", f"s_add_u32 s{sO+5}, s{sO+5}, {F1}")
    get_epoch(e)
    e("s_waitcnt vmcnt(0)")
    stamp(e, 1)
    for q in range(4):
        e(f"ds_read_b128 {vr(fx+4*q,4)}, v{8+q}")
        e(f"ds_read_b64_tr_b16 {vr(fw+4*q,2)}, v13 offset:{q*1024}", f"ds_read_b64_tr_b16 {vr(fw+4*q+2,2)}, v13 offset:{q*1024+128}")
    sig(e, 15, vH1, LAND)
    e(f"s_cmp_lg_u32 s{sKIND}, 0", "s_cbranch_scc1 L_kv_v")
    for kind in range(2):
        for q in range(4):
            a, b = (fw, fx) if kind == 0 else (fx, fw)
            e(f"s_waitcnt lgkmcnt({10-3*q})", f"{MF16} {vr(acc,4)}, {vr(a+4*q,4)}, {vr(b+4*q,4)}, {'0' if q == 0 else vr(acc,4)}")
        if kind == 0:
            e("s_branch L_kv_d"); e.lab("L_kv_v")
    e.lab("L_kv_d")
    e(f"s_cmp_eq_u32 s{sI}, 0", "s_cbranch_scc1 L_kv_0", "s_nop 5")
    e(f"ds_write_b128 v14, {vr(acc,4)}")
    sig(e, vHC, vH1, HCNT)
    e("s_branch L_h2")
    e.lab("L_kv_0")
    lds_wait(e, vHC, vHT, 3, HCNT, sleep=0)
    for k in range(1, 4): e(f"ds_read_b128 {vr(fx+4*k,4)}, v14 offset:{k*4096}")
    e("s_waitcnt lgkmcnt(1)")
    for k in range(2): e(f"v_pk_add_f32 {vr(fx+4+2*k,2)}, {vr(fx+4+2*k,2)}, {vr(fx+8+2*k,2)}")
    e("s_waitcnt lgkmcnt(0)")
    for k in range(2): e(f"v_pk_add_f32 {vr(acc+2*k,2)}, {vr(acc+2*k,2)}, {vr(fx+12+2*k,2)}")
    for k in range(2): e(f"v_pk_add_f32 {vr(acc+2*k,2)}, {vr(acc+2*k,2)}, {vr(fx+4+2*k,2)}")
    for k in range(2): e(f"v_pk_mul_f32 {vr(acc+2*k,2)}, {vr(acc+2*k,2)}, v[22:23] op_sel_hi:[1,0]")
    e(f"v_cvt_pk_bf16_f32 v28, v{acc}, v{acc+1}", f"v_cvt_pk_bf16_f32 v29, v{acc+2}, v{acc+3}", "s_nop 1")
    e("v_permlane32_swap_b32 v28, v30", "v_permlane32_swap_b32 v29, v31", "s_mov_b32 exec_hi, 0", "s_nop 0")
    e(f"buffer_store_dwordx4 v[28:31], v20, {sr(R_WS,4)}, s{sO+4} offen{SC}", "s_mov_b64 exec, -1")
    if "gate1" in OPT: sig(e, vHC, vH1, KVF)
    sig(e, vHC, vH1, HCNT)
    stamp(e, 2)
    e("s_waitcnt vmcnt(0)")
    set_flag(e, sO+5, 2, 3)
    if "gate2" in OPT: sig(e, vHC, vH1, KVF)
    stamp(e, 3)
    e("s_branch L_h2")

vT0, vQ16, vAN, vT1, AQ, AK, AV, S0, S1, AO, ANM = 0, 1, 2, 3, 4, 8, 40, 104, 120, 136, 152
vVo, vFa, vC, v1_ = S1, S1+1, S1+2, S1+3
def zero_pr(e):
    e(f"s_lshl_b32 s{sO}, s{sW}, 8", f"s_add_u32 m0, s{sO}, {PR_L - 1024}", "v_mov_b32 v2, 0", "ds_write_addtid_b32 v2")
def f_load(e):
    e.lab("L_aux")
    e.c("---- F: bulk loads")
    zero_pr(e)
    xa_voff(e, 8, 12)
    e(f"s_lshl_b32 s{sO}, s{sI}, 6", f"v_xor_b32 v8, s{sO}, v8")
    e("v_lshrrev_b32 v2, 3, v0", "v_bfe_u32 v3, v0, 4, 1", "v_lshlrev_b32 v3, 2, v3", "v_and_b32 v4, 7, v0", "v_xor_b32 v4, v4, v3")
    e("v_lshlrev_b32 v4, 4, v4", "v_lshl_add_u32 v12, v2, 10, v4")
    e(f"s_lshl_b32 s{sT}, s{sI}, 12")
    e(f"s_lshl_b32 s{sT+1}, s{sI}, 15", f"s_lshl_b32 s{sO}, s{sCB}, 7", f"s_add_u32 s{sT+1}, s{sT+1}, s{sO}")
    e(f"s_lshl_b32 s{sT+2}, s{sRB}, 16", f"s_add_u32 s{sT+2}, s{sT+2}, s{sT}", f"s_lshl_b32 s{sT+9}, s{sI}, 10")
    for du in range(1, 4):
        e(f"s_add_u32 s{sO}, s{sSB}, {du}", f"s_and_b32 s{sO}, s{sO}, 3")
        e(f"s_lshl_b32 s{sT+2+du}, s{sO}, 14", f"s_add_u32 s{sT+2+du}, s{sT+2+du}, s{sT+2}")
        e(f"s_lshl_b32 s{sT+5+du}, s{sO}, 12", f"s_add_u32 s{sT+5+du}, s{sT+5+du}, s{sT+9}")
    e(f"v_mov_b32 v{vC}, {CNT}", f"v_mov_b32 v{v1_}, 1")
    e("s_waitcnt lgkmcnt(0)")
    load_epoch(e)
    e("s_barrier")
    def chunk(sg):
        e(f"s_add_u32 s{sO+1}, s{sRB}, {sg}", f"s_and_b32 s{sO+1}, s{sO+1}, 3", f"s_lshl_b32 s{sO+2}, s{sO+1}, 8")
        e(f"s_lshl_b32 s{sO+1}, s{sO+1}, 17", f"s_add_u32 s{sO+1}, s{sO+1}, s{sT+1}")
        for i in range(4):
            e(f"s_add_u32 m0, s{sT}, {sg*SLOT + 16384 + i*1024}", f"s_add_u32 s{sO}, s{sO+1}, {i*8192}")
            dma(e, 12, R_WQ, sO)
        for du in range(1, 4):
            e(f"s_add_u32 m0, s{sT+5+du}, {sg*SLOT}", f"s_add_u32 s{sO}, s{sT+2+du}, s{sO+2}")
            dma(e, 8, R_XA, sO, nt=True)
    nb = NB1
    for sg in range(nb): chunk(sg)
    stamp_init(e)
    att_consts(e)
    get_epoch(e)
    done = 0
    if nb < 4:
        e(f"s_waitcnt vmcnt({7*(nb-1)})"); sig(e, vC, v1_, LAND); done = 1
        if "nogate" not in OPT: lds_wait(e, vC, S0, 1, KVF, sleep=1)
        for sg in range(nb, 4):
            chunk(sg)
            if sg < 3:
                e(f"s_waitcnt vmcnt({7*(sg-done)})"); sig(e, vC, v1_, LAND + 4*done); done += 1
    stamp(e, 1)
    for sg in range(done, 4):
        e(f"s_waitcnt vmcnt({21-7*sg})"); sig(e, vC, v1_, LAND + 4*sg)
    stamp(e, 2)
    e("s_branch L_f2")

sAW, sP, sExp = sT+8, sT+9, sT+10
def att_consts(e):
    e(f"v_and_b32 v{S0}, 31, v0", f"v_cmp_eq_u32 vcc, 16, v{S0}", f"v_mov_b32 v{S0+1}, 0x4f804f80", f"v_lshlrev_b32 v{vQ16}, 4, v0")
    e(f"v_cndmask_b32 v{AV}, 0, v{S0+1}, vcc")
    for r in range(1, 64): e(f"v_mov_b32 v{AV+r}, v{AV}")
    e(f"v_lshlrev_b32 v{vAN}, 4, v{S0}", f"v_add_u32 v{vAN}, {NM_L}, v{vAN}")
    e(f"v_lshrrev_b32 v{vVo}, 5, v0", f"v_lshlrev_b32 v{vVo}, 8, v{vVo}", f"v_and_b32 v{S0+2}, 15, v0", f"v_lshl_add_u32 v{vVo}, v{S0+2}, 4, v{vVo}")
def gather_bases(e):
    e(f"s_sub_u32 s{sAW}, s{sW}, 4", f"s_lshl_b32 s{sO+2}, s{sAW}, 13")
    e(f"s_add_u32 s{sO}, s{sO+2}, {KW}", f"s_add_u32 s{sO+1}, s{sO+2}, {VW}", f"s_add_u32 s{sO+2}, s{sO}, 4096", f"s_add_u32 s{sO+3}, s{sO+1}, 4096")
def gather(e, t0, t1):
    for t in range(t0, t1):
        e(f"buffer_load_dwordx4 {vr(AK+4*t,4)}, v{vQ16}, {sr(R_WS,4)}, s{sO+2*(t>>2)} offen offset:{(t&3)*1024}{SC}")
        e("s_mov_b32 exec_lo, 0xffff", "s_mov_b32 exec_hi, 0xffff")
        for f in (2*t, 2*t+1):
            e(f"buffer_load_dwordx4 {vr(AV+4*f,4)}, v{vVo}, {sr(R_WS,4)}, s{sO+1+2*(t>>2)} offen offset:{(f&7)*512}{SC}")
        e("s_mov_b64 exec, -1")
def att_addrs(e):
    e(f"s_mul_i32 s{sExp}, s{sI}, {OS_PAIR}", f"s_add_u32 s{sExp}, s{sExp}, {OS_L}")
    e(f"v_add_u32 v{vT1}, s{sExp}, v{vQ16}", f"v_lshl_add_u32 v{vT0}, v0, 2, s{sExp}", f"v_add_u32 v{vQ16}, {QI_L}, v{vQ16}")
    e(f"s_lshl_b32 s{sO+4}, s{sI}, 8", f"s_add_u32 m0, s{sO+4}, {PR_L}")

def s_qproj(e):
    vXa, vWa, vXb, vWb, vSt, vLd = 8, 16, 17, 25, 26, 27
    acc, fr, NF, T = 104, 124, 5, 28
    a_, b_, c_, d_ = T, T+1, T+2, T+3
    e.lab("L_q")
    e.c("---- S: Q projection")
    zero_pr(e)
    e(f"s_mov_b32 m0, {CNT}", "s_nop 0", "ds_write_addtid_b32 v2", "s_waitcnt lgkmcnt(0)")
    load_epoch(e)
    e("s_barrier")
    stamp_init(e)
    e(f"v_mov_b32 v{vC}, {CNT}", f"v_mov_b32 v{v1_}, 1")
    if SPF:
        e("s_load_dwordx4 s[44:47], s[0:1], 40", f"s_lshl_b32 s{sO}, s{sIDX}, 2", f"s_add_u32 s{sO}, s{sO}, s{sI}")
        e(f"s_lshl_b32 s{sO+1}, s{sO}, 11", f"s_mul_i32 s{sO}, s{sO}, 1536", "s_waitcnt lgkmcnt(0)")
        e(f"s_add_u32 s44, s44, s{sO+1}", "s_addc_u32 s45, s45, 0", f"s_add_u32 s46, s46, s{sO}", "s_addc_u32 s47, s47, 0")
        for o_ in range(0, 1536, SPF): e(f"s_load_dword s48, s[46:47], {o_}")
        for o_ in range(0, 2048, SPF): e(f"s_load_dword s48, s[44:45], {o_}")
    if "tlb" in OPT:
        e("s_load_dwordx8 s[44:51], s[0:1], 32", "s_load_dwordx2 s[52:53], s[0:1], 64", "s_waitcnt lgkmcnt(0)")
        e(f"s_mov_b32 s{sO}, 0x200000", f"s_mov_b32 s{sO+1}, 0x1ffffc")
        for k, R in enumerate((44, 46, 48, 50, 52, R_WS)): e(f"s_load_dword s{54+k}, s[{R}:{R+1}], 0")
        e(f"s_load_dword s60, s[52:53], s{sO}", f"s_load_dword s61, s[{R_WS}:{R_WS+1}], s{sO}", f"s_load_dword s62, s[46:47], s{sO+1}")
    att_consts(e)
    e(f"s_and_b32 s{sO}, s{sI}, 1", f"s_lshl_b32 s{sO}, s{sO}, 13")
    e(f"v_and_b32 v{a_}, 31, v0", f"v_lshrrev_b32 v{b_}, 5, v0", f"v_and_b32 v{c_}, 15, v0", f"v_xor_b32 v{c_}, v{c_}, v{b_}")
    e(f"v_lshl_add_u32 v{d_}, v{a_}, 8, s{sO}", f"v_lshl_add_u32 v{vXa}, v{c_}, 4, v{d_}")
    for s in range(1, 8): e(f"v_xor_b32 v{vXa+s}, {s<<5}, v{vXa}")
    e(f"v_bfe_u32 v{a_}, v0, 2, 2", f"v_lshl_add_u32 v{c_}, v{b_}, 3, v{a_}", f"v_lshlrev_b32 v{c_}, 7, v{c_}", f"v_lshrrev_b32 v{a_}, 1, v{a_}")
    e(f"s_lshr_b32 s{sO}, s{sI}, 1", f"v_xor_b32 v{a_}, s{sO}, v{a_}", f"v_lshl_add_u32 v{c_}, v{a_}, 6, v{c_}")
    e(f"v_bfe_u32 v{a_}, v0, 4, 1", f"v_lshl_add_u32 v{c_}, v{a_}, 5, v{c_}", f"v_and_b32 v{a_}, 3, v0", f"v_lshl_add_u32 v{c_}, v{a_}, 3, v{c_}")
    e(f"v_add_u32 v{vWa}, 16384, v{c_}", f"v_lshl_add_u32 v{vLd}, v{a_}, 2, v{vC}")
    for s in range(9): e(f"v_add_u32 v{vXb+s}, 65536, v{vXa+s}")
    get_epoch(e)
    e(f"s_mov_b32 s{sT+6}, {hex(f32bits(CSC))}")
    e(f"s_and_b32 s{sO}, s{sI}, 2", f"s_add_u32 s{sO}, s{sO}, s{sI}")
    if "swap" in OPT:
        e(f"s_lshr_b32 s{sO+1}, s{sI}, 1", f"s_xor_b32 s{sO+1}, s{sO+1}, 1", f"s_xor_b32 s{sO+1}, s{sO+1}, s{sO}", f"s_xor_b32 s{sO}, s{sO}, 1")
    else: e(f"s_mov_b32 s{sO+1}, s{sO}")
    e(f"s_lshl_b32 s{sO}, s{sO}, 10", f"s_add_u32 s{sO}, s{sO}, {QI_L}", f"v_add_u32 v{b_}, s{sO}, v{vQ16}")
    e(f"s_lshl_b32 s{sO+1}, s{sO+1}, 10", f"s_add_u32 s{sO+1}, s{sO+1}, {QI_L}", f"v_add_u32 v{vSt}, s{sO+1}, v{vQ16}")
    e(f"s_lshl_b32 s{sO}, s{sI}, 2", f"v_add_u32 v{vFa}, s{sO}, v{vC}")
    gather_bases(e)
    def landwait(mask):
        lq = e.uniq("ql")
        e.lab(lq)
        e(f"ds_read_b32 v{a_}, v{vLd} offset:{LAND}", "s_waitcnt lgkmcnt(0)", f"v_cmp_gt_u32 vcc, 5, v{a_}")
        e(f"s_and_b32 s{sO+5}, vcc_lo, 15", f"s_and_b32 s{sO+4}, s{sO+5}, {mask}", f"s_cbranch_scc0 {lq}_d")
        spin_tail(e, lq, 1)
        e.lab(lq + "_d")
    def rd(n):
        sg, s = n >> 3, n & 7
        so = (sg & 1) * SLOT
        xa, wa = (vXa + s, vWa) if sg < 2 else (vXb + s, vWb)
        f = fr + 8 * (n % NF)
        e(f"ds_read_b128 {vr(f,4)}, v{xa} offset:{so}")
        e(f"ds_read_b64_tr_b16 {vr(f+4,2)}, v{wa} offset:{so+s*2048}", f"ds_read_b64_tr_b16 {vr(f+6,2)}, v{wa} offset:{so+s*2048+512}")
    e("s_setprio 3")
    landwait(1)
    stamp(e, 16)
    for n in range(NF): rd(n)
    for n in range(32):
        f = fr + 8 * (n % NF)
        e(f"s_waitcnt lgkmcnt({min(3*(NF-1), 3*(31-n))})", f"{MF32} {vr(acc,16)}, {vr(f+4,4)}, {vr(f,4)}, {'0' if n == 0 else vr(acc,16)}")
        if n + NF < 32:
            if (n + NF) % 8 == 0:
                bit = 1 << ((n + NF) >> 3)
                sk = e.uniq("lok")
                e(f"s_and_b32 s{sO+4}, s{sO+5}, {bit}", f"s_cbranch_scc0 {sk}")
                landwait(bit)
                e.lab(sk)
                if "qst" in OPT: stamp(e, 16 + ((n + NF) >> 3))
            rd(n + NF)
    if "qst" in OPT: stamp(e, 20)
    e(f"v_mov_b32 v{c_}, s{sT+6}", "s_nop 10")
    for r in range(8): e(f"v_pk_mul_f32 {vr(acc+2*r,2)}, {vr(acc+2*r,2)}, {vr(c_,2)} op_sel_hi:[1,0]")
    P = AO
    for j in range(8): e(f"v_cvt_pk_bf16_f32 v{P+j}, v{acc+2*j}, v{acc+2*j+1}")
    e(f"ds_write_b128 v{b_}, {vr(P,4)}", f"ds_write_b128 v{vSt}, {vr(P+4,4)} offset:2048")
    sig(e, vC, v1_, ACNT)
    stamp(e, 2)
    lds_wait(e, vFa, S0+2, 2 if 'proxy' in OPT else 1, SOK)
    lds_wait(e, vC, S0+2, 4, GCNT, sleep=2)
    if "sl" in OPT: lds_wait(e, vC, S0+2, 8, QST, sleep=2)
    if "sdelay" in OPT: lds_wait(e, vC, S0+2, 1, RDY1)
    stamp(e, 7)
    gather(e, 0, 8)
    sig(e, vC, v1_, GCNT)

def pk(S, j):
    d = S + (j if j < 4 else 4 + j)
    if "perm" in OPT: return f"v_perm_b32 v{d}, v{S+2*j+1}, v{S+2*j}, s70"
    return f"v_cvt_pk_bf16_f32 v{d}, v{S+2*j}, v{S+2*j+1}"
def rdq(e):
    e(f"ds_read_b128 {vr(AQ,4)}, v{vQ16}")
    for k in range(4): e(f"ds_read_b128 {vr(ANM+4*k,4)}, v{vAN}")
def dump(e, kind):
    e(f"ds_write_b128 v{vT1}, {vr(AO,4)}", f"ds_write_b128 v{vT1}, {vr(AO+4,4)} offset:1024", f"ds_write_b32 v{vT0}, v{AO+8} offset:2048")
    e(f"ds_write_addtid_b32 v{vT1} offset:{0 if kind == 'F' else 1024}")
def advance(e):
    e(f"v_add_u32 v{vT1}, {OS_POS}, v{vT1}", f"v_add_u32 v{vT0}, {OS_POS}, v{vT0}")
def init_o(e, off):
    e(f"ds_read_b128 {vr(AO,4)}, v{vT1} offset:{off}", f"ds_read_b128 {vr(AO+4,4)}, v{vT1} offset:{off+1024}", f"ds_read_b32 v{AO+8}, v{vT0} offset:{off+2048}")

def att_block(e, mode):
    kind = "F" if mode[0] == "F" else "S"
    lo = LOF if kind == "F" else LOS
    def prio(p):
        if YS and mode in YMODES: return
        if mode != "B" and "noprio" not in OPT: e(f"s_setprio {p}")
        elif mode == "B" and "btog" in OPT: e(f"s_setprio {p}")
    Q_ = Lst()
    q_ = Q_ if ("spr" in OPT and mode != "B") else e
    for t in range(8):
        Sc, Sn = (S0, S1) if t % 2 == 0 else (S1, S0)
        tp, tn = (t - 1) % 8, (t + 1) % 8
        assert not Q_
        def X(*toks):
            for k in toks:
                X1(k)
                if YS and mode in YMODES and k in YS: e("s_nop 0")
                if Q_: e(Q_.pop(0))
        def X1(*toks):
            for k in toks: e(f"v_exp_f32 v{Sc+k}, v{Sc+k}" if isinstance(k, int) else pk(Sc, int(k[1:])))
        c0 = "0" if (t == 1 and kind == "F") else vr(AO, 16)
        pv0 = f"{MF32} {vr(AO,16)}, {vr(AV+8*tp,4)}, {vr(Sn,4)}, {c0}"
        pv1 = f"{MF32} {vr(AO,16)}, {vr(AV+8*tp+4,4)}, {vr(Sn+8,4)}, {vr(AO,16)}"
        qk = f"{MF32} {vr(Sn,16)}, {vr(AK+4*tn,4)}, {vr(AQ,4)}, {vr(ANM,16)}"
        if t == 1 and kind == "S" and not (mode == "S" and "xt1" in OPT):
            X(0); e(pk(Sn, 7)); X(1, 2)
            if "spr" in OPT:
                X(3); e("s_waitcnt lgkmcnt(0)", pv0); X("p0", 4, "p1", 5)
                e(pv1); X(6, "p2", 7, 8)
                e(qk); prio(lo)
                X("p3", 9, 10, "p4", 11, 12)
                if mode == "B": e("s_nop 0")
            else:
                e("s_waitcnt lgkmcnt(0)", pv0); X(3, "p0", 4, "p1")
                e(pv1); X(5, 6, "p2", 7)
                e(qk); prio(lo)
                X(8, "p3", 9, 10, "p4", 11, 12)
            e("s_wakeup")
            prio(3)
            X("p5", 13, 14, "p6", 15)
            continue
        skip_pv = mode == "F0" and t == 0
        if mode == "F0" and t > 0: e(f"s_waitcnt vmcnt({max(0, 23 - 3*(t+1))})")
        if not skip_pv: e(pv0)
        X(0)
        if not skip_pv: e(pk(Sn, 7))
        X(1, 2)
        if not skip_pv: e(pv1)
        X(3, "p0", 4, "p1")
        if t == 7: e("s_waitcnt lgkmcnt(0)")
        if t == 7 and mode == "B": e(f"v_readfirstlane_b32 s{sPOLL}, v{Sn+4}")
        if skip_pv: e("s_waitcnt vmcnt(20)")
        e(qk)
        prio(lo)
        X(5, 6, "p2", 7, 8, "p3")
        if t == 0 and mode != "F0":
            if YS and mode in YMODES and not any(k in YS for k in (5, 6, 7, 8)): e("s_nop 0")
            if mode == "S":
                if "xdump" not in OPT: dump(q_, kind)
                if "xinit" not in OPT: init_o(q_, OS_POS)
                advance(q_)
                if Q_: e(Q_.pop(0))
            elif mode == "F":
                dump(q_, kind); advance(q_)
            else:
                sk = e.uniq("nodump")
                e(f"s_cmp_eq_u32 s{sP}, {1 if mode == 'F' else 0}", f"s_cbranch_scc1 {sk}")
                dump(e, kind); advance(e)
                if mode == "B": e(f"s_add_u32 s{sExp}, s{sExp}, {OS_POS}")
                e.lab(sk)
                if mode == "B":
                    e(f"s_cmp_ge_u32 s{sPOLL}, s{sExp}", "s_cbranch_scc0 L_swait")
                    e.lab("L_swait_ret")
                    init_o(e, 0)
        X(9)
        if t == 6:
            if mode == "F0":
                e(f"v_mov_b32 v{Sc+4}, {CNT}")
                lds_wait(e, Sc+4, Sc+5, 8, ACNT, sleep=1)
            e(f"v_add_u32 v{vQ16}, 1024, v{vQ16}", f"v_add_u32 v{vAN}, 512, v{vAN}")
            if not (mode == "S" and "xrdq" in OPT): rdq(q_)
            if mode == "B": e(f"ds_read_addtid_b32 v{Sc+4}")
        X(10, "p4", 11, 12)
        w = WIN if kind == "F" else 12
        if w == 12: prio(3)
        X("p5", 13)
        if w == 13: prio(3)
        X(14)
        if w == 14: prio(3)
        X("p6", 15)
        if w == 15: prio(3)

def att_finish(e, kind):
    e(f"{MF32} {vr(AO,16)}, {vr(AV+8*7,4)}, {vr(S1,4)}, {vr(AO,16)}", pk(S1, 7), "s_nop 1")
    e(f"{MF32} {vr(AO,16)}, {vr(AV+8*7+4,4)}, {vr(S1+8,4)}, {vr(AO,16)}", "s_nop 11")
    dump(e, kind)
    e("s_waitcnt lgkmcnt(0)", "s_wakeup")
def qk0(e):
    e(f"{MF32} {vr(S0,16)}, {vr(AK,4)}, {vr(AQ,4)}, {vr(ANM,16)}", "s_nop 11")

def f_att(e):
    e.lab("L_f2")
    e("s_setprio 3")
    gather_bases(e)
    e(f"s_lshl_b32 s{sO+4}, s{sI}, 12", f"s_add_u32 s{sO+4}, s{sO+4}, {F1}", f"v_lshl_add_u32 v{vFa}, v0, 7, s{sO+4}")
    stamp(e, 6)
    if "proxy" in OPT:
        e(f"s_lshl_b32 s{sO+4}, s{sI}, 2", f"v_add_u32 v{vFa}, s{sO+4}, v{vC}")
        lds_wait(e, vFa, S0, 1, SOK, sleep=0)
    else: gpoll(e, vFa, S0, 0xffffffff, 0, sleep=1)
    stamp(e, 7)
    gather(e, 0, 8)
    sig(e, vC, v1_, GCNT)
    att_addrs(e)
    stamp(e, 8)
    lds_wait(e, vC, S0, 1, RDY1, sleep=0)
    rdq(e)
    e(f"s_mov_b32 s{sP}, 1", "s_waitcnt vmcnt(23) lgkmcnt(0)")
    stamp(e, 3); cstamp(e, 13)
    qk0(e)
    att_block(e, "F0")
    stamp(e, 21); cstamp(e, 10)
    e.L.append("    .p2align 3")
    e.lab("L_floop")
    att_block(e, "F")
    e(f"s_add_u32 s{sP}, s{sP}, 1", f"s_cmp_lt_u32 s{sP}, 8", "s_cbranch_scc1 L_floop")
    att_finish(e, "F")
    stamp(e, 4); cstamp(e, 11)
    e("s_branch L_f3")

def s_att(e):
    att_addrs(e)
    e(f"s_mov_b32 s{sP}, 0", f"v_mov_b32 v{S0}, m0", "s_setprio 0")
    stamp(e, 8)
    if SHOLD: lds_wait(e, vC, S0+1, SHOLD, HCNT, sleep=16)
    lds_wait(e, S0, S0+1, 1, sleep=6)
    rdq(e)
    e("s_waitcnt vmcnt(0) lgkmcnt(0)")
    stamp(e, 3); cstamp(e, 13)
    qk0(e)
    e.L.append("    .p2align 3")
    e.lab("L_bloop")
    att_block(e, "B")
    e(f"s_add_u32 s{sP}, s{sP}, 1", f"s_cmp_ge_u32 s{sP}, 8", "s_cbranch_scc1 L_sfin")
    e(f"s_cmp_lt_u32 s{sPOLL}, {OS_L + 7*OS_POS}", "s_cbranch_scc1 L_bloop")
    stamp(e, 5)
    e("s_setprio 3")
    e.L.append("    .p2align 3")
    e.lab("L_sloop")
    att_block(e, "S")
    e(f"s_add_u32 s{sP}, s{sP}, 1")
    if STAMPS:
        e(f"s_cmp_lg_u32 s{sP}, 4", "s_cbranch_scc1 L_sns"); stamp(e, 4); cstamp(e, 10); e.lab("L_sns")
    e(f"s_cmp_lt_u32 s{sP}, 8", "s_cbranch_scc1 L_sloop")
    e.lab("L_sfin")
    att_finish(e, "S")
    if "s3pub" in OPT:
        e(f"s_cmp_lg_u32 s{sI}, 3", "s_cbranch_scc1 L_sx")
        stamp(e, 9)
        lane_id(e)
        out_prep(e)
        pub(e, 4, fast=True)
        e(f"v_mov_b32 v{vHC}, {CNT}", f"ds_write_b32 v{vHC}, v{vHC} offset:{QST}", "s_waitcnt lgkmcnt(0)", "s_wakeup")
        e.lab("L_sx")
    finish(e)
    e.lab("L_swait")
    e(f"v_mov_b32 v{S0+4}, m0")
    lds_wait(e, S0+4, S0+5, f"s{sExp}", sleep=4)
    e("s_branch L_swait_ret")

sBX, sBH, sBW, sKC, sBXL, sBHL, sBWL = sT, sT+1, sT+2, sT+3, sT+4, sT+5, sT+6
BA = 8
aq, ak, av, ahk, ahv, MC = 24, 40, 56, 72, 76, 80
MP = MC + 4
FR = 104
def b_prep(e):
    e.c("---- B prep")
    e("v_lshrrev_b32 v20, 3, v0", "v_and_b32 v21, 7, v0", "v_lshrrev_b32 v22, 1, v20", "v_xor_b32 v23, v21, v22", "v_lshlrev_b32 v23, 4, v23")
    e("v_lshl_add_u32 v1, v20, 11, v23", "v_xor_b32 v2, 64, v1")
    e(f"s_lshl_b32 s{sO}, s{sI}, 5", f"v_xor_b32 v3, s{sO}, v1")
    e("v_and_b32 v22, 1, v22", "v_lshlrev_b32 v22, 2, v22", "v_xor_b32 v23, v21, v22", "v_lshlrev_b32 v23, 4, v23")
    e("v_mul_u32_u24 v20, 3072, v20", "v_add_u32 v4, v20, v23", "v_xor_b32 v16, 32, v4")
    e(f"s_and_b32 s{sO}, s{sI}, 1", f"s_lshr_b32 s{sO+1}, s{sI}, 1", f"s_lshl_b32 s{sO+1}, s{sO+1}, 10")
    e(f"s_lshl_b32 s{sBX}, s{sRB}, 16", f"s_max_u32 s{sBH}, s{sBX}, 16384", f"s_sub_u32 s{sBH}, s{sBH}, 16384")
    e(f"s_add_u32 s{sBX}, s{sBX}, s{sO+1}", f"s_add_u32 s{sBH}, s{sBH}, s{sO+1}")
    e(f"s_lshl_b32 s{sO+1}, s{sO}, 15", f"s_add_u32 s{sBX}, s{sBX}, s{sO+1}")
    e(f"s_lshl_b32 s{sO+1}, s{sO}, 13", f"s_add_u32 s{sBH}, s{sBH}, s{sO+1}")
    e(f"s_mul_i32 s{sBW}, s{sI}, {16*3072}", f"s_lshl_b32 s{sO+1}, s{sCB}, 7", f"s_add_u32 s{sBW}, s{sBW}, s{sO+1}")
    e(f"s_lshl_b32 s{sKC}, s{sRB}, 1", f"s_add_u32 s{sKC}, s{sKC}, s{sCB}")
    e(f"s_lshl_b32 s{sBWL}, s{sI}, 11", f"s_add_u32 s{sBXL}, s{sBWL}, {RXO + 2048}", f"s_lshl_b32 s{sBHL}, s{sI}, 9", f"s_add_u32 s{sBHL}, s{sBHL}, {RXO}")
    e("v_and_b32 v20, 31, v0", "v_lshrrev_b32 v21, 5, v0", "v_bfe_u32 v22, v0, 1, 3", "v_xor_b32 v22, v22, v21", "v_lshlrev_b32 v22, 4, v22", "v_lshl_add_u32 v22, v20, 7, v22")
    e(f"s_lshl_b32 s{sO}, s{sO}, 12", f"s_add_u32 s{sO}, s{sO}, {RXO + 2048}", f"v_add_u32 v{BA}, s{sO}, v22")
    for s in range(1, 4): e(f"v_xor_b32 v{BA+s}, {s<<5}, v{BA}")
    e("v_bfe_u32 v20, v0, 2, 2", "v_and_b32 v23, 3, v0", "v_and_b32 v17, 2, v20", "v_or_b32 v18, v17, v21", "v_bfe_u32 v19, v0, 4, 1")
    e(f"s_and_b32 s{sO}, s{sI}, 2", f"v_or_b32 v19, s{sO}, v19", "v_xor_b32 v18, v18, v19")
    e("v_lshl_add_u32 v22, v21, 3, v20", "v_lshlrev_b32 v22, 7, v22", "v_lshl_add_u32 v22, v18, 5, v22", f"v_lshl_add_u32 v{BA+4}, v23, 3, v22")
    e("v_lshrrev_b32 v21, 4, v0", "v_bfe_u32 v22, v0, 1, 3", "v_xor_b32 v22, v22, v21", "v_lshlrev_b32 v22, 4, v22", "v_and_b32 v19, 15, v0")
    e("v_lshl_add_u32 v22, v19, 7, v22", f"v_add_u32 v{BA+5}, {RXO}, v22", f"v_xor_b32 v{BA+6}, 64, v{BA+5}")
    e("v_and_b32 v18, 1, v21", "v_or_b32 v18, v17, v18", f"v_xor_b32 v18, s{sI}, v18")
    e("v_lshl_add_u32 v22, v21, 3, v20", "v_lshlrev_b32 v22, 7, v22", "v_lshl_add_u32 v22, v18, 5, v22", f"v_lshl_add_u32 v{BA+7}, v23, 3, v22")
    e(f"v_mov_b32 v{MC}, {hex(f32bits(-1e30))}")
    for r in range(1, 20): e(f"v_mov_b32 v{MC+r}, v{MC}")
    def setm(reg, r, shift):
        m = 0
        for l in range(64):
            d = (l & 31) - ((r & 3) + 8 * (r >> 2) + 4 * (l >> 5)) + shift
            if 0 <= d <= 7: m |= 1 << l
        if m: e(f"s_mov_b32 exec_lo, {hex(m & 0xffffffff)}", f"s_mov_b32 exec_hi, {hex(m >> 32)}", f"v_mov_b32 v{reg}, 0")
    for r in range(16): setm(MC + r, r, 0)
    e(f"s_cmp_eq_u32 s{sRB}, 0", "s_cbranch_scc1 L_nomp")
    for r in range(12, 16): setm(MP + r, r, 32)
    e.lab("L_nomp")
    e("s_mov_b64 exec, -1")

def h_qprep(e):
    T, QK, SA, SB, KS = 20, 104, 120, 136, 24
    e.c("---- H: max images of positions i, 4+i")
    e(f"v_lshlrev_b32 v{T+2}, 4, v0")
    e(f"s_lshl_b32 s{sO+4}, s{sI}, 13", f"s_add_u32 s{sO+4}, s{sO+4}, {KW + 32768}")
    e(f"s_lshl_b32 s{sO+5}, s{sI}, 12", f"s_add_u32 s{sO+5}, s{sO+5}, {F1 + 16384}", f"v_lshl_add_u32 v{T+3}, v0, 7, s{sO+5}")
    e(f"s_lshl_b32 s{sO+5}, s{sI}, 2", f"v_add_u32 v17, s{sO+5}, v{vHC}")
    e(f"s_lshl_b32 s{sO}, s{sI}, 10", f"s_add_u32 s{sO}, s{sO}, {QI_L}", f"v_add_u32 v{T}, s{sO}, v{T+2}", f"v_and_b32 v18, 0x1ff, v{T+2}")
    e(f"s_lshl_b32 s{sO}, s{sI}, 9", f"s_add_u32 s{sO}, s{sO}, {NM_L}", f"v_add_u32 v18, s{sO}, v18")
    if "proxy" in OPT:
        e(f"v_subrev_u32 v19, 16384, v{T+3}", f"s_sub_u32 s{sO+4}, s{sO+4}, 32768")
        lds_wait(e, vHC, vHT, 5, LAND + PGATE, sleep=1)
        gpoll(e, 19, T + 1, 0xffffffff, 0, sleep=1)
        for t in range(NSAMP): e(f"buffer_load_dwordx4 {vr(KS+4*t,4)}, v{T+2}, {sr(R_WS,4)}, s{sO+4} offen offset:{1024*t}{SC}")
        sig(e, 17, vH1, SOK)
        gpoll_issue(e, T + 3, T + 1, 0xffffffff)
    else:
        lds_wait(e, vHC, vHT, 5, LAND + (8 if "early" in OPT else 12), sleep=1)
        gpoll(e, T + 3, T + 1, 0x5555 if "sub" in OPT else 0xffffffff, 0, sleep=1)
        for t in range(NSAMP): e(f"buffer_load_dwordx4 {vr(KS+4*t,4)}, v{T+2}, {sr(R_WS,4)}, s{sO+4} offen offset:{1024*t}{SC}")
        if "sub" in OPT: gpoll_issue(e, T + 3, T + 1, 0xffffaaaa)
        else: sig(e, 17, vH1, SOK)
    lds_wait(e, vHC, vHT, 4, ACNT, sleep=1)
    e(f"ds_read_b128 {vr(QK,4)}, v{T}", f"ds_read_b128 {vr(QK+4,4)}, v{T} offset:4096", f"s_waitcnt vmcnt({1 if 'sub' in OPT else 0}) lgkmcnt(0)")
    for z in range(2):
        SS = (SA, SB, 40, 56)
        for t in range(NSAMP): e(f"{MF32} {vr(SS[t],16)}, {vr(KS+4*t,4)}, {vr(QK+4*z,4)}, 0")
        e(f"s_nop {12 - NSAMP}")
        m = 152 + 4*z
        regs = [SS[t] + r for t in range(NSAMP) for r in range(16)]
        e(f"v_max_f32 v{m}, v{regs[0]}, v{regs[1]}")
        for k in range(2, len(regs), 2): e(f"v_max3_f32 v{m}, v{m}, v{regs[k]}, v{regs[k+1]}")
        halfmax(e, m)
        e(f"v_sub_f32 v{m}, {hex(f32bits(-MOFF))}, v{m}")
        for r in range(1, 4): e(f"v_mov_b32 v{m+r}, v{m}")
        e(f"ds_write_b128 v18, {vr(m,4)} offset:{2048*z}")
        if z == 0: e(f"s_cmp_eq_u32 s{sI}, 0", "s_cselect_b32 exec_lo, 1, 0", "s_mov_b32 exec_hi, 0", f"ds_write_b32 v{vHC}, v{vH1} offset:{RDY1}", "s_mov_b64 exec, -1")
        else: sig(e, vHC, vH1, ACNT)
        stamp(e, 9 + z)
        if z == 0 and "sub" in OPT:
            gpoll_finish(e, T + 3, T + 1, 0xffffffff if "proxy" in OPT else 0xffffaaaa, 0)
            sig(e, 17, vH1, SOK)

def b_dma_groups(j):
    ro = (j & 1) * RINGS
    G = [Lst() for _ in range(5)]
    g = G[0]
    g(f"s_add_u32 s{sO+1}, s{sKC}, {j}", f"s_and_b32 s{sO+1}, s{sO+1}, 7", f"s_lshl_b32 s{sO+2}, s{sO+1}, 7", f"s_mul_i32 s{sO+1}, s{sO+1}, {64*3072}")
    g(f"s_add_u32 s{sO+1}, s{sO+1}, s{sBW}", f"s_add_u32 s{sO+3}, s{sO+2}, s{sBX}")
    for u in range(2):
        g(f"s_add_u32 m0, s{sBXL}, {ro + u*1024}", f"s_add_u32 s{sO}, s{sO+3}, {u*16384}")
        dma(g, 1 + u, R_XB, sO, nt="bnt" in OPT)
    for p in range(3):
        g = G[1 + p]
        for u in range(2):
            g(f"s_add_u32 m0, s{sBWL}, {ro + p*8192 + u*1024}", f"s_add_u32 s{sO}, s{sO+1}, {p*1024 + u*8*3072}")
            dma(g, 4 if u == 0 else 16, R_WB, sO)
    g = G[4]
    g(f"s_add_u32 m0, s{sBHL}, {ro}", f"s_add_u32 s{sO}, s{sO+2}, s{sBH}", "s_mov_b32 exec_hi, 0")
    dma(g, 3, R_XB, sO)
    g("s_mov_b64 exec, -1")
    return G
def wo_groups(half):
    G = [Lst() for _ in range(4)]
    G[0](f"s_lshl_b32 s{sO+1}, s{sI}, 16", f"s_lshr_b32 s{sO+2}, s{sHP}, 1", f"s_lshl_b32 s{sO+2}, s{sO+2}, 7", f"s_add_u32 s{sO+1}, s{sO+1}, s{sO+2}", f"s_lshl_b32 s{sO+2}, s{sI}, 13")
    for u in range(8):
        g = G[u >> 1]
        g(f"s_add_u32 m0, s{sO+2}, {half*32768 + u*1024}", f"s_add_u32 s{sO}, s{sO+1}, {half*262144 + u*8192}")
        dma(g, 20, R_WO, sO)
    return G
def wo_voff(e):
    e("v_lshrrev_b32 v20, 3, v0", "v_bfe_u32 v21, v0, 4, 1", "v_lshlrev_b32 v21, 2, v21", "v_and_b32 v22, 7, v0", "v_xor_b32 v21, v21, v22", "v_lshlrev_b32 v21, 4, v21")
    e("v_lshl_add_u32 v20, v20, 10, v21", "v_lshlrev_b32 v21, 7, v0")
    e(f"s_cmp_eq_u32 s{sKIND}, 0", f"s_cselect_b32 s{R_WO}, s{R_WOA}, s{R_WOB}", f"s_cselect_b32 s{R_WO+1}, s{R_WOA+1}, s{R_WOB+1}", f"s_mov_b32 s{R_WO+2}, {hex(512 << 10)}")

def b_proj(e):
    D, XB_, HX_, WB_, NBUF = 4, FR, FR + 8, FR + 12, 12
    jobs = []
    def wreads(buf, areg, off):
        return [f"ds_read_b64_tr_b16 {vr(buf,2)}, v{areg} offset:{off}", f"ds_read_b64_tr_b16 {vr(buf+2,2)}, v{areg} offset:{off+512}"]
    for j in range(8):
        ro = (j & 1) * RINGS
        for s in range(4):
            x = XB_ + 4 * (s & 1)
            for p, acc in enumerate((aq, ak, av)):
                w = WB_ + 4 * (len(jobs) % NBUF)
                rds = ([f"ds_read_b128 {vr(x,4)}, v{BA+s} offset:{ro}"] if p == 0 else []) + wreads(w, BA + 4, ro + p*8192 + s*2048)
                A_, B_ = (w, x) if p < 2 else (x, w)
                jobs.append((rds, f"{MF32} {vr(acc,16)}, {vr(A_,4)}, {vr(B_,4)}, {'0' if (j == 0 and s == 0) else vr(acc,16)}"))
            s2, p = s >> 1, 1 + (s & 1)
            w = WB_ + 4 * (len(jobs) % NBUF)
            rds = ([f"ds_read_b128 {vr(HX_,4)}, v{BA+5+s2} offset:{ro}"] if p == 1 else []) + wreads(w, BA + 7, ro + p*8192 + s2*4096)
            acc = ahk if p == 1 else ahv
            A_, B_ = (w, HX_) if p == 1 else (HX_, w)
            jobs.append((rds, f"{MF16} {vr(acc,4)}, {vr(A_,4)}, {vr(B_,4)}, {'0' if (j == 0 and s2 == 0) else vr(acc,4)}"))
    q = []
    nxt = [0]
    def issue(upto):
        while nxt[0] < min(upto, 128):
            if "bnord" not in OPT or nxt[0] < 16:
                e(*jobs[nxt[0]][0]); q.extend([nxt[0]] * len(jobs[nxt[0]][0]))
            nxt[0] += 1
    e("s_waitcnt vmcnt(9)")
    sig(e, vHC, vH1, HCNT)
    lds_wait(e, vHC, vHT, 8, HCNT)
    stamp(e, 16)
    e(f"s_setprio {HM}")
    issue(D)
    G = []
    PA = 13
    for n in range(128):
        j, r = n >> 4, n & 15
        if n in q:
            last = len(q) - 1 - q[::-1].index(n)
            e(f"s_waitcnt lgkmcnt({len(q) - 1 - last})")
            del q[:last + 1]
        if "b16" in OPT and jobs[n][1].startswith(MF32):
            import re as _r
            m_ = _r.match(r"\S+ v\[(\d+):\d+\], (\S+) (\S+) ", jobs[n][1]); d_ = int(m_.group(1)) + 8*(n & 1)
            for z_ in range(2): e(f"{MF16} {vr(d_+4*z_,4)}, {m_.group(2)} {m_.group(3)} {vr(d_+4*z_,4)}")
        else: e(jobs[n][1] if "bnomf" not in OPT else "s_sleep 1")
        lim = 16 * (j + 1)
        if r < PA or j == 7: issue(min(n + 1 + D, lim))
        if r == 15 - D and j < 7:
            e(f"s_waitcnt vmcnt({1 if (j in (3, 4) and 'wpf' in OPT) else 3 if (j == 1 and 'touch' in OPT) else 0})")
            sig(e, vHC, vH1, HCNT); q.append(-1)
        if r == PA and j < 7:
            if "bwake" in OPT:
                e("s_waitcnt lgkmcnt(0)", "s_wakeup")
            lds_wait(e, vHC, vHT, 4 * (j + 3), HCNT, sleep=BSLEEP); del q[:]
            if j == 3: stamp(e, 17)
            G = b_dma_groups(j + 2) if j < 6 else wo_groups(0)
            if j == 0 and "touch" in OPT:
                g = Lst()
                g(f"s_lshl_b32 s{sO}, s{sRB}, 3", f"s_add_u32 s{sO}, s{sO}, s{sI}", f"s_lshl_b32 s{sO}, s{sO}, 3", f"s_add_u32 s{sO}, s{sO}, s{sCB}", f"s_mul_i32 s{sO}, s{sO}, {REC}", f"s_add_u32 s{sO}, s{sO}, {OA}")
                g("s_mov_b64 exec, 0x3ff", f"buffer_load_dword v22, v21, {sr(R_WS,4)}, s{sO} offen", f"s_add_u32 s{sO}, s{sO}, {32*REC}", f"buffer_load_dword v22, v21, {sr(R_WS,4)}, s{sO} offen")
                g(f"s_lshl_b32 s{sO}, s{sIDX}, 10", f"s_add_u32 s{sO}, s{sO}, {F4}", "s_mov_b64 exec, 0xff", f"buffer_load_dword v22, v21, {sr(R_WS,4)}, s{sO} offen", "s_mov_b64 exec, -1")
                G.append(g)
            if j in (2, 3) and "wpf" in OPT:
                g = Lst()
                g(f"s_and_b32 s{sO}, s{sIDX}, 31", f"s_lshl_b32 s{sO}, s{sO}, 2", f"s_add_u32 s{sO}, s{sO}, s{sI}", f"s_lshl_b32 s{sO}, s{sO}, 12", "s_mov_b32 exec_hi, 0")
                g(f"buffer_load_dword v22, v21, {sr(R_WOB if j == 2 else R_WOA,4)}, s{sO} offen", "s_mov_b64 exec, -1")
                G.append(g)
        if r >= PA and j < 7: issue(n + 1 + D - (1 if r < 15 else 0))
        for _ in range(2):
            if G: e(*G.pop(0))
    e("s_setprio 3")

def b_attn(e):
    Qf, Kf, Vf, Kp, Vp = 104, 112, 120, 128, 136
    PB = 140
    M = 152
    e.c("---- local attention")
    e(f"s_setprio {APR}")
    e("v_bfe_u32 v9, v0, 3, 1", "v_lshlrev_b32 v10, 10, v9", "v_bfe_u32 v9, v0, 4, 1", "v_lshl_add_u32 v10, v9, 7, v10")
    e("v_and_b32 v11, 7, v0", "v_lshl_add_u32 v10, v11, 4, v10", "v_lshrrev_b32 v12, 5, v0", "v_lshl_add_u32 v10, v12, 3, v10")
    e(f"s_and_b32 s{sO}, s{sI}, 2", f"s_lshl_b32 s{sO}, s{sO}, 10", f"s_add_u32 s{sO}, s{sO}, {EX_L}", f"s_and_b32 s{sO+1}, s{sI}, 1")
    e(f"s_lshl_b32 s{sO+2}, s{sO+1}, 8", f"s_add_u32 s{sO+2}, s{sO+2}, s{sO}", f"v_add_u32 v10, s{sO+2}, v10")
    e("v_lshlrev_b32 v13, 10, v12", "v_lshl_add_u32 v13, v9, 8, v13", "v_and_b32 v14, 15, v0", "v_lshl_add_u32 v13, v14, 3, v13")
    e(f"s_lshl_b32 s{sO+2}, s{sO+1}, 7", f"s_add_u32 s{sO+2}, s{sO+2}, s{sO}", f"v_add_u32 v13, s{sO+2}, v13")
    for j in range(4): e(f"v_cvt_pk_bf16_f32 v{16+j}, v{ahk+2*j}, v{ahk+2*j+1}")
    e("ds_write_b64 v10, v[16:17]", "ds_write_b64 v13, v[18:19] offset:512")
    sig(e, vHC, vH1, HCNT)
    e(f"s_lshl_b32 s{sO}, s{sI}, 10", f"s_add_u32 s{sO}, s{sO}, {EX_L}")
    e("v_lshl_add_u32 v11, v12, 3, v11", f"v_lshl_add_u32 v11, v11, 4, s{sO}", f"v_lshl_add_u32 v14, v0, 3, s{sO}")
    for j in range(8): e(f"v_cvt_pk_bf16_f32 v{Kf+j}, v{ak+2*j}, v{ak+2*j+1}")
    for j in range(8): e(f"v_cvt_pk_bf16_f32 v{Qf+j}, v{aq+2*j}, v{aq+2*j+1}")
    Sc0, Sc1, Sp = 24, 40, 8 + 56
    lds_wait(e, vHC, vHT, 40, HCNT)
    e(f"ds_read_b128 {vr(Kp,4)}, v11", f"ds_read_b128 {vr(Kp+4,4)}, v11 offset:256", f"ds_read_b64 {vr(Vp+2,2)}, v14 offset:512")
    e(f"s_setprio {HM}")
    e(f"{MF32} {vr(Sc0,16)}, {vr(Kf,4)}, {vr(Qf,4)}, {vr(MC,16)}", f"{MF32} {vr(Sc1,16)}, {vr(Kf+4,4)}, {vr(Qf+4,4)}, {vr(MC,16)}")
    e(f"s_setprio {APR}")
    for g in wo_groups(1): e(*g)
    for j in range(8): e(f"v_cvt_pk_bf16_f32 v{Vf+j}, v{av+2*j}, v{av+2*j+1}")
    for r in (Vp, Vp+1): e(f"v_mov_b32 v{r}, 0")
    for r in range(12): e(f"v_mov_b32 v{PB+r}, 0")
    e(f"s_lshl_b32 s{sO+1}, s{sRB}, 1", f"s_and_b32 s{sO+2}, s{sI}, 1", f"s_add_u32 s{sO+1}, s{sO+1}, s{sO+2}", f"s_lshl_b32 s{sO+1}, s{sO+1}, 15")
    e(f"s_lshl_b32 s{sO+2}, s{sCB}, 2", f"s_and_b32 s{sO+3}, s{sI}, 2", f"s_add_u32 s{sO+2}, s{sO+2}, s{sO+3}", f"s_lshl_b32 s{sO+2}, s{sO+2}, 10")
    e(f"s_add_u32 s{sO+1}, s{sO+1}, s{sO+2}", f"s_add_u32 s{sO+1}, s{sO+1}, {OB}")
    e("v_lshlrev_b32 v9, 4, v0", f"v_mov_b32 v22, {hex(f32bits(CSC))}", "s_waitcnt lgkmcnt(0)")
    for hd in range(2):
        Sc = (Sc0, Sc1)[hd]
        e(f"s_setprio {HM}", f"{MF32} {vr(Sp,16)}, {vr(Kp+4*hd,4)}, {vr(Qf+4*hd,4)}, {vr(MP,16)}", f"s_setprio {APR}")
        for k in range(4): e(f"v_max_f32 v{M+k}, v{Sc+k}, v{Sc+8+k}")
        e(f"v_max3_f32 v10, v{M}, v{M+1}, v{M+2}", "s_nop 5")
        for k in range(4): e(f"v_max3_f32 v{M+4+k}, v{Sc+4+k}, v{Sc+12+k}, v{Sp+12+k}")
        e(f"v_max3_f32 v10, v10, v{M+3}, v{M+4}", f"v_max3_f32 v10, v10, v{M+5}, v{M+6}", f"v_max_f32 v10, v10, v{M+7}")
        halfmax(e, 10)
        e("v_mul_f32 v10, v22, v10")
        for k in range(4): e(f"v_pk_fma_f32 {vr(M+2*k,2)}, {vr(M+2*k,2)}, v[22:23], v[10:11] op_sel_hi:[1,0,0] neg_lo:[0,0,1] neg_hi:[0,0,1]")
        for k in range(8): e(f"v_exp_f32 v{M+k}, v{M+k}")
        def cv(mask, dst, src):
            e(f"s_mov_b32 exec_lo, {hex(mask)}", f"s_mov_b32 exec_hi, {hex(mask)}")
            e(f"v_cvt_pk_bf16_f32 v{dst}, v{src}, v{src+1}", f"v_cvt_pk_bf16_f32 v{dst+1}, v{src+2}, v{src+3}")
        cv(0x0000ffff, PB, M); cv(0xffff0000, PB+4, M)
        cv(0x00ffff00, PB+2, M+4); cv(0xff000000, PB+6, M+4); cv(0x000000ff, PB+10, M+4)
        e("s_mov_b64 exec, -1")
        e(f"v_pk_add_f32 {vr(M,2)}, {vr(M,2)}, {vr(M+2,2)}", f"v_pk_add_f32 {vr(M+4,2)}, {vr(M+4,2)}, {vr(M+6,2)}")
        e(f"s_setprio {HM}")
        e(f"{MF32} {vr(Sc,16)}, {vr(Vf,4)}, {vr(PB,4)}, 0", f"{MF32} {vr(Sc,16)}, {vr(Vf+4,4)}, {vr(PB+4,4)}, {vr(Sc,16)}", f"{MF32} {vr(Sc,16)}, {vr(Vp,4)}, {vr(PB+8,4)}, {vr(Sc,16)}")
        e(f"s_setprio {APR}")
        e(f"v_pk_add_f32 {vr(M,2)}, {vr(M,2)}, {vr(M+4,2)}", f"v_add_f32 v10, v{M}, v{M+1}", "v_mov_b32 v11, v10", "s_nop 1")
        e("v_permlane32_swap_b32 v10, v11", "s_nop 0", "v_add_f32 v10, v10, v11", "v_rcp_f32 v10, v10", "s_nop 2")
        O = Sc + 8 * hd
        for k in range(4): e(f"v_pk_mul_f32 {vr(O+2*k,2)}, {vr(O+2*k,2)}, v[10:11] op_sel_hi:[1,0]")
        o = 12 + 4 * hd
        for j in range(4): e(f"v_cvt_pk_bf16_f32 v{o+j}, v{O+2*j}, v{O+2*j+1}")
        if hd == 0:
            e("s_waitcnt vmcnt(0)")
            sig(e, vHC, vH1, WLD)
        e(f"buffer_store_dwordx4 {vr(o,4)}, v9, {sr(R_WS,4)}, s{sO+1} offen offset:{1024*hd}{SC}")

vWt, vPo, vCk, vSt, vL16, vFl, vL4, vOC = 8, 9, 10, 11, 1, 2, 3, 4
tA, tB, vWt1, tD = 12, 13, 14, 15
GACC, GO, GW = 16, 48, 132
sTK, sOut = sT, sT+1
def out_table(e):
    W, Po, Ck, St = 164, 165, 166, 167
    e("v_lshrrev_b32 v30, 5, v0", "v_bfe_u32 v31, v0, 2, 2", "v_lshl_add_u32 v31, v30, 2, v31", f"v_lshlrev_b32 v{W}, 7, v31")
    e("v_bfe_u32 v31, v0, 3, 1", f"v_lshl_add_u32 v{W}, v31, 6, v{W}")
    e("v_and_b32 v31, 1, v0", f"v_lshl_add_u32 v{W}, v31, 5, v{W}", "v_bfe_u32 v31, v0, 1, 1", f"v_lshl_add_u32 v{W}, v31, 3, v{W}")
    e("v_bfe_u32 v31, v0, 4, 1", f"v_lshl_add_u32 v{W}, v31, 4, v{W}")
    e(f"v_and_b32 v{St}, 31, v0", f"v_lshlrev_b32 v{St}, 11, v{St}", f"v_lshl_add_u32 v{St}, v30, 5, v{St}")
    e(f"v_lshlrev_b32 v{Ck}, 2, v0", f"v_lshlrev_b32 v{Po}, 7, v0")
    e(f"v_lshlrev_b32 v31, 4, v0", f"v_add_u32 v31, {TB_L}, v31", "ds_write_b128 v31, v[164:167]")
def out_prep(e):
    e(f"v_lshlrev_b32 v{vL16}, 4, v0", f"v_add_u32 v{vFl}, {TB_L}, v{vL16}", f"ds_read_b128 v[8:11], v{vFl}")
    e(f"v_and_b32 v{vOC}, 3, v0", f"v_lshlrev_b32 v{vOC}, 8, v{vOC}", f"v_add_u32 v{vOC}, {PR_L + 1024}, v{vOC}")
    e(f"v_and_b32 v{vL4}, 31, v0", f"v_lshlrev_b32 v{vL4}, 2, v{vL4}")
    e(f"s_lshl_b32 s{sTK}, s{sTB}, 2", f"s_add_u32 s{sTK}, s{sTK}, s{sI}")

def pry_wait(e, lim, sleep=6):
    l = e.uniq("hp")
    e.lab(l)
    e(f"ds_read_b32 v{vHT}, v{vOC}", "s_waitcnt lgkmcnt(0)", f"v_cmp_gt_u32 vcc, {lim}, v{vHT}", f"s_cbranch_vccz {l}_d")
    spin_tail(e, l, sleep)
    e.lab(l + "_d")

pub_sites = []
def pub(e, add, keep=False, fast=False):
    site = len(pub_sites); pub_sites.append(site)
    e(f"s_add_u32 s{sO+4}, s{sI}, {add}", f"s_mov_b32 s{sRET}, {site}")
    if not fast:
        e(f"s_mul_i32 s{sO}, s{sO+4}, {OS_POS}", f"s_add_u32 s{sO}, s{sO}, {OS_L - OS_POS}")
        pry_wait(e, f"s{sO}", sleep=PSL)
    e("s_branch L_pub")
    e.lab(f"L_pub_ret{site}")

def pub_routine(e):
    P = GO
    site = 0
    e.lab("L_pub")
    e(f"s_mul_i32 s{sO+2}, s{sO+4}, {OS_POS}", f"s_add_u32 s{sO+2}, s{sO+2}, {OS_L}")
    e(f"v_add_u32 v{tA}, s{sO+2}, v{vL16}", f"v_add_u32 v{tB}, s{sO+2}, v{vL4}")
    e(f"s_and_b32 s{sO}, s{sO+4}, 1")
    if "swap" in OPT: e(f"s_cmp_lt_u32 s{sO+4}, 6", f"s_cselect_b32 s{sO+1}, 1, 0", f"s_xor_b32 s{sO}, s{sO}, s{sO+1}")
    e(f"s_lshl_b32 s{sO}, s{sO}, 2", f"s_lshr_b32 s{sO+1}, s{sO+4}, 1", f"s_add_u32 s{sO}, s{sO}, s{sO+1}")
    e(f"s_lshl_b32 s{sO+1}, s{sRB}, 3", f"s_add_u32 s{sO}, s{sO}, s{sO+1}", f"s_lshl_b32 s{sO}, s{sO}, 3", f"s_add_u32 s{sO}, s{sO}, s{sCB}")
    e(f"s_mul_i32 s{sO+3}, s{sO}, {REC}", f"s_add_u32 s{sO+3}, s{sO+3}, {OA}")
    e(f"s_lshl_b32 s{sO+5}, s{sIDX}, 3", f"s_add_u32 s{sO+5}, s{sO+5}, s{sO+4}", f"s_lshl_b32 s{sO+5}, s{sO+5}, 7", f"s_add_u32 s{sO+5}, s{sO+5}, {F4}")
    e(f"s_mov_b32 s{sO+1}, {hex(f32bits(LMAX))}")
    pry_wait(e, f"s{sO+2}", sleep=3)
    e(f"ds_read2st64_b32 {vr(P+32,2)}, v{tB} offset0:8 offset1:17", f"ds_read2st64_b32 {vr(P+34,2)}, v{tB} offset0:26 offset1:35")
    for a in range(2):
        for s in range(4): e(f"ds_read_b128 {vr(P+8*s+4*a,4)}, v{tA} offset:{s*OS_PAIR + a*1024}")
    e("s_waitcnt lgkmcnt(8)", f"v_pk_add_f32 {vr(P+32,2)}, {vr(P+32,2)}, {vr(P+34,2)}", f"v_add_f32 v{P+34}, v{P+32}, v{P+33}", f"v_rcp_f32 v{P+32}, v{P+34}")
    for a in range(2):
        e(f"s_waitcnt lgkmcnt({4-4*a})")
        for k in range(2):
            a_, b_, c_, d_ = (vr(P + 8*s + 4*a + 2*k, 2) for s in range(4))
            e(f"v_pk_add_f32 {a_}, {a_}, {b_}", f"v_pk_add_f32 {c_}, {c_}, {d_}", f"v_pk_add_f32 {a_}, {a_}, {c_}")
    e(f"v_pk_mul_f32 {vr(P+8,2)}, {vr(P,2)}, 0")
    for k in range(1, 4): e(f"v_pk_fma_f32 {vr(P+8,2)}, {vr(P+2*k,2)}, 0, {vr(P+8,2)}")
    e(f"v_add_f32 v{P+8}, v{P+8}, v{P+9}", f"v_add_f32 v{P+8}, v{P+8}, v{P+34}")
    e(f"v_cmp_ngt_f32 vcc, s{sO+1}, v{P+8}" if "forcefb" not in OPT else "v_cmp_eq_u32 vcc, v0, v0", "s_cbranch_vccnz L_exact")
    e(f"v_max3_f32 v{P+8}, abs(v{P}), abs(v{P+1}), abs(v{P+2})", f"v_max3_f32 v{P+9}, abs(v{P+3}), abs(v{P+4}), abs(v{P+5})")
    e(f"v_max3_f32 v{P+8}, v{P+8}, abs(v{P+6}), abs(v{P+7})", f"v_max_f32 v{P+8}, v{P+8}, v{P+9}")
    e(f"v_cmp_gt_f32 vcc, {hex(f32bits(2.0 ** -104))}, v{P+8}", "s_cbranch_vccnz L_exact")
    e.lab(f"L_exact_ret{site}")
    for k in range(4): e(f"v_pk_mul_f32 {vr(P+2*k,2)}, {vr(P+2*k,2)}, {vr(P+32,2)} op_sel_hi:[1,0]")
    for k in range(4): e(f"v_cvt_pk_bf16_f32 v{164+k}, v{P+2*k}, v{P+2*k+1}")
    e(f"s_cmp_ge_u32 s{sO+4}, {2*TAGH}", "s_cbranch_scc1 L_pub_tag")
    e(f"buffer_store_dwordx4 v[164:167], v{vL16}, {sr(R_WS,4)}, s{sO+3} offen{SC}", "s_waitcnt vmcnt(0)")
    set_flag(e, sO+5, tA, tB)
    e("s_branch L_pub_x")
    e.lab("L_pub_tag")
    mk_ck(e, tD, 164)
    if FASTH < 4:
        e(f"s_cmp_lt_u32 s{sO+4}, {2*FASTH}", "s_cbranch_scc1 L_pub_nf", f"s_add_u32 s{sO}, s{sO+3}, {FAST}")
        e(f"buffer_store_dwordx4 v[164:167], v{vL16}, {sr(R_WS,4)}, s{sO} offen", f"buffer_store_dword v{tD}, v{vCk}, {sr(R_WS,4)}, s{sO} offen offset:1024")
        e.lab("L_pub_nf")
    e(f"buffer_store_dwordx4 v[164:167], v{vL16}, {sr(R_WS,4)}, s{sO+3} offen{SC}", f"buffer_store_dword v{tD}, v{vCk}, {sr(R_WS,4)}, s{sO+3} offen offset:1024{SC}")
    set_flag(e, sO+5, tA, tB)
    e.lab("L_pub_x")
    for s in pub_sites[:-1]: e(f"s_cmp_eq_u32 s{sRET}, {s}", f"s_cbranch_scc1 L_pub_ret{s}")
    e(f"s_branch L_pub_ret{pub_sites[-1]}")

def exact(e):
    O, Q, Kr, V, S, NB, m, vo = GO, GO+36, GO+40, GO+44, GO+52, GO+68, GO+84, GO+86
    sK, sV = sO, sO+1
    e.lab("L_exact")
    e(f"s_mov_b32 s{sT+4}, 1", "s_waitcnt vmcnt(0)")
    e(f"s_lshl_b32 s{sK}, s{sO+4}, 10", f"s_add_u32 s{sK}, s{sK}, {QI_L}", f"v_add_u32 v{m}, s{sK}, v{vL16}", f"ds_read_b128 {vr(Q,4)}, v{m}")
    e(f"v_and_b32 v{m}, 31, v0", f"v_cmp_eq_u32 vcc, 16, v{m}", f"v_mov_b32 v{m+1}, 0x4f804f80", f"v_lshrrev_b32 v{vo}, 5, v0", f"v_cndmask_b32 v{V}, 0, v{m+1}, vcc")
    for r in range(1, 8): e(f"v_mov_b32 v{V+r}, v{V}")
    e(f"v_lshlrev_b32 v{vo}, 8, v{vo}", f"v_and_b32 v{m}, 15, v0", f"v_lshl_add_u32 v{vo}, v{m}, 4, v{vo}")
    for r in range(16): e(f"v_mov_b32 v{O+r}, 0")
    e(f"v_mov_b32 v{m}, 0xff800000", f"s_mov_b32 s{sK}, {KW}", "s_waitcnt lgkmcnt(0)")
    e.lab("L_ex1")
    e(f"buffer_load_dwordx4 {vr(Kr,4)}, v{vL16}, {sr(R_WS,4)}, s{sK} offen{SC}", "s_waitcnt vmcnt(0)")
    e(f"{MF32} {vr(S,16)}, {vr(Kr,4)}, {vr(Q,4)}, 0", "s_nop 11")
    for k in range(0, 16, 2): e(f"v_max3_f32 v{m}, v{m}, v{S+k}, v{S+k+1}")
    e(f"s_add_u32 s{sK}, s{sK}, 1024", f"s_cmp_lt_u32 s{sK}, {KW + 65536}", "s_cbranch_scc1 L_ex1")
    halfmax(e, m)
    for r in range(16): e(f"v_sub_f32 v{NB+r}, 0, v{m}")
    e(f"s_mov_b32 s{sK}, {KW}", f"s_mov_b32 s{sV}, {VW}")
    e.lab("L_ex2")
    e(f"buffer_load_dwordx4 {vr(Kr,4)}, v{vL16}, {sr(R_WS,4)}, s{sK} offen{SC}", "s_mov_b32 exec_lo, 0xffff", "s_mov_b32 exec_hi, 0xffff")
    e(f"buffer_load_dwordx4 {vr(V,4)}, v{vo}, {sr(R_WS,4)}, s{sV} offen{SC}", f"buffer_load_dwordx4 {vr(V+4,4)}, v{vo}, {sr(R_WS,4)}, s{sV} offen offset:512{SC}")
    e("s_mov_b64 exec, -1", "s_waitcnt vmcnt(0)")
    e(f"{MF32} {vr(S,16)}, {vr(Kr,4)}, {vr(Q,4)}, {vr(NB,16)}", "s_nop 11")
    for k in range(16): e(f"v_exp_f32 v{S+k}, v{S+k}")
    e("s_nop 0")
    for j in range(8): e(pk(S, j))
    e("s_nop 1", f"{MF32} {vr(O,16)}, {vr(V,4)}, {vr(S,4)}, {vr(O,16)}", f"{MF32} {vr(O,16)}, {vr(V+4,4)}, {vr(S+8,4)}, {vr(O,16)}")
    e(f"s_add_u32 s{sK}, s{sK}, 1024", f"s_add_u32 s{sV}, s{sV}, 1024", f"s_cmp_lt_u32 s{sK}, {KW + 65536}", "s_cbranch_scc1 L_ex2")
    e("s_nop 11", f"v_mov_b32 v{m}, v{O+8}", "s_nop 1", f"v_permlane32_swap_b32 v{O+8}, v{m}", "s_nop 0", f"v_rcp_f32 v{GO+32}, v{O+8}", "s_nop 0")
    e("s_branch L_exact_ret0")

def fetch(e, hl, c0, c1, base, ck=None):
    for c in range(c0, c1):
        e(f"s_add_u32 s{sO}, s{sT+2}, {(hl*8 + c)*REC}")
        e(f"buffer_load_dwordx4 {vr(base+4*c,4)}, v{vL16}, {sr(R_WS,4)}, s{sO} offen{SC}")
        if ck is not None: e(f"buffer_load_dword v{ck+c}, v{vCk}, {sr(R_WS,4)}, s{sO} offen offset:1024{SC}")
def verify(e, c0, c1, base, ck, younger, hl=3, sleep=0):
    l = e.uniq("vf")
    e(f"s_waitcnt vmcnt({younger})", f"s_branch {l}_v")
    e.lab(l)
    if hl >= FASTH:
        e(f"s_add_u32 s{sT+6}, s{sT+6}, 1", f"s_and_b32 s{sO}, s{sT+6}, {FTRY-1}", f"s_cselect_b32 s{sO}, 0, {FAST}", f"s_xor_b32 s{sT+5}, s{sT+5}, s{sO}", f"s_add_u32 s{sT+2}, s{sT+3}, s{sT+5}")
    fetch(e, hl, c0, c1, base, ck)
    e("s_waitcnt vmcnt(0)")
    e.lab(l + "_v")
    for c in range(c0, c1): chk(e, tA, tB, base + 4*c, ck + c, c == c0)
    e(f"v_cmp_ne_u32 vcc, 0, v{tA}", f"s_cbranch_vccz {l}_d")
    spin_tail(e, l, sleep)
    e.lab(l + "_d")
    e(f"s_mov_b32 s{sT+6}, 0")
def mul_a(e, steps, pre=True, vm=None, after=None):
    n = len(steps)
    def rdw(k):
        b = GW + 8*(k & 3); o = steps[k][0] * 2048
        for ct, va in enumerate((vWt, vWt1)):
            e(f"ds_read_b64_tr_b16 {vr(b+4*ct,2)}, v{va} offset:{o}", f"ds_read_b64_tr_b16 {vr(b+4*ct+2,2)}, v{va} offset:{o+1024}")
    if pre:
        for k in range(2): rdw(k)
        return
    for k in range(n):
        if k + 2 < n: rdw(k + 2)
        e(f"s_waitcnt {'vmcnt(%d) ' % vm(k) if vm else ''}lgkmcnt({min(8, 4*(n-1-k))})")
        for ct in range(2):
            e(f"{MF32} {vr(GACC+16*ct,16)}, {vr(GW+8*(k&3)+4*ct,4)}, {vr(steps[k][1],4)}, {'0' if steps[k][0] == 0 else vr(GACC+16*ct,16)}")
        if after: after(k)
def gpoll_s(e, vaddr, vtmp, pat, sleep):
    l = e.uniq("gp")
    e(f"s_lshl_b32 exec_lo, {hex(pat)}, s{sT+7}", "s_mov_b32 exec_hi, exec_lo")
    e.lab(l)
    e(f"buffer_load_dword v{vtmp}, v{vaddr}, {sr(R_WS,4)}, s{sT+8} offen sc1", "s_waitcnt vmcnt(0)")
    e(f"v_cmp_ne_u32 vcc, s{sEP}, v{vtmp}", "s_and_b64 exec, exec, vcc", f"s_cbranch_execz {l}_d")
    spin_tail(e, l, sleep)
    e.lab(l + "_d")
    e("s_mov_b64 exec, -1")

def out_store(e):
    e("s_nop 10")
    for ct in range(2):
        for j in range(8): e(f"v_cvt_pk_bf16_f32 v{GW+8*ct+j}, v{GACC+16*ct+2*j}, v{GACC+16*ct+2*j+1}")
        for z in range(2): e(f"buffer_store_dwordx4 {vr(GW+8*ct+4*z,4)}, v{vSt}, {sr(R_OUT,4)}, s{sOut} offen offset:{64*ct+16*z}")

def late_pubs(e):
    e.lab("L_latepub")
    if "s3pub" in OPT: e(f"s_cmp_eq_u32 s{sI}, 3", "s_cbranch_scc1 L_lpx")
    pub(e, 4)
    if "s3pub" not in OPT:
        e(f"s_cmp_lg_u32 s{sI}, 3", "s_cbranch_scc1 L_lpx")
        e(f"ds_write_b32 v{vHC}, v{vHC} offset:{QST}", "s_waitcnt lgkmcnt(0)", "s_wakeup")
    e.lab("L_lpx")
    finish(e)

def h_main(e):
    e.lab("L_h2")
    srds(e, (R_XB, R_WB, R_WOB, R_WOA, R_OUT))
    b_prep(e)
    out_table(e)
    if PFB:
        import re as _re
        lds_wait(e, vHC, vHT, 5, LAND + PFG, sleep=1)
        e("s_mov_b32 exec_lo, 0x01010101", "s_mov_b32 exec_hi, 0x01010101")
        for j in range(PFB):
            for g in b_dma_groups(j)[:4]:
                for x in g:
                    if "m0" in x: continue
                    m = _re.match(r"buffer_load_dwordx4 (v\d+), (.*) offen.* lds", x)
                    e(f"buffer_load_dword v100, {m.group(1)}, {m.group(2)} offen" if m else x)
        e("s_mov_b64 exec, -1")
    h_qprep(e)
    if "noH" in OPT: finish(e)
    wo_voff(e)
    lds_wait(e, vHC, vHT, 8, GCNT, sleep=2)
    for j in range(2):
        for g in b_dma_groups(j): e(*g)
    stamp(e, 4)
    b_proj(e)
    stamp(e, 5)
    b_attn(e)
    e("s_setprio 3")
    e(f"s_lshl_b32 s{sO+5}, s{sIDX}, 2", f"s_add_u32 s{sO+5}, s{sO+5}, s{sI}", f"s_lshl_b32 s{sO+5}, s{sO+5}, 7", f"s_add_u32 s{sO+5}, s{sO+5}, {F3}")
    out_prep(e)
    e("s_waitcnt vmcnt(0)")
    set_flag(e, sO+5, tA, tB)
    stamp(e, 6)
    if "fp45" in OPT:
        e(f"s_lshl_b32 s{sO}, s{sKIND}, 2", f"s_or_b32 s{sO}, s{sO}, s{sI}", f"s_cmp_lt_u32 s{sO}, 2", "s_cbranch_scc1 L_lpx")
    e(f"s_cmp_eq_u32 s{sKIND}, 0", "s_cbranch_scc1 L_latepub")
    e.c("---- B out-projection")
    e(f"s_lshr_b32 s{sO+2}, s{sTK}, 1", f"s_lshl_b32 s{sOut}, s{sO+2}, 17", f"s_and_b32 s{sO+3}, s{sI}, 1", f"s_lshl_b32 s{sO}, s{sO+3}, 11", f"s_add_u32 s{sOut}, s{sOut}, s{sO}")
    e(f"s_lshl_b32 s{sO}, s{sHP}, 6", f"s_add_u32 s{sOut}, s{sOut}, s{sO}", f"s_add_u32 s{sOut}, s{sOut}, {1024 - 64}")
    e(f"s_lshl_b32 s{sO+2}, s{sO+2}, 12", f"s_lshl_b32 s{sO+3}, s{sO+3}, 7", f"s_add_u32 s{sO+2}, s{sO+2}, s{sO+3}", f"s_add_u32 s{sO+2}, s{sO+2}, {F3}")
    e(f"v_lshl_add_u32 v{vFl}, v0, 8, s{sO+2}")
    e(f"s_lshl_b32 s{sT+2}, s{sTK}, 15", f"s_add_u32 s{sT+2}, s{sT+2}, {OB}")
    gpoll(e, vFl, vHT, 0xffff, 0, sleep=F3SLEEP)
    stamp(e, 7)
    NB = 21
    oreg = lambda k: GO + 4 * (k % NB)
    def ldo(k):
        e(f"s_add_u32 s{sT+3}, s{sT+2}, {(k>>2)*4096}", f"buffer_load_dwordx4 {vr(oreg(k),4)}, v{vL16}, {sr(R_WS,4)}, s{sT+3} offen offset:{(k&3)*1024}{SC}")
    for k in range(NB):
        ldo(k)
        if OBW and k >= OBW: e(f"s_waitcnt vmcnt({OBW})")
    lds_wait(e, vHC, vHT, 4, WLD)
    e(f"v_lshl_add_u32 v{vSt}, v{vL4}, 9, v{vSt}", f"v_xor_b32 v{vWt1}, 64, v{vWt}")
    stamp(e, 8)
    e(f"s_setprio {FM}")
    SB_ = [(k, oreg(k)) for k in range(32)]
    if HGATE:
        S1_, S2_ = SB_[:32-NT], SB_[32-NT:]
        mul_a(e, S1_)
        mul_a(e, S1_, pre=False, vm=lambda k: min(OBW or 63, NB - 1), after=lambda k: ldo(k + NB) if k + NB < 32 else None)
        stamp(e, 18)
        mul_a(e, S2_)
        if HGATE == 8: lds_wait(e, vHC, vHT, 1, QST, sleep=PSL)
        else: pry_wait(e, OS_L + HGATE*OS_POS, sleep=PSL)
        e("s_setprio 1")
        mul_a(e, S2_, pre=False, vm=lambda k: NT - 1 - k)
    else:
        mul_a(e, SB_)
        mul_a(e, SB_, pre=False, vm=lambda k: min(NB - 1, 31 - k), after=lambda k: ldo(k + NB) if k + NB < 32 else None)
    out_store(e)
    finish(e)

def f_out(e):
    e.lab("L_f3")
    e.c("---- output stage A")
    if "noH" in OPT or "noF" in OPT: finish(e)
    srds(e, (R_OUT,))
    lane_id(e)
    out_prep(e)
    e(f"v_mov_b32 v{vHC}, {CNT}")
    pub(e, 0)
    stamp(e, 5)
    e(f"s_cmp_lg_u32 s{sKIND}, 0", "s_cbranch_scc1 L_latepub")
    e(f"s_lshl_b32 s{sOut}, s{sTK}, 16", f"s_lshl_b32 s{sO}, s{sHP}, 6", f"s_add_u32 s{sOut}, s{sOut}, s{sO}")
    e(f"v_xor_b32 v{vWt1}, 64, v{vWt}")
    e(f"s_mul_i32 s{sT+3}, s{sTK}, {32*REC}", f"s_add_u32 s{sT+3}, s{sT+3}, {OA}", f"s_mov_b32 s{sT+2}, s{sT+3}", f"s_mov_b32 s{sT+6}, 0")
    e(f"s_and_b32 s{sT+7}, s{sI}, 1", f"s_lshr_b32 s{sT+8}, s{sTK}, 1", f"s_lshl_b32 s{sT+8}, s{sT+8}, 13", f"s_add_u32 s{sT+8}, s{sT+8}, {F4}")
    if "swap" in OPT: e(f"s_xor_b32 s{sT+7}, s{sT+7}, 1")
    e(f"s_mul_i32 s{sT+9}, s{sT+7}, {OS_POS}")
    if FASTH < 4:
        e(f"s_add_u32 s{sO}, s{sT+3}, {FAST + 24*REC}", f"buffer_load_dword v6, v{vPo}, {sr(R_WS,4)}, s{sO} offen{SC}")
        e(f"s_add_u32 s{sO}, s{sO}, 8192", "s_mov_b64 exec, 0xffff", f"buffer_load_dword v6, v{vPo}, {sr(R_WS,4)}, s{sO} offen{SC}", "s_mov_b64 exec, -1")
    def gate(p, sleep):
        e(f"s_add_u32 s{sO+1}, s{sT+9}, {OS_L + p*OS_POS}")
        pry_wait(e, f"s{sO+1}", sleep=sleep)
    st = lambda hl, base, c0=0, c1=8: [(4*c + hl, base + 4*c) for c in range(c0, c1)]
    if "two" in OPT:
        assert TAGH in (1, 2) and FASTH in (2, 3) and "swap" not in OPT
        gate(3, PSL)
        gpoll_s(e, vPo, vHT, 0x05050505, 6)
        stamp(e, 16)
        CK = GO + 64
        fetch(e, 0, 0, 8, GO); fetch(e, 1, 0, 8, GO + 32, CK if TAGH == 1 else None)
        lds_wait(e, vHC, vHT, 4, WLD, sleep=8)
        e(f"s_setprio {FM}")
        if TAGH == 1:
            mul_a(e, st(0, GO)); mul_a(e, st(0, GO), pre=False, vm=lambda k: 23 - k)
            mul_a(e, st(1, GO + 32))
            verify(e, 0, 8, GO + 32, CK, 0, hl=1, sleep=4)
            mul_a(e, st(1, GO + 32), pre=False)
        else:
            A01 = st(0, GO) + st(1, GO + 32)
            mul_a(e, A01); mul_a(e, A01, pre=False, vm=lambda k: 15 - k)
        stamp(e, 17)
        A2 = st(2, GO + 32)
        mul_a(e, A2)
        tofast = lambda: e(f"s_mov_b32 s{sT+5}, {FAST}", f"s_add_u32 s{sT+2}, s{sT+3}, {FAST}")
        if FASTH == 2: tofast()
        gate(5, 8)
        if "g6" in OPT: gate(6, 3)
        stamp(e, 18)
        fetch(e, 2, 0, 8, GO + 32, CK + 8)
        if "ve" in OPT: verify(e, 0, 8, GO + 32, CK + 8, 0, hl=2, sleep=2)
        if "g6" not in OPT: gate(6, 3)
        if "pw" in OPT: lds_wait(e, vHC, vHT, f"s{sT+7}", QST, sleep=2)
        if "ve" not in OPT: verify(e, 0, 8, GO + 32, CK + 8, 0, hl=2, sleep=1)
        if FASTH == 3: tofast()
        fetch(e, 3, 0, 8, GO, CK)
        mul_a(e, A2, pre=False)
        stamp(e, 19)
        mul_a(e, st(3, GO, 0, 4))
        verify(e, 0, 4, GO, CK, 8)
        stamp(e, 9)
        mul_a(e, st(3, GO, 0, 4), pre=False)
        mul_a(e, st(3, GO, 4, 8))
        verify(e, 4, 8, GO, CK, 0)
        mul_a(e, st(3, GO, 4, 8), pre=False)
    else:
        CK = GO + 64
        for hl in range(3):
            gate(2*hl + (1 if hl < G0 else 0), PSL if hl < 2 else 8)
            if "fp45" in OPT and hl in (1, 2):
                w_ = (hl - 1) if "swap" in OPT else (2 - hl)
                e(f"s_cmp_lg_u32 s{sI}, {w_}", f"s_cbranch_scc1 L_nfp{hl}", "s_setprio 3")
                pub(e, 3 + hl - w_, fast=True)
                e(f"s_setprio {FM}")
                e.lab(f"L_nfp{hl}")
            if hl < FASTH: gpoll_s(e, vPo, vHT, 0x01010101 << (2*hl), 6)
            elif hl == FASTH: e(f"s_mov_b32 s{sT+5}, {FAST}", f"s_add_u32 s{sT+2}, s{sT+3}, {FAST}")
            stamp(e, 16 + hl)
            fetch(e, hl, 0, 8, GO, CK if hl >= TAGH else None)
            if hl == 0:
                lds_wait(e, vHC, vHT, 4, WLD, sleep=8)
                e(f"s_setprio {FM}")
            A_ = st(hl, GO)
            mul_a(e, A_)
            if hl >= TAGH:
                verify(e, 0, 8, GO, CK, 0, hl=hl, sleep=4)
                mul_a(e, A_, pre=False)
            else: mul_a(e, A_, pre=False, vm=lambda k: 7 - k)
        stamp(e, 19)
        if "swap" in OPT: e(f"s_xor_b32 s{sT+7}, s{sT+7}, 1", f"s_mul_i32 s{sT+9}, s{sT+7}, {OS_POS}")
        gate(6, 3)
        mul_a(e, st(3, GO, 0, 4))
        if FASTH > 3: gpoll_s(e, vPo, vHT, 0x40404040, 1)
        elif FASTH == 3: e(f"s_mov_b32 s{sT+5}, {FAST}", f"s_add_u32 s{sT+2}, s{sT+3}, {FAST}")
        fetch(e, 3, 0, 8, GO, CK)
        verify(e, 0, 4, GO, CK, 8)
        stamp(e, 9)
        mul_a(e, st(3, GO, 0, 4), pre=False)
        mul_a(e, st(3, GO, 4, 8))
        verify(e, 4, 8, GO, CK, 0)
        mul_a(e, st(3, GO, 4, 8), pre=False)
    out_store(e)
    e(f"s_xor_b32 s{sO}, s{sI}, 1", f"s_or_b32 s{sO}, s{sWG}, s{sO}", "s_cbranch_scc1 L_noep", f"s_mov_b32 s{sO}, {EPOCH_W}")
    set_flag(e, sO, tA, tB)
    e.lab("L_noep")
    finish(e)

def gen():
    e = Em()
    e.L.append(f".globl {KN}\n.p2align 8\n.type {KN},@function\n{KN}:")
    entry(e)
    h_kv(e)
    f_load(e)
    s_qproj(e)
    s_att(e)
    f_att(e)
    h_main(e)
    f_out(e)
    late_pubs(e)
    pub_routine(e)
    e.lab("L_codeend")
    exact(e)
    e.lab("L_end")
    e("s_endpgm")
    head = f"""; MQA attention (A) + sliding dilated local attention (B), one fused launch.  Hand-written via a generator script (work/gen16.py).
; @launch grid=(256,1,1) block=(768,1,1) lds={LDS_BYTES}
; One workgroup per CU owns 64 tokens x 4 heads of both branches; 12 waves:
;   waves 0-3  K/V projection (published to ws), row-offset images, B projection + local attention, B out-projection
;   waves 4-7  operand loads, attention over keys 0..1023 (K/V held in registers), then A out-projection
;   waves 8-11 Q projection, attention over keys 1024..2047 continuing the partial sums of waves 4-7
; Softmax of A: exponent offset = maximum over 128 real keys (+100 in log2 units); when a row's sums leave the safe range
; (overflow, NaN, or too close to underflow) that block is recomputed with the true row maximum (L_exact).  B uses the true maximum.
.amdgcn_target "amdgcn-amd-amdhsa--gfx950"
.text
"""
    kd = f""".section .rodata,"a"
.p2align 6
.amdhsa_kernel {KN}
  .amdhsa_next_free_vgpr 168
  .amdhsa_next_free_sgpr 102
  .amdhsa_accum_offset 168
  .amdhsa_group_segment_fixed_size 0
  .amdhsa_kernarg_size 88
  .amdhsa_user_sgpr_count 2
  .amdhsa_user_sgpr_kernarg_segment_ptr 1
  .amdhsa_system_sgpr_workgroup_id_x 1
.end_amdhsa_kernel
"""
    return head + e.text() + kd

if __name__ == "__main__":
    args = [a for a in sys.argv[1:] if not a.startswith("-")]
    OPT.update(a[1:] for a in sys.argv[1:] if a.startswith("-"))
    if "stamps" in OPT: STAMPS = True
    OPT.update(("wpf", "sub"))
    if "ipub" not in OPT: OPT.add("s3pub")
    if "nogate" not in OPT: OPT.add("gate1")
    if "fast" not in OPT: OPT.add("nofast")

    for o in OPT:
        if o.startswith("moff"): MOFF = float(o[4:])
        if o.startswith("bd"): BDEPTH = int(o[2:])
        if o.startswith("hm"): HM = int(o[2:])
        if o.startswith("ns"): NSAMP = int(o[2:])
        if o.startswith("gz"): G0 = int(o[2:])
        if o.startswith("nt"): NT = int(o[2:])
        if o.startswith("pfb"): PFB = int(o[3:])
        if o.startswith("spf"): SPF = int(o[3:])
        if o.startswith("pfg"): PFG = int(o[3:])
        if o.startswith("tg"): TAGH = int(o[2:])
        if o.startswith("fh"): FASTH = int(o[2:])
        if o.startswith("nb"): NB1 = int(o[2:])
        if o.startswith("pg"): PGATE = int(o[2:])
        if o.startswith("lf"): LOF = int(o[2:])
        if o.startswith("ls"): LOS = int(o[2:])
        if o.startswith("fm"): FM = int(o[2:])
        if o.startswith("ap"): APR = int(o[2:])
        if o.startswith("ys"): YS = tuple(int(x) for x in o[2:].split("_"))
        if o == "yall": YMODES = ('F', 'F0', 'S')
        if o.startswith("ow"): OBW = int(o[2:])
        if o.startswith("sh"): SHOLD = int(o[2:])
        if o.startswith("hg"): HGATE = int(o[2:])
        if o.startswith("win"): WIN = int(o[3:])
        if o.startswith("osc"): OSC = " " + o[3:].replace("_", " ")
        if o.startswith("dly"): DLY = tuple(int(x) for x in o[3:].split("_"))
        if o.startswith("bs"): BSLEEP = int(o[2:])
    out = args[0] if args else f"cdna_kernels/{NAME}.s"
    open(out, "w").write(gen())
    print("wrote", out)
```

```python
import sys, math, struct

NAME = "concat_heads__grouped_kv_mqa__sliding_local_dilated__prompt"
KN = NAME + "_kernel"
def f32bits(x): return struct.unpack("<I", struct.pack("<f", x))[0]

class Em:
    def __init__(self): self.L = []; self.n = 0
    def __call__(self, *ss):
        for s in ss:
            if s.startswith("s_nop "):
                self.L += ["    s_nop 0"] * (int(s.split()[1]) + 1)
            else: self.L.append("    " + s)
    def lab(self, s): self.L.append(s + ":")
    def uniq(self, p): self.n += 1; return f"L_{p}_{self.n}"
    def c(self, s): self.L.append("    ; " + s)
    def text(self): return "\n".join(self.L) + "\n"

def vr(b, n): return f"v[{b}:{b+n-1}]" if n > 1 else f"v{b}"
def sr(b, n): return f"s[{b}:{b+n-1}]" if n > 1 else f"s{b}"

sWG, sW = 2, 3
R_XA, R_WQ, R_WKV, R_WOA, R_XB, R_WB, R_WOB, R_OUT, R_WS = 32, 36, 40, 44, 48, 52, 56, 60, 64
R_WO = R_WKV
sRB, sCB, sTB, sHP, sSB, sKIND, sRET, sI = 72, 73, 74, 75, 76, 77, 78, 79
sT = 80
sO = 92
sPOLL, sEP, sSPIN, sIDX = 98, 99, 100, 101
sTAG = 71
SPIN_MAX = 60000
OB, OA, KW, VW, EPOCH_W, FL = 0, 2 << 20, 5 << 20, (5 << 20) + 65536, (5 << 20) + 131072, (5 << 20) + (256 << 10)
REC = 1280
F1, F3, F4 = FL, FL + (64 << 10), FL + (256 << 10)
WS_BYTES = 16 << 20
FAST = 8 << 20
K = 1024
LDS_BYTES = 160 * K
SLOT = 32 * K
WKV_L = 128 * K
QI_L, NM_L, CNT, PR_L = 144 * K, 152 * K, 156 * K + 512, 157 * K
HCNT, ACNT, GCNT, KVF, RDY1, QST, LAND, SOK = 0, 4, 8, 12, 16, 20, 32, 48
RINGS = 34 * K
RXO = 24 * K
OS_L, OS_POS, OS_PAIR = 72 * K, 9216, 2304
EX_L = 68 * K
TB_L = 159 * K
WOA_L, WOB_L = 34 * K, 0
BDEPTH, HM, F3SLEEP, WIN, BSLEEP = 4, 1, 16, 12, 0
PSL = 20
FTRY = 16
HGATE = 8
CSC = 0.25 * math.log2(math.e)
MOFF = 100.0
NSAMP = 4
APR = 3
YS = ()
YMODES = ('F', 'F0')
OBW = 4
LOF, LOS, FM = 2, 0, 2
SHOLD = 0
LMAX = 2.0 ** 120
MF32 = "v_mfma_f32_32x32x16_bf16"
MF16 = "v_mfma_f32_16x16x32_bf16"
STAMPS = False
OPT = set()
ST = 12 << 20
SC = " sc1"
OSC = ""

def stamp(e, k):
    if STAMPS: e("s_memrealtime s[30:31]", "s_waitcnt lgkmcnt(0)", f"s_mov_b32 s{8+k}, s30")
def cstamp(e, k):
    if STAMPS: e("s_memtime s[30:31]", "s_waitcnt lgkmcnt(0)", f"s_mov_b32 s{8+k}, s30")
def stamp_init(e):
    if not STAMPS: return
    for k in range(1, 22): e(f"s_mov_b32 s{8+k}, 0")
    e("s_mov_b32 s8, s6", "s_mov_b32 s20, s4")
DLY = None
def finish(e):
    if DLY is not None:
        l = e.uniq("dly")
        stamp(e, 15)
        e(f"s_cmp_lg_u32 s{sW}, {DLY[0]}", f"s_cbranch_scc1 {l}_d")
        e(f"s_sub_u32 s4, s{8+DLY[1]}, s8", "s_lshl_b32 s4, s4, 1", "s_add_u32 s4, s4, 4000", "s_min_u32 s4, s4, 40000")
        e.lab(l)
        e("s_sleep 2", "s_memrealtime s[30:31]", "s_waitcnt lgkmcnt(0)", "s_sub_u32 s5, s30, s8", "s_cmp_lt_u32 s5, s4", f"s_cbranch_scc1 {l}")
        e.lab(l + "_d")
        e("s_endpgm")
        return
    if STAMPS:
        stamp(e, 15); cstamp(e, 14)
        e(f"s_mul_i32 s30, s{sWG}, 12", f"s_add_u32 s30, s30, s{sW}", "s_lshl_b32 s30, s30, 7", f"s_add_u32 s30, s30, {ST}")
        e("s_mov_b64 exec, 1", "v_mov_b32 v0, 0")
        for k in range(22): e(f"v_mov_b32 v{4+k}, s{8+k}")
        for k in range(6): e(f"buffer_store_dwordx4 {vr(4+4*k,4)}, v0, {sr(R_WS,4)}, s30 offen offset:{16*k}")
    e("s_endpgm")

def dma(e, voff, R, soff, nt=False):
    e(f"buffer_load_dwordx4 v{voff}, {sr(R,4)}, s{soff} offen{' nt' if nt else ''} lds")
def spin_tail(e, l, sleep):
    e(f"s_sleep {sleep}", f"s_add_u32 s{sSPIN}, s{sSPIN}, 1", f"s_cmp_lt_u32 s{sSPIN}, {SPIN_MAX}", f"s_cbranch_scc1 {l}")
def lds_wait(e, vaddr, vtmp, target, off=0, sleep=1):
    l = e.uniq("poll")
    e.lab(l)
    e(f"ds_read_b32 v{vtmp}, v{vaddr} offset:{off}", "s_waitcnt lgkmcnt(0)", f"v_readfirstlane_b32 s{sPOLL}, v{vtmp}")
    e(f"s_cmp_ge_u32 s{sPOLL}, {target}", f"s_cbranch_scc1 {l}_d")
    spin_tail(e, l, sleep)
    e.lab(l + "_d")
def sig(e, vaddr, vone, off):
    e("s_mov_b64 exec, 1", f"ds_add_u32 v{vaddr}, v{vone} offset:{off}", "s_mov_b64 exec, -1")
def load_epoch(e):
    e(f"s_mov_b32 s{sEP}, {EPOCH_W}", f"s_load_dword s{sEP}, s[{R_WS}:{R_WS+1}], s{sEP}")
def get_epoch(e):
    e("s_waitcnt lgkmcnt(0)", f"s_add_u32 s{sEP}, s{sEP}, 1", f"s_mul_i32 s{sTAG}, s{sEP}, 0x9e3779b1")
def gpoll(e, vaddr, vtmp, lo, hi, sleep=1):
    l = e.uniq("gp")
    e(f"s_mov_b32 exec_lo, {hex(lo)}", f"s_mov_b32 exec_hi, {hex(hi)}")
    e.lab(l)
    e(f"buffer_load_dword v{vtmp}, v{vaddr}, {sr(R_WS,4)}, 0 offen sc1", "s_waitcnt vmcnt(0)")
    e(f"v_cmp_ne_u32 vcc, s{sEP}, v{vtmp}", "s_and_b64 exec, exec, vcc", f"s_cbranch_execz {l}_d")
    spin_tail(e, l, sleep)
    e.lab(l + "_d")
    e("s_mov_b64 exec, -1")
def gpoll_issue(e, vaddr, vtmp, lo):
    e(f"s_mov_b32 exec_lo, {hex(lo)}", "s_mov_b32 exec_hi, 0", f"buffer_load_dword v{vtmp}, v{vaddr}, {sr(R_WS,4)}, 0 offen sc1", "s_mov_b64 exec, -1")
def gpoll_finish(e, vaddr, vtmp, lo, younger, sleep=1):
    l = e.uniq("gp")
    e(f"s_mov_b32 exec_lo, {hex(lo)}", "s_mov_b32 exec_hi, 0", f"s_waitcnt vmcnt({younger})", f"s_branch {l}_c")
    e.lab(l)
    e(f"buffer_load_dword v{vtmp}, v{vaddr}, {sr(R_WS,4)}, 0 offen sc1", "s_waitcnt vmcnt(0)")
    e.lab(l + "_c")
    e(f"v_cmp_ne_u32 vcc, s{sEP}, v{vtmp}", "s_and_b64 exec, exec, vcc", f"s_cbranch_execz {l}_d")
    spin_tail(e, l, sleep)
    e.lab(l + "_d")
    e("s_mov_b64 exec, -1")
def set_flag(e, soff, va, vd):
    e(f"v_mov_b32 v{va}, 0", f"v_mov_b32 v{vd}, s{sEP}", "s_mov_b64 exec, 1")
    e(f"buffer_store_dword v{vd}, v{va}, {sr(R_WS,4)}, s{soff} offen sc1", "s_mov_b64 exec, -1")
def mk_ck(e, dst, d):
    e(f"v_xad_u32 v{dst}, v{d}, s{sTAG}, v{d+1}", f"v_xad_u32 v{dst}, v{dst}, v{d+2}, v{d+3}")
def chk(e, acc, tmp, d, ck, first):
    mk_ck(e, tmp, d)
    e(f"v_xor_b32 v{acc}, v{tmp}, v{ck}" if first else f"v_bitop3_b32 v{acc}, v{acc}, v{tmp}, v{ck} bitop3:0xf6")
def lane_id(e):
    e("v_mbcnt_lo_u32_b32 v0, -1, 0", "v_mbcnt_hi_u32_b32 v0, -1, v0")
def xa_voff(e, b, t):
    e(f"v_lshrrev_b32 v{t}, 4, v0", f"v_and_b32 v{b}, 15, v0", f"v_xor_b32 v{b}, v{b}, v{t}", f"v_lshlrev_b32 v{b}, 4, v{b}")
    e(f"v_lshl_add_u32 v{b}, v{t}, 10, v{b}")
def halfmax(e, m):
    e(f"v_mov_b32 v{m+1}, v{m}", "s_nop 1", f"v_permlane32_swap_b32 v{m}, v{m+1}", "s_nop 0", f"v_max_f32 v{m}, v{m}, v{m+1}")
def negmax(e, S, m):
    e(f"v_max3_f32 v{m}, v{S}, v{S+1}, v{S+2}")
    for k in range(3, 15, 2): e(f"v_max3_f32 v{m}, v{m}, v{S+k}, v{S+k+1}")
    e(f"v_max_f32 v{m}, v{m}, v{S+15}")
    halfmax(e, m)
    e(f"v_sub_f32 v{m}, {hex(f32bits(-MOFF))}, v{m}")

def entry(e):
    e(f"s_cmp_ge_u32 s{sWG}, 256", "s_cbranch_scc1 L_end")
    e(f"s_and_b32 s{sO}, s{sWG}, 8", f"s_add_u32 s{sO}, s{sO}, 16")
    for R, off in ((R_XA, 0), (R_WQ, 8), (R_WS, 80)): e(f"s_load_dwordx2 s[{R}:{R+1}], s[0:1], {off}")
    e(f"s_load_dwordx2 s[{R_WKV}:{R_WKV+1}], s[0:1], s{sO}")
    if STAMPS: e("s_memrealtime s[6:7]", "s_memtime s[4:5]")
    e("v_lshrrev_b32 v1, 6, v0", "v_and_b32 v0, 63, v0")
    e(f"s_lshr_b32 s{sO+1}, s{sWG}, 3")
    e(f"v_readfirstlane_b32 s{sW}, v1")
    e(f"s_and_b32 s{sO}, s{sWG}, 7", f"s_lshl_b32 s{sIDX}, s{sO}, 5", f"s_add_u32 s{sIDX}, s{sIDX}, s{sO+1}")
    e(f"s_and_b32 s{sI}, s{sW}, 3", f"s_cmp_lt_u32 s{sW}, 8", "s_cbranch_scc1 L_nopf")
    e(f"s_getpc_b64 s[{sO+2}:{sO+3}]")
    e.lab("L_pc")
    e(f"s_lshl_b32 s{sO}, s{sO+1}, 2", f"s_add_u32 s{sO}, s{sO}, s{sI}", f"s_and_b32 s{sO}, s{sO}, 31", f"s_lshl_b32 s{sO}, s{sO}, 10")
    e(f"v_lshl_add_u32 v2, v0, 7, s{sO}", f"v_min_u32 v2, L_codeend-L_pc-4, v2", "s_mov_b64 exec, 0xff")
    e(f"global_load_dword v167, v2, s[{sO+2}:{sO+3}]", "s_mov_b64 exec, -1")
    e.lab("L_nopf")
    e(f"s_lshr_b32 s{sRB}, s{sIDX}, 3", f"s_and_b32 s{sCB}, s{sIDX}, 7", f"s_lshr_b32 s{sTB}, s{sIDX}, 4", f"s_and_b32 s{sHP}, s{sIDX}, 15")
    e(f"s_lshr_b32 s{sSB}, s{sCB}, 1", f"s_and_b32 s{sKIND}, s{sCB}, 1", f"s_mov_b32 s{sSPIN}, 0")
    for R, n in ((R_XA, 2 << 20), (R_WKV, 16384), (R_WQ, 512 << 10), (R_WS, WS_BYTES)):
        e(f"s_mov_b32 s{R+2}, {hex(n)}", f"s_mov_b32 s{R+3}, 0x20000")
    e(f"s_cmp_ge_u32 s{sW}, 8", "s_cbranch_scc1 L_q", f"s_cmp_ge_u32 s{sW}, 4", "s_cbranch_scc1 L_aux")
def srds(e, lst):
    size = {R_WOA: 512 << 10, R_XB: 2 << 20, R_WB: 1536 << 10, R_WOB: 512 << 10, R_OUT: 4 << 20}
    slot = {R_WOA: 32, R_XB: 40, R_WB: 48, R_WOB: 56, R_OUT: 64}
    for R in lst: e(f"s_load_dwordx2 s[{R}:{R+1}], s[0:1], {slot[R]}", f"s_mov_b32 s{R+2}, {hex(size[R])}", f"s_mov_b32 s{R+3}, 0x20000")

vHC, vH1, vHT = 5, 6, 7
def h_kv(e):
    fx, fw, acc = 32, 48, 24
    e.c("---- H: K/V projection")
    e("s_setprio 3")
    xa_voff(e, 8, 12)
    for z in range(1, 4): e(f"v_xor_b32 v{8+z}, {z<<6}, v8")
    e("v_lshlrev_b32 v12, 4, v0")
    e(f"s_add_u32 s{sO+3}, s{sRB}, s{sI}", f"s_and_b32 s{sO+3}, s{sO+3}, 3")
    e(f"s_lshr_b32 s{sO+1}, s{sIDX}, 1", f"s_lshl_b32 s{sO+1}, s{sO+1}, 14", f"s_lshl_b32 s{sO+2}, s{sO+3}, 8", f"s_add_u32 s{sO+1}, s{sO+1}, s{sO+2}")
    e(f"s_lshl_b32 s{sT}, s{sI}, 15", f"s_lshl_b32 s{sO+2}, s{sSB}, 12", f"s_add_u32 s{sT}, s{sT}, s{sO+2}")
    e(f"s_lshl_b32 s{sT+1}, s{sI}, 12", f"s_add_u32 s{sT+1}, s{sT+1}, {WKV_L}", f"s_lshl_b32 s{sO+3}, s{sO+3}, 12")
    e("s_waitcnt lgkmcnt(0)")
    for z in range(4):
        e(f"s_add_u32 m0, s{sT}, {z*1024}", f"s_add_u32 s{sO}, s{sO+1}, {z*4096}")
        dma(e, 8 + z, R_XA, sO, nt=True)
        e(f"s_add_u32 m0, s{sT+1}, {z*1024}", f"s_add_u32 s{sO}, s{sO+3}, {z*1024}")
        dma(e, 12, R_WKV, sO)
    load_epoch(e)
    e("s_barrier")
    stamp_init(e)
    e(f"v_mov_b32 v{vHC}, {CNT}", f"v_mov_b32 v{vH1}, 1")
    e("v_and_b32 v2, 15, v0", "v_lshrrev_b32 v3, 4, v0", "v_xor_b32 v4, v2, v3", "v_lshlrev_b32 v4, 4, v4", "v_lshl_add_u32 v4, v2, 8, v4")
    e(f"v_add_u32 v8, s{sT}, v4")
    for q in range(1, 4): e(f"v_xor_b32 v{8+q}, {q<<6}, v8")
    e("v_bfe_u32 v4, v0, 2, 2", "v_lshl_add_u32 v4, v3, 3, v4", "v_lshlrev_b32 v4, 5, v4", "v_and_b32 v13, 3, v0", "v_lshl_add_u32 v4, v13, 3, v4")
    e(f"v_add_u32 v13, s{sT+1}, v4", f"v_add_u32 v14, s{sT+1}, v12")
    e(f"s_lshl_b32 s{sO}, s{sI}, 2", f"v_add_u32 v15, s{sO}, v{vHC}")
    e(f"s_lshl_b32 s{sO}, s{sRB}, 11")
    e(f"s_lshr_b32 s{sO+1}, s{sSB}, 1", f"s_lshl_b32 s{sO+1}, s{sO+1}, 10", f"s_and_b32 s{sO+2}, s{sSB}, 1", f"s_lshl_b32 s{sO+2}, s{sO+2}, 8")
    e(f"s_add_u32 s{sO+1}, s{sO+1}, s{sO+2}", f"s_add_u32 s{sO+1}, s{sO+1}, {KW}")
    e(f"s_lshl_b32 s{sO+2}, s{sSB}, 9", f"s_add_u32 s{sO+2}, s{sO+2}, {VW}")
    e(f"s_cmp_eq_u32 s{sKIND}, 0", f"s_cselect_b32 s{sO+1}, s{sO+1}, s{sO+2}", f"s_cselect_b32 s{sO+2}, 9, 8", f"s_add_u32 s{sO+4}, s{sO}, s{sO+1}")
    e("v_and_b32 v4, 1, v3", f"v_lshlrev_b32 v4, s{sO+2}, v4", "v_lshl_add_u32 v20, v2, 4, v4")
    e(f"s_lshl_b32 s{sO+5}, s{sIDX}, 7", f"s_add_u32 s{sO+5}, s{sO+5}, {F1}")
    get_epoch(e)
    e("s_waitcnt vmcnt(0)")
    stamp(e, 1)
    for q in range(4):
        e(f"ds_read_b128 {vr(fx+4*q,4)}, v{8+q}")
        e(f"ds_read_b64_tr_b16 {vr(fw+4*q,2)}, v13 offset:{q*1024}", f"ds_read_b64_tr_b16 {vr(fw+4*q+2,2)}, v13 offset:{q*1024+128}")
    sig(e, 15, vH1, LAND)
    e(f"s_cmp_lg_u32 s{sKIND}, 0", "s_cbranch_scc1 L_kv_v")
    for kind in range(2):
        for q in range(4):
            a, b = (fw, fx) if kind == 0 else (fx, fw)
            e(f"s_waitcnt lgkmcnt({10-3*q})", f"{MF16} {vr(acc,4)}, {vr(a+4*q,4)}, {vr(b+4*q,4)}, {'0' if q == 0 else vr(acc,4)}")
        if kind == 0:
            e("s_branch L_kv_d"); e.lab("L_kv_v")
    e.lab("L_kv_d")
    e(f"s_cmp_eq_u32 s{sI}, 0", "s_cbranch_scc1 L_kv_0", "s_nop 5")
    e(f"ds_write_b128 v14, {vr(acc,4)}")
    sig(e, vHC, vH1, HCNT)
    e("s_branch L_h2")
    e.lab("L_kv_0")
    lds_wait(e, vHC, vHT, 3, HCNT, sleep=0)
    for k in range(1, 4): e(f"ds_read_b128 {vr(fx+4*k,4)}, v14 offset:{k*4096}")
    e("s_waitcnt lgkmcnt(1)")
    for k in range(2): e(f"v_pk_add_f32 {vr(fx+4+2*k,2)}, {vr(fx+4+2*k,2)}, {vr(fx+8+2*k,2)}")
    e("s_waitcnt lgkmcnt(0)")
    for k in range(2): e(f"v_pk_add_f32 {vr(acc+2*k,2)}, {vr(acc+2*k,2)}, {vr(fx+12+2*k,2)}")
    for k in range(2): e(f"v_pk_add_f32 {vr(acc+2*k,2)}, {vr(acc+2*k,2)}, {vr(fx+4+2*k,2)}")
    e(f"v_cvt_pk_bf16_f32 v28, v{acc}, v{acc+1}", f"v_cvt_pk_bf16_f32 v29, v{acc+2}, v{acc+3}", "s_nop 1")
    e("v_permlane32_swap_b32 v28, v30", "v_permlane32_swap_b32 v29, v31", "s_mov_b32 exec_hi, 0", "s_nop 0")
    e(f"buffer_store_dwordx4 v[28:31], v20, {sr(R_WS,4)}, s{sO+4} offen{SC}", "s_mov_b64 exec, -1")
    if "gate1" in OPT: sig(e, vHC, vH1, KVF)
    sig(e, vHC, vH1, HCNT)
    stamp(e, 2)
    e("s_waitcnt vmcnt(0)")
    set_flag(e, sO+5, 2, 3)
    if "gate2" in OPT: sig(e, vHC, vH1, KVF)
    stamp(e, 3)
    e("s_branch L_h2")

vT0, vQ16, vAN, vT1, AQ, AK, AV, S0, S1, AO, ANM = 0, 1, 2, 3, 4, 8, 40, 104, 120, 136, 152
vVo, vFa, vC, v1_ = S1, S1+1, S1+2, S1+3
def zero_pr(e):
    e(f"s_lshl_b32 s{sO}, s{sW}, 8", f"s_add_u32 m0, s{sO}, {PR_L - 1024}", "v_mov_b32 v2, 0", "ds_write_addtid_b32 v2")
def f_load(e):
    e.lab("L_aux")
    e.c("---- F: bulk loads")
    zero_pr(e)
    xa_voff(e, 8, 12)
    e(f"s_lshl_b32 s{sO}, s{sI}, 6", f"v_xor_b32 v8, s{sO}, v8")
    e("v_lshrrev_b32 v2, 3, v0", "v_bfe_u32 v3, v0, 4, 1", "v_lshlrev_b32 v3, 2, v3", "v_and_b32 v4, 7, v0", "v_xor_b32 v4, v4, v3")
    e("v_lshlrev_b32 v4, 4, v4", "v_lshl_add_u32 v12, v2, 10, v4")
    e(f"s_lshl_b32 s{sT}, s{sI}, 12")
    e(f"s_lshl_b32 s{sT+1}, s{sI}, 15", f"s_lshl_b32 s{sO}, s{sCB}, 7", f"s_add_u32 s{sT+1}, s{sT+1}, s{sO}")
    e(f"s_lshl_b32 s{sT+2}, s{sRB}, 16", f"s_add_u32 s{sT+2}, s{sT+2}, s{sT}", f"s_lshl_b32 s{sT+9}, s{sI}, 10")
    for du in range(1, 4):
        e(f"s_add_u32 s{sO}, s{sSB}, {du}", f"s_and_b32 s{sO}, s{sO}, 3")
        e(f"s_lshl_b32 s{sT+2+du}, s{sO}, 14", f"s_add_u32 s{sT+2+du}, s{sT+2+du}, s{sT+2}")
        e(f"s_lshl_b32 s{sT+5+du}, s{sO}, 12", f"s_add_u32 s{sT+5+du}, s{sT+5+du}, s{sT+9}")
    e(f"v_mov_b32 v{vC}, {CNT}", f"v_mov_b32 v{v1_}, 1")
    e("s_waitcnt lgkmcnt(0)")
    load_epoch(e)
    e("s_barrier")
    def chunk(sg):
        e(f"s_add_u32 s{sO+1}, s{sRB}, {sg}", f"s_and_b32 s{sO+1}, s{sO+1}, 3", f"s_lshl_b32 s{sO+2}, s{sO+1}, 8")
        e(f"s_lshl_b32 s{sO+1}, s{sO+1}, 17", f"s_add_u32 s{sO+1}, s{sO+1}, s{sT+1}")
        for i in range(4):
            e(f"s_add_u32 m0, s{sT}, {sg*SLOT + 16384 + i*1024}", f"s_add_u32 s{sO}, s{sO+1}, {i*8192}")
            dma(e, 12, R_WQ, sO)
        for du in range(1, 4):
            e(f"s_add_u32 m0, s{sT+5+du}, {sg*SLOT}", f"s_add_u32 s{sO}, s{sT+2+du}, s{sO+2}")
            dma(e, 8, R_XA, sO, nt=True)
    gated = "gate1" in OPT or "gate2" in OPT
    nb = 2 if gated else 4
    for sg in range(nb): chunk(sg)
    stamp_init(e)
    if gated:
        att_consts(e)
        get_epoch(e)
        e("s_waitcnt vmcnt(7)"); sig(e, vC, v1_, LAND)
        lds_wait(e, vC, S0, 1, KVF, sleep=1)
        chunk(2)
        e("s_waitcnt vmcnt(7)"); sig(e, vC, v1_, LAND + 4)
        chunk(3)
        stamp(e, 1)
        for sg in range(2, 4):
            e(f"s_waitcnt vmcnt({21-7*sg})"); sig(e, vC, v1_, LAND + 4*sg)
    else:
        stamp(e, 1)
        for sg in range(4):
            e(f"s_waitcnt vmcnt({21-7*sg})"); sig(e, vC, v1_, LAND + 4*sg)
        att_consts(e)
        get_epoch(e)
    stamp(e, 2)
    e("s_branch L_f2")

sAW, sP, sExp = sT+8, sT+9, sT+10
def att_consts(e):
    e(f"v_and_b32 v{S0}, 31, v0", f"v_cmp_eq_u32 vcc, 16, v{S0}", f"v_mov_b32 v{S0+1}, 0x3f803f80", f"v_lshlrev_b32 v{vQ16}, 4, v0")
    e(f"v_cndmask_b32 v{AV}, 0, v{S0+1}, vcc")
    for r in range(1, 64): e(f"v_mov_b32 v{AV+r}, v{AV}")
    e(f"v_lshlrev_b32 v{vAN}, 4, v{S0}", f"v_add_u32 v{vAN}, {NM_L}, v{vAN}")
    e(f"v_lshrrev_b32 v{vVo}, 5, v0", f"v_lshlrev_b32 v{vVo}, 8, v{vVo}", f"v_and_b32 v{S0+2}, 15, v0", f"v_lshl_add_u32 v{vVo}, v{S0+2}, 4, v{vVo}")
def gather_bases(e):
    e(f"s_sub_u32 s{sAW}, s{sW}, 4", f"s_lshl_b32 s{sO+2}, s{sAW}, 13")
    e(f"s_add_u32 s{sO}, s{sO+2}, {KW}", f"s_add_u32 s{sO+1}, s{sO+2}, {VW}", f"s_add_u32 s{sO+2}, s{sO}, 4096", f"s_add_u32 s{sO+3}, s{sO+1}, 4096")
def gather(e, t0, t1):
    for t in range(t0, t1):
        e(f"buffer_load_dwordx4 {vr(AK+4*t,4)}, v{vQ16}, {sr(R_WS,4)}, s{sO+2*(t>>2)} offen offset:{(t&3)*1024}{SC}")
        e("s_mov_b32 exec_lo, 0xffff", "s_mov_b32 exec_hi, 0xffff")
        for f in (2*t, 2*t+1):
            e(f"buffer_load_dwordx4 {vr(AV+4*f,4)}, v{vVo}, {sr(R_WS,4)}, s{sO+1+2*(t>>2)} offen offset:{(f&7)*512}{SC}")
        e("s_mov_b64 exec, -1")
def att_addrs(e):
    e(f"s_mul_i32 s{sExp}, s{sI}, {OS_PAIR}", f"s_add_u32 s{sExp}, s{sExp}, {OS_L}")
    e(f"v_add_u32 v{vT1}, s{sExp}, v{vQ16}", f"v_lshl_add_u32 v{vT0}, v0, 2, s{sExp}", f"v_add_u32 v{vQ16}, {QI_L}, v{vQ16}")
    e(f"s_lshl_b32 s{sO+4}, s{sI}, 8", f"s_add_u32 m0, s{sO+4}, {PR_L}")

def s_qproj(e):
    vXa, vWa, vXb, vWb, vSt, vLd = 8, 16, 17, 25, 26, 27
    acc, fr, NF, T = 104, 124, 5, 28
    a_, b_, c_, d_ = T, T+1, T+2, T+3
    e.lab("L_q")
    e.c("---- S: Q projection")
    zero_pr(e)
    e(f"s_mov_b32 m0, {CNT}", "s_nop 0", "ds_write_addtid_b32 v2", "s_waitcnt lgkmcnt(0)")
    load_epoch(e)
    e("s_barrier")
    stamp_init(e)
    e(f"v_mov_b32 v{vC}, {CNT}", f"v_mov_b32 v{v1_}, 1")
    if "tlb" in OPT:
        e("s_load_dwordx8 s[44:51], s[0:1], 32", "s_load_dwordx2 s[52:53], s[0:1], 64", "s_waitcnt lgkmcnt(0)")
        e(f"s_mov_b32 s{sO}, 0x200000", f"s_mov_b32 s{sO+1}, 0x1ffffc")
        for k, R in enumerate((44, 46, 48, 50, 52, R_WS)): e(f"s_load_dword s{54+k}, s[{R}:{R+1}], 0")
        e(f"s_load_dword s60, s[52:53], s{sO}", f"s_load_dword s61, s[{R_WS}:{R_WS+1}], s{sO}", f"s_load_dword s62, s[46:47], s{sO+1}")
    att_consts(e)
    e(f"s_and_b32 s{sO}, s{sI}, 1", f"s_lshl_b32 s{sO}, s{sO}, 13")
    e(f"v_and_b32 v{a_}, 31, v0", f"v_lshrrev_b32 v{b_}, 5, v0", f"v_and_b32 v{c_}, 15, v0", f"v_xor_b32 v{c_}, v{c_}, v{b_}")
    e(f"v_lshl_add_u32 v{d_}, v{a_}, 8, s{sO}", f"v_lshl_add_u32 v{vXa}, v{c_}, 4, v{d_}")
    for s in range(1, 8): e(f"v_xor_b32 v{vXa+s}, {s<<5}, v{vXa}")
    e(f"v_bfe_u32 v{a_}, v0, 2, 2", f"v_lshl_add_u32 v{c_}, v{b_}, 3, v{a_}", f"v_lshlrev_b32 v{c_}, 7, v{c_}", f"v_lshrrev_b32 v{a_}, 1, v{a_}")
    e(f"s_lshr_b32 s{sO}, s{sI}, 1", f"v_xor_b32 v{a_}, s{sO}, v{a_}", f"v_lshl_add_u32 v{c_}, v{a_}, 6, v{c_}")
    e(f"v_bfe_u32 v{a_}, v0, 4, 1", f"v_lshl_add_u32 v{c_}, v{a_}, 5, v{c_}", f"v_and_b32 v{a_}, 3, v0", f"v_lshl_add_u32 v{c_}, v{a_}, 3, v{c_}")
    e(f"v_add_u32 v{vWa}, 16384, v{c_}", f"v_lshl_add_u32 v{vLd}, v{a_}, 2, v{vC}")
    for s in range(9): e(f"v_add_u32 v{vXb+s}, 65536, v{vXa+s}")
    get_epoch(e)
    e(f"s_mov_b32 s{sT+6}, {hex(f32bits(CSC))}")
    e(f"s_and_b32 s{sO}, s{sI}, 2", f"s_add_u32 s{sO}, s{sO}, s{sI}", f"s_lshl_b32 s{sO}, s{sO}, 10", f"s_add_u32 s{sO}, s{sO}, {QI_L}", f"v_add_u32 v{b_}, s{sO}, v{vQ16}")
    e(f"s_lshl_b32 s{sO}, s{sI}, 2", f"v_add_u32 v{vFa}, s{sO}, v{vC}")
    gather_bases(e)
    def landwait(mask):
        lq = e.uniq("ql")
        e.lab(lq)
        e(f"ds_read_b32 v{a_}, v{vLd} offset:{LAND}", "s_waitcnt lgkmcnt(0)", f"v_cmp_gt_u32 vcc, 5, v{a_}")
        e(f"s_and_b32 s{sO+5}, vcc_lo, 15", f"s_and_b32 s{sO+4}, s{sO+5}, {mask}", f"s_cbranch_scc0 {lq}_d")
        spin_tail(e, lq, 1)
        e.lab(lq + "_d")
    def rd(n):
        sg, s = n >> 3, n & 7
        so = (sg & 1) * SLOT
        xa, wa = (vXa + s, vWa) if sg < 2 else (vXb + s, vWb)
        f = fr + 8 * (n % NF)
        e(f"ds_read_b128 {vr(f,4)}, v{xa} offset:{so}")
        e(f"ds_read_b64_tr_b16 {vr(f+4,2)}, v{wa} offset:{so+s*2048}", f"ds_read_b64_tr_b16 {vr(f+6,2)}, v{wa} offset:{so+s*2048+512}")
    e("s_setprio 3")
    landwait(1)
    stamp(e, 16)
    for n in range(NF): rd(n)
    for n in range(32):
        f = fr + 8 * (n % NF)
        e(f"s_waitcnt lgkmcnt({min(3*(NF-1), 3*(31-n))})", f"{MF32} {vr(acc,16)}, {vr(f+4,4)}, {vr(f,4)}, {'0' if n == 0 else vr(acc,16)}")
        if n + NF < 32:
            if (n + NF) % 8 == 0:
                bit = 1 << ((n + NF) >> 3)
                sk = e.uniq("lok")
                e(f"s_and_b32 s{sO+4}, s{sO+5}, {bit}", f"s_cbranch_scc0 {sk}")
                landwait(bit)
                e.lab(sk)
                if "qst" in OPT: stamp(e, 16 + ((n + NF) >> 3))
            rd(n + NF)
    if "qst" in OPT: stamp(e, 20)
    e(f"v_mov_b32 v{c_}, s{sT+6}", "s_nop 10")
    for r in range(8): e(f"v_pk_mul_f32 {vr(acc+2*r,2)}, {vr(acc+2*r,2)}, {vr(c_,2)} op_sel_hi:[1,0]")
    P = AO
    for j in range(8): e(f"v_cvt_pk_bf16_f32 v{P+j}, v{acc+2*j}, v{acc+2*j+1}")
    e(f"ds_write_b128 v{b_}, {vr(P,4)}", f"ds_write_b128 v{b_}, {vr(P+4,4)} offset:2048")
    sig(e, vC, v1_, ACNT)
    stamp(e, 2)
    lds_wait(e, vFa, S0+2, 1, SOK)
    lds_wait(e, vC, S0+2, 4, GCNT, sleep=2)
    if "sl" in OPT: lds_wait(e, vC, S0+2, 8, QST, sleep=2)
    if "sdelay" in OPT: lds_wait(e, vC, S0+2, 1, RDY1)
    stamp(e, 7)
    gather(e, 0, 8)
    sig(e, vC, v1_, GCNT)

def pk(S, j):
    d = S + (j if j < 4 else 4 + j)
    return f"v_cvt_pk_bf16_f32 v{d}, v{S+2*j}, v{S+2*j+1}"
def rdq(e):
    e(f"ds_read_b128 {vr(AQ,4)}, v{vQ16}")
    for k in range(4): e(f"ds_read_b128 {vr(ANM+4*k,4)}, v{vAN}")
def dump(e, kind):
    e(f"ds_write_b128 v{vT1}, {vr(AO,4)}", f"ds_write_b128 v{vT1}, {vr(AO+4,4)} offset:1024", f"ds_write_b32 v{vT0}, v{AO+8} offset:2048")
    e(f"ds_write_addtid_b32 v{vT1} offset:{0 if kind == 'F' else 1024}")
def advance(e):
    e(f"v_add_u32 v{vT1}, {OS_POS}, v{vT1}", f"v_add_u32 v{vT0}, {OS_POS}, v{vT0}")
def init_o(e, off):
    e(f"ds_read_b128 {vr(AO,4)}, v{vT1} offset:{off}", f"ds_read_b128 {vr(AO+4,4)}, v{vT1} offset:{off+1024}", f"ds_read_b32 v{AO+8}, v{vT0} offset:{off+2048}")

def att_block(e, mode):
    kind = "F" if mode[0] == "F" else "S"
    lo = LOF if kind == "F" else LOS
    def prio(p):
        if YS and mode in YMODES: return
        if mode != "B" and "noprio" not in OPT: e(f"s_setprio {p}")
        elif mode == "B" and "btog" in OPT: e(f"s_setprio {p}")
    for t in range(8):
        Sc, Sn = (S0, S1) if t % 2 == 0 else (S1, S0)
        tp, tn = (t - 1) % 8, (t + 1) % 8
        def X(*toks):
            for k in toks:
                X1(k)
                if YS and mode in YMODES and k in YS: e("s_nop 0")
        def X1(*toks):
            for k in toks: e(f"v_exp_f32 v{Sc+k}, v{Sc+k}" if isinstance(k, int) else pk(Sc, int(k[1:])))
        c0 = "0" if (t == 1 and kind == "F") else vr(AO, 16)
        pv0 = f"{MF32} {vr(AO,16)}, {vr(AV+8*tp,4)}, {vr(Sn,4)}, {c0}"
        pv1 = f"{MF32} {vr(AO,16)}, {vr(AV+8*tp+4,4)}, {vr(Sn+8,4)}, {vr(AO,16)}"
        qk = f"{MF32} {vr(Sn,16)}, {vr(AK+4*tn,4)}, {vr(AQ,4)}, {vr(ANM,16)}"
        if t == 1 and kind == "S":
            X(0); e(pk(Sn, 7)); X(1, 2)
            e("s_waitcnt lgkmcnt(0)", pv0); X(3, "p0", 4, "p1")
            e(pv1); X(5, 6, "p2", 7)
            e(qk); prio(lo)
            X(8, "p3", 9, 10, "p4", 11, 12)
            e("s_wakeup")
            prio(3)
            X("p5", 13, 14, "p6", 15)
            continue
        skip_pv = mode == "F0" and t == 0
        if mode == "F0" and t > 0: e(f"s_waitcnt vmcnt({max(0, 23 - 3*(t+1))})")
        if not skip_pv: e(pv0)
        X(0)
        if not skip_pv: e(pk(Sn, 7))
        X(1, 2)
        if not skip_pv: e(pv1)
        X(3, "p0", 4, "p1")
        if t == 7: e("s_waitcnt lgkmcnt(0)")
        if t == 7 and mode == "B": e(f"v_readfirstlane_b32 s{sPOLL}, v{Sn+4}")
        if skip_pv: e("s_waitcnt vmcnt(20)")
        e(qk)
        prio(lo)
        X(5, 6, "p2", 7, 8, "p3")
        if t == 0 and mode != "F0":
            if YS and mode in YMODES and not any(k in YS for k in (5, 6, 7, 8)): e("s_nop 0")
            if mode == "S":
                dump(e, kind); init_o(e, OS_POS); advance(e)
            elif mode == "F":
                dump(e, kind); advance(e)
            else:
                sk = e.uniq("nodump")
                e(f"s_cmp_eq_u32 s{sP}, {1 if mode == 'F' else 0}", f"s_cbranch_scc1 {sk}")
                dump(e, kind); advance(e)
                if mode == "B": e(f"s_add_u32 s{sExp}, s{sExp}, {OS_POS}")
                e.lab(sk)
                if mode == "B":
                    e(f"s_cmp_ge_u32 s{sPOLL}, s{sExp}", "s_cbranch_scc0 L_swait")
                    e.lab("L_swait_ret")
                    init_o(e, 0)
        X(9)
        if t == 6:
            if mode == "F0":
                e(f"v_mov_b32 v{Sc+4}, {CNT}")
                lds_wait(e, Sc+4, Sc+5, 8, ACNT, sleep=1)
            e(f"v_add_u32 v{vQ16}, 1024, v{vQ16}", f"v_add_u32 v{vAN}, 512, v{vAN}")
            rdq(e)
            if mode == "B": e(f"ds_read_addtid_b32 v{Sc+4}")
        X(10, "p4", 11, 12)
        w = WIN if kind == "F" else 12
        if w == 12: prio(3)
        X("p5", 13)
        if w == 13: prio(3)
        X(14)
        if w == 14: prio(3)
        X("p6", 15)
        if w == 15: prio(3)

def att_finish(e, kind):
    e(f"{MF32} {vr(AO,16)}, {vr(AV+8*7,4)}, {vr(S1,4)}, {vr(AO,16)}", pk(S1, 7), "s_nop 1")
    e(f"{MF32} {vr(AO,16)}, {vr(AV+8*7+4,4)}, {vr(S1+8,4)}, {vr(AO,16)}", "s_nop 11")
    dump(e, kind)
    e("s_waitcnt lgkmcnt(0)", "s_wakeup")
def qk0(e):
    e(f"{MF32} {vr(S0,16)}, {vr(AK,4)}, {vr(AQ,4)}, {vr(ANM,16)}", "s_nop 11")

def f_att(e):
    e.lab("L_f2")
    e("s_setprio 3")
    gather_bases(e)
    e(f"s_lshl_b32 s{sO+4}, s{sI}, 12", f"s_add_u32 s{sO+4}, s{sO+4}, {F1}", f"v_lshl_add_u32 v{vFa}, v0, 7, s{sO+4}")
    stamp(e, 6)
    gpoll(e, vFa, S0, 0xffffffff, 0, sleep=1)
    stamp(e, 7)
    gather(e, 0, 8)
    sig(e, vC, v1_, GCNT)
    att_addrs(e)
    stamp(e, 8)
    lds_wait(e, vC, S0, 1, RDY1, sleep=0)
    rdq(e)
    e(f"s_mov_b32 s{sP}, 1", "s_waitcnt vmcnt(23) lgkmcnt(0)")
    stamp(e, 3); cstamp(e, 13)
    qk0(e)
    att_block(e, "F0")
    stamp(e, 21); cstamp(e, 10)
    e.L.append("    .p2align 3")
    e.lab("L_floop")
    att_block(e, "F")
    e(f"s_add_u32 s{sP}, s{sP}, 1", f"s_cmp_lt_u32 s{sP}, 8", "s_cbranch_scc1 L_floop")
    att_finish(e, "F")
    stamp(e, 4); cstamp(e, 11)
    e("s_branch L_f3")

def s_att(e):
    att_addrs(e)
    e(f"s_mov_b32 s{sP}, 0", f"v_mov_b32 v{S0}, m0", "s_setprio 0")
    stamp(e, 8)
    if SHOLD: lds_wait(e, vC, S0+1, SHOLD, HCNT, sleep=16)
    lds_wait(e, S0, S0+1, 1, sleep=6)
    rdq(e)
    e("s_waitcnt vmcnt(0) lgkmcnt(0)")
    stamp(e, 3); cstamp(e, 13)
    qk0(e)
    e.L.append("    .p2align 3")
    e.lab("L_bloop")
    att_block(e, "B")
    e(f"s_add_u32 s{sP}, s{sP}, 1", f"s_cmp_ge_u32 s{sP}, 8", "s_cbranch_scc1 L_sfin")
    e(f"s_cmp_lt_u32 s{sPOLL}, {OS_L + 7*OS_POS}", "s_cbranch_scc1 L_bloop")
    stamp(e, 5)
    e("s_setprio 3")
    e.L.append("    .p2align 3")
    e.lab("L_sloop")
    att_block(e, "S")
    e(f"s_add_u32 s{sP}, s{sP}, 1")
    if STAMPS:
        e(f"s_cmp_lg_u32 s{sP}, 4", "s_cbranch_scc1 L_sns"); stamp(e, 4); cstamp(e, 10); e.lab("L_sns")
    e(f"s_cmp_lt_u32 s{sP}, 8", "s_cbranch_scc1 L_sloop")
    e.lab("L_sfin")
    att_finish(e, "S")
    if "s3pub" in OPT:
        e(f"s_cmp_lg_u32 s{sI}, 3", "s_cbranch_scc1 L_sx")
        stamp(e, 9)
        lane_id(e)
        out_prep(e)
        pub(e, 4, fast=True)
        e(f"v_mov_b32 v{vHC}, {CNT}", f"ds_write_b32 v{vHC}, v{vHC} offset:{QST}", "s_waitcnt lgkmcnt(0)", "s_wakeup")
        e.lab("L_sx")
    finish(e)
    e.lab("L_swait")
    e(f"v_mov_b32 v{S0+4}, m0")
    lds_wait(e, S0+4, S0+5, f"s{sExp}", sleep=4)
    e("s_branch L_swait_ret")

sBX, sBH, sBW, sKC, sBXL, sBHL, sBWL = sT, sT+1, sT+2, sT+3, sT+4, sT+5, sT+6
BA = 8
aq, ak, av, ahk, ahv, MC = 24, 40, 56, 72, 76, 80
MP = MC + 4
FR = 104
def b_prep(e):
    e.c("---- B prep")
    e("v_lshrrev_b32 v20, 3, v0", "v_and_b32 v21, 7, v0", "v_lshrrev_b32 v22, 1, v20", "v_xor_b32 v23, v21, v22", "v_lshlrev_b32 v23, 4, v23")
    e("v_lshl_add_u32 v1, v20, 11, v23", "v_xor_b32 v2, 64, v1")
    e(f"s_lshl_b32 s{sO}, s{sI}, 5", f"v_xor_b32 v3, s{sO}, v1")
    e("v_and_b32 v22, 1, v22", "v_lshlrev_b32 v22, 2, v22", "v_xor_b32 v23, v21, v22", "v_lshlrev_b32 v23, 4, v23")
    e("v_mul_u32_u24 v20, 3072, v20", "v_add_u32 v4, v20, v23", "v_xor_b32 v16, 32, v4")
    e(f"s_and_b32 s{sO}, s{sI}, 1", f"s_lshr_b32 s{sO+1}, s{sI}, 1", f"s_lshl_b32 s{sO+1}, s{sO+1}, 10")
    e(f"s_lshl_b32 s{sBX}, s{sRB}, 16", f"s_max_u32 s{sBH}, s{sBX}, 16384", f"s_sub_u32 s{sBH}, s{sBH}, 16384")
    e(f"s_add_u32 s{sBX}, s{sBX}, s{sO+1}", f"s_add_u32 s{sBH}, s{sBH}, s{sO+1}")
    e(f"s_lshl_b32 s{sO+1}, s{sO}, 15", f"s_add_u32 s{sBX}, s{sBX}, s{sO+1}")
    e(f"s_lshl_b32 s{sO+1}, s{sO}, 13", f"s_add_u32 s{sBH}, s{sBH}, s{sO+1}")
    e(f"s_mul_i32 s{sBW}, s{sI}, {16*3072}", f"s_lshl_b32 s{sO+1}, s{sCB}, 7", f"s_add_u32 s{sBW}, s{sBW}, s{sO+1}")
    e(f"s_lshl_b32 s{sKC}, s{sRB}, 1", f"s_add_u32 s{sKC}, s{sKC}, s{sCB}")
    e(f"s_lshl_b32 s{sBWL}, s{sI}, 11", f"s_add_u32 s{sBXL}, s{sBWL}, {RXO + 2048}", f"s_lshl_b32 s{sBHL}, s{sI}, 9", f"s_add_u32 s{sBHL}, s{sBHL}, {RXO}")
    e("v_and_b32 v20, 31, v0", "v_lshrrev_b32 v21, 5, v0", "v_bfe_u32 v22, v0, 1, 3", "v_xor_b32 v22, v22, v21", "v_lshlrev_b32 v22, 4, v22", "v_lshl_add_u32 v22, v20, 7, v22")
    e(f"s_lshl_b32 s{sO}, s{sO}, 12", f"s_add_u32 s{sO}, s{sO}, {RXO + 2048}", f"v_add_u32 v{BA}, s{sO}, v22")
    for s in range(1, 4): e(f"v_xor_b32 v{BA+s}, {s<<5}, v{BA}")
    e("v_bfe_u32 v20, v0, 2, 2", "v_and_b32 v23, 3, v0", "v_and_b32 v17, 2, v20", "v_or_b32 v18, v17, v21", "v_bfe_u32 v19, v0, 4, 1")
    e(f"s_and_b32 s{sO}, s{sI}, 2", f"v_or_b32 v19, s{sO}, v19", "v_xor_b32 v18, v18, v19")
    e("v_lshl_add_u32 v22, v21, 3, v20", "v_lshlrev_b32 v22, 7, v22", "v_lshl_add_u32 v22, v18, 5, v22", f"v_lshl_add_u32 v{BA+4}, v23, 3, v22")
    e("v_lshrrev_b32 v21, 4, v0", "v_bfe_u32 v22, v0, 1, 3", "v_xor_b32 v22, v22, v21", "v_lshlrev_b32 v22, 4, v22", "v_and_b32 v19, 15, v0")
    e("v_lshl_add_u32 v22, v19, 7, v22", f"v_add_u32 v{BA+5}, {RXO}, v22", f"v_xor_b32 v{BA+6}, 64, v{BA+5}")
    e("v_and_b32 v18, 1, v21", "v_or_b32 v18, v17, v18", f"v_xor_b32 v18, s{sI}, v18")
    e("v_lshl_add_u32 v22, v21, 3, v20", "v_lshlrev_b32 v22, 7, v22", "v_lshl_add_u32 v22, v18, 5, v22", f"v_lshl_add_u32 v{BA+7}, v23, 3, v22")
    e(f"v_mov_b32 v{MC}, {hex(f32bits(-1e30))}")
    for r in range(1, 20): e(f"v_mov_b32 v{MC+r}, v{MC}")
    def setm(reg, r, shift):
        m = 0
        for l in range(64):
            d = (l & 31) - ((r & 3) + 8 * (r >> 2) + 4 * (l >> 5)) + shift
            if 0 <= d <= 7: m |= 1 << l
        if m: e(f"s_mov_b32 exec_lo, {hex(m & 0xffffffff)}", f"s_mov_b32 exec_hi, {hex(m >> 32)}", f"v_mov_b32 v{reg}, 0")
    for r in range(16): setm(MC + r, r, 0)
    e(f"s_cmp_eq_u32 s{sRB}, 0", "s_cbranch_scc1 L_nomp")
    for r in range(12, 16): setm(MP + r, r, 32)
    e.lab("L_nomp")
    e("s_mov_b64 exec, -1")

def h_qprep(e):
    T, QK, SA, SB, KS = 20, 104, 120, 136, 24
    e.c("---- H: max images of positions i, 4+i")
    e(f"v_lshlrev_b32 v{T+2}, 4, v0")
    e(f"s_lshl_b32 s{sO+4}, s{sI}, 13", f"s_add_u32 s{sO+4}, s{sO+4}, {KW + 32768}")
    e(f"s_lshl_b32 s{sO+5}, s{sI}, 12", f"s_add_u32 s{sO+5}, s{sO+5}, {F1 + 16384}", f"v_lshl_add_u32 v{T+3}, v0, 7, s{sO+5}")
    e(f"s_lshl_b32 s{sO+5}, s{sI}, 2", f"v_add_u32 v17, s{sO+5}, v{vHC}")
    e(f"s_lshl_b32 s{sO}, s{sI}, 10", f"s_add_u32 s{sO}, s{sO}, {QI_L}", f"v_add_u32 v{T}, s{sO}, v{T+2}", f"v_and_b32 v18, 0x1ff, v{T+2}")
    e(f"s_lshl_b32 s{sO}, s{sI}, 9", f"s_add_u32 s{sO}, s{sO}, {NM_L}", f"v_add_u32 v18, s{sO}, v18")
    lds_wait(e, vHC, vHT, 5, LAND + (8 if "early" in OPT else 12), sleep=1)
    gpoll(e, T + 3, T + 1, 0x5555 if "sub" in OPT else 0xffffffff, 0, sleep=1)
    for t in range(NSAMP): e(f"buffer_load_dwordx4 {vr(KS+4*t,4)}, v{T+2}, {sr(R_WS,4)}, s{sO+4} offen offset:{1024*t}{SC}")
    if "sub" in OPT: gpoll_issue(e, T + 3, T + 1, 0xffffaaaa)
    else: sig(e, 17, vH1, SOK)
    lds_wait(e, vHC, vHT, 4, ACNT, sleep=1)
    e(f"ds_read_b128 {vr(QK,4)}, v{T}", f"ds_read_b128 {vr(QK+4,4)}, v{T} offset:4096", f"s_waitcnt vmcnt({1 if 'sub' in OPT else 0}) lgkmcnt(0)")
    for z in range(2):
        SS = (SA, SB, 40, 56)
        for t in range(NSAMP): e(f"{MF32} {vr(SS[t],16)}, {vr(KS+4*t,4)}, {vr(QK+4*z,4)}, 0")
        e(f"s_nop {12 - NSAMP}")
        m = 152 + 4*z
        regs = [SS[t] + r for t in range(NSAMP) for r in range(16)]
        e(f"v_max_f32 v{m}, v{regs[0]}, v{regs[1]}")
        for k in range(2, len(regs), 2): e(f"v_max3_f32 v{m}, v{m}, v{regs[k]}, v{regs[k+1]}")
        halfmax(e, m)
        e(f"v_sub_f32 v{m}, {hex(f32bits(-MOFF))}, v{m}")
        for r in range(1, 4): e(f"v_mov_b32 v{m+r}, v{m}")
        e(f"ds_write_b128 v18, {vr(m,4)} offset:{2048*z}")
        if z == 0: e(f"s_cmp_eq_u32 s{sI}, 0", "s_cselect_b32 exec_lo, 1, 0", "s_mov_b32 exec_hi, 0", f"ds_write_b32 v{vHC}, v{vH1} offset:{RDY1}", "s_mov_b64 exec, -1")
        else: sig(e, vHC, vH1, ACNT)
        stamp(e, 9 + z)
        if z == 0 and "sub" in OPT:
            gpoll_finish(e, T + 3, T + 1, 0xffffaaaa, 0)
            sig(e, 17, vH1, SOK)

class Lst(list):
    def __call__(self, *x): self.extend(x)
def b_dma_groups(j):
    ro = (j & 1) * RINGS
    G = [Lst() for _ in range(5)]
    g = G[0]
    g(f"s_add_u32 s{sO+1}, s{sKC}, {j}", f"s_and_b32 s{sO+1}, s{sO+1}, 7", f"s_lshl_b32 s{sO+2}, s{sO+1}, 7", f"s_mul_i32 s{sO+1}, s{sO+1}, {64*3072}")
    g(f"s_add_u32 s{sO+1}, s{sO+1}, s{sBW}", f"s_add_u32 s{sO+3}, s{sO+2}, s{sBX}")
    for u in range(2):
        g(f"s_add_u32 m0, s{sBXL}, {ro + u*1024}", f"s_add_u32 s{sO}, s{sO+3}, {u*16384}")
        dma(g, 1 + u, R_XB, sO, nt="bnt" in OPT)
    for p in range(3):
        g = G[1 + p]
        for u in range(2):
            g(f"s_add_u32 m0, s{sBWL}, {ro + p*8192 + u*1024}", f"s_add_u32 s{sO}, s{sO+1}, {p*1024 + u*8*3072}")
            dma(g, 4 if u == 0 else 16, R_WB, sO)
    g = G[4]
    g(f"s_add_u32 m0, s{sBHL}, {ro}", f"s_add_u32 s{sO}, s{sO+2}, s{sBH}", "s_mov_b32 exec_hi, 0")
    dma(g, 3, R_XB, sO)
    g("s_mov_b64 exec, -1")
    return G
def wo_groups(half):
    G = [Lst() for _ in range(4)]
    G[0](f"s_lshl_b32 s{sO+1}, s{sI}, 16", f"s_lshr_b32 s{sO+2}, s{sHP}, 1", f"s_lshl_b32 s{sO+2}, s{sO+2}, 7", f"s_add_u32 s{sO+1}, s{sO+1}, s{sO+2}", f"s_lshl_b32 s{sO+2}, s{sI}, 13")
    for u in range(8):
        g = G[u >> 1]
        g(f"s_add_u32 m0, s{sO+2}, {half*32768 + u*1024}", f"s_add_u32 s{sO}, s{sO+1}, {half*262144 + u*8192}")
        dma(g, 20, R_WO, sO)
    return G
def wo_voff(e):
    e("v_lshrrev_b32 v20, 3, v0", "v_bfe_u32 v21, v0, 4, 1", "v_lshlrev_b32 v21, 2, v21", "v_and_b32 v22, 7, v0", "v_xor_b32 v21, v21, v22", "v_lshlrev_b32 v21, 4, v21")
    e("v_lshl_add_u32 v20, v20, 10, v21", "v_lshlrev_b32 v21, 7, v0")
    e(f"s_cmp_eq_u32 s{sKIND}, 0", f"s_cselect_b32 s{R_WO}, s{R_WOA}, s{R_WOB}", f"s_cselect_b32 s{R_WO+1}, s{R_WOA+1}, s{R_WOB+1}", f"s_mov_b32 s{R_WO+2}, {hex(512 << 10)}")

def b_proj(e):
    D, XB_, HX_, WB_, NBUF = 4, FR, FR + 8, FR + 12, 12
    jobs = []
    def wreads(buf, areg, off):
        return [f"ds_read_b64_tr_b16 {vr(buf,2)}, v{areg} offset:{off}", f"ds_read_b64_tr_b16 {vr(buf+2,2)}, v{areg} offset:{off+512}"]
    for j in range(8):
        ro = (j & 1) * RINGS
        for s in range(4):
            x = XB_ + 4 * (s & 1)
            for p, acc in enumerate((aq, ak, av)):
                w = WB_ + 4 * (len(jobs) % NBUF)
                rds = ([f"ds_read_b128 {vr(x,4)}, v{BA+s} offset:{ro}"] if p == 0 else []) + wreads(w, BA + 4, ro + p*8192 + s*2048)
                A_, B_ = (w, x) if p < 2 else (x, w)
                jobs.append((rds, f"{MF32} {vr(acc,16)}, {vr(A_,4)}, {vr(B_,4)}, {'0' if (j == 0 and s == 0) else vr(acc,16)}"))
            s2, p = s >> 1, 1 + (s & 1)
            w = WB_ + 4 * (len(jobs) % NBUF)
            rds = ([f"ds_read_b128 {vr(HX_,4)}, v{BA+5+s2} offset:{ro}"] if p == 1 else []) + wreads(w, BA + 7, ro + p*8192 + s2*4096)
            acc = ahk if p == 1 else ahv
            A_, B_ = (w, HX_) if p == 1 else (HX_, w)
            jobs.append((rds, f"{MF16} {vr(acc,4)}, {vr(A_,4)}, {vr(B_,4)}, {'0' if (j == 0 and s2 == 0) else vr(acc,4)}"))
    q = []
    nxt = [0]
    def issue(upto):
        while nxt[0] < min(upto, 128):
            if "bnord" not in OPT or nxt[0] < 16:
                e(*jobs[nxt[0]][0]); q.extend([nxt[0]] * len(jobs[nxt[0]][0]))
            nxt[0] += 1
    e("s_waitcnt vmcnt(9)")
    sig(e, vHC, vH1, HCNT)
    lds_wait(e, vHC, vHT, 8, HCNT)
    stamp(e, 16)
    e(f"s_setprio {HM}")
    issue(D)
    G = []
    PA = 13
    for n in range(128):
        j, r = n >> 4, n & 15
        if n in q:
            last = len(q) - 1 - q[::-1].index(n)
            e(f"s_waitcnt lgkmcnt({len(q) - 1 - last})")
            del q[:last + 1]
        e(jobs[n][1] if "bnomf" not in OPT else "s_sleep 1")
        lim = 16 * (j + 1)
        if r < PA or j == 7: issue(min(n + 1 + D, lim))
        if r == 15 - D and j < 7:
            e(f"s_waitcnt vmcnt({1 if (j in (3, 4) and 'wpf' in OPT) else 0})")
            sig(e, vHC, vH1, HCNT); q.append(-1)
        if r == PA and j < 7:
            if "bwake" in OPT:
                e("s_waitcnt lgkmcnt(0)", "s_wakeup")
            lds_wait(e, vHC, vHT, 4 * (j + 3), HCNT, sleep=BSLEEP); del q[:]
            if j == 3: stamp(e, 17)
            G = b_dma_groups(j + 2) if j < 6 else wo_groups(0)
            if j in (2, 3) and "wpf" in OPT:
                g = Lst()
                g(f"s_and_b32 s{sO}, s{sIDX}, 31", f"s_lshl_b32 s{sO}, s{sO}, 2", f"s_add_u32 s{sO}, s{sO}, s{sI}", f"s_lshl_b32 s{sO}, s{sO}, 12", "s_mov_b32 exec_hi, 0")
                g(f"buffer_load_dword v22, v21, {sr(R_WOB if j == 2 else R_WOA,4)}, s{sO} offen", "s_mov_b64 exec, -1")
                G.append(g)
        if r >= PA and j < 7: issue(n + 1 + D - (1 if r < 15 else 0))
        for _ in range(2):
            if G: e(*G.pop(0))
    e("s_setprio 3")

def b_attn(e):
    Qf, Kf, Vf, Kp, Vp = 104, 112, 120, 128, 136
    PB = 140
    M = 152
    e.c("---- local attention")
    e(f"s_setprio {APR}")
    e("v_bfe_u32 v9, v0, 3, 1", "v_lshlrev_b32 v10, 10, v9", "v_bfe_u32 v9, v0, 4, 1", "v_lshl_add_u32 v10, v9, 7, v10")
    e("v_and_b32 v11, 7, v0", "v_lshl_add_u32 v10, v11, 4, v10", "v_lshrrev_b32 v12, 5, v0", "v_lshl_add_u32 v10, v12, 3, v10")
    e(f"s_and_b32 s{sO}, s{sI}, 2", f"s_lshl_b32 s{sO}, s{sO}, 10", f"s_add_u32 s{sO}, s{sO}, {EX_L}", f"s_and_b32 s{sO+1}, s{sI}, 1")
    e(f"s_lshl_b32 s{sO+2}, s{sO+1}, 8", f"s_add_u32 s{sO+2}, s{sO+2}, s{sO}", f"v_add_u32 v10, s{sO+2}, v10")
    e("v_lshlrev_b32 v13, 10, v12", "v_lshl_add_u32 v13, v9, 8, v13", "v_and_b32 v14, 15, v0", "v_lshl_add_u32 v13, v14, 3, v13")
    e(f"s_lshl_b32 s{sO+2}, s{sO+1}, 7", f"s_add_u32 s{sO+2}, s{sO+2}, s{sO}", f"v_add_u32 v13, s{sO+2}, v13")
    for j in range(4): e(f"v_cvt_pk_bf16_f32 v{16+j}, v{ahk+2*j}, v{ahk+2*j+1}")
    e("ds_write_b64 v10, v[16:17]", "ds_write_b64 v13, v[18:19] offset:512")
    sig(e, vHC, vH1, HCNT)
    e(f"s_lshl_b32 s{sO}, s{sI}, 10", f"s_add_u32 s{sO}, s{sO}, {EX_L}")
    e("v_lshl_add_u32 v11, v12, 3, v11", f"v_lshl_add_u32 v11, v11, 4, s{sO}", f"v_lshl_add_u32 v14, v0, 3, s{sO}")
    for j in range(8): e(f"v_cvt_pk_bf16_f32 v{Kf+j}, v{ak+2*j}, v{ak+2*j+1}")
    for j in range(8): e(f"v_cvt_pk_bf16_f32 v{Qf+j}, v{aq+2*j}, v{aq+2*j+1}")
    Sc0, Sc1, Sp = 24, 40, 8 + 56
    lds_wait(e, vHC, vHT, 40, HCNT)
    e(f"ds_read_b128 {vr(Kp,4)}, v11", f"ds_read_b128 {vr(Kp+4,4)}, v11 offset:256", f"ds_read_b64 {vr(Vp+2,2)}, v14 offset:512")
    e(f"s_setprio {HM}")
    e(f"{MF32} {vr(Sc0,16)}, {vr(Kf,4)}, {vr(Qf,4)}, {vr(MC,16)}", f"{MF32} {vr(Sc1,16)}, {vr(Kf+4,4)}, {vr(Qf+4,4)}, {vr(MC,16)}")
    e(f"s_setprio {APR}")
    for g in wo_groups(1): e(*g)
    for j in range(8): e(f"v_cvt_pk_bf16_f32 v{Vf+j}, v{av+2*j}, v{av+2*j+1}")
    for r in (Vp, Vp+1): e(f"v_mov_b32 v{r}, 0")
    for r in range(12): e(f"v_mov_b32 v{PB+r}, 0")
    e(f"s_lshl_b32 s{sO+1}, s{sRB}, 1", f"s_and_b32 s{sO+2}, s{sI}, 1", f"s_add_u32 s{sO+1}, s{sO+1}, s{sO+2}", f"s_lshl_b32 s{sO+1}, s{sO+1}, 15")
    e(f"s_lshl_b32 s{sO+2}, s{sCB}, 2", f"s_and_b32 s{sO+3}, s{sI}, 2", f"s_add_u32 s{sO+2}, s{sO+2}, s{sO+3}", f"s_lshl_b32 s{sO+2}, s{sO+2}, 10")
    e(f"s_add_u32 s{sO+1}, s{sO+1}, s{sO+2}", f"s_add_u32 s{sO+1}, s{sO+1}, {OB}")
    e("v_lshlrev_b32 v9, 4, v0", f"v_mov_b32 v22, {hex(f32bits(CSC))}", "s_waitcnt lgkmcnt(0)")
    for hd in range(2):
        Sc = (Sc0, Sc1)[hd]
        e(f"s_setprio {HM}", f"{MF32} {vr(Sp,16)}, {vr(Kp+4*hd,4)}, {vr(Qf+4*hd,4)}, {vr(MP,16)}", f"s_setprio {APR}")
        for k in range(4): e(f"v_max_f32 v{M+k}, v{Sc+k}, v{Sc+8+k}")
        e(f"v_max3_f32 v10, v{M}, v{M+1}, v{M+2}", "s_nop 5")
        for k in range(4): e(f"v_max3_f32 v{M+4+k}, v{Sc+4+k}, v{Sc+12+k}, v{Sp+12+k}")
        e(f"v_max3_f32 v10, v10, v{M+3}, v{M+4}", f"v_max3_f32 v10, v10, v{M+5}, v{M+6}", f"v_max_f32 v10, v10, v{M+7}")
        halfmax(e, 10)
        e("v_mul_f32 v10, v22, v10")
        for k in range(4): e(f"v_pk_fma_f32 {vr(M+2*k,2)}, {vr(M+2*k,2)}, v[22:23], v[10:11] op_sel_hi:[1,0,0] neg_lo:[0,0,1] neg_hi:[0,0,1]")
        for k in range(8): e(f"v_exp_f32 v{M+k}, v{M+k}")
        def cv(mask, dst, src):
            e(f"s_mov_b32 exec_lo, {hex(mask)}", f"s_mov_b32 exec_hi, {hex(mask)}")
            e(f"v_cvt_pk_bf16_f32 v{dst}, v{src}, v{src+1}", f"v_cvt_pk_bf16_f32 v{dst+1}, v{src+2}, v{src+3}")
        cv(0x0000ffff, PB, M); cv(0xffff0000, PB+4, M)
        cv(0x00ffff00, PB+2, M+4); cv(0xff000000, PB+6, M+4); cv(0x000000ff, PB+10, M+4)
        e("s_mov_b64 exec, -1")
        e(f"v_pk_add_f32 {vr(M,2)}, {vr(M,2)}, {vr(M+2,2)}", f"v_pk_add_f32 {vr(M+4,2)}, {vr(M+4,2)}, {vr(M+6,2)}")
        e(f"s_setprio {HM}")
        e(f"{MF32} {vr(Sc,16)}, {vr(Vf,4)}, {vr(PB,4)}, 0", f"{MF32} {vr(Sc,16)}, {vr(Vf+4,4)}, {vr(PB+4,4)}, {vr(Sc,16)}", f"{MF32} {vr(Sc,16)}, {vr(Vp,4)}, {vr(PB+8,4)}, {vr(Sc,16)}")
        e(f"s_setprio {APR}")
        e(f"v_pk_add_f32 {vr(M,2)}, {vr(M,2)}, {vr(M+4,2)}", f"v_add_f32 v10, v{M}, v{M+1}", "v_mov_b32 v11, v10", "s_nop 1")
        e("v_permlane32_swap_b32 v10, v11", "s_nop 0", "v_add_f32 v10, v10, v11", "v_rcp_f32 v10, v10", "s_nop 2")
        O = Sc + 8 * hd
        for k in range(4): e(f"v_pk_mul_f32 {vr(O+2*k,2)}, {vr(O+2*k,2)}, v[10:11] op_sel_hi:[1,0]")
        o = 12 + 4 * hd
        for j in range(4): e(f"v_cvt_pk_bf16_f32 v{o+j}, v{O+2*j}, v{O+2*j+1}")
        e(f"buffer_store_dwordx4 {vr(o,4)}, v9, {sr(R_WS,4)}, s{sO+1} offen offset:{1024*hd}{SC}")

vWt, vPo, vCk, vSt, vL16, vFl, vL4, vOC = 8, 9, 10, 11, 1, 2, 3, 4
tA, tB, vWt1, tD = 12, 13, 14, 15
GACC, GO, GW = 16, 48, 132
sTK, sOut = sT, sT+1
def out_table(e):
    W, Po, Ck, St = 164, 165, 166, 167
    e("v_lshrrev_b32 v30, 5, v0", "v_bfe_u32 v31, v0, 2, 2", "v_lshl_add_u32 v31, v30, 2, v31", f"v_lshlrev_b32 v{W}, 7, v31")
    e("v_bfe_u32 v31, v0, 3, 1", f"v_lshl_add_u32 v{W}, v31, 6, v{W}")
    e("v_and_b32 v31, 1, v0", f"v_lshl_add_u32 v{W}, v31, 5, v{W}", "v_bfe_u32 v31, v0, 1, 1", f"v_lshl_add_u32 v{W}, v31, 3, v{W}")
    e("v_bfe_u32 v31, v0, 4, 1", f"v_lshl_add_u32 v{W}, v31, 4, v{W}")
    e(f"v_and_b32 v{St}, 31, v0", f"v_lshlrev_b32 v{St}, 11, v{St}", f"v_lshl_add_u32 v{St}, v30, 5, v{St}")
    e(f"v_lshlrev_b32 v{Ck}, 2, v0", f"v_lshlrev_b32 v{Po}, 7, v0")
    e(f"v_lshlrev_b32 v31, 4, v0", f"v_add_u32 v31, {TB_L}, v31", "ds_write_b128 v31, v[164:167]")
def out_prep(e):
    e(f"v_lshlrev_b32 v{vL16}, 4, v0", f"v_add_u32 v{vFl}, {TB_L}, v{vL16}", f"ds_read_b128 v[8:11], v{vFl}")
    e(f"v_and_b32 v{vOC}, 3, v0", f"v_lshlrev_b32 v{vOC}, 8, v{vOC}", f"v_add_u32 v{vOC}, {PR_L + 1024}, v{vOC}")
    e(f"v_and_b32 v{vL4}, 31, v0", f"v_lshlrev_b32 v{vL4}, 2, v{vL4}")
    e(f"s_lshl_b32 s{sTK}, s{sTB}, 2", f"s_add_u32 s{sTK}, s{sTK}, s{sI}")

def pry_wait(e, lim, sleep=6):
    l = e.uniq("hp")
    e.lab(l)
    e(f"ds_read_b32 v{vHT}, v{vOC}", "s_waitcnt lgkmcnt(0)", f"v_cmp_gt_u32 vcc, {lim}, v{vHT}", f"s_cbranch_vccz {l}_d")
    spin_tail(e, l, sleep)
    e.lab(l + "_d")

pub_sites = []
def pub(e, add, keep=False, fast=False):
    site = len(pub_sites); pub_sites.append(site)
    e(f"s_add_u32 s{sO+4}, s{sI}, {add}", f"s_mov_b32 s{sRET}, {site}")
    if not fast:
        e(f"s_mul_i32 s{sO}, s{sO+4}, {OS_POS}", f"s_add_u32 s{sO}, s{sO}, {OS_L - OS_POS}")
        pry_wait(e, f"s{sO}", sleep=PSL)
    e("s_branch L_pub")
    e.lab(f"L_pub_ret{site}")

def pub_routine(e):
    P = GO
    site = 0
    e.lab("L_pub")
    e(f"s_mul_i32 s{sO+2}, s{sO+4}, {OS_POS}", f"s_add_u32 s{sO+2}, s{sO+2}, {OS_L}")
    e(f"v_add_u32 v{tA}, s{sO+2}, v{vL16}", f"v_add_u32 v{tB}, s{sO+2}, v{vL4}")
    e(f"s_and_b32 s{sO}, s{sO+4}, 1", f"s_lshl_b32 s{sO}, s{sO}, 2", f"s_lshr_b32 s{sO+1}, s{sO+4}, 1", f"s_add_u32 s{sO}, s{sO}, s{sO+1}")
    e(f"s_lshl_b32 s{sO+1}, s{sRB}, 3", f"s_add_u32 s{sO}, s{sO}, s{sO+1}", f"s_lshl_b32 s{sO}, s{sO}, 3", f"s_add_u32 s{sO}, s{sO}, s{sCB}")
    e(f"s_mul_i32 s{sO+3}, s{sO}, {REC}", f"s_add_u32 s{sO+3}, s{sO+3}, {OA}")
    e(f"s_lshl_b32 s{sO+5}, s{sIDX}, 3", f"s_add_u32 s{sO+5}, s{sO+5}, s{sO+4}", f"s_lshl_b32 s{sO+5}, s{sO+5}, 7", f"s_add_u32 s{sO+5}, s{sO+5}, {F4}")
    e(f"s_mov_b32 s{sO+1}, {hex(f32bits(LMAX))}")
    pry_wait(e, f"s{sO+2}", sleep=3)
    e(f"ds_read2st64_b32 {vr(P+32,2)}, v{tB} offset0:8 offset1:17", f"ds_read2st64_b32 {vr(P+34,2)}, v{tB} offset0:26 offset1:35")
    for a in range(2):
        for s in range(4): e(f"ds_read_b128 {vr(P+8*s+4*a,4)}, v{tA} offset:{s*OS_PAIR + a*1024}")
    e("s_waitcnt lgkmcnt(8)", f"v_pk_add_f32 {vr(P+32,2)}, {vr(P+32,2)}, {vr(P+34,2)}", f"v_add_f32 v{P+34}, v{P+32}, v{P+33}", f"v_rcp_f32 v{P+32}, v{P+34}")
    for a in range(2):
        e(f"s_waitcnt lgkmcnt({4-4*a})")
        for k in range(2):
            a_, b_, c_, d_ = (vr(P + 8*s + 4*a + 2*k, 2) for s in range(4))
            e(f"v_pk_add_f32 {a_}, {a_}, {b_}", f"v_pk_add_f32 {c_}, {c_}, {d_}", f"v_pk_add_f32 {a_}, {a_}, {c_}")
    e(f"v_pk_mul_f32 {vr(P+8,2)}, {vr(P,2)}, 0")
    for k in range(1, 4): e(f"v_pk_fma_f32 {vr(P+8,2)}, {vr(P+2*k,2)}, 0, {vr(P+8,2)}")
    e(f"v_add_f32 v{P+8}, v{P+8}, v{P+9}", f"v_add_f32 v{P+8}, v{P+8}, v{P+34}")
    e(f"v_cmp_ngt_f32 vcc, s{sO+1}, v{P+8}" if "forcefb" not in OPT else "v_cmp_eq_u32 vcc, v0, v0", "s_cbranch_vccnz L_exact")
    e.lab(f"L_exact_ret{site}")
    for k in range(4): e(f"v_pk_mul_f32 {vr(P+2*k,2)}, {vr(P+2*k,2)}, {vr(P+32,2)} op_sel_hi:[1,0]")
    for k in range(4): e(f"v_cvt_pk_bf16_f32 v{164+k}, v{P+2*k}, v{P+2*k+1}")
    e(f"s_cmp_ge_u32 s{sO+4}, 4", "s_cbranch_scc1 L_pub_tag")
    e(f"buffer_store_dwordx4 v[164:167], v{vL16}, {sr(R_WS,4)}, s{sO+3} offen{SC}", "s_waitcnt vmcnt(0)")
    set_flag(e, sO+5, tA, tB)
    e("s_branch L_pub_x")
    e.lab("L_pub_tag")
    mk_ck(e, tD, 164)
    if "nofast" not in OPT:
        e(f"s_add_u32 s{sO}, s{sO+3}, {FAST}")
        e(f"buffer_store_dwordx4 v[164:167], v{vL16}, {sr(R_WS,4)}, s{sO} offen", f"buffer_store_dword v{tD}, v{vCk}, {sr(R_WS,4)}, s{sO} offen offset:1024")
    e(f"buffer_store_dwordx4 v[164:167], v{vL16}, {sr(R_WS,4)}, s{sO+3} offen{SC}", f"buffer_store_dword v{tD}, v{vCk}, {sr(R_WS,4)}, s{sO+3} offen offset:1024{SC}")
    if "nofast" in OPT: set_flag(e, sO+5, tA, tB)
    e.lab("L_pub_x")
    for s in pub_sites[:-1]: e(f"s_cmp_eq_u32 s{sRET}, {s}", f"s_cbranch_scc1 L_pub_ret{s}")
    e(f"s_branch L_pub_ret{pub_sites[-1]}")

def exact(e):
    O, Q, Kr, V, S, NB, m, vo = GO, GO+36, GO+40, GO+44, GO+52, GO+68, GO+84, GO+86
    sK, sV = sO, sO+1
    e.lab("L_exact")
    e(f"s_mov_b32 s{sT+4}, 1", "s_waitcnt vmcnt(0)")
    e(f"s_lshl_b32 s{sK}, s{sO+4}, 10", f"s_add_u32 s{sK}, s{sK}, {QI_L}", f"v_add_u32 v{m}, s{sK}, v{vL16}", f"ds_read_b128 {vr(Q,4)}, v{m}")
    e(f"v_and_b32 v{m}, 31, v0", f"v_cmp_eq_u32 vcc, 16, v{m}", f"v_mov_b32 v{m+1}, 0x3f803f80", f"v_lshrrev_b32 v{vo}, 5, v0", f"v_cndmask_b32 v{V}, 0, v{m+1}, vcc")
    for r in range(1, 8): e(f"v_mov_b32 v{V+r}, v{V}")
    e(f"v_lshlrev_b32 v{vo}, 8, v{vo}", f"v_and_b32 v{m}, 15, v0", f"v_lshl_add_u32 v{vo}, v{m}, 4, v{vo}")
    for r in range(16): e(f"v_mov_b32 v{O+r}, 0")
    e(f"v_mov_b32 v{m}, 0xff800000", f"s_mov_b32 s{sK}, {KW}", "s_waitcnt lgkmcnt(0)")
    e.lab("L_ex1")
    e(f"buffer_load_dwordx4 {vr(Kr,4)}, v{vL16}, {sr(R_WS,4)}, s{sK} offen{SC}", "s_waitcnt vmcnt(0)")
    e(f"{MF32} {vr(S,16)}, {vr(Kr,4)}, {vr(Q,4)}, 0", "s_nop 11")
    for k in range(0, 16, 2): e(f"v_max3_f32 v{m}, v{m}, v{S+k}, v{S+k+1}")
    e(f"s_add_u32 s{sK}, s{sK}, 1024", f"s_cmp_lt_u32 s{sK}, {KW + 65536}", "s_cbranch_scc1 L_ex1")
    halfmax(e, m)
    for r in range(16): e(f"v_sub_f32 v{NB+r}, 0, v{m}")
    e(f"s_mov_b32 s{sK}, {KW}", f"s_mov_b32 s{sV}, {VW}")
    e.lab("L_ex2")
    e(f"buffer_load_dwordx4 {vr(Kr,4)}, v{vL16}, {sr(R_WS,4)}, s{sK} offen{SC}", "s_mov_b32 exec_lo, 0xffff", "s_mov_b32 exec_hi, 0xffff")
    e(f"buffer_load_dwordx4 {vr(V,4)}, v{vo}, {sr(R_WS,4)}, s{sV} offen{SC}", f"buffer_load_dwordx4 {vr(V+4,4)}, v{vo}, {sr(R_WS,4)}, s{sV} offen offset:512{SC}")
    e("s_mov_b64 exec, -1", "s_waitcnt vmcnt(0)")
    e(f"{MF32} {vr(S,16)}, {vr(Kr,4)}, {vr(Q,4)}, {vr(NB,16)}", "s_nop 11")
    for k in range(16): e(f"v_exp_f32 v{S+k}, v{S+k}")
    e("s_nop 0")
    for j in range(8): e(pk(S, j))
    e("s_nop 1", f"{MF32} {vr(O,16)}, {vr(V,4)}, {vr(S,4)}, {vr(O,16)}", f"{MF32} {vr(O,16)}, {vr(V+4,4)}, {vr(S+8,4)}, {vr(O,16)}")
    e(f"s_add_u32 s{sK}, s{sK}, 1024", f"s_add_u32 s{sV}, s{sV}, 1024", f"s_cmp_lt_u32 s{sK}, {KW + 65536}", "s_cbranch_scc1 L_ex2")
    e("s_nop 11", f"v_mov_b32 v{m}, v{O+8}", "s_nop 1", f"v_permlane32_swap_b32 v{O+8}, v{m}", "s_nop 0", f"v_rcp_f32 v{GO+32}, v{O+8}", "s_nop 0")
    e("s_branch L_exact_ret0")

def fetch(e, hl, c0, c1, base, ck=None):
    for c in range(c0, c1):
        e(f"s_add_u32 s{sO}, s{sT+2}, {(hl*8 + c)*REC}")
        e(f"buffer_load_dwordx4 {vr(base+4*c,4)}, v{vL16}, {sr(R_WS,4)}, s{sO} offen{SC}")
        if ck is not None: e(f"buffer_load_dword v{ck+c}, v{vCk}, {sr(R_WS,4)}, s{sO} offen offset:1024{SC}")
def verify(e, c0, c1, base, ck, younger, hl=3, sleep=0):
    l = e.uniq("vf")
    e(f"s_waitcnt vmcnt({younger})", f"s_branch {l}_v")
    e.lab(l)
    if "nofast" not in OPT:
        e(f"s_add_u32 s{sT+6}, s{sT+6}, 1", f"s_and_b32 s{sO}, s{sT+6}, {FTRY-1}", f"s_cselect_b32 s{sO}, 0, {FAST}", f"s_xor_b32 s{sT+5}, s{sT+5}, s{sO}", f"s_add_u32 s{sT+2}, s{sT+3}, s{sT+5}")
    fetch(e, hl, c0, c1, base, ck)
    e("s_waitcnt vmcnt(0)")
    e.lab(l + "_v")
    for c in range(c0, c1): chk(e, tA, tB, base + 4*c, ck + c, c == c0)
    e(f"v_cmp_ne_u32 vcc, 0, v{tA}", f"s_cbranch_vccz {l}_d")
    spin_tail(e, l, sleep)
    e.lab(l + "_d")
    e(f"s_mov_b32 s{sT+6}, 0")
def mul_a(e, steps, pre=True, vm=None, after=None):
    n = len(steps)
    def rdw(k):
        b = GW + 8*(k & 3); o = steps[k][0] * 2048
        for ct, va in enumerate((vWt, vWt1)):
            e(f"ds_read_b64_tr_b16 {vr(b+4*ct,2)}, v{va} offset:{o}", f"ds_read_b64_tr_b16 {vr(b+4*ct+2,2)}, v{va} offset:{o+1024}")
    if pre:
        for k in range(2): rdw(k)
        return
    for k in range(n):
        if k + 2 < n: rdw(k + 2)
        e(f"s_waitcnt {'vmcnt(%d) ' % vm(k) if vm else ''}lgkmcnt({min(8, 4*(n-1-k))})")
        for ct in range(2):
            e(f"{MF32} {vr(GACC+16*ct,16)}, {vr(GW+8*(k&3)+4*ct,4)}, {vr(steps[k][1],4)}, {'0' if steps[k][0] == 0 else vr(GACC+16*ct,16)}")
        if after: after(k)
def gpoll_s(e, vaddr, vtmp, pat, sleep):
    l = e.uniq("gp")
    e(f"s_lshl_b32 exec_lo, {hex(pat)}, s{sT+7}", "s_mov_b32 exec_hi, exec_lo")
    e.lab(l)
    e(f"buffer_load_dword v{vtmp}, v{vaddr}, {sr(R_WS,4)}, s{sT+8} offen sc1", "s_waitcnt vmcnt(0)")
    e(f"v_cmp_ne_u32 vcc, s{sEP}, v{vtmp}", "s_and_b64 exec, exec, vcc", f"s_cbranch_execz {l}_d")
    spin_tail(e, l, sleep)
    e.lab(l + "_d")
    e("s_mov_b64 exec, -1")

def out_store(e):
    e("s_nop 10")
    for ct in range(2):
        for j in range(8): e(f"v_cvt_pk_bf16_f32 v{GW+8*ct+j}, v{GACC+16*ct+2*j}, v{GACC+16*ct+2*j+1}")
        for z in range(2): e(f"buffer_store_dwordx4 {vr(GW+8*ct+4*z,4)}, v{vSt}, {sr(R_OUT,4)}, s{sOut} offen offset:{64*ct+16*z}")

def late_pubs(e):
    e.lab("L_latepub")
    e(f"s_cmp_eq_u32 s{sI}, 3", "s_cbranch_scc1 L_lpx")
    pub(e, 4)
    e.lab("L_lpx")
    finish(e)

def h_main(e):
    e.lab("L_h2")
    srds(e, (R_XB, R_WB, R_WOB, R_WOA, R_OUT))
    b_prep(e)
    out_table(e)
    h_qprep(e)
    if "noH" in OPT: finish(e)
    wo_voff(e)
    lds_wait(e, vHC, vHT, 8, GCNT, sleep=2)
    for j in range(2):
        for g in b_dma_groups(j): e(*g)
    stamp(e, 4)
    b_proj(e)
    stamp(e, 5)
    b_attn(e)
    e("s_setprio 3")
    e(f"s_lshl_b32 s{sO+5}, s{sIDX}, 2", f"s_add_u32 s{sO+5}, s{sO+5}, s{sI}", f"s_lshl_b32 s{sO+5}, s{sO+5}, 7", f"s_add_u32 s{sO+5}, s{sO+5}, {F3}")
    out_prep(e)
    e("s_waitcnt vmcnt(0)")
    set_flag(e, sO+5, tA, tB)
    sig(e, vHC, vH1, HCNT)
    stamp(e, 6)
    e(f"s_cmp_eq_u32 s{sKIND}, 0", "s_cbranch_scc1 L_latepub")
    e.c("---- B out-projection")
    e(f"s_lshr_b32 s{sO+2}, s{sTK}, 1", f"s_lshl_b32 s{sOut}, s{sO+2}, 17", f"s_and_b32 s{sO+3}, s{sI}, 1", f"s_lshl_b32 s{sO}, s{sO+3}, 11", f"s_add_u32 s{sOut}, s{sOut}, s{sO}")
    e(f"s_lshl_b32 s{sO}, s{sHP}, 6", f"s_add_u32 s{sOut}, s{sOut}, s{sO}", f"s_add_u32 s{sOut}, s{sOut}, {1024 - 64}")
    e(f"s_lshl_b32 s{sO+2}, s{sO+2}, 12", f"s_lshl_b32 s{sO+3}, s{sO+3}, 7", f"s_add_u32 s{sO+2}, s{sO+2}, s{sO+3}", f"s_add_u32 s{sO+2}, s{sO+2}, {F3}")
    e(f"v_lshl_add_u32 v{vFl}, v0, 8, s{sO+2}")
    e(f"s_lshl_b32 s{sT+2}, s{sTK}, 15", f"s_add_u32 s{sT+2}, s{sT+2}, {OB}")
    gpoll(e, vFl, vHT, 0xffff, 0, sleep=F3SLEEP)
    stamp(e, 7)
    NB = 21
    oreg = lambda k: GO + 4 * (k % NB)
    def ldo(k):
        e(f"s_add_u32 s{sT+3}, s{sT+2}, {(k>>2)*4096}", f"buffer_load_dwordx4 {vr(oreg(k),4)}, v{vL16}, {sr(R_WS,4)}, s{sT+3} offen offset:{(k&3)*1024}{SC}")
    for k in range(NB):
        ldo(k)
        if OBW and k >= OBW: e(f"s_waitcnt vmcnt({OBW})")
    lds_wait(e, vHC, vHT, 44, HCNT)
    e(f"v_lshl_add_u32 v{vSt}, v{vL4}, 9, v{vSt}", f"v_xor_b32 v{vWt1}, 64, v{vWt}")
    stamp(e, 8)
    e(f"s_setprio {FM}")
    SB_ = [(k, oreg(k)) for k in range(32)]
    if HGATE:
        S1_, S2_ = SB_[:32-NB], SB_[32-NB:]
        mul_a(e, S1_)
        mul_a(e, S1_, pre=False, vm=lambda k: min(OBW or 63, NB - 1), after=lambda k: ldo(k + NB))
        stamp(e, 18)
        mul_a(e, S2_)
        if HGATE == 8: lds_wait(e, vHC, vHT, 1, QST, sleep=PSL)
        else: pry_wait(e, OS_L + HGATE*OS_POS, sleep=PSL)
        e("s_setprio 1")
        mul_a(e, S2_, pre=False, vm=lambda k: NB - 1 - k)
    else:
        mul_a(e, SB_)
        mul_a(e, SB_, pre=False, vm=lambda k: min(NB - 1, 31 - k), after=lambda k: ldo(k + NB) if k + NB < 32 else None)
    out_store(e)
    finish(e)

def f_out(e):
    e.lab("L_f3")
    e.c("---- output stage A")
    if "noH" in OPT or "noF" in OPT: finish(e)
    srds(e, (R_OUT,))
    lane_id(e)
    out_prep(e)
    e(f"v_mov_b32 v{vHC}, {CNT}")
    pub(e, 0)
    stamp(e, 5)
    e(f"s_cmp_lg_u32 s{sKIND}, 0", "s_cbranch_scc1 L_latepub")
    e(f"s_lshl_b32 s{sOut}, s{sTK}, 16", f"s_lshl_b32 s{sO}, s{sHP}, 6", f"s_add_u32 s{sOut}, s{sOut}, s{sO}")
    e(f"v_xor_b32 v{vWt1}, 64, v{vWt}")
    e(f"s_mul_i32 s{sT+3}, s{sTK}, {32*REC}", f"s_add_u32 s{sT+3}, s{sT+3}, {OA}", f"s_mov_b32 s{sT+2}, s{sT+3}", f"s_mov_b32 s{sT+6}, 0")
    e(f"s_and_b32 s{sT+7}, s{sI}, 1", f"s_lshr_b32 s{sT+8}, s{sTK}, 1", f"s_lshl_b32 s{sT+8}, s{sT+8}, 13", f"s_add_u32 s{sT+8}, s{sT+8}, {F4}")
    e(f"s_mul_i32 s{sT+9}, s{sT+7}, {OS_POS}")
    if "nofast" not in OPT:
        e(f"s_add_u32 s{sO}, s{sT+3}, {FAST + 24*REC}", f"buffer_load_dword v6, v{vPo}, {sr(R_WS,4)}, s{sO} offen{SC}")
        e(f"s_add_u32 s{sO}, s{sO}, 8192", "s_mov_b64 exec, 0xffff", f"buffer_load_dword v6, v{vPo}, {sr(R_WS,4)}, s{sO} offen{SC}", "s_mov_b64 exec, -1")
    def gate(p, sleep):
        e(f"s_add_u32 s{sO+1}, s{sT+9}, {OS_L + p*OS_POS}")
        pry_wait(e, f"s{sO+1}", sleep=sleep)
    st = lambda hl, base, c0=0, c1=8: [(4*c + hl, base + 4*c) for c in range(c0, c1)]
    gate(3, PSL)
    gpoll_s(e, vPo, vHT, 0x05050505, 8)
    stamp(e, 16)
    fetch(e, 0, 0, 8, GO); fetch(e, 1, 0, 8, GO + 32)
    lds_wait(e, vHC, vHT, 44, HCNT, sleep=8)
    e(f"s_setprio {FM}")
    A01 = st(0, GO) + st(1, GO + 32)
    mul_a(e, A01); mul_a(e, A01, pre=False, vm=lambda k: 15 - k)
    stamp(e, 17)
    gate(5, 8)
    CK = GO + 64
    if "nofast" in OPT: gpoll_s(e, vPo, vHT, 0x10101010, 4)
    else: e(f"s_mov_b32 s{sT+5}, {FAST}", f"s_add_u32 s{sT+2}, s{sT+3}, {FAST}")
    stamp(e, 18)
    fetch(e, 2, 0, 8, GO, CK)
    A2 = st(2, GO)
    mul_a(e, A2)
    if "a2late" in OPT: lds_wait(e, vHC, vHT, f"s{sT+7}", QST, sleep=PSL)
    verify(e, 0, 8, GO, CK, 0, hl=2, sleep=4)
    mul_a(e, A2, pre=False)
    stamp(e, 19)
    gate(6, 3)
    mul_a(e, st(3, GO, 0, 4))
    if "nofast" in OPT: gpoll_s(e, vPo, vHT, 0x40404040, 1)
    fetch(e, 3, 0, 8, GO, CK)
    verify(e, 0, 4, GO, CK, 8)
    stamp(e, 9)
    mul_a(e, st(3, GO, 0, 4), pre=False)
    mul_a(e, st(3, GO, 4, 8))
    verify(e, 4, 8, GO, CK, 0)
    mul_a(e, st(3, GO, 4, 8), pre=False)
    out_store(e)
    e(f"s_xor_b32 s{sO}, s{sI}, 1", f"s_or_b32 s{sO}, s{sWG}, s{sO}", "s_cbranch_scc1 L_noep", f"s_mov_b32 s{sO}, {EPOCH_W}")
    set_flag(e, sO, tA, tB)
    e.lab("L_noep")
    finish(e)

def gen():
    e = Em()
    e.L.append(f".globl {KN}\n.p2align 8\n.type {KN},@function\n{KN}:")
    entry(e)
    h_kv(e)
    f_load(e)
    s_qproj(e)
    s_att(e)
    f_att(e)
    h_main(e)
    f_out(e)
    late_pubs(e)
    pub_routine(e)
    e.lab("L_codeend")
    exact(e)
    e.lab("L_end")
    e("s_endpgm")
    head = f"""; generated by work/gen16.py
; @launch grid=(256,1,1) block=(768,1,1) lds={LDS_BYTES}
.amdgcn_target "amdgcn-amd-amdhsa--gfx950"
.text
"""
    kd = f""".section .rodata,"a"
.p2align 6
.amdhsa_kernel {KN}
  .amdhsa_next_free_vgpr 168
  .amdhsa_next_free_sgpr 102
  .amdhsa_accum_offset 168
  .amdhsa_group_segment_fixed_size 0
  .amdhsa_kernarg_size 88
  .amdhsa_user_sgpr_count 2
  .amdhsa_user_sgpr_kernarg_segment_ptr 1
  .amdhsa_system_sgpr_workgroup_id_x 1
.end_amdhsa_kernel
"""
    return head + e.text() + kd

if __name__ == "__main__":
    args = [a for a in sys.argv[1:] if not a.startswith("-")]
    OPT.update(a[1:] for a in sys.argv[1:] if a.startswith("-"))
    if "stamps" in OPT: STAMPS = True
    OPT.update(("gate1", "wpf", "s3pub", "sub"))
    if "fast" not in OPT: OPT.add("nofast")

    for o in OPT:
        if o.startswith("moff"): MOFF = float(o[4:])
        if o.startswith("bd"): BDEPTH = int(o[2:])
        if o.startswith("hm"): HM = int(o[2:])
        if o.startswith("ns"): NSAMP = int(o[2:])
        if o.startswith("lf"): LOF = int(o[2:])
        if o.startswith("ls"): LOS = int(o[2:])
        if o.startswith("fm"): FM = int(o[2:])
        if o.startswith("ap"): APR = int(o[2:])
        if o.startswith("ys"): YS = tuple(int(x) for x in o[2:].split("_"))
        if o == "yall": YMODES = ('F', 'F0', 'S')
        if o.startswith("ow"): OBW = int(o[2:])
        if o.startswith("sh"): SHOLD = int(o[2:])
        if o.startswith("hg"): HGATE = int(o[2:])
        if o.startswith("win"): WIN = int(o[3:])
        if o.startswith("osc"): OSC = " " + o[3:].replace("_", " ")
        if o.startswith("dly"): DLY = tuple(int(x) for x in o[3:].split("_"))
        if o.startswith("bs"): BSLEEP = int(o[2:])
    out = args[0] if args else f"cdna_kernels/{NAME}.s"
    open(out, "w").write(gen())
    print("wrote", out)
```
